```python
import torch

def _softmax(x, axis=-1):
    return torch.softmax(x, dim=axis)

def _gelu(x):
    return torch.nn.functional.gelu(x, approximate='tanh')

def _silu(x):
    return torch.nn.functional.silu(x)

def _sigmoid(x):
    return torch.sigmoid(x)

def _layernorm(x, axis=-1, eps=1e-05):
    m = x.mean(dim=axis, keepdim=True)
    v = x.var(dim=axis, keepdim=True, unbiased=False)
    return (x - m) / torch.sqrt(v + eps)

def _scatter_add(tgt, idx, src, axis=0):
    return tgt.clone().index_add_(axis, idx, src)

def _segment_sum(src, seg, n):
    out = torch.zeros((n,) + src.shape[1:], dtype=src.dtype)
    return out.index_add_(0, seg, src)

def _pad(x, pw):
    flat = tuple((v for pair in reversed(pw) for v in pair))
    return torch.nn.functional.pad(x, flat)
kernel_name = 'adaLN_cond__spectral_fnet__swiglu_ffn__prompt'

def setup_inputs():

    _w = lambda a: (lambda t: t.to(torch.bfloat16) if t.is_floating_point() else t)(torch.as_tensor(a))

    def _A_setup():
        B, S, D = (1, 2048, 512)
        ns = torch.arange(S)[:, None] * torch.arange(S)[None, :]
        nd = torch.arange(D)[:, None] * torch.arange(D)[None, :]
        Ws_re = torch.cos(-2.0 * torch.pi * ns / S).to(float)
        Ws_im = torch.sin(-2.0 * torch.pi * ns / S).to(float)
        Wd_re = torch.cos(-2.0 * torch.pi * nd / D).to(float)
        Wd_im = torch.sin(-2.0 * torch.pi * nd / D).to(float)
        return {'x': _w((lambda *s: torch.randn(*s, dtype=torch.bfloat16) * 0.05)(B, S, D)), 'dft_seq_re': _w(Ws_re), 'dft_seq_im': _w(Ws_im), 'dft_hid_re': _w(Wd_re), 'dft_hid_im': _w(Wd_im)}
    _A_in = _A_setup()

    def _B_setup():
        B, S, D, F = (1, 2048, 512, 1376)
        return {'x': _w((lambda *s: torch.randn(*s, dtype=torch.bfloat16) * 0.05)(B, S, D)), 'w_gate': _w((lambda *s: torch.randn(*s, dtype=torch.bfloat16) * 0.4)(D, F)), 'w_up': _w((lambda *s: torch.randn(*s, dtype=torch.bfloat16) * 0.4)(D, F)), 'w_down': _w((lambda *s: torch.randn(*s, dtype=torch.bfloat16) * 0.4)(F, D))}
    _B_in = _B_setup()
    return {'A_x': _A_in['x'], 'A_dft_seq_re': _A_in['dft_seq_re'], 'A_dft_seq_im': _A_in['dft_seq_im'], 'A_dft_hid_re': _A_in['dft_hid_re'], 'A_dft_hid_im': _A_in['dft_hid_im'], 'B_x': _B_in['x'], 'B_w_gate': _B_in['w_gate'], 'B_w_up': _B_in['w_up'], 'B_w_down': _B_in['w_down'], 'c': _w((lambda *s: torch.randn(*s, dtype=torch.bfloat16) * 0.2)(1, 512) * 8.0), 'w_mod': _w((lambda *s: torch.randn(*s, dtype=torch.bfloat16) * 0.2)(512, 6 * 512) * 512 ** (-0.5) * 8.0)}

def reference(A_x, A_dft_seq_re, A_dft_seq_im, A_dft_hid_re, A_dft_hid_im, B_x, B_w_gate, B_w_up, B_w_down, c, w_mod):

    def _A_ref(x, dft_seq_re, dft_seq_im, dft_hid_re, dft_hid_im):
        a = torch.einsum('bsd,ed->bse', x, dft_hid_re)
        b = torch.einsum('bsd,ed->bse', x, dft_hid_im)
        y = torch.einsum('ts,bse->bte', dft_seq_re, a) - torch.einsum('ts,bse->bte', dft_seq_im, b)
        return y

    def _B_ref(x, w_gate, w_up, w_down):
        g = _silu(x @ w_gate)
        u = x @ w_up
        return g * u @ w_down
    x = A_x
    mod = (_silu(c) @ w_mod).reshape(c.shape[0], 6, 1, -1)
    sa, ca, ga, sb, cb, gb = (mod[:, 0].clone(), mod[:, 1].clone(), mod[:, 2].clone(), mod[:, 3].clone(), mod[:, 4].clone(), mod[:, 5].clone())
    h = _layernorm(x, axis=-1) * (1 + ca) + sa
    x = x + ga * _A_ref(h, A_dft_seq_re, A_dft_seq_im, A_dft_hid_re, A_dft_hid_im)
    h = _layernorm(x, axis=-1) * (1 + cb) + sb
    x = x + gb * _B_ref(h, B_w_gate, B_w_up, B_w_down)
    return x
```

```python
import re

def v(i, n=1):
    return f"v{i}" if n == 1 else f"v[{i}:{i+n-1}]"
def a(i, n=1):
    return f"a{i}" if n == 1 else f"a[{i}:{i+n-1}]"
def s(i, n=1):
    return f"s{i}" if n == 1 else f"s[{i}:{i+n-1}]"

_reg_re = re.compile(r"^(-|abs\(|\|)?([vas])(?:(\d+)|\[(\d+):(\d+)\])\)?\|?$")

def parse_reg(tok):
    tok = tok.strip()
    if tok in ("vcc",): return [("s", "vcc")]
    if tok in ("vcc_lo", "vcc_hi"): return [("s", "vcc")]
    if tok in ("exec", "exec_lo", "exec_hi"): return [("s", "exec")]
    if tok == "m0": return [("s", "m0")]
    m = _reg_re.match(tok)
    if not m: return []
    k = m.group(2)
    if m.group(3) is not None:
        return [(k, int(m.group(3)))]
    return [(k, i) for i in range(int(m.group(4)), int(m.group(5)) + 1)]

TRANS = ("v_exp_f32", "v_log_f32", "v_rcp_f32", "v_rsq_f32", "v_sqrt_f32", "v_sin_f32", "v_cos_f32", "v_rcp_iflag_f32")

class Ins:
    __slots__ = ("text", "op", "dst", "src", "kind", "tag", "mods", "srcC", "passes", "wide", "srcAB")
    def __init__(self, text, tag=None):
        self.text = text; self.tag = tag
        t = text.split(";")[0].strip()
        self.dst = []; self.src = []; self.kind = "other"; self.srcC = []; self.srcAB = []; self.passes = 0; self.wide = False
        if t.endswith(":") or t.startswith(".") or not t:
            self.op = t; self.kind = "label" if t.endswith(":") else "dir"; self.mods = ""; return
        sp = t.split(None, 1)
        self.op = op = sp[0]
        rest = sp[1] if len(sp) > 1 else ""
        parts = [p.strip() for p in rest.split(",")] if rest else []
        ops = []
        mods = ""
        for i, p in enumerate(parts):
            q = p.split()
            if not q: continue
            ops.append(q[0])
            if len(q) > 1: mods += " " + " ".join(q[1:])
        self.mods = mods = rest
        R = [parse_reg(o) for o in ops]
        flat = lambda L: [x for y in L for x in y]
        if op.startswith("v_mfma"):
            self.kind = "mfma"
            self.dst = R[0]; self.srcAB = R[1] + R[2]; self.srcC = R[3] if len(R) > 3 else []
            self.src = self.srcAB + self.srcC
            if "32x32x16" in op or "32x32x8" in op: self.passes = 8
            elif "16x16x4_f32" in op: self.passes = 8; self.kind = "mfma_s"
            elif "32x32x2_f32" in op: self.passes = 16; self.kind = "mfma_s"
            elif "16x16x32" in op or "16x16x16" in op: self.passes = 4
            else: raise ValueError("unknown mfma " + op)
        elif op.startswith("v_"):
            self.kind = "valu"
            if op.startswith("v_cmp"):
                self.dst = R[0]; self.src = flat(R[1:])
            elif op.startswith("v_swap") or op.startswith("v_permlane"):
                self.dst = R[0] + R[1]; self.src = R[0] + R[1]
            elif op.startswith(("v_add_co", "v_sub_co", "v_addc_co", "v_subb_co")):
                self.dst = R[0] + R[1]; self.src = flat(R[2:])
            else:
                self.dst = R[0]; self.src = flat(R[1:])
                if op.startswith(("v_fmac", "v_dot2c", "v_pk_fmac", "v_writelane")) or "dpp" in op or "row_" in mods or "quad_perm" in mods:
                    self.src = self.src + R[0]
                if op.startswith("v_cndmask") and len(R) == 3:
                    self.src = self.src + [("s", "vcc")]
        elif op.startswith(("buffer_", "global_")):
            if op.startswith(("buffer_inv", "buffer_wbl2")):
                self.kind = "vmem"; return
            self.kind = "vmem"
            islds = re.search(r"\blds\b", mods) is not None or "load_lds" in op
            if "load" in op and not islds:
                self.dst = R[0]; self.src = flat(R[1:])
            elif "atomic" in op and "sc0" in mods:
                self.dst = R[0]; self.src = flat(R)
            else:
                self.src = flat(R)
                if islds: self.src.append(("s", "m0")); self.kind = "vmem_lds"
                if "store" in op and ("x4" in op or "x3" in op):
                    self.wide = True
                    self.srcC = R[0] if op.startswith("buffer_") else R[1]
        elif op.startswith("ds_"):
            self.kind = "ds"
            if op.startswith(("ds_read", "ds_bpermute", "ds_permute", "ds_swizzle")):
                self.dst = R[0]; self.src = flat(R[1:])
            else:
                self.src = flat(R)
        elif op.startswith(("s_load", "s_buffer_load", "s_memtime", "s_memrealtime")):
            self.kind = "smem"; self.dst = R[0]; self.src = flat(R[1:])
        elif op.startswith("s_waitcnt"):
            self.kind = "wait"
        elif op.startswith(("s_cbranch", "s_branch", "s_endpgm", "s_setpc")):
            self.kind = "branch"
        elif op == "s_nop":
            self.kind = "nop"
        elif op.startswith("s_"):
            self.kind = "salu"
            if op.startswith(("s_cmp", "s_bitcmp", "s_barrier", "s_sleep", "s_setprio")):
                self.src = flat(R)
            else:
                self.dst = R[0] if R else []; self.src = flat(R[1:])
                if "saveexec" in op: self.dst = self.dst + [("s", "exec")]; self.src = self.src + [("s", "exec")]
                if op.startswith(("s_addk", "s_mulk")): self.src = self.src + R[0]
        else:
            raise ValueError("unknown instruction " + text)

class Asm:
    def __init__(self):
        self.ins = []
        self.nlabel = 0
    def __call__(self, text, tag=None):
        for l in text.split("\n"):
            l = l.strip()
            if not l or l.startswith(";"): continue
            self.ins.append(Ins(l, tag))
    def label(self, base="L"):
        Asm._n = getattr(Asm, "_n", 0) + 1
        return f".{base}_{Asm._n}"
    def wait_tag(self, tag):
        i = Ins("s_nop 0"); i.kind = "waittag"; i.tag = tag; self.ins.append(i)
    def reset(self):
        i = Ins("s_nop 0"); i.kind = "reset"; self.ins.append(i)
    def extend(self, other):
        self.ins.extend(other.ins)

    def _insert_waits(self):
        out = []
        vm = []
        lg = []
        def need(q, regs, getset):
            idx = -1
            for n, e in enumerate(q):
                if getset(e) & regs: idx = n
            return idx
        for I in self.ins:
            if I.kind == "reset":
                vm.clear(); lg.clear(); continue
            if I.kind == "waittag":
                idx = -1
                for n, e in enumerate(vm):
                    if e[0] == I.tag: idx = n
                if idx >= 0:
                    cnt = len(vm) - 1 - idx
                    out.append(Ins(f"s_waitcnt vmcnt({min(cnt,63)})"))
                    del vm[:idx + 1]
                continue
            if I.kind == "wait":
                m = re.search(r"vmcnt\((\d+)\)", I.text)
                if m:
                    n = int(m.group(1))
                    if len(vm) > n: del vm[:len(vm) - n]
                m = re.search(r"lgkmcnt\((\d+)\)", I.text)
                if m:
                    n = int(m.group(1))
                    if n == 0: lg.clear()
                    elif len(lg) > n and not any(e[0] == "smem" for e in lg): del lg[:len(lg) - n]
                out.append(I); continue
            regs = set(I.src) | set(I.dst)
            if regs:
                idx = need(vm, regs, lambda e: e[1])
                w = []
                if idx >= 0:
                    cnt = len(vm) - 1 - idx
                    if cnt > 63: cnt = 63;
                    w.append(f"vmcnt({cnt})"); del vm[:len(vm) - cnt]
                idx = need(lg, regs, lambda e: e[1])
                if idx >= 0:
                    if any(e[0] == "smem" for e in lg):
                        w.append("lgkmcnt(0)"); lg.clear()
                    else:
                        cnt = min(len(lg) - 1 - idx, 15)
                        w.append(f"lgkmcnt({cnt})"); del lg[:len(lg) - cnt]
                if w: out.append(Ins("s_waitcnt " + " ".join(w)))
            if I.kind in ("vmem", "vmem_lds"):
                vm.append((I.tag, set(I.dst)))
                if len(vm) > 63:
                    pass
            elif I.kind == "ds":
                lg.append(("ds", set(I.dst)))
            elif I.kind == "smem":
                lg.append(("smem", set(I.dst)))
            out.append(I)
        self.ins = out

    def _hazards(self):
        out = []
        def states(I):
            if I.kind == "nop": return int(I.text.split()[1]) + 1
            if I.kind in ("label", "dir"): return 0
            return 1
        for I in self.ins:
            if I.kind in ("label", "dir", "nop", "wait"):
                out.append(I); continue
            needw = 0
            dist = 0
            S = set(I.src); D = set(I.dst)
            isvalu = I.kind == "valu"
            ismf = I.kind in ("mfma", "mfma_s")
            isdpp = isvalu and ("dpp" in I.op or "row_" in I.mods or "quad_perm" in I.mods)
            for P in reversed(out):
                if dist >= 21: break
                PD = set(P.dst)
                req = 0
                if P.kind == "valu":
                    pv = {r for r in PD if r[0] in "va"}
                    ps = {r for r in PD if r[0] == "s"}
                    if ismf and pv & S: req = max(req, 2)
                    if isvalu and pv & S:
                        if isdpp or I.op.startswith("v_permlane"): req = max(req, 2)
                        if I.op.startswith(("v_readlane", "v_readfirstlane")): req = max(req, 1)
                        if P.op.split("_e")[0] in TRANS and I.op.split("_e")[0] not in TRANS: req = max(req, 1)
                        if "op_sel" in P.mods and not P.op.startswith("v_pk") or "sdwa" in P.op: req = max(req, 1)
                    if ps & S:
                        if isvalu: req = max(req, 4 if I.op.startswith(("v_readlane", "v_writelane")) else 2)
                        if I.kind in ("vmem", "vmem_lds"): req = max(req, 5)
                        if I.kind in ("salu", "smem", "branch"): req = max(req, 1)
                    if ("s", "vcc") in ps and I.op.startswith("s_cbranch_vcc"): req = max(req, 1)
                elif P.kind in ("mfma", "mfma_s"):
                    xdl = P.kind == "mfma"
                    p = P.passes
                    t_valu = {2: 5, 4: 8, 8: 12, 16: 20}[p] if xdl else {2: 4, 4: 6, 8: 10, 16: 18}[p]
                    t_c = {2: 4, 4: 6, 8: 10, 16: 18}[p]
                    if ismf:
                        if PD & set(I.srcAB): req = max(req, t_valu)
                        if PD & set(I.srcC):
                            same = (P.dst == I.srcC and P.passes == I.passes and P.kind == I.kind)
                            if not same: req = max(req, t_c)
                        elif PD & D:
                            req = max(req, t_c)
                    elif (PD & (S | D)) and I.kind in ("valu", "vmem", "vmem_lds", "ds"):
                        req = max(req, t_valu)
                    if isvalu and xdl and set(P.srcC) & D: req = max(req, {2: 1, 4: 3, 8: 7, 16: 15}[p])
                elif P.kind == "salu":
                    if ("s", "m0") in PD and I.kind == "vmem_lds": req = max(req, 1)
                elif P.kind == "vmem" and P.wide:
                    if set(P.srcC) & D: req = max(req, 2)
                if req > dist: needw = max(needw, req - dist)
                dist += states(P)
            while needw > 0:
                n = min(needw, 16)
                out.append(Ins(f"s_nop {n-1}")); needw -= n
            out.append(I)
        self.ins = out

    def finalize(self, waits=True, hazards=True):
        if waits: self._insert_waits()
        else: self.ins = [i for i in self.ins if i.kind not in ("reset", "waittag")]
        if hazards: self._hazards()
        lines = []
        for I in self.ins:
            if I.kind in ("label", "dir"): lines.append(I.text)
            else: lines.append("  " + I.text)
        return "\n".join(lines) + "\n"
    def text(self):
        return self.finalize(waits=False, hazards=False)

def kernel_begin(A, name):
    A(f".globl {name}")
    A(".p2align 8")
    A(f".type {name},@function")
    A(f"{name}:")

def kernel_desc(name, nvgpr, nagpr=0, nsgpr=102, ids="x", denorm=True):
    acc = max(4, (nvgpr + 3) // 4 * 4)
    total = acc + nagpr if nagpr else nvgpr
    t = [f".amdhsa_kernel {name}",
         f"  .amdhsa_next_free_vgpr {total}",
         f"  .amdhsa_next_free_sgpr {nsgpr}",
         f"  .amdhsa_accum_offset {acc}",
         "  .amdhsa_group_segment_fixed_size 0",
         "  .amdhsa_kernarg_size 112",
         "  .amdhsa_user_sgpr_count 2",
         "  .amdhsa_user_sgpr_kernarg_segment_ptr 1",
         "  .amdhsa_system_sgpr_workgroup_id_x 1"]
    if "y" in ids:
        t.append("  .amdhsa_system_sgpr_workgroup_id_y 1")
    if denorm:
        t.append("  .amdhsa_float_denorm_mode_32 3")
    t.append(".end_amdhsa_kernel")
    return "\n".join(t) + "\n"

def file_text(header_lines, launches, code, descs):
    out = []
    out += header_lines
    if len(launches) == 1 and launches[0][0] is None:
        g, b, lds = launches[0][1:]
        out.append(f"; @launch grid=({g[0]},{g[1]},{g[2]}) block=({b[0]},{b[1]},{b[2]}) lds={lds}")
    else:
        for (k, g, b, lds) in launches:
            out.append(f"; @launch kernel={k} grid=({g[0]},{g[1]},{g[2]}) block=({b[0]},{b[1]},{b[2]}) lds={lds}")
    out.append('.amdgcn_target "amdgcn-amd-amdhsa--gfx950"')
    out.append(".text")
    out.append(code)
    out.append('.section .rodata,"a"')
    for d in descs:
        out.append(".p2align 6")
        out.append(d)
    return "\n".join(out)
```

```python
import sys, struct, math
from asmlib import *

NAME = "adaLN_cond__spectral_fnet__swiglu_ffn__prompt"
def fbits(x): return "0x%08x" % struct.unpack("<I", struct.pack("<f", x))[0]

SLOTSTR = 65536 + 0
WS_U   = 0
WS_MOD = 0x240000
WS_H2  = 0x300000
WS_X1  = 0x500000
WS_ACT = 0x800000
WS_FLG = 0xE00000
WS_SIZE = 0x1000000
LDS_TOTAL = 163840
SLOT = 24640; UOFF = 12320
XRS = 1056
XIMG = LDS_TOTAL - 64 * XRS
XTAB = XIMG - 512
MW = XIMG
MSC = MW + 32768
MRED = MSC + 1024
K2EX = 123200
K2HB = K2EX + 18432
S_X, S_WG, S_WU, S_WD, S_C, S_WM, S_OUT, S_WS = 4, 8, 12, 16, 20, 24, 28, 32
def srd(b): return s(b, 4)

def prologue(A, done):
    A(f"""
    s_cmp_ge_u32 s2, 256
    s_cbranch_scc1 {done}
    s_load_dwordx2 s[4:5], s[0:1], 0
    s_load_dwordx2 s[8:9], s[0:1], 48
    s_load_dwordx2 s[12:13], s[0:1], 56
    s_load_dwordx2 s[16:17], s[0:1], 64
    s_load_dwordx2 s[20:21], s[0:1], 72
    s_load_dwordx2 s[24:25], s[0:1], 80
    s_load_dwordx2 s[28:29], s[0:1], 88
    s_load_dwordx2 s[32:33], s[0:1], 104
    v_lshrrev_b32 v2, 6, v0
    v_and_b32 v1, 63, v0
    v_readfirstlane_b32 s3, v2
    v_and_b32 v2, 15, v0
    v_bfe_u32 v3, v0, 4, 2
    """)
    for b, sz in ((S_X, 2097152), (S_WG, 1409024), (S_WU, 1409024), (S_WD, 1409024), (S_C, 1024), (S_WM, 3145728), (S_OUT, 2097152), (S_WS, WS_SIZE)):
        A(f"s_mov_b32 s{b+2}, {sz}\ns_mov_b32 s{b+3}, 0x20000")
    A("s_waitcnt lgkmcnt(0)")

def bf16r(A, dst, src):
    A(f"v_cvt_pk_bf16_f32 {dst}, {src}, {src}\nv_lshlrev_b32 {dst}, 16, {dst}")

def k1_ln(A, st="sc1"):
    sN2, sO = 36, 37
    A("""
    s_and_b32 s38, s2, 7
    s_lshr_b32 s39, s2, 3
    s_lshr_b32 s40, s39, 2
    s_lshl_b32 s40, s40, 3
    s_add_u32 s36, s38, s40
    s_and_b32 s37, s39, 3
    """)
    A(f"""
    v_lshlrev_b32 v4, 4, v1
    s_lshl_b32 s38, s3, 9
    s_add_u32 s38, s38, s36
    s_lshl_b32 s38, s38, 10
    s_mul_i32 s39, s3, {16*XRS}
    s_add_u32 s39, s39, {XIMG}
    """)
    for i in range(16):
        A(f"s_add_u32 m0, s39, {i*XRS}")
        if i: A(f"s_add_u32 s38, s38, 32768")
        A(f"buffer_load_dwordx4 v4, {srd(S_X)}, s38 offen lds", tag="x")
    BC = 16
    NV = 48
    A("v_lshlrev_b32 v5, 3, v3\nv_cvt_f32_u32 v5, v5")
    for ks in range(2):
        for j in range(8):
            A(f"v_add_f32 v{NV+ks*8+j}, {fbits(32*ks+j)}, v5")
    A("v_cvt_f32_u32 v6, v2\nv_mul_f32 v6, 0x3c800000, v6")
    A("v_add_f32 v7, 0x3e800000, v6")
    A("v_cmp_eq_u32 vcc, 0, v2\nv_mov_b32 v8, 0x3e800000\nv_cndmask_b32 v9, v6, 0.5, vcc\nv_cndmask_b32 v10, v8, 0, vcc")
    for sh in range(2):
        for c in range(2):
            fs = ("v6", "v7")[sh] if c == 0 else ("v9", "v7")[sh]
            off = None if c == 0 else ("v10", "v8")[sh]
            for ks in range(2):
                b = BC + ((sh*2 + c)*2 + ks)*4
                for j in range(8):
                    if off is None: A(f"v_mul_f32 v{64+j}, v{NV+ks*8+j}, {fs}")
                    else: A(f"v_fma_f32 v{64+j}, v{NV+ks*8+j}, {fs}, {off}")
                for j in range(8): A(f"v_cos_f32 v{64+j}, v{64+j}")
                for jj in range(4): A(f"v_cvt_pk_bf16_f32 v{b+jj}, v{64+2*jj}, v{65+2*jj}")
    ONES, G, SA = 112, 116, 120
    for i in range(4): A(f"v_mov_b32 v{ONES+i}, 0x3f803f80")
    A(f"""
    s_mul_i32 s38, s3, {16*XRS}
    s_add_u32 s38, s38, {XIMG}
    v_mul_u32_u24 v5, {XRS}, v2
    v_lshl_add_u32 v5, v3, 4, v5
    v_add_u32 v5, s38, v5
    v_bfe_u32 v6, v1, 2, 2
    v_lshl_add_u32 v6, v3, 3, v6
    v_mul_u32_u24 v6, {XRS}, v6
    v_and_b32 v7, 3, v1
    v_lshl_add_u32 v6, v7, 6, v6
    s_lshl_b32 s38, s3, 8
    s_lshl_b32 s39, s37, 4
    s_add_u32 s38, s38, s39
    s_add_u32 s38, s38, {XIMG}
    v_add_u32 v6, s38, v6
    s_lshl_b32 s38, s3, 6
    s_add_u32 s38, s38, {XTAB}
    v_lshl_add_u32 v7, v2, 2, s38
    v_lshlrev_b32 v8, 5, v3
    v_add_u32 v8, {XTAB}, v8
    s_mov_b32 s40, 0x22222222
    s_mov_b32 s41, 0x22222222
    s_mov_b32 s42, 0x44444444
    s_mov_b32 s43, 0x44444444
    s_mov_b32 s44, 0x88888888
    s_mov_b32 s45, 0x88888888
    v_lshlrev_b32 v9, 16, v2
    v_lshl_add_u32 v9, v3, 4, v9
    s_lshl_b32 s46, s36, 11
    s_lshl_b32 s47, s37, 9
    s_add_u32 s46, s46, s47
    s_lshl_b32 s47, s3, 6
    s_add_u32 s46, s46, s47
    s_add_u32 s46, s46, {WS_U}
    s_add_u32 s47, s46, {16*SLOTSTR}
    """)
    if SLOTSTR != 65536:
        A(f"v_mul_u32_u24 v9, {SLOTSTR}, v2\nv_lshl_add_u32 v9, v3, 4, v9")
    A.wait_tag("x")
    R = 48
    for i in range(16): A(f"ds_read_b128 {v(R+4*i,4)}, v5 offset:{i*64}")
    for i in range(16):
        A(f"v_mfma_f32_16x16x32_bf16 {v(G,4)}, {v(R+4*i,4)}, {v(R+4*i,4)}, {v(G,4) if i else 0}")
        A(f"v_mfma_f32_16x16x32_bf16 {v(SA,4)}, {v(ONES,4)}, {v(R+4*i,4)}, {v(SA,4) if i else 0}")
    A(f"""
    v_cndmask_b32 v10, v{G}, v{G+1}, s[40:41]
    v_cndmask_b32 v10, v10, v{G+2}, s[42:43]
    v_cndmask_b32 v10, v10, v{G+3}, s[44:45]
    v_mul_f32 v11, 0x3b000000, v{SA}
    v_mul_f32 v10, 0x3b000000, v10
    v_fma_f32 v10, -v11, v11, v10
    v_max_f32 v10, 0, v10
    v_cvt_pk_bf16_f32 v12, v11, v10
    v_and_b32 v10, 0xffff0000, v12
    v_lshlrev_b32 v11, 16, v12
    v_add_f32 v10, {fbits(1e-5)}, v10
    """)
    bf16r(A, "v10", "v10")
    A("v_sqrt_f32 v10, v10")
    bf16r(A, "v10", "v10")
    A("""
    v_rcp_f32 v10, v10
    s_mov_b32 exec_lo, 0x00f0000f
    s_mov_b32 exec_hi, 0xf0000f00
    v_mul_f32 v11, -v11, v10
    ds_write_b32 v7, v10
    ds_write_b32 v7, v11 offset:256
    s_mov_b64 exec, -1
    s_waitcnt lgkmcnt(0)
    s_barrier
    """)
    X, TR, TM, T, ACC, PK = 48, 64, 80, 96, 124, 100
    for tl in range(2):
        for ks in range(2):
            b = X + (tl*2+ks)*4
            off = ks*32*XRS + 8*tl
            A(f"ds_read_b64_tr_b16 {v(b,2)}, v6 offset:{off}\nds_read_b64_tr_b16 {v(b+2,2)}, v6 offset:{off+4*XRS}")
        if tl == 0:
            for ks in range(2):
                for hf in range(2):
                    A(f"ds_read_b128 {v(TR+ks*8+hf*4,4)}, v8 offset:{ks*128+hf*16}")
                    A(f"ds_read_b128 {v(TM+ks*8+hf*4,4)}, v8 offset:{256+ks*128+hf*16}")
    for tl in range(2):
        for ks in range(2):
            b = X + (tl*2+ks)*4
            for jj in range(4):
                t = T + 2*(jj & 1)
                A(f"v_lshlrev_b32 v{t}, 16, v{b+jj}\nv_and_b32 v{t+1}, 0xffff0000, v{b+jj}")
                A(f"v_pk_fma_f32 {v(t,2)}, {v(t,2)}, {v(TR+ks*8+2*jj,2)}, {v(TM+ks*8+2*jj,2)}")
                A(f"v_cvt_pk_bf16_f32 v{b+jj}, v{t}, v{t+1}")
        for sh in range(2):
            for c in range(2):
                acc = ACC + ((tl*2+sh)*2+c)*4
                for ks in range(2):
                    A(f"v_mfma_f32_16x16x32_bf16 {v(acc,4)}, {v(X+(tl*2+ks)*4,4)}, {v(BC+((sh*2+c)*2+ks)*4,4)}, {v(acc,4) if ks else 0}")
    for tl in range(2):
        for sh in range(2):
            acc = ACC + (tl*2+sh)*8
            pk = PK + (tl*2+sh)*4
            for r in range(4): A(f"v_cvt_pk_bf16_f32 v{pk+r}, v{acc+r}, v{acc+4+r}")
            A(f"buffer_store_dwordx4 {v(pk,4)}, v9, {srd(S_WS)}, s{46+sh} offen offset:{tl*256} {st}", tag="st")

def k1_mod(A, st="sc1"):
    A(f"""
    s_and_b32 s38, s2, 7
    s_lshr_b32 s39, s2, 3
    s_mul_i32 s38, s38, 12
    s_add_u32 s36, s38, s39
    s_sub_u32 s36, s36, 16
    v_lshlrev_b32 v4, 2, v0
    buffer_load_dword v8, v4, {srd(S_C)}, 0 offen
    v_lshrrev_b32 v5, 2, v1
    v_mul_u32_u24 v5, 6144, v5
    v_and_b32 v6, 3, v1
    v_lshl_add_u32 v5, v6, 4, v5
    s_mul_i32 s38, s3, {128*6144}
    s_lshl_b32 s39, s36, 6
    s_add_u32 s38, s38, s39
    s_lshl_b32 s39, s3, 13
    s_add_u32 s39, s39, {MW}
    """)
    for i in range(8):
        A(f"s_add_u32 m0, s39, {i*1024}")
        if i: A(f"s_add_u32 s38, s38, {16*6144}")
        A(f"buffer_load_dwordx4 v5, {srd(S_WM)}, s38 offen lds", tag="wm")
    A(f"""
    v_bfe_u32 v6, v1, 2, 2
    v_lshl_add_u32 v6, v3, 3, v6
    v_lshlrev_b32 v6, 6, v6
    v_and_b32 v7, 3, v1
    v_lshl_add_u32 v6, v7, 3, v6
    v_add_u32 v6, s39, v6
    v_add_u32 v4, {MSC}, v4
    s_lshl_b32 s40, s3, 8
    s_add_u32 s40, s40, {MSC}
    v_lshl_add_u32 v7, v3, 4, s40
    """)
    A(f"""
    v_lshlrev_b32 v9, 16, v8
    v_and_b32 v10, 0xffff0000, v8
    v_mul_f32 v11, {fbits(-math.log2(math.e))}, v9
    v_mul_f32 v12, {fbits(-math.log2(math.e))}, v10
    v_exp_f32 v11, v11
    v_exp_f32 v12, v12
    v_add_f32 v11, 1.0, v11
    v_add_f32 v12, 1.0, v12
    v_rcp_f32 v11, v11
    v_rcp_f32 v12, v12
    v_mul_f32 v9, v9, v11
    v_mul_f32 v10, v10, v12
    v_cvt_pk_bf16_f32 v9, v9, v10
    ds_write_b32 v4, v9
    """)
    SF, WF, ACC = 16, 32, 64
    A("s_waitcnt lgkmcnt(0)")
    for ks in range(4): A(f"ds_read_b128 {v(SF+4*ks,4)}, v7 offset:{ks*64}")
    A.wait_tag("wm")
    for ks in range(4):
        for nt in range(2):
            b = WF + (ks*2+nt)*4
            off = ks*2048 + nt*32
            A(f"ds_read_b64_tr_b16 {v(b,2)}, v6 offset:{off}\nds_read_b64_tr_b16 {v(b+2,2)}, v6 offset:{off+256}")
    for ks in range(4):
        for nt in range(2):
            A(f"v_mfma_f32_16x16x32_bf16 {v(ACC+4*nt,4)}, {v(SF+4*ks,4)}, {v(WF+(ks*2+nt)*4,4)}, {v(ACC+4*nt,4) if ks else 0}")
    skip = A.label("modskip")
    A(f"""
    s_lshl_b32 s40, s3, 7
    s_add_u32 s40, s40, {MRED}
    v_lshl_add_u32 v9, v2, 2, s40
    s_mov_b64 exec, 0xffff
    ds_write_b32 v9, v{ACC}
    ds_write_b32 v9, v{ACC+4} offset:64
    s_mov_b64 exec, -1
    s_waitcnt lgkmcnt(0)
    s_barrier
    s_cmp_lg_u32 s3, 0
    s_cbranch_scc1 {skip}
    v_and_b32 v10, 31, v1
    v_lshlrev_b32 v9, 2, v10
    v_add_u32 v9, {MRED}, v9
    ds_read_b32 v11, v9
    ds_read_b32 v12, v9 offset:128
    ds_read_b32 v13, v9 offset:256
    ds_read_b32 v14, v9 offset:384
    s_lshr_b32 s40, s36, 4
    s_and_b32 s41, s36, 15
    s_lshl_b32 s41, s41, 5
    v_add_u32 v10, s41, v10
    v_lshrrev_b32 v15, 8, v10
    v_lshlrev_b32 v15, 8, v15
    v_bfe_u32 v16, v10, 2, 2
    v_lshl_add_u32 v15, v16, 6, v15
    v_bfe_u32 v16, v10, 4, 4
    v_lshl_add_u32 v15, v16, 2, v15
    v_and_b32 v16, 3, v10
    v_add_u32 v15, v15, v16
    s_sub_u32 s41, s40, 2
    s_cmp_lt_u32 s41, 3
    s_cselect_b64 vcc, -1, 0
    v_cndmask_b32 v10, v10, v15, vcc
    v_lshlrev_b32 v10, 2, v10
    s_lshl_b32 s41, s40, 11
    s_add_u32 s41, s41, {WS_MOD}
    s_cmp_eq_u32 s40, 1
    s_cselect_b32 s42, 1.0, 0
    s_cmp_eq_u32 s40, 4
    s_cselect_b32 s42, 1.0, s42
    v_add_f32 v11, v11, v12
    v_add_f32 v13, v13, v14
    v_add_f32 v11, v11, v13
    """)
    bf16r(A, "v11", "v11")
    A("v_add_f32 v11, s42, v11")
    bf16r(A, "v11", "v11")
    A(f"""
    s_mov_b32 exec_hi, 0
    buffer_store_dword v11, v10, {srd(S_WS)}, s41 offen {st}
    s_mov_b64 exec, -1
    {skip}:
    """)

def k1(A):
    m, e = A.label("k1mod"), A.label("k1end")
    A(f"s_cmp_ge_u32 s2, 128\ns_cbranch_scc1 {m}")
    k1_ln(A)
    A("s_waitcnt vmcnt(0) lgkmcnt(0)")
    A(f"s_branch {e}\n{m}:\ns_cmp_ge_u32 s2, 224\ns_cbranch_scc1 {e}")
    A.reset()
    k1_mod(A)
    A(f"s_waitcnt vmcnt(0) lgkmcnt(0)\n{e}:")
    A.reset()

K2 = dict(BS=16, CC=24, CS=26, CW=28, SW=36, BH=44, U=64, XR=128, CA=136, GA=168, CB=176, SB=184, Z=192)
def k2_pre(A):
    r = K2
    A("""
    s_and_b32 s36, s2, 7
    s_bfe_u32 s37, s2, 0x20003
    s_lshl_b32 s37, s37, 3
    s_add_u32 s36, s36, s37
    s_lshr_b32 s37, s2, 5
    s_sub_u32 s39, 64, s36
    s_cmp_eq_u32 s36, 0
    s_cselect_b32 s39, 32, s39
    s_cselect_b64 s[40:41], -1, 0
    s_lshl_b32 s42, s37, 2
    s_add_u32 s43, s42, s3
    s_lshl_b32 s43, s43, 6
    s_add_u32 s44, s43, s36
    s_add_u32 s45, s43, s39
    s_lshl_b32 s44, s44, 10
    s_lshl_b32 s45, s45, 10
    v_lshlrev_b32 v4, 5, v2
    v_lshl_add_u32 v4, v3, 3, v4
    """)
    for uu in range(2):
        for nt in range(2):
            A(f"buffer_load_dwordx2 {v(r['XR']+(uu*2+nt)*2,2)}, v4, {srd(S_X)}, s{44+uu} offen offset:{nt*512}")
    A("""
    v_lshrrev_b32 v5, 2, v2
    v_add_u32 v5, s42, v5
    v_lshlrev_b32 v5, 6, v5
    v_and_b32 v6, 2, v2
    v_cmp_ne_u32 vcc, 0, v6
    v_mov_b32 v7, s36
    v_mov_b32 v8, s39
    v_cndmask_b32 v7, v7, v8, vcc
    v_add_u32 v5, v5, v7
    v_cvt_f32_u32 v5, v5
    v_mul_f32 v5, 0x3a000000, v5
    v_and_b32 v6, 1, v2
    v_cvt_f32_u32 v6, v6
    v_mul_f32 v6, 0x3e800000, v6
    v_mov_b32 v7, 0xbe800000
    v_mov_b32 v8, 0x3e800000
    v_cndmask_b32 v7, v7, v8, vcc
    v_cndmask_b32 v7, v7, 0, s[40:41]
    v_add_f32 v7, v7, v6
    v_cndmask_b32 v8, 1.0, 0, vcc
    v_cndmask_b32 v9, 0, 1.0, vcc
    v_cndmask_b32 v8, 1.0, v8, s[40:41]
    v_cndmask_b32 v9, 1.0, v9, s[40:41]
    v_lshlrev_b32 v10, 2, v3
    v_cvt_f32_u32 v10, v10
    """)
    T = 64
    for ks in range(2):
        for i in range(4):
            A(f"v_add_f32 v11, {fbits(16*ks+i)}, v10\nv_fma_f32 v{T+2*i}, v11, v5, v6\nv_fma_f32 v{T+2*i+1}, v11, v5, v7")
        for i in range(8): A(f"v_cos_f32 v{T+i}, v{T+i}")
        for i in range(4):
            A(f"v_mul_f32 v{T+2*i}, v{T+2*i}, v8\nv_mul_f32 v{T+2*i+1}, v{T+2*i+1}, v9")
            A(f"v_cvt_pk_bf16_f32 v{r['BS']+ks*4+i}, v{T+2*i}, v{T+2*i+1}")
    A("v_cvt_f32_u32 v12, v2\nv_mul_f32 v13, 0x3d800000, v12")
    for j in range(4):
        A(f"v_add_f32 v11, {fbits(j)}, v10\nv_mul_f32 v{T+j}, v11, v13")
    for j in range(4): A(f"v_sin_f32 v{T+4+j}, v{T+j}")
    for j in range(4): A(f"v_cos_f32 v{T+j}, v{T+j}")
    for jj in range(2):
        A(f"v_cvt_pk_bf16_f32 v{r['CC']+jj}, v{T+2*jj}, v{T+2*jj+1}\nv_cvt_pk_bf16_f32 v{r['CS']+jj}, v{T+4+2*jj}, v{T+5+2*jj}")
    A("v_mul_f32 v13, 0x3b000000, v12\ns_lshl_b32 s46, s3, 3\nv_cvt_f32_u32 v14, s46")
    for t in range(8):
        A(f"v_add_f32 v11, {fbits(t)}, v14\nv_mul_f32 v{T+t}, v11, v13")
    for t in range(8):
        A(f"v_cos_f32 v{r['CW']+t}, v{T+t}\nv_sin_f32 v{r['SW']+t}, v{T+t}")
    for nt in range(2):
        A(f"v_add_f32 v13, {fbits(16*nt)}, v12\nv_mul_f32 v13, 0x3d000000, v13")
        for ks in range(2):
            for i in range(4):
                A(f"v_add_f32 v11, {fbits(16*ks+i)}, v10\nv_mul_f32 v{T+i}, v11, v13")
            for i in range(4): A(f"v_sin_f32 v{T+4+i}, v{T+i}")
            for i in range(4): A(f"v_cos_f32 v{T+i}, v{T+i}")
            for i in range(4): A(f"v_cvt_pk_bf16_f32 v{r['BH']+(nt*2+ks)*4+i}, v{T+i}, v{T+4+i}")
    A(f"""
    v_lshlrev_b32 v5, 13, v3
    v_lshl_add_u32 v5, v2, 4, v5
    s_mul_i32 s46, s36, {SLOTSTR}
    s_lshl_b32 s47, s3, 9
    s_add_u32 s46, s46, s47
    s_add_u32 s46, s46, {WS_U}
    s_add_u32 s47, s46, 4096
    s_add_u32 s48, s46, 32768
    s_add_u32 s49, s46, {32768+4096}
    v_lshlrev_b32 v6, 9, v3
    s_lshl_b32 s50, s3, 5
    s_add_u32 s50, s50, {WS_MOD}
    v_lshlrev_b32 v7, 4, v1
    v_lshl_add_u32 v8, v3, 5, v2
    v_mul_u32_u24 v8, 144, v8
    s_lshl_b32 s51, s3, 5
    s_add_u32 s51, s51, {K2EX}
    v_add_u32 v8, s51, v8
    v_mul_u32_u24 v9, 144, v2
    v_lshl_add_u32 v9, v3, 4, v9
    s_mul_i32 s51, s3, {32*144}
    s_add_u32 s51, s51, {K2EX}
    v_add_u32 v9, s51, v9
    s_mul_i32 s51, s3, 2080
    s_add_u32 s51, s51, {K2HB}
    v_add_u32 v10, s51, v4
    v_and_b32 v11, 7, v0
    v_lshrrev_b32 v12, 3, v0
    v_mul_u32_u24 v13, 1040, v11
    v_lshl_add_u32 v13, v12, 4, v13
    v_add_u32 v13, {K2HB}, v13
    v_lshlrev_b32 v11, 4, v11
    v_lshl_add_u32 v11, v12, 9, v11
    s_lshl_b32 s51, s36, 3
    s_add_u32 s51, s51, s37
    s_lshl_b32 s52, s51, 13
    s_lshl_b32 s53, s3, 11
    s_add_u32 s52, s52, s53
    s_add_u32 s52, s52, {WS_X1}
    s_add_u32 s53, s52, 1024
    s_lshr_b32 s54, s51, 2
    s_lshl_b32 s54, s54, 15
    s_and_b32 s55, s51, 3
    s_lshl_b32 s55, s55, 7
    s_add_u32 s54, s54, s55
    s_add_u32 s54, s54, {WS_H2}
    s_add_u32 s55, s54, 16384
    """)

def k2_main(A, ld="sc1", st="sc1"):
    r = K2
    U, Z = r['U'], r['Z']
    for ks in range(2):
        for hh in range(2):
            for i in range(4):
                A(f"buffer_load_dwordx4 {v(U+((ks*2+hh)*4+i)*4,4)}, v5, {srd(S_WS)}, s{46+ks*2+(i>>1)} offen offset:{(i&1)*2048+hh*256} {ld}")
    for rr in range(4):
        for hf in range(2):
            A(f"buffer_load_dwordx4 {v(r['CA']+rr*8+hf*4,4)}, v6, {srd(S_WS)}, s50 offen offset:{2048+rr*128+hf*16} {ld}")
    A(f"s_mov_b32 s56, {WS_MOD+2*2048}\ns_mov_b32 s57, {WS_MOD+3*2048}\ns_mov_b32 s58, {WS_MOD+4*2048}")
    for nm, sr in (("GA", 56), ("CB", 58), ("SB", 57)):
        for nt in range(2):
            A(f"buffer_load_dwordx4 {v(r[nm]+nt*4,4)}, v7, {srd(S_WS)}, s{sr} offen offset:{nt*1024} {ld}")
    for hh in range(2):
        for ks in range(2):
            b = U + (ks*2+hh)*16
            for i in range(4):
                for t in range(i+1, 4): A(f"v_swap_b32 v{b+4*i+t}, v{b+4*t+i}")
        for t in range(4):
            for ks in range(2):
                z = Z + (hh*4+t)*4
                A(f"v_mfma_f32_16x16x32_bf16 {v(z,4)}, {v(U+(ks*2+hh)*16+4*t,4)}, {v(r['BS']+ks*4,4)}, {v(z,4) if ks else 0}")
    for t in range(8):
        for rr in range(4): A(f"v_mul_f32 v{Z+4*t+rr}, v{Z+4*t+rr}, v{r['CA']+rr*8+t}")
    sk = A.label("k2sa")
    A(f"s_waitcnt vmcnt(0)\ns_cmp_lg_u32 s2, 0\ns_cbranch_scc1 {sk}")
    for rr in range(4):
        for hf in range(2):
            A(f"buffer_load_dwordx4 {v(U+rr*8+hf*4,4)}, v6, {srd(S_WS)}, s50 offen offset:{rr*128+hf*16} {ld}")
    A("s_waitcnt vmcnt(0)\ns_mov_b32 s59, 0x45000000\ns_mov_b32 exec_lo, 0x00010001\ns_mov_b32 exec_hi, 0x00010001")
    for t in range(8):
        for rr in range(4): A(f"v_fma_f32 v{Z+4*t+rr}, v{U+rr*8+t}, s59, v{Z+4*t+rr}")
    A(f"s_mov_b64 exec, -1\n{sk}:")
    ZP, P, Q, W = 64, 80, Z, 64
    for t in range(8):
        A(f"v_cvt_pk_bf16_f32 v{ZP+2*t}, v{Z+4*t}, v{Z+4*t+1}\nv_cvt_pk_bf16_f32 v{ZP+2*t+1}, v{Z+4*t+2}, v{Z+4*t+3}")
    for t in range(8):
        A(f"v_mfma_f32_16x16x16_bf16 {v(P+4*t,4)}, {v(ZP+2*t,2)}, {v(r['CC'],2)}, 0")
        A(f"v_mfma_f32_16x16x16_bf16 {v(Q+4*t,4)}, {v(ZP+2*t,2)}, {v(r['CS'],2)}, 0")
    W = 112
    for hh in range(2):
        for uu in range(2):
            for t4 in range(4):
                t = hh*4 + t4
                p, q = P+4*t+2*uu, Q+4*t+2*uu
                A(f"v_add_f32 v{p}, v{p}, v{q+1}\nv_sub_f32 v{p+1}, v{p+1}, v{q}")
            for t4 in range(4):
                t = hh*4 + t4
                p, q = P+4*t+2*uu, Q+4*t+2*uu
                A(f"v_mul_f32 v{q}, v{p}, v{r['CW']+t}\nv_mul_f32 v{q+1}, v{p+1}, v{r['CW']+t}")
            for t4 in range(4):
                t = hh*4 + t4
                p, q = P+4*t+2*uu, Q+4*t+2*uu
                A(f"v_fma_f32 v{q}, v{p+1}, v{r['SW']+t}, v{q}\nv_fma_f32 v{q+1}, -v{p}, v{r['SW']+t}, v{q+1}")
            for t4 in range(4):
                t = hh*4 + t4
                q = Q+4*t+2*uu
                A(f"v_cvt_pk_bf16_f32 v{W+uu*8+t}, v{q}, v{q+1}")
            A(f"ds_write_b128 v8, {v(W+uu*8+hh*4,4)} offset:{uu*16*144+hh*16}")
    A("s_waitcnt lgkmcnt(0)\ns_barrier")
    AF, Y = 80, 96
    for uu in range(2):
        for ks in range(2):
            A(f"ds_read_b128 {v(AF+(uu*2+ks)*4,4)}, v9 offset:{uu*16*144+ks*64}")
    for uu in range(2):
        for nt in range(2):
            y = Y + (uu*2+nt)*4
            for ks in range(2):
                A(f"v_mfma_f32_16x16x32_bf16 {v(y,4)}, {v(AF+(uu*2+ks)*4,4)}, {v(r['BH']+(nt*2+ks)*4,4)}, {v(y,4) if ks else 0}")
    XF = 64
    for uu in range(2):
        for nt in range(2):
            xr = r['XR'] + (uu*2+nt)*2; xf = XF + (uu*2+nt)*4
            A(f"v_lshlrev_b32 v{xf}, 16, v{xr}\nv_and_b32 v{xf+1}, 0xffff0000, v{xr}\nv_lshlrev_b32 v{xf+2}, 16, v{xr+1}\nv_and_b32 v{xf+3}, 0xffff0000, v{xr+1}")
    for uu in range(2):
        for nt in range(2):
            y = Y + (uu*2+nt)*4; xf = XF + (uu*2+nt)*4; g = r['GA'] + nt*4
            for h in range(2):
                A(f"v_pk_fma_f32 {v(y+2*h,2)}, {v(y+2*h,2)}, {v(g+2*h,2)}, {v(xf+2*h,2)}")
    XP = 80
    for uu in range(2):
        for nt in range(2):
            y = Y + (uu*2+nt)*4; xp = XP + (uu*2+nt)*2
            A(f"v_cvt_pk_bf16_f32 v{xp}, v{y}, v{y+1}\nv_cvt_pk_bf16_f32 v{xp+1}, v{y+2}, v{y+3}")
            A(f"buffer_store_dwordx2 {v(xp,2)}, v4, {srd(S_WS)}, s{52+uu} offen offset:{nt*512} {st}", tag="st")
    for uu in range(2):
        for nt in range(2):
            y = Y + (uu*2+nt)*4; xp = XP + (uu*2+nt)*2
            A(f"v_lshlrev_b32 v{y}, 16, v{xp}\nv_and_b32 v{y+1}, 0xffff0000, v{xp}\nv_lshlrev_b32 v{y+2}, 16, v{xp+1}\nv_and_b32 v{y+3}, 0xffff0000, v{xp+1}")
    for uu in range(2):
        y = Y + uu*8
        A(f"v_pk_add_f32 v[64:65], {v(y,2)}, {v(y+2,2)}\nv_pk_mul_f32 v[66:67], {v(y,2)}, {v(y,2)}")
        A(f"v_pk_add_f32 v[64:65], v[64:65], {v(y+4,2)}\nv_pk_fma_f32 v[66:67], {v(y+2,2)}, {v(y+2,2)}, v[66:67]")
        A(f"v_pk_add_f32 v[64:65], v[64:65], {v(y+6,2)}\nv_pk_fma_f32 v[66:67], {v(y+4,2)}, {v(y+4,2)}, v[66:67]")
        A(f"v_add_f32 v{88+2*uu}, v64, v65\nv_pk_fma_f32 v[66:67], {v(y+6,2)}, {v(y+6,2)}, v[66:67]")
        A(f"v_add_f32 v{89+2*uu}, v66, v67")
    A("""
    v_permlane16_swap_b32 v88, v89
    v_permlane16_swap_b32 v90, v91
    v_add_f32 v88, v88, v89
    v_add_f32 v90, v90, v91
    v_permlane32_swap_b32 v88, v90
    v_add_f32 v88, v88, v90
    v_add_f32 v88, v88, v88 row_ror:8
    v_add_f32 v88, v88, v88 row_ror:4
    v_add_f32 v88, v88, v88 row_ror:2
    v_add_f32 v88, v88, v88 row_ror:1
    v_readlane_b32 s60, v88, 0
    v_readlane_b32 s61, v88, 16
    v_readlane_b32 s62, v88, 32
    v_readlane_b32 s63, v88, 48
    v_mov_b32 v68, 0x3b000000
    """)
    for uu in range(2):
        m, q = 64+2*uu, 65+2*uu
        A(f"v_mul_f32 v{m}, s{60+2*uu}, v68\nv_mul_f32 v{q}, s{61+2*uu}, v68")
    for uu in range(2):
        m, q = 64+2*uu, 65+2*uu
        A(f"v_fma_f32 v{q}, -v{m}, v{m}, v{q}\nv_max_f32 v{q}, 0, v{q}\nv_cvt_pk_bf16_f32 v{m}, v{m}, v{q}")
        A(f"v_and_b32 v{q}, 0xffff0000, v{m}\nv_lshlrev_b32 v{m}, 16, v{m}\nv_add_f32 v{q}, {fbits(1e-5)}, v{q}")
        bf16r(A, f"v{q}", f"v{q}")
    for uu in range(2): A(f"v_sqrt_f32 v{65+2*uu}, v{65+2*uu}")
    for uu in range(2): bf16r(A, f"v{65+2*uu}", f"v{65+2*uu}")
    for uu in range(2): A(f"v_rcp_f32 v{65+2*uu}, v{65+2*uu}")
    for uu in range(2): A(f"v_mul_f32 v{64+2*uu}, -v{64+2*uu}, v{65+2*uu}")
    HP = 80
    for uu in range(2):
        for nt in range(2):
            y = Y + (uu*2+nt)*4
            for h in range(2):
                A(f"v_pk_fma_f32 {v(y+2*h,2)}, {v(y+2*h,2)}, {v(64+2*uu,2)}, {v(64+2*uu,2)} op_sel:[0,1,0] op_sel_hi:[1,1,0]")
            for h in range(2):
                A(f"v_pk_fma_f32 {v(y+2*h,2)}, {v(y+2*h,2)}, {v(r['CB']+nt*4+2*h,2)}, {v(r['SB']+nt*4+2*h,2)}")
            hp = HP + (uu*2+nt)*2
            A(f"v_cvt_pk_bf16_f32 v{hp}, v{y}, v{y+1}\nv_cvt_pk_bf16_f32 v{hp+1}, v{y+2}, v{y+3}")
            A(f"ds_write_b64 v10, {v(hp,2)} offset:{uu*1040+nt*512}")
    A("s_waitcnt lgkmcnt(0)\ns_barrier")
    A("ds_read_b128 v[64:67], v13\nds_read_b128 v[68:71], v13 offset:512")
    A(f"buffer_store_dwordx4 v[64:67], v11, {srd(S_WS)}, s54 offen {st}", tag="st")
    A(f"buffer_store_dwordx4 v[68:71], v11, {srd(S_WS)}, s55 offen {st}", tag="st")

def k2(A):
    k2_pre(A)
    k2_main(A)

def k3_ids(A):
    A("""
    s_and_b32 s38, s2, 7
    s_lshr_b32 s39, s2, 3
    s_lshr_b32 s36, s38, 1
    s_lshl_b32 s36, s36, 2
    s_and_b32 s40, s39, 3
    s_add_u32 s36, s36, s40
    s_and_b32 s37, s38, 1
    s_lshl_b32 s37, s37, 3
    s_lshr_b32 s40, s39, 2
    s_add_u32 s37, s37, s40
    """)

def k3_waddr(A, vb):
    A(f"s_mul_i32 s40, s3, 192\ns_mov_b32 s41, 0x15555556")
    for i in range(3):
        A(f"""
        v_add_u32 v{vb+i}, s40, v1
        v_add_u32 v{vb+i}, {64*i}, v{vb+i}
        v_mul_hi_u32 v{vb+3}, v{vb+i}, s41
        v_mul_u32_u24 v{vb+4}, 12, v{vb+3}
        v_sub_u32 v{vb+i}, v{vb+i}, v{vb+4}
        v_lshlrev_b32 v{vb+i}, 4, v{vb+i}
        v_mul_u32_u24 v{vb+3}, 2752, v{vb+3}
        v_add_u32 v{vb+i}, v{vb+i}, v{vb+3}
        """)

def k3_dma(A, chunk, slot, vb, sSl, sW, sT, tag):
    A(f"s_add_u32 s{sT}, s{sSl}, {chunk*64*2752}")
    for mtx, sr in ((0, S_WG), (1, S_WU)):
        for i in range(3):
            A(f"s_add_u32 m0, s{sW}, {slot*SLOT+mtx*UOFF+i*1024}")
            A(f"buffer_load_dwordx4 v{vb+i}, {srd(sr)}, s{sT} offen lds", tag=tag)

K3SCHED = [(range(0, 12), range(6))] + [(range(12, 32), [j]) for j in range(6)]
def k3_main(A, ld="sc1", st="sc1", sched=None, standalone=True, hide=True):
    sched = sched or K3SCHED
    ACC, AF, NAF = 16, 112, 6
    VB = 8
    T = 136
    PK = 152
    done = A.label("k3done")
    k3_ids(A)
    A(f"s_cmp_eq_u32 s37, 15\ns_cbranch_scc1 {done}")
    k3_waddr(A, VB)
    A(f"s_mul_i32 s42, s37, 192\ns_mul_i32 s43, s3, 3072")
    if standalone:
        for ch in range(2): k3_dma(A, ch, ch, VB, 42, 43, 44, f"w{ch}")
    A(f"""
    s_lshl_b32 s45, s36, 2
    s_add_u32 s45, s45, s3
    s_lshl_b32 s46, s45, 15
    s_add_u32 s46, s46, {WS_H2}
    v_lshlrev_b32 v4, 4, v1
    """)
    for k in range(32):
        if k and k % 4 == 0: A("s_add_u32 s46, s46, 4096")
        A(f"buffer_load_dwordx4 {a(4*k,4)}, v4, {srd(S_WS)}, s46 offen offset:{(k%4)*1024} {ld}")
        if standalone and k in (7, 11, 15, 19):
            ch = 2 + (k-7)//4
            k3_dma(A, ch, ch, VB, 42, 43, 44, f"w{ch}")
    A(f"""
    v_bfe_u32 v5, v1, 1, 1
    v_mul_u32_u24 v5, {UOFF}, v5
    v_bfe_u32 v6, v1, 2, 2
    v_bfe_u32 v7, v1, 5, 1
    v_lshl_add_u32 v6, v7, 3, v6
    v_mul_u32_u24 v6, 192, v6
    v_add_u32 v5, v5, v6
    v_bfe_u32 v6, v1, 4, 1
    v_lshl_add_u32 v5, v6, 4, v5
    v_and_b32 v6, 1, v1
    v_lshl_add_u32 v5, v6, 3, v5
    v_add_u32 v6, {2*SLOT}, v5
    v_add_u32 v7, {4*SLOT}, v5
    s_mul_i32 s47, s45, {86*1024}
    s_mul_i32 s48, s37, {6*1024}
    s_add_u32 s47, s47, s48
    s_add_u32 s47, s47, {WS_ACT}
    s_add_u32 s48, s47, 2048
    s_add_u32 s51, s47, 4096
    s_cmp_eq_u32 s37, 14
    s_cselect_b32 s48, {WS_SIZE}, s48
    s_cselect_b32 s51, {WS_SIZE}, s51
    s_mov_b32 s49, {fbits(-math.log2(math.e))}
    s_mov_b32 s50, {fbits(-math.log2(math.e))}
    """)
    order = [(k, j) for ks, js in sched for k in ks for j in js]
    assert len(order) == 192 and len(set(order)) == 192
    def slot_of(k):
        ch = k // 4
        return ch if ch < 6 else ch - 6
    def frag_read(n):
        k, j = order[n]
        sl = slot_of(k)
        base = ("v5", "v6", "v7")[sl // 2]
        off = (sl % 2)*SLOT + (k % 4)*16*192 + j*32
        b = AF + (n % NAF)*4
        return f"ds_read_b64_tr_b16 {v(b,2)}, {base} offset:{off}\nds_read_b64_tr_b16 {v(b+2,2)}, {base} offset:{off+4*192}"
    def epi_ops(j, packed):
        acc = ACC + 16*j
        pk = PK + 4*(j & 1)
        ops = []
        if packed:
            for hf in range(2):
                g, u = acc + 8*hf, acc + 8*hf + 4
                t = T + 4*hf
                for h in range(2): ops.append(f"v_pk_mul_f32 {v(t+2*h,2)}, {v(g+2*h,2)}, s[49:50]" if False else f"v_pk_mul_f32 {v(t+2*h,2)}, {v(g+2*h,2)}, v[14:15]")
                for h in range(2): ops.append(f"v_pk_mul_f32 {v(g+2*h,2)}, {v(g+2*h,2)}, {v(u+2*h,2)}")
            for i in range(8): ops.append(f"v_exp_f32 v{T+i}, v{T+i}")
            for h in range(4): ops.append(f"v_pk_add_f32 {v(T+2*h,2)}, {v(T+2*h,2)}, 1.0 op_sel_hi:[1,0]")
            for i in range(8): ops.append(f"v_rcp_f32 v{T+i}, v{T+i}")
            for hf in range(2):
                g = acc + 8*hf; t = T + 4*hf
                for h in range(2): ops.append(f"v_pk_mul_f32 {v(g+2*h,2)}, {v(g+2*h,2)}, {v(t+2*h,2)}")
        else:
            idx = [(acc + 8*hf + r, acc + 8*hf + 4 + r, T + 4*hf + r) for hf in range(2) for r in range(4)]
            for g, u, t in idx: ops.append(f"v_mul_f32 v{t}, s49, v{g}")
            for g, u, t in idx: ops.append(f"v_exp_f32 v{t}, v{t}")
            for g, u, t in idx: ops.append(f"v_mul_f32 v{g}, v{g}, v{u}")
            for g, u, t in idx: ops.append(f"v_add_f32 v{t}, 1.0, v{t}")
            for g, u, t in idx: ops.append(f"v_rcp_f32 v{t}, v{t}")
            for g, u, t in idx: ops.append(f"v_mul_f32 v{g}, v{g}, v{t}")
        for hf in range(2):
            g = acc + 8*hf
            ops.append(f"v_cvt_pk_bf16_f32 v{pk+2*hf}, v{g}, v{g+1}")
            ops.append(f"v_cvt_pk_bf16_f32 v{pk+2*hf+1}, v{g+2}, v{g+3}")
        return ops
    def store(j):
        pk = PK + 4*(j & 1)
        return f"buffer_store_dwordx4 {v(pk,4)}, v4, {srd(S_WS)}, s{(47,48,51)[j//2]} offen offset:{(j%2)*1024} {st}\n"
    A("v_mov_b32 v14, s49\nv_mov_b32 v15, s49")
    last = {}
    for n, (k, j) in enumerate(order): last[j] = n
    seen_chunk = set()
    def ensure_chunk(k):
        ch = k // 4
        if ch not in seen_chunk:
            seen_chunk.add(ch)
            A.wait_tag(f"w{ch}")
            A("s_barrier")
    PF = NAF - 1
    for n in range(PF):
        ensure_chunk(order[n][0]); A(frag_read(n))
    pending = []
    started = set()
    for n, (k, j) in enumerate(order):
        acc = ACC + 16*j
        A(f"v_mfma_f32_32x32x16_bf16 {v(acc,16)}, {v(AF+(n%NAF)*4,4)}, {a(4*k,4)}, {v(acc,16) if j in started else 0}")
        started.add(j)
        if n + PF < 192:
            ensure_chunk(order[n+PF][0]); A(frag_read(n+PF))
        if n == 47 + 0:
            pass
        if order[n][0] == 7 and j == 5 and len(sched[0][0]) >= 8:
            A("s_barrier")
            for ch in (6, 7): k3_dma(A, ch, ch-6, VB, 42, 43, 44, f"w{ch}")
        take = 2
        while pending and take > 0 and hide:
            op = pending.pop(0)
            if op[0] == "store":
                A(store(op[1]), tag="st")
            else:
                A(op[1]); take -= 2 if op[1].startswith(("v_exp", "v_rcp")) else 1
        for jj, ln in last.items():
            if n == ln + 2 and n < 191:
                while pending:
                    op = pending.pop(0)
                    if op[0] == "store": A(store(op[1]), tag="st")
                    else: A(op[1])
                pending = [("op", o) for o in epi_ops(jj, False)] + [("store", jj)]
    while pending:
        op = pending.pop(0)
        if op[0] == "store": A(store(op[1]), tag="st")
        else: A(op[1])
    for jj, ln in last.items():
        if ln + 2 >= 191:
            for o in epi_ops(jj, True): A(o)
            A(store(jj), tag="st")
    A(f"s_waitcnt vmcnt(0)\n{done}:")
    A.reset()

def k3(A):
    k3_main(A)

def k4_main(A, ld="sc1"):
    A(f"""
    s_and_b32 s36, s2, 7
    s_lshl_b32 s36, s36, 2
    s_bfe_u32 s38, s2, 0x20003
    s_add_u32 s36, s36, s38
    s_lshr_b32 s37, s2, 5
    s_lshr_b32 s38, s3, 1
    s_and_b32 s39, s3, 1
    v_lshrrev_b32 v4, 3, v1
    v_lshlrev_b32 v5, 10, v4
    v_and_b32 v6, 7, v1
    v_lshlrev_b32 v4, 1, v4
    v_and_b32 v4, 4, v4
    v_xor_b32 v6, v6, v4
    v_lshl_add_u32 v5, v6, 4, v5
    s_mul_i32 s40, s38, {688*1024}
    s_lshl_b32 s41, s37, 7
    s_add_u32 s40, s40, s41
    s_lshl_b32 s41, s39, 13
    s_add_u32 s40, s40, s41
    s_mul_i32 s41, s38, 81920
    s_lshl_b32 s42, s39, 10
    s_add_u32 s42, s42, s41
    """)
    def dma(i2, tag):
        dst = (2*i2 if i2 < 40 else 2*(i2-40)) * 1024
        A(f"s_add_u32 m0, s42, {dst}\ns_add_u32 s43, s40, {i2*16384}")
        A(f"buffer_load_dwordx4 v5, {srd(S_WD)}, s43 offen lds", tag=tag)
    A(f"""
    s_lshl_b32 s44, s36, 1
    s_add_u32 s44, s44, s39
    s_mul_i32 s44, s44, {86*1024}
    s_mul_i32 s45, s38, {43*1024}
    s_add_u32 s44, s44, s45
    s_add_u32 s44, s44, {WS_ACT}
    v_lshlrev_b32 v4, 4, v1
    """)
    GRP = 4
    for k in range(43):
        if k % GRP == 0:
            for kk in range(k, min(k+GRP, 40)): dma(kk, f"d{k//GRP}")
        if k and k % 4 == 0: A("s_add_u32 s44, s44, 4096")
        A(f"buffer_load_dwordx4 {a(4*k,4)}, v4, {srd(S_WS)}, s44 offen offset:{(k%4)*1024} {ld}")
        if k == 19: break
    A(f"""
    v_lshrrev_b32 v8, 3, v0
    v_and_b32 v9, 7, v0
    s_lshl_b32 s46, s36, 16
    s_lshl_b32 s47, s37, 7
    s_add_u32 s46, s46, s47
    s_add_u32 s46, s46, {WS_X1}
    s_add_u32 s48, s46, 32768
    v_lshlrev_b32 v10, 10, v8
    v_lshl_add_u32 v10, v9, 4, v10
    v_lshlrev_b32 v11, 5, v9
    s_lshl_b32 s47, s37, 8
    s_add_u32 s47, s47, {WS_MOD+5*2048}
    s_sub_u32 s49, 64, s36
    s_cmp_eq_u32 s36, 0
    s_cselect_b32 s49, 32, s49
    v_and_b32 v12, 1, v8
    v_cmp_ne_u32 vcc, 0, v12
    v_mov_b32 v12, s36
    v_mov_b32 v13, s49
    v_cndmask_b32 v12, v12, v13, vcc
    v_lshrrev_b32 v13, 1, v8
    v_lshl_add_u32 v12, v13, 6, v12
    v_lshlrev_b32 v12, 10, v12
    v_lshl_add_u32 v12, v9, 4, v12
    s_lshl_b32 s49, s37, 7
    s_add_u32 s50, s49, 0x100000
    """)
    A(f"""
    v_bfe_u32 v6, v1, 2, 2
    v_bfe_u32 v7, v1, 5, 1
    v_lshl_add_u32 v7, v7, 2, v6
    v_lshlrev_b32 v7, 7, v7
    v_bfe_u32 v13, v1, 4, 1
    v_lshl_add_u32 v7, v13, 5, v7
    v_and_b32 v13, 3, v1
    v_lshl_add_u32 v7, v13, 3, v7
    v_add_u32 v7, s41, v7
    v_bfe_u32 v13, v1, 3, 1
    v_lshlrev_b32 v13, 6, v13
    v_xor_b32 v6, v7, v13
    v_xor_b32 v7, 64, v6
    v_add_u32 v14, 0xa000, v6
    v_add_u32 v15, 0xa000, v7
    """)
    ACC, AF, NAF = 16, 48, 6
    XG = 72
    def wslot(k): return k if k < 40 else k - 40
    def frag_read(n):
        k, t = n // 2, n % 2
        sl = wslot(k)
        base = (("v6", "v7"), ("v14", "v15"))[sl >= 20][t]
        off = (sl % 20) * 2048
        b = AF + (n % NAF)*4
        return f"ds_read_b64_tr_b16 {v(b,2)}, {base} offset:{off}\nds_read_b64_tr_b16 {v(b+2,2)}, {base} offset:{off+1024}"
    seen = set()
    rest = list(range(20, 43))
    issued = 20
    def ensure(k):
        g = k // GRP if k < 40 else 10
        if g not in seen:
            seen.add(g); A.wait_tag(f"d{g}"); A("s_barrier")
    PF = NAF - 1
    N = 86
    for n in range(PF):
        ensure(n//2); A(frag_read(n))
    for n in range(N):
        k, t = n // 2, n % 2
        A(f"v_mfma_f32_32x32x16_bf16 {v(ACC+16*t,16)}, {v(AF+(n%NAF)*4,4)}, {a(4*k,4)}, {v(ACC+16*t,16) if k else 0}")
        if n + PF < N:
            ensure((n+PF)//2); A(frag_read(n+PF))
        if t == 1 and issued < 43:
            kk = issued
            if kk % GRP == 0 and kk < 40:
                for k2_ in range(kk, min(kk+GRP, 40)): dma(k2_, f"d{kk//GRP}")
            if kk % 4 == 0: A("s_add_u32 s44, s44, 4096")
            A(f"buffer_load_dwordx4 {a(4*kk,4)}, v4, {srd(S_WS)}, s44 offen offset:{(kk%4)*1024} {ld}")
            issued += 1
        if n == 2*26+1:
            for k2_ in range(40, 43): dma(k2_, "d10")
            A(f"buffer_load_dwordx4 {v(XG,4)}, v10, {srd(S_WS)}, s46 offen {ld}")
            A(f"buffer_load_dwordx4 {v(XG+4,4)}, v10, {srd(S_WS)}, s48 offen {ld}")
            A(f"buffer_load_dwordx4 {v(XG+8,4)}, v11, {srd(S_WS)}, s47 offen {ld}")
            A(f"buffer_load_dwordx4 {v(XG+12,4)}, v11, {srd(S_WS)}, s47 offen offset:16 {ld}")
    RS = 272
    A(f"""
    s_barrier
    s_lshl_b32 s51, s38, 1
    s_add_u32 s51, s51, s39
    s_mul_i32 s51, s51, {32*RS}
    v_and_b32 v6, 31, v1
    v_mul_u32_u24 v6, {RS}, v6
    v_bfe_u32 v7, v1, 5, 1
    v_lshl_add_u32 v6, v7, 4, v6
    v_add_u32 v6, s51, v6
    v_mul_u32_u24 v7, {RS}, v8
    v_lshl_add_u32 v7, v9, 5, v7
    """)
    for t in range(2):
        for j in range(4):
            A(f"ds_write_b128 v6, {v(ACC+16*t+4*j,4)} offset:{t*128+j*32}")
    A("s_waitcnt lgkmcnt(0)\ns_barrier")
    RD = 96
    for it in range(2):
        for kh in range(2):
            for hf in range(2):
                A(f"ds_read_b128 {v(RD+it*16+kh*8+hf*4,4)}, v7 offset:{(kh*64+it*32)*RS+hf*16}")
    for it in range(2):
        z = RD + it*16
        xr = XG + it*4
        for h in range(4): A(f"v_pk_add_f32 {v(z+2*h,2)}, {v(z+2*h,2)}, {v(z+8+2*h,2)}")
        for h in range(4): A(f"v_lshlrev_b32 v{z+8+2*h}, 16, v{xr+h}\nv_and_b32 v{z+9+2*h}, 0xffff0000, v{xr+h}")
        for h in range(4): A(f"v_pk_fma_f32 {v(z+2*h,2)}, {v(z+2*h,2)}, {v(XG+8+2*h,2)}, {v(z+8+2*h,2)}")
        for h in range(4): A(f"v_cvt_pk_bf16_f32 v{z+8+h}, v{z+2*h}, v{z+2*h+1}")
        A(f"buffer_store_dwordx4 {v(z+8,4)}, v12, {srd(S_OUT)}, s{49+it} offen")

def k4(A):
    k4_main(A)

def build_multi(extra=0):
    code = ""
    launches, descs = [], []
    for nm, fn, nv, na in (("p1", k1, 160, 0), ("p2", k2, 224, 0), ("p3", k3, 160, 128), ("p4", k4, 128, 172)):
        A = Asm()
        name = f"{nm}_kernel"
        kernel_begin(A, name)
        done = A.label("done")
        prologue(A, done)
        fn(A)
        A(f"{done}:\ns_endpgm")
        code += A.finalize()
        launches.append((name, (256,1,1), (256,1,1), LDS_TOTAL))
        descs.append(kernel_desc(name, nv, na))
    if extra:
        A = Asm(); kernel_begin(A, "nop_kernel"); A("s_endpgm"); code += A.finalize()
        descs.append(kernel_desc("nop_kernel", 8))
        for i in range(extra): launches.append(("nop_kernel", (256,1,1), (256,1,1), 0))
    return launches, code, descs

if __name__ == "__main__":
    hdr = [l.rstrip("\n") for l in open("cdna_kernels/%s.s.ref" % NAME) if l.startswith(";") and "@launch" not in l]
    hdr = hdr[:15]
    out = sys.argv[1] if len(sys.argv) > 1 else "multi.s"
    extra = int(sys.argv[2]) if len(sys.argv) > 2 else 0
    launches, code, descs = build_multi(extra)
    open(out, "w").write(file_text(hdr, launches, code, descs))
```

```python
import sys, struct, math
from asmlib import *

NAME = "adaLN_cond__spectral_fnet__swiglu_ffn__prompt"
def fbits(x): return "0x%08x" % struct.unpack("<I", struct.pack("<f", x))[0]

SLOTSTR = 65536 + 0
WS_U   = 0
WS_MOD = 0x240000
WS_H2  = 0x300000
WS_X1  = 0x500000
WS_ACT = 0x800000
WS_FLG = 0xE00000
WS_SIZE = 0x1000000
LDS_TOTAL = 163840
SLOT = 24640; UOFF = 12320
XRS = 1056
XIMG = LDS_TOTAL - 64 * XRS
XTAB = XIMG - 512
MW = XIMG
MSC = MW + 32768
MRED = MSC + 1024
K2EX = 123200
K2HB = K2EX + 18432
S_X, S_WG, S_WU, S_WD, S_C, S_WM, S_OUT, S_WS = 4, 8, 12, 16, 20, 24, 28, 32
def srd(b): return s(b, 4)

def prologue(A, done):
    A(f"""
    s_cmp_ge_u32 s2, 256
    s_cbranch_scc1 {done}
    s_load_dwordx2 s[4:5], s[0:1], 0
    s_load_dwordx2 s[8:9], s[0:1], 48
    s_load_dwordx2 s[12:13], s[0:1], 56
    s_load_dwordx2 s[16:17], s[0:1], 64
    s_load_dwordx2 s[20:21], s[0:1], 72
    s_load_dwordx2 s[24:25], s[0:1], 80
    s_load_dwordx2 s[28:29], s[0:1], 88
    s_load_dwordx2 s[32:33], s[0:1], 104
    v_lshrrev_b32 v2, 6, v0
    v_and_b32 v1, 63, v0
    v_readfirstlane_b32 s3, v2
    v_and_b32 v2, 15, v0
    v_bfe_u32 v3, v0, 4, 2
    """)
    for b, sz in ((S_X, 2097152), (S_WG, 1409024), (S_WU, 1409024), (S_WD, 1409024), (S_C, 1024), (S_WM, 3145728), (S_OUT, 2097152), (S_WS, WS_SIZE)):
        A(f"s_mov_b32 s{b+2}, {sz}\ns_mov_b32 s{b+3}, 0x20000")
    A("s_waitcnt lgkmcnt(0)")

TS = False
WS_TS = 0xF00000
_ts = {"n": 0}
def ts(A, name=None, cyc=False):
    if not TS: return
    n = _ts["n"]; _ts["n"] += 1
    _ts.setdefault("names", []).append(("c:" if cyc else "") + name)
    A(f"{'s_memtime' if cyc else 's_memrealtime'} s[98:99]\ns_waitcnt lgkmcnt(0)\nv_writelane_b32 v248, s98, {n}")
def tc(A, name=None): ts(A, name, True)
def ts_begin():
    _ts["n"] = 0; _ts["names"] = []
def ts_flush(A, kidx):
    if not TS: return
    sk = A.label("tsk")
    A(f"s_waitcnt vmcnt(0) lgkmcnt(0)\ns_cmp_lg_u32 s3, 0\ns_cbranch_scc1 {sk}")
    A(f"s_lshl_b32 s64, s2, 8\ns_add_u32 s64, s64, {WS_TS + kidx*65536}\nv_lshlrev_b32 v1, 2, v1")
    A(f"buffer_store_dword v248, v1, {srd(S_WS)}, s64 offen")
    A(f"s_waitcnt vmcnt(0)\n{sk}:")

def bf16r(A, dst, src):
    A(f"v_cvt_pk_bf16_f32 {dst}, {src}, {src}\nv_lshlrev_b32 {dst}, 16, {dst}")

def k1_ln(A, st="sc1"):
    sN2, sO = 36, 37
    A("""
    s_and_b32 s38, s2, 7
    s_lshr_b32 s39, s2, 3
    s_lshr_b32 s40, s39, 2
    s_lshl_b32 s40, s40, 3
    s_add_u32 s36, s38, s40
    s_and_b32 s37, s39, 3
    """)
    A(f"""
    v_lshlrev_b32 v4, 4, v1
    s_lshl_b32 s38, s3, 9
    s_add_u32 s38, s38, s36
    s_lshl_b32 s38, s38, 10
    s_mul_i32 s39, s3, {16*XRS}
    s_add_u32 s39, s39, {XIMG}
    """)
    for i in range(16):
        A(f"s_add_u32 m0, s39, {i*XRS}")
        if i: A(f"s_add_u32 s38, s38, 32768")
        A(f"buffer_load_dwordx4 v4, {srd(S_X)}, s38 offen lds", tag="x")
    BC = 16
    NV = 48
    A("v_lshlrev_b32 v5, 3, v3\nv_cvt_f32_u32 v5, v5")
    for ks in range(2):
        for j in range(8):
            A(f"v_add_f32 v{NV+ks*8+j}, {fbits(32*ks+j)}, v5")
    A("v_cvt_f32_u32 v6, v2\nv_mul_f32 v6, 0x3c800000, v6")
    A("v_add_f32 v7, 0x3e800000, v6")
    A("v_cmp_eq_u32 vcc, 0, v2\nv_mov_b32 v8, 0x3e800000\nv_cndmask_b32 v9, v6, 0.5, vcc\nv_cndmask_b32 v10, v8, 0, vcc")
    for sh in range(2):
        for c in range(2):
            fs = ("v6", "v7")[sh] if c == 0 else ("v9", "v7")[sh]
            off = None if c == 0 else ("v10", "v8")[sh]
            for ks in range(2):
                b = BC + ((sh*2 + c)*2 + ks)*4
                for j in range(8):
                    if off is None: A(f"v_mul_f32 v{64+j}, v{NV+ks*8+j}, {fs}")
                    else: A(f"v_fma_f32 v{64+j}, v{NV+ks*8+j}, {fs}, {off}")
                for j in range(8): A(f"v_cos_f32 v{64+j}, v{64+j}")
                for jj in range(4): A(f"v_cvt_pk_bf16_f32 v{b+jj}, v{64+2*jj}, v{65+2*jj}")
    ONES, G, SA = 112, 116, 120
    for i in range(4): A(f"v_mov_b32 v{ONES+i}, 0x3f803f80")
    A(f"""
    s_mul_i32 s38, s3, {16*XRS}
    s_add_u32 s38, s38, {XIMG}
    v_mul_u32_u24 v5, {XRS}, v2
    v_lshl_add_u32 v5, v3, 4, v5
    v_add_u32 v5, s38, v5
    v_bfe_u32 v6, v1, 2, 2
    v_lshl_add_u32 v6, v3, 3, v6
    v_mul_u32_u24 v6, {XRS}, v6
    v_and_b32 v7, 3, v1
    v_lshl_add_u32 v6, v7, 6, v6
    s_lshl_b32 s38, s3, 8
    s_lshl_b32 s39, s37, 4
    s_add_u32 s38, s38, s39
    s_add_u32 s38, s38, {XIMG}
    v_add_u32 v6, s38, v6
    s_lshl_b32 s38, s3, 6
    s_add_u32 s38, s38, {XTAB}
    v_lshl_add_u32 v7, v2, 2, s38
    v_lshlrev_b32 v8, 5, v3
    v_add_u32 v8, {XTAB}, v8
    s_mov_b32 s40, 0x22222222
    s_mov_b32 s41, 0x22222222
    s_mov_b32 s42, 0x44444444
    s_mov_b32 s43, 0x44444444
    s_mov_b32 s44, 0x88888888
    s_mov_b32 s45, 0x88888888
    v_lshlrev_b32 v9, 16, v2
    v_lshl_add_u32 v9, v3, 4, v9
    s_lshl_b32 s46, s36, 11
    s_lshl_b32 s47, s37, 9
    s_add_u32 s46, s46, s47
    s_lshl_b32 s47, s3, 6
    s_add_u32 s46, s46, s47
    s_add_u32 s46, s46, {WS_U}
    s_add_u32 s47, s46, {16*SLOTSTR}
    """)
    if SLOTSTR != 65536:
        A(f"v_mul_u32_u24 v9, {SLOTSTR}, v2\nv_lshl_add_u32 v9, v3, 4, v9")
    ts(A, "const")
    A.wait_tag("x")
    ts(A, "xarr")
    R = 48
    for i in range(16): A(f"ds_read_b128 {v(R+4*i,4)}, v5 offset:{i*64}")
    for i in range(16):
        A(f"v_mfma_f32_16x16x32_bf16 {v(G,4)}, {v(R+4*i,4)}, {v(R+4*i,4)}, {v(G,4) if i else 0}")
        A(f"v_mfma_f32_16x16x32_bf16 {v(SA,4)}, {v(ONES,4)}, {v(R+4*i,4)}, {v(SA,4) if i else 0}")
    A(f"""
    v_cndmask_b32 v10, v{G}, v{G+1}, s[40:41]
    v_cndmask_b32 v10, v10, v{G+2}, s[42:43]
    v_cndmask_b32 v10, v10, v{G+3}, s[44:45]
    v_mul_f32 v11, 0x3b000000, v{SA}
    v_mul_f32 v10, 0x3b000000, v10
    v_fma_f32 v10, -v11, v11, v10
    v_max_f32 v10, 0, v10
    v_cvt_pk_bf16_f32 v12, v11, v10
    v_and_b32 v10, 0xffff0000, v12
    v_lshlrev_b32 v11, 16, v12
    v_add_f32 v10, {fbits(1e-5)}, v10
    """)
    bf16r(A, "v10", "v10")
    A("v_sqrt_f32 v10, v10")
    bf16r(A, "v10", "v10")
    A("""
    v_rcp_f32 v10, v10
    s_mov_b32 exec_lo, 0x00f0000f
    s_mov_b32 exec_hi, 0xf0000f00
    v_mul_f32 v11, -v11, v10
    ds_write_b32 v7, v10
    ds_write_b32 v7, v11 offset:256
    s_mov_b64 exec, -1
    s_waitcnt lgkmcnt(0)
    s_barrier
    """)
    ts(A, "stats")
    X, TR, TM, T, ACC, PK = 48, 64, 80, 96, 124, 100
    for tl in range(2):
        for ks in range(2):
            b = X + (tl*2+ks)*4
            off = ks*32*XRS + 8*tl
            A(f"ds_read_b64_tr_b16 {v(b,2)}, v6 offset:{off}\nds_read_b64_tr_b16 {v(b+2,2)}, v6 offset:{off+4*XRS}")
        if tl == 0:
            for ks in range(2):
                for hf in range(2):
                    A(f"ds_read_b128 {v(TR+ks*8+hf*4,4)}, v8 offset:{ks*128+hf*16}")
                    A(f"ds_read_b128 {v(TM+ks*8+hf*4,4)}, v8 offset:{256+ks*128+hf*16}")
    for tl in range(2):
        for ks in range(2):
            b = X + (tl*2+ks)*4
            for jj in range(4):
                t = T + 2*(jj & 1)
                A(f"v_lshlrev_b32 v{t}, 16, v{b+jj}\nv_and_b32 v{t+1}, 0xffff0000, v{b+jj}")
                A(f"v_pk_fma_f32 {v(t,2)}, {v(t,2)}, {v(TR+ks*8+2*jj,2)}, {v(TM+ks*8+2*jj,2)}")
                A(f"v_cvt_pk_bf16_f32 v{b+jj}, v{t}, v{t+1}")
        for sh in range(2):
            for c in range(2):
                acc = ACC + ((tl*2+sh)*2+c)*4
                for ks in range(2):
                    A(f"v_mfma_f32_16x16x32_bf16 {v(acc,4)}, {v(X+(tl*2+ks)*4,4)}, {v(BC+((sh*2+c)*2+ks)*4,4)}, {v(acc,4) if ks else 0}")
    for tl in range(2):
        for sh in range(2):
            acc = ACC + (tl*2+sh)*8
            pk = PK + (tl*2+sh)*4
            for r in range(4): A(f"v_cvt_pk_bf16_f32 v{pk+r}, v{acc+r}, v{acc+4+r}")
            A(f"buffer_store_dwordx4 {v(pk,4)}, v9, {srd(S_WS)}, s{46+sh} offen offset:{tl*256} {st}", tag="st")

def k1_mod(A, st="sc1"):
    A(f"""
    s_and_b32 s38, s2, 7
    s_lshr_b32 s39, s2, 3
    s_mul_i32 s38, s38, 12
    s_add_u32 s36, s38, s39
    s_sub_u32 s36, s36, 16
    v_lshlrev_b32 v4, 2, v0
    buffer_load_dword v8, v4, {srd(S_C)}, 0 offen
    v_lshrrev_b32 v5, 2, v1
    v_mul_u32_u24 v5, 6144, v5
    v_and_b32 v6, 3, v1
    v_lshl_add_u32 v5, v6, 4, v5
    s_mul_i32 s38, s3, {128*6144}
    s_lshl_b32 s39, s36, 6
    s_add_u32 s38, s38, s39
    s_lshl_b32 s39, s3, 13
    s_add_u32 s39, s39, {MW}
    """)
    for i in range(8):
        A(f"s_add_u32 m0, s39, {i*1024}")
        if i: A(f"s_add_u32 s38, s38, {16*6144}")
        A(f"buffer_load_dwordx4 v5, {srd(S_WM)}, s38 offen lds", tag="wm")
    A(f"""
    v_bfe_u32 v6, v1, 2, 2
    v_lshl_add_u32 v6, v3, 3, v6
    v_lshlrev_b32 v6, 6, v6
    v_and_b32 v7, 3, v1
    v_lshl_add_u32 v6, v7, 3, v6
    v_add_u32 v6, s39, v6
    v_add_u32 v4, {MSC}, v4
    s_lshl_b32 s40, s3, 8
    s_add_u32 s40, s40, {MSC}
    v_lshl_add_u32 v7, v3, 4, s40
    """)
    A(f"""
    v_lshlrev_b32 v9, 16, v8
    v_and_b32 v10, 0xffff0000, v8
    v_mul_f32 v11, {fbits(-math.log2(math.e))}, v9
    v_mul_f32 v12, {fbits(-math.log2(math.e))}, v10
    v_exp_f32 v11, v11
    v_exp_f32 v12, v12
    v_add_f32 v11, 1.0, v11
    v_add_f32 v12, 1.0, v12
    v_rcp_f32 v11, v11
    v_rcp_f32 v12, v12
    v_mul_f32 v9, v9, v11
    v_mul_f32 v10, v10, v12
    v_cvt_pk_bf16_f32 v9, v9, v10
    ds_write_b32 v4, v9
    """)
    SF, WF, ACC = 16, 32, 64
    A("s_waitcnt lgkmcnt(0)")
    for ks in range(4): A(f"ds_read_b128 {v(SF+4*ks,4)}, v7 offset:{ks*64}")
    ts(A, "m_c")
    A.wait_tag("wm")
    ts(A, "m_w")
    for ks in range(4):
        for nt in range(2):
            b = WF + (ks*2+nt)*4
            off = ks*2048 + nt*32
            A(f"ds_read_b64_tr_b16 {v(b,2)}, v6 offset:{off}\nds_read_b64_tr_b16 {v(b+2,2)}, v6 offset:{off+256}")
    for ks in range(4):
        for nt in range(2):
            A(f"v_mfma_f32_16x16x32_bf16 {v(ACC+4*nt,4)}, {v(SF+4*ks,4)}, {v(WF+(ks*2+nt)*4,4)}, {v(ACC+4*nt,4) if ks else 0}")
    skip = A.label("modskip")
    A(f"""
    s_lshl_b32 s40, s3, 7
    s_add_u32 s40, s40, {MRED}
    v_lshl_add_u32 v9, v2, 2, s40
    s_mov_b64 exec, 0xffff
    ds_write_b32 v9, v{ACC}
    ds_write_b32 v9, v{ACC+4} offset:64
    s_mov_b64 exec, -1
    s_waitcnt lgkmcnt(0)
    s_barrier
    s_cmp_lg_u32 s3, 0
    s_cbranch_scc1 {skip}
    v_and_b32 v10, 31, v1
    v_lshlrev_b32 v9, 2, v10
    v_add_u32 v9, {MRED}, v9
    ds_read_b32 v11, v9
    ds_read_b32 v12, v9 offset:128
    ds_read_b32 v13, v9 offset:256
    ds_read_b32 v14, v9 offset:384
    s_lshr_b32 s40, s36, 4
    s_and_b32 s41, s36, 15
    s_lshl_b32 s41, s41, 5
    v_add_u32 v10, s41, v10
    v_lshrrev_b32 v15, 8, v10
    v_lshlrev_b32 v15, 8, v15
    v_bfe_u32 v16, v10, 2, 2
    v_lshl_add_u32 v15, v16, 6, v15
    v_bfe_u32 v16, v10, 4, 4
    v_lshl_add_u32 v15, v16, 2, v15
    v_and_b32 v16, 3, v10
    v_add_u32 v15, v15, v16
    s_sub_u32 s41, s40, 2
    s_cmp_lt_u32 s41, 3
    s_cselect_b64 vcc, -1, 0
    v_cndmask_b32 v10, v10, v15, vcc
    v_lshlrev_b32 v10, 2, v10
    s_lshl_b32 s41, s40, 11
    s_add_u32 s41, s41, {WS_MOD}
    s_cmp_eq_u32 s40, 1
    s_cselect_b32 s42, 1.0, 0
    s_cmp_eq_u32 s40, 4
    s_cselect_b32 s42, 1.0, s42
    v_add_f32 v11, v11, v12
    v_add_f32 v13, v13, v14
    v_add_f32 v11, v11, v13
    """)
    bf16r(A, "v11", "v11")
    A("v_add_f32 v11, s42, v11")
    bf16r(A, "v11", "v11")
    A(f"""
    s_mov_b32 exec_hi, 0
    buffer_store_dword v11, v10, {srd(S_WS)}, s41 offen {st}
    s_mov_b64 exec, -1
    {skip}:
    """)

def k1(A):
    m, e = A.label("k1mod"), A.label("k1end")
    A(f"s_cmp_ge_u32 s2, 128\ns_cbranch_scc1 {m}")
    k1_ln(A)
    ts(A, "stiss")
    A("s_waitcnt vmcnt(0) lgkmcnt(0)")
    A(f"s_branch {e}\n{m}:\ns_cmp_ge_u32 s2, 224\ns_cbranch_scc1 {e}")
    A.reset()
    n0 = _ts["n"]; _ts["n"] = 2
    k1_mod(A)
    _ts["n"] = n0
    A(f"s_waitcnt vmcnt(0) lgkmcnt(0)\n{e}:")
    A.reset()

K2 = dict(BS=16, CC=24, CS=26, CW=28, SW=36, BH=44, U=64, XR=128, CA=136, GA=168, CB=176, SB=184, Z=192)
def k2_pre(A):
    r = K2
    A("""
    s_and_b32 s36, s2, 7
    s_bfe_u32 s37, s2, 0x20003
    s_lshl_b32 s37, s37, 3
    s_add_u32 s36, s36, s37
    s_lshr_b32 s37, s2, 5
    s_sub_u32 s39, 64, s36
    s_cmp_eq_u32 s36, 0
    s_cselect_b32 s39, 32, s39
    s_cselect_b64 s[40:41], -1, 0
    s_lshl_b32 s42, s37, 2
    s_add_u32 s43, s42, s3
    s_lshl_b32 s43, s43, 6
    s_add_u32 s44, s43, s36
    s_add_u32 s45, s43, s39
    s_lshl_b32 s44, s44, 10
    s_lshl_b32 s45, s45, 10
    v_lshlrev_b32 v4, 5, v2
    v_lshl_add_u32 v4, v3, 3, v4
    """)
    for uu in range(2):
        for nt in range(2):
            A(f"buffer_load_dwordx2 {v(r['XR']+(uu*2+nt)*2,2)}, v4, {srd(S_X)}, s{44+uu} offen offset:{nt*512}")
    A("""
    v_lshrrev_b32 v5, 2, v2
    v_add_u32 v5, s42, v5
    v_lshlrev_b32 v5, 6, v5
    v_and_b32 v6, 2, v2
    v_cmp_ne_u32 vcc, 0, v6
    v_mov_b32 v7, s36
    v_mov_b32 v8, s39
    v_cndmask_b32 v7, v7, v8, vcc
    v_add_u32 v5, v5, v7
    v_cvt_f32_u32 v5, v5
    v_mul_f32 v5, 0x3a000000, v5
    v_and_b32 v6, 1, v2
    v_cvt_f32_u32 v6, v6
    v_mul_f32 v6, 0x3e800000, v6
    v_mov_b32 v7, 0xbe800000
    v_mov_b32 v8, 0x3e800000
    v_cndmask_b32 v7, v7, v8, vcc
    v_cndmask_b32 v7, v7, 0, s[40:41]
    v_add_f32 v7, v7, v6
    v_cndmask_b32 v8, 1.0, 0, vcc
    v_cndmask_b32 v9, 0, 1.0, vcc
    v_cndmask_b32 v8, 1.0, v8, s[40:41]
    v_cndmask_b32 v9, 1.0, v9, s[40:41]
    v_lshlrev_b32 v10, 2, v3
    v_cvt_f32_u32 v10, v10
    """)
    T = 64
    for ks in range(2):
        for i in range(4):
            A(f"v_add_f32 v11, {fbits(16*ks+i)}, v10\nv_fma_f32 v{T+2*i}, v11, v5, v6\nv_fma_f32 v{T+2*i+1}, v11, v5, v7")
        for i in range(8): A(f"v_cos_f32 v{T+i}, v{T+i}")
        for i in range(4):
            A(f"v_mul_f32 v{T+2*i}, v{T+2*i}, v8\nv_mul_f32 v{T+2*i+1}, v{T+2*i+1}, v9")
            A(f"v_cvt_pk_bf16_f32 v{r['BS']+ks*4+i}, v{T+2*i}, v{T+2*i+1}")
    A("v_cvt_f32_u32 v12, v2\nv_mul_f32 v13, 0x3d800000, v12")
    for j in range(4):
        A(f"v_add_f32 v11, {fbits(j)}, v10\nv_mul_f32 v{T+j}, v11, v13")
    for j in range(4): A(f"v_sin_f32 v{T+4+j}, v{T+j}")
    for j in range(4): A(f"v_cos_f32 v{T+j}, v{T+j}")
    for jj in range(2):
        A(f"v_cvt_pk_bf16_f32 v{r['CC']+jj}, v{T+2*jj}, v{T+2*jj+1}\nv_cvt_pk_bf16_f32 v{r['CS']+jj}, v{T+4+2*jj}, v{T+5+2*jj}")
    A("v_mul_f32 v13, 0x3b000000, v12\ns_lshl_b32 s46, s3, 3\nv_cvt_f32_u32 v14, s46")
    for t in range(8):
        A(f"v_add_f32 v11, {fbits(t)}, v14\nv_mul_f32 v{T+t}, v11, v13")
    for t in range(8):
        A(f"v_cos_f32 v{r['CW']+t}, v{T+t}\nv_sin_f32 v{r['SW']+t}, v{T+t}")
    for nt in range(2):
        A(f"v_add_f32 v13, {fbits(16*nt)}, v12\nv_mul_f32 v13, 0x3d000000, v13")
        for ks in range(2):
            for i in range(4):
                A(f"v_add_f32 v11, {fbits(16*ks+i)}, v10\nv_mul_f32 v{T+i}, v11, v13")
            for i in range(4): A(f"v_sin_f32 v{T+4+i}, v{T+i}")
            for i in range(4): A(f"v_cos_f32 v{T+i}, v{T+i}")
            for i in range(4): A(f"v_cvt_pk_bf16_f32 v{r['BH']+(nt*2+ks)*4+i}, v{T+i}, v{T+4+i}")
    A(f"""
    v_lshlrev_b32 v5, 13, v3
    v_lshl_add_u32 v5, v2, 4, v5
    s_mul_i32 s46, s36, {SLOTSTR}
    s_lshl_b32 s47, s3, 9
    s_add_u32 s46, s46, s47
    s_add_u32 s46, s46, {WS_U}
    s_add_u32 s47, s46, 4096
    s_add_u32 s48, s46, 32768
    s_add_u32 s49, s46, {32768+4096}
    v_lshlrev_b32 v6, 9, v3
    s_lshl_b32 s50, s3, 5
    s_add_u32 s50, s50, {WS_MOD}
    v_lshlrev_b32 v7, 4, v1
    v_lshl_add_u32 v8, v3, 5, v2
    v_mul_u32_u24 v8, 144, v8
    s_lshl_b32 s51, s3, 5
    s_add_u32 s51, s51, {K2EX}
    v_add_u32 v8, s51, v8
    v_mul_u32_u24 v9, 144, v2
    v_lshl_add_u32 v9, v3, 4, v9
    s_mul_i32 s51, s3, {32*144}
    s_add_u32 s51, s51, {K2EX}
    v_add_u32 v9, s51, v9
    s_mul_i32 s51, s3, 2080
    s_add_u32 s51, s51, {K2HB}
    v_add_u32 v10, s51, v4
    v_and_b32 v11, 7, v0
    v_lshrrev_b32 v12, 3, v0
    v_mul_u32_u24 v13, 1040, v11
    v_lshl_add_u32 v13, v12, 4, v13
    v_add_u32 v13, {K2HB}, v13
    v_lshlrev_b32 v11, 4, v11
    v_lshl_add_u32 v11, v12, 9, v11
    s_lshl_b32 s51, s36, 3
    s_add_u32 s51, s51, s37
    s_lshl_b32 s52, s51, 13
    s_lshl_b32 s53, s3, 11
    s_add_u32 s52, s52, s53
    s_add_u32 s52, s52, {WS_X1}
    s_add_u32 s53, s52, 1024
    s_lshr_b32 s54, s51, 2
    s_lshl_b32 s54, s54, 15
    s_and_b32 s55, s51, 3
    s_lshl_b32 s55, s55, 7
    s_add_u32 s54, s54, s55
    s_add_u32 s54, s54, {WS_H2}
    s_add_u32 s55, s54, 16384
    """)

def k2_main(A, ld="sc1", st="sc1"):
    r = K2
    U, Z = r['U'], r['Z']
    for ks in range(2):
        for hh in range(2):
            for i in range(4):
                A(f"buffer_load_dwordx4 {v(U+((ks*2+hh)*4+i)*4,4)}, v5, {srd(S_WS)}, s{46+ks*2+(i>>1)} offen offset:{(i&1)*2048+hh*256} {ld}")
    for rr in range(4):
        for hf in range(2):
            A(f"buffer_load_dwordx4 {v(r['CA']+rr*8+hf*4,4)}, v6, {srd(S_WS)}, s50 offen offset:{2048+rr*128+hf*16} {ld}")
    A(f"s_mov_b32 s56, {WS_MOD+2*2048}\ns_mov_b32 s57, {WS_MOD+3*2048}\ns_mov_b32 s58, {WS_MOD+4*2048}")
    for nm, sr in (("GA", 56), ("CB", 58), ("SB", 57)):
        for nt in range(2):
            A(f"buffer_load_dwordx4 {v(r[nm]+nt*4,4)}, v7, {srd(S_WS)}, s{sr} offen offset:{nt*1024} {ld}")
    if TS: A("s_waitcnt vmcnt(0)"); ts(A, "uarr")
    for hh in range(2):
        for ks in range(2):
            b = U + (ks*2+hh)*16
            for i in range(4):
                for t in range(i+1, 4): A(f"v_swap_b32 v{b+4*i+t}, v{b+4*t+i}")
        for t in range(4):
            for ks in range(2):
                z = Z + (hh*4+t)*4
                A(f"v_mfma_f32_16x16x32_bf16 {v(z,4)}, {v(U+(ks*2+hh)*16+4*t,4)}, {v(r['BS']+ks*4,4)}, {v(z,4) if ks else 0}")
    for t in range(8):
        for rr in range(4): A(f"v_mul_f32 v{Z+4*t+rr}, v{Z+4*t+rr}, v{r['CA']+rr*8+t}")
    sk = A.label("k2sa")
    A(f"s_waitcnt vmcnt(0)\ns_cmp_lg_u32 s2, 0\ns_cbranch_scc1 {sk}")
    for rr in range(4):
        for hf in range(2):
            A(f"buffer_load_dwordx4 {v(U+rr*8+hf*4,4)}, v6, {srd(S_WS)}, s50 offen offset:{rr*128+hf*16} {ld}")
    A("s_waitcnt vmcnt(0)\ns_mov_b32 s59, 0x45000000\ns_mov_b32 exec_lo, 0x00010001\ns_mov_b32 exec_hi, 0x00010001")
    for t in range(8):
        for rr in range(4): A(f"v_fma_f32 v{Z+4*t+rr}, v{U+rr*8+t}, s59, v{Z+4*t+rr}")
    A(f"s_mov_b64 exec, -1\n{sk}:")
    ZP, P, Q, W = 64, 80, Z, 64
    for t in range(8):
        A(f"v_cvt_pk_bf16_f32 v{ZP+2*t}, v{Z+4*t}, v{Z+4*t+1}\nv_cvt_pk_bf16_f32 v{ZP+2*t+1}, v{Z+4*t+2}, v{Z+4*t+3}")
    for t in range(8):
        A(f"v_mfma_f32_16x16x16_bf16 {v(P+4*t,4)}, {v(ZP+2*t,2)}, {v(r['CC'],2)}, 0")
        A(f"v_mfma_f32_16x16x16_bf16 {v(Q+4*t,4)}, {v(ZP+2*t,2)}, {v(r['CS'],2)}, 0")
    W = 112
    for hh in range(2):
        for uu in range(2):
            for t4 in range(4):
                t = hh*4 + t4
                p, q = P+4*t+2*uu, Q+4*t+2*uu
                A(f"v_add_f32 v{p}, v{p}, v{q+1}\nv_sub_f32 v{p+1}, v{p+1}, v{q}")
            for t4 in range(4):
                t = hh*4 + t4
                p, q = P+4*t+2*uu, Q+4*t+2*uu
                A(f"v_mul_f32 v{q}, v{p}, v{r['CW']+t}\nv_mul_f32 v{q+1}, v{p+1}, v{r['CW']+t}")
            for t4 in range(4):
                t = hh*4 + t4
                p, q = P+4*t+2*uu, Q+4*t+2*uu
                A(f"v_fma_f32 v{q}, v{p+1}, v{r['SW']+t}, v{q}\nv_fma_f32 v{q+1}, -v{p}, v{r['SW']+t}, v{q+1}")
            for t4 in range(4):
                t = hh*4 + t4
                q = Q+4*t+2*uu
                A(f"v_cvt_pk_bf16_f32 v{W+uu*8+t}, v{q}, v{q+1}")
            A(f"ds_write_b128 v8, {v(W+uu*8+hh*4,4)} offset:{uu*16*144+hh*16}")
    A("s_waitcnt lgkmcnt(0)\ns_barrier")
    ts(A, "h1")
    AF, Y = 80, 96
    for uu in range(2):
        for ks in range(2):
            A(f"ds_read_b128 {v(AF+(uu*2+ks)*4,4)}, v9 offset:{uu*16*144+ks*64}")
    for uu in range(2):
        for nt in range(2):
            y = Y + (uu*2+nt)*4
            for ks in range(2):
                A(f"v_mfma_f32_16x16x32_bf16 {v(y,4)}, {v(AF+(uu*2+ks)*4,4)}, {v(r['BH']+(nt*2+ks)*4,4)}, {v(y,4) if ks else 0}")
    XF = 64
    for uu in range(2):
        for nt in range(2):
            xr = r['XR'] + (uu*2+nt)*2; xf = XF + (uu*2+nt)*4
            A(f"v_lshlrev_b32 v{xf}, 16, v{xr}\nv_and_b32 v{xf+1}, 0xffff0000, v{xr}\nv_lshlrev_b32 v{xf+2}, 16, v{xr+1}\nv_and_b32 v{xf+3}, 0xffff0000, v{xr+1}")
    for uu in range(2):
        for nt in range(2):
            y = Y + (uu*2+nt)*4; xf = XF + (uu*2+nt)*4; g = r['GA'] + nt*4
            for h in range(2):
                A(f"v_pk_fma_f32 {v(y+2*h,2)}, {v(y+2*h,2)}, {v(g+2*h,2)}, {v(xf+2*h,2)}")
    XP = 80
    for uu in range(2):
        for nt in range(2):
            y = Y + (uu*2+nt)*4; xp = XP + (uu*2+nt)*2
            A(f"v_cvt_pk_bf16_f32 v{xp}, v{y}, v{y+1}\nv_cvt_pk_bf16_f32 v{xp+1}, v{y+2}, v{y+3}")
            A(f"buffer_store_dwordx2 {v(xp,2)}, v4, {srd(S_WS)}, s{52+uu} offen offset:{nt*512} {st}", tag="st")
    for uu in range(2):
        for nt in range(2):
            y = Y + (uu*2+nt)*4; xp = XP + (uu*2+nt)*2
            A(f"v_lshlrev_b32 v{y}, 16, v{xp}\nv_and_b32 v{y+1}, 0xffff0000, v{xp}\nv_lshlrev_b32 v{y+2}, 16, v{xp+1}\nv_and_b32 v{y+3}, 0xffff0000, v{xp+1}")
    for uu in range(2):
        y = Y + uu*8
        A(f"v_pk_add_f32 v[64:65], {v(y,2)}, {v(y+2,2)}\nv_pk_mul_f32 v[66:67], {v(y,2)}, {v(y,2)}")
        A(f"v_pk_add_f32 v[64:65], v[64:65], {v(y+4,2)}\nv_pk_fma_f32 v[66:67], {v(y+2,2)}, {v(y+2,2)}, v[66:67]")
        A(f"v_pk_add_f32 v[64:65], v[64:65], {v(y+6,2)}\nv_pk_fma_f32 v[66:67], {v(y+4,2)}, {v(y+4,2)}, v[66:67]")
        A(f"v_add_f32 v{88+2*uu}, v64, v65\nv_pk_fma_f32 v[66:67], {v(y+6,2)}, {v(y+6,2)}, v[66:67]")
        A(f"v_add_f32 v{89+2*uu}, v66, v67")
    A("""
    v_permlane16_swap_b32 v88, v89
    v_permlane16_swap_b32 v90, v91
    v_add_f32 v88, v88, v89
    v_add_f32 v90, v90, v91
    v_permlane32_swap_b32 v88, v90
    v_add_f32 v88, v88, v90
    v_add_f32 v88, v88, v88 row_ror:8
    v_add_f32 v88, v88, v88 row_ror:4
    v_add_f32 v88, v88, v88 row_ror:2
    v_add_f32 v88, v88, v88 row_ror:1
    v_readlane_b32 s60, v88, 0
    v_readlane_b32 s61, v88, 16
    v_readlane_b32 s62, v88, 32
    v_readlane_b32 s63, v88, 48
    v_mov_b32 v68, 0x3b000000
    """)
    for uu in range(2):
        m, q = 64+2*uu, 65+2*uu
        A(f"v_mul_f32 v{m}, s{60+2*uu}, v68\nv_mul_f32 v{q}, s{61+2*uu}, v68")
    for uu in range(2):
        m, q = 64+2*uu, 65+2*uu
        A(f"v_fma_f32 v{q}, -v{m}, v{m}, v{q}\nv_max_f32 v{q}, 0, v{q}\nv_cvt_pk_bf16_f32 v{m}, v{m}, v{q}")
        A(f"v_and_b32 v{q}, 0xffff0000, v{m}\nv_lshlrev_b32 v{m}, 16, v{m}\nv_add_f32 v{q}, {fbits(1e-5)}, v{q}")
        bf16r(A, f"v{q}", f"v{q}")
    for uu in range(2): A(f"v_sqrt_f32 v{65+2*uu}, v{65+2*uu}")
    for uu in range(2): bf16r(A, f"v{65+2*uu}", f"v{65+2*uu}")
    for uu in range(2): A(f"v_rcp_f32 v{65+2*uu}, v{65+2*uu}")
    for uu in range(2): A(f"v_mul_f32 v{64+2*uu}, -v{64+2*uu}, v{65+2*uu}")
    HP = 80
    for uu in range(2):
        for nt in range(2):
            y = Y + (uu*2+nt)*4
            for h in range(2):
                A(f"v_pk_fma_f32 {v(y+2*h,2)}, {v(y+2*h,2)}, {v(64+2*uu,2)}, {v(64+2*uu,2)} op_sel:[0,1,0] op_sel_hi:[1,1,0]")
            for h in range(2):
                A(f"v_pk_fma_f32 {v(y+2*h,2)}, {v(y+2*h,2)}, {v(r['CB']+nt*4+2*h,2)}, {v(r['SB']+nt*4+2*h,2)}")
            hp = HP + (uu*2+nt)*2
            A(f"v_cvt_pk_bf16_f32 v{hp}, v{y}, v{y+1}\nv_cvt_pk_bf16_f32 v{hp+1}, v{y+2}, v{y+3}")
            A(f"ds_write_b64 v10, {v(hp,2)} offset:{uu*1040+nt*512}")
    A("s_waitcnt lgkmcnt(0)\ns_barrier")
    A("ds_read_b128 v[64:67], v13\nds_read_b128 v[68:71], v13 offset:512")
    A(f"buffer_store_dwordx4 v[64:67], v11, {srd(S_WS)}, s54 offen {st}", tag="st")
    A(f"buffer_store_dwordx4 v[68:71], v11, {srd(S_WS)}, s55 offen {st}", tag="st")

def k2(A):
    k2_pre(A)
    ts(A, "pre")
    k2_main(A)
    ts(A, "stiss")
    if TS: A("s_waitcnt vmcnt(0)")

def k3_ids(A):
    A("""
    s_and_b32 s38, s2, 7
    s_lshr_b32 s39, s2, 3
    s_lshr_b32 s36, s38, 1
    s_lshl_b32 s36, s36, 2
    s_and_b32 s40, s39, 3
    s_add_u32 s36, s36, s40
    s_and_b32 s37, s38, 1
    s_lshl_b32 s37, s37, 3
    s_lshr_b32 s40, s39, 2
    s_add_u32 s37, s37, s40
    """)

def k3_waddr(A, vb):
    A(f"s_mul_i32 s40, s3, 192\ns_mov_b32 s41, 0x15555556")
    for i in range(3):
        A(f"""
        v_add_u32 v{vb+i}, s40, v1
        v_add_u32 v{vb+i}, {64*i}, v{vb+i}
        v_mul_hi_u32 v{vb+3}, v{vb+i}, s41
        v_mul_u32_u24 v{vb+4}, 12, v{vb+3}
        v_sub_u32 v{vb+i}, v{vb+i}, v{vb+4}
        v_lshlrev_b32 v{vb+i}, 4, v{vb+i}
        v_mul_u32_u24 v{vb+3}, 2752, v{vb+3}
        v_add_u32 v{vb+i}, v{vb+i}, v{vb+3}
        """)

def k3_dma(A, chunk, slot, vb, sSl, sW, sT, tag):
    A(f"s_add_u32 s{sT}, s{sSl}, {chunk*64*2752}")
    for mtx, sr in ((0, S_WG), (1, S_WU)):
        for i in range(3):
            A(f"s_add_u32 m0, s{sW}, {slot*SLOT+mtx*UOFF+i*1024}")
            A(f"buffer_load_dwordx4 v{vb+i}, {srd(sr)}, s{sT} offen lds", tag=tag)

K3SCHED = [(range(0, 12), range(6))] + [(range(12, 32), [j]) for j in range(6)]
def k3_main(A, ld="sc1", st="sc1", sched=None, standalone=True, hide=True):
    sched = sched or K3SCHED
    ACC, AF, NAF = 16, 112, 6
    VB = 8
    T = 136
    PK = 152
    done = A.label("k3done")
    k3_ids(A)
    A(f"s_cmp_eq_u32 s37, 15\ns_cbranch_scc1 {done}")
    if not standalone:
        A("s_waitcnt vmcnt(0)\ns_barrier")
    k3_waddr(A, VB)
    A(f"s_mul_i32 s42, s37, 192\ns_mul_i32 s43, s3, 3072")
    if standalone:
        for ch in range(2): k3_dma(A, ch, ch, VB, 42, 43, 44, f"w{ch}")
    A(f"""
    s_lshl_b32 s45, s36, 2
    s_add_u32 s45, s45, s3
    s_lshl_b32 s46, s45, 15
    s_add_u32 s46, s46, {WS_H2}
    v_lshlrev_b32 v4, 4, v1
    """)
    for k in range(32):
        if k and k % 4 == 0: A("s_add_u32 s46, s46, 4096")
        A(f"buffer_load_dwordx4 {a(4*k,4)}, v4, {srd(S_WS)}, s46 offen offset:{(k%4)*1024} {ld}")
        if standalone and k in (7, 11, 15, 19):
            ch = 2 + (k-7)//4
            k3_dma(A, ch, ch, VB, 42, 43, 44, f"w{ch}")
    A(f"""
    v_bfe_u32 v5, v1, 1, 1
    v_mul_u32_u24 v5, {UOFF}, v5
    v_bfe_u32 v6, v1, 2, 2
    v_bfe_u32 v7, v1, 5, 1
    v_lshl_add_u32 v6, v7, 3, v6
    v_mul_u32_u24 v6, 192, v6
    v_add_u32 v5, v5, v6
    v_bfe_u32 v6, v1, 4, 1
    v_lshl_add_u32 v5, v6, 4, v5
    v_and_b32 v6, 1, v1
    v_lshl_add_u32 v5, v6, 3, v5
    v_add_u32 v6, {2*SLOT}, v5
    v_add_u32 v7, {4*SLOT}, v5
    s_mul_i32 s47, s45, {86*1024}
    s_mul_i32 s48, s37, {6*1024}
    s_add_u32 s47, s47, s48
    s_add_u32 s47, s47, {WS_ACT}
    s_add_u32 s48, s47, 2048
    s_add_u32 s51, s47, 4096
    s_cmp_eq_u32 s37, 14
    s_cselect_b32 s48, {WS_SIZE}, s48
    s_cselect_b32 s51, {WS_SIZE}, s51
    s_mov_b32 s49, {fbits(-math.log2(math.e))}
    s_mov_b32 s50, {fbits(-math.log2(math.e))}
    """)
    order = [(k, j) for ks, js in sched for k in ks for j in js]
    assert len(order) == 192 and len(set(order)) == 192
    def slot_of(k):
        ch = k // 4
        return ch if ch < 6 else ch - 6
    def frag_read(n):
        k, j = order[n]
        sl = slot_of(k)
        base = ("v5", "v6", "v7")[sl // 2]
        off = (sl % 2)*SLOT + (k % 4)*16*192 + j*32
        b = AF + (n % NAF)*4
        return f"ds_read_b64_tr_b16 {v(b,2)}, {base} offset:{off}\nds_read_b64_tr_b16 {v(b+2,2)}, {base} offset:{off+4*192}"
    def epi_ops(j, packed):
        acc = ACC + 16*j
        pk = PK + 4*(j & 1)
        ops = []
        if packed:
            for hf in range(2):
                g, u = acc + 8*hf, acc + 8*hf + 4
                t = T + 4*hf
                for h in range(2): ops.append(f"v_pk_mul_f32 {v(t+2*h,2)}, {v(g+2*h,2)}, s[49:50]" if False else f"v_pk_mul_f32 {v(t+2*h,2)}, {v(g+2*h,2)}, v[14:15]")
                for h in range(2): ops.append(f"v_pk_mul_f32 {v(g+2*h,2)}, {v(g+2*h,2)}, {v(u+2*h,2)}")
            for i in range(8): ops.append(f"v_exp_f32 v{T+i}, v{T+i}")
            for h in range(4): ops.append(f"v_pk_add_f32 {v(T+2*h,2)}, {v(T+2*h,2)}, 1.0 op_sel_hi:[1,0]")
            for i in range(8): ops.append(f"v_rcp_f32 v{T+i}, v{T+i}")
            for hf in range(2):
                g = acc + 8*hf; t = T + 4*hf
                for h in range(2): ops.append(f"v_pk_mul_f32 {v(g+2*h,2)}, {v(g+2*h,2)}, {v(t+2*h,2)}")
        else:
            idx = [(acc + 8*hf + r, acc + 8*hf + 4 + r, T + 4*hf + r) for hf in range(2) for r in range(4)]
            for g, u, t in idx: ops.append(f"v_mul_f32 v{t}, s49, v{g}")
            for g, u, t in idx: ops.append(f"v_exp_f32 v{t}, v{t}")
            for g, u, t in idx: ops.append(f"v_mul_f32 v{g}, v{g}, v{u}")
            for g, u, t in idx: ops.append(f"v_add_f32 v{t}, 1.0, v{t}")
            for g, u, t in idx: ops.append(f"v_rcp_f32 v{t}, v{t}")
            for g, u, t in idx: ops.append(f"v_mul_f32 v{g}, v{g}, v{t}")
        for hf in range(2):
            g = acc + 8*hf
            ops.append(f"v_cvt_pk_bf16_f32 v{pk+2*hf}, v{g}, v{g+1}")
            ops.append(f"v_cvt_pk_bf16_f32 v{pk+2*hf+1}, v{g+2}, v{g+3}")
        return ops
    def store(j):
        pk = PK + 4*(j & 1)
        return f"buffer_store_dwordx4 {v(pk,4)}, v4, {srd(S_WS)}, s{(47,48,51)[j//2]} offen offset:{(j%2)*1024} {st}\n"
    A("v_mov_b32 v14, s49\nv_mov_b32 v15, s49")
    last = {}
    for n, (k, j) in enumerate(order): last[j] = n
    seen_chunk = set()
    def ensure_chunk(k):
        ch = k // 4
        if ch not in seen_chunk:
            seen_chunk.add(ch)
            if standalone or ch >= 6:
                A.wait_tag(f"w{ch}")
                A("s_barrier")
    PF = NAF - 1
    ts(A, "issued")
    for n in range(PF):
        ensure_chunk(order[n][0]); A(frag_read(n))
    ts(A, "first")
    tc(A, "first")
    pending = []
    started = set()
    for n, (k, j) in enumerate(order):
        acc = ACC + 16*j
        A(f"v_mfma_f32_32x32x16_bf16 {v(acc,16)}, {v(AF+(n%NAF)*4,4)}, {a(4*k,4)}, {v(acc,16) if j in started else 0}")
        started.add(j)
        if n in (47, 71, 91, 111, 151): ts(A, f"n{n}")
        if n + PF < 192:
            ensure_chunk(order[n+PF][0]); A(frag_read(n+PF))
        if n == 47 + 0:
            pass
        if order[n][0] == 7 and j == 5 and len(sched[0][0]) >= 8:
            A("s_barrier")
            for ch in (6, 7): k3_dma(A, ch, ch-6, VB, 42, 43, 44, f"w{ch}")
        take = 2
        while pending and take > 0 and hide:
            op = pending.pop(0)
            if op[0] == "store":
                A(store(op[1]), tag="st")
            else:
                A(op[1]); take -= 2 if op[1].startswith(("v_exp", "v_rcp")) else 1
        for jj, ln in last.items():
            if n == ln + 2 and n < 191:
                while pending:
                    op = pending.pop(0)
                    if op[0] == "store": A(store(op[1]), tag="st")
                    else: A(op[1])
                pending = [("op", o) for o in epi_ops(jj, False)] + [("store", jj)]
    while pending:
        op = pending.pop(0)
        if op[0] == "store": A(store(op[1]), tag="st")
        else: A(op[1])
    ts(A, "mfma")
    tc(A, "mfma")
    for jj, ln in last.items():
        if ln + 2 >= 191:
            for o in epi_ops(jj, True): A(o)
            A(store(jj), tag="st")
    ts(A, "stiss")
    A(f"s_waitcnt vmcnt(0)\n{done}:")
    A.reset()

def k3(A):
    k3_main(A)

def k4_main(A, ld="sc1", persistent=False):
    A(f"""
    s_and_b32 s36, s2, 7
    s_lshl_b32 s36, s36, 2
    s_bfe_u32 s38, s2, 0x20003
    s_add_u32 s36, s36, s38
    s_lshr_b32 s37, s2, 5
    s_lshr_b32 s38, s3, 1
    s_and_b32 s39, s3, 1
    v_lshrrev_b32 v4, 3, v1
    v_lshlrev_b32 v5, 10, v4
    v_and_b32 v6, 7, v1
    v_lshlrev_b32 v4, 1, v4
    v_and_b32 v4, 4, v4
    v_xor_b32 v6, v6, v4
    v_lshl_add_u32 v5, v6, 4, v5
    s_mul_i32 s40, s38, {688*1024}
    s_lshl_b32 s41, s37, 7
    s_add_u32 s40, s40, s41
    s_lshl_b32 s41, s39, 13
    s_add_u32 s40, s40, s41
    s_mul_i32 s41, s38, 81920
    s_lshl_b32 s42, s39, 10
    s_add_u32 s42, s42, s41
    """)
    def dma(i2, tag):
        dst = (2*i2 if i2 < 40 else 2*(i2-40)) * 1024
        A(f"s_add_u32 m0, s42, {dst}\ns_add_u32 s43, s40, {i2*16384}")
        A(f"buffer_load_dwordx4 v5, {srd(S_WD)}, s43 offen lds", tag=tag)
    A(f"""
    s_lshl_b32 s44, s36, 1
    s_add_u32 s44, s44, s39
    s_mul_i32 s44, s44, {86*1024}
    s_mul_i32 s45, s38, {43*1024}
    s_add_u32 s44, s44, s45
    s_add_u32 s44, s44, {WS_ACT}
    v_lshlrev_b32 v4, 4, v1
    """)
    GRP = 4
    if persistent:
        for k in range(0, 20): dma(k, f"d{k//GRP}")
        A(f"s_lshr_b32 s62, s36, 1\ns_lshl_b32 s62, s62, 11\ns_add_u32 s62, s62, {WS_F3}")
        A("s_waitcnt vmcnt(0)")
        poll(A, "l15", 62)
        ts(A, "sync3")
    for k in range(43):
        if k % GRP == 0 and not persistent:
            for kk in range(k, min(k+GRP, 40)): dma(kk, f"d{k//GRP}")
        if k and k % 4 == 0: A("s_add_u32 s44, s44, 4096")
        A(f"buffer_load_dwordx4 {a(4*k,4)}, v4, {srd(S_WS)}, s44 offen offset:{(k%4)*1024} {ld}")
        if k == 19: break
    A(f"""
    v_lshrrev_b32 v8, 3, v0
    v_and_b32 v9, 7, v0
    s_lshl_b32 s46, s36, 16
    s_lshl_b32 s47, s37, 7
    s_add_u32 s46, s46, s47
    s_add_u32 s46, s46, {WS_X1}
    s_add_u32 s48, s46, 32768
    v_lshlrev_b32 v10, 10, v8
    v_lshl_add_u32 v10, v9, 4, v10
    v_lshlrev_b32 v11, 5, v9
    s_lshl_b32 s47, s37, 8
    s_add_u32 s47, s47, {WS_MOD+5*2048}
    s_sub_u32 s49, 64, s36
    s_cmp_eq_u32 s36, 0
    s_cselect_b32 s49, 32, s49
    v_and_b32 v12, 1, v8
    v_cmp_ne_u32 vcc, 0, v12
    v_mov_b32 v12, s36
    v_mov_b32 v13, s49
    v_cndmask_b32 v12, v12, v13, vcc
    v_lshrrev_b32 v13, 1, v8
    v_lshl_add_u32 v12, v13, 6, v12
    v_lshlrev_b32 v12, 10, v12
    v_lshl_add_u32 v12, v9, 4, v12
    s_lshl_b32 s49, s37, 7
    s_add_u32 s50, s49, 0x100000
    """)
    A(f"""
    v_bfe_u32 v6, v1, 2, 2
    v_bfe_u32 v7, v1, 5, 1
    v_lshl_add_u32 v7, v7, 2, v6
    v_lshlrev_b32 v7, 7, v7
    v_bfe_u32 v13, v1, 4, 1
    v_lshl_add_u32 v7, v13, 5, v7
    v_and_b32 v13, 3, v1
    v_lshl_add_u32 v7, v13, 3, v7
    v_add_u32 v7, s41, v7
    v_bfe_u32 v13, v1, 3, 1
    v_lshlrev_b32 v13, 6, v13
    v_xor_b32 v6, v7, v13
    v_xor_b32 v7, 64, v6
    v_add_u32 v14, 0xa000, v6
    v_add_u32 v15, 0xa000, v7
    """)
    ACC, AF, NAF = 16, 48, 6
    XG = 72
    def wslot(k): return k if k < 40 else k - 40
    def frag_read(n):
        k, t = n // 2, n % 2
        sl = wslot(k)
        base = (("v6", "v7"), ("v14", "v15"))[sl >= 20][t]
        off = (sl % 20) * 2048
        b = AF + (n % NAF)*4
        return f"ds_read_b64_tr_b16 {v(b,2)}, {base} offset:{off}\nds_read_b64_tr_b16 {v(b+2,2)}, {base} offset:{off+1024}"
    seen = set()
    rest = list(range(20, 43))
    issued = 20
    def ensure(k):
        g = k // GRP if k < 40 else 10
        if g not in seen:
            seen.add(g)
            if persistent and g < 5: return
            A.wait_tag(f"d{g}"); A("s_barrier")
    PF = NAF - 1
    N = 86
    ts(A, "issued")
    for n in range(PF):
        ensure(n//2); A(frag_read(n))
    ts(A, "first")
    for n in range(N):
        k, t = n // 2, n % 2
        A(f"v_mfma_f32_32x32x16_bf16 {v(ACC+16*t,16)}, {v(AF+(n%NAF)*4,4)}, {a(4*k,4)}, {v(ACC+16*t,16) if k else 0}")
        if n + PF < N:
            ensure((n+PF)//2); A(frag_read(n+PF))
        if t == 1 and issued < 43:
            kk = issued
            if kk % GRP == 0 and kk < 40:
                for k2_ in range(kk, min(kk+GRP, 40)): dma(k2_, f"d{kk//GRP}")
            if kk % 4 == 0: A("s_add_u32 s44, s44, 4096")
            A(f"buffer_load_dwordx4 {a(4*kk,4)}, v4, {srd(S_WS)}, s44 offen offset:{(kk%4)*1024} {ld}")
            issued += 1
        if n == 2*26+1:
            for k2_ in range(40, 43): dma(k2_, "d10")
            A(f"buffer_load_dwordx4 {v(XG,4)}, v10, {srd(S_WS)}, s46 offen {ld}")
            A(f"buffer_load_dwordx4 {v(XG+4,4)}, v10, {srd(S_WS)}, s48 offen {ld}")
            A(f"buffer_load_dwordx4 {v(XG+8,4)}, v11, {srd(S_WS)}, s47 offen {ld}")
            A(f"buffer_load_dwordx4 {v(XG+12,4)}, v11, {srd(S_WS)}, s47 offen offset:16 {ld}")
    ts(A, "mfma")
    RS = 272
    A(f"""
    s_barrier
    s_lshl_b32 s51, s38, 1
    s_add_u32 s51, s51, s39
    s_mul_i32 s51, s51, {32*RS}
    v_and_b32 v6, 31, v1
    v_mul_u32_u24 v6, {RS}, v6
    v_bfe_u32 v7, v1, 5, 1
    v_lshl_add_u32 v6, v7, 4, v6
    v_add_u32 v6, s51, v6
    v_mul_u32_u24 v7, {RS}, v8
    v_lshl_add_u32 v7, v9, 5, v7
    """)
    for t in range(2):
        for j in range(4):
            A(f"ds_write_b128 v6, {v(ACC+16*t+4*j,4)} offset:{t*128+j*32}")
    A("s_waitcnt lgkmcnt(0)\ns_barrier")
    RD = 96
    for it in range(2):
        for kh in range(2):
            for hf in range(2):
                A(f"ds_read_b128 {v(RD+it*16+kh*8+hf*4,4)}, v7 offset:{(kh*64+it*32)*RS+hf*16}")
    for it in range(2):
        z = RD + it*16
        xr = XG + it*4
        for h in range(4): A(f"v_pk_add_f32 {v(z+2*h,2)}, {v(z+2*h,2)}, {v(z+8+2*h,2)}")
        for h in range(4): A(f"v_lshlrev_b32 v{z+8+2*h}, 16, v{xr+h}\nv_and_b32 v{z+9+2*h}, 0xffff0000, v{xr+h}")
        for h in range(4): A(f"v_pk_fma_f32 {v(z+2*h,2)}, {v(z+2*h,2)}, {v(XG+8+2*h,2)}, {v(z+8+2*h,2)}")
        for h in range(4): A(f"v_cvt_pk_bf16_f32 v{z+8+h}, v{z+2*h}, v{z+2*h+1}")
        A(f"buffer_store_dwordx4 {v(z+8,4)}, v12, {srd(S_OUT)}, s{49+it} offen")

def k4(A):
    k4_main(A)

TSNAMES = []

WS_EP  = WS_FLG
WS_F1  = WS_FLG + 0x1000
WS_F2  = WS_FLG + 0x10000
WS_F3  = WS_FLG + 0x20000
F1MODE = "xcdline"
MAXPOLL = 60000

def flag_set(A, soff_sgpr):
    sk = A.label("fs")
    A(f"""
    s_waitcnt vmcnt(0) lgkmcnt(0)
    s_barrier
    s_cmp_lg_u32 s3, 0
    s_cbranch_scc1 {sk}
    v_mov_b32 v250, 0
    v_mov_b32 v251, s64
    s_mov_b64 exec, 1
    buffer_store_dword v251, v250, {srd(S_WS)}, s{soff_sgpr} offen sc1
    s_mov_b64 exec, -1
    {sk}:
    """)
    A.reset()

def poll(A, kind, soff_sgpr):
    sk, lp = A.label("pk"), A.label("pl")
    A(f"s_cmp_lg_u32 s3, 0\ns_cbranch_scc1 {sk}\ns_mov_b32 s65, 0")
    if kind == "x4":
        A("v_lshlrev_b32 v250, 4, v1")
    elif kind == "l16":
        A("v_lshlrev_b32 v250, 7, v2")
    elif kind == "l15":
        A("v_cmp_eq_u32 vcc, 15, v2\nv_cndmask_b32 v250, v2, 0, vcc\nv_lshlrev_b32 v250, 7, v250")
    elif kind == "s64x4":
        A("v_lshlrev_b32 v250, 6, v1")
    A(f"{lp}:")
    if kind == "x4":
        A(f"""
        buffer_load_dwordx4 v[252:255], v250, {srd(S_WS)}, s{soff_sgpr} offen sc1
        s_waitcnt vmcnt(0)
        v_xor_b32 v252, s64, v252
        v_xor_b32 v253, s64, v253
        v_xor_b32 v254, s64, v254
        v_xor_b32 v255, s64, v255
        v_or3_b32 v252, v252, v253, v254
        v_or_b32 v252, v252, v255
        v_cmp_ne_u32 vcc, 0, v252
        """)
    elif kind == "s64x4":
        for j in range(4):
            A(f"s_add_u32 s63, s{soff_sgpr}, {j*4096}\nbuffer_load_dword v{252+j}, v250, {srd(S_WS)}, s63 offen sc1")
        A(f"""
        s_waitcnt vmcnt(0)
        v_xor_b32 v252, s64, v252
        v_xor_b32 v253, s64, v253
        v_xor_b32 v254, s64, v254
        v_xor_b32 v255, s64, v255
        v_or3_b32 v252, v252, v253, v254
        v_or_b32 v252, v252, v255
        v_cmp_ne_u32 vcc, 0, v252
        """)
    else:
        A(f"""
        buffer_load_dword v252, v250, {srd(S_WS)}, s{soff_sgpr} offen sc1
        s_waitcnt vmcnt(0)
        v_cmp_ne_u32 vcc, s64, v252
        """)
    A(f"""
    s_add_u32 s65, s65, 1
    s_cmp_ge_u32 s65, {MAXPOLL}
    s_cbranch_scc1 {sk}
    s_cbranch_vccnz {lp}
    {sk}:
    s_barrier
    """)
    A.reset()

def build_persistent():
    A = Asm()
    name = NAME + "_kernel"
    kernel_begin(A, name)
    done = A.label("done")
    ts_begin()
    if TS: A("s_memrealtime s[62:63]")
    prologue(A, done)
    if TS: A("v_mov_b32 v248, 0\nv_writelane_b32 v248, s62, 0"); _ts["n"] = 1; _ts["names"] = ["entry"]
    A(f"s_add_u32 s38, s32, {WS_EP}\ns_addc_u32 s39, s33, 0\ns_load_dword s64, s[38:39], 0")
    if CODEPF:
        A(f"""
        s_getpc_b64 s[40:41]
        s_and_b32 s40, s40, 0xffffff00
        s_lshr_b32 s42, s2, 3
        s_lshl_b32 s42, s42, 2
        s_add_u32 s42, s42, s3
        s_lshl_b32 s42, s42, 9
        s_min_u32 s42, s42, {CODEPF - 512}
        v_and_b32 v250, 3, v1
        v_lshlrev_b32 v250, 7, v250
        v_add_u32 v250, s42, v250
        global_load_dword v249, v250, s[40:41]
        """)
    ts(A, "prolog")
    m, e = A.label("k1mod"), A.label("k1end")
    A(f"s_cmp_ge_u32 s2, 128\ns_cbranch_scc1 {m}")
    k1_ln(A)
    ts(A, "stiss")
    A(f"s_branch {e}\n{m}:\ns_cmp_ge_u32 s2, 224\ns_cbranch_scc1 {e}")
    A.reset()
    n0 = _ts["n"]; _ts["n"] = 2; nm0 = list(_ts["names"])
    k1_mod(A)
    _ts["n"] = n0; _ts["names"] = nm0
    A(f"{e}:")
    A.reset()
    A("s_waitcnt lgkmcnt(0)\ns_mul_i32 s64, s64, 0x9e3779b1\ns_add_u32 s64, s64, 0x7f4a7c15")
    if F1MODE == "xcdline":
        A(f"s_and_b32 s62, s2, 7\ns_lshl_b32 s62, s62, 5\ns_lshr_b32 s63, s2, 3\ns_add_u32 s62, s62, s63\ns_lshl_b32 s62, s62, 2\ns_add_u32 s62, s62, {WS_F1}")
    else:
        A(f"s_lshl_b32 s62, s2, 6\ns_add_u32 s62, s62, {WS_F1}")
    flag_set(A, 62)
    ts(A, "f1set")
    k3_prefetch(A, range(0, 5))
    k2_pre(A)
    ts(A, "pre")
    A("s_waitcnt vmcnt(0)" if False else "")
    A(f"s_mov_b32 s62, {WS_F1}")
    poll(A, "x4" if F1MODE == "xcdline" else "s64x4", 62)
    ts(A, "sync1")
    sk = A.label("ep")
    A(f"""
    s_or_b32 s63, s2, s3
    s_cmp_lg_u32 s63, 0
    s_cbranch_scc1 {sk}
    v_mov_b32 v250, 0
    v_mov_b32 v251, s64
    s_mov_b32 s63, {WS_EP}
    s_mov_b64 exec, 1
    buffer_store_dword v251, v250, {srd(S_WS)}, s63 offen sc1
    s_mov_b64 exec, -1
    s_waitcnt vmcnt(0)
    {sk}:
    """)
    A.reset()
    k2_main(A)
    ts(A, "stiss2")
    A(f"s_lshl_b32 s62, s36, 3\ns_add_u32 s62, s62, s37\ns_lshl_b32 s62, s62, 7\ns_add_u32 s62, s62, {WS_F2}")
    flag_set(A, 62)
    ts(A, "f2set")
    k3_prefetch(A, [5])
    k3_ids(A)
    A(f"s_lshl_b32 s62, s36, 11\ns_add_u32 s62, s62, {WS_F2}")
    poll(A, "l16", 62)
    ts(A, "sync2")
    k3_main(A, standalone=False)
    k3_ids(A)
    A(f"s_lshl_b32 s62, s36, 4\ns_add_u32 s62, s62, s37\ns_lshl_b32 s62, s62, 7\ns_add_u32 s62, s62, {WS_F3}")
    flag_set(A, 62)
    ts(A, "f3set")
    k4_main(A, persistent=True)
    ts(A, "end")
    ts_flush(A, 0)
    TSNAMES.append(list(_ts["names"]))
    A(f"{done}:\ns_endpgm")
    code = A.finalize()
    return [(None, (256,1,1), (256,1,1), LDS_TOTAL)], code, [kernel_desc(name, 256, 172)]

CODEPF = 0
def k3_prefetch(A, chunks):
    sk = A.label("pf")
    A(f"""
    s_and_b32 s38, s2, 1
    s_lshl_b32 s38, s38, 3
    s_lshr_b32 s39, s2, 5
    s_add_u32 s38, s38, s39
    s_cmp_eq_u32 s38, 15
    s_cselect_b32 s39, 0, s3
    s_cmp_eq_u32 s39, 0
    s_cbranch_scc1 {sk}
    s_mul_i32 s38, s38, 192
    s_sub_u32 s39, s3, 1
    s_mul_i32 s40, s39, 256
    s_mov_b32 s41, 0x15555556
    s_lshl_b32 s42, s39, 12
    """)
    for i in range(4):
        A(f"""
        v_add_u32 v{240+i}, s40, v1
        v_add_u32 v{240+i}, {64*i}, v{240+i}
        v_mul_hi_u32 v244, v{240+i}, s41
        v_mul_u32_u24 v245, 12, v244
        v_sub_u32 v{240+i}, v{240+i}, v245
        v_lshlrev_b32 v{240+i}, 4, v{240+i}
        v_mul_u32_u24 v244, 2752, v244
        v_add_u32 v{240+i}, v{240+i}, v244
        """)
    for ch in chunks:
        A(f"s_add_u32 s43, s38, {ch*64*2752}")
        for mtx, sr in ((0, S_WG), (1, S_WU)):
            for i in range(4):
                A(f"s_add_u32 m0, s42, {ch*SLOT+mtx*UOFF+i*1024}")
                A(f"buffer_load_dwordx4 v{240+i}, {srd(sr)}, s43 offen lds")
    A(f"{sk}:")
    A.reset()

def build_multi(extra=0, delay=False):
    code = ""
    launches, descs = [], []
    for nm, fn, nv, na in (("p1", k1, 160, 0), ("p2", k2, 224, 0), ("p3", k3, 160, 128), ("p4", k4, 128, 172)):
        A = Asm()
        name = f"{nm}_kernel"
        kernel_begin(A, name)
        done = A.label("done")
        ts_begin()
        if TS: A("s_memrealtime s[62:63]")
        prologue(A, done)
        if TS: A("v_mov_b32 v248, 0\nv_writelane_b32 v248, s62, 0"); _ts["n"] = 1; _ts["names"] = ["entry"]
        ts(A, "prolog")
        fn(A)
        ts(A, "end")
        ts_flush(A, len(launches))
        TSNAMES.append(list(_ts["names"]))
        A(f"{done}:\ns_endpgm")
        code += A.finalize()
        launches.append((name, (256,1,1), (256,1,1), LDS_TOTAL))
        descs.append(kernel_desc(name, 256 if TS else nv, na))
    if extra:
        A = Asm(); kernel_begin(A, "nop_kernel"); A("s_endpgm"); code += A.finalize()
        descs.append(kernel_desc("nop_kernel", 8))
        for i in range(extra): launches.append(("nop_kernel", (256,1,1), (256,1,1), 0))
    return launches, code, descs

if __name__ == "__main__":
    hdr = [l.rstrip("\n") for l in open("cdna_kernels/%s.s.ref" % NAME) if l.startswith(";") and "@launch" not in l]
    hdr = hdr[:15]
    out = sys.argv[1] if len(sys.argv) > 1 else "multi.s"
    extra = int(sys.argv[2]) if len(sys.argv) > 2 else 0
    if len(sys.argv) > 3 and sys.argv[3] == "ts":
        TS = True
    if len(sys.argv) > 4: CODEPF = int(sys.argv[4])
    launches, code, descs = build_persistent() if extra < 0 else build_multi(extra)
    if TS:
        import json; json.dump(TSNAMES, open(out[:-2] + ".json", "w"))
    open(out, "w").write(file_text(hdr, launches, code, descs))
```

```python
import sys, struct, math
from asmlib import *

NAME = "adaLN_cond__spectral_fnet__swiglu_ffn__prompt"
def fbits(x): return "0x%08x" % struct.unpack("<I", struct.pack("<f", x))[0]

SLOTSTR = 65536 + 0
WS_U   = 0
WS_MOD = 0x240000
WS_H2  = 0x300000
WS_X1  = 0x500000
WS_ACT = 0x800000
WS_FLG = 0xE00000
WS_SIZE = 0x1000000
LDS_TOTAL = 163840
SLOT = 24640; UOFF = 12320
XRS = 1056
XIMG = LDS_TOTAL - 64 * XRS
XTAB = XIMG - 512
MW = XIMG
MSC = MW + 32768
MRED = MSC + 1024
K2EX = 123200
K2HB = K2EX + 18432
S_X, S_WG, S_WU, S_WD, S_C, S_WM, S_OUT, S_WS = 4, 8, 12, 16, 20, 24, 28, 32
def srd(b): return s(b, 4)

def prologue(A, done):
    A(f"""
    s_cmp_ge_u32 s2, 256
    s_cbranch_scc1 {done}
    s_load_dwordx2 s[4:5], s[0:1], 0
    s_load_dwordx2 s[8:9], s[0:1], 48
    s_load_dwordx2 s[12:13], s[0:1], 56
    s_load_dwordx2 s[16:17], s[0:1], 64
    s_load_dwordx2 s[20:21], s[0:1], 72
    s_load_dwordx2 s[24:25], s[0:1], 80
    s_load_dwordx2 s[28:29], s[0:1], 88
    s_load_dwordx2 s[32:33], s[0:1], 104
    v_lshrrev_b32 v2, 6, v0
    v_and_b32 v1, 63, v0
    v_readfirstlane_b32 s3, v2
    v_and_b32 v2, 15, v0
    v_bfe_u32 v3, v0, 4, 2
    """)
    for b, sz in ((S_X, 2097152), (S_WG, 1409024), (S_WU, 1409024), (S_WD, 1409024), (S_C, 1024), (S_WM, 3145728), (S_OUT, 2097152), (S_WS, WS_SIZE)):
        A(f"s_mov_b32 s{b+2}, {sz}\ns_mov_b32 s{b+3}, 0x20000")
    A("s_waitcnt lgkmcnt(0)")

TS = False
WS_TS = 0xF00000
_ts = {"n": 0}
def ts(A, name=None, cyc=False):
    if not TS: return
    n = _ts["n"]; _ts["n"] += 1
    _ts.setdefault("names", []).append(("c:" if cyc else "") + name)
    A(f"{'s_memtime' if cyc else 's_memrealtime'} s[98:99]\ns_waitcnt lgkmcnt(0)\nv_writelane_b32 v248, s98, {n}")
PROBE = None
def tc(A, name=None): ts(A, name, True)
def probe_end(A):
    if PROBE is None: return
    lp = A.label("pr")
    idx = _ts["names"].index(PROBE)
    A(f"""
    s_waitcnt vmcnt(0) lgkmcnt(0)
    v_readlane_b32 s90, v248, 0
    v_readlane_b32 s91, v248, {idx}
    s_nop 4
    s_sub_u32 s91, s91, s90
    s_cmp_gt_u32 s91, 20000
    s_cselect_b32 s91, 0, s91
    s_add_u32 s91, s91, 6000
    {lp}:
    s_memrealtime s[92:93]
    s_waitcnt lgkmcnt(0)
    s_sub_u32 s92, s92, s90
    s_cmp_lt_u32 s92, s91
    s_cbranch_scc1 {lp}
    """)
def ts_begin():
    _ts["n"] = 0; _ts["names"] = []
def ts_flush(A, kidx):
    if not TS: return
    sk = A.label("tsk")
    A(f"s_waitcnt vmcnt(0) lgkmcnt(0)\ns_cmp_lg_u32 s3, 0\ns_cbranch_scc1 {sk}")
    A(f"s_lshl_b32 s64, s2, 8\ns_add_u32 s64, s64, {WS_TS + kidx*65536}\nv_lshlrev_b32 v1, 2, v1")
    A(f"buffer_store_dword v248, v1, {srd(S_WS)}, s64 offen")
    A(f"s_waitcnt vmcnt(0)\n{sk}:")

def bf16r(A, dst, src):
    A(f"v_cvt_pk_bf16_f32 {dst}, {src}, {src}\nv_lshlrev_b32 {dst}, 16, {dst}")

def k1_ln(A, st="sc1"):
    sN2, sO = 36, 37
    A("""
    s_and_b32 s38, s2, 7
    s_lshr_b32 s39, s2, 3
    s_lshr_b32 s40, s39, 2
    s_lshl_b32 s40, s40, 3
    s_add_u32 s36, s38, s40
    s_and_b32 s37, s39, 3
    """)
    A(f"""
    v_lshlrev_b32 v4, 4, v1
    s_lshl_b32 s38, s3, 9
    s_add_u32 s38, s38, s36
    s_lshl_b32 s38, s38, 10
    s_mul_i32 s39, s3, {16*XRS}
    s_add_u32 s39, s39, {XIMG}
    """)
    for i in range(16):
        A(f"s_add_u32 m0, s39, {i*XRS}")
        if i: A(f"s_add_u32 s38, s38, 32768")
        A(f"buffer_load_dwordx4 v4, {srd(S_X)}, s38 offen lds", tag="x")
    BC = 16
    NV = 48
    A("v_lshlrev_b32 v5, 3, v3\nv_cvt_f32_u32 v5, v5")
    for ks in range(2):
        for j in range(8):
            A(f"v_add_f32 v{NV+ks*8+j}, {fbits(32*ks+j)}, v5")
    A("v_cvt_f32_u32 v6, v2\nv_mul_f32 v6, 0x3c800000, v6")
    A("v_add_f32 v7, 0x3e800000, v6")
    A("v_cmp_eq_u32 vcc, 0, v2\nv_mov_b32 v8, 0x3e800000\nv_cndmask_b32 v9, v6, 0.5, vcc\nv_cndmask_b32 v10, v8, 0, vcc")
    for sh in range(2):
        for c in range(2):
            fs = ("v6", "v7")[sh] if c == 0 else ("v9", "v7")[sh]
            off = None if c == 0 else ("v10", "v8")[sh]
            for ks in range(2):
                b = BC + ((sh*2 + c)*2 + ks)*4
                for j in range(8):
                    if off is None: A(f"v_mul_f32 v{64+j}, v{NV+ks*8+j}, {fs}")
                    else: A(f"v_fma_f32 v{64+j}, v{NV+ks*8+j}, {fs}, {off}")
                for j in range(8): A(f"v_cos_f32 v{64+j}, v{64+j}")
                for jj in range(4): A(f"v_cvt_pk_bf16_f32 v{b+jj}, v{64+2*jj}, v{65+2*jj}")
    ONES, G, SA = 112, 116, 120
    for i in range(4): A(f"v_mov_b32 v{ONES+i}, 0x3f803f80")
    A(f"""
    s_mul_i32 s38, s3, {16*XRS}
    s_add_u32 s38, s38, {XIMG}
    v_mul_u32_u24 v5, {XRS}, v2
    v_lshl_add_u32 v5, v3, 4, v5
    v_add_u32 v5, s38, v5
    v_bfe_u32 v6, v1, 2, 2
    v_lshl_add_u32 v6, v3, 3, v6
    v_mul_u32_u24 v6, {XRS}, v6
    v_and_b32 v7, 3, v1
    v_lshl_add_u32 v6, v7, 6, v6
    s_lshl_b32 s38, s3, 8
    s_lshl_b32 s39, s37, 4
    s_add_u32 s38, s38, s39
    s_add_u32 s38, s38, {XIMG}
    v_add_u32 v6, s38, v6
    s_lshl_b32 s38, s3, 6
    s_add_u32 s38, s38, {XTAB}
    v_lshl_add_u32 v7, v2, 2, s38
    v_lshlrev_b32 v8, 5, v3
    v_add_u32 v8, {XTAB}, v8
    s_mov_b32 s40, 0x22222222
    s_mov_b32 s41, 0x22222222
    s_mov_b32 s42, 0x44444444
    s_mov_b32 s43, 0x44444444
    s_mov_b32 s44, 0x88888888
    s_mov_b32 s45, 0x88888888
    v_lshlrev_b32 v9, 16, v2
    v_lshl_add_u32 v9, v3, 4, v9
    s_lshl_b32 s46, s36, 11
    s_lshl_b32 s47, s37, 9
    s_add_u32 s46, s46, s47
    s_lshl_b32 s47, s3, 6
    s_add_u32 s46, s46, s47
    s_add_u32 s46, s46, {WS_U}
    s_add_u32 s47, s46, {16*SLOTSTR}
    """)
    if SLOTSTR != 65536:
        A(f"v_mul_u32_u24 v9, {SLOTSTR}, v2\nv_lshl_add_u32 v9, v3, 4, v9")
    ts(A, "const")
    A.wait_tag("x")
    ts(A, "xarr")
    R = 48
    for i in range(16): A(f"ds_read_b128 {v(R+4*i,4)}, v5 offset:{i*64}")
    for i in range(16):
        A(f"v_mfma_f32_16x16x32_bf16 {v(G,4)}, {v(R+4*i,4)}, {v(R+4*i,4)}, {v(G,4) if i else 0}")
        A(f"v_mfma_f32_16x16x32_bf16 {v(SA,4)}, {v(ONES,4)}, {v(R+4*i,4)}, {v(SA,4) if i else 0}")
    A(f"""
    v_cndmask_b32 v10, v{G}, v{G+1}, s[40:41]
    v_cndmask_b32 v10, v10, v{G+2}, s[42:43]
    v_cndmask_b32 v10, v10, v{G+3}, s[44:45]
    v_mul_f32 v11, 0x3b000000, v{SA}
    v_mul_f32 v10, 0x3b000000, v10
    v_fma_f32 v10, -v11, v11, v10
    v_max_f32 v10, 0, v10
    v_cvt_pk_bf16_f32 v12, v11, v10
    v_and_b32 v10, 0xffff0000, v12
    v_lshlrev_b32 v11, 16, v12
    v_add_f32 v10, {fbits(1e-5)}, v10
    """)
    bf16r(A, "v10", "v10")
    A("v_sqrt_f32 v10, v10")
    bf16r(A, "v10", "v10")
    A("""
    v_rcp_f32 v10, v10
    s_mov_b32 exec_lo, 0x00f0000f
    s_mov_b32 exec_hi, 0xf0000f00
    v_mul_f32 v11, -v11, v10
    ds_write_b32 v7, v10
    ds_write_b32 v7, v11 offset:256
    s_mov_b64 exec, -1
    s_waitcnt lgkmcnt(0)
    s_barrier
    """)
    ts(A, "stats")
    X, TR, TM, T, ACC, PK = 48, 64, 80, 96, 124, 100
    for tl in range(2):
        for ks in range(2):
            b = X + (tl*2+ks)*4
            off = ks*32*XRS + 8*tl
            A(f"ds_read_b64_tr_b16 {v(b,2)}, v6 offset:{off}\nds_read_b64_tr_b16 {v(b+2,2)}, v6 offset:{off+4*XRS}")
        if tl == 0:
            for ks in range(2):
                for hf in range(2):
                    A(f"ds_read_b128 {v(TR+ks*8+hf*4,4)}, v8 offset:{ks*128+hf*16}")
                    A(f"ds_read_b128 {v(TM+ks*8+hf*4,4)}, v8 offset:{256+ks*128+hf*16}")
    for tl in range(2):
        for ks in range(2):
            b = X + (tl*2+ks)*4
            for jj in range(4):
                t = T + 2*(jj & 1)
                A(f"v_lshlrev_b32 v{t}, 16, v{b+jj}\nv_and_b32 v{t+1}, 0xffff0000, v{b+jj}")
                A(f"v_pk_fma_f32 {v(t,2)}, {v(t,2)}, {v(TR+ks*8+2*jj,2)}, {v(TM+ks*8+2*jj,2)}")
                A(f"v_cvt_pk_bf16_f32 v{b+jj}, v{t}, v{t+1}")
        for sh in range(2):
            for c in range(2):
                acc = ACC + ((tl*2+sh)*2+c)*4
                for ks in range(2):
                    A(f"v_mfma_f32_16x16x32_bf16 {v(acc,4)}, {v(X+(tl*2+ks)*4,4)}, {v(BC+((sh*2+c)*2+ks)*4,4)}, {v(acc,4) if ks else 0}")
    for tl in range(2):
        for sh in range(2):
            acc = ACC + (tl*2+sh)*8
            pk = PK + (tl*2+sh)*4
            for r in range(4): A(f"v_cvt_pk_bf16_f32 v{pk+r}, v{acc+r}, v{acc+4+r}")
            A(f"buffer_store_dwordx4 {v(pk,4)}, v9, {srd(S_WS)}, s{46+sh} offen offset:{tl*256} {st}", tag="st")

def k1_mod(A, st="sc1"):
    A(f"""
    s_and_b32 s38, s2, 7
    s_lshr_b32 s39, s2, 3
    s_mul_i32 s38, s38, 12
    s_add_u32 s36, s38, s39
    s_sub_u32 s36, s36, 16
    v_lshlrev_b32 v4, 2, v0
    buffer_load_dword v8, v4, {srd(S_C)}, 0 offen
    v_lshrrev_b32 v5, 2, v1
    v_mul_u32_u24 v5, 6144, v5
    v_and_b32 v6, 3, v1
    v_lshl_add_u32 v5, v6, 4, v5
    s_mul_i32 s38, s3, {128*6144}
    s_lshl_b32 s39, s36, 6
    s_add_u32 s38, s38, s39
    s_lshl_b32 s39, s3, 13
    s_add_u32 s39, s39, {MW}
    """)
    for i in range(8):
        A(f"s_add_u32 m0, s39, {i*1024}")
        if i: A(f"s_add_u32 s38, s38, {16*6144}")
        A(f"buffer_load_dwordx4 v5, {srd(S_WM)}, s38 offen lds", tag="wm")
    A(f"""
    v_bfe_u32 v6, v1, 2, 2
    v_lshl_add_u32 v6, v3, 3, v6
    v_lshlrev_b32 v6, 6, v6
    v_and_b32 v7, 3, v1
    v_lshl_add_u32 v6, v7, 3, v6
    v_add_u32 v6, s39, v6
    v_add_u32 v4, {MSC}, v4
    s_lshl_b32 s40, s3, 8
    s_add_u32 s40, s40, {MSC}
    v_lshl_add_u32 v7, v3, 4, s40
    """)
    A(f"""
    v_lshlrev_b32 v9, 16, v8
    v_and_b32 v10, 0xffff0000, v8
    v_mul_f32 v11, {fbits(-math.log2(math.e))}, v9
    v_mul_f32 v12, {fbits(-math.log2(math.e))}, v10
    v_exp_f32 v11, v11
    v_exp_f32 v12, v12
    v_add_f32 v11, 1.0, v11
    v_add_f32 v12, 1.0, v12
    v_rcp_f32 v11, v11
    v_rcp_f32 v12, v12
    v_mul_f32 v9, v9, v11
    v_mul_f32 v10, v10, v12
    v_cvt_pk_bf16_f32 v9, v9, v10
    ds_write_b32 v4, v9
    """)
    SF, WF, ACC = 16, 32, 64
    A("s_waitcnt lgkmcnt(0)")
    for ks in range(4): A(f"ds_read_b128 {v(SF+4*ks,4)}, v7 offset:{ks*64}")
    ts(A, "m_c")
    A.wait_tag("wm")
    ts(A, "m_w")
    for ks in range(4):
        for nt in range(2):
            b = WF + (ks*2+nt)*4
            off = ks*2048 + nt*32
            A(f"ds_read_b64_tr_b16 {v(b,2)}, v6 offset:{off}\nds_read_b64_tr_b16 {v(b+2,2)}, v6 offset:{off+256}")
    for ks in range(4):
        for nt in range(2):
            A(f"v_mfma_f32_16x16x32_bf16 {v(ACC+4*nt,4)}, {v(SF+4*ks,4)}, {v(WF+(ks*2+nt)*4,4)}, {v(ACC+4*nt,4) if ks else 0}")
    skip = A.label("modskip")
    A(f"""
    s_lshl_b32 s40, s3, 7
    s_add_u32 s40, s40, {MRED}
    v_lshl_add_u32 v9, v2, 2, s40
    s_mov_b64 exec, 0xffff
    ds_write_b32 v9, v{ACC}
    ds_write_b32 v9, v{ACC+4} offset:64
    s_mov_b64 exec, -1
    s_waitcnt lgkmcnt(0)
    s_barrier
    s_cmp_lg_u32 s3, 0
    s_cbranch_scc1 {skip}
    v_and_b32 v10, 31, v1
    v_lshlrev_b32 v9, 2, v10
    v_add_u32 v9, {MRED}, v9
    ds_read_b32 v11, v9
    ds_read_b32 v12, v9 offset:128
    ds_read_b32 v13, v9 offset:256
    ds_read_b32 v14, v9 offset:384
    s_lshr_b32 s40, s36, 4
    s_and_b32 s41, s36, 15
    s_lshl_b32 s41, s41, 5
    v_add_u32 v10, s41, v10
    v_lshrrev_b32 v15, 8, v10
    v_lshlrev_b32 v15, 8, v15
    v_bfe_u32 v16, v10, 2, 2
    v_lshl_add_u32 v15, v16, 6, v15
    v_bfe_u32 v16, v10, 4, 4
    v_lshl_add_u32 v15, v16, 2, v15
    v_and_b32 v16, 3, v10
    v_add_u32 v15, v15, v16
    s_sub_u32 s41, s40, 2
    s_cmp_lt_u32 s41, 3
    s_cselect_b64 vcc, -1, 0
    v_cndmask_b32 v10, v10, v15, vcc
    v_lshlrev_b32 v10, 2, v10
    s_lshl_b32 s41, s40, 11
    s_add_u32 s41, s41, {WS_MOD}
    s_cmp_eq_u32 s40, 1
    s_cselect_b32 s42, 1.0, 0
    s_cmp_eq_u32 s40, 4
    s_cselect_b32 s42, 1.0, s42
    v_add_f32 v11, v11, v12
    v_add_f32 v13, v13, v14
    v_add_f32 v11, v11, v13
    """)
    bf16r(A, "v11", "v11")
    A("v_add_f32 v11, s42, v11")
    bf16r(A, "v11", "v11")
    A(f"""
    s_mov_b32 exec_hi, 0
    buffer_store_dword v11, v10, {srd(S_WS)}, s41 offen {st}
    s_mov_b64 exec, -1
    {skip}:
    """)

def k1(A):
    m, e = A.label("k1mod"), A.label("k1end")
    A(f"s_cmp_ge_u32 s2, 128\ns_cbranch_scc1 {m}")
    k1_ln(A)
    ts(A, "stiss")
    A("s_waitcnt vmcnt(0) lgkmcnt(0)")
    A(f"s_branch {e}\n{m}:\ns_cmp_ge_u32 s2, 224\ns_cbranch_scc1 {e}")
    A.reset()
    n0 = _ts["n"]; _ts["n"] = 2
    k1_mod(A)
    _ts["n"] = n0
    A(f"s_waitcnt vmcnt(0) lgkmcnt(0)\n{e}:")
    A.reset()

K2 = dict(BS=16, CC=24, CS=26, CW=28, SW=36, BH=44, U=64, XR=128, CA=136, GA=168, CB=176, SB=184, Z=192)
def k2_pre(A):
    r = K2
    A("""
    s_and_b32 s36, s2, 7
    s_bfe_u32 s37, s2, 0x20003
    s_lshl_b32 s37, s37, 3
    s_add_u32 s36, s36, s37
    s_lshr_b32 s37, s2, 5
    s_sub_u32 s39, 64, s36
    s_cmp_eq_u32 s36, 0
    s_cselect_b32 s39, 32, s39
    s_cselect_b64 s[40:41], -1, 0
    s_lshl_b32 s42, s37, 2
    s_add_u32 s43, s42, s3
    s_lshl_b32 s43, s43, 6
    s_add_u32 s44, s43, s36
    s_add_u32 s45, s43, s39
    s_lshl_b32 s44, s44, 10
    s_lshl_b32 s45, s45, 10
    v_lshlrev_b32 v4, 5, v2
    v_lshl_add_u32 v4, v3, 3, v4
    """)
    for uu in range(2):
        for nt in range(2):
            A(f"buffer_load_dwordx2 {v(r['XR']+(uu*2+nt)*2,2)}, v4, {srd(S_X)}, s{44+uu} offen offset:{nt*512}")
    A("""
    v_lshrrev_b32 v5, 2, v2
    v_add_u32 v5, s42, v5
    v_lshlrev_b32 v5, 6, v5
    v_and_b32 v6, 2, v2
    v_cmp_ne_u32 vcc, 0, v6
    v_mov_b32 v7, s36
    v_mov_b32 v8, s39
    v_cndmask_b32 v7, v7, v8, vcc
    v_add_u32 v5, v5, v7
    v_cvt_f32_u32 v5, v5
    v_mul_f32 v5, 0x3a000000, v5
    v_and_b32 v6, 1, v2
    v_cvt_f32_u32 v6, v6
    v_mul_f32 v6, 0x3e800000, v6
    v_mov_b32 v7, 0xbe800000
    v_mov_b32 v8, 0x3e800000
    v_cndmask_b32 v7, v7, v8, vcc
    v_cndmask_b32 v7, v7, 0, s[40:41]
    v_add_f32 v7, v7, v6
    v_cndmask_b32 v8, 1.0, 0, vcc
    v_cndmask_b32 v9, 0, 1.0, vcc
    v_cndmask_b32 v8, 1.0, v8, s[40:41]
    v_cndmask_b32 v9, 1.0, v9, s[40:41]
    v_lshlrev_b32 v10, 2, v3
    v_cvt_f32_u32 v10, v10
    """)
    T = 64
    for ks in range(2):
        for i in range(4):
            A(f"v_add_f32 v11, {fbits(16*ks+i)}, v10\nv_fma_f32 v{T+2*i}, v11, v5, v6\nv_fma_f32 v{T+2*i+1}, v11, v5, v7")
        for i in range(8): A(f"v_cos_f32 v{T+i}, v{T+i}")
        for i in range(4):
            A(f"v_mul_f32 v{T+2*i}, v{T+2*i}, v8\nv_mul_f32 v{T+2*i+1}, v{T+2*i+1}, v9")
            A(f"v_cvt_pk_bf16_f32 v{r['BS']+ks*4+i}, v{T+2*i}, v{T+2*i+1}")
    A("v_cvt_f32_u32 v12, v2\nv_mul_f32 v13, 0x3d800000, v12")
    for j in range(4):
        A(f"v_add_f32 v11, {fbits(j)}, v10\nv_mul_f32 v{T+j}, v11, v13")
    for j in range(4): A(f"v_sin_f32 v{T+4+j}, v{T+j}")
    for j in range(4): A(f"v_cos_f32 v{T+j}, v{T+j}")
    for jj in range(2):
        A(f"v_cvt_pk_bf16_f32 v{r['CC']+jj}, v{T+2*jj}, v{T+2*jj+1}\nv_cvt_pk_bf16_f32 v{r['CS']+jj}, v{T+4+2*jj}, v{T+5+2*jj}")
    A("v_mul_f32 v13, 0x3b000000, v12\ns_lshl_b32 s46, s3, 3\nv_cvt_f32_u32 v14, s46")
    for t in range(8):
        A(f"v_add_f32 v11, {fbits(t)}, v14\nv_mul_f32 v{T+t}, v11, v13")
    for t in range(8):
        A(f"v_cos_f32 v{r['CW']+t}, v{T+t}\nv_sin_f32 v{r['SW']+t}, v{T+t}")
    for nt in range(2):
        A(f"v_add_f32 v13, {fbits(16*nt)}, v12\nv_mul_f32 v13, 0x3d000000, v13")
        for ks in range(2):
            for i in range(4):
                A(f"v_add_f32 v11, {fbits(16*ks+i)}, v10\nv_mul_f32 v{T+i}, v11, v13")
            for i in range(4): A(f"v_sin_f32 v{T+4+i}, v{T+i}")
            for i in range(4): A(f"v_cos_f32 v{T+i}, v{T+i}")
            for i in range(4): A(f"v_cvt_pk_bf16_f32 v{r['BH']+(nt*2+ks)*4+i}, v{T+i}, v{T+4+i}")
    A(f"""
    v_lshlrev_b32 v5, 13, v3
    v_lshl_add_u32 v5, v2, 4, v5
    s_mul_i32 s46, s36, {SLOTSTR}
    s_lshl_b32 s47, s3, 9
    s_add_u32 s46, s46, s47
    s_add_u32 s46, s46, {WS_U}
    s_add_u32 s47, s46, 4096
    s_add_u32 s48, s46, 32768
    s_add_u32 s49, s46, {32768+4096}
    v_lshlrev_b32 v6, 9, v3
    s_lshl_b32 s50, s3, 5
    s_add_u32 s50, s50, {WS_MOD}
    v_lshlrev_b32 v7, 4, v1
    v_lshl_add_u32 v8, v3, 5, v2
    v_mul_u32_u24 v8, 144, v8
    s_lshl_b32 s51, s3, 5
    s_add_u32 s51, s51, {K2EX}
    v_add_u32 v8, s51, v8
    v_mul_u32_u24 v9, 144, v2
    v_lshl_add_u32 v9, v3, 4, v9
    s_mul_i32 s51, s3, {32*144}
    s_add_u32 s51, s51, {K2EX}
    v_add_u32 v9, s51, v9
    s_mul_i32 s51, s3, 2080
    s_add_u32 s51, s51, {K2HB}
    v_add_u32 v10, s51, v4
    v_and_b32 v11, 7, v0
    v_lshrrev_b32 v12, 3, v0
    v_mul_u32_u24 v13, 1040, v11
    v_lshl_add_u32 v13, v12, 4, v13
    v_add_u32 v13, {K2HB}, v13
    v_lshlrev_b32 v11, 4, v11
    v_lshl_add_u32 v11, v12, 9, v11
    s_lshl_b32 s51, s36, 3
    s_add_u32 s51, s51, s37
    s_lshl_b32 s52, s51, 13
    s_lshl_b32 s53, s3, 11
    s_add_u32 s52, s52, s53
    s_add_u32 s52, s52, {WS_X1}
    s_add_u32 s53, s52, 1024
    s_lshr_b32 s54, s51, 2
    s_lshl_b32 s54, s54, 15
    s_and_b32 s55, s51, 3
    s_lshl_b32 s55, s55, 7
    s_add_u32 s54, s54, s55
    s_add_u32 s54, s54, {WS_H2}
    s_add_u32 s55, s54, 16384
    """)

def k2_main(A, ld="sc1", st="sc1"):
    r = K2
    U, Z = r['U'], r['Z']
    for ks in range(2):
        for hh in range(2):
            for i in range(4):
                A(f"buffer_load_dwordx4 {v(U+((ks*2+hh)*4+i)*4,4)}, v5, {srd(S_WS)}, s{46+ks*2+(i>>1)} offen offset:{(i&1)*2048+hh*256} {ld}")
    for rr in range(4):
        for hf in range(2):
            A(f"buffer_load_dwordx4 {v(r['CA']+rr*8+hf*4,4)}, v6, {srd(S_WS)}, s50 offen offset:{2048+rr*128+hf*16} {ld}")
    A(f"s_mov_b32 s56, {WS_MOD+2*2048}\ns_mov_b32 s57, {WS_MOD+3*2048}\ns_mov_b32 s58, {WS_MOD+4*2048}")
    for nm, sr in (("GA", 56), ("CB", 58), ("SB", 57)):
        for nt in range(2):
            A(f"buffer_load_dwordx4 {v(r[nm]+nt*4,4)}, v7, {srd(S_WS)}, s{sr} offen offset:{nt*1024} {ld}")
    if TS: A("s_waitcnt vmcnt(0)"); ts(A, "uarr")
    for hh in range(2):
        for ks in range(2):
            b = U + (ks*2+hh)*16
            for i in range(4):
                for t in range(i+1, 4): A(f"v_swap_b32 v{b+4*i+t}, v{b+4*t+i}")
        for t in range(4):
            for ks in range(2):
                z = Z + (hh*4+t)*4
                A(f"v_mfma_f32_16x16x32_bf16 {v(z,4)}, {v(U+(ks*2+hh)*16+4*t,4)}, {v(r['BS']+ks*4,4)}, {v(z,4) if ks else 0}")
    for t in range(8):
        for rr in range(4): A(f"v_mul_f32 v{Z+4*t+rr}, v{Z+4*t+rr}, v{r['CA']+rr*8+t}")
    sk = A.label("k2sa")
    A(f"s_waitcnt vmcnt(0)\ns_cmp_lg_u32 s2, 0\ns_cbranch_scc1 {sk}")
    for rr in range(4):
        for hf in range(2):
            A(f"buffer_load_dwordx4 {v(U+rr*8+hf*4,4)}, v6, {srd(S_WS)}, s50 offen offset:{rr*128+hf*16} {ld}")
    A("s_waitcnt vmcnt(0)\ns_mov_b32 s59, 0x45000000\ns_mov_b32 exec_lo, 0x00010001\ns_mov_b32 exec_hi, 0x00010001")
    for t in range(8):
        for rr in range(4): A(f"v_fma_f32 v{Z+4*t+rr}, v{U+rr*8+t}, s59, v{Z+4*t+rr}")
    A(f"s_mov_b64 exec, -1\n{sk}:")
    ZP, P, Q, W = 64, 80, Z, 64
    for t in range(8):
        A(f"v_cvt_pk_bf16_f32 v{ZP+2*t}, v{Z+4*t}, v{Z+4*t+1}\nv_cvt_pk_bf16_f32 v{ZP+2*t+1}, v{Z+4*t+2}, v{Z+4*t+3}")
    for t in range(8):
        A(f"v_mfma_f32_16x16x16_bf16 {v(P+4*t,4)}, {v(ZP+2*t,2)}, {v(r['CC'],2)}, 0")
        A(f"v_mfma_f32_16x16x16_bf16 {v(Q+4*t,4)}, {v(ZP+2*t,2)}, {v(r['CS'],2)}, 0")
    W = 112
    for hh in range(2):
        for uu in range(2):
            for t4 in range(4):
                t = hh*4 + t4
                p, q = P+4*t+2*uu, Q+4*t+2*uu
                A(f"v_add_f32 v{p}, v{p}, v{q+1}\nv_sub_f32 v{p+1}, v{p+1}, v{q}")
            for t4 in range(4):
                t = hh*4 + t4
                p, q = P+4*t+2*uu, Q+4*t+2*uu
                A(f"v_mul_f32 v{q}, v{p}, v{r['CW']+t}\nv_mul_f32 v{q+1}, v{p+1}, v{r['CW']+t}")
            for t4 in range(4):
                t = hh*4 + t4
                p, q = P+4*t+2*uu, Q+4*t+2*uu
                A(f"v_fma_f32 v{q}, v{p+1}, v{r['SW']+t}, v{q}\nv_fma_f32 v{q+1}, -v{p}, v{r['SW']+t}, v{q+1}")
            for t4 in range(4):
                t = hh*4 + t4
                q = Q+4*t+2*uu
                A(f"v_cvt_pk_bf16_f32 v{W+uu*8+t}, v{q}, v{q+1}")
            A(f"ds_write_b128 v8, {v(W+uu*8+hh*4,4)} offset:{uu*16*144+hh*16}")
    A("s_waitcnt lgkmcnt(0)\ns_barrier")
    ts(A, "h1")
    AF, Y = 80, 96
    for uu in range(2):
        for ks in range(2):
            A(f"ds_read_b128 {v(AF+(uu*2+ks)*4,4)}, v9 offset:{uu*16*144+ks*64}")
    for uu in range(2):
        for nt in range(2):
            y = Y + (uu*2+nt)*4
            for ks in range(2):
                A(f"v_mfma_f32_16x16x32_bf16 {v(y,4)}, {v(AF+(uu*2+ks)*4,4)}, {v(r['BH']+(nt*2+ks)*4,4)}, {v(y,4) if ks else 0}")
    XF = 64
    for uu in range(2):
        for nt in range(2):
            xr = r['XR'] + (uu*2+nt)*2; xf = XF + (uu*2+nt)*4
            A(f"v_lshlrev_b32 v{xf}, 16, v{xr}\nv_and_b32 v{xf+1}, 0xffff0000, v{xr}\nv_lshlrev_b32 v{xf+2}, 16, v{xr+1}\nv_and_b32 v{xf+3}, 0xffff0000, v{xr+1}")
    for uu in range(2):
        for nt in range(2):
            y = Y + (uu*2+nt)*4; xf = XF + (uu*2+nt)*4; g = r['GA'] + nt*4
            for h in range(2):
                A(f"v_pk_fma_f32 {v(y+2*h,2)}, {v(y+2*h,2)}, {v(g+2*h,2)}, {v(xf+2*h,2)}")
    XP = 80
    for uu in range(2):
        for nt in range(2):
            y = Y + (uu*2+nt)*4; xp = XP + (uu*2+nt)*2
            A(f"v_cvt_pk_bf16_f32 v{xp}, v{y}, v{y+1}\nv_cvt_pk_bf16_f32 v{xp+1}, v{y+2}, v{y+3}")
            A(f"buffer_store_dwordx2 {v(xp,2)}, v4, {srd(S_WS)}, s{52+uu} offen offset:{nt*512} {st}", tag="st")
    for uu in range(2):
        for nt in range(2):
            y = Y + (uu*2+nt)*4; xp = XP + (uu*2+nt)*2
            A(f"v_lshlrev_b32 v{y}, 16, v{xp}\nv_and_b32 v{y+1}, 0xffff0000, v{xp}\nv_lshlrev_b32 v{y+2}, 16, v{xp+1}\nv_and_b32 v{y+3}, 0xffff0000, v{xp+1}")
    for uu in range(2):
        y = Y + uu*8
        A(f"v_pk_add_f32 v[64:65], {v(y,2)}, {v(y+2,2)}\nv_pk_mul_f32 v[66:67], {v(y,2)}, {v(y,2)}")
        A(f"v_pk_add_f32 v[64:65], v[64:65], {v(y+4,2)}\nv_pk_fma_f32 v[66:67], {v(y+2,2)}, {v(y+2,2)}, v[66:67]")
        A(f"v_pk_add_f32 v[64:65], v[64:65], {v(y+6,2)}\nv_pk_fma_f32 v[66:67], {v(y+4,2)}, {v(y+4,2)}, v[66:67]")
        A(f"v_add_f32 v{88+2*uu}, v64, v65\nv_pk_fma_f32 v[66:67], {v(y+6,2)}, {v(y+6,2)}, v[66:67]")
        A(f"v_add_f32 v{89+2*uu}, v66, v67")
    A("""
    v_permlane16_swap_b32 v88, v89
    v_permlane16_swap_b32 v90, v91
    v_add_f32 v88, v88, v89
    v_add_f32 v90, v90, v91
    v_permlane32_swap_b32 v88, v90
    v_add_f32 v88, v88, v90
    v_add_f32 v88, v88, v88 row_ror:8
    v_add_f32 v88, v88, v88 row_ror:4
    v_add_f32 v88, v88, v88 row_ror:2
    v_add_f32 v88, v88, v88 row_ror:1
    v_readlane_b32 s60, v88, 0
    v_readlane_b32 s61, v88, 16
    v_readlane_b32 s62, v88, 32
    v_readlane_b32 s63, v88, 48
    v_mov_b32 v68, 0x3b000000
    """)
    for uu in range(2):
        m, q = 64+2*uu, 65+2*uu
        A(f"v_mul_f32 v{m}, s{60+2*uu}, v68\nv_mul_f32 v{q}, s{61+2*uu}, v68")
    for uu in range(2):
        m, q = 64+2*uu, 65+2*uu
        A(f"v_fma_f32 v{q}, -v{m}, v{m}, v{q}\nv_max_f32 v{q}, 0, v{q}\nv_cvt_pk_bf16_f32 v{m}, v{m}, v{q}")
        A(f"v_and_b32 v{q}, 0xffff0000, v{m}\nv_lshlrev_b32 v{m}, 16, v{m}\nv_add_f32 v{q}, {fbits(1e-5)}, v{q}")
        bf16r(A, f"v{q}", f"v{q}")
    for uu in range(2): A(f"v_sqrt_f32 v{65+2*uu}, v{65+2*uu}")
    for uu in range(2): bf16r(A, f"v{65+2*uu}", f"v{65+2*uu}")
    for uu in range(2): A(f"v_rcp_f32 v{65+2*uu}, v{65+2*uu}")
    for uu in range(2): A(f"v_mul_f32 v{64+2*uu}, -v{64+2*uu}, v{65+2*uu}")
    HP = 80
    for uu in range(2):
        for nt in range(2):
            y = Y + (uu*2+nt)*4
            for h in range(2):
                A(f"v_pk_fma_f32 {v(y+2*h,2)}, {v(y+2*h,2)}, {v(64+2*uu,2)}, {v(64+2*uu,2)} op_sel:[0,1,0] op_sel_hi:[1,1,0]")
            for h in range(2):
                A(f"v_pk_fma_f32 {v(y+2*h,2)}, {v(y+2*h,2)}, {v(r['CB']+nt*4+2*h,2)}, {v(r['SB']+nt*4+2*h,2)}")
            hp = HP + (uu*2+nt)*2
            A(f"v_cvt_pk_bf16_f32 v{hp}, v{y}, v{y+1}\nv_cvt_pk_bf16_f32 v{hp+1}, v{y+2}, v{y+3}")
            A(f"ds_write_b64 v10, {v(hp,2)} offset:{uu*1040+nt*512}")
    A("s_waitcnt lgkmcnt(0)\ns_barrier")
    A("ds_read_b128 v[64:67], v13\nds_read_b128 v[68:71], v13 offset:512")
    A(f"buffer_store_dwordx4 v[64:67], v11, {srd(S_WS)}, s54 offen {st}", tag="st")
    A(f"buffer_store_dwordx4 v[68:71], v11, {srd(S_WS)}, s55 offen {st}", tag="st")

def k2(A):
    k2_pre(A)
    ts(A, "pre")
    k2_main(A)
    ts(A, "stiss")
    if TS: A("s_waitcnt vmcnt(0)")

def k3_ids(A):
    A("""
    s_and_b32 s38, s2, 7
    s_lshr_b32 s39, s2, 3
    s_lshr_b32 s36, s38, 1
    s_lshl_b32 s36, s36, 2
    s_and_b32 s40, s39, 3
    s_add_u32 s36, s36, s40
    s_and_b32 s37, s38, 1
    s_lshl_b32 s37, s37, 3
    s_lshr_b32 s40, s39, 2
    s_add_u32 s37, s37, s40
    """)

def k3_waddr(A, vb):
    A(f"s_mul_i32 s40, s3, 192\ns_mov_b32 s41, 0x15555556")
    for i in range(3):
        A(f"""
        v_add_u32 v{vb+i}, s40, v1
        v_add_u32 v{vb+i}, {64*i}, v{vb+i}
        v_mul_hi_u32 v{vb+3}, v{vb+i}, s41
        v_mul_u32_u24 v{vb+4}, 12, v{vb+3}
        v_sub_u32 v{vb+i}, v{vb+i}, v{vb+4}
        v_lshlrev_b32 v{vb+i}, 4, v{vb+i}
        v_mul_u32_u24 v{vb+3}, 2752, v{vb+3}
        v_add_u32 v{vb+i}, v{vb+i}, v{vb+3}
        """)

def k3_dma(A, chunk, slot, vb, sSl, sW, sT, tag):
    A(f"s_add_u32 s{sT}, s{sSl}, {chunk*64*2752}")
    for mtx, sr in ((0, S_WG), (1, S_WU)):
        for i in range(3):
            A(f"s_add_u32 m0, s{sW}, {slot*SLOT+mtx*UOFF+i*1024}")
            A(f"buffer_load_dwordx4 v{vb+i}, {srd(sr)}, s{sT} offen lds", tag=tag)

K3SCHED = [(range(0, 12), range(6))] + [(range(12, 32), [j]) for j in range(6)]
def k3_main(A, ld="sc1", st="sc1", sched=None, standalone=True, hide=True):
    sched = sched or K3SCHED
    ACC, AF, NAF = 16, 112, 6
    VB = 8
    T = 136
    PK = 152
    done = A.label("k3done")
    k3_ids(A)
    A(f"s_cmp_eq_u32 s37, 15\ns_cbranch_scc1 {done}")
    if not standalone:
        A("s_waitcnt vmcnt(0)\ns_barrier")
    k3_waddr(A, VB)
    A(f"s_mul_i32 s42, s37, 192\ns_mul_i32 s43, s3, 3072")
    if standalone:
        for ch in range(2): k3_dma(A, ch, ch, VB, 42, 43, 44, f"w{ch}")
    A(f"""
    s_lshl_b32 s45, s36, 2
    s_add_u32 s45, s45, s3
    s_lshl_b32 s46, s45, 15
    s_add_u32 s46, s46, {WS_H2}
    v_lshlrev_b32 v4, 4, v1
    """)
    for k in range(32):
        if k and k % 4 == 0: A("s_add_u32 s46, s46, 4096")
        A(f"buffer_load_dwordx4 {a(4*k,4)}, v4, {srd(S_WS)}, s46 offen offset:{(k%4)*1024} {ld}")
        if standalone and k in (7, 11, 15, 19):
            ch = 2 + (k-7)//4
            k3_dma(A, ch, ch, VB, 42, 43, 44, f"w{ch}")
    A(f"""
    v_bfe_u32 v5, v1, 1, 1
    v_mul_u32_u24 v5, {UOFF}, v5
    v_bfe_u32 v6, v1, 2, 2
    v_bfe_u32 v7, v1, 5, 1
    v_lshl_add_u32 v6, v7, 3, v6
    v_mul_u32_u24 v6, 192, v6
    v_add_u32 v5, v5, v6
    v_bfe_u32 v6, v1, 4, 1
    v_lshl_add_u32 v5, v6, 4, v5
    v_and_b32 v6, 1, v1
    v_lshl_add_u32 v5, v6, 3, v5
    v_add_u32 v6, {2*SLOT}, v5
    v_add_u32 v7, {4*SLOT}, v5
    s_mul_i32 s47, s45, {86*1024}
    s_mul_i32 s48, s37, {6*1024}
    s_add_u32 s47, s47, s48
    s_add_u32 s47, s47, {WS_ACT}
    s_add_u32 s48, s47, 2048
    s_add_u32 s51, s47, 4096
    s_cmp_eq_u32 s37, 14
    s_cselect_b32 s48, {WS_SIZE}, s48
    s_cselect_b32 s51, {WS_SIZE}, s51
    s_mov_b32 s49, {fbits(-math.log2(math.e))}
    s_mov_b32 s50, {fbits(-math.log2(math.e))}
    """)
    order = [(k, j) for ks, js in sched for k in ks for j in js]
    assert len(order) == 192 and len(set(order)) == 192
    def slot_of(k):
        ch = k // 4
        return ch if ch < 6 else ch - 6
    def frag_read(n):
        k, j = order[n]
        sl = slot_of(k)
        base = ("v5", "v6", "v7")[sl // 2]
        off = (sl % 2)*SLOT + (k % 4)*16*192 + j*32
        b = AF + (n % NAF)*4
        return f"ds_read_b64_tr_b16 {v(b,2)}, {base} offset:{off}\nds_read_b64_tr_b16 {v(b+2,2)}, {base} offset:{off+4*192}"
    def epi_ops(j, packed):
        acc = ACC + 16*j
        pk = PK + 4*(j & 1)
        ops = []
        if packed:
            for hf in range(2):
                g, u = acc + 8*hf, acc + 8*hf + 4
                t = T + 4*hf
                for h in range(2): ops.append(f"v_pk_mul_f32 {v(t+2*h,2)}, {v(g+2*h,2)}, s[49:50]" if False else f"v_pk_mul_f32 {v(t+2*h,2)}, {v(g+2*h,2)}, v[14:15]")
                for h in range(2): ops.append(f"v_pk_mul_f32 {v(g+2*h,2)}, {v(g+2*h,2)}, {v(u+2*h,2)}")
            for i in range(8): ops.append(f"v_exp_f32 v{T+i}, v{T+i}")
            for h in range(4): ops.append(f"v_pk_add_f32 {v(T+2*h,2)}, {v(T+2*h,2)}, 1.0 op_sel_hi:[1,0]")
            for i in range(8): ops.append(f"v_rcp_f32 v{T+i}, v{T+i}")
            for hf in range(2):
                g = acc + 8*hf; t = T + 4*hf
                for h in range(2): ops.append(f"v_pk_mul_f32 {v(g+2*h,2)}, {v(g+2*h,2)}, {v(t+2*h,2)}")
        else:
            idx = [(acc + 8*hf + r, acc + 8*hf + 4 + r, T + 4*hf + r) for hf in range(2) for r in range(4)]
            for g, u, t in idx: ops.append(f"v_mul_f32 v{t}, s49, v{g}")
            for g, u, t in idx: ops.append(f"v_exp_f32 v{t}, v{t}")
            for g, u, t in idx: ops.append(f"v_mul_f32 v{g}, v{g}, v{u}")
            for g, u, t in idx: ops.append(f"v_add_f32 v{t}, 1.0, v{t}")
            for g, u, t in idx: ops.append(f"v_rcp_f32 v{t}, v{t}")
            for g, u, t in idx: ops.append(f"v_mul_f32 v{g}, v{g}, v{t}")
        for hf in range(2):
            g = acc + 8*hf
            ops.append(f"v_cvt_pk_bf16_f32 v{pk+2*hf}, v{g}, v{g+1}")
            ops.append(f"v_cvt_pk_bf16_f32 v{pk+2*hf+1}, v{g+2}, v{g+3}")
        return ops
    def store(j):
        pk = PK + 4*(j & 1)
        return f"buffer_store_dwordx4 {v(pk,4)}, v4, {srd(S_WS)}, s{(47,48,51)[j//2]} offen offset:{(j%2)*1024} {st}\n"
    A("v_mov_b32 v14, s49\nv_mov_b32 v15, s49")
    last = {}
    for n, (k, j) in enumerate(order): last[j] = n
    seen_chunk = set()
    def ensure_chunk(k):
        ch = k // 4
        if ch not in seen_chunk:
            seen_chunk.add(ch)
            if standalone or ch >= 6:
                A.wait_tag(f"w{ch}")
                A("s_barrier")
    PF = NAF - 1
    ts(A, "issued")
    for n in range(PF):
        ensure_chunk(order[n][0]); A(frag_read(n))
    ts(A, "first")
    tc(A, "first")
    pending = []
    started = set()
    for n, (k, j) in enumerate(order):
        acc = ACC + 16*j
        A(f"v_mfma_f32_32x32x16_bf16 {v(acc,16)}, {v(AF+(n%NAF)*4,4)}, {a(4*k,4)}, {v(acc,16) if j in started else 0}")
        started.add(j)
        if n in (47, 71, 91, 111, 151): ts(A, f"n{n}")
        if n + PF < 192:
            ensure_chunk(order[n+PF][0]); A(frag_read(n+PF))
        if n == 47 + 0:
            pass
        if order[n][0] == 7 and j == 5 and len(sched[0][0]) >= 8:
            A("s_barrier")
            for ch in (6, 7): k3_dma(A, ch, ch-6, VB, 42, 43, 44, f"w{ch}")
        take = 2
        while pending and take > 0 and hide:
            op = pending.pop(0)
            if op[0] == "store":
                A(store(op[1]), tag="st")
            else:
                A(op[1]); take -= 2 if op[1].startswith(("v_exp", "v_rcp")) else 1
        for jj, ln in last.items():
            if n == ln + 2 and n < 191:
                while pending:
                    op = pending.pop(0)
                    if op[0] == "store": A(store(op[1]), tag="st")
                    else: A(op[1])
                pending = [("op", o) for o in epi_ops(jj, False)] + [("store", jj)]
    while pending:
        op = pending.pop(0)
        if op[0] == "store": A(store(op[1]), tag="st")
        else: A(op[1])
    ts(A, "mfma")
    tc(A, "mfma")
    for jj, ln in last.items():
        if ln + 2 >= 191:
            for o in epi_ops(jj, True): A(o)
            A(store(jj), tag="st")
    ts(A, "stiss")
    A(f"s_waitcnt vmcnt(0)\n{done}:")
    A.reset()

def k3(A):
    k3_main(A)

def k4_main(A, ld="sc1", persistent=False):
    A(f"""
    s_and_b32 s36, s2, 7
    s_lshl_b32 s36, s36, 2
    s_bfe_u32 s38, s2, 0x20003
    s_add_u32 s36, s36, s38
    s_lshr_b32 s37, s2, 5
    s_lshr_b32 s38, s3, 1
    s_and_b32 s39, s3, 1
    v_lshrrev_b32 v4, 3, v1
    v_lshlrev_b32 v5, 10, v4
    v_and_b32 v6, 7, v1
    v_lshlrev_b32 v4, 1, v4
    v_and_b32 v4, 4, v4
    v_xor_b32 v6, v6, v4
    v_lshl_add_u32 v5, v6, 4, v5
    s_mul_i32 s40, s38, {688*1024}
    s_lshl_b32 s41, s37, 7
    s_add_u32 s40, s40, s41
    s_lshl_b32 s41, s39, 13
    s_add_u32 s40, s40, s41
    s_mul_i32 s41, s38, 81920
    s_lshl_b32 s42, s39, 10
    s_add_u32 s42, s42, s41
    """)
    def dma(i2, tag):
        dst = (2*i2 if i2 < 40 else 2*(i2-40)) * 1024
        A(f"s_add_u32 m0, s42, {dst}\ns_add_u32 s43, s40, {i2*16384}")
        A(f"buffer_load_dwordx4 v5, {srd(S_WD)}, s43 offen lds", tag=tag)
    A(f"""
    s_lshl_b32 s44, s36, 1
    s_add_u32 s44, s44, s39
    s_mul_i32 s44, s44, {86*1024}
    s_mul_i32 s45, s38, {43*1024}
    s_add_u32 s44, s44, s45
    s_add_u32 s44, s44, {WS_ACT}
    v_lshlrev_b32 v4, 4, v1
    """)
    GRP = 4
    if persistent:
        for k in range(0, 20): dma(k, f"d{k//GRP}")
        A(f"s_lshr_b32 s62, s36, 1\ns_lshl_b32 s62, s62, 11\ns_add_u32 s62, s62, {WS_F3}")
        A("s_waitcnt vmcnt(0)")
        poll(A, "l15", 62)
        ts(A, "sync3")
    for k in range(43):
        if k % GRP == 0 and not persistent:
            for kk in range(k, min(k+GRP, 40)): dma(kk, f"d{k//GRP}")
        if k and k % 4 == 0: A("s_add_u32 s44, s44, 4096")
        A(f"buffer_load_dwordx4 {a(4*k,4)}, v4, {srd(S_WS)}, s44 offen offset:{(k%4)*1024} {ld}")
        if k == 19: break
    A(f"""
    v_lshrrev_b32 v8, 3, v0
    v_and_b32 v9, 7, v0
    s_lshl_b32 s46, s36, 16
    s_lshl_b32 s47, s37, 7
    s_add_u32 s46, s46, s47
    s_add_u32 s46, s46, {WS_X1}
    s_add_u32 s48, s46, 32768
    v_lshlrev_b32 v10, 10, v8
    v_lshl_add_u32 v10, v9, 4, v10
    v_lshlrev_b32 v11, 5, v9
    s_lshl_b32 s47, s37, 8
    s_add_u32 s47, s47, {WS_MOD+5*2048}
    s_sub_u32 s49, 64, s36
    s_cmp_eq_u32 s36, 0
    s_cselect_b32 s49, 32, s49
    v_and_b32 v12, 1, v8
    v_cmp_ne_u32 vcc, 0, v12
    v_mov_b32 v12, s36
    v_mov_b32 v13, s49
    v_cndmask_b32 v12, v12, v13, vcc
    v_lshrrev_b32 v13, 1, v8
    v_lshl_add_u32 v12, v13, 6, v12
    v_lshlrev_b32 v12, 10, v12
    v_lshl_add_u32 v12, v9, 4, v12
    s_lshl_b32 s49, s37, 7
    s_add_u32 s50, s49, 0x100000
    """)
    A(f"""
    v_bfe_u32 v6, v1, 2, 2
    v_bfe_u32 v7, v1, 5, 1
    v_lshl_add_u32 v7, v7, 2, v6
    v_lshlrev_b32 v7, 7, v7
    v_bfe_u32 v13, v1, 4, 1
    v_lshl_add_u32 v7, v13, 5, v7
    v_and_b32 v13, 3, v1
    v_lshl_add_u32 v7, v13, 3, v7
    v_add_u32 v7, s41, v7
    v_bfe_u32 v13, v1, 3, 1
    v_lshlrev_b32 v13, 6, v13
    v_xor_b32 v6, v7, v13
    v_xor_b32 v7, 64, v6
    v_add_u32 v14, 0xa000, v6
    v_add_u32 v15, 0xa000, v7
    """)
    ACC, AF, NAF = 16, 48, 6
    XG = 72
    def wslot(k): return k if k < 40 else k - 40
    def frag_read(n):
        k, t = n // 2, n % 2
        sl = wslot(k)
        base = (("v6", "v7"), ("v14", "v15"))[sl >= 20][t]
        off = (sl % 20) * 2048
        b = AF + (n % NAF)*4
        return f"ds_read_b64_tr_b16 {v(b,2)}, {base} offset:{off}\nds_read_b64_tr_b16 {v(b+2,2)}, {base} offset:{off+1024}"
    seen = set()
    rest = list(range(20, 43))
    issued = 20
    def ensure(k):
        g = k // GRP if k < 40 else 10
        if g not in seen:
            seen.add(g)
            if persistent and g < 5: return
            A.wait_tag(f"d{g}"); A("s_barrier")
    PF = NAF - 1
    N = 86
    ts(A, "issued")
    for n in range(PF):
        ensure(n//2); A(frag_read(n))
    ts(A, "first")
    for n in range(N):
        k, t = n // 2, n % 2
        A(f"v_mfma_f32_32x32x16_bf16 {v(ACC+16*t,16)}, {v(AF+(n%NAF)*4,4)}, {a(4*k,4)}, {v(ACC+16*t,16) if k else 0}")
        if n + PF < N:
            ensure((n+PF)//2); A(frag_read(n+PF))
        if t == 1 and issued < 43:
            kk = issued
            if kk % GRP == 0 and kk < 40:
                for k2_ in range(kk, min(kk+GRP, 40)): dma(k2_, f"d{kk//GRP}")
            if kk % 4 == 0: A("s_add_u32 s44, s44, 4096")
            A(f"buffer_load_dwordx4 {a(4*kk,4)}, v4, {srd(S_WS)}, s44 offen offset:{(kk%4)*1024} {ld}")
            issued += 1
        if n == 2*26+1:
            for k2_ in range(40, 43): dma(k2_, "d10")
            A(f"buffer_load_dwordx4 {v(XG,4)}, v10, {srd(S_WS)}, s46 offen {ld}")
            A(f"buffer_load_dwordx4 {v(XG+4,4)}, v10, {srd(S_WS)}, s48 offen {ld}")
            A(f"buffer_load_dwordx4 {v(XG+8,4)}, v11, {srd(S_WS)}, s47 offen {ld}")
            A(f"buffer_load_dwordx4 {v(XG+12,4)}, v11, {srd(S_WS)}, s47 offen offset:16 {ld}")
    ts(A, "mfma")
    RS = 272
    A(f"""
    s_barrier
    s_lshl_b32 s51, s38, 1
    s_add_u32 s51, s51, s39
    s_mul_i32 s51, s51, {32*RS}
    v_and_b32 v6, 31, v1
    v_mul_u32_u24 v6, {RS}, v6
    v_bfe_u32 v7, v1, 5, 1
    v_lshl_add_u32 v6, v7, 4, v6
    v_add_u32 v6, s51, v6
    v_mul_u32_u24 v7, {RS}, v8
    v_lshl_add_u32 v7, v9, 5, v7
    """)
    for t in range(2):
        for j in range(4):
            A(f"ds_write_b128 v6, {v(ACC+16*t+4*j,4)} offset:{t*128+j*32}")
    A("s_waitcnt lgkmcnt(0)\ns_barrier")
    RD = 96
    for it in range(2):
        for kh in range(2):
            for hf in range(2):
                A(f"ds_read_b128 {v(RD+it*16+kh*8+hf*4,4)}, v7 offset:{(kh*64+it*32)*RS+hf*16}")
    for it in range(2):
        z = RD + it*16
        xr = XG + it*4
        for h in range(4): A(f"v_pk_add_f32 {v(z+2*h,2)}, {v(z+2*h,2)}, {v(z+8+2*h,2)}")
        for h in range(4): A(f"v_lshlrev_b32 v{z+8+2*h}, 16, v{xr+h}\nv_and_b32 v{z+9+2*h}, 0xffff0000, v{xr+h}")
        for h in range(4): A(f"v_pk_fma_f32 {v(z+2*h,2)}, {v(z+2*h,2)}, {v(XG+8+2*h,2)}, {v(z+8+2*h,2)}")
        for h in range(4): A(f"v_cvt_pk_bf16_f32 v{z+8+h}, v{z+2*h}, v{z+2*h+1}")
        A(f"buffer_store_dwordx4 {v(z+8,4)}, v12, {srd(S_OUT)}, s{49+it} offen")

def k4(A):
    k4_main(A)

TSNAMES = []

WS_EP  = WS_FLG
WS_F1  = WS_FLG + 0x1000
WS_F2  = WS_FLG + 0x10000
WS_F3  = WS_FLG + 0x20000
F1MODE = "xcdline"
MAXPOLL = 60000

def flag_set(A, soff_sgpr):
    sk = A.label("fs")
    A(f"""
    s_waitcnt vmcnt(0) lgkmcnt(0)
    s_barrier
    s_cmp_lg_u32 s3, 0
    s_cbranch_scc1 {sk}
    v_mov_b32 v250, 0
    v_mov_b32 v251, s64
    s_mov_b64 exec, 1
    buffer_store_dword v251, v250, {srd(S_WS)}, s{soff_sgpr} offen sc1
    s_mov_b64 exec, -1
    {sk}:
    """)
    A.reset()

def poll(A, kind, soff_sgpr):
    sk, lp = A.label("pk"), A.label("pl")
    A(f"s_cmp_lg_u32 s3, 0\ns_cbranch_scc1 {sk}\ns_mov_b32 s65, 0")
    if kind == "x4":
        A("v_lshlrev_b32 v250, 4, v1")
    elif kind == "l16":
        A("v_lshlrev_b32 v250, 7, v2")
    elif kind == "l15":
        A("v_cmp_eq_u32 vcc, 15, v2\nv_cndmask_b32 v250, v2, 0, vcc\nv_lshlrev_b32 v250, 7, v250")
    elif kind == "s64x4":
        A("v_lshlrev_b32 v250, 6, v1")
    A(f"{lp}:")
    if kind == "x4":
        A(f"""
        buffer_load_dwordx4 v[252:255], v250, {srd(S_WS)}, s{soff_sgpr} offen sc1
        s_waitcnt vmcnt(0)
        v_xor_b32 v252, s64, v252
        v_xor_b32 v253, s64, v253
        v_xor_b32 v254, s64, v254
        v_xor_b32 v255, s64, v255
        v_or3_b32 v252, v252, v253, v254
        v_or_b32 v252, v252, v255
        v_cmp_ne_u32 vcc, 0, v252
        """)
    elif kind == "s64x4":
        for j in range(4):
            A(f"s_add_u32 s63, s{soff_sgpr}, {j*4096}\nbuffer_load_dword v{252+j}, v250, {srd(S_WS)}, s63 offen sc1")
        A(f"""
        s_waitcnt vmcnt(0)
        v_xor_b32 v252, s64, v252
        v_xor_b32 v253, s64, v253
        v_xor_b32 v254, s64, v254
        v_xor_b32 v255, s64, v255
        v_or3_b32 v252, v252, v253, v254
        v_or_b32 v252, v252, v255
        v_cmp_ne_u32 vcc, 0, v252
        """)
    else:
        A(f"""
        buffer_load_dword v252, v250, {srd(S_WS)}, s{soff_sgpr} offen sc1
        s_waitcnt vmcnt(0)
        v_cmp_ne_u32 vcc, s64, v252
        """)
    A(f"""
    s_add_u32 s65, s65, 1
    s_cmp_ge_u32 s65, {MAXPOLL}
    s_cbranch_scc1 {sk}
    s_cbranch_vccnz {lp}
    {sk}:
    s_barrier
    """)
    A.reset()

def build_persistent():
    A = Asm()
    name = NAME + "_kernel"
    kernel_begin(A, name)
    done = A.label("done")
    ts_begin()
    if TS: A("s_memrealtime s[62:63]")
    prologue(A, done)
    if TS: A("v_mov_b32 v248, 0\nv_writelane_b32 v248, s62, 0"); _ts["n"] = 1; _ts["names"] = ["entry"]
    A(f"s_add_u32 s38, s32, {WS_EP}\ns_addc_u32 s39, s33, 0\ns_load_dword s64, s[38:39], 0")
    if CODEPF:
        A(f"""
        s_getpc_b64 s[40:41]
        s_and_b32 s40, s40, 0xffffff00
        s_lshr_b32 s42, s2, 3
        s_lshl_b32 s42, s42, 2
        s_add_u32 s42, s42, s3
        s_lshl_b32 s42, s42, 9
        s_min_u32 s42, s42, {CODEPF - 512}
        v_and_b32 v250, 3, v1
        v_lshlrev_b32 v250, 7, v250
        v_add_u32 v250, s42, v250
        global_load_dword v249, v250, s[40:41]
        """)
    ts(A, "prolog")
    m, e = A.label("k1mod"), A.label("k1end")
    A(f"s_cmp_ge_u32 s2, 128\ns_cbranch_scc1 {m}")
    k1_ln(A)
    ts(A, "stiss")
    A(f"s_branch {e}\n{m}:\ns_cmp_ge_u32 s2, 224\ns_cbranch_scc1 {e}")
    A.reset()
    n0 = _ts["n"]; _ts["n"] = 2; nm0 = list(_ts["names"])
    k1_mod(A)
    _ts["n"] = n0; _ts["names"] = nm0
    A(f"{e}:")
    A.reset()
    A("s_waitcnt lgkmcnt(0)\ns_mul_i32 s64, s64, 0x9e3779b1\ns_add_u32 s64, s64, 0x7f4a7c15")
    if F1MODE == "xcdline":
        A(f"s_and_b32 s62, s2, 7\ns_lshl_b32 s62, s62, 5\ns_lshr_b32 s63, s2, 3\ns_add_u32 s62, s62, s63\ns_lshl_b32 s62, s62, 2\ns_add_u32 s62, s62, {WS_F1}")
    else:
        A(f"s_lshl_b32 s62, s2, 6\ns_add_u32 s62, s62, {WS_F1}")
    flag_set(A, 62)
    ts(A, "f1set")
    k3_prefetch(A, range(0, 5))
    k2_pre(A)
    ts(A, "pre")
    A("s_waitcnt vmcnt(0)" if False else "")
    A(f"s_mov_b32 s62, {WS_F1}")
    poll(A, "x4" if F1MODE == "xcdline" else "s64x4", 62)
    ts(A, "sync1")
    sk = A.label("ep")
    A(f"""
    s_or_b32 s63, s2, s3
    s_cmp_lg_u32 s63, 0
    s_cbranch_scc1 {sk}
    v_mov_b32 v250, 0
    v_mov_b32 v251, s64
    s_mov_b32 s63, {WS_EP}
    s_mov_b64 exec, 1
    buffer_store_dword v251, v250, {srd(S_WS)}, s63 offen sc1
    s_mov_b64 exec, -1
    s_waitcnt vmcnt(0)
    {sk}:
    """)
    A.reset()
    k2_main(A)
    ts(A, "stiss2")
    A(f"s_lshl_b32 s62, s36, 3\ns_add_u32 s62, s62, s37\ns_lshl_b32 s62, s62, 7\ns_add_u32 s62, s62, {WS_F2}")
    flag_set(A, 62)
    ts(A, "f2set")
    k3_prefetch(A, [5])
    k3_ids(A)
    A(f"s_lshl_b32 s62, s36, 11\ns_add_u32 s62, s62, {WS_F2}")
    poll(A, "l16", 62)
    ts(A, "sync2")
    k3_main(A, standalone=False)
    k3_ids(A)
    A(f"s_lshl_b32 s62, s36, 4\ns_add_u32 s62, s62, s37\ns_lshl_b32 s62, s62, 7\ns_add_u32 s62, s62, {WS_F3}")
    flag_set(A, 62)
    ts(A, "f3set")
    k4_main(A, persistent=True)
    ts(A, "end")
    probe_end(A)
    ts_flush(A, 0)
    TSNAMES.append(list(_ts["names"]))
    A(f"{done}:\ns_endpgm")
    code = A.finalize()
    return [(None, (256,1,1), (256,1,1), LDS_TOTAL)], code, [kernel_desc(name, 256, 172)]

CODEPF = 0
def k3_prefetch(A, chunks):
    sk = A.label("pf")
    A(f"""
    s_and_b32 s38, s2, 1
    s_lshl_b32 s38, s38, 3
    s_lshr_b32 s39, s2, 5
    s_add_u32 s38, s38, s39
    s_cmp_eq_u32 s38, 15
    s_cselect_b32 s39, 0, s3
    s_cmp_eq_u32 s39, 0
    s_cbranch_scc1 {sk}
    s_mul_i32 s38, s38, 192
    s_sub_u32 s39, s3, 1
    s_mul_i32 s40, s39, 256
    s_mov_b32 s41, 0x15555556
    s_lshl_b32 s42, s39, 12
    """)
    for i in range(4):
        A(f"""
        v_add_u32 v{240+i}, s40, v1
        v_add_u32 v{240+i}, {64*i}, v{240+i}
        v_mul_hi_u32 v244, v{240+i}, s41
        v_mul_u32_u24 v245, 12, v244
        v_sub_u32 v{240+i}, v{240+i}, v245
        v_lshlrev_b32 v{240+i}, 4, v{240+i}
        v_mul_u32_u24 v244, 2752, v244
        v_add_u32 v{240+i}, v{240+i}, v244
        """)
    for ch in chunks:
        A(f"s_add_u32 s43, s38, {ch*64*2752}")
        for mtx, sr in ((0, S_WG), (1, S_WU)):
            for i in range(4):
                A(f"s_add_u32 m0, s42, {ch*SLOT+mtx*UOFF+i*1024}")
                A(f"buffer_load_dwordx4 v{240+i}, {srd(sr)}, s43 offen lds")
    A(f"{sk}:")
    A.reset()

def build_multi(extra=0, delay=False):
    code = ""
    launches, descs = [], []
    for nm, fn, nv, na in (("p1", k1, 160, 0), ("p2", k2, 224, 0), ("p3", k3, 160, 128), ("p4", k4, 128, 172)):
        A = Asm()
        name = f"{nm}_kernel"
        kernel_begin(A, name)
        done = A.label("done")
        ts_begin()
        if TS: A("s_memrealtime s[62:63]")
        prologue(A, done)
        if TS: A("v_mov_b32 v248, 0\nv_writelane_b32 v248, s62, 0"); _ts["n"] = 1; _ts["names"] = ["entry"]
        ts(A, "prolog")
        fn(A)
        ts(A, "end")
        ts_flush(A, len(launches))
        TSNAMES.append(list(_ts["names"]))
        A(f"{done}:\ns_endpgm")
        code += A.finalize()
        launches.append((name, (256,1,1), (256,1,1), LDS_TOTAL))
        descs.append(kernel_desc(name, 256 if TS else nv, na))
    if extra:
        A = Asm(); kernel_begin(A, "nop_kernel"); A("s_endpgm"); code += A.finalize()
        descs.append(kernel_desc("nop_kernel", 8))
        for i in range(extra): launches.append(("nop_kernel", (256,1,1), (256,1,1), 0))
    return launches, code, descs

if __name__ == "__main__":
    hdr = [l.rstrip("\n") for l in open("cdna_kernels/%s.s.ref" % NAME) if l.startswith(";") and "@launch" not in l]
    hdr = hdr[:15]
    out = sys.argv[1] if len(sys.argv) > 1 else "multi.s"
    extra = int(sys.argv[2]) if len(sys.argv) > 2 else 0
    if len(sys.argv) > 3 and sys.argv[3] == "ts":
        TS = True
    if len(sys.argv) > 4: CODEPF = int(sys.argv[4])
    if len(sys.argv) > 5: PROBE = sys.argv[5]
    launches, code, descs = build_persistent() if extra < 0 else build_multi(extra)
    if TS:
        import json; json.dump(TSNAMES, open(out[:-2] + ".json", "w"))
    open(out, "w").write(file_text(hdr, launches, code, descs))
```

```python
import sys, struct, math, json
from asmlib import *

NAME = "adaLN_cond__spectral_fnet__swiglu_ffn__prompt"
def fbits(x): return "0x%08x" % struct.unpack("<I", struct.pack("<f", x))[0]
OPT = {}
def opt(k, d): return OPT.get(k, d)

WS_U   = 0
WS_MOD = 0x240000
WS_H2  = 0x300000
WS_X1  = 0x500000
WS_ACT = 0x800000
WS_FLG = 0xE00000
WS_TS  = 0xF00000
WS_SIZE = 0x1000000
WS_EP  = WS_FLG
WS_F1  = WS_FLG + 0x1000
WS_F2  = WS_FLG + 0x10000
WS_F3  = WS_FLG + 0x20000
def SLOTSTR(): return 65536 + opt("upad", 0)
MAXPOLL = 60000
LDS_TOTAL = 163840
SLOT = 24640; UOFF = 12320
XCS = 1040
XWS = 16 * XCS
XIMG = LDS_TOTAL - 4 * XWS
XTAB = XIMG - 384
MW = XIMG
MSC = MW + 32768
MRED = MSC + 1024
K2EX = 123200
K2HB = K2EX + 18432
S_X, S_WG, S_WU, S_WD, S_C, S_WM, S_OUT, S_WS = 4, 8, 12, 16, 20, 24, 28, 32
S_TOK, S_CNT, S_SL, S_WL, S_DG, S_DL, S_T = 64, 65, 66, 67, 68, 69, 70
V_W = 240
V_D = 243
def srd(b): return s(b, 4)
LOG2E = fbits(-math.log2(math.e))

TS = False
PROBE = None
_ts = {"n": 0, "names": []}
def ts(A, name=None, cyc=False):
    if not TS: return
    if opt("tsonly", None) and name not in opt("tsonly", "").split("+") and name not in ("f1set", "end"): return
    n = _ts["n"]; _ts["n"] += 1
    _ts["names"].append(("c:" if cyc else "") + name)
    A(f"{'s_memtime' if cyc else 's_memrealtime'} s[98:99]\ns_waitcnt lgkmcnt(0)\nv_writelane_b32 v248, s98, {n}")
def tc(A, name=None): ts(A, name, True)
def probe_end(A):
    if PROBE is None: return
    lp = A.label("pr")
    idx = _ts["names"].index(PROBE)
    A(f"""
    s_waitcnt vmcnt(0) lgkmcnt(0)
    v_readlane_b32 s90, v248, 0
    v_readlane_b32 s91, v248, {idx}
    s_nop 4
    s_sub_u32 s91, s91, s90
    s_cmp_gt_u32 s91, 20000
    s_cselect_b32 s91, 0, s91
    s_add_u32 s91, s91, 6000
    {lp}:
    s_memrealtime s[92:93]
    s_waitcnt lgkmcnt(0)
    s_sub_u32 s92, s92, s90
    s_cmp_lt_u32 s92, s91
    s_cbranch_scc1 {lp}
    """)
def ts_flush(A):
    if not TS: return
    sk = A.label("tsk")
    A(f"s_waitcnt vmcnt(0) lgkmcnt(0)\ns_cmp_lg_u32 s3, 0\ns_cbranch_scc1 {sk}")
    A(f"s_lshl_b32 s64, s2, 8\ns_add_u32 s64, s64, {WS_TS}\nv_lshlrev_b32 v1, 2, v1")
    A(f"buffer_store_dword v248, v1, {srd(S_WS)}, s64 offen")
    A(f"s_waitcnt vmcnt(0)\n{sk}:")

def bf16r(A, dst, src):
    A(f"v_cvt_pk_bf16_f32 {dst}, {src}, {src}\nv_lshlrev_b32 {dst}, 16, {dst}")

def sl_expr():
    if opt("T", 4) == 4:
        return "s_and_b32 s38, s2, 1\ns_lshl_b32 s38, s38, 3\ns_lshr_b32 s39, s2, 5\ns_add_u32 s38, s38, s39"
    return "s_and_b32 s38, s2, 3\ns_lshl_b32 s38, s38, 2\ns_lshr_b32 s39, s2, 6\ns_add_u32 s38, s38, s39"
def rb_expr():
    if opt("T", 4) == 4:
        return "s_bfe_u32 s36, s2, 0x20001\ns_lshl_b32 s36, s36, 2\ns_bfe_u32 s39, s2, 0x20003\ns_add_u32 s36, s36, s39"
    return "s_bfe_u32 s36, s2, 0x10002\ns_lshl_b32 s36, s36, 3\ns_bfe_u32 s39, s2, 0x30003\ns_add_u32 s36, s36, s39"
def prologue(A, done):
    A(f"""
    s_cmp_ge_u32 s2, 256
    s_cbranch_scc1 {done}
    s_load_dwordx2 s[4:5], s[0:1], 0
    s_load_dwordx2 s[24:25], s[0:1], 80
    s_load_dwordx2 s[20:21], s[0:1], 72
    s_load_dwordx2 s[32:33], s[0:1], 104
    s_load_dwordx2 s[8:9], s[0:1], 48
    s_load_dwordx2 s[12:13], s[0:1], 56
    s_load_dwordx2 s[16:17], s[0:1], 64
    s_load_dwordx2 s[28:29], s[0:1], 88
    v_lshrrev_b32 v2, 6, v0
    v_and_b32 v1, 63, v0
    v_readfirstlane_b32 s3, v2
    v_and_b32 v2, 15, v0
    v_bfe_u32 v3, v0, 4, 2
    """)
    for b, sz in ((S_X, 2097152), (S_WG, 1409024), (S_WU, 1409024), (S_WD, 1409024), (S_C, 1024), (S_WM, 3145728), (S_OUT, 2097152), (S_WS, WS_SIZE)):
        A(f"s_mov_b32 s{b+2}, {sz}\ns_mov_b32 s{b+3}, 0x20000")
    A(f"""
    {sl_expr()}
    s_mul_i32 s{S_SL}, s38, 192
    s_cmp_eq_u32 s38, 15
    s_cselect_b32 s{S_SL}, 0x200000, s{S_SL}
    s_mul_i32 s{S_WL}, s3, 3072
    s_mul_i32 s40, s3, 192
    s_mov_b32 s41, 0x15555556
    """)
    for i in range(3):
        A(f"""
        v_add_u32 v{V_W+i}, s40, v1
        v_add_u32 v{V_W+i}, {64*i}, v{V_W+i}
        v_mul_hi_u32 v244, v{V_W+i}, s41
        v_mul_u32_u24 v245, 12, v244
        v_sub_u32 v{V_W+i}, v{V_W+i}, v245
        v_lshlrev_b32 v{V_W+i}, 4, v{V_W+i}
        v_mul_u32_u24 v244, 2752, v244
        v_add_u32 v{V_W+i}, v{V_W+i}, v244
        """)
    A("s_waitcnt lgkmcnt(0)")

def touch_setup(A, nonln=False):
    n = 22 if nonln else 11
    A(f"""
    s_lshl_b32 s{S_T}, s2, 2
    s_add_u32 s{S_T}, s{S_T}, s3
    s_and_b32 s{S_T}, s{S_T}, {511 if nonln else 1023}
    s_mul_i32 s{S_T}, s{S_T}, {n}
    v_min_u32 v246, {n-1}, v1
    v_add_u32 v246, s{S_T}, v246
    v_lshlrev_b32 v246, 7, v246
    """)
def touch(A, which="gud", nonln=False):
    pol = opt("tpol", "")
    A(f"s_mov_b64 exec, {hex((1 << (22 if nonln else 11)) - 1)}")
    if "g" in which: A(f"buffer_load_dword v247, v246, {srd(S_WG)}, 0 offen {pol}")
    if "u" in which: A(f"buffer_load_dword v245, v246, {srd(S_WU)}, 0 offen {pol}")
    if "d" in which: A(f"buffer_load_dword v244, v246, {srd(S_WD)}, 0 offen {pol}")
    A("s_mov_b64 exec, -1")

def touch_early(A):
    rows = 64 * opt("terows", 5)
    n = (rows * 2752 // 128 + 127) // 128
    A(f"""
    s_sub_u32 s38, s2, 224
    s_lshl_b32 s38, s38, 2
    s_add_u32 s38, s38, s3
    s_mul_i32 s38, s38, {n}
    v_min_u32 v246, {n-1}, v1
    v_add_u32 v246, s38, v246
    v_lshlrev_b32 v246, 7, v246
    buffer_load_dword v247, v246, {srd(S_WG)}, 0 offen
    buffer_load_dword v245, v246, {srd(S_WU)}, 0 offen
    """)
    for j in range(1, (n + 63) // 64):
        A(f"""
        v_add_u32 v244, {64*j}, v1
        v_min_u32 v244, {n-1}, v244
        v_add_u32 v244, s38, v244
        v_lshlrev_b32 v244, 7, v244
        buffer_load_dword v239, v244, {srd(S_WG)}, 0 offen
        buffer_load_dword v238, v244, {srd(S_WU)}, 0 offen
        """)
def touch_late_setup(A):
    rows0 = 64 * opt("terows", 5)
    n = ((512 - rows0) * 2752 // 128 + 1023) // 1024
    A(f"""
    s_lshl_b32 s{S_T}, s2, 2
    s_add_u32 s{S_T}, s{S_T}, s3
    s_mul_i32 s71, s{S_T}, 11
    s_mul_i32 s{S_T}, s{S_T}, {n}
    s_add_u32 s{S_T}, s{S_T}, {rows0*2752//128}
    v_min_u32 v246, {max(n-1,0)}, v1
    v_add_u32 v246, s{S_T}, v246
    v_lshlrev_b32 v246, 7, v246
    v_min_u32 v247, 10, v1
    v_add_u32 v247, s71, v247
    v_lshlrev_b32 v247, 7, v247
    """)
def touch_late(A):
    A(f"""
    s_mov_b64 exec, 0x7ff
    buffer_load_dword v245, v246, {srd(S_WG)}, 0 offen
    buffer_load_dword v244, v246, {srd(S_WU)}, 0 offen
    buffer_load_dword v246, v247, {srd(S_WD)}, 0 offen
    s_mov_b64 exec, -1
    """)

def wchunk_ops(chunk, slot, tag):
    ops = []
    for mtx, sr in ((0, S_WG), (1, S_WU)):
        for i in range(3):
            t = f"s_add_u32 m0, s{S_WL}, {slot*SLOT+mtx*UOFF+i*1024}\n"
            t += f"s_add_u32 s{S_T}, s{S_SL}, {chunk*64*2752}\n"
            t += f"buffer_load_dwordx4 v{V_W+i}, {srd(sr)}, s{S_T} offen {opt('wpol','')} lds"
            ops.append((t, tag))
    return ops
def wchunks(A, chunks):
    for ch in chunks:
        for t, tag in wchunk_ops(ch, ch, f"w{ch}"): A(t, tag=tag)

def k1_ln(A):
    A(f"""
    s_and_b32 s38, s2, 7
    s_lshr_b32 s39, s2, 3
    s_lshr_b32 s40, s39, 2
    s_lshl_b32 s40, s40, 3
    s_add_u32 s36, s38, s40
    s_and_b32 s37, s39, 3
    v_lshrrev_b32 v4, 2, v1
    v_sub_u32 v5, 0, v3
    v_xor_b32 v5, v5, v1
    v_and_b32 v5, 3, v5
    v_lshlrev_b32 v4, 15, v4
    v_lshl_add_u32 v4, v5, 4, v4
    s_lshl_b32 s38, s3, 9
    s_add_u32 s38, s38, s36
    s_lshl_b32 s38, s38, 10
    s_mul_i32 s39, s3, {XWS}
    s_add_u32 s39, s39, {XIMG}
    """)
    for i in range(16):
        A(f"s_add_u32 m0, s39, {i*(XCS-64)}")
        A(f"buffer_load_dwordx4 v4, {srd(S_X)}, s38 offen offset:{i*64} {opt('xpol','')} lds", tag=f"x{i}")
    if opt("pfA", 3) and opt("pfApos", 0) == 0: wchunks(A, range(opt("pfA", 3)))
    BC, NV = 16, 48
    A("""
    v_lshlrev_b32 v5, 3, v3
    v_cvt_f32_u32 v5, v5
    s_and_b32 s40, s3, 1
    s_lshl_b32 s40, s40, 4
    v_add_u32 v6, s40, v2
    v_cmp_eq_u32 vcc, 0, v6
    v_cvt_f32_u32 v6, v6
    v_mul_f32 v6, 0x3c800000, v6
    v_mov_b32 v8, 0x3e800000
    v_cndmask_b32 v9, v6, 0.5, vcc
    v_cndmask_b32 v10, v8, 0, vcc
    """)
    for ks in range(2):
        for j in range(8):
            A(f"v_add_f32 v{NV}, {fbits(32*ks+j)}, v5\nv_mul_f32 v{BC+ks*8+j}, v{NV}, v6\nv_fma_f32 v{BC+16+ks*8+j}, v{NV}, v9, v10")
    for i in range(32): A(f"v_cos_f32 v{BC+i}, v{BC+i}")
    ONES, G, SA = 112, 116, 120
    for i in range(4): A(f"v_mov_b32 v{ONES+i}, 0x3f803f80")
    A(f"""
    v_lshrrev_b32 v5, 2, v2
    v_sub_u32 v5, 0, v5
    v_xor_b32 v5, v5, v3
    v_and_b32 v5, 3, v5
    v_lshlrev_b32 v5, 4, v5
    v_lshl_add_u32 v5, v2, 6, v5
    v_add_u32 v5, s39, v5
    v_lshrrev_b32 v6, 1, v3
    v_mul_u32_u24 v6, {XWS}, v6
    v_and_b32 v7, 3, v1
    v_mul_u32_u24 v7, {XCS}, v7
    v_add_u32 v6, v6, v7
    v_and_b32 v7, 1, v3
    v_lshl_add_u32 v6, v7, 9, v6
    v_bfe_u32 v8, v1, 2, 2
    v_lshl_add_u32 v6, v8, 6, v6
    s_lshr_b32 s41, s3, 1
    s_mul_i32 s42, s41, {8*XCS}
    s_add_u32 s42, s42, {XIMG}
    v_add_u32 v6, s42, v6
    v_lshlrev_b32 v7, 1, v7
    v_xor_b32 v8, s37, v7
    v_lshl_add_u32 v11, v8, 4, v6
    v_xor_b32 v8, 3, v8
    v_lshl_add_u32 v12, v8, 4, v6
    v_add_u32 v12, 256, v12
    s_lshl_b32 s42, s3, 6
    s_add_u32 s42, s42, {XTAB}
    v_lshl_add_u32 v7, v2, 2, s42
    s_lshl_b32 s42, s3, 5
    s_add_u32 s42, s42, {XTAB+256}
    v_lshl_add_u32 v13, v2, 1, s42
    v_lshlrev_b32 v8, 5, v3
    v_add_u32 v8, {XTAB}, v8
    v_lshlrev_b32 v14, 4, v3
    v_add_u32 v14, {XTAB+256}, v14
    s_mov_b32 s42, 0x22222222
    s_mov_b32 s43, 0x22222222
    s_mov_b32 s44, 0x44444444
    s_mov_b32 s45, 0x44444444
    s_mov_b32 s46, 0x88888888
    s_mov_b32 s47, 0x88888888
    v_add_u32 v9, s40, v2
    v_mul_u32_u24 v9, {SLOTSTR()}, v9
    v_lshl_add_u32 v9, v3, 4, v9
    s_lshl_b32 s48, s36, 11
    s_lshl_b32 s49, s37, 9
    s_add_u32 s48, s48, s49
    s_lshl_b32 s49, s41, 7
    s_add_u32 s48, s48, s49
    s_add_u32 s48, s48, {WS_U}
    """)
    ts(A, "const")
    R = 48
    pfl = [op for ch in range(opt("pfA", 3)) for op in wchunk_ops(ch, ch, f"w{ch}")] if opt("pfApos", 0) == 2 else []
    for i in range(16):
        A.wait_tag(f"x{i}")
        A(f"ds_read_b128 {v(R+4*i,4)}, v5 offset:{i*XCS}")
        for _ in range(2 if i >= 14 - len(pfl)//2 + 7 else 1):
            if pfl and i >= opt("pfAi", 2): A(*pfl.pop(0))
        if i >= 1:
            k = i - 1
            A(f"v_mfma_f32_16x16x32_bf16 {v(G,4)}, {v(R+4*k,4)}, {v(R+4*k,4)}, {v(G,4) if k else 0}")
            A(f"v_mfma_f32_16x16x32_bf16 {v(SA,4)}, {v(ONES,4)}, {v(R+4*k,4)}, {v(SA,4) if k else 0}")
    A("s_barrier")
    late_pf = pfl
    A(f"v_mfma_f32_16x16x32_bf16 {v(G,4)}, {v(R+60,4)}, {v(R+60,4)}, {v(G,4)}")
    A(f"v_mfma_f32_16x16x32_bf16 {v(SA,4)}, {v(ONES,4)}, {v(R+60,4)}, {v(SA,4)}")
    ts(A, "xarr")
    if opt("touch", 0) == 2: touch(A)
    if opt("pfA", 3) and opt("pfApos", 0) == 1: wchunks(A, range(opt("pfA", 3)))
    X = 128
    for tl in range(4):
        for ks in range(2):
            b = X + (tl*2+ks)*4
            off = ks*2*XWS + (tl >> 1)*4*XCS + 8*(tl & 1)
            A(f"ds_read_b64_tr_b16 {v(b,2)}, v11 offset:{off}\nds_read_b64_tr_b16 {v(b+2,2)}, v12 offset:{off}")
    A(f"""
    v_cndmask_b32 v10, v{G}, v{G+1}, s[42:43]
    v_cndmask_b32 v10, v10, v{G+2}, s[44:45]
    v_cndmask_b32 v10, v10, v{G+3}, s[46:47]
    v_mul_f32 v15, 0xbb000000, v{SA}
    v_mul_f32 v10, 0x3b000000, v10
    v_fma_f32 v10, -v15, v15, v10
    v_max_f32 v10, 0, v10
    v_cvt_pk_bf16_f32 v15, v15, v10
    v_and_b32 v10, 0xffff0000, v15
    v_add_f32 v10, {fbits(1e-5)}, v10
    """)
    bf16r(A, "v10", "v10")
    A("v_sqrt_f32 v10, v10")
    bf16r(A, "v10", "v10")
    A("""
    v_rcp_f32 v10, v10
    s_mov_b32 exec_lo, 0x00f0000f
    s_mov_b32 exec_hi, 0xf0000f00
    ds_write_b16 v13, v15
    ds_write_b32 v7, v10
    s_mov_b64 exec, -1
    s_waitcnt lgkmcnt(0)
    s_barrier
    """)
    ts(A, "stats")
    for op in late_pf: A(*op)
    TR, AM, BP, CM, ACC, PK = 48, 64, 72, 88, 160, 96
    for ks in range(2):
        for hf in range(2): A(f"ds_read_b128 {v(TR+ks*8+hf*4,4)}, v8 offset:{ks*128+hf*16}")
        A(f"ds_read_b128 {v(AM+ks*4,4)}, v14 offset:{ks*64}")
    for ks in range(2):
        for c in range(2):
            for jj in range(4):
                b = BC + c*16 + ks*8 + 2*jj
                A(f"v_pk_mul_f32 {v(b,2)}, {v(b,2)}, {v(TR+ks*8+2*jj,2)}")
            for jj in range(4):
                b = BC + c*16 + ks*8 + 2*jj
                A(f"v_cvt_pk_bf16_f32 v{BP+(c*2+ks)*4+jj}, v{b}, v{b+1}")
    for ks in range(2):
        for c in range(2):
            A(f"v_mfma_f32_16x16x32_bf16 {v(CM+4*c,4)}, {v(AM+ks*4,4)}, {v(BP+(c*2+ks)*4,4)}, {v(CM+4*c,4) if ks else 0}")
    for tl in range(4):
        for c in range(2):
            acc = ACC + (tl*2+c)*4
            A(f"v_mfma_f32_16x16x32_bf16 {v(acc,4)}, {v(X+(tl*2)*4,4)}, {v(BP+(c*2)*4,4)}, {v(CM+4*c,4)}")
        for c in range(2):
            acc = ACC + (tl*2+c)*4
            A(f"v_mfma_f32_16x16x32_bf16 {v(acc,4)}, {v(X+(tl*2+1)*4,4)}, {v(BP+(c*2+1)*4,4)}, {v(acc,4)}")
        if tl >= 1: k1_store(A, tl-1, ACC, PK)
    k1_store(A, 3, ACC, PK)

def k1_store(A, tl, ACC, PK):
    acc = ACC + tl*8; pk = PK + tl*4
    for r in range(4): A(f"v_cvt_pk_bf16_f32 v{pk+r}, v{acc+r}, v{acc+4+r}")
    A(f"buffer_store_dwordx4 {v(pk,4)}, v9, {srd(S_WS)}, s48 offen offset:{(tl&1)*256+(tl>>1)*64} sc1", tag="st")

def k1_mod(A):
    A(f"""
    s_and_b32 s38, s2, 7
    s_lshr_b32 s39, s2, 3
    s_mul_i32 s38, s38, 12
    s_add_u32 s36, s38, s39
    s_sub_u32 s36, s36, 16
    v_lshlrev_b32 v4, 2, v0
    buffer_load_dword v8, v4, {srd(S_C)}, 0 offen
    v_lshrrev_b32 v5, 2, v1
    v_mul_u32_u24 v5, 6144, v5
    v_and_b32 v6, 3, v1
    v_lshl_add_u32 v5, v6, 4, v5
    s_mul_i32 s38, s3, {128*6144}
    s_lshl_b32 s39, s36, 6
    s_add_u32 s38, s38, s39
    s_lshl_b32 s39, s3, 13
    s_add_u32 s39, s39, {MW}
    """)
    if opt("touch", 0) == 3: touch(A, nonln=True)
    if opt("moddelay", 0): A("v_mov_b32 v8, v8")
    for i in range(8):
        A(f"s_add_u32 m0, s39, {i*1024}")
        if i: A(f"s_add_u32 s38, s38, {16*6144}")
        A(f"buffer_load_dwordx4 v5, {srd(S_WM)}, s38 offen {opt('mpol','')} lds", tag="wm")
    if opt("pfA", 3) and opt("pfMpos", 0) == 0: wchunks(A, range(opt("pfA", 3)))
    A(f"""
    v_bfe_u32 v6, v1, 2, 2
    v_lshl_add_u32 v6, v3, 3, v6
    v_lshlrev_b32 v6, 6, v6
    v_and_b32 v7, 3, v1
    v_lshl_add_u32 v6, v7, 3, v6
    v_add_u32 v6, s39, v6
    v_add_u32 v4, {MSC}, v4
    s_lshl_b32 s40, s3, 8
    s_add_u32 s40, s40, {MSC}
    v_lshl_add_u32 v7, v3, 4, s40
    v_lshlrev_b32 v9, 16, v8
    v_and_b32 v10, 0xffff0000, v8
    v_mul_f32 v11, {LOG2E}, v9
    v_mul_f32 v12, {LOG2E}, v10
    v_exp_f32 v11, v11
    v_exp_f32 v12, v12
    v_add_f32 v11, 1.0, v11
    v_add_f32 v12, 1.0, v12
    v_rcp_f32 v11, v11
    v_rcp_f32 v12, v12
    v_mul_f32 v9, v9, v11
    v_mul_f32 v10, v10, v12
    v_cvt_pk_bf16_f32 v9, v9, v10
    ds_write_b32 v4, v9
    """)
    SF, WF, ACC = 16, 32, 64
    A("s_waitcnt lgkmcnt(0)")
    for ks in range(4): A(f"ds_read_b128 {v(SF+4*ks,4)}, v7 offset:{ks*64}")
    A(f"""
    v_and_b32 v10, 31, v1
    s_lshr_b32 s40, s36, 4
    s_and_b32 s41, s36, 15
    s_lshl_b32 s41, s41, 5
    v_add_u32 v10, s41, v10
    v_lshrrev_b32 v15, 8, v10
    v_lshlrev_b32 v15, 8, v15
    v_bfe_u32 v72, v10, 2, 2
    v_lshl_add_u32 v15, v72, 6, v15
    v_bfe_u32 v72, v10, 4, 4
    v_lshl_add_u32 v15, v72, 2, v15
    v_and_b32 v72, 3, v10
    v_add_u32 v15, v15, v72
    v_bfe_u32 v72, v10, 3, 2
    v_lshlrev_b32 v73, 7, v72
    v_bfe_u32 v72, v10, 7, 2
    v_lshl_add_u32 v73, v72, 5, v73
    v_and_b32 v72, 7, v10
    v_lshl_add_u32 v73, v72, 2, v73
    v_bfe_u32 v72, v10, 5, 2
    v_add_u32 v73, v73, v72
    s_cmp_lt_u32 s40, 2
    s_cselect_b64 vcc, -1, 0
    v_cndmask_b32 v15, v15, v73, vcc
    s_cmp_eq_u32 s40, 5
    s_cselect_b64 vcc, -1, 0
    v_cndmask_b32 v10, v15, v10, vcc
    v_lshlrev_b32 v10, 2, v10
    s_lshl_b32 s41, s40, 11
    s_add_u32 s41, s41, {WS_MOD}
    s_cmp_eq_u32 s40, 1
    s_cselect_b32 s42, 1.0, 0
    s_cmp_eq_u32 s40, 4
    s_cselect_b32 s42, 1.0, s42
    s_lshl_b32 s43, s3, 7
    s_add_u32 s43, s43, {MRED}
    v_lshl_add_u32 v9, v2, 2, s43
    v_and_b32 v74, 31, v1
    v_lshlrev_b32 v74, 2, v74
    v_add_u32 v74, {MRED}, v74
    """)
    A.wait_tag("wm")
    if opt("touch", 0) == 2: touch(A)
    if opt("touch", 0) == 4: touch(A, nonln=True)
    if opt("pfA", 3) and opt("pfMpos", 0) == 1: wchunks(A, range(opt("pfA", 3)))
    for ks in range(4):
        for nt in range(2):
            b = WF + (ks*2+nt)*4
            off = ks*2048 + nt*32
            A(f"ds_read_b64_tr_b16 {v(b,2)}, v6 offset:{off}\nds_read_b64_tr_b16 {v(b+2,2)}, v6 offset:{off+256}")
    for ks in range(4):
        for nt in range(2):
            A(f"v_mfma_f32_16x16x32_bf16 {v(ACC+4*nt,4)}, {v(SF+4*ks,4)}, {v(WF+(ks*2+nt)*4,4)}, {v(ACC+4*nt,4) if ks else 0}")
    skip = A.label("modskip")
    A(f"""
    s_mov_b64 exec, 0xffff
    ds_write_b32 v9, v{ACC}
    ds_write_b32 v9, v{ACC+4} offset:64
    s_mov_b64 exec, -1
    s_waitcnt lgkmcnt(0)
    s_barrier
    s_cmp_lg_u32 s3, 0
    s_cbranch_scc1 {skip}
    ds_read_b32 v11, v74
    ds_read_b32 v12, v74 offset:128
    ds_read_b32 v13, v74 offset:256
    ds_read_b32 v14, v74 offset:384
    v_add_f32 v11, v11, v12
    v_add_f32 v13, v13, v14
    v_add_f32 v11, v11, v13
    """)
    bf16r(A, "v11", "v11")
    A("v_add_f32 v11, s42, v11")
    bf16r(A, "v11", "v11")
    A(f"""
    s_mov_b32 exec_hi, 0
    buffer_store_dword v11, v10, {srd(S_WS)}, s41 offen sc1
    s_mov_b64 exec, -1
    {skip}:
    """)

K2 = dict(BS=16, CC=24, CS=26, TW=28, BH=44, U=64, XR=128, CA=136, GA=168, CB=176, SB=184, Z=192, XF=224)
def k2_pre(A):
    r = K2
    A("""
    s_and_b32 s36, s2, 7
    s_bfe_u32 s37, s2, 0x20003
    s_lshl_b32 s37, s37, 3
    s_add_u32 s36, s36, s37
    s_lshr_b32 s37, s2, 5
    s_sub_u32 s39, 64, s36
    s_cmp_eq_u32 s36, 0
    s_cselect_b32 s39, 32, s39
    s_cselect_b64 s[40:41], -1, 0
    s_lshl_b32 s42, s37, 2
    s_add_u32 s43, s42, s3
    s_lshl_b32 s43, s43, 6
    s_add_u32 s44, s43, s36
    s_add_u32 s45, s43, s39
    s_lshl_b32 s44, s44, 10
    s_lshl_b32 s45, s45, 10
    v_lshlrev_b32 v4, 5, v2
    v_lshl_add_u32 v4, v3, 3, v4
    """)
    for uu in range(2):
        for nt in range(2):
            A(f"buffer_load_dwordx2 {v(r['XR']+(uu*2+nt)*2,2)}, v4, {srd(S_X)}, s{44+uu} offen offset:{nt*512}")
    A("""
    v_lshrrev_b32 v5, 2, v2
    v_add_u32 v5, s42, v5
    v_lshlrev_b32 v5, 6, v5
    v_and_b32 v6, 2, v2
    v_cmp_ne_u32 vcc, 0, v6
    v_mov_b32 v7, s36
    v_mov_b32 v8, s39
    v_cndmask_b32 v7, v7, v8, vcc
    v_add_u32 v5, v5, v7
    v_cvt_f32_u32 v5, v5
    v_mul_f32 v5, 0x3a000000, v5
    v_and_b32 v6, 1, v2
    v_cvt_f32_u32 v6, v6
    v_mul_f32 v6, 0x3e800000, v6
    v_mov_b32 v7, 0xbe800000
    v_mov_b32 v8, 0x3e800000
    v_cndmask_b32 v7, v7, v8, vcc
    v_cndmask_b32 v7, v7, 0, s[40:41]
    v_add_f32 v7, v7, v6
    v_cndmask_b32 v8, 1.0, 0, vcc
    v_cndmask_b32 v9, 0, 1.0, vcc
    v_cndmask_b32 v8, 1.0, v8, s[40:41]
    v_cndmask_b32 v9, 1.0, v9, s[40:41]
    v_lshlrev_b32 v10, 2, v3
    v_cvt_f32_u32 v10, v10
    """)
    T = 64
    NQ = 72
    for ks in range(2):
        for i in range(4): A(f"v_add_f32 v{NQ+ks*4+i}, {fbits(16*ks+i)}, v10")
    for ks in range(2):
        for i in range(4):
            A(f"v_fma_f32 v{T+2*i}, v{NQ+ks*4+i}, v5, v6\nv_fma_f32 v{T+2*i+1}, v{NQ+ks*4+i}, v5, v7")
        for i in range(8): A(f"v_cos_f32 v{T+i}, v{T+i}")
        for i in range(4):
            A(f"v_pk_mul_f32 {v(T+2*i,2)}, {v(T+2*i,2)}, v[8:9]")
            A(f"v_cvt_pk_bf16_f32 v{r['BS']+ks*4+i}, v{T+2*i}, v{T+2*i+1}")
    A("v_cvt_f32_u32 v12, v2\nv_mul_f32 v13, 0x3d800000, v12")
    for j in range(4): A(f"v_mul_f32 v{T+j}, v{NQ+j}, v13")
    for j in range(4): A(f"v_sin_f32 v{T+4+j}, v{T+j}")
    for j in range(4): A(f"v_cos_f32 v{T+j}, v{T+j}")
    for jj in range(2):
        A(f"v_cvt_pk_bf16_f32 v{r['CC']+jj}, v{T+2*jj}, v{T+2*jj+1}\nv_cvt_pk_bf16_f32 v{r['CS']+jj}, v{T+4+2*jj}, v{T+5+2*jj}")
    A("v_mul_f32 v13, 0x3b000000, v12\ns_lshl_b32 s46, s3, 3\nv_cvt_f32_u32 v14, s46")
    for t in range(8):
        A(f"v_add_f32 v11, {fbits(t)}, v14\nv_mul_f32 v{T+t}, v11, v13")
    for t in range(8):
        A(f"v_cos_f32 v{r['TW']+2*t}, v{T+t}\nv_sin_f32 v{r['TW']+2*t+1}, v{T+t}")
    for nt in range(2):
        A(f"v_add_f32 v13, {fbits(16*nt)}, v12\nv_mul_f32 v13, 0x3d000000, v13")
        for ks in range(2):
            for i in range(4): A(f"v_mul_f32 v{T+i}, v{NQ+ks*4+i}, v13")
            for i in range(4): A(f"v_sin_f32 v{T+4+i}, v{T+i}")
            for i in range(4): A(f"v_cos_f32 v{T+i}, v{T+i}")
            for i in range(4): A(f"v_cvt_pk_bf16_f32 v{r['BH']+(nt*2+ks)*4+i}, v{T+i}, v{T+4+i}")
    A(f"""
    v_lshlrev_b32 v5, 13, v3
    v_lshl_add_u32 v5, v2, 4, v5
    s_mul_i32 s46, s36, {SLOTSTR()}
    s_lshl_b32 s47, s3, 9
    s_add_u32 s46, s46, s47
    s_add_u32 s46, s46, {WS_U}
    s_add_u32 s47, s46, 4096
    s_add_u32 s48, s46, 32768
    s_add_u32 s49, s46, {32768+4096}
    v_lshlrev_b32 v6, 7, v3
    s_lshl_b32 s50, s3, 9
    s_add_u32 s50, s50, {WS_MOD}
    s_cmp_eq_u32 s2, 0
    s_cselect_b32 s59, s50, {WS_SIZE}
    v_lshlrev_b32 v7, 4, v1
    v_lshl_add_u32 v8, v3, 5, v2
    v_mul_u32_u24 v8, 144, v8
    s_lshl_b32 s51, s3, 5
    s_add_u32 s51, s51, {K2EX}
    v_add_u32 v8, s51, v8
    v_mul_u32_u24 v9, 144, v2
    v_lshl_add_u32 v9, v3, 4, v9
    s_mul_i32 s51, s3, {32*144}
    s_add_u32 s51, s51, {K2EX}
    v_add_u32 v9, s51, v9
    s_mul_i32 s51, s3, 2080
    s_add_u32 s51, s51, {K2HB}
    v_add_u32 v10, s51, v4
    v_and_b32 v11, 7, v0
    v_lshrrev_b32 v12, 3, v0
    v_mul_u32_u24 v13, 1040, v11
    v_lshl_add_u32 v13, v12, 4, v13
    v_add_u32 v13, {K2HB}, v13
    v_lshlrev_b32 v11, 4, v11
    v_lshl_add_u32 v11, v12, 9, v11
    s_lshl_b32 s51, s36, 3
    s_add_u32 s51, s51, s37
    s_lshl_b32 s52, s51, 13
    s_lshl_b32 s53, s3, 11
    s_add_u32 s52, s52, s53
    s_add_u32 s52, s52, {WS_X1}
    s_add_u32 s53, s52, 1024
    s_lshr_b32 s54, s51, 2
    s_lshl_b32 s54, s54, 15
    s_and_b32 s55, s51, 3
    s_lshl_b32 s55, s55, 7
    s_add_u32 s54, s54, s55
    s_add_u32 s54, s54, {WS_H2}
    s_add_u32 s55, s54, 16384
    s_mov_b32 s56, {WS_MOD+2*2048}
    s_mov_b32 s57, {WS_MOD+3*2048}
    s_mov_b32 s58, {WS_MOD+4*2048}
    s_lshl_b32 s62, s51, 7
    s_add_u32 s62, s62, {WS_F2}
    """)
    for uu in range(2):
        for nt in range(2):
            xr = r['XR'] + (uu*2+nt)*2; xf = r['XF'] + (uu*2+nt)*4
            A(f"v_lshlrev_b32 v{xf}, 16, v{xr}\nv_and_b32 v{xf+1}, 0xffff0000, v{xr}\nv_lshlrev_b32 v{xf+2}, 16, v{xr+1}\nv_and_b32 v{xf+3}, 0xffff0000, v{xr+1}")

def k2_main(A):
    r = K2
    U, Z = r['U'], r['Z']
    SAR = 96 + 0
    for hh in range(2):
        for ks in range(2):
            for i in range(4):
                A(f"buffer_load_dwordx4 {v(U+((ks*2+hh)*4+i)*4,4)}, v5, {srd(S_WS)}, s{46+ks*2+(i>>1)} offen offset:{(i&1)*2048+hh*256} sc1")
    for t in range(8):
        A(f"buffer_load_dwordx4 {a(4*t,4)}, v6, {srd(S_WS)}, s59 offen offset:{t*16} sc1")
    for t in range(8):
        A(f"buffer_load_dwordx4 {v(r['CA']+4*t,4)}, v6, {srd(S_WS)}, s50 offen offset:{2048+t*16} sc1")
    for nm, sr in (("GA", 56), ("CB", 58), ("SB", 57)):
        for nt in range(2):
            A(f"buffer_load_dwordx4 {v(r[nm]+nt*4,4)}, v7, {srd(S_WS)}, s{sr} offen offset:{nt*1024} sc1")
    pfl = [op for ch in range(opt("pfA", 3) + opt("pf1", 0), opt("pfB", 5)) for op in wchunk_ops(ch, ch, f"w{ch}")]
    if opt("pfBpos", 0) == 0:
        for op in pfl: A(*op)
    if opt("pfBpos", 0) in (0, 3): pfl = []
    if opt("touch", 0) == 7 and opt("tlate", 0) == 1: touch_late(A)
    if TS and opt("tsu", 1): A(f"v_mov_b32 v{U+60}, v{U+60}"); ts(A, "uarr")
    for hh in range(2):
        for ks in range(2):
            b = U + (ks*2+hh)*16
            for i in range(4):
                for t in range(i+1, 4): A(f"v_swap_b32 v{b+4*i+t}, v{b+4*t+i}")
        for t in range(4):
            for ks in range(2):
                z = Z + (hh*4+t)*4
                A(f"v_mfma_f32_16x16x32_bf16 {v(z,4)}, {v(U+(ks*2+hh)*16+4*t,4)}, {v(r['BS']+ks*4,4)}, {v(z,4) if ks else 0}")
                if pfl and (hh == 1 or opt("pfBpos", 0) == 2): A(*pfl.pop(0))
    for op in pfl: A(*op)
    ZP, P, Q = 64, 80, 112
    for t in range(8):
        for h in range(2): A(f"v_pk_mul_f32 {v(Z+4*t+2*h,2)}, {v(Z+4*t+2*h,2)}, {v(r['CA']+4*t+2*h,2)}")
    sk = A.label("k2sa")
    A(f"s_cmp_lg_u32 s2, 0\ns_cbranch_scc1 {sk}")
    A("s_mov_b32 s59, 0x45000000\ns_mov_b32 exec_lo, 0x00010001\ns_mov_b32 exec_hi, 0x00010001")
    for i in range(32):
        A(f"v_accvgpr_read_b32 v{P}, a{i}\nv_fma_f32 v{Z+i}, v{P}, s59, v{Z+i}")
    A(f"s_mov_b64 exec, -1\n{sk}:")
    for t in range(8):
        A(f"v_cvt_pk_bf16_f32 v{ZP+2*t}, v{Z+4*t}, v{Z+4*t+1}\nv_cvt_pk_bf16_f32 v{ZP+2*t+1}, v{Z+4*t+2}, v{Z+4*t+3}")
        if t >= 1:
            A(f"v_mfma_f32_16x16x16_bf16 {v(P+4*(t-1),4)}, {v(ZP+2*(t-1),2)}, {v(r['CC'],2)}, 0")
            A(f"v_mfma_f32_16x16x16_bf16 {v(Z+4*(t-1),4)}, {v(ZP+2*(t-1),2)}, {v(r['CS'],2)}, 0")
    A(f"v_mfma_f32_16x16x16_bf16 {v(P+28,4)}, {v(ZP+14,2)}, {v(r['CC'],2)}, 0")
    A(f"v_mfma_f32_16x16x16_bf16 {v(Z+28,4)}, {v(ZP+14,2)}, {v(r['CS'],2)}, 0")
    Q = Z; W = 112
    for hh in range(2):
        for uu in range(2):
            idx = [(P+4*(hh*4+t4)+2*uu, Q+4*(hh*4+t4)+2*uu, r['TW']+2*(hh*4+t4), W+uu*8+hh*4+t4) for t4 in range(4)]
            for p, q, tw, w in idx: A(f"v_pk_add_f32 {v(p,2)}, {v(p,2)}, {v(q,2)} op_sel:[0,1] op_sel_hi:[1,0] neg_hi:[0,1]")
            for p, q, tw, w in idx: A(f"v_pk_mul_f32 {v(q,2)}, {v(p,2)}, {v(tw,2)} op_sel:[0,0] op_sel_hi:[1,0]")
            for p, q, tw, w in idx: A(f"v_pk_fma_f32 {v(q,2)}, {v(p,2)}, {v(tw,2)}, {v(q,2)} op_sel:[1,1,0] op_sel_hi:[0,1,1] neg_hi:[1,0,0]")
            for p, q, tw, w in idx: A(f"v_cvt_pk_bf16_f32 v{w}, v{q}, v{q+1}")
            A(f"ds_write_b128 v8, {v(W+uu*8+hh*4,4)} offset:{uu*16*144+hh*16}")
    A("s_waitcnt lgkmcnt(0)\ns_barrier")
    ts(A, "h1")
    AF, Y = 80, 96
    for uu in range(2):
        for ks in range(2):
            A(f"ds_read_b128 {v(AF+(uu*2+ks)*4,4)}, v9 offset:{uu*16*144+ks*64}")
    for uu in range(2):
        for ks in range(2):
            for nt in range(2):
                y = Y + (uu*2+nt)*4
                A(f"v_mfma_f32_16x16x32_bf16 {v(y,4)}, {v(AF+(uu*2+ks)*4,4)}, {v(r['BH']+(nt*2+ks)*4,4)}, {v(y,4) if ks else 0}")
    XP = 112
    for uu in range(2):
        for nt in range(2):
            y = Y + (uu*2+nt)*4; xf = r['XF'] + (uu*2+nt)*4; g = r['GA'] + nt*4
            for h in range(2):
                A(f"v_pk_fma_f32 {v(y+2*h,2)}, {v(y+2*h,2)}, {v(g+2*h,2)}, {v(xf+2*h,2)}")
        y = Y + uu*8; t = 64 + 4*uu
        A(f"v_pk_add_f32 {v(t,2)}, {v(y,2)}, {v(y+2,2)}\nv_pk_mul_f32 {v(t+2,2)}, {v(y,2)}, {v(y,2)}")
        A(f"v_pk_add_f32 {v(t,2)}, {v(t,2)}, {v(y+4,2)}\nv_pk_fma_f32 {v(t+2,2)}, {v(y+2,2)}, {v(y+2,2)}, {v(t+2,2)}")
        A(f"v_pk_add_f32 {v(t,2)}, {v(t,2)}, {v(y+6,2)}\nv_pk_fma_f32 {v(t+2,2)}, {v(y+4,2)}, {v(y+4,2)}, {v(t+2,2)}")
        A(f"v_add_f32 v{72+2*uu}, v{t}, v{t+1}\nv_pk_fma_f32 {v(t+2,2)}, {v(y+6,2)}, {v(y+6,2)}, {v(t+2,2)}")
        A(f"v_add_f32 v{73+2*uu}, v{t+2}, v{t+3}")
    def x1_store(uu, nt):
        y = Y + (uu*2+nt)*4; xp = XP + (uu*2+nt)*2
        A(f"v_cvt_pk_bf16_f32 v{xp}, v{y}, v{y+1}\nv_cvt_pk_bf16_f32 v{xp+1}, v{y+2}, v{y+3}")
        A(f"buffer_store_dwordx2 {v(xp,2)}, v4, {srd(S_WS)}, s{52+uu} offen offset:{nt*512} sc1", tag="st")
    A("v_permlane16_swap_b32 v72, v73\nv_permlane16_swap_b32 v74, v75\nv_add_f32 v72, v72, v73\nv_add_f32 v74, v74, v75")
    x1_store(0, 0)
    A("v_permlane32_swap_b32 v72, v74\nv_add_f32 v72, v72, v74")
    x1_store(0, 1)
    A("v_add_f32 v72, v72, v72 row_ror:8")
    A(f"v_mov_b32 v76, 0x3b000000\nv_mov_b32 v77, {fbits(1e-5)}")
    A("v_add_f32 v72, v72, v72 row_ror:4")
    x1_store(1, 0)
    A("v_add_f32 v72, v72, v72 row_ror:2")
    x1_store(1, 1)
    A("""
    v_add_f32 v72, v72, v72 row_ror:1
    v_mul_f32 v72, v72, v76
    v_readlane_b32 s40, v72, 0
    v_readlane_b32 s41, v72, 16
    v_readlane_b32 s42, v72, 32
    v_readlane_b32 s43, v72, 48
    v_mov_b32 v64, s40
    v_mov_b32 v66, s42
    v_fma_f32 v65, -v64, v64, s41
    v_fma_f32 v67, -v66, v66, s43
    v_max_f32 v65, 0, v65
    v_max_f32 v67, 0, v67
    v_add_f32 v65, v65, v77
    v_add_f32 v67, v67, v77
    v_rsq_f32 v65, v65
    v_rsq_f32 v67, v67
    v_mul_f32 v64, -v64, v65
    v_mul_f32 v66, -v66, v67
    """)
    HP = 120
    for uu in range(2):
        for nt in range(2):
            y = Y + (uu*2+nt)*4
            for h in range(2):
                A(f"v_pk_fma_f32 {v(y+2*h,2)}, {v(y+2*h,2)}, {v(64+2*uu,2)}, {v(64+2*uu,2)} op_sel:[0,1,0] op_sel_hi:[1,1,0]")
            for h in range(2):
                A(f"v_pk_fma_f32 {v(y+2*h,2)}, {v(y+2*h,2)}, {v(r['CB']+nt*4+2*h,2)}, {v(r['SB']+nt*4+2*h,2)}")
            hp = HP + (uu*2+nt)*2
            A(f"v_cvt_pk_bf16_f32 v{hp}, v{y}, v{y+1}\nv_cvt_pk_bf16_f32 v{hp+1}, v{y+2}, v{y+3}")
            A(f"ds_write_b64 v10, {v(hp,2)} offset:{uu*1040+nt*512}")
    A("s_waitcnt lgkmcnt(0)\ns_barrier")
    A("ds_read_b128 v[64:67], v13\nds_read_b128 v[68:71], v13 offset:512")
    A(f"buffer_store_dwordx4 v[64:67], v11, {srd(S_WS)}, s54 offen sc1", tag="st")
    A(f"buffer_store_dwordx4 v[68:71], v11, {srd(S_WS)}, s55 offen sc1", tag="st")

WD_ORDER = [37, 38, 39] + list(range(13, 37)) + list(range(0, 13)) + [37, 38, 39]
def k4_ids(A):
    if opt("R", 4) == 4:
        A("s_and_b32 s36, s2, 7\ns_lshl_b32 s36, s36, 2\ns_bfe_u32 s38, s2, 0x20003\ns_add_u32 s36, s36, s38\ns_lshr_b32 s37, s2, 5")
    else:
        A("s_bfe_u32 s36, s2, 0x20001\ns_lshl_b32 s36, s36, 3\ns_bfe_u32 s38, s2, 0x30003\ns_add_u32 s36, s36, s38\ns_and_b32 s37, s2, 1\ns_lshl_b32 s37, s37, 2\ns_lshr_b32 s38, s2, 6\ns_add_u32 s37, s37, s38")
    A("s_lshr_b32 s38, s3, 1\ns_and_b32 s39, s3, 1")
def wd_setup(A):
    k4_ids(A)
    A(f"""
    v_lshrrev_b32 v244, 3, v1
    v_lshlrev_b32 v{V_D}, 10, v244
    v_and_b32 v245, 7, v1
    v_lshlrev_b32 v244, 1, v244
    v_and_b32 v244, 4, v244
    v_xor_b32 v245, v245, v244
    v_lshl_add_u32 v{V_D}, v245, 4, v{V_D}
    s_mul_i32 s{S_DG}, s38, {688*1024}
    s_lshl_b32 s41, s37, 7
    s_add_u32 s{S_DG}, s{S_DG}, s41
    s_lshl_b32 s41, s39, 13
    s_add_u32 s{S_DG}, s{S_DG}, s41
    s_lshl_b32 s{S_DL}, s3, 10
    """)
def wd_op(step, tag):
    t = f"s_add_u32 m0, s{S_DL}, {WD_ORDER[step]*4096}\ns_add_u32 s{S_T}, s{S_DG}, {step*16384}\n"
    t += f"buffer_load_dwordx4 v{V_D}, {srd(S_WD)}, s{S_T} offen {opt('dpol','')} lds"
    return (t, tag)

def k3_ids(A):
    A(sl_expr() + "\ns_mov_b32 s37, s38\n" + rb_expr())
def k3_pre(A):
    wd_setup(A)
    k3_ids(A)
    A(f"""
    s_lshl_b32 s45, s36, 2
    s_add_u32 s45, s45, s3
    s_lshl_b32 s46, s45, 15
    s_add_u32 s46, s46, {WS_H2}
    v_lshlrev_b32 v4, 4, v1
    v_bfe_u32 v5, v1, 1, 1
    v_mul_u32_u24 v5, {UOFF}, v5
    v_bfe_u32 v6, v1, 2, 2
    v_bfe_u32 v7, v1, 5, 1
    v_lshl_add_u32 v6, v7, 3, v6
    v_mul_u32_u24 v6, 192, v6
    v_add_u32 v5, v5, v6
    v_bfe_u32 v6, v1, 4, 1
    v_lshl_add_u32 v5, v6, 4, v5
    v_and_b32 v6, 1, v1
    v_lshl_add_u32 v5, v6, 3, v5
    v_add_u32 v6, {2*SLOT}, v5
    v_add_u32 v7, {4*SLOT}, v5
    s_mul_i32 s47, s45, {86*1024}
    s_mul_i32 s48, s37, {6*1024}
    s_add_u32 s47, s47, s48
    s_add_u32 s47, s47, {WS_ACT}
    s_add_u32 s48, s47, 2048
    s_add_u32 s51, s47, 4096
    s_cmp_eq_u32 s37, 14
    s_cselect_b32 s48, {WS_SIZE}, s48
    s_cselect_b32 s51, {WS_SIZE}, s51
    v_mov_b32 v14, {LOG2E}
    v_mov_b32 v15, {LOG2E}
    s_lshl_b32 s61, s36, 4
    s_add_u32 s61, s61, s37
    s_lshl_b32 s61, s61, 7
    s_add_u32 s61, s61, {WS_F3}
    s_lshl_b32 s62, s36, 11
    s_add_u32 s62, s62, {WS_F2}
    """)

def k3_main(A):
    ACC, AF, NAF = 16, 112, 6
    T, PK = 136, 152
    idle, done = A.label("k3idle"), A.label("k3done")
    A(f"s_cmp_eq_u32 s37, 15\ns_cbranch_scc1 {idle}")
    def h2_op(k):
        t = "s_add_u32 s46, s46, 4096\n" if (k and k % 4 == 0) else ""
        return (t + f"buffer_load_dwordx4 {a(4*k,4)}, v4, {srd(S_WS)}, s46 offen offset:{(k%4)*1024} sc1", None)
    H0 = opt("h0", 12)
    for k in range(H0): A(h2_op(k)[0])
    order = [(k, j) for k in range(32) for j in range(6)]
    def slot_of(k):
        ch = k // 4
        return ch if ch < 6 else ch - 6
    def frag_read(n):
        k, j = order[n]
        sl = slot_of(k)
        base = ("v5", "v6", "v7")[sl // 2]
        off = (sl % 2)*SLOT + (k % 4)*16*192 + j*32
        b = AF + (n % NAF)*4
        return f"ds_read_b64_tr_b16 {v(b,2)}, {base} offset:{off}\nds_read_b64_tr_b16 {v(b+2,2)}, {base} offset:{off+4*192}"
    side = []
    n0 = 0
    for k in range(H0, 32): side.append((n0, *h2_op(k))); n0 += 2
    pfB = opt("pfB", 5) + opt("pf3", 0)
    for ch in range(pfB, 6):
        for op in wchunk_ops(ch, ch, f"w{ch}"): side.append((n0, *op)); n0 += 2
    n0 = max(n0, 48)
    for ch in (6, 7):
        for op in wchunk_ops(ch, ch-6, f"w{ch}"): side.append((n0, *op)); n0 += 2
    for st_ in range(0, 3): side.append((n0, *wd_op(st_, "wd"))); n0 += 3
    n0 = max(n0, 96)
    for st_ in range(3, 14): side.append((n0, *wd_op(st_, "wd"))); n0 += 3
    n0 = max(n0, 140)
    for st_ in range(14, 20): side.append((n0, *wd_op(st_, "wd"))); n0 += 3
    n0 = max(n0, 164)
    for st_ in range(20, 27): side.append((n0, *wd_op(st_, "wd"))); n0 += 3
    PF = NAF - 1
    late = opt("pfBpos", 0) == 3 or opt("pf3", 0)
    if late:
        A("v_accvgpr_read_b32 v13, a0\ns_barrier")
    ts(A, "issued")
    for n in range(PF): A(frag_read(n))
    tc(A, "first")
    for n, (k, j) in enumerate(order):
        acc = ACC + 16*j
        A(f"v_mfma_f32_32x32x16_bf16 {v(acc,16)}, {v(AF+(n%NAF)*4,4)}, {a(4*k,4)}, {v(acc,16) if k else 0}")
        if n == 0: ts(A, "first")
        extra = [ch for ch in range(pfB, 5) if n == 24*ch - 6]
        for ch in extra:
            A.wait_tag(f"w{ch}"); A("s_barrier")
        if n in (47, 95, 139, 163):
            if n == 95 and pfB <= 5: A.wait_tag("w5")
            if n == 139: A.wait_tag("w6")
            if n == 163: A.wait_tag("w7")
            A("s_barrier")
            ts(A, f"n{n}")
        if n + PF < 192: A(frag_read(n+PF))
        if side and side[0][0] <= n:
            _, t, tag = side.pop(0); A(t, tag=tag)
    assert not side, side
    ts(A, "mfma")
    tc(A, "mfma")
    def epi(j):
        acc = ACC + 16*j; pk = PK + 4*(j & 1); t0 = T + 8*(j & 1)
        for hf in range(2):
            g = acc + 8*hf; t = t0 + 4*hf
            for h in range(2): A(f"v_pk_mul_f32 {v(t+2*h,2)}, {v(g+2*h,2)}, v[14:15]")
        for i in range(8): A(f"v_exp_f32 v{t0+i}, v{t0+i}")
        for hf in range(2):
            g, u = acc + 8*hf, acc + 8*hf + 4
            for h in range(2): A(f"v_pk_mul_f32 {v(g+2*h,2)}, {v(g+2*h,2)}, {v(u+2*h,2)}")
        for h in range(4): A(f"v_pk_add_f32 {v(t0+2*h,2)}, {v(t0+2*h,2)}, 1.0 op_sel_hi:[1,0]")
        for i in range(8): A(f"v_rcp_f32 v{t0+i}, v{t0+i}")
        for hf in range(2):
            g = acc + 8*hf; t = t0 + 4*hf
            for h in range(2): A(f"v_pk_mul_f32 {v(g+2*h,2)}, {v(g+2*h,2)}, {v(t+2*h,2)}")
        for hf in range(2):
            g = acc + 8*hf
            A(f"v_cvt_pk_bf16_f32 v{pk+2*hf}, v{g}, v{g+1}\nv_cvt_pk_bf16_f32 v{pk+2*hf+1}, v{g+2}, v{g+3}")
        A(f"buffer_store_dwordx4 {v(pk,4)}, v4, {srd(S_WS)}, s{(47,48,51)[j//2]} offen offset:{(j%2)*1024} sc1", tag="st")
    for j in range(6): epi(j)
    ts(A, "stiss3")
    A(f"s_branch {done}\n{idle}:")
    A.reset()
    for st_ in range(27): A(*wd_op(st_, "wd"))
    A(f"{done}:")
    A.reset()

def k4_pre(A):
    k4_ids(A)
    A(f"""
    s_lshl_b32 s44, s36, 1
    s_add_u32 s44, s44, s39
    s_mul_i32 s44, s44, {86*1024}
    s_mul_i32 s45, s38, {43*1024}
    s_add_u32 s44, s44, s45
    s_add_u32 s44, s44, {WS_ACT}
    v_lshlrev_b32 v4, 4, v1
    v_lshrrev_b32 v8, 3, v0
    v_and_b32 v9, 7, v0
    s_lshl_b32 s46, s36, 16
    s_lshl_b32 s47, s37, 7
    s_add_u32 s46, s46, s47
    s_add_u32 s46, s46, {WS_X1}
    s_add_u32 s48, s46, 32768
    v_lshlrev_b32 v10, 10, v8
    v_lshl_add_u32 v10, v9, 4, v10
    v_lshlrev_b32 v11, 5, v9
    s_lshl_b32 s47, s37, 8
    s_add_u32 s47, s47, {WS_MOD+5*2048}
    s_sub_u32 s49, 64, s36
    s_cmp_eq_u32 s36, 0
    s_cselect_b32 s49, 32, s49
    v_and_b32 v12, 1, v8
    v_cmp_ne_u32 vcc, 0, v12
    v_mov_b32 v12, s36
    v_mov_b32 v13, s49
    v_cndmask_b32 v12, v12, v13, vcc
    v_lshrrev_b32 v13, 1, v8
    v_lshl_add_u32 v12, v13, 6, v12
    v_lshlrev_b32 v12, 10, v12
    v_lshl_add_u32 v12, v9, 4, v12
    s_lshl_b32 s49, s37, 7
    s_add_u32 s50, s49, 0x100000
    v_bfe_u32 v6, v1, 2, 2
    v_bfe_u32 v7, v1, 5, 1
    v_lshl_add_u32 v7, v7, 2, v6
    v_lshlrev_b32 v7, 7, v7
    v_bfe_u32 v13, v1, 4, 1
    v_lshl_add_u32 v7, v13, 5, v7
    v_and_b32 v13, 3, v1
    v_lshl_add_u32 v7, v13, 3, v7
    s_lshl_b32 s41, s38, 11
    v_add_u32 v7, s41, v7
    v_bfe_u32 v13, v1, 3, 1
    v_lshlrev_b32 v13, 6, v13
    v_xor_b32 v6, v7, v13
    v_xor_b32 v7, 64, v6
    v_add_u32 v14, 0x10000, v6
    v_add_u32 v15, 0x10000, v7
    v_add_u32 v16, 0x20000, v6
    v_add_u32 v17, 0x20000, v7
    s_lshr_b32 s62, s36, 1
    s_lshl_b32 s62, s62, 11
    s_add_u32 s62, s62, {WS_F3}
    """)

def wd_rest(A):
    for st_ in range(27, 40): A(*wd_op(st_, "dr"))

def k4_main(A):
    ACC, AF, NAF = 32, 64, 6
    XG = 88
    def act_op(k):
        t = "s_add_u32 s44, s44, 4096\n" if (k and k % 4 == 0) else ""
        return (t + f"buffer_load_dwordx4 {a(4*k,4)}, v4, {srd(S_WS)}, s44 offen offset:{(k%4)*1024} sc1", None)
    H0 = opt("a0", 14)
    for k in range(H0): A(act_op(k)[0])
    def frag_read(n):
        k, t = n // 2, n % 2
        ad = WD_ORDER[k]*4096
        base = (("v6", "v7"), ("v14", "v15"), ("v16", "v17"))[ad >> 16][t]
        off = ad & 0xffff
        b = AF + (n % NAF)*4
        return f"ds_read_b64_tr_b16 {v(b,2)}, {base} offset:{off}\nds_read_b64_tr_b16 {v(b+2,2)}, {base} offset:{off+1024}"
    side = []
    n0 = 0
    for k in range(H0, 43): side.append((n0, *act_op(k))); n0 += opt("astep", 1)
    PF = NAF - 1
    N = 86
    ts(A, "issued4")
    for n in range(PF): A(frag_read(n))
    for n in range(N):
        k, t = n // 2, n % 2
        A(f"v_mfma_f32_32x32x16_bf16 {v(ACC+16*t,16)}, {v(AF+(n%NAF)*4,4)}, {a(4*k,4)}, {v(ACC+16*t,16) if k else 0}")
        if n == 0: ts(A, "first4")
        if n == 48:
            A.wait_tag("dr"); A("s_barrier")
            for st_ in range(40, 43): A(*wd_op(st_, "do"))
            A(f"buffer_load_dwordx4 {v(XG,4)}, v10, {srd(S_WS)}, s46 offen sc1")
            A(f"buffer_load_dwordx4 {v(XG+4,4)}, v10, {srd(S_WS)}, s48 offen sc1")
            A(f"buffer_load_dwordx4 {v(XG+8,4)}, v11, {srd(S_WS)}, s47 offen sc1")
            A(f"buffer_load_dwordx4 {v(XG+12,4)}, v11, {srd(S_WS)}, s47 offen offset:16 sc1")
        if n == 74:
            A.wait_tag("do"); A("s_barrier")
        if n + PF < N: A(frag_read(n+PF))
        if side and side[0][0] <= n:
            _, tx, tag = side.pop(0); A(tx, tag=tag)
    assert not side
    ts(A, "mfma4")
    RS = 272
    A(f"""
    s_lshl_b32 s51, s38, 1
    s_add_u32 s51, s51, s39
    s_mul_i32 s51, s51, {32*RS}
    v_and_b32 v6, 31, v1
    v_mul_u32_u24 v6, {RS}, v6
    v_bfe_u32 v7, v1, 5, 1
    v_lshl_add_u32 v6, v7, 4, v6
    v_add_u32 v6, s51, v6
    v_mul_u32_u24 v7, {RS}, v8
    v_lshl_add_u32 v7, v9, 5, v7
    """)
    for t in range(2):
        for j in range(4):
            A(f"ds_write_b128 v6, {v(ACC+16*t+4*j,4)} offset:{t*128+j*32}")
    XF = 104
    for it in range(2):
        for h in range(4): A(f"v_lshlrev_b32 v{XF+it*8+2*h}, 16, v{XG+it*4+h}\nv_and_b32 v{XF+it*8+2*h+1}, 0xffff0000, v{XG+it*4+h}")
    A("s_waitcnt lgkmcnt(0)\ns_barrier")
    RD = 128
    for it in range(2):
        for kh in range(2):
            for hf in range(2):
                A(f"ds_read_b128 {v(RD+it*16+kh*8+hf*4,4)}, v7 offset:{(kh*64+it*32)*RS+hf*16}")
    for it in range(2):
        z = RD + it*16
        for h in range(4): A(f"v_pk_add_f32 {v(z+2*h,2)}, {v(z+2*h,2)}, {v(z+8+2*h,2)}")
        for h in range(4): A(f"v_pk_fma_f32 {v(z+2*h,2)}, {v(z+2*h,2)}, {v(XG+8+2*h,2)}, {v(XF+it*8+2*h,2)}")
        for h in range(4): A(f"v_cvt_pk_bf16_f32 v{z+8+h}, v{z+2*h}, v{z+2*h+1}")
        A(f"buffer_store_dwordx4 {v(z+8,4)}, v12, {srd(S_OUT)}, s{49+it} offen {opt('outsc', '')}")

def flag_set(A, soff, keep=0, reset=True):
    sk = A.label("fs")
    A(f"""
    s_waitcnt vmcnt({keep}) lgkmcnt(0)
    s_barrier
    s_cmp_lg_u32 s3, 0
    s_cbranch_scc1 {sk}
    v_mov_b32 v250, 0
    v_mov_b32 v251, s{S_TOK}
    s_mov_b64 exec, 1
    buffer_store_dword v251, v250, {srd(S_WS)}, s{soff} offen sc1
    s_mov_b64 exec, -1
    {sk}:
    """)
    A.reset()

def late_prefetch(A, chunks, do_touch, nonln):
    n = 0
    if do_touch: touch(A, nonln=nonln); n += 3
    wchunks(A, chunks); n += 6*len(list(chunks))
    return n

def poll(A, kind, soff, others=None, after0=None):
    sk, lp, w0, jn = A.label("pk"), A.label("pl"), A.label("p0"), A.label("pj")
    A(f"s_cmp_eq_u32 s3, 0\ns_cbranch_scc1 {w0}")
    if others: others(A)
    A(f"s_branch {jn}\n{w0}:\ns_mov_b32 s{S_CNT}, 0")
    if kind == "l16": A("v_lshlrev_b32 v250, 7, v2")
    elif kind == "l15": A("v_cmp_eq_u32 vcc, 15, v2\nv_cndmask_b32 v250, v2, 0, vcc\nv_lshlrev_b32 v250, 7, v250")
    elif kind == "s64x4":
        A("v_lshlrev_b32 v250, 6, v1")
        for j in range(1, 4): A(f"s_add_u32 s{71+j}, s{soff}, {j*4096}")
    A(f"{lp}:")
    if kind == "s64x4":
        for j in range(4):
            A(f"buffer_load_dword v{252+j}, v250, {srd(S_WS)}, s{soff if j == 0 else 71+j} offen sc1")
        A(f"""
        s_waitcnt vmcnt(0)
        v_xor_b32 v252, s{S_TOK}, v252
        v_xor_b32 v253, s{S_TOK}, v253
        v_xor_b32 v254, s{S_TOK}, v254
        v_xor_b32 v255, s{S_TOK}, v255
        v_or3_b32 v252, v252, v253, v254
        v_or_b32 v252, v252, v255
        v_cmp_ne_u32 vcc, 0, v252
        """)
    else:
        A(f"""
        buffer_load_dword v252, v250, {srd(S_WS)}, s{soff} offen sc1
        s_waitcnt vmcnt(0)
        v_cmp_ne_u32 vcc, s{S_TOK}, v252
        """)
    A(f"""
    s_add_u32 s{S_CNT}, s{S_CNT}, 1
    s_cmp_ge_u32 s{S_CNT}, {MAXPOLL}
    s_cbranch_scc1 {sk}
    s_cbranch_vccnz {lp}
    {sk}:
    """)
    A.reset()
    if after0: after0(A)
    A(f"{jn}:\ns_barrier")

def build():
    A = Asm()
    name = NAME + "_kernel"
    kernel_begin(A, name)
    done = A.label("done")
    if TS: A("s_memrealtime s[62:63]")
    CP = opt("codepf", 0)
    prologue(A, done)
    if TS:
        A("v_mov_b32 v248, 0\nv_writelane_b32 v248, s62, 0"); _ts["n"] = 1; _ts["names"] = ["entry"]
    A(f"s_add_u32 s38, s32, {WS_EP}\ns_addc_u32 s39, s33, 0\ns_load_dword s{S_TOK}, s[38:39], 0")
    if CP:
        A(f"""
        s_getpc_b64 s[40:41]
        s_and_b32 s40, s40, 0xffffff00
        s_lshr_b32 s42, s2, 3
        s_lshl_b32 s42, s42, 2
        s_add_u32 s42, s42, s3
        s_lshl_b32 s42, s42, 9
        s_min_u32 s42, s42, {CP - 512}
        v_and_b32 v250, 3, v1
        v_lshlrev_b32 v250, 7, v250
        v_add_u32 v250, s42, v250
        global_load_dword v249, v250, s[40:41]
        """)
    if opt("touch", 0) in range(1, 7): touch_setup(A, opt("touch", 0) in (3, 4, 6))
    if opt("touch", 0) == 1: touch(A)
    ts(A, "prolog")
    m, i_, e = A.label("k1mod"), A.label("k1idle"), A.label("k1end")
    tok = f"s_waitcnt lgkmcnt(0)\ns_mul_i32 s{S_TOK}, s{S_TOK}, 0x9e3779b1\ns_add_u32 s{S_TOK}, s{S_TOK}, 0x7f4a7c15\ns_lshl_b32 s62, s2, 6\ns_add_u32 s62, s62, {WS_F1}"
    pfA = range(opt("pfA", 3)); tm = opt("touch", 0)
    A(f"s_cmp_ge_u32 s2, 128\ns_cbranch_scc1 {m}")
    k1_ln(A)
    ts(A, "stiss")
    keep = late_prefetch(A, pfA if opt("pfApos", 0) == 3 else [], tm == 5, False)
    A(tok); flag_set(A, 62, keep)
    A(f"s_branch {e}\n{m}:\ns_cmp_ge_u32 s2, 224\ns_cbranch_scc1 {i_}")
    A.reset()
    k1_mod(A)
    A.reset()
    keep = late_prefetch(A, pfA if opt("pfMpos", 0) == 3 else [], tm in (5, 6), tm == 6)
    A(tok); flag_set(A, 62, keep)
    A(f"s_branch {e}\n{i_}:")
    A.reset()
    A(tok); flag_set(A, 62, 63)
    if opt("idledelay", 0):
        A(f"v_lshlrev_b32 v4, 2, v0\nbuffer_load_dword v8, v4, {srd(S_C)}, 0 offen\ns_waitcnt vmcnt(0)")
    if tm == 7: touch_early(A)
    if tm in (2, 5): touch(A)
    if tm in (3, 4, 6): touch(A, nonln=True)
    wchunks(A, pfA)
    A(f"{e}:")
    A.reset()
    ts(A, "f1set")
    if not opt("prefirst", 0): wchunks(A, range(opt("pfA", 3), opt("pfA", 3) + opt("pf1", 0)))
    k2_pre(A)
    if opt("touch", 0) == 7: touch_late_setup(A)
    if opt("touch", 0) == 7 and opt("tlate", 0) == 0: touch_late(A)
    ts(A, "pre")
    if opt("prefirst", 0): wchunks(A, range(opt("pfA", 3), opt("pfA", 3) + opt("pf1", 0)))
    A(f"s_mov_b32 s63, {WS_F1}")
    poll(A, "s64x4", 63)
    A.reset()
    ts(A, "sync1")
    k2_main(A)
    ts(A, "stiss2")
    keep = late_prefetch(A, range(opt("pfA", 3) + opt("pf1", 0), opt("pfB", 5)) if opt("pfBpos", 0) == 3 else [], False, False)
    flag_set(A, 62, keep)
    ts(A, "f2set")
    wchunks(A, range(opt("pfB", 5), opt("pfB", 5) + opt("pf3", 0)))
    k3_pre(A)
    poll(A, "l16", 62)
    A.reset()
    ts(A, "sync2")
    k3_main(A)
    flag_set(A, 61)
    ts(A, "f3set")
    k4_pre(A)
    poll(A, "l15", 62, others=wd_rest, after0=wd_rest)
    ts(A, "sync3")
    k4_main(A)
    sk = A.label("ep")
    A(f"""
    s_or_b32 s63, s2, s3
    s_cmp_lg_u32 s63, 0
    s_cbranch_scc1 {sk}
    v_mov_b32 v250, 0
    v_mov_b32 v251, s{S_TOK}
    s_mov_b32 s63, {WS_EP}
    s_mov_b64 exec, 1
    buffer_store_dword v251, v250, {srd(S_WS)}, s63 offen sc1
    s_mov_b64 exec, -1
    {sk}:
    """)
    ts(A, "end")
    probe_end(A)
    ts_flush(A)
    A(f"{done}:\ns_endpgm")
    code = A.finalize()
    return [(None, (256,1,1), (256,1,1), LDS_TOTAL)], code, [kernel_desc(name, 256, 172)]

if __name__ == "__main__":
    hdr = [l.rstrip("\n") for l in open("cdna_kernels/%s.s.ref" % NAME) if l.startswith(";") and "@launch" not in l][:15]
    out = sys.argv[1]
    for kv in sys.argv[2:]:
        k_, v_ = kv.split("=")
        OPT[k_] = int(v_) if v_.lstrip("-").isdigit() else v_
    TS = bool(opt("ts", 0)); PROBE = opt("probe", None)
    launches, code, descs = build()
    open(out, "w").write(file_text(hdr, launches, code, descs))
    if TS: json.dump([_ts["names"]], open(out[:-2] + ".json", "w"))
```

```python
import re

def v(i, n=1):
    return f"v{i}" if n == 1 else f"v[{i}:{i+n-1}]"
def a(i, n=1):
    return f"a{i}" if n == 1 else f"a[{i}:{i+n-1}]"
def s(i, n=1):
    return f"s{i}" if n == 1 else f"s[{i}:{i+n-1}]"

_reg_re = re.compile(r"^(-|abs\(|\|)?([vas])(?:(\d+)|\[(\d+):(\d+)\])\)?\|?$")

def parse_reg(tok):
    tok = tok.strip()
    if tok in ("vcc",): return [("s", "vcc")]
    if tok in ("vcc_lo", "vcc_hi"): return [("s", "vcc")]
    if tok in ("exec", "exec_lo", "exec_hi"): return [("s", "exec")]
    if tok == "m0": return [("s", "m0")]
    m = _reg_re.match(tok)
    if not m: return []
    k = m.group(2)
    if m.group(3) is not None:
        return [(k, int(m.group(3)))]
    return [(k, i) for i in range(int(m.group(4)), int(m.group(5)) + 1)]

TRANS = ("v_exp_f32", "v_log_f32", "v_rcp_f32", "v_rsq_f32", "v_sqrt_f32", "v_sin_f32", "v_cos_f32", "v_rcp_iflag_f32")

class Ins:
    __slots__ = ("text", "op", "dst", "src", "kind", "tag", "mods", "srcC", "passes", "wide", "srcAB")
    def __init__(self, text, tag=None):
        self.text = text; self.tag = tag
        t = text.split(";")[0].strip()
        self.dst = []; self.src = []; self.kind = "other"; self.srcC = []; self.srcAB = []; self.passes = 0; self.wide = False
        if t.endswith(":") or t.startswith(".") or not t:
            self.op = t; self.kind = "label" if t.endswith(":") else "dir"; self.mods = ""; return
        sp = t.split(None, 1)
        self.op = op = sp[0]
        rest = sp[1] if len(sp) > 1 else ""
        parts = [p.strip() for p in rest.split(",")] if rest else []
        ops = []
        mods = ""
        for i, p in enumerate(parts):
            q = p.split()
            if not q: continue
            ops.append(q[0])
            if len(q) > 1: mods += " " + " ".join(q[1:])
        self.mods = mods = rest
        R = [parse_reg(o) for o in ops]
        flat = lambda L: [x for y in L for x in y]
        if op.startswith("v_mfma"):
            self.kind = "mfma"
            self.dst = R[0]; self.srcAB = R[1] + R[2]; self.srcC = R[3] if len(R) > 3 else []
            self.src = self.srcAB + self.srcC
            if "32x32x16" in op or "32x32x8" in op: self.passes = 8
            elif "16x16x4_f32" in op: self.passes = 8; self.kind = "mfma_s"
            elif "32x32x2_f32" in op: self.passes = 16; self.kind = "mfma_s"
            elif "16x16x32" in op or "16x16x16" in op: self.passes = 4
            else: raise ValueError("unknown mfma " + op)
        elif op.startswith("v_"):
            self.kind = "valu"
            if op.startswith("v_cmp"):
                self.dst = R[0]; self.src = flat(R[1:])
            elif op.startswith("v_swap") or op.startswith("v_permlane"):
                self.dst = R[0] + R[1]; self.src = R[0] + R[1]
            elif op.startswith(("v_add_co", "v_sub_co", "v_addc_co", "v_subb_co")):
                self.dst = R[0] + R[1]; self.src = flat(R[2:])
            else:
                self.dst = R[0]; self.src = flat(R[1:])
                if op.startswith(("v_fmac", "v_dot2c", "v_pk_fmac", "v_writelane")) or "dpp" in op or "row_" in mods or "quad_perm" in mods:
                    self.src = self.src + R[0]
                if op.startswith("v_cndmask") and len(R) == 3:
                    self.src = self.src + [("s", "vcc")]
        elif op.startswith(("buffer_", "global_")):
            if op.startswith(("buffer_inv", "buffer_wbl2")):
                self.kind = "vmem"; return
            self.kind = "vmem"
            islds = re.search(r"\blds\b", mods) is not None or "load_lds" in op
            if "load" in op and not islds:
                self.dst = R[0]; self.src = flat(R[1:])
            elif "atomic" in op and "sc0" in mods:
                self.dst = R[0]; self.src = flat(R)
            else:
                self.src = flat(R)
                if islds: self.src.append(("s", "m0")); self.kind = "vmem_lds"
                if "store" in op and ("x4" in op or "x3" in op):
                    self.wide = True
                    self.srcC = R[0] if op.startswith("buffer_") else R[1]
        elif op.startswith("ds_"):
            self.kind = "ds"
            if op.startswith(("ds_read", "ds_bpermute", "ds_permute", "ds_swizzle")):
                self.dst = R[0]; self.src = flat(R[1:])
            else:
                self.src = flat(R)
        elif op.startswith(("s_load", "s_buffer_load", "s_memtime", "s_memrealtime")):
            self.kind = "smem"; self.dst = R[0]; self.src = flat(R[1:])
        elif op.startswith("s_waitcnt"):
            self.kind = "wait"
        elif op.startswith(("s_cbranch", "s_branch", "s_endpgm", "s_setpc")):
            self.kind = "branch"
        elif op == "s_nop":
            self.kind = "nop"
        elif op.startswith("s_"):
            self.kind = "salu"
            if op.startswith(("s_cmp", "s_bitcmp", "s_barrier", "s_sleep", "s_setprio")):
                self.src = flat(R)
            else:
                self.dst = R[0] if R else []; self.src = flat(R[1:])
                if "saveexec" in op: self.dst = self.dst + [("s", "exec")]; self.src = self.src + [("s", "exec")]
                if op.startswith(("s_addk", "s_mulk")): self.src = self.src + R[0]
        else:
            raise ValueError("unknown instruction " + text)

class Asm:
    def __init__(self):
        self.ins = []
        self.nlabel = 0
    def __call__(self, text, tag=None):
        for l in text.split("\n"):
            l = l.strip()
            if not l or l.startswith(";"): continue
            self.ins.append(Ins(l, tag))
    def label(self, base="L"):
        Asm._n = getattr(Asm, "_n", 0) + 1
        return f".{base}_{Asm._n}"
    def wait_tag(self, tag):
        i = Ins("s_nop 0"); i.kind = "waittag"; i.tag = tag; self.ins.append(i)
    def touch_regs(self, regs):
        i = Ins("s_nop 0"); i.kind = "touch"; i.src = list(regs); self.ins.append(i)
    def reset(self):
        i = Ins("s_nop 0"); i.kind = "reset"; self.ins.append(i)
    def extend(self, other):
        self.ins.extend(other.ins)

    def _insert_waits(self):
        out = []
        vm = []
        lg = []
        def need(q, regs, getset):
            idx = -1
            for n, e in enumerate(q):
                if getset(e) & regs: idx = n
            return idx
        for I in self.ins:
            if I.kind == "reset":
                vm.clear(); lg.clear(); continue
            if I.kind == "waittag":
                idx = -1
                for n, e in enumerate(vm):
                    if e[0] == I.tag: idx = n
                if idx >= 0:
                    cnt = len(vm) - 1 - idx
                    out.append(Ins(f"s_waitcnt vmcnt({min(cnt,63)})"))
                    del vm[:idx + 1]
                continue
            if I.kind == "wait":
                m = re.search(r"vmcnt\((\d+)\)", I.text)
                if m:
                    n = int(m.group(1))
                    if len(vm) > n: del vm[:len(vm) - n]
                m = re.search(r"lgkmcnt\((\d+)\)", I.text)
                if m:
                    n = int(m.group(1))
                    if n == 0: lg.clear()
                    elif len(lg) > n and not any(e[0] == "smem" for e in lg): del lg[:len(lg) - n]
                out.append(I); continue
            regs = set(I.src) | set(I.dst)
            if regs:
                idx = need(vm, regs, lambda e: e[1])
                w = []
                if idx >= 0:
                    cnt = len(vm) - 1 - idx
                    if cnt > 63: cnt = 63;
                    w.append(f"vmcnt({cnt})"); del vm[:len(vm) - cnt]
                idx = need(lg, regs, lambda e: e[1])
                if idx >= 0:
                    if any(e[0] == "smem" for e in lg):
                        w.append("lgkmcnt(0)"); lg.clear()
                    else:
                        cnt = min(len(lg) - 1 - idx, 15)
                        w.append(f"lgkmcnt({cnt})"); del lg[:len(lg) - cnt]
                if w: out.append(Ins("s_waitcnt " + " ".join(w)))
            if I.kind in ("vmem", "vmem_lds"):
                vm.append((I.tag, set(I.dst)))
                if len(vm) > 63:
                    pass
            elif I.kind == "ds":
                lg.append(("ds", set(I.dst)))
            elif I.kind == "smem":
                lg.append(("smem", set(I.dst)))
            if I.kind != "touch": out.append(I)
        self.ins = out

    def _hazards(self):
        out = []
        def states(I):
            if I.kind == "nop": return int(I.text.split()[1]) + 1
            if I.kind in ("label", "dir"): return 0
            return 1
        for I in self.ins:
            if I.kind in ("label", "dir", "nop", "wait"):
                out.append(I); continue
            needw = 0
            dist = 0
            S = set(I.src); D = set(I.dst)
            isvalu = I.kind == "valu"
            ismf = I.kind in ("mfma", "mfma_s")
            isdpp = isvalu and ("dpp" in I.op or "row_" in I.mods or "quad_perm" in I.mods)
            for P in reversed(out):
                if dist >= 21: break
                PD = set(P.dst)
                req = 0
                if P.kind == "valu":
                    pv = {r for r in PD if r[0] in "va"}
                    ps = {r for r in PD if r[0] == "s"}
                    if ismf and pv & S: req = max(req, 2)
                    if isvalu and pv & S:
                        if isdpp or I.op.startswith("v_permlane"): req = max(req, 2)
                        if I.op.startswith(("v_readlane", "v_readfirstlane")): req = max(req, 1)
                        if P.op.split("_e")[0] in TRANS and I.op.split("_e")[0] not in TRANS: req = max(req, 1)
                        if "op_sel" in P.mods and not P.op.startswith("v_pk") or "sdwa" in P.op: req = max(req, 1)
                    if ps & S:
                        if isvalu: req = max(req, 4 if I.op.startswith(("v_readlane", "v_writelane")) else 2)
                        if I.kind in ("vmem", "vmem_lds"): req = max(req, 5)
                        if I.kind in ("salu", "smem", "branch"): req = max(req, 1)
                    if ("s", "vcc") in ps and I.op.startswith("s_cbranch_vcc"): req = max(req, 1)
                elif P.kind in ("mfma", "mfma_s"):
                    xdl = P.kind == "mfma"
                    p = P.passes
                    t_valu = {2: 5, 4: 8, 8: 12, 16: 20}[p] if xdl else {2: 4, 4: 6, 8: 10, 16: 18}[p]
                    t_c = {2: 4, 4: 6, 8: 10, 16: 18}[p]
                    if ismf:
                        if PD & set(I.srcAB): req = max(req, t_valu)
                        if PD & set(I.srcC):
                            same = (P.dst == I.srcC and P.passes == I.passes and P.kind == I.kind)
                            if not same: req = max(req, t_c)
                        elif PD & D:
                            req = max(req, t_c)
                    elif (PD & (S | D)) and I.kind in ("valu", "vmem", "vmem_lds", "ds"):
                        req = max(req, t_valu)
                    if isvalu and xdl and set(P.srcC) & D: req = max(req, {2: 1, 4: 3, 8: 7, 16: 15}[p])
                elif P.kind == "salu":
                    if ("s", "m0") in PD and I.kind == "vmem_lds": req = max(req, 1)
                elif P.kind == "vmem" and P.wide:
                    if set(P.srcC) & D: req = max(req, 2)
                if req > dist: needw = max(needw, req - dist)
                dist += states(P)
            while needw > 0:
                n = min(needw, 16)
                out.append(Ins(f"s_nop {n-1}")); needw -= n
            out.append(I)
        self.ins = out

    def finalize(self, waits=True, hazards=True):
        if waits: self._insert_waits()
        else: self.ins = [i for i in self.ins if i.kind not in ("reset", "waittag", "touch")]
        if hazards: self._hazards()
        lines = []
        for I in self.ins:
            if I.kind in ("label", "dir"): lines.append(I.text)
            else: lines.append("  " + I.text)
        return "\n".join(lines) + "\n"
    def text(self):
        return self.finalize(waits=False, hazards=False)

def kernel_begin(A, name):
    A(f".globl {name}")
    A(".p2align 8")
    A(f".type {name},@function")
    A(f"{name}:")

def kernel_desc(name, nvgpr, nagpr=0, nsgpr=102, ids="x", denorm=True):
    acc = max(4, (nvgpr + 3) // 4 * 4)
    total = acc + nagpr if nagpr else nvgpr
    t = [f".amdhsa_kernel {name}",
         f"  .amdhsa_next_free_vgpr {total}",
         f"  .amdhsa_next_free_sgpr {nsgpr}",
         f"  .amdhsa_accum_offset {acc}",
         "  .amdhsa_group_segment_fixed_size 0",
         "  .amdhsa_kernarg_size 112",
         "  .amdhsa_user_sgpr_count 2",
         "  .amdhsa_user_sgpr_kernarg_segment_ptr 1",
         "  .amdhsa_system_sgpr_workgroup_id_x 1"]
    if "y" in ids:
        t.append("  .amdhsa_system_sgpr_workgroup_id_y 1")
    if denorm:
        t.append("  .amdhsa_float_denorm_mode_32 3")
    t.append(".end_amdhsa_kernel")
    return "\n".join(t) + "\n"

def file_text(header_lines, launches, code, descs):
    out = []
    out += header_lines
    if len(launches) == 1 and launches[0][0] is None:
        g, b, lds = launches[0][1:]
        out.append(f"; @launch grid=({g[0]},{g[1]},{g[2]}) block=({b[0]},{b[1]},{b[2]}) lds={lds}")
    else:
        for (k, g, b, lds) in launches:
            out.append(f"; @launch kernel={k} grid=({g[0]},{g[1]},{g[2]}) block=({b[0]},{b[1]},{b[2]}) lds={lds}")
    out.append('.amdgcn_target "amdgcn-amd-amdhsa--gfx950"')
    out.append(".text")
    out.append(code)
    out.append('.section .rodata,"a"')
    for d in descs:
        out.append(".p2align 6")
        out.append(d)
    return "\n".join(out)
```

```python
import sys, struct, math, json
from asmlib import *

NAME = "adaLN_cond__spectral_fnet__swiglu_ffn__prompt"
def fbits(x): return "0x%08x" % struct.unpack("<I", struct.pack("<f", x))[0]
OPT = {}
def opt(k, d): return OPT.get(k, d)

WS_U   = 0
WS_MOD = 0x240000
WS_H2  = 0x300000
WS_X1  = 0x500000
WS_ACT = 0x800000
WS_FLG = 0xE00000
WS_TS  = 0xF00000
WS_SIZE = 0x1000000
WS_EP  = WS_FLG
WS_F1  = WS_FLG + 0x1000
WS_F2  = WS_FLG + 0x10000
WS_F3  = WS_FLG + 0x20000
def SLOTSTR(): return 65536 + opt("upad", 0)
def USLOT(): return 512 if opt("upm", 0) else SLOTSTR()
def UOCT(): return 16384 if opt("upm", 0) else 512
def UN2(): return 65536 + opt("upad", 0) if opt("upm", 0) else 2048
MAXPOLL = 60000
LDS_TOTAL = 163840
SLOT = 24640; UOFF = 12320
XCS = 1040
XWS = 16 * XCS
XIMG = LDS_TOTAL - 4 * XWS
XTAB = XIMG - 384
MW = XIMG
MSC = MW + 32768
MRED = MSC + 1024
K2EX = 123200
K2HB = K2EX + 18432
S_X, S_WG, S_WU, S_WD, S_C, S_WM, S_OUT, S_WS = 4, 8, 12, 16, 20, 24, 28, 32
S_TOK, S_CNT, S_SL, S_WL, S_DG, S_DL, S_T, S_T2 = 64, 65, 66, 67, 68, 69, 70, 75
V_W = 240
V_D = 243
def srd(b): return s(b, 4)
LOG2E = fbits(-math.log2(math.e))

TS = False
PROBE = None
_ts = {"n": 0, "names": []}
def ts(A, name=None, cyc=False):
    if not TS: return
    if opt("tsonly", None) and name not in opt("tsonly", "").split("+") and name not in ("f1set", "end"): return
    n = _ts["n"]; _ts["n"] += 1
    _ts["names"].append(("c:" if cyc else "") + name)
    A(f"{'s_memtime' if cyc else 's_memrealtime'} s[98:99]\ns_waitcnt lgkmcnt(0)\nv_writelane_b32 v248, s98, {n}")
def tsx(A, lane):
    if TS: A(f"s_memrealtime s[98:99]\ns_waitcnt lgkmcnt(0)\nv_writelane_b32 v248, s98, {lane}")
def tc(A, name=None): ts(A, name, True)
def probe_end(A):
    if PROBE is None: return
    lp = A.label("pr")
    idx = _ts["names"].index(PROBE)
    A(f"""
    s_waitcnt vmcnt(0) lgkmcnt(0)
    v_readlane_b32 s90, v248, 0
    v_readlane_b32 s91, v248, {idx}
    s_nop 4
    s_sub_u32 s91, s91, s90
    s_cmp_gt_u32 s91, 20000
    s_cselect_b32 s91, 0, s91
    s_add_u32 s91, s91, 6000
    {lp}:
    s_memrealtime s[92:93]
    s_waitcnt lgkmcnt(0)
    s_sub_u32 s92, s92, s90
    s_cmp_lt_u32 s92, s91
    s_cbranch_scc1 {lp}
    """)
def ts_flush(A):
    if not TS: return
    sk = A.label("tsk")
    A(f"s_waitcnt vmcnt(0) lgkmcnt(0)\ns_cmp_lg_u32 s3, 0\ns_cbranch_scc1 {sk}")
    A(f"s_lshl_b32 s64, s2, 8\ns_add_u32 s64, s64, {WS_TS}\nv_lshlrev_b32 v1, 2, v1")
    A(f"buffer_store_dword v248, v1, {srd(S_WS)}, s64 offen")
    A(f"s_waitcnt vmcnt(0)\n{sk}:")

def bf16r(A, dst, src):
    A(f"v_cvt_pk_bf16_f32 {dst}, {src}, {src}\nv_lshlrev_b32 {dst}, 16, {dst}")

def sl_expr(d=38, t=39):
    if opt("T", 4) == 4:
        return f"s_and_b32 s{d}, s2, 1\ns_lshl_b32 s{d}, s{d}, 3\ns_lshr_b32 s{t}, s2, 5\ns_add_u32 s{d}, s{d}, s{t}"
    return f"s_and_b32 s{d}, s2, 3\ns_lshl_b32 s{d}, s{d}, 2\ns_lshr_b32 s{t}, s2, 6\ns_add_u32 s{d}, s{d}, s{t}"
def rb_expr():
    if opt("T", 4) == 4:
        return "s_bfe_u32 s36, s2, 0x20001\ns_lshl_b32 s36, s36, 2\ns_bfe_u32 s39, s2, 0x20003\ns_add_u32 s36, s36, s39"
    return "s_bfe_u32 s36, s2, 0x10002\ns_lshl_b32 s36, s36, 3\ns_bfe_u32 s39, s2, 0x30003\ns_add_u32 s36, s36, s39"
def entry(A, done):
    CP = opt("codepf", 0)
    A(f"""
    s_cmp_ge_u32 s2, 256
    s_cbranch_scc1 {done}
    s_load_dwordx2 s[4:5], s[0:1], 0
    s_load_dwordx2 s[24:25], s[0:1], 80
    s_load_dwordx2 s[20:21], s[0:1], 72
    s_load_dwordx2 s[32:33], s[0:1], 104
    s_load_dwordx2 s[8:9], s[0:1], 48
    s_load_dwordx2 s[12:13], s[0:1], 56
    s_load_dwordx2 s[16:17], s[0:1], 64
    s_load_dwordx2 s[28:29], s[0:1], 88
    v_lshrrev_b32 v2, 6, v0
    v_and_b32 v1, 63, v0
    v_readfirstlane_b32 s3, v2
    """)
    if CP:
        A(f"""
        s_getpc_b64 s[40:41]
        s_and_b32 s40, s40, 0xffffff00
        s_lshr_b32 s42, s2, 3
        s_lshl_b32 s42, s42, 2
        s_add_u32 s42, s42, s3
        s_and_b32 s42, s42, {opt("cpmask", 15)}
        s_lshl_b32 s42, s42, 11
        v_and_b32 v250, 15, v0
        v_lshlrev_b32 v250, 7, v250
        v_add_u32 v250, s42, v250
        v_min_u32 v250, {CP - 128}, v250
        global_load_dword v249, v250, s[40:41]
        """)
    A("v_and_b32 v2, 15, v0\nv_bfe_u32 v3, v0, 4, 2")

def common_setup(A):
    for b, sz in ((S_WG, 1409024), (S_WU, 1409024), (S_WD, 1409024), (S_OUT, 2097152), (S_WS, WS_SIZE)):
        A(f"s_mov_b32 s{b+2}, {sz}\ns_mov_b32 s{b+3}, 0x20000")
    A(f"s_add_u32 s72, s32, {WS_EP}\ns_addc_u32 s73, s33, 0\ns_load_dword s{S_TOK}, s[72:73], 0")
    A(f"""
    {sl_expr(72, 73)}
    s_mul_i32 s{S_SL}, s72, 192
    s_cmp_eq_u32 s72, 15
    s_cselect_b32 s{S_SL}, 0x200000, s{S_SL}
    s_mul_i32 s{S_WL}, s3, 3072
    s_mul_i32 s72, s3, 192
    s_mov_b32 s73, 0x15555556
    """)
    for i in range(3):
        A(f"""
        v_add_u32 v{V_W+i}, s72, v1
        v_add_u32 v{V_W+i}, {64*i}, v{V_W+i}
        v_mul_hi_u32 v244, v{V_W+i}, s73
        v_mul_u32_u24 v245, 12, v244
        v_sub_u32 v{V_W+i}, v{V_W+i}, v245
        v_lshlrev_b32 v{V_W+i}, 4, v{V_W+i}
        v_mul_u32_u24 v244, 2752, v244
        v_add_u32 v{V_W+i}, v{V_W+i}, v244
        """)
    if opt("touch", 0) in (1, 2, 3, 4, 5, 6, 8, 9, 10, 11): touch_setup(A, opt("touch", 0) in (3, 4, 6, 10, 11))
def small_srd(b, sz): return f"s_mov_b32 s{b+2}, {sz}\ns_mov_b32 s{b+3}, 0x20000"

def touch_setup(A, nonln=False):
    n = 22 if nonln else 11
    A(f"""
    s_lshl_b32 s{S_T}, s2, 2
    s_add_u32 s{S_T}, s{S_T}, s3
    s_and_b32 s{S_T}, s{S_T}, {511 if nonln else 1023}
    s_mul_i32 s{S_T}, s{S_T}, {n}
    v_min_u32 v246, {n-1}, v1
    v_add_u32 v246, s{S_T}, v246
    v_lshlrev_b32 v246, 7, v246
    """)
def touch(A, which="gud", nonln=False):
    pol = opt("tpol", "")
    A(f"s_mov_b64 exec, {hex((1 << (22 if nonln else 11)) - 1)}")
    if "g" in which: A(f"buffer_load_dword v247, v246, {srd(S_WG)}, 0 offen {pol}")
    if "u" in which: A(f"buffer_load_dword v245, v246, {srd(S_WU)}, 0 offen {pol}")
    if "d" in which: A(f"buffer_load_dword v244, v246, {srd(S_WD)}, 0 offen {pol}")
    A("s_mov_b64 exec, -1")

def touch_early(A):
    rows = 64 * opt("terows", 5)
    n = (rows * 2752 // 128 + 127) // 128
    A(f"""
    s_sub_u32 s38, s2, 224
    s_lshl_b32 s38, s38, 2
    s_add_u32 s38, s38, s3
    s_mul_i32 s38, s38, {n}
    v_min_u32 v246, {n-1}, v1
    v_add_u32 v246, s38, v246
    v_lshlrev_b32 v246, 7, v246
    buffer_load_dword v247, v246, {srd(S_WG)}, 0 offen
    buffer_load_dword v245, v246, {srd(S_WU)}, 0 offen
    """)
    for j in range(1, (n + 63) // 64):
        A(f"""
        v_add_u32 v244, {64*j}, v1
        v_min_u32 v244, {n-1}, v244
        v_add_u32 v244, s38, v244
        v_lshlrev_b32 v244, 7, v244
        buffer_load_dword v239, v244, {srd(S_WG)}, 0 offen
        buffer_load_dword v238, v244, {srd(S_WU)}, 0 offen
        """)
def touch_late_setup(A):
    rows0 = 64 * opt("terows", 5)
    n = ((512 - rows0) * 2752 // 128 + 1023) // 1024
    A(f"""
    s_lshl_b32 s{S_T}, s2, 2
    s_add_u32 s{S_T}, s{S_T}, s3
    s_mul_i32 s71, s{S_T}, 11
    s_mul_i32 s{S_T}, s{S_T}, {n}
    s_add_u32 s{S_T}, s{S_T}, {rows0*2752//128}
    v_min_u32 v246, {max(n-1,0)}, v1
    v_add_u32 v246, s{S_T}, v246
    v_lshlrev_b32 v246, 7, v246
    v_min_u32 v247, 10, v1
    v_add_u32 v247, s71, v247
    v_lshlrev_b32 v247, 7, v247
    """)
def touch_late(A):
    A(f"""
    s_mov_b64 exec, 0x7ff
    buffer_load_dword v245, v246, {srd(S_WG)}, 0 offen
    buffer_load_dword v244, v246, {srd(S_WU)}, 0 offen
    buffer_load_dword v246, v247, {srd(S_WD)}, 0 offen
    s_mov_b64 exec, -1
    """)

def wchunk_ops(chunk, slot, tag):
    ops = []
    for mtx, sr in ((0, S_WG), (1, S_WU)):
        for i in range(3):
            t = f"s_add_u32 m0, s{S_WL}, {slot*SLOT+mtx*UOFF+i*1024}\n"
            if mtx == 0 and i == 0: t += f"s_add_u32 s{S_T2}, s{S_SL}, {chunk*64*2752}\n"
            t += f"buffer_load_dwordx4 v{V_W+i}, {srd(sr)}, s{S_T2} offen {opt('wpol','')} lds"
            ops.append((t, tag))
    return ops
def wchunks(A, chunks):
    for ch in chunks:
        for t, tag in wchunk_ops(ch, ch, f"w{ch}"): A(t, tag=tag)

def k1_ln(A):
    A(f"""
    s_and_b32 s38, s2, 7
    s_lshr_b32 s39, s2, 3
    s_lshr_b32 s40, s39, 2
    s_lshl_b32 s40, s40, 3
    s_add_u32 s36, s38, s40
    s_and_b32 s37, s39, 3
    v_lshrrev_b32 v4, 2, v1
    v_sub_u32 v5, 0, v3
    v_xor_b32 v5, v5, v1
    v_and_b32 v5, 3, v5
    v_lshlrev_b32 v4, 15, v4
    v_lshl_add_u32 v4, v5, 4, v4
    s_lshl_b32 s38, s3, 9
    s_add_u32 s38, s38, s36
    s_lshl_b32 s38, s38, 10
    s_mul_i32 s39, s3, {XWS}
    s_add_u32 s39, s39, {XIMG}
    {small_srd(S_X, 2097152)}
    s_waitcnt lgkmcnt(0)
    """)
    ts(A, "prolog")
    for i in range(16):
        A(f"s_add_u32 m0, s39, {i*(XCS-64)}")
        A(f"buffer_load_dwordx4 v4, {srd(S_X)}, s38 offen offset:{i*64} {opt('xpol','')} lds", tag=f"x{i}")
    common_setup(A)
    BC, NV = 16, 48
    A("""
    v_lshlrev_b32 v5, 3, v3
    v_cvt_f32_u32 v5, v5
    s_and_b32 s40, s3, 1
    s_lshl_b32 s40, s40, 4
    v_add_u32 v6, s40, v2
    v_cmp_eq_u32 vcc, 0, v6
    v_cvt_f32_u32 v6, v6
    v_mul_f32 v6, 0x3c800000, v6
    v_mov_b32 v8, 0x3e800000
    v_cndmask_b32 v9, v6, 0.5, vcc
    v_cndmask_b32 v10, v8, 0, vcc
    """)
    for ks in range(2):
        for j in range(8):
            A(f"v_add_f32 v{NV}, {fbits(32*ks+j)}, v5\nv_mul_f32 v{BC+ks*8+j}, v{NV}, v6\nv_fma_f32 v{BC+16+ks*8+j}, v{NV}, v9, v10")
    for i in range(32): A(f"v_cos_f32 v{BC+i}, v{BC+i}")
    ONES, G, SA = 112, 116, 120
    for i in range(4): A(f"v_mov_b32 v{ONES+i}, 0x3f803f80")
    A(f"""
    v_lshrrev_b32 v5, 2, v2
    v_sub_u32 v5, 0, v5
    v_xor_b32 v5, v5, v3
    v_and_b32 v5, 3, v5
    v_lshlrev_b32 v5, 4, v5
    v_lshl_add_u32 v5, v2, 6, v5
    v_add_u32 v5, s39, v5
    v_lshrrev_b32 v6, 1, v3
    v_mul_u32_u24 v6, {XWS}, v6
    v_and_b32 v7, 3, v1
    v_mul_u32_u24 v7, {XCS}, v7
    v_add_u32 v6, v6, v7
    v_and_b32 v7, 1, v3
    v_lshl_add_u32 v6, v7, 9, v6
    v_bfe_u32 v8, v1, 2, 2
    v_lshl_add_u32 v6, v8, 6, v6
    s_lshr_b32 s41, s3, 1
    s_mul_i32 s42, s41, {8*XCS}
    s_add_u32 s42, s42, {XIMG}
    v_add_u32 v6, s42, v6
    v_lshlrev_b32 v7, 1, v7
    v_xor_b32 v8, s37, v7
    v_lshl_add_u32 v11, v8, 4, v6
    v_xor_b32 v8, 3, v8
    v_lshl_add_u32 v12, v8, 4, v6
    v_add_u32 v12, 256, v12
    s_lshl_b32 s42, s3, 6
    s_add_u32 s42, s42, {XTAB}
    v_lshl_add_u32 v7, v2, 2, s42
    s_lshl_b32 s42, s3, 5
    s_add_u32 s42, s42, {XTAB+256}
    v_lshl_add_u32 v13, v2, 1, s42
    v_lshlrev_b32 v8, 5, v3
    v_add_u32 v8, {XTAB}, v8
    v_lshlrev_b32 v14, 4, v3
    v_add_u32 v14, {XTAB+256}, v14
    s_mov_b32 s42, 0x22222222
    s_mov_b32 s43, 0x22222222
    s_mov_b32 s44, 0x44444444
    s_mov_b32 s45, 0x44444444
    s_mov_b32 s46, 0x88888888
    s_mov_b32 s47, 0x88888888
    v_add_u32 v9, s40, v2
    v_mul_u32_u24 v9, {USLOT()}, v9
    v_lshl_add_u32 v9, v3, 4, v9
    s_mul_i32 s48, s36, {UN2()}
    s_mul_i32 s49, s37, {UOCT()}
    s_add_u32 s48, s48, s49
    s_lshl_b32 s49, s41, 7
    s_add_u32 s48, s48, s49
    s_add_u32 s48, s48, {WS_U}
    """)
    ts(A, "const")
    R = 48
    pfl = [op for ch in range(opt("pfA", 0)) for op in wchunk_ops(ch, ch, f"w{ch}")] if opt("pfApos", 0) == 2 else []
    for i in range(16):
        A.wait_tag(f"x{i}")
        A(f"ds_read_b128 {v(R+4*i,4)}, v5 offset:{i*XCS}")
        for _ in range(2 if i >= 14 - len(pfl)//2 + 7 else 1):
            if pfl and i >= opt("pfAi", 2): A(*pfl.pop(0))
        if i >= 1:
            k = i - 1
            A(f"v_mfma_f32_16x16x32_bf16 {v(G,4)}, {v(R+4*k,4)}, {v(R+4*k,4)}, {v(G,4) if k else 0}")
            A(f"v_mfma_f32_16x16x32_bf16 {v(SA,4)}, {v(ONES,4)}, {v(R+4*k,4)}, {v(SA,4) if k else 0}")
    A("s_barrier")
    late_pf = pfl
    A(f"v_mfma_f32_16x16x32_bf16 {v(G,4)}, {v(R+60,4)}, {v(R+60,4)}, {v(G,4)}")
    A(f"v_mfma_f32_16x16x32_bf16 {v(SA,4)}, {v(ONES,4)}, {v(R+60,4)}, {v(SA,4)}")
    ts(A, "xarr")
    if opt("touch", 0) == 2: touch(A)
    if opt("pfA", 0) and opt("pfApos", 0) == 1: wchunks(A, range(opt("pfA", 0)))
    X = 128
    for tl in range(4):
        for ks in range(2):
            b = X + (tl*2+ks)*4
            off = ks*2*XWS + (tl >> 1)*4*XCS + 8*(tl & 1)
            A(f"ds_read_b64_tr_b16 {v(b,2)}, v11 offset:{off}\nds_read_b64_tr_b16 {v(b+2,2)}, v12 offset:{off}")
    A(f"""
    v_cndmask_b32 v10, v{G}, v{G+1}, s[42:43]
    v_cndmask_b32 v10, v10, v{G+2}, s[44:45]
    v_cndmask_b32 v10, v10, v{G+3}, s[46:47]
    v_mul_f32 v15, 0xbb000000, v{SA}
    v_mul_f32 v10, 0x3b000000, v10
    v_fma_f32 v10, -v15, v15, v10
    v_max_f32 v10, 0, v10
    v_cvt_pk_bf16_f32 v15, v15, v10
    v_and_b32 v10, 0xffff0000, v15
    v_add_f32 v10, {fbits(1e-5)}, v10
    """)
    bf16r(A, "v10", "v10")
    A("v_sqrt_f32 v10, v10")
    bf16r(A, "v10", "v10")
    A("""
    v_rcp_f32 v10, v10
    s_mov_b32 exec_lo, 0x00f0000f
    s_mov_b32 exec_hi, 0xf0000f00
    ds_write_b16 v13, v15
    ds_write_b32 v7, v10
    s_mov_b64 exec, -1
    s_waitcnt lgkmcnt(0)
    s_barrier
    """)
    ts(A, "stats")
    for op in late_pf: A(*op)
    TR, AM, BP, CM, ACC, PK = 48, 64, 72, 88, 160, 96
    for ks in range(2):
        for hf in range(2): A(f"ds_read_b128 {v(TR+ks*8+hf*4,4)}, v8 offset:{ks*128+hf*16}")
        A(f"ds_read_b128 {v(AM+ks*4,4)}, v14 offset:{ks*64}")
    for ks in range(2):
        for c in range(2):
            for jj in range(4):
                b = BC + c*16 + ks*8 + 2*jj
                A(f"v_pk_mul_f32 {v(b,2)}, {v(b,2)}, {v(TR+ks*8+2*jj,2)}")
            for jj in range(4):
                b = BC + c*16 + ks*8 + 2*jj
                A(f"v_cvt_pk_bf16_f32 v{BP+(c*2+ks)*4+jj}, v{b}, v{b+1}")
    for ks in range(2):
        for c in range(2):
            A(f"v_mfma_f32_16x16x32_bf16 {v(CM+4*c,4)}, {v(AM+ks*4,4)}, {v(BP+(c*2+ks)*4,4)}, {v(CM+4*c,4) if ks else 0}")
    for tl in range(4):
        for c in range(2):
            acc = ACC + (tl*2+c)*4
            A(f"v_mfma_f32_16x16x32_bf16 {v(acc,4)}, {v(X+(tl*2)*4,4)}, {v(BP+(c*2)*4,4)}, {v(CM+4*c,4)}")
        for c in range(2):
            acc = ACC + (tl*2+c)*4
            A(f"v_mfma_f32_16x16x32_bf16 {v(acc,4)}, {v(X+(tl*2+1)*4,4)}, {v(BP+(c*2+1)*4,4)}, {v(acc,4)}")
        if tl >= 1: k1_store(A, tl-1, ACC, PK)
    k1_store(A, 3, ACC, PK)

def k1_store(A, tl, ACC, PK):
    acc = ACC + tl*8; pk = PK + tl*4
    for r in range(4): A(f"v_cvt_pk_bf16_f32 v{pk+r}, v{acc+r}, v{acc+4+r}")
    A(f"buffer_store_dwordx4 {v(pk,4)}, v9, {srd(S_WS)}, s48 offen offset:{(tl&1)*256+(tl>>1)*64} sc1", tag="st")

def k1_mod(A):
    A(f"""
    s_and_b32 s38, s2, 7
    s_lshr_b32 s39, s2, 3
    s_mul_i32 s38, s38, 12
    s_add_u32 s36, s38, s39
    s_sub_u32 s36, s36, 16
    v_lshlrev_b32 v4, 2, v0
    {small_srd(S_C, 1024)}
    {small_srd(S_WM, 3145728)}
    {small_srd(S_X, 2097152)}
    v_lshrrev_b32 v5, 2, v1
    v_mul_u32_u24 v5, 6144, v5
    v_and_b32 v6, 3, v1
    v_lshl_add_u32 v5, v6, 4, v5
    s_mul_i32 s38, s3, {128*6144}
    s_lshl_b32 s39, s36, 6
    s_add_u32 s38, s38, s39
    s_lshl_b32 s39, s3, 13
    s_add_u32 s39, s39, {MW}
    s_waitcnt lgkmcnt(0)
    buffer_load_dword v8, v4, {srd(S_C)}, 0 offen
    """)
    if opt("touch", 0) == 3: touch(A, nonln=True)
    if opt("moddelay", 0): A("v_mov_b32 v8, v8")
    for i in range(8):
        A(f"s_add_u32 m0, s39, {i*1024}")
        if i: A(f"s_add_u32 s38, s38, {16*6144}")
        A(f"buffer_load_dwordx4 v5, {srd(S_WM)}, s38 offen {opt('mpol','')} lds", tag="wm")
    common_setup(A)
    A(f"""
    v_bfe_u32 v6, v1, 2, 2
    v_lshl_add_u32 v6, v3, 3, v6
    v_lshlrev_b32 v6, 6, v6
    v_and_b32 v7, 3, v1
    v_lshl_add_u32 v6, v7, 3, v6
    v_add_u32 v6, s39, v6
    v_add_u32 v4, {MSC}, v4
    s_lshl_b32 s40, s3, 8
    s_add_u32 s40, s40, {MSC}
    v_lshl_add_u32 v7, v3, 4, s40
    v_lshlrev_b32 v9, 16, v8
    v_and_b32 v10, 0xffff0000, v8
    v_mul_f32 v11, {LOG2E}, v9
    v_mul_f32 v12, {LOG2E}, v10
    v_exp_f32 v11, v11
    v_exp_f32 v12, v12
    v_add_f32 v11, 1.0, v11
    v_add_f32 v12, 1.0, v12
    v_rcp_f32 v11, v11
    v_rcp_f32 v12, v12
    v_mul_f32 v9, v9, v11
    v_mul_f32 v10, v10, v12
    v_cvt_pk_bf16_f32 v9, v9, v10
    ds_write_b32 v4, v9
    """)
    SF, WF, ACC = 16, 32, 64
    A("s_waitcnt lgkmcnt(0)")
    tsx(A, 60)
    for ks in range(4): A(f"ds_read_b128 {v(SF+4*ks,4)}, v7 offset:{ks*64}")
    A(f"""
    v_and_b32 v10, 31, v1
    s_lshr_b32 s40, s36, 4
    s_and_b32 s41, s36, 15
    s_lshl_b32 s41, s41, 5
    v_add_u32 v10, s41, v10
    v_lshrrev_b32 v15, 8, v10
    v_lshlrev_b32 v15, 8, v15
    v_bfe_u32 v72, v10, 2, 2
    v_lshl_add_u32 v15, v72, 6, v15
    v_bfe_u32 v72, v10, 4, 4
    v_lshl_add_u32 v15, v72, 2, v15
    v_and_b32 v72, 3, v10
    v_add_u32 v15, v15, v72
    v_bfe_u32 v72, v10, 3, 2
    v_lshlrev_b32 v73, 7, v72
    v_bfe_u32 v72, v10, 7, 2
    v_lshl_add_u32 v73, v72, 5, v73
    v_and_b32 v72, 7, v10
    v_lshl_add_u32 v73, v72, 2, v73
    v_bfe_u32 v72, v10, 5, 2
    v_add_u32 v73, v73, v72
    s_cmp_lt_u32 s40, 2
    s_cselect_b64 vcc, -1, 0
    v_cndmask_b32 v15, v15, v73, vcc
    s_cmp_eq_u32 s40, 5
    s_cselect_b64 vcc, -1, 0
    v_cndmask_b32 v10, v15, v10, vcc
    v_lshlrev_b32 v10, 2, v10
    s_lshl_b32 s41, s40, 11
    s_add_u32 s41, s41, {WS_MOD}
    s_cmp_eq_u32 s40, 1
    s_cselect_b32 s42, 1.0, 0
    s_cmp_eq_u32 s40, 4
    s_cselect_b32 s42, 1.0, s42
    s_lshl_b32 s43, s3, 7
    s_add_u32 s43, s43, {MRED}
    v_lshl_add_u32 v9, v2, 2, s43
    v_and_b32 v74, 31, v1
    v_lshlrev_b32 v74, 2, v74
    v_add_u32 v74, {MRED}, v74
    """)
    A.wait_tag("wm")
    tsx(A, 61)
    if opt("touch", 0) == 2: touch(A)
    if opt("touch", 0) == 4 and not opt("tafter", 0): touch(A, nonln=True)
    if opt("touch", 0) == 9: touch(A, "gu")
    if opt("touch", 0) in (10, 11): touch(A, "gu", nonln=True)
    if opt("pfA", 0) and opt("pfMpos", 0) == 1: wchunks(A, range(opt("pfA", 0)))
    for ks in range(4):
        for nt in range(2):
            b = WF + (ks*2+nt)*4
            off = ks*2048 + nt*32
            A(f"ds_read_b64_tr_b16 {v(b,2)}, v6 offset:{off}\nds_read_b64_tr_b16 {v(b+2,2)}, v6 offset:{off+256}")
    for ks in range(4):
        for nt in range(2):
            A(f"v_mfma_f32_16x16x32_bf16 {v(ACC+4*nt,4)}, {v(SF+4*ks,4)}, {v(WF+(ks*2+nt)*4,4)}, {v(ACC+4*nt,4) if ks else 0}")
    skip = A.label("modskip")
    A(f"""
    s_mov_b64 exec, 0xffff
    ds_write_b32 v9, v{ACC}
    ds_write_b32 v9, v{ACC+4} offset:64
    s_mov_b64 exec, -1
    s_waitcnt lgkmcnt(0)
    s_barrier
    s_cmp_lg_u32 s3, 0
    s_cbranch_scc1 {skip}
    ds_read_b32 v11, v74
    ds_read_b32 v12, v74 offset:128
    ds_read_b32 v13, v74 offset:256
    ds_read_b32 v14, v74 offset:384
    v_add_f32 v11, v11, v12
    v_add_f32 v13, v13, v14
    v_add_f32 v11, v11, v13
    """)
    bf16r(A, "v11", "v11")
    A("v_add_f32 v11, s42, v11")
    bf16r(A, "v11", "v11")
    A(f"""
    s_mov_b32 exec_hi, 0
    buffer_store_dword v11, v10, {srd(S_WS)}, s41 offen sc1
    s_mov_b64 exec, -1
    {skip}:
    """)

K2 = dict(BS=16, CC=24, CS=26, TW=28, BH=44, U=64, XR=128, CA=136, GA=168, CB=176, SB=184, Z=192, XF=224)
def k2_pre(A, hook=None):
    r = K2
    A("""
    s_and_b32 s36, s2, 7
    s_bfe_u32 s37, s2, 0x20003
    s_lshl_b32 s37, s37, 3
    s_add_u32 s36, s36, s37
    s_lshr_b32 s37, s2, 5
    s_sub_u32 s39, 64, s36
    s_cmp_eq_u32 s36, 0
    s_cselect_b32 s39, 32, s39
    s_cselect_b64 s[40:41], -1, 0
    s_lshl_b32 s42, s37, 2
    s_add_u32 s43, s42, s3
    s_lshl_b32 s43, s43, 6
    s_add_u32 s44, s43, s36
    s_add_u32 s45, s43, s39
    s_lshl_b32 s44, s44, 10
    s_lshl_b32 s45, s45, 10
    v_lshlrev_b32 v4, 5, v2
    v_lshl_add_u32 v4, v3, 3, v4
    """)
    for uu in range(2):
        for nt in range(2):
            A(f"buffer_load_dwordx2 {v(r['XR']+(uu*2+nt)*2,2)}, v4, {srd(S_X)}, s{44+uu} offen offset:{nt*512}")
    if hook: hook()
    A("""
    v_lshrrev_b32 v5, 2, v2
    v_add_u32 v5, s42, v5
    v_lshlrev_b32 v5, 6, v5
    v_and_b32 v6, 2, v2
    v_cmp_ne_u32 vcc, 0, v6
    v_mov_b32 v7, s36
    v_mov_b32 v8, s39
    v_cndmask_b32 v7, v7, v8, vcc
    v_add_u32 v5, v5, v7
    v_cvt_f32_u32 v5, v5
    v_mul_f32 v5, 0x3a000000, v5
    v_and_b32 v6, 1, v2
    v_cvt_f32_u32 v6, v6
    v_mul_f32 v6, 0x3e800000, v6
    v_mov_b32 v7, 0xbe800000
    v_mov_b32 v8, 0x3e800000
    v_cndmask_b32 v7, v7, v8, vcc
    v_cndmask_b32 v7, v7, 0, s[40:41]
    v_add_f32 v7, v7, v6
    v_cndmask_b32 v8, 1.0, 0, vcc
    v_cndmask_b32 v9, 0, 1.0, vcc
    v_cndmask_b32 v8, 1.0, v8, s[40:41]
    v_cndmask_b32 v9, 1.0, v9, s[40:41]
    v_lshlrev_b32 v10, 2, v3
    v_cvt_f32_u32 v10, v10
    """)
    T = 64
    NQ = 72
    for ks in range(2):
        for i in range(4): A(f"v_add_f32 v{NQ+ks*4+i}, {fbits(16*ks+i)}, v10")
    for ks in range(2):
        for i in range(4):
            A(f"v_fma_f32 v{T+2*i}, v{NQ+ks*4+i}, v5, v6\nv_fma_f32 v{T+2*i+1}, v{NQ+ks*4+i}, v5, v7")
        for i in range(8): A(f"v_cos_f32 v{T+i}, v{T+i}")
        for i in range(4):
            A(f"v_pk_mul_f32 {v(T+2*i,2)}, {v(T+2*i,2)}, v[8:9]")
            A(f"v_cvt_pk_bf16_f32 v{r['BS']+ks*4+i}, v{T+2*i}, v{T+2*i+1}")
    A("v_cvt_f32_u32 v12, v2\nv_mul_f32 v13, 0x3d800000, v12")
    for j in range(4): A(f"v_mul_f32 v{T+j}, v{NQ+j}, v13")
    for j in range(4): A(f"v_sin_f32 v{T+4+j}, v{T+j}")
    for j in range(4): A(f"v_cos_f32 v{T+j}, v{T+j}")
    for jj in range(2):
        A(f"v_cvt_pk_bf16_f32 v{r['CC']+jj}, v{T+2*jj}, v{T+2*jj+1}\nv_cvt_pk_bf16_f32 v{r['CS']+jj}, v{T+4+2*jj}, v{T+5+2*jj}")
    A("v_mul_f32 v13, 0x3b000000, v12\ns_lshl_b32 s46, s3, 3\nv_cvt_f32_u32 v14, s46")
    for t in range(8):
        A(f"v_add_f32 v11, {fbits(t)}, v14\nv_mul_f32 v{T+t}, v11, v13")
    for t in range(8):
        A(f"v_cos_f32 v{r['TW']+2*t}, v{T+t}\nv_sin_f32 v{r['TW']+2*t+1}, v{T+t}")
    for nt in range(2):
        A(f"v_add_f32 v13, {fbits(16*nt)}, v12\nv_mul_f32 v13, 0x3d000000, v13")
        for ks in range(2):
            for i in range(4): A(f"v_mul_f32 v{T+i}, v{NQ+ks*4+i}, v13")
            for i in range(4): A(f"v_sin_f32 v{T+4+i}, v{T+i}")
            for i in range(4): A(f"v_cos_f32 v{T+i}, v{T+i}")
            for i in range(4): A(f"v_cvt_pk_bf16_f32 v{r['BH']+(nt*2+ks)*4+i}, v{T+i}, v{T+4+i}")
    A(f"""
    v_mul_u32_u24 v5, {4*UN2()}, v3
    v_lshl_add_u32 v5, v2, 4, v5
    s_mul_i32 s46, s36, {USLOT()}
    s_mul_i32 s47, s3, {UOCT()}
    s_add_u32 s46, s46, s47
    s_add_u32 s46, s46, {WS_U}
    s_add_u32 s47, s46, {2*UN2()}
    s_add_u32 s48, s46, {16*UN2()}
    s_add_u32 s49, s46, {18*UN2()}
    s_add_u32 s76, s46, {UN2()}
    s_add_u32 s77, s47, {UN2()}
    s_add_u32 s78, s48, {UN2()}
    s_add_u32 s79, s49, {UN2()}
    v_lshlrev_b32 v6, 7, v3
    s_lshl_b32 s50, s3, 9
    s_add_u32 s50, s50, {WS_MOD}
    s_cmp_eq_u32 s2, 0
    s_cselect_b32 s59, s50, {WS_SIZE}
    v_lshlrev_b32 v7, 4, v1
    v_lshl_add_u32 v8, v3, 5, v2
    v_mul_u32_u24 v8, 144, v8
    s_lshl_b32 s51, s3, 5
    s_add_u32 s51, s51, {K2EX}
    v_add_u32 v8, s51, v8
    v_mul_u32_u24 v9, 144, v2
    v_lshl_add_u32 v9, v3, 4, v9
    s_mul_i32 s51, s3, {32*144}
    s_add_u32 s51, s51, {K2EX}
    v_add_u32 v9, s51, v9
    s_mul_i32 s51, s3, 2080
    s_add_u32 s51, s51, {K2HB}
    v_add_u32 v10, s51, v4
    v_and_b32 v11, 7, v0
    v_lshrrev_b32 v12, 3, v0
    v_mul_u32_u24 v13, 1040, v11
    v_lshl_add_u32 v13, v12, 4, v13
    v_add_u32 v13, {K2HB}, v13
    v_lshlrev_b32 v11, 4, v11
    v_lshl_add_u32 v11, v12, 9, v11
    s_lshl_b32 s51, s36, 3
    s_add_u32 s51, s51, s37
    s_lshl_b32 s52, s51, 13
    s_lshl_b32 s53, s3, 11
    s_add_u32 s52, s52, s53
    s_add_u32 s52, s52, {WS_X1}
    s_add_u32 s53, s52, 1024
    s_lshr_b32 s54, s51, 2
    s_lshl_b32 s54, s54, 15
    s_and_b32 s55, s51, 3
    s_lshl_b32 s55, s55, 7
    s_add_u32 s54, s54, s55
    s_add_u32 s54, s54, {WS_H2}
    s_add_u32 s55, s54, 16384
    s_mov_b32 s56, {WS_MOD+2*2048}
    s_mov_b32 s57, {WS_MOD+3*2048}
    s_mov_b32 s58, {WS_MOD+4*2048}
    s_lshl_b32 s62, s51, 7
    s_add_u32 s62, s62, {WS_F2}
    """)

def k2_main(A):
    r = K2
    U, Z = r['U'], r['Z']
    sk0 = A.label("k2sl")
    A(f"s_cmp_lg_u32 s2, 0\ns_cbranch_scc1 {sk0}")
    for t in range(8):
        A(f"buffer_load_dwordx4 {a(4*t,4)}, v6, {srd(S_WS)}, s50 offen offset:{t*16} sc1")
    A(f"{sk0}:")
    for hh in range(2):
        for ks in range(2):
            for i in range(4):
                A(f"buffer_load_dwordx4 {v(U+((ks*2+hh)*4+i)*4,4)}, v5, {srd(S_WS)}, s{(46, 76)[i&1]+ks*2+(i>>1)} offen offset:{hh*256} sc1")
    for t in range(8):
        A(f"buffer_load_dwordx4 {v(r['CA']+4*t,4)}, v6, {srd(S_WS)}, s50 offen offset:{2048+t*16} sc1")
    for nm, sr in (("GA", 56), ("CB", 58), ("SB", 57)):
        for nt in range(2):
            A(f"buffer_load_dwordx4 {v(r[nm]+nt*4,4)}, v7, {srd(S_WS)}, s{sr} offen offset:{nt*1024} sc1")
    A.touch_regs([("v", U)])
    for uu in range(2):
        for nt in range(2):
            xr = r['XR'] + (uu*2+nt)*2; xf = r['XF'] + (uu*2+nt)*4
            A(f"v_lshlrev_b32 v{xf}, 16, v{xr}\nv_and_b32 v{xf+1}, 0xffff0000, v{xr}\nv_lshlrev_b32 v{xf+2}, 16, v{xr+1}\nv_and_b32 v{xf+3}, 0xffff0000, v{xr+1}")
    pfl = [op for ch in range(opt("pfA", 0) + opt("pf1", 0), opt("pfB", 5)) for op in wchunk_ops(ch, ch, f"w{ch}")]
    if opt("pfBpos", 0) == 0:
        for op in pfl: A(*op)
    if opt("pfBpos", 0) in (0, 3): pfl = []
    if opt("touch", 0) == 7 and opt("tlate", 0) == 1: touch_late(A)
    if opt("touch", 0) == 8: touch(A)
    if opt("touch", 0) == 9: touch(A, "d")
    if TS and opt("tsu", 1): A(f"v_mov_b32 v{U+60}, v{U+60}"); ts(A, "uarr")
    for hh in range(2):
        for ks in range(2):
            b = U + (ks*2+hh)*16
            for i in range(4):
                for t in range(i+1, 4): A(f"v_swap_b32 v{b+4*i+t}, v{b+4*t+i}")
        for t in range(4):
            for ks in range(2):
                z = Z + (hh*4+t)*4
                A(f"v_mfma_f32_16x16x32_bf16 {v(z,4)}, {v(U+(ks*2+hh)*16+4*t,4)}, {v(r['BS']+ks*4,4)}, {v(z,4) if ks else 0}")
                if pfl and opt("pfBpos", 0) != 4 and (hh == 1 or opt("pfBpos", 0) == 2): A(*pfl.pop(0))
    if opt("pfBpos", 0) != 4:
        for op in pfl: A(*op)
        pfl = []
    ZP, P, Q = 64, 80, 112
    for t in range(8):
        for h in range(2): A(f"v_pk_mul_f32 {v(Z+4*t+2*h,2)}, {v(Z+4*t+2*h,2)}, {v(r['CA']+4*t+2*h,2)}")
    sk = A.label("k2sa")
    A(f"s_cmp_lg_u32 s2, 0\ns_cbranch_scc1 {sk}")
    A("s_mov_b32 s59, 0x45000000\ns_mov_b32 exec_lo, 0x00010001\ns_mov_b32 exec_hi, 0x00010001")
    for i in range(32):
        A(f"v_accvgpr_read_b32 v{P}, a{i}\nv_fma_f32 v{Z+i}, v{P}, s59, v{Z+i}")
    A(f"s_mov_b64 exec, -1\n{sk}:")
    for t in range(8):
        A(f"v_cvt_pk_bf16_f32 v{ZP+2*t}, v{Z+4*t}, v{Z+4*t+1}\nv_cvt_pk_bf16_f32 v{ZP+2*t+1}, v{Z+4*t+2}, v{Z+4*t+3}")
        if t >= 1:
            A(f"v_mfma_f32_16x16x16_bf16 {v(P+4*(t-1),4)}, {v(ZP+2*(t-1),2)}, {v(r['CC'],2)}, 0")
            A(f"v_mfma_f32_16x16x16_bf16 {v(Z+4*(t-1),4)}, {v(ZP+2*(t-1),2)}, {v(r['CS'],2)}, 0")
    A(f"v_mfma_f32_16x16x16_bf16 {v(P+28,4)}, {v(ZP+14,2)}, {v(r['CC'],2)}, 0")
    A(f"v_mfma_f32_16x16x16_bf16 {v(Z+28,4)}, {v(ZP+14,2)}, {v(r['CS'],2)}, 0")
    Q = Z; W = 112
    for hh in range(2):
        for uu in range(2):
            idx = [(P+4*(hh*4+t4)+2*uu, Q+4*(hh*4+t4)+2*uu, r['TW']+2*(hh*4+t4), W+uu*8+hh*4+t4) for t4 in range(4)]
            for p, q, tw, w in idx: A(f"v_pk_add_f32 {v(p,2)}, {v(p,2)}, {v(q,2)} op_sel:[0,1] op_sel_hi:[1,0] neg_hi:[0,1]")
            for p, q, tw, w in idx: A(f"v_pk_mul_f32 {v(q,2)}, {v(p,2)}, {v(tw,2)} op_sel:[0,0] op_sel_hi:[1,0]")
            for p, q, tw, w in idx: A(f"v_pk_fma_f32 {v(q,2)}, {v(p,2)}, {v(tw,2)}, {v(q,2)} op_sel:[1,1,0] op_sel_hi:[0,1,1] neg_hi:[1,0,0]")
            for p, q, tw, w in idx: A(f"v_cvt_pk_bf16_f32 v{w}, v{q}, v{q+1}")
            A(f"ds_write_b128 v8, {v(W+uu*8+hh*4,4)} offset:{uu*16*144+hh*16}")
    A("s_waitcnt lgkmcnt(0)\ns_barrier")
    ts(A, "h1")
    AF, Y = 80, 96
    for uu in range(2):
        for ks in range(2):
            A(f"ds_read_b128 {v(AF+(uu*2+ks)*4,4)}, v9 offset:{uu*16*144+ks*64}")
    for op in pfl[:4]: A(*op)
    pfl = pfl[4:]
    for uu in range(2):
        for ks in range(2):
            for nt in range(2):
                y = Y + (uu*2+nt)*4
                A(f"v_mfma_f32_16x16x32_bf16 {v(y,4)}, {v(AF+(uu*2+ks)*4,4)}, {v(r['BH']+(nt*2+ks)*4,4)}, {v(y,4) if ks else 0}")
                if pfl: A(*pfl.pop(0))
    for op in pfl: A(*op)
    XP = 168 if opt("latex1", 0) == 2 else 112
    for uu in range(2):
        for nt in range(2):
            y = Y + (uu*2+nt)*4; xf = r['XF'] + (uu*2+nt)*4; g = r['GA'] + nt*4
            for h in range(2):
                A(f"v_pk_fma_f32 {v(y+2*h,2)}, {v(y+2*h,2)}, {v(g+2*h,2)}, {v(xf+2*h,2)}")
        y = Y + uu*8; t = 64 + 4*uu
        A(f"v_pk_add_f32 {v(t,2)}, {v(y,2)}, {v(y+2,2)}\nv_pk_mul_f32 {v(t+2,2)}, {v(y,2)}, {v(y,2)}")
        A(f"v_pk_add_f32 {v(t,2)}, {v(t,2)}, {v(y+4,2)}\nv_pk_fma_f32 {v(t+2,2)}, {v(y+2,2)}, {v(y+2,2)}, {v(t+2,2)}")
        A(f"v_pk_add_f32 {v(t,2)}, {v(t,2)}, {v(y+6,2)}\nv_pk_fma_f32 {v(t+2,2)}, {v(y+4,2)}, {v(y+4,2)}, {v(t+2,2)}")
        A(f"v_add_f32 v{72+2*uu}, v{t}, v{t+1}\nv_pk_fma_f32 {v(t+2,2)}, {v(y+6,2)}, {v(y+6,2)}, {v(t+2,2)}")
        A(f"v_add_f32 v{73+2*uu}, v{t+2}, v{t+3}")
    def x1_store(uu, nt):
        y = Y + (uu*2+nt)*4; xp = XP + (uu*2+nt)*2
        A(f"v_cvt_pk_bf16_f32 v{xp}, v{y}, v{y+1}\nv_cvt_pk_bf16_f32 v{xp+1}, v{y+2}, v{y+3}")
        A(f"buffer_store_dwordx2 {v(xp,2)}, v4, {srd(S_WS)}, s{52+uu} offen offset:{nt*512} sc1", tag="st")
    late_x1 = opt("latex1", 0)
    def x1_cvt(uu, nt):
        y = Y + (uu*2+nt)*4; xp = XP + (uu*2+nt)*2
        A(f"v_cvt_pk_bf16_f32 v{xp}, v{y}, v{y+1}\nv_cvt_pk_bf16_f32 v{xp+1}, v{y+2}, v{y+3}")
    def x1_st(uu, nt):
        A(f"buffer_store_dwordx2 {v(XP+(uu*2+nt)*2,2)}, v4, {srd(S_WS)}, s{52+uu} offen offset:{nt*512} sc1", tag="x1")
    if late_x1: x1_store = x1_cvt
    A("v_permlane16_swap_b32 v72, v73\nv_permlane16_swap_b32 v74, v75\nv_add_f32 v72, v72, v73\nv_add_f32 v74, v74, v75")
    x1_store(0, 0)
    A("v_permlane32_swap_b32 v72, v74\nv_add_f32 v72, v72, v74")
    x1_store(0, 1)
    A("v_add_f32 v72, v72, v72 row_ror:8")
    A(f"v_mov_b32 v76, 0x3b000000\nv_mov_b32 v77, {fbits(1e-5)}")
    A("v_add_f32 v72, v72, v72 row_ror:4")
    x1_store(1, 0)
    A("v_add_f32 v72, v72, v72 row_ror:2")
    x1_store(1, 1)
    A("""
    v_add_f32 v72, v72, v72 row_ror:1
    v_mul_f32 v72, v72, v76
    v_readlane_b32 s40, v72, 0
    v_readlane_b32 s41, v72, 16
    v_readlane_b32 s42, v72, 32
    v_readlane_b32 s43, v72, 48
    v_mov_b32 v64, s40
    v_mov_b32 v66, s42
    v_fma_f32 v65, -v64, v64, s41
    v_fma_f32 v67, -v66, v66, s43
    v_max_f32 v65, 0, v65
    v_max_f32 v67, 0, v67
    v_add_f32 v65, v65, v77
    v_add_f32 v67, v67, v77
    v_rsq_f32 v65, v65
    v_rsq_f32 v67, v67
    v_mul_f32 v64, -v64, v65
    v_mul_f32 v66, -v66, v67
    """)
    HP = 120
    for uu in range(2):
        for nt in range(2):
            y = Y + (uu*2+nt)*4
            for h in range(2):
                A(f"v_pk_fma_f32 {v(y+2*h,2)}, {v(y+2*h,2)}, {v(64+2*uu,2)}, {v(64+2*uu,2)} op_sel:[0,1,0] op_sel_hi:[1,1,0]")
            for h in range(2):
                A(f"v_pk_fma_f32 {v(y+2*h,2)}, {v(y+2*h,2)}, {v(r['CB']+nt*4+2*h,2)}, {v(r['SB']+nt*4+2*h,2)}")
            hp = HP + (uu*2+nt)*2
            A(f"v_cvt_pk_bf16_f32 v{hp}, v{y}, v{y+1}\nv_cvt_pk_bf16_f32 v{hp+1}, v{y+2}, v{y+3}")
            A(f"ds_write_b64 v10, {v(hp,2)} offset:{uu*1040+nt*512}")
    A("s_waitcnt lgkmcnt(0)\ns_barrier")
    A("ds_read_b128 v[64:67], v13\nds_read_b128 v[68:71], v13 offset:512")
    A(f"buffer_store_dwordx4 v[64:67], v11, {srd(S_WS)}, s54 offen sc1", tag="st")
    A(f"buffer_store_dwordx4 v[68:71], v11, {srd(S_WS)}, s55 offen sc1", tag="st")
    if late_x1 == 1:
        for uu in range(2):
            for nt in range(2): x1_st(uu, nt)
    if late_x1 == 2:
        A("v_mov_b32 v176, v4\ns_mov_b32 s80, s52\ns_mov_b32 s81, s53")

WD_ORDER = [37, 38, 39] + list(range(13, 37)) + list(range(0, 13)) + [37, 38, 39]
def k4_ids(A):
    if opt("R", 4) == 4:
        A("s_and_b32 s36, s2, 7\ns_lshl_b32 s36, s36, 2\ns_bfe_u32 s38, s2, 0x20003\ns_add_u32 s36, s36, s38\ns_lshr_b32 s37, s2, 5")
    else:
        A("s_bfe_u32 s36, s2, 0x20001\ns_lshl_b32 s36, s36, 3\ns_bfe_u32 s38, s2, 0x30003\ns_add_u32 s36, s36, s38\ns_and_b32 s37, s2, 1\ns_lshl_b32 s37, s37, 2\ns_lshr_b32 s38, s2, 6\ns_add_u32 s37, s37, s38")
    A("s_lshr_b32 s38, s3, 1\ns_and_b32 s39, s3, 1")
def wd_setup(A):
    k4_ids(A)
    A(f"""
    v_lshrrev_b32 v244, 3, v1
    v_lshlrev_b32 v{V_D}, 10, v244
    v_and_b32 v245, 7, v1
    v_lshlrev_b32 v244, 1, v244
    v_and_b32 v244, 4, v244
    v_xor_b32 v245, v245, v244
    v_lshl_add_u32 v{V_D}, v245, 4, v{V_D}
    s_mul_i32 s{S_DG}, s38, {688*1024}
    s_lshl_b32 s41, s37, 7
    s_add_u32 s{S_DG}, s{S_DG}, s41
    s_lshl_b32 s41, s39, 13
    s_add_u32 s{S_DG}, s{S_DG}, s41
    s_lshl_b32 s{S_DL}, s3, 10
    """)
def wd_op(step, tag):
    t = f"s_add_u32 m0, s{S_DL}, {WD_ORDER[step]*4096}\ns_add_u32 s{S_T}, s{S_DG}, {step*16384}\n"
    t += f"buffer_load_dwordx4 v{V_D}, {srd(S_WD)}, s{S_T} offen {opt('dpol','')} lds"
    return (t, tag)

def k3_ids(A):
    A(sl_expr() + "\ns_mov_b32 s37, s38\n" + rb_expr())
def k3_pre(A):
    wd_setup(A)
    k3_ids(A)
    A(f"""
    s_lshl_b32 s45, s36, 2
    s_add_u32 s45, s45, s3
    s_lshl_b32 s46, s45, 15
    s_add_u32 s46, s46, {WS_H2}
    v_lshlrev_b32 v4, 4, v1
    v_bfe_u32 v5, v1, 1, 1
    v_mul_u32_u24 v5, {UOFF}, v5
    v_bfe_u32 v6, v1, 2, 2
    v_bfe_u32 v7, v1, 5, 1
    v_lshl_add_u32 v6, v7, 3, v6
    v_mul_u32_u24 v6, 192, v6
    v_add_u32 v5, v5, v6
    v_bfe_u32 v6, v1, 4, 1
    v_lshl_add_u32 v5, v6, 4, v5
    v_and_b32 v6, 1, v1
    v_lshl_add_u32 v5, v6, 3, v5
    v_add_u32 v6, {2*SLOT}, v5
    v_add_u32 v7, {4*SLOT}, v5
    s_mul_i32 s47, s45, {86*1024}
    s_mul_i32 s48, s37, {6*1024}
    s_add_u32 s47, s47, s48
    s_add_u32 s47, s47, {WS_ACT}
    s_add_u32 s48, s47, 2048
    s_add_u32 s51, s47, 4096
    s_cmp_eq_u32 s37, 14
    s_cselect_b32 s48, {WS_SIZE}, s48
    s_cselect_b32 s51, {WS_SIZE}, s51
    s_lshl_b32 s49, s2, 2
    s_add_u32 s49, s49, s3
    s_mul_i32 s49, s49, 11
    v_min_u32 v246, 10, v1
    v_add_u32 v246, s49, v246
    v_lshlrev_b32 v246, 7, v246
    v_mov_b32 v14, {LOG2E}
    v_mov_b32 v15, {LOG2E}
    s_lshl_b32 s61, s36, 4
    s_add_u32 s61, s61, s37
    s_lshl_b32 s61, s61, 7
    s_add_u32 s61, s61, {WS_F3}
    s_lshl_b32 s62, s36, 11
    s_add_u32 s62, s62, {WS_F2}
    """)

def x1_ops():
    return [(f"buffer_store_dwordx2 {v(168+(uu*2+nt)*2,2)}, v176, {srd(S_WS)}, s{80+uu} offen offset:{nt*512} sc1", "x1") for uu in range(2) for nt in range(2)]
def k3_main(A, idle):
    ACC, AF, NAF = 16, 112, 8
    T, PK = 144, 160
    done = A.label("k3done")
    def h2_op(k):
        t = "s_add_u32 s46, s46, 4096\n" if (k and k % 4 == 0) else ""
        return (t + f"buffer_load_dwordx4 {a(4*k,4)}, v4, {srd(S_WS)}, s46 offen offset:{(k%4)*1024} sc1", None)
    H0 = opt("h0", 12)
    for k in range(H0): A(h2_op(k)[0])
    order = [(k, j) for k in range(32) for j in range(6)]
    def slot_of(k):
        ch = k // 4
        return ch if ch < 6 else ch - 6
    def frag_read(n):
        k, j = order[n]
        sl = slot_of(k)
        base = ("v5", "v6", "v7")[sl // 2]
        off = (sl % 2)*SLOT + (k % 4)*16*192 + j*32
        b = AF + (n % NAF)*4
        return f"ds_read_b64_tr_b16 {v(b,2)}, {base} offset:{off}\nds_read_b64_tr_b16 {v(b+2,2)}, {base} offset:{off+4*192}"
    side = []
    n0 = 0
    for k in range(H0, 32): side.append((n0, *h2_op(k))); n0 += 2
    pfB = opt("pfB", 5) + opt("pf3", 0)
    for ch in range(pfB, 6):
        for op in wchunk_ops(ch, ch, f"w{ch}"): side.append((n0, *op)); n0 += 2
    if opt("touch", 0) == 10:
        side.append((max(n0, opt("dtn", 0)), f"s_mov_b64 exec, 0x7ff\nbuffer_load_dword v244, v246, {srd(S_WD)}, 0 offen\ns_mov_b64 exec, -1", None)); n0 = max(n0, opt("dtn", 0)) + 2
    if opt("latex1", 0) == 2:
        for op in x1_ops(): side.append((n0, *op)); n0 += 2
    n0 = max(n0, 48)
    for ch in (6, 7):
        for op in wchunk_ops(ch, ch-6, f"w{ch}"): side.append((n0, *op)); n0 += 2
    for st_ in range(0, 3): side.append((n0, *wd_op(st_, "wd"))); n0 += 3
    n0 = max(n0, 96)
    for st_ in range(3, 14): side.append((n0, *wd_op(st_, "wd"))); n0 += 3
    n0 = max(n0, 138)
    for st_ in range(14, 20): side.append((n0, *wd_op(st_, "wd"))); n0 += 3
    n0 = max(n0, 162)
    for st_ in range(20, 27): side.append((n0, *wd_op(st_, "wd"))); n0 += 3
    PF = NAF - 2
    late = opt("pfBpos", 0) == 3 or opt("pf3", 0)
    if late:
        A("v_accvgpr_read_b32 v13, a0\ns_barrier")
    ts(A, "issued")
    for n in range(PF): A(frag_read(n))
    tc(A, "first")
    for n, (k, j) in enumerate(order):
        acc = ACC + 16*j
        if n % 2 == 0: A.touch_regs([("v", AF+((n+1)%NAF)*4+3)])
        A(f"v_mfma_f32_32x32x16_bf16 {v(acc,16)}, {v(AF+(n%NAF)*4,4)}, {a(4*k,4)}, {v(acc,16) if k else 0}")
        if n == 0: ts(A, "first")
        if side and side[0][0] <= n:
            _, t, tag = side.pop(0); A(t, tag=tag)
        extra = [ch for ch in range(pfB, 5) if n == 24*ch - PF - 1]
        for ch in extra:
            A.wait_tag(f"w{ch}"); A("s_barrier")
        if n in (47, 95, 137, 161):
            if n == 95 and pfB <= 5: A.wait_tag("w5")
            if n == 137: A.wait_tag("w6")
            if n == 161: A.wait_tag("w7")
            A("s_barrier")
            ts(A, f"n{n}")
        if n + PF < 192: A(frag_read(n+PF))
    assert not side, side
    ts(A, "mfma")
    tc(A, "mfma")
    def epi(j):
        acc = ACC + 16*j; pk = PK + 4*(j & 1); t0 = T + 8*(j & 1)
        for hf in range(2):
            g = acc + 8*hf; t = t0 + 4*hf
            for h in range(2): A(f"v_pk_mul_f32 {v(t+2*h,2)}, {v(g+2*h,2)}, v[14:15]")
        for i in range(8): A(f"v_exp_f32 v{t0+i}, v{t0+i}")
        for hf in range(2):
            g, u = acc + 8*hf, acc + 8*hf + 4
            for h in range(2): A(f"v_pk_mul_f32 {v(g+2*h,2)}, {v(g+2*h,2)}, {v(u+2*h,2)}")
        for h in range(4): A(f"v_pk_add_f32 {v(t0+2*h,2)}, {v(t0+2*h,2)}, 1.0 op_sel_hi:[1,0]")
        for i in range(8): A(f"v_rcp_f32 v{t0+i}, v{t0+i}")
        for hf in range(2):
            g = acc + 8*hf; t = t0 + 4*hf
            for h in range(2): A(f"v_pk_mul_f32 {v(g+2*h,2)}, {v(g+2*h,2)}, {v(t+2*h,2)}")
        for hf in range(2):
            g = acc + 8*hf
            A(f"v_cvt_pk_bf16_f32 v{pk+2*hf}, v{g}, v{g+1}\nv_cvt_pk_bf16_f32 v{pk+2*hf+1}, v{g+2}, v{g+3}")
        A(f"buffer_store_dwordx4 {v(pk,4)}, v4, {srd(S_WS)}, s{(47,48,51)[j//2]} offen offset:{(j%2)*1024} sc1", tag="st")
    for j in range(6): epi(j)
    ts(A, "stiss3")
    A(f"s_branch {done}\n{idle}:")
    A.reset()
    if opt("touch", 0) == 11:
        A(f"""
        s_lshl_b32 s49, s36, 2
        s_add_u32 s49, s49, s3
        s_mul_i32 s49, s49, {172*128}
        v_lshlrev_b32 v246, 7, v1
        buffer_load_dword v244, v246, {srd(S_WD)}, s49 offen
        s_add_u32 s50, s49, 8192
        buffer_load_dword v245, v246, {srd(S_WD)}, s50 offen
        s_add_u32 s50, s49, {108*128}
        buffer_load_dword v247, v246, {srd(S_WD)}, s50 offen
        """)
    if opt("latex1", 0) == 2:
        for op in x1_ops(): A(*op)
    for st_ in range(27): A(*wd_op(st_, "wd"))
    A(f"{done}:")
    A.reset()

def k4_pre(A):
    k4_ids(A)
    A(f"""
    s_lshl_b32 s44, s36, 1
    s_add_u32 s44, s44, s39
    s_mul_i32 s44, s44, {86*1024}
    s_mul_i32 s45, s38, {43*1024}
    s_add_u32 s44, s44, s45
    s_add_u32 s44, s44, {WS_ACT}
    v_lshlrev_b32 v4, 4, v1
    v_lshrrev_b32 v8, 3, v0
    v_and_b32 v9, 7, v0
    s_lshl_b32 s46, s36, 16
    s_lshl_b32 s47, s37, 7
    s_add_u32 s46, s46, s47
    s_add_u32 s46, s46, {WS_X1}
    s_add_u32 s48, s46, 32768
    v_lshlrev_b32 v10, 10, v8
    v_lshl_add_u32 v10, v9, 4, v10
    v_lshlrev_b32 v11, 5, v9
    s_lshl_b32 s47, s37, 8
    s_add_u32 s47, s47, {WS_MOD+5*2048}
    s_sub_u32 s49, 64, s36
    s_cmp_eq_u32 s36, 0
    s_cselect_b32 s49, 32, s49
    v_and_b32 v12, 1, v8
    v_cmp_ne_u32 vcc, 0, v12
    v_mov_b32 v12, s36
    v_mov_b32 v13, s49
    v_cndmask_b32 v12, v12, v13, vcc
    v_lshrrev_b32 v13, 1, v8
    v_lshl_add_u32 v12, v13, 6, v12
    v_lshlrev_b32 v12, 10, v12
    v_lshl_add_u32 v12, v9, 4, v12
    s_lshl_b32 s49, s37, 7
    s_add_u32 s50, s49, 0x100000
    v_bfe_u32 v6, v1, 2, 2
    v_bfe_u32 v7, v1, 5, 1
    v_lshl_add_u32 v7, v7, 2, v6
    v_lshlrev_b32 v7, 7, v7
    v_bfe_u32 v13, v1, 4, 1
    v_lshl_add_u32 v7, v13, 5, v7
    v_and_b32 v13, 3, v1
    v_lshl_add_u32 v7, v13, 3, v7
    s_lshl_b32 s41, s38, 11
    v_add_u32 v7, s41, v7
    v_bfe_u32 v13, v1, 3, 1
    v_lshlrev_b32 v13, 6, v13
    v_xor_b32 v6, v7, v13
    v_xor_b32 v7, 64, v6
    v_add_u32 v14, 0x10000, v6
    v_add_u32 v15, 0x10000, v7
    v_add_u32 v16, 0x20000, v6
    v_add_u32 v17, 0x20000, v7
    s_mov_b32 s62, {WS_F3}
    s_lshr_b32 s51, s36, 1
    s_lshl_b32 s51, s51, 4
    v_cmp_eq_u32 vcc, 15, v2
    v_cndmask_b32 v250, v2, 0, vcc
    v_add_u32 v250, s51, v250
    """)
    if opt("latex1", 0):
        A(f"""
        v_and_b32 v251, 7, v1
        v_lshlrev_b32 v251, 5, v251
        s_and_b32 s51, s36, 7
        s_lshr_b32 s52, s36, 3
        s_lshl_b32 s52, s52, 3
        s_add_u32 s51, s51, s52
        v_add_u32 v251, s51, v251
        """)
        if opt("T", 4) == 4:
            A("v_bfe_u32 v252, v251, 1, 2\nv_lshlrev_b32 v252, 2, v252\nv_bfe_u32 v253, v251, 3, 2\nv_add_u32 v252, v252, v253\nv_and_b32 v253, 1, v251\nv_lshlrev_b32 v253, 3, v253\nv_lshrrev_b32 v251, 5, v251")
        else:
            A("v_bfe_u32 v252, v251, 2, 1\nv_lshlrev_b32 v252, 3, v252\nv_bfe_u32 v253, v251, 3, 3\nv_add_u32 v252, v252, v253\nv_and_b32 v253, 3, v251\nv_lshlrev_b32 v253, 2, v253\nv_lshrrev_b32 v251, 6, v251")
        A("v_add_u32 v251, v251, v253\nv_lshl_add_u32 v251, v252, 4, v251\nv_cmp_gt_u32 vcc, 16, v1\nv_cndmask_b32 v250, v251, v250, vcc")
    A("v_lshlrev_b32 v250, 7, v250")

def wd_rest(A):
    for st_ in range(27, 40): A(*wd_op(st_, "dr"))

def k4_main(A):
    ACC, AF, NAF = 32, 64, 8
    XG = 96
    def act_op(k):
        t = "s_add_u32 s44, s44, 4096\n" if (k and k % 4 == 0) else ""
        return (t + f"buffer_load_dwordx4 {a(4*k,4)}, v4, {srd(S_WS)}, s44 offen offset:{(k%4)*1024} sc1", None)
    H0 = opt("a0", 14)
    for k in range(H0): A(act_op(k)[0])
    def frag_read(n):
        k, t = n // 2, n % 2
        ad = WD_ORDER[k]*4096
        base = (("v6", "v7"), ("v14", "v15"), ("v16", "v17"))[ad >> 16][t]
        off = ad & 0xffff
        b = AF + (n % NAF)*4
        return f"ds_read_b64_tr_b16 {v(b,2)}, {base} offset:{off}\nds_read_b64_tr_b16 {v(b+2,2)}, {base} offset:{off+1024}"
    side = []
    n0 = 0
    for k in range(H0, 43): side.append((n0, *act_op(k))); n0 += opt("astep", 1)
    PF = NAF - 2
    N = 86
    ts(A, "issued4")
    for n in range(PF): A(frag_read(n))
    for n in range(N):
        k, t = n // 2, n % 2
        if n % 2 == 0: A.touch_regs([("v", AF+((n+1)%NAF)*4+3)])
        A(f"v_mfma_f32_32x32x16_bf16 {v(ACC+16*t,16)}, {v(AF+(n%NAF)*4,4)}, {a(4*k,4)}, {v(ACC+16*t,16) if k else 0}")
        if n == 0: ts(A, "first4")
        if side and side[0][0] <= n:
            _, tx, tag = side.pop(0); A(tx, tag=tag)
        if n == 47:
            A.wait_tag("dr"); A("s_barrier")
            for st_ in range(40, 43): A(*wd_op(st_, "do"))
            A(f"buffer_load_dwordx4 {v(XG,4)}, v10, {srd(S_WS)}, s46 offen sc1")
            A(f"buffer_load_dwordx4 {v(XG+4,4)}, v10, {srd(S_WS)}, s48 offen sc1")
            A(f"buffer_load_dwordx4 {v(XG+8,4)}, v11, {srd(S_WS)}, s47 offen sc1")
            A(f"buffer_load_dwordx4 {v(XG+12,4)}, v11, {srd(S_WS)}, s47 offen offset:16 sc1")
        if n == 73:
            A.wait_tag("do"); A("s_barrier")
        if n + PF < N: A(frag_read(n+PF))
    assert not side
    ts(A, "mfma4")
    RS = 272
    A(f"""
    s_lshl_b32 s51, s38, 1
    s_add_u32 s51, s51, s39
    s_mul_i32 s51, s51, {32*RS}
    v_and_b32 v6, 31, v1
    v_mul_u32_u24 v6, {RS}, v6
    v_bfe_u32 v7, v1, 5, 1
    v_lshl_add_u32 v6, v7, 4, v6
    v_add_u32 v6, s51, v6
    v_mul_u32_u24 v7, {RS}, v8
    v_lshl_add_u32 v7, v9, 5, v7
    """)
    for t in range(2):
        for j in range(4):
            A(f"ds_write_b128 v6, {v(ACC+16*t+4*j,4)} offset:{t*128+j*32}")
    XF = 112
    for it in range(2):
        for h in range(4): A(f"v_lshlrev_b32 v{XF+it*8+2*h}, 16, v{XG+it*4+h}\nv_and_b32 v{XF+it*8+2*h+1}, 0xffff0000, v{XG+it*4+h}")
    A("s_waitcnt lgkmcnt(0)\ns_barrier")
    RD = 128
    for it in range(2):
        for kh in range(2):
            for hf in range(2):
                A(f"ds_read_b128 {v(RD+it*16+kh*8+hf*4,4)}, v7 offset:{(kh*64+it*32)*RS+hf*16}")
    for it in range(2):
        z = RD + it*16
        for h in range(4): A(f"v_pk_add_f32 {v(z+2*h,2)}, {v(z+2*h,2)}, {v(z+8+2*h,2)}")
        for h in range(4): A(f"v_pk_fma_f32 {v(z+2*h,2)}, {v(z+2*h,2)}, {v(XG+8+2*h,2)}, {v(XF+it*8+2*h,2)}")
        for h in range(4): A(f"v_cvt_pk_bf16_f32 v{z+8+h}, v{z+2*h}, v{z+2*h+1}")
        A(f"buffer_store_dwordx4 {v(z+8,4)}, v12, {srd(S_OUT)}, s{49+it} offen {opt('outsc', '')}")

def flag_set(A, soff, keep=0, reset=True):
    sk = A.label("fs")
    A(f"""
    s_waitcnt vmcnt({keep}) lgkmcnt(0)
    s_barrier
    s_cmp_lg_u32 s3, 0
    s_cbranch_scc1 {sk}
    v_mov_b32 v250, 0
    v_mov_b32 v251, s{S_TOK}
    s_mov_b64 exec, 1
    buffer_store_dword v251, v250, {srd(S_WS)}, s{soff} offen sc1
    s_mov_b64 exec, -1
    {sk}:
    """)
    A.reset()

def late_prefetch(A, chunks, do_touch, nonln):
    n = 0
    if do_touch: touch(A, nonln=nonln); n += 3
    wchunks(A, chunks); n += 6*len(list(chunks))
    return n

def poll(A, kind, soff, others=None, after0=None):
    sk, lp, w0, jn = A.label("pk"), A.label("pl"), A.label("p0"), A.label("pj")
    A(f"s_cmp_eq_u32 s3, 0\ns_cbranch_scc1 {w0}")
    if others: others(A)
    A(f"s_branch {jn}\n{w0}:\ns_mov_b32 s{S_CNT}, 0")
    nl = 4 if kind == "s64x4" else 1
    if kind == "l16": A("v_lshlrev_b32 v250, 7, v2")
    elif kind == "lst": pass
    elif kind == "s64x4":
        A("v_lshlrev_b32 v250, 6, v1")
        for j in range(1, 4): A(f"s_add_u32 s{71+j}, s{soff}, {j*4096}")
    def issue(base):
        for j in range(nl):
            A(f"buffer_load_dword v{base+j}, v250, {srd(S_WS)}, s{soff if j == 0 else 71+j} offen sc1")
    def check(base):
        if nl == 1: A(f"v_cmp_ne_u32 vcc, s{S_TOK}, v{base}")
        else:
            for j in range(4): A(f"v_xor_b32 v{base+j}, s{S_TOK}, v{base+j}")
            A(f"v_or3_b32 v{base}, v{base}, v{base+1}, v{base+2}\nv_or_b32 v{base}, v{base}, v{base+3}\nv_cmp_ne_u32 vcc, 0, v{base}")
    two = opt("poll2", 0)
    Aa, Bb = 252, 244
    if two:
        issue(Aa)
        A(f"{lp}:")
        issue(Bb); A(f"s_waitcnt vmcnt({nl})"); check(Aa)
        A(f"s_add_u32 s{S_CNT}, s{S_CNT}, 1\ns_cbranch_vccz {sk}")
        issue(Aa); A(f"s_waitcnt vmcnt({nl})"); check(Bb)
        A(f"s_cmp_ge_u32 s{S_CNT}, {MAXPOLL}\ns_cbranch_scc1 {sk}\ns_cbranch_vccnz {lp}\n{sk}:")
    else:
        A(f"{lp}:")
        issue(Aa); A("s_waitcnt vmcnt(0)"); check(Aa)
        A(f"s_add_u32 s{S_CNT}, s{S_CNT}, 1\ns_cmp_ge_u32 s{S_CNT}, {MAXPOLL}\ns_cbranch_scc1 {sk}\ns_cbranch_vccnz {lp}\n{sk}:")
    A.reset()
    if after0: after0(A)
    A(f"{jn}:\ns_barrier")

def build():
    A = Asm()
    name = NAME + "_kernel"
    kernel_begin(A, name)
    done = A.label("done")
    if TS: A("s_memrealtime s[62:63]\ns_waitcnt lgkmcnt(0)")
    entry(A, done)
    if TS:
        A("v_mov_b32 v248, 0\nv_writelane_b32 v248, s62, 0"); _ts["n"] = 1; _ts["names"] = ["entry"]
    m, i_, e = A.label("k1mod"), A.label("k1idle"), A.label("k1end")
    tok = f"s_waitcnt lgkmcnt(0)\ns_mul_i32 s{S_TOK}, s{S_TOK}, 0x9e3779b1\ns_add_u32 s{S_TOK}, s{S_TOK}, 0x7f4a7c15\ns_lshl_b32 s62, s2, 6\ns_add_u32 s62, s62, {WS_F1}"
    pfA = range(opt("pfA", 0)); tm = opt("touch", 0)
    A(f"s_cmp_ge_u32 s2, 128\ns_cbranch_scc1 {m}")
    k1_ln(A)
    ts(A, "stiss")
    if tm == 9: touch(A, "gu")
    keep = (2 if tm == 9 else 0) + late_prefetch(A, pfA if opt("pfApos", 0) == 3 else [], tm == 5, False)
    A(tok); flag_set(A, 62, keep)
    A(f"s_branch {e}\n{m}:\ns_cmp_ge_u32 s2, 224\ns_cbranch_scc1 {i_}")
    A.reset()
    k1_mod(A)
    tsx(A, 62)
    A.reset()
    keep = late_prefetch(A, pfA if opt("pfMpos", 0) == 3 else [], tm in (5, 6), tm == 6)
    A(tok); flag_set(A, 62, keep)
    if tm == 4 and opt("tafter", 0): touch(A, nonln=True)
    A(f"s_branch {e}\n{i_}:")
    A.reset()
    A(small_srd(S_X, 2097152) + "\n" + small_srd(S_C, 1024) + "\ns_waitcnt lgkmcnt(0)")
    common_setup(A)
    A(tok); flag_set(A, 62, 63)
    if opt("idledelay", 0):
        A(f"v_lshlrev_b32 v4, 2, v0\nbuffer_load_dword v8, v4, {srd(S_C)}, 0 offen\ns_waitcnt vmcnt(0)")
    if tm == 7: touch_early(A)
    if tm == 9: touch(A, "gu")
    if tm in (10, 11): touch(A, "gu", nonln=True)
    if tm in (2, 5): touch(A)
    if tm in (3, 4, 6): touch(A, nonln=True)
    wchunks(A, pfA)
    A(f"{e}:")
    A.reset()
    ts(A, "f1set")
    k2_pre(A, (lambda: wchunks(A, range(opt("pfA", 0), opt("pfA", 0) + opt("pf1", 0)))) if not opt("prefirst", 0) else None)
    if opt("touch", 0) == 7: touch_late_setup(A)
    if opt("touch", 0) == 7 and opt("tlate", 0) == 0: touch_late(A)
    ts(A, "pre")
    if opt("prefirst", 0): wchunks(A, range(opt("pfA", 0), opt("pfA", 0) + opt("pf1", 0)))
    A(f"s_mov_b32 s63, {WS_F1}")
    poll(A, "s64x4", 63)
    A.reset()
    ts(A, "sync1")
    k2_main(A)
    ts(A, "stiss2")
    keep = late_prefetch(A, range(opt("pfA", 0) + opt("pf1", 0), opt("pfB", 5)) if opt("pfBpos", 0) == 3 else [], False, False)
    flag_set(A, 62, keep + (4 if opt("latex1", 0) == 1 else 0))
    ts(A, "f2set")
    wchunks(A, range(opt("pfB", 5), opt("pfB", 5) + opt("pf3", 0)))
    k3_pre(A)
    idle3 = A.label("k3idle")
    A(f"s_cmp_eq_u32 s37, 15\ns_cbranch_scc1 {idle3}")
    poll(A, "l16", 62)
    A.reset()
    ts(A, "sync2")
    k3_main(A, idle3)
    flag_set(A, 61)
    ts(A, "f3set")
    k4_pre(A)
    poll(A, "lst", 62, others=wd_rest, after0=wd_rest)
    ts(A, "sync3")
    k4_main(A)
    sk = A.label("ep")
    A(f"""
    s_or_b32 s63, s2, s3
    s_cmp_lg_u32 s63, 0
    s_cbranch_scc1 {sk}
    v_mov_b32 v250, 0
    v_mov_b32 v251, s{S_TOK}
    s_mov_b32 s63, {WS_EP}
    s_mov_b64 exec, 1
    buffer_store_dword v251, v250, {srd(S_WS)}, s63 offen sc1
    s_mov_b64 exec, -1
    {sk}:
    """)
    ts(A, "end")
    probe_end(A)
    ts_flush(A)
    A(f"{done}:\ns_endpgm")
    code = A.finalize()
    return [(None, (256,1,1), (256,1,1), LDS_TOTAL)], code, [kernel_desc(name, 256, 172)]

if __name__ == "__main__":
    hdr = [l.rstrip("\n") for l in open("cdna_kernels/%s.s.ref" % NAME) if l.startswith(";") and "@launch" not in l][:15]
    out = sys.argv[1]
    for kv in sys.argv[2:]:
        k_, v_ = kv.split("=")
        OPT[k_] = int(v_) if v_.lstrip("-").isdigit() else v_
    TS = bool(opt("ts", 0)); PROBE = opt("probe", None)
    launches, code, descs = build()
    open(out, "w").write(file_text(hdr, launches, code, descs))
    if TS: json.dump([_ts["names"]], open(out[:-2] + ".json", "w"))
```

```python
import re

def v(i, n=1):
    return f"v{i}" if n == 1 else f"v[{i}:{i+n-1}]"
def a(i, n=1):
    return f"a{i}" if n == 1 else f"a[{i}:{i+n-1}]"
def s(i, n=1):
    return f"s{i}" if n == 1 else f"s[{i}:{i+n-1}]"

_reg_re = re.compile(r"^(-|abs\(|\|)?([vas])(?:(\d+)|\[(\d+):(\d+)\])\)?\|?$")

def parse_reg(tok):
    tok = tok.strip()
    if tok in ("vcc",): return [("s", "vcc")]
    if tok in ("vcc_lo", "vcc_hi"): return [("s", "vcc")]
    if tok in ("exec", "exec_lo", "exec_hi"): return [("s", "exec")]
    if tok == "m0": return [("s", "m0")]
    m = _reg_re.match(tok)
    if not m: return []
    k = m.group(2)
    if m.group(3) is not None:
        return [(k, int(m.group(3)))]
    return [(k, i) for i in range(int(m.group(4)), int(m.group(5)) + 1)]

TRANS = ("v_exp_f32", "v_log_f32", "v_rcp_f32", "v_rsq_f32", "v_sqrt_f32", "v_sin_f32", "v_cos_f32", "v_rcp_iflag_f32")

class Ins:
    __slots__ = ("text", "op", "dst", "src", "kind", "tag", "mods", "srcC", "passes", "wide", "srcAB")
    def __init__(self, text, tag=None):
        self.text = text; self.tag = tag
        t = text.split(";")[0].strip()
        self.dst = []; self.src = []; self.kind = "other"; self.srcC = []; self.srcAB = []; self.passes = 0; self.wide = False
        if t.endswith(":") or t.startswith(".") or not t:
            self.op = t; self.kind = "label" if t.endswith(":") else "dir"; self.mods = ""; return
        sp = t.split(None, 1)
        self.op = op = sp[0]
        rest = sp[1] if len(sp) > 1 else ""
        parts = [p.strip() for p in rest.split(",")] if rest else []
        ops = []
        mods = ""
        for i, p in enumerate(parts):
            q = p.split()
            if not q: continue
            ops.append(q[0])
            if len(q) > 1: mods += " " + " ".join(q[1:])
        self.mods = mods = rest
        R = [parse_reg(o) for o in ops]
        flat = lambda L: [x for y in L for x in y]
        if op.startswith("v_mfma"):
            self.kind = "mfma"
            self.dst = R[0]; self.srcAB = R[1] + R[2]; self.srcC = R[3] if len(R) > 3 else []
            self.src = self.srcAB + self.srcC
            if "32x32x16" in op or "32x32x8" in op: self.passes = 8
            elif "16x16x4_f32" in op: self.passes = 8; self.kind = "mfma_s"
            elif "32x32x2_f32" in op: self.passes = 16; self.kind = "mfma_s"
            elif "16x16x32" in op or "16x16x16" in op: self.passes = 4
            else: raise ValueError("unknown mfma " + op)
        elif op.startswith("v_"):
            self.kind = "valu"
            if op.startswith("v_cmp"):
                self.dst = R[0]; self.src = flat(R[1:])
            elif op.startswith("v_swap") or op.startswith("v_permlane"):
                self.dst = R[0] + R[1]; self.src = R[0] + R[1]
            elif op.startswith(("v_add_co", "v_sub_co", "v_addc_co", "v_subb_co")):
                self.dst = R[0] + R[1]; self.src = flat(R[2:])
            else:
                self.dst = R[0]; self.src = flat(R[1:])
                if op.startswith(("v_fmac", "v_dot2c", "v_pk_fmac", "v_writelane")) or "dpp" in op or "row_" in mods or "quad_perm" in mods:
                    self.src = self.src + R[0]
                if op.startswith("v_cndmask") and len(R) == 3:
                    self.src = self.src + [("s", "vcc")]
        elif op.startswith(("buffer_", "global_")):
            if op.startswith(("buffer_inv", "buffer_wbl2")):
                self.kind = "vmem"; return
            self.kind = "vmem"
            islds = re.search(r"\blds\b", mods) is not None or "load_lds" in op
            if "load" in op and not islds:
                self.dst = R[0]; self.src = flat(R[1:])
            elif "atomic" in op and "sc0" in mods:
                self.dst = R[0]; self.src = flat(R)
            else:
                self.src = flat(R)
                if islds: self.src.append(("s", "m0")); self.kind = "vmem_lds"
                if "store" in op and ("x4" in op or "x3" in op):
                    self.wide = True
                    self.srcC = R[0] if op.startswith("buffer_") else R[1]
        elif op.startswith("ds_"):
            self.kind = "ds"
            if op.startswith(("ds_read", "ds_bpermute", "ds_permute", "ds_swizzle")):
                self.dst = R[0]; self.src = flat(R[1:])
            else:
                self.src = flat(R)
        elif op.startswith(("s_load", "s_buffer_load", "s_memtime", "s_memrealtime")):
            self.kind = "smem"; self.dst = R[0]; self.src = flat(R[1:])
        elif op.startswith("s_waitcnt"):
            self.kind = "wait"
        elif op.startswith(("s_cbranch", "s_branch", "s_endpgm", "s_setpc")):
            self.kind = "branch"
        elif op == "s_nop":
            self.kind = "nop"
        elif op.startswith("s_"):
            self.kind = "salu"
            if op.startswith(("s_cmp", "s_bitcmp", "s_barrier", "s_sleep", "s_setprio")):
                self.src = flat(R)
            else:
                self.dst = R[0] if R else []; self.src = flat(R[1:])
                if "saveexec" in op: self.dst = self.dst + [("s", "exec")]; self.src = self.src + [("s", "exec")]
                if op.startswith(("s_addk", "s_mulk")): self.src = self.src + R[0]
        else:
            raise ValueError("unknown instruction " + text)

class Asm:
    def __init__(self):
        self.ins = []
        self.nlabel = 0
    def __call__(self, text, tag=None):
        for l in text.split("\n"):
            l = l.strip()
            if not l or l.startswith(";"): continue
            self.ins.append(Ins(l, tag))
    def label(self, base="L"):
        Asm._n = getattr(Asm, "_n", 0) + 1
        return f".{base}_{Asm._n}"
    def wait_tag(self, tag):
        i = Ins("s_nop 0"); i.kind = "waittag"; i.tag = tag; self.ins.append(i)
    def touch_regs(self, regs):
        i = Ins("s_nop 0"); i.kind = "touch"; i.src = list(regs); self.ins.append(i)
    def drop_tag(self, tag):
        i = Ins("s_nop 0"); i.kind = "droptag"; i.tag = tag; self.ins.append(i)
    def reset(self):
        i = Ins("s_nop 0"); i.kind = "reset"; self.ins.append(i)
    def extend(self, other):
        self.ins.extend(other.ins)

    def _insert_waits(self):
        out = []
        vm = []
        lg = []
        def need(q, regs, getset):
            idx = -1
            for n, e in enumerate(q):
                if getset(e) & regs: idx = n
            return idx
        for I in self.ins:
            if I.kind == "reset":
                vm.clear(); lg.clear(); continue
            if I.kind == "droptag":
                vm[:] = [e for e in vm if e[0] != I.tag]; continue
            if I.tag == "spin":
                out.append(I); continue
            if I.kind == "waittag":
                idx = -1
                for n, e in enumerate(vm):
                    if e[0] == I.tag: idx = n
                if idx >= 0:
                    cnt = len(vm) - 1 - idx
                    out.append(Ins(f"s_waitcnt vmcnt({min(cnt,63)})"))
                    del vm[:idx + 1]
                continue
            if I.kind == "wait":
                m = re.search(r"vmcnt\((\d+)\)", I.text)
                if m:
                    n = int(m.group(1))
                    if len(vm) > n: del vm[:len(vm) - n]
                m = re.search(r"lgkmcnt\((\d+)\)", I.text)
                if m:
                    n = int(m.group(1))
                    if n == 0: lg.clear()
                    elif len(lg) > n and not any(e[0] == "smem" for e in lg): del lg[:len(lg) - n]
                out.append(I); continue
            regs = set(I.src) | set(I.dst)
            if regs:
                idx = need(vm, regs, lambda e: e[1])
                w = []
                if idx >= 0:
                    cnt = len(vm) - 1 - idx
                    if cnt > 63: cnt = 63;
                    w.append(f"vmcnt({cnt})"); del vm[:len(vm) - cnt]
                idx = need(lg, regs, lambda e: e[1])
                if idx >= 0:
                    if any(e[0] == "smem" for e in lg):
                        w.append("lgkmcnt(0)"); lg.clear()
                    else:
                        cnt = min(len(lg) - 1 - idx, 15)
                        w.append(f"lgkmcnt({cnt})"); del lg[:len(lg) - cnt]
                if w: out.append(Ins("s_waitcnt " + " ".join(w)))
            if I.kind in ("vmem", "vmem_lds"):
                vm.append((I.tag, set(I.dst)))
                if len(vm) > 63:
                    pass
            elif I.kind == "ds":
                lg.append(("ds", set(I.dst)))
            elif I.kind == "smem":
                lg.append(("smem", set(I.dst)))
            if I.kind != "touch": out.append(I)
        self.ins = out

    def _hazards(self):
        out = []
        def states(I):
            if I.kind == "nop": return int(I.text.split()[1]) + 1
            if I.kind in ("label", "dir"): return 0
            return 1
        for I in self.ins:
            if I.kind in ("label", "dir", "nop", "wait"):
                out.append(I); continue
            needw = 0
            dist = 0
            S = set(I.src); D = set(I.dst)
            isvalu = I.kind == "valu"
            ismf = I.kind in ("mfma", "mfma_s")
            isdpp = isvalu and ("dpp" in I.op or "row_" in I.mods or "quad_perm" in I.mods)
            for P in reversed(out):
                if dist >= 21: break
                PD = set(P.dst)
                req = 0
                if P.kind == "valu":
                    pv = {r for r in PD if r[0] in "va"}
                    ps = {r for r in PD if r[0] == "s"}
                    if ismf and pv & S: req = max(req, 2)
                    if isvalu and pv & S:
                        if isdpp or I.op.startswith("v_permlane"): req = max(req, 2)
                        if I.op.startswith(("v_readlane", "v_readfirstlane")): req = max(req, 1)
                        if P.op.split("_e")[0] in TRANS and I.op.split("_e")[0] not in TRANS: req = max(req, 1)
                        if "op_sel" in P.mods and not P.op.startswith("v_pk") or "sdwa" in P.op: req = max(req, 1)
                    if ps & S:
                        if isvalu: req = max(req, 4 if I.op.startswith(("v_readlane", "v_writelane")) else 2)
                        if I.kind in ("vmem", "vmem_lds"): req = max(req, 5)
                        if I.kind in ("salu", "smem", "branch"): req = max(req, 1)
                    if ("s", "vcc") in ps and I.op.startswith("s_cbranch_vcc"): req = max(req, 1)
                elif P.kind in ("mfma", "mfma_s"):
                    xdl = P.kind == "mfma"
                    p = P.passes
                    t_valu = {2: 5, 4: 8, 8: 12, 16: 20}[p] if xdl else {2: 4, 4: 6, 8: 10, 16: 18}[p]
                    t_c = {2: 4, 4: 6, 8: 10, 16: 18}[p]
                    if ismf:
                        if PD & set(I.srcAB): req = max(req, t_valu)
                        if PD & set(I.srcC):
                            same = (P.dst == I.srcC and P.passes == I.passes and P.kind == I.kind)
                            if not same: req = max(req, t_c)
                        elif PD & D:
                            req = max(req, t_c)
                    elif (PD & (S | D)) and I.kind in ("valu", "vmem", "vmem_lds", "ds"):
                        req = max(req, t_valu)
                    if isvalu and xdl and set(P.srcC) & D: req = max(req, {2: 1, 4: 3, 8: 7, 16: 15}[p])
                elif P.kind == "salu":
                    if ("s", "m0") in PD and I.kind == "vmem_lds": req = max(req, 1)
                elif P.kind == "vmem" and P.wide:
                    if set(P.srcC) & D: req = max(req, 2)
                if req > dist: needw = max(needw, req - dist)
                dist += states(P)
            while needw > 0:
                n = min(needw, 16)
                out.append(Ins(f"s_nop {n-1}")); needw -= n
            out.append(I)
        self.ins = out

    def finalize(self, waits=True, hazards=True):
        if waits: self._insert_waits()
        else: self.ins = [i for i in self.ins if i.kind not in ("reset", "waittag", "touch", "droptag")]
        if hazards: self._hazards()
        lines = []
        for I in self.ins:
            if I.kind in ("label", "dir"): lines.append(I.text)
            else: lines.append("  " + I.text)
        return "\n".join(lines) + "\n"
    def text(self):
        return self.finalize(waits=False, hazards=False)

def kernel_begin(A, name):
    A(f".globl {name}")
    A(".p2align 8")
    A(f".type {name},@function")
    A(f"{name}:")

def kernel_desc(name, nvgpr, nagpr=0, nsgpr=102, ids="x", denorm=True):
    acc = max(4, (nvgpr + 3) // 4 * 4)
    total = acc + nagpr if nagpr else nvgpr
    t = [f".amdhsa_kernel {name}",
         f"  .amdhsa_next_free_vgpr {total}",
         f"  .amdhsa_next_free_sgpr {nsgpr}",
         f"  .amdhsa_accum_offset {acc}",
         "  .amdhsa_group_segment_fixed_size 0",
         "  .amdhsa_kernarg_size 112",
         "  .amdhsa_user_sgpr_count 2",
         "  .amdhsa_user_sgpr_kernarg_segment_ptr 1",
         "  .amdhsa_system_sgpr_workgroup_id_x 1"]
    if "y" in ids:
        t.append("  .amdhsa_system_sgpr_workgroup_id_y 1")
    if denorm:
        t.append("  .amdhsa_float_denorm_mode_32 3")
    t.append(".end_amdhsa_kernel")
    return "\n".join(t) + "\n"

def file_text(header_lines, launches, code, descs):
    out = []
    out += header_lines
    if len(launches) == 1 and launches[0][0] is None:
        g, b, lds = launches[0][1:]
        out.append(f"; @launch grid=({g[0]},{g[1]},{g[2]}) block=({b[0]},{b[1]},{b[2]}) lds={lds}")
    else:
        for (k, g, b, lds) in launches:
            out.append(f"; @launch kernel={k} grid=({g[0]},{g[1]},{g[2]}) block=({b[0]},{b[1]},{b[2]}) lds={lds}")
    out.append('.amdgcn_target "amdgcn-amd-amdhsa--gfx950"')
    out.append(".text")
    out.append(code)
    out.append('.section .rodata,"a"')
    for d in descs:
        out.append(".p2align 6")
        out.append(d)
    return "\n".join(out)
```

```python
import sys, struct, math, json
from asmlib import *

NAME = "adaLN_cond__spectral_fnet__swiglu_ffn__prompt"
def fbits(x): return "0x%08x" % struct.unpack("<I", struct.pack("<f", x))[0]
OPT = {}
def opt(k, d): return OPT.get(k, d)

WS_U   = 0
WS_MOD = 0x240000
WS_H2  = 0x300000
WS_X1  = 0x500000
WS_ACT = 0x800000
WS_FLG = 0xE00000
WS_TS  = 0xF00000
WS_SIZE = 0x1000000
WS_EP  = WS_FLG
WS_F1  = WS_FLG + 0x1000
WS_F2  = WS_FLG + 0x10000
WS_F3  = WS_FLG + 0x20000
def SLOTSTR(): return 65536 + opt("upad", 0)
def USLOT(): return 512 if opt("upm", 0) else SLOTSTR()
def UOCT(): return 16384 if opt("upm", 0) else 512
def UN2(): return 65536 + opt("upad", 0) if opt("upm", 0) else 2048
MAXPOLL = 60000
LDS_TOTAL = 163840
SLOT = 24640; UOFF = 12320
XCS = 1040
XWS = 16 * XCS
XIMG = LDS_TOTAL - 4 * XWS
XTAB = XIMG - 384
MW = XIMG
MSC = MW + 32768
MRED = MSC + 1024
K2EX = 123200
K2HB = K2EX + 18432
S_X, S_WG, S_WU, S_WD, S_C, S_WM, S_OUT, S_WS = 4, 8, 12, 16, 20, 24, 28, 32
S_TOK, S_CNT, S_SL, S_WL, S_DG, S_DL, S_T, S_T2 = 64, 65, 66, 67, 68, 69, 70, 75
V_W = 240
V_D = 243
def srd(b): return s(b, 4)
LOG2E = fbits(-math.log2(math.e))

TS = False
PROBE = None
_ts = {"n": 0, "names": []}
def ts(A, name=None, cyc=False):
    if not TS: return
    if opt("tsonly", None) and name not in opt("tsonly", "").split("+") and name not in ("f1set", "end"): return
    n = _ts["n"]; _ts["n"] += 1
    _ts["names"].append(("c:" if cyc else "") + name)
    A(f"{'s_memtime' if cyc else 's_memrealtime'} s[98:99]\ns_waitcnt lgkmcnt(0)\nv_writelane_b32 v248, s98, {n}")
def tsx(A, lane):
    if TS: A(f"s_memrealtime s[98:99]\ns_waitcnt lgkmcnt(0)\nv_writelane_b32 v248, s98, {lane}")
def tc(A, name=None): ts(A, name, True)
def probe_end(A):
    if PROBE is None: return
    lp = A.label("pr")
    idx = _ts["names"].index(PROBE)
    A(f"""
    s_waitcnt vmcnt(0) lgkmcnt(0)
    v_readlane_b32 s90, v248, 0
    v_readlane_b32 s91, v248, {idx}
    s_nop 4
    s_sub_u32 s91, s91, s90
    s_cmp_gt_u32 s91, 20000
    s_cselect_b32 s91, 0, s91
    s_add_u32 s91, s91, 6000
    {lp}:
    s_memrealtime s[92:93]
    s_waitcnt lgkmcnt(0)
    s_sub_u32 s92, s92, s90
    s_cmp_lt_u32 s92, s91
    s_cbranch_scc1 {lp}
    """)
def ts_flush(A):
    if not TS: return
    sk = A.label("tsk")
    A(f"s_waitcnt vmcnt(0) lgkmcnt(0)\ns_cmp_lg_u32 s3, 0\ns_cbranch_scc1 {sk}")
    A(f"s_lshl_b32 s64, s2, 8\ns_add_u32 s64, s64, {WS_TS}\nv_lshlrev_b32 v1, 2, v1")
    A(f"buffer_store_dword v248, v1, {srd(S_WS)}, s64 offen")
    A(f"s_waitcnt vmcnt(0)\n{sk}:")

def bf16r(A, dst, src):
    A(f"v_cvt_pk_bf16_f32 {dst}, {src}, {src}\nv_lshlrev_b32 {dst}, 16, {dst}")

def sl_expr(d=38, t=39):
    if opt("T", 4) == 4:
        return f"s_and_b32 s{d}, s2, 1\ns_lshl_b32 s{d}, s{d}, 3\ns_lshr_b32 s{t}, s2, 5\ns_add_u32 s{d}, s{d}, s{t}"
    return f"s_and_b32 s{d}, s2, 3\ns_lshl_b32 s{d}, s{d}, 2\ns_lshr_b32 s{t}, s2, 6\ns_add_u32 s{d}, s{d}, s{t}"
def rb_expr():
    if opt("T", 4) == 4:
        return "s_bfe_u32 s36, s2, 0x20001\ns_lshl_b32 s36, s36, 2\ns_bfe_u32 s39, s2, 0x20003\ns_add_u32 s36, s36, s39"
    return "s_bfe_u32 s36, s2, 0x10002\ns_lshl_b32 s36, s36, 3\ns_bfe_u32 s39, s2, 0x30003\ns_add_u32 s36, s36, s39"
def entry(A, done):
    CP = opt("codepf", 0)
    A(f"""
    s_cmp_ge_u32 s2, 256
    s_cbranch_scc1 {done}
    s_load_dwordx2 s[4:5], s[0:1], 0
    s_load_dwordx2 s[24:25], s[0:1], 80
    s_load_dwordx2 s[20:21], s[0:1], 72
    s_load_dwordx2 s[32:33], s[0:1], 104
    s_load_dwordx2 s[8:9], s[0:1], 48
    s_load_dwordx2 s[12:13], s[0:1], 56
    s_load_dwordx2 s[16:17], s[0:1], 64
    s_load_dwordx2 s[28:29], s[0:1], 88
    v_lshrrev_b32 v2, 6, v0
    v_and_b32 v1, 63, v0
    v_readfirstlane_b32 s3, v2
    """)
    if CP:
        A(f"""
        s_getpc_b64 s[40:41]
        s_and_b32 s40, s40, 0xffffff00
        s_lshr_b32 s42, s2, 3
        s_lshl_b32 s42, s42, 2
        s_add_u32 s42, s42, s3
        s_and_b32 s42, s42, {opt("cpmask", 15)}
        s_lshl_b32 s42, s42, 11
        v_and_b32 v250, 15, v0
        v_lshlrev_b32 v250, 7, v250
        v_add_u32 v250, s42, v250
        v_min_u32 v250, {CP - 128}, v250
        global_load_dword v249, v250, s[40:41]
        """)
    A("v_and_b32 v2, 15, v0\nv_bfe_u32 v3, v0, 4, 2")

def common_setup(A):
    for b, sz in ((S_WG, 1409024), (S_WU, 1409024), (S_WD, 1409024), (S_OUT, 2097152), (S_WS, WS_SIZE)):
        A(f"s_mov_b32 s{b+2}, {sz}\ns_mov_b32 s{b+3}, 0x20000")
    A(f"s_add_u32 s72, s32, {WS_EP}\ns_addc_u32 s73, s33, 0\ns_load_dword s{S_TOK}, s[72:73], 0")
    A(f"""
    {sl_expr(72, 73)}
    s_mul_i32 s{S_SL}, s72, 192
    s_cmp_eq_u32 s72, 15
    s_cselect_b32 s{S_SL}, 0x200000, s{S_SL}
    s_mul_i32 s{S_WL}, s3, 3072
    s_mul_i32 s72, s3, 192
    s_mov_b32 s73, 0x15555556
    """)
    for i in range(3):
        A(f"""
        v_add_u32 v{V_W+i}, s72, v1
        v_add_u32 v{V_W+i}, {64*i}, v{V_W+i}
        v_mul_hi_u32 v244, v{V_W+i}, s73
        v_mul_u32_u24 v245, 12, v244
        v_sub_u32 v{V_W+i}, v{V_W+i}, v245
        v_lshlrev_b32 v{V_W+i}, 4, v{V_W+i}
        v_mul_u32_u24 v244, 2752, v244
        v_add_u32 v{V_W+i}, v{V_W+i}, v244
        """)
    if opt("touch", 11) in (1, 2, 3, 4, 5, 6, 8, 9, 10, 11): touch_setup(A, opt("touch", 11) in (3, 4, 6, 10, 11))
V_W3 = 224
def w3_setup(A):
    A(f"s_sub_u32 s72, s3, 1\ns_lshl_b32 s96, s72, 12\ns_lshl_b32 s72, s72, 8\ns_mov_b32 s73, 0x15555556")
    for i in range(4):
        A(f"""
        v_add_u32 v{V_W3+i}, s72, v1
        v_add_u32 v{V_W3+i}, {64*i}, v{V_W3+i}
        v_mul_hi_u32 v244, v{V_W3+i}, s73
        v_mul_u32_u24 v245, 12, v244
        v_sub_u32 v{V_W3+i}, v{V_W3+i}, v245
        v_lshlrev_b32 v{V_W3+i}, 4, v{V_W3+i}
        v_mul_u32_u24 v244, 2752, v244
        v_add_u32 v{V_W3+i}, v{V_W3+i}, v244
        """)
def w3_chunks(A, chunks):
    w3_setup(A)
    for ch in chunks:
        A(f"s_add_u32 s{S_T2}, s{S_SL}, {ch*64*2752}")
        for mtx, sr in ((0, S_WG), (1, S_WU)):
            for i in range(4):
                A(f"s_add_u32 m0, s96, {ch*SLOT+mtx*UOFF+i*1024}\nbuffer_load_dwordx4 v{V_W3+i}, {srd(sr)}, s{S_T2} offen lds")
def small_srd(b, sz): return f"s_mov_b32 s{b+2}, {sz}\ns_mov_b32 s{b+3}, 0x20000"

def touch_setup(A, nonln=False):
    n = 22 if nonln else 11
    A(f"""
    s_lshl_b32 s{S_T}, s2, 2
    s_add_u32 s{S_T}, s{S_T}, s3
    s_and_b32 s{S_T}, s{S_T}, {511 if nonln else 1023}
    s_mul_i32 s{S_T}, s{S_T}, {n}
    v_min_u32 v246, {n-1}, v1
    v_add_u32 v246, s{S_T}, v246
    v_lshlrev_b32 v246, 7, v246
    """)
def touch(A, which="gud", nonln=False):
    pol = opt("tpol", "")
    A(f"s_mov_b64 exec, {hex((1 << (22 if nonln else 11)) - 1)}")
    if "g" in which: A(f"buffer_load_dword v247, v246, {srd(S_WG)}, 0 offen {pol}")
    if "u" in which: A(f"buffer_load_dword v245, v246, {srd(S_WU)}, 0 offen {pol}")
    if "d" in which: A(f"buffer_load_dword v244, v246, {srd(S_WD)}, 0 offen {pol}")
    A("s_mov_b64 exec, -1")

def touch_early(A):
    rows = 64 * opt("terows", 5)
    n = (rows * 2752 // 128 + 127) // 128
    A(f"""
    s_sub_u32 s38, s2, 224
    s_lshl_b32 s38, s38, 2
    s_add_u32 s38, s38, s3
    s_mul_i32 s38, s38, {n}
    v_min_u32 v246, {n-1}, v1
    v_add_u32 v246, s38, v246
    v_lshlrev_b32 v246, 7, v246
    buffer_load_dword v247, v246, {srd(S_WG)}, 0 offen
    buffer_load_dword v245, v246, {srd(S_WU)}, 0 offen
    """)
    for j in range(1, (n + 63) // 64):
        A(f"""
        v_add_u32 v244, {64*j}, v1
        v_min_u32 v244, {n-1}, v244
        v_add_u32 v244, s38, v244
        v_lshlrev_b32 v244, 7, v244
        buffer_load_dword v239, v244, {srd(S_WG)}, 0 offen
        buffer_load_dword v238, v244, {srd(S_WU)}, 0 offen
        """)
def touch_late_setup(A):
    rows0 = 64 * opt("terows", 5)
    n = ((512 - rows0) * 2752 // 128 + 1023) // 1024
    A(f"""
    s_lshl_b32 s{S_T}, s2, 2
    s_add_u32 s{S_T}, s{S_T}, s3
    s_mul_i32 s71, s{S_T}, 11
    s_mul_i32 s{S_T}, s{S_T}, {n}
    s_add_u32 s{S_T}, s{S_T}, {rows0*2752//128}
    v_min_u32 v246, {max(n-1,0)}, v1
    v_add_u32 v246, s{S_T}, v246
    v_lshlrev_b32 v246, 7, v246
    v_min_u32 v247, 10, v1
    v_add_u32 v247, s71, v247
    v_lshlrev_b32 v247, 7, v247
    """)
def touch_late(A):
    A(f"""
    s_mov_b64 exec, 0x7ff
    buffer_load_dword v245, v246, {srd(S_WG)}, 0 offen
    buffer_load_dword v244, v246, {srd(S_WU)}, 0 offen
    buffer_load_dword v246, v247, {srd(S_WD)}, 0 offen
    s_mov_b64 exec, -1
    """)

def wchunk_ops(chunk, slot, tag):
    ops = []
    for mtx, sr in ((0, S_WG), (1, S_WU)):
        for i in range(3):
            t = f"s_add_u32 m0, s{S_WL}, {slot*SLOT+mtx*UOFF+i*1024}\n"
            if mtx == 0 and i == 0: t += f"s_add_u32 s{S_T2}, s{S_SL}, {chunk*64*2752}\n"
            t += f"buffer_load_dwordx4 v{V_W+i}, {srd(sr)}, s{S_T2} offen {opt('wpol','')} lds"
            ops.append((t, tag))
    return ops
def wchunks(A, chunks):
    for ch in chunks:
        for t, tag in wchunk_ops(ch, ch, f"w{ch}"): A(t, tag=tag)

def k1_ln(A):
    A(f"""
    s_and_b32 s38, s2, 7
    s_lshr_b32 s39, s2, 3
    s_lshr_b32 s40, s39, 2
    s_lshl_b32 s40, s40, 3
    s_add_u32 s36, s38, s40
    s_and_b32 s37, s39, 3
    v_lshrrev_b32 v4, 2, v1
    v_sub_u32 v5, 0, v3
    v_xor_b32 v5, v5, v1
    v_and_b32 v5, 3, v5
    v_lshlrev_b32 v4, 15, v4
    v_lshl_add_u32 v4, v5, 4, v4
    s_lshl_b32 s38, s3, 9
    s_add_u32 s38, s38, s36
    s_lshl_b32 s38, s38, 10
    s_mul_i32 s39, s3, {XWS}
    s_add_u32 s39, s39, {XIMG}
    {small_srd(S_X, 2097152)}
    s_waitcnt lgkmcnt(0)
    """)
    ts(A, "prolog")
    for i in range(16):
        A(f"s_add_u32 m0, s39, {i*(XCS-64)}")
        A(f"buffer_load_dwordx4 v4, {srd(S_X)}, s38 offen offset:{i*64} {opt('xpol','')} lds", tag=f"x{i}")
    common_setup(A)
    BC, NV = 16, 48
    A("""
    v_lshlrev_b32 v5, 3, v3
    v_cvt_f32_u32 v5, v5
    s_and_b32 s40, s3, 1
    s_lshl_b32 s40, s40, 4
    v_add_u32 v6, s40, v2
    v_cmp_eq_u32 vcc, 0, v6
    v_cvt_f32_u32 v6, v6
    v_mul_f32 v6, 0x3c800000, v6
    v_mov_b32 v8, 0x3e800000
    v_cndmask_b32 v9, v6, 0.5, vcc
    v_cndmask_b32 v10, v8, 0, vcc
    """)
    for ks in range(2):
        for j in range(8):
            A(f"v_add_f32 v{NV}, {fbits(32*ks+j)}, v5\nv_mul_f32 v{BC+ks*8+j}, v{NV}, v6\nv_fma_f32 v{BC+16+ks*8+j}, v{NV}, v9, v10")
    for i in range(32): A(f"v_cos_f32 v{BC+i}, v{BC+i}")
    ONES, G, SA = 112, 116, 120
    for i in range(4): A(f"v_mov_b32 v{ONES+i}, 0x3f803f80")
    A(f"""
    v_lshrrev_b32 v5, 2, v2
    v_sub_u32 v5, 0, v5
    v_xor_b32 v5, v5, v3
    v_and_b32 v5, 3, v5
    v_lshlrev_b32 v5, 4, v5
    v_lshl_add_u32 v5, v2, 6, v5
    v_add_u32 v5, s39, v5
    v_lshrrev_b32 v6, 1, v3
    v_mul_u32_u24 v6, {XWS}, v6
    v_and_b32 v7, 3, v1
    v_mul_u32_u24 v7, {XCS}, v7
    v_add_u32 v6, v6, v7
    v_and_b32 v7, 1, v3
    v_lshl_add_u32 v6, v7, 9, v6
    v_bfe_u32 v8, v1, 2, 2
    v_lshl_add_u32 v6, v8, 6, v6
    s_lshr_b32 s41, s3, 1
    s_mul_i32 s42, s41, {8*XCS}
    s_add_u32 s42, s42, {XIMG}
    v_add_u32 v6, s42, v6
    v_lshlrev_b32 v7, 1, v7
    v_xor_b32 v8, s37, v7
    v_lshl_add_u32 v11, v8, 4, v6
    v_xor_b32 v8, 3, v8
    v_lshl_add_u32 v12, v8, 4, v6
    v_add_u32 v12, 256, v12
    s_lshl_b32 s42, s3, 6
    s_add_u32 s42, s42, {XTAB}
    v_lshl_add_u32 v7, v2, 2, s42
    s_lshl_b32 s42, s3, 5
    s_add_u32 s42, s42, {XTAB+256}
    v_lshl_add_u32 v13, v2, 1, s42
    v_lshlrev_b32 v8, 5, v3
    v_add_u32 v8, {XTAB}, v8
    v_lshlrev_b32 v14, 4, v3
    v_add_u32 v14, {XTAB+256}, v14
    s_mov_b32 s42, 0x22222222
    s_mov_b32 s43, 0x22222222
    s_mov_b32 s44, 0x44444444
    s_mov_b32 s45, 0x44444444
    s_mov_b32 s46, 0x88888888
    s_mov_b32 s47, 0x88888888
    v_add_u32 v9, s40, v2
    v_mul_u32_u24 v9, {USLOT()}, v9
    v_lshl_add_u32 v9, v3, 4, v9
    s_mul_i32 s48, s36, {UN2()}
    s_mul_i32 s49, s37, {UOCT()}
    s_add_u32 s48, s48, s49
    s_lshl_b32 s49, s41, 7
    s_add_u32 s48, s48, s49
    s_add_u32 s48, s48, {WS_U}
    """)
    ts(A, "const")
    R = 48
    pfl = [op for ch in range(opt("pfA", 0)) for op in wchunk_ops(ch, ch, f"w{ch}")] if opt("pfApos", 0) == 2 else []
    for i in range(16):
        A.wait_tag(f"x{i}")
        A(f"ds_read_b128 {v(R+4*i,4)}, v5 offset:{i*XCS}")
        for _ in range(2 if i >= 14 - len(pfl)//2 + 7 else 1):
            if pfl and i >= opt("pfAi", 2): A(*pfl.pop(0))
        if i >= 1:
            k = i - 1
            A(f"v_mfma_f32_16x16x32_bf16 {v(G,4)}, {v(R+4*k,4)}, {v(R+4*k,4)}, {v(G,4) if k else 0}")
            A(f"v_mfma_f32_16x16x32_bf16 {v(SA,4)}, {v(ONES,4)}, {v(R+4*k,4)}, {v(SA,4) if k else 0}")
    A("s_barrier")
    late_pf = pfl
    A(f"v_mfma_f32_16x16x32_bf16 {v(G,4)}, {v(R+60,4)}, {v(R+60,4)}, {v(G,4)}")
    A(f"v_mfma_f32_16x16x32_bf16 {v(SA,4)}, {v(ONES,4)}, {v(R+60,4)}, {v(SA,4)}")
    ts(A, "xarr")
    if opt("touch", 11) == 2: touch(A)
    if opt("pfA", 0) and opt("pfApos", 0) == 1: wchunks(A, range(opt("pfA", 0)))
    X = 128
    for tl in range(4):
        for ks in range(2):
            b = X + (tl*2+ks)*4
            off = ks*2*XWS + (tl >> 1)*4*XCS + 8*(tl & 1)
            A(f"ds_read_b64_tr_b16 {v(b,2)}, v11 offset:{off}\nds_read_b64_tr_b16 {v(b+2,2)}, v12 offset:{off}")
    A(f"""
    v_cndmask_b32 v10, v{G}, v{G+1}, s[42:43]
    v_cndmask_b32 v10, v10, v{G+2}, s[44:45]
    v_cndmask_b32 v10, v10, v{G+3}, s[46:47]
    v_mul_f32 v15, 0xbb000000, v{SA}
    v_mul_f32 v10, 0x3b000000, v10
    v_fma_f32 v10, -v15, v15, v10
    v_max_f32 v10, 0, v10
    v_cvt_pk_bf16_f32 v15, v15, v10
    v_and_b32 v10, 0xffff0000, v15
    v_add_f32 v10, {fbits(1e-5)}, v10
    """)
    bf16r(A, "v10", "v10")
    A("v_sqrt_f32 v10, v10")
    bf16r(A, "v10", "v10")
    A("""
    v_rcp_f32 v10, v10
    s_mov_b32 exec_lo, 0x00f0000f
    s_mov_b32 exec_hi, 0xf0000f00
    ds_write_b16 v13, v15
    ds_write_b32 v7, v10
    s_mov_b64 exec, -1
    s_waitcnt lgkmcnt(0)
    s_barrier
    """)
    ts(A, "stats")
    for op in late_pf: A(*op)
    TR, AM, BP, CM, ACC, PK = 48, 64, 72, 88, 160, 96
    for ks in range(2):
        for hf in range(2): A(f"ds_read_b128 {v(TR+ks*8+hf*4,4)}, v8 offset:{ks*128+hf*16}")
        A(f"ds_read_b128 {v(AM+ks*4,4)}, v14 offset:{ks*64}")
    for ks in range(2):
        for c in range(2):
            for jj in range(4):
                b = BC + c*16 + ks*8 + 2*jj
                A(f"v_pk_mul_f32 {v(b,2)}, {v(b,2)}, {v(TR+ks*8+2*jj,2)}")
            for jj in range(4):
                b = BC + c*16 + ks*8 + 2*jj
                A(f"v_cvt_pk_bf16_f32 v{BP+(c*2+ks)*4+jj}, v{b}, v{b+1}")
    for ks in range(2):
        for c in range(2):
            A(f"v_mfma_f32_16x16x32_bf16 {v(CM+4*c,4)}, {v(AM+ks*4,4)}, {v(BP+(c*2+ks)*4,4)}, {v(CM+4*c,4) if ks else 0}")
    for tl in range(4):
        for c in range(2):
            acc = ACC + (tl*2+c)*4
            A(f"v_mfma_f32_16x16x32_bf16 {v(acc,4)}, {v(X+(tl*2)*4,4)}, {v(BP+(c*2)*4,4)}, {v(CM+4*c,4)}")
        for c in range(2):
            acc = ACC + (tl*2+c)*4
            A(f"v_mfma_f32_16x16x32_bf16 {v(acc,4)}, {v(X+(tl*2+1)*4,4)}, {v(BP+(c*2+1)*4,4)}, {v(acc,4)}")
        if tl >= 1: k1_store(A, tl-1, ACC, PK)
    k1_store(A, 3, ACC, PK)

def k1_store(A, tl, ACC, PK):
    acc = ACC + tl*8; pk = PK + tl*4
    for r in range(4): A(f"v_cvt_pk_bf16_f32 v{pk+r}, v{acc+r}, v{acc+4+r}")
    A(f"buffer_store_dwordx4 {v(pk,4)}, v9, {srd(S_WS)}, s48 offen offset:{(tl&1)*256+(tl>>1)*64} sc1", tag="st")

def k1_mod(A):
    A(f"""
    s_and_b32 s38, s2, 7
    s_lshr_b32 s39, s2, 3
    s_mul_i32 s38, s38, 12
    s_add_u32 s36, s38, s39
    s_sub_u32 s36, s36, 16
    v_lshlrev_b32 v4, 2, v0
    {small_srd(S_C, 1024)}
    {small_srd(S_WM, 3145728)}
    {small_srd(S_X, 2097152)}
    v_lshrrev_b32 v5, 2, v1
    v_mul_u32_u24 v5, 6144, v5
    v_and_b32 v6, 3, v1
    v_lshl_add_u32 v5, v6, 4, v5
    s_mul_i32 s38, s3, {128*6144}
    s_lshl_b32 s39, s36, 6
    s_add_u32 s38, s38, s39
    s_lshl_b32 s39, s3, 13
    s_add_u32 s39, s39, {MW}
    s_waitcnt lgkmcnt(0)
    buffer_load_dword v8, v4, {srd(S_C)}, 0 offen
    """)
    if opt("touch", 11) == 3: touch(A, nonln=True)
    if opt("moddelay", 0): A("v_mov_b32 v8, v8")
    for i in range(8):
        A(f"s_add_u32 m0, s39, {i*1024}")
        if i: A(f"s_add_u32 s38, s38, {16*6144}")
        A(f"buffer_load_dwordx4 v5, {srd(S_WM)}, s38 offen {opt('mpol','nt')} lds", tag="wm")
    common_setup(A)
    A(f"""
    v_bfe_u32 v6, v1, 2, 2
    v_lshl_add_u32 v6, v3, 3, v6
    v_lshlrev_b32 v6, 6, v6
    v_and_b32 v7, 3, v1
    v_lshl_add_u32 v6, v7, 3, v6
    v_add_u32 v6, s39, v6
    v_add_u32 v4, {MSC}, v4
    s_lshl_b32 s40, s3, 8
    s_add_u32 s40, s40, {MSC}
    v_lshl_add_u32 v7, v3, 4, s40
    v_lshlrev_b32 v9, 16, v8
    v_and_b32 v10, 0xffff0000, v8
    v_mul_f32 v11, {LOG2E}, v9
    v_mul_f32 v12, {LOG2E}, v10
    v_exp_f32 v11, v11
    v_exp_f32 v12, v12
    v_add_f32 v11, 1.0, v11
    v_add_f32 v12, 1.0, v12
    v_rcp_f32 v11, v11
    v_rcp_f32 v12, v12
    v_mul_f32 v9, v9, v11
    v_mul_f32 v10, v10, v12
    v_cvt_pk_bf16_f32 v9, v9, v10
    ds_write_b32 v4, v9
    """)
    SF, WF, ACC = 16, 32, 64
    A("s_waitcnt lgkmcnt(0)")
    tsx(A, 60)
    for ks in range(4): A(f"ds_read_b128 {v(SF+4*ks,4)}, v7 offset:{ks*64}")
    A(f"""
    v_and_b32 v10, 31, v1
    s_lshr_b32 s40, s36, 4
    s_and_b32 s41, s36, 15
    s_lshl_b32 s41, s41, 5
    v_add_u32 v10, s41, v10
    v_lshrrev_b32 v15, 8, v10
    v_lshlrev_b32 v15, 8, v15
    v_bfe_u32 v72, v10, 2, 2
    v_lshl_add_u32 v15, v72, 6, v15
    v_bfe_u32 v72, v10, 4, 4
    v_lshl_add_u32 v15, v72, 2, v15
    v_and_b32 v72, 3, v10
    v_add_u32 v15, v15, v72
    v_bfe_u32 v72, v10, 3, 2
    v_lshlrev_b32 v73, 7, v72
    v_bfe_u32 v72, v10, 7, 2
    v_lshl_add_u32 v73, v72, 5, v73
    v_and_b32 v72, 7, v10
    v_lshl_add_u32 v73, v72, 2, v73
    v_bfe_u32 v72, v10, 5, 2
    v_add_u32 v73, v73, v72
    s_cmp_lt_u32 s40, 2
    s_cselect_b64 vcc, -1, 0
    v_cndmask_b32 v15, v15, v73, vcc
    s_cmp_eq_u32 s40, 5
    s_cselect_b64 vcc, -1, 0
    v_cndmask_b32 v10, v15, v10, vcc
    v_lshlrev_b32 v10, 2, v10
    s_lshl_b32 s41, s40, 11
    s_add_u32 s41, s41, {WS_MOD}
    s_cmp_eq_u32 s40, 1
    s_cselect_b32 s42, 1.0, 0
    s_cmp_eq_u32 s40, 4
    s_cselect_b32 s42, 1.0, s42
    s_lshl_b32 s43, s3, 7
    s_add_u32 s43, s43, {MRED}
    v_lshl_add_u32 v9, v2, 2, s43
    v_and_b32 v74, 31, v1
    v_lshlrev_b32 v74, 2, v74
    v_add_u32 v74, {MRED}, v74
    """)
    A.wait_tag("wm")
    tsx(A, 61)
    if opt("touch", 11) == 2: touch(A)
    if opt("touch", 11) == 4 and not opt("tafter", 0): touch(A, nonln=True)
    if opt("touch", 11) == 9: touch(A, "gu")
    if opt("touch", 11) in (10, 11): touch(A, "gu", nonln=True)
    if opt("pfA", 0) and opt("pfMpos", 0) == 1: wchunks(A, range(opt("pfA", 0)))
    for ks in range(4):
        for nt in range(2):
            b = WF + (ks*2+nt)*4
            off = ks*2048 + nt*32
            A(f"ds_read_b64_tr_b16 {v(b,2)}, v6 offset:{off}\nds_read_b64_tr_b16 {v(b+2,2)}, v6 offset:{off+256}")
    for ks in range(4):
        for nt in range(2):
            A(f"v_mfma_f32_16x16x32_bf16 {v(ACC+4*nt,4)}, {v(SF+4*ks,4)}, {v(WF+(ks*2+nt)*4,4)}, {v(ACC+4*nt,4) if ks else 0}")
    skip = A.label("modskip")
    A(f"""
    s_mov_b64 exec, 0xffff
    ds_write_b32 v9, v{ACC}
    ds_write_b32 v9, v{ACC+4} offset:64
    s_mov_b64 exec, -1
    s_waitcnt lgkmcnt(0)
    s_barrier
    s_cmp_lg_u32 s3, 0
    s_cbranch_scc1 {skip}
    ds_read_b32 v11, v74
    ds_read_b32 v12, v74 offset:128
    ds_read_b32 v13, v74 offset:256
    ds_read_b32 v14, v74 offset:384
    v_add_f32 v11, v11, v12
    v_add_f32 v13, v13, v14
    v_add_f32 v11, v11, v13
    """)
    bf16r(A, "v11", "v11")
    A("v_add_f32 v11, s42, v11")
    bf16r(A, "v11", "v11")
    A(f"""
    s_mov_b32 exec_hi, 0
    buffer_store_dword v11, v10, {srd(S_WS)}, s41 offen sc1
    s_mov_b64 exec, -1
    {skip}:
    """)

K2 = dict(BS=16, CC=24, CS=26, TW=28, BH=44, U=64, XR=128, CA=136, GA=168, CB=176, SB=184, Z=192, XF=224)
def k2_pre(A, hook=None):
    r = K2
    A("""
    s_and_b32 s36, s2, 7
    s_bfe_u32 s37, s2, 0x20003
    s_lshl_b32 s37, s37, 3
    s_add_u32 s36, s36, s37
    s_lshr_b32 s37, s2, 5
    s_sub_u32 s39, 64, s36
    s_cmp_eq_u32 s36, 0
    s_cselect_b32 s39, 32, s39
    s_cselect_b64 s[40:41], -1, 0
    s_lshl_b32 s42, s37, 2
    s_add_u32 s43, s42, s3
    s_lshl_b32 s43, s43, 6
    s_add_u32 s44, s43, s36
    s_add_u32 s45, s43, s39
    s_lshl_b32 s44, s44, 10
    s_lshl_b32 s45, s45, 10
    v_lshlrev_b32 v4, 5, v2
    v_lshl_add_u32 v4, v3, 3, v4
    """)
    for uu in range(2):
        for nt in range(2):
            A(f"buffer_load_dwordx2 {v(r['XR']+(uu*2+nt)*2,2)}, v4, {srd(S_X)}, s{44+uu} offen offset:{nt*512}")
    if hook: hook()
    A("""
    v_lshrrev_b32 v5, 2, v2
    v_add_u32 v5, s42, v5
    v_lshlrev_b32 v5, 6, v5
    v_and_b32 v6, 2, v2
    v_cmp_ne_u32 vcc, 0, v6
    v_mov_b32 v7, s36
    v_mov_b32 v8, s39
    v_cndmask_b32 v7, v7, v8, vcc
    v_add_u32 v5, v5, v7
    v_cvt_f32_u32 v5, v5
    v_mul_f32 v5, 0x3a000000, v5
    v_and_b32 v6, 1, v2
    v_cvt_f32_u32 v6, v6
    v_mul_f32 v6, 0x3e800000, v6
    v_mov_b32 v7, 0xbe800000
    v_mov_b32 v8, 0x3e800000
    v_cndmask_b32 v7, v7, v8, vcc
    v_cndmask_b32 v7, v7, 0, s[40:41]
    v_add_f32 v7, v7, v6
    v_cndmask_b32 v8, 1.0, 0, vcc
    v_cndmask_b32 v9, 0, 1.0, vcc
    v_cndmask_b32 v8, 1.0, v8, s[40:41]
    v_cndmask_b32 v9, 1.0, v9, s[40:41]
    v_lshlrev_b32 v10, 2, v3
    v_cvt_f32_u32 v10, v10
    """)
    T = 64
    NQ = 72
    for ks in range(2):
        for i in range(4): A(f"v_add_f32 v{NQ+ks*4+i}, {fbits(16*ks+i)}, v10")
    for ks in range(2):
        for i in range(4):
            A(f"v_fma_f32 v{T+2*i}, v{NQ+ks*4+i}, v5, v6\nv_fma_f32 v{T+2*i+1}, v{NQ+ks*4+i}, v5, v7")
        for i in range(8): A(f"v_cos_f32 v{T+i}, v{T+i}")
        for i in range(4):
            A(f"v_pk_mul_f32 {v(T+2*i,2)}, {v(T+2*i,2)}, v[8:9]")
            A(f"v_cvt_pk_bf16_f32 v{r['BS']+ks*4+i}, v{T+2*i}, v{T+2*i+1}")
    A("v_cvt_f32_u32 v12, v2\nv_mul_f32 v13, 0x3d800000, v12")
    for j in range(4): A(f"v_mul_f32 v{T+j}, v{NQ+j}, v13")
    for j in range(4): A(f"v_sin_f32 v{T+4+j}, v{T+j}")
    for j in range(4): A(f"v_cos_f32 v{T+j}, v{T+j}")
    for jj in range(2):
        A(f"v_cvt_pk_bf16_f32 v{r['CC']+jj}, v{T+2*jj}, v{T+2*jj+1}\nv_cvt_pk_bf16_f32 v{r['CS']+jj}, v{T+4+2*jj}, v{T+5+2*jj}")
    A("v_mul_f32 v13, 0x3b000000, v12\ns_lshl_b32 s46, s3, 3\nv_cvt_f32_u32 v14, s46")
    for t in range(8):
        A(f"v_add_f32 v11, {fbits(t)}, v14\nv_mul_f32 v{T+t}, v11, v13")
    for t in range(8):
        A(f"v_cos_f32 v{r['TW']+2*t}, v{T+t}\nv_sin_f32 v{r['TW']+2*t+1}, v{T+t}")
    for nt in range(2):
        A(f"v_add_f32 v13, {fbits(16*nt)}, v12\nv_mul_f32 v13, 0x3d000000, v13")
        for ks in range(2):
            for i in range(4): A(f"v_mul_f32 v{T+i}, v{NQ+ks*4+i}, v13")
            for i in range(4): A(f"v_sin_f32 v{T+4+i}, v{T+i}")
            for i in range(4): A(f"v_cos_f32 v{T+i}, v{T+i}")
            for i in range(4): A(f"v_cvt_pk_bf16_f32 v{r['BH']+(nt*2+ks)*4+i}, v{T+i}, v{T+4+i}")
    A(f"""
    v_mul_u32_u24 v5, {4*UN2()}, v3
    v_lshl_add_u32 v5, v2, 4, v5
    s_mul_i32 s46, s36, {USLOT()}
    s_mul_i32 s47, s3, {UOCT()}
    s_add_u32 s46, s46, s47
    s_add_u32 s46, s46, {WS_U}
    s_add_u32 s47, s46, {2*UN2()}
    s_add_u32 s48, s46, {16*UN2()}
    s_add_u32 s49, s46, {18*UN2()}
    s_add_u32 s76, s46, {UN2()}
    s_add_u32 s77, s47, {UN2()}
    s_add_u32 s78, s48, {UN2()}
    s_add_u32 s79, s49, {UN2()}
    v_lshlrev_b32 v6, 7, v3
    s_lshl_b32 s50, s3, 9
    s_add_u32 s50, s50, {WS_MOD}
    s_cmp_eq_u32 s2, 0
    s_cselect_b32 s59, s50, {WS_SIZE}
    v_lshlrev_b32 v7, 4, v1
    v_lshl_add_u32 v8, v3, 5, v2
    v_mul_u32_u24 v8, 144, v8
    s_lshl_b32 s51, s3, 5
    s_add_u32 s51, s51, {K2EX}
    v_add_u32 v8, s51, v8
    v_mul_u32_u24 v9, 144, v2
    v_lshl_add_u32 v9, v3, 4, v9
    s_mul_i32 s51, s3, {32*144}
    s_add_u32 s51, s51, {K2EX}
    v_add_u32 v9, s51, v9
    s_mul_i32 s51, s3, 2080
    s_add_u32 s51, s51, {K2HB}
    v_add_u32 v10, s51, v4
    v_and_b32 v11, 7, v0
    v_lshrrev_b32 v12, 3, v0
    v_mul_u32_u24 v13, 1040, v11
    v_lshl_add_u32 v13, v12, 4, v13
    v_add_u32 v13, {K2HB}, v13
    v_lshlrev_b32 v11, 4, v11
    v_lshl_add_u32 v11, v12, 9, v11
    s_lshl_b32 s51, s36, 3
    s_add_u32 s51, s51, s37
    s_lshl_b32 s52, s51, 13
    s_lshl_b32 s53, s3, 11
    s_add_u32 s52, s52, s53
    s_add_u32 s52, s52, {WS_X1}
    s_add_u32 s53, s52, 1024
    s_lshr_b32 s54, s51, 2
    s_lshl_b32 s54, s54, 15
    s_and_b32 s55, s51, 3
    s_lshl_b32 s55, s55, 7
    s_add_u32 s54, s54, s55
    s_add_u32 s54, s54, {WS_H2}
    s_add_u32 s55, s54, 16384
    s_mov_b32 s56, {WS_MOD+2*2048}
    s_mov_b32 s57, {WS_MOD+3*2048}
    s_mov_b32 s58, {WS_MOD+4*2048}
    s_lshl_b32 s62, s51, 7
    s_add_u32 s62, s62, {WS_F2}
    """)

def k2_main(A):
    r = K2
    U, Z = r['U'], r['Z']
    sk0 = A.label("k2sl")
    A(f"s_cmp_lg_u32 s2, 0\ns_cbranch_scc1 {sk0}")
    for t in range(0 if opt("sepmod", 1) else 8):
        A(f"buffer_load_dwordx4 {a(4*t,4)}, v6, {srd(S_WS)}, s50 offen offset:{t*16} sc1")
    A(f"{sk0}:")
    sep = opt("sepmod", 1)
    if sep:
        m0 = A.label("k2m0")
        A(f"s_cmp_lg_u32 s3, 0\ns_cbranch_scc1 {m0}")
        A(f"buffer_load_dword v254, v250, {srd(S_WS)}, s73 offen sc1\nbuffer_load_dword v255, v250, {srd(S_WS)}, s74 offen sc1\n{m0}:", tag="spin")
    for hh in range(2):
        for ks in range(2):
            for i in range(4):
                A(f"buffer_load_dwordx4 {v(U+((ks*2+hh)*4+i)*4,4)}, v5, {srd(S_WS)}, s{(46, 76)[i&1]+ks*2+(i>>1)} offen offset:{hh*256} sc1")
    if sep:
        m1, lp1 = A.label("k2m1"), A.label("k2ml")
        A(f"""
        s_cmp_lg_u32 s3, 0
        s_cbranch_scc1 {m1}
        s_mov_b32 s{S_CNT}, 0
        s_waitcnt vmcnt(16)
        {lp1}:
        v_xor_b32 v254, s{S_TOK}, v254
        v_xor_b32 v255, s{S_TOK}, v255
        v_or_b32 v254, v254, v255
        v_cmp_ne_u32 vcc, 0, v254
        s_add_u32 s{S_CNT}, s{S_CNT}, 1
        s_cmp_ge_u32 s{S_CNT}, {MAXPOLL}
        s_cbranch_scc1 {m1}
        s_cbranch_vccz {m1}
        buffer_load_dword v254, v250, {srd(S_WS)}, s73 offen sc1
        buffer_load_dword v255, v250, {srd(S_WS)}, s74 offen sc1
        s_waitcnt vmcnt(0)
        s_branch {lp1}
        {m1}:
        s_barrier
        """, tag="spin")
        sk1 = A.label("k2s1")
        A(f"s_cmp_lg_u32 s2, 0\ns_cbranch_scc1 {sk1}")
        for t in range(8):
            A(f"buffer_load_dwordx4 {a(4*t,4)}, v6, {srd(S_WS)}, s50 offen offset:{t*16} sc1", tag="spin")
        A(f"{sk1}:", tag="spin")
    for t in range(8):
        A(f"buffer_load_dwordx4 {v(r['CA']+4*t,4)}, v6, {srd(S_WS)}, s50 offen offset:{2048+t*16} sc1")
    for nm, sr in (("GA", 56), ("CB", 58), ("SB", 57)):
        for nt in range(2):
            A(f"buffer_load_dwordx4 {v(r[nm]+nt*4,4)}, v7, {srd(S_WS)}, s{sr} offen offset:{nt*1024} sc1")
    A.touch_regs([("v", U)])
    for uu in range(2):
        for nt in range(2):
            xr = r['XR'] + (uu*2+nt)*2; xf = r['XF'] + (uu*2+nt)*4
            A(f"v_lshlrev_b32 v{xf}, 16, v{xr}\nv_and_b32 v{xf+1}, 0xffff0000, v{xr}\nv_lshlrev_b32 v{xf+2}, 16, v{xr+1}\nv_and_b32 v{xf+3}, 0xffff0000, v{xr+1}")
    pfl = [op for ch in range(opt("pfA", 0) + opt("pf1", 3), opt("pfB", 4)) for op in wchunk_ops(ch, ch, f"w{ch}")]
    if opt("pfBpos", 1) == 0:
        for op in pfl: A(*op)
    if opt("pfBpos", 1) in (0, 3): pfl = []
    if opt("touch", 11) == 7 and opt("tlate", 0) == 1: touch_late(A)
    if opt("touch", 11) == 8: touch(A)
    if opt("touch", 11) == 9: touch(A, "d")
    if TS and opt("tsu", 1): A(f"v_mov_b32 v{U+60}, v{U+60}"); ts(A, "uarr")
    for hh in range(2):
        for ks in range(2):
            b = U + (ks*2+hh)*16
            for i in range(4):
                for t in range(i+1, 4): A(f"v_swap_b32 v{b+4*i+t}, v{b+4*t+i}")
        for t in range(4):
            for ks in range(2):
                z = Z + (hh*4+t)*4
                A(f"v_mfma_f32_16x16x32_bf16 {v(z,4)}, {v(U+(ks*2+hh)*16+4*t,4)}, {v(r['BS']+ks*4,4)}, {v(z,4) if ks else 0}")
                if pfl and opt("pfBpos", 1) != 4 and (hh == 1 or opt("pfBpos", 1) == 2): A(*pfl.pop(0))
    if opt("pfBpos", 1) != 4:
        for op in pfl: A(*op)
        pfl = []
    ZP, P, Q = 64, 80, 112
    for t in range(8):
        for h in range(2): A(f"v_pk_mul_f32 {v(Z+4*t+2*h,2)}, {v(Z+4*t+2*h,2)}, {v(r['CA']+4*t+2*h,2)}")
    sk = A.label("k2sa")
    A(f"s_cmp_lg_u32 s2, 0\ns_cbranch_scc1 {sk}")
    A("s_mov_b32 s59, 0x45000000\ns_mov_b32 exec_lo, 0x00010001\ns_mov_b32 exec_hi, 0x00010001")
    for i in range(32):
        A(f"v_accvgpr_read_b32 v{P}, a{i}\nv_fma_f32 v{Z+i}, v{P}, s59, v{Z+i}")
    A(f"s_mov_b64 exec, -1\n{sk}:")
    for t in range(8):
        A(f"v_cvt_pk_bf16_f32 v{ZP+2*t}, v{Z+4*t}, v{Z+4*t+1}\nv_cvt_pk_bf16_f32 v{ZP+2*t+1}, v{Z+4*t+2}, v{Z+4*t+3}")
        if t >= 1:
            A(f"v_mfma_f32_16x16x16_bf16 {v(P+4*(t-1),4)}, {v(ZP+2*(t-1),2)}, {v(r['CC'],2)}, 0")
            A(f"v_mfma_f32_16x16x16_bf16 {v(Z+4*(t-1),4)}, {v(ZP+2*(t-1),2)}, {v(r['CS'],2)}, 0")
    A(f"v_mfma_f32_16x16x16_bf16 {v(P+28,4)}, {v(ZP+14,2)}, {v(r['CC'],2)}, 0")
    A(f"v_mfma_f32_16x16x16_bf16 {v(Z+28,4)}, {v(ZP+14,2)}, {v(r['CS'],2)}, 0")
    Q = Z; W = 112
    for hh in range(2):
        for uu in range(2):
            idx = [(P+4*(hh*4+t4)+2*uu, Q+4*(hh*4+t4)+2*uu, r['TW']+2*(hh*4+t4), W+uu*8+hh*4+t4) for t4 in range(4)]
            for p, q, tw, w in idx: A(f"v_pk_add_f32 {v(p,2)}, {v(p,2)}, {v(q,2)} op_sel:[0,1] op_sel_hi:[1,0] neg_hi:[0,1]")
            for p, q, tw, w in idx: A(f"v_pk_mul_f32 {v(q,2)}, {v(p,2)}, {v(tw,2)} op_sel:[0,0] op_sel_hi:[1,0]")
            for p, q, tw, w in idx: A(f"v_pk_fma_f32 {v(q,2)}, {v(p,2)}, {v(tw,2)}, {v(q,2)} op_sel:[1,1,0] op_sel_hi:[0,1,1] neg_hi:[1,0,0]")
            for p, q, tw, w in idx: A(f"v_cvt_pk_bf16_f32 v{w}, v{q}, v{q+1}")
            A(f"ds_write_b128 v8, {v(W+uu*8+hh*4,4)} offset:{uu*16*144+hh*16}")
    A("s_waitcnt lgkmcnt(0)\ns_barrier")
    ts(A, "h1")
    AF, Y = 80, 96
    for uu in range(2):
        for ks in range(2):
            A(f"ds_read_b128 {v(AF+(uu*2+ks)*4,4)}, v9 offset:{uu*16*144+ks*64}")
    for op in pfl[:4]: A(*op)
    pfl = pfl[4:]
    for uu in range(2):
        for ks in range(2):
            for nt in range(2):
                y = Y + (uu*2+nt)*4
                A(f"v_mfma_f32_16x16x32_bf16 {v(y,4)}, {v(AF+(uu*2+ks)*4,4)}, {v(r['BH']+(nt*2+ks)*4,4)}, {v(y,4) if ks else 0}")
                if pfl: A(*pfl.pop(0))
    for op in pfl: A(*op)
    XP = 168 if opt("latex1", 2) == 2 else 112
    for uu in range(2):
        for nt in range(2):
            y = Y + (uu*2+nt)*4; xf = r['XF'] + (uu*2+nt)*4; g = r['GA'] + nt*4
            for h in range(2):
                A(f"v_pk_fma_f32 {v(y+2*h,2)}, {v(y+2*h,2)}, {v(g+2*h,2)}, {v(xf+2*h,2)}")
        y = Y + uu*8; t = 64 + 4*uu
        A(f"v_pk_add_f32 {v(t,2)}, {v(y,2)}, {v(y+2,2)}\nv_pk_mul_f32 {v(t+2,2)}, {v(y,2)}, {v(y,2)}")
        A(f"v_pk_add_f32 {v(t,2)}, {v(t,2)}, {v(y+4,2)}\nv_pk_fma_f32 {v(t+2,2)}, {v(y+2,2)}, {v(y+2,2)}, {v(t+2,2)}")
        A(f"v_pk_add_f32 {v(t,2)}, {v(t,2)}, {v(y+6,2)}\nv_pk_fma_f32 {v(t+2,2)}, {v(y+4,2)}, {v(y+4,2)}, {v(t+2,2)}")
        A(f"v_add_f32 v{72+2*uu}, v{t}, v{t+1}\nv_pk_fma_f32 {v(t+2,2)}, {v(y+6,2)}, {v(y+6,2)}, {v(t+2,2)}")
        A(f"v_add_f32 v{73+2*uu}, v{t+2}, v{t+3}")
    def x1_store(uu, nt):
        y = Y + (uu*2+nt)*4; xp = XP + (uu*2+nt)*2
        A(f"v_cvt_pk_bf16_f32 v{xp}, v{y}, v{y+1}\nv_cvt_pk_bf16_f32 v{xp+1}, v{y+2}, v{y+3}")
        A(f"buffer_store_dwordx2 {v(xp,2)}, v4, {srd(S_WS)}, s{52+uu} offen offset:{nt*512} sc1", tag="st")
    late_x1 = opt("latex1", 2)
    def x1_cvt(uu, nt):
        y = Y + (uu*2+nt)*4; xp = XP + (uu*2+nt)*2
        A(f"v_cvt_pk_bf16_f32 v{xp}, v{y}, v{y+1}\nv_cvt_pk_bf16_f32 v{xp+1}, v{y+2}, v{y+3}")
    def x1_st(uu, nt):
        A(f"buffer_store_dwordx2 {v(XP+(uu*2+nt)*2,2)}, v4, {srd(S_WS)}, s{52+uu} offen offset:{nt*512} sc1", tag="x1")
    if late_x1: x1_store = x1_cvt
    A("v_permlane16_swap_b32 v72, v73\nv_permlane16_swap_b32 v74, v75\nv_add_f32 v72, v72, v73\nv_add_f32 v74, v74, v75")
    x1_store(0, 0)
    A("v_permlane32_swap_b32 v72, v74\nv_add_f32 v72, v72, v74")
    x1_store(0, 1)
    A("v_add_f32 v72, v72, v72 row_ror:8")
    A(f"v_mov_b32 v76, 0x3b000000\nv_mov_b32 v77, {fbits(1e-5)}")
    A("v_add_f32 v72, v72, v72 row_ror:4")
    x1_store(1, 0)
    A("v_add_f32 v72, v72, v72 row_ror:2")
    x1_store(1, 1)
    A("""
    v_add_f32 v72, v72, v72 row_ror:1
    v_mul_f32 v72, v72, v76
    v_readlane_b32 s40, v72, 0
    v_readlane_b32 s41, v72, 16
    v_readlane_b32 s42, v72, 32
    v_readlane_b32 s43, v72, 48
    v_mov_b32 v64, s40
    v_mov_b32 v66, s42
    v_fma_f32 v65, -v64, v64, s41
    v_fma_f32 v67, -v66, v66, s43
    v_max_f32 v65, 0, v65
    v_max_f32 v67, 0, v67
    v_add_f32 v65, v65, v77
    v_add_f32 v67, v67, v77
    v_rsq_f32 v65, v65
    v_rsq_f32 v67, v67
    v_mul_f32 v64, -v64, v65
    v_mul_f32 v66, -v66, v67
    """)
    HP = 120
    for uu in range(2):
        for nt in range(2):
            y = Y + (uu*2+nt)*4
            for h in range(2):
                A(f"v_pk_fma_f32 {v(y+2*h,2)}, {v(y+2*h,2)}, {v(64+2*uu,2)}, {v(64+2*uu,2)} op_sel:[0,1,0] op_sel_hi:[1,1,0]")
            for h in range(2):
                A(f"v_pk_fma_f32 {v(y+2*h,2)}, {v(y+2*h,2)}, {v(r['CB']+nt*4+2*h,2)}, {v(r['SB']+nt*4+2*h,2)}")
            hp = HP + (uu*2+nt)*2
            A(f"v_cvt_pk_bf16_f32 v{hp}, v{y}, v{y+1}\nv_cvt_pk_bf16_f32 v{hp+1}, v{y+2}, v{y+3}")
            A(f"ds_write_b64 v10, {v(hp,2)} offset:{uu*1040+nt*512}")
    A("s_waitcnt lgkmcnt(0)\ns_barrier")
    A("ds_read_b128 v[64:67], v13\nds_read_b128 v[68:71], v13 offset:512")
    A(f"buffer_store_dwordx4 v[64:67], v11, {srd(S_WS)}, s54 offen sc1", tag="st")
    A(f"buffer_store_dwordx4 v[68:71], v11, {srd(S_WS)}, s55 offen sc1", tag="st")
    if late_x1 == 1:
        for uu in range(2):
            for nt in range(2): x1_st(uu, nt)
    if late_x1 == 2:
        A("v_mov_b32 v176, v4\ns_mov_b32 s80, s52\ns_mov_b32 s81, s53")

WD_ORDER = [37, 38, 39] + list(range(13, 37)) + list(range(0, 13)) + [37, 38, 39]
def k4_ids(A):
    if opt("R", 4) == 4:
        A("s_and_b32 s36, s2, 7\ns_lshl_b32 s36, s36, 2\ns_bfe_u32 s38, s2, 0x20003\ns_add_u32 s36, s36, s38\ns_lshr_b32 s37, s2, 5")
    else:
        A("s_bfe_u32 s36, s2, 0x20001\ns_lshl_b32 s36, s36, 3\ns_bfe_u32 s38, s2, 0x30003\ns_add_u32 s36, s36, s38\ns_and_b32 s37, s2, 1\ns_lshl_b32 s37, s37, 2\ns_lshr_b32 s38, s2, 6\ns_add_u32 s37, s37, s38")
    A("s_lshr_b32 s38, s3, 1\ns_and_b32 s39, s3, 1")
def wd_setup(A):
    k4_ids(A)
    A(f"""
    v_lshrrev_b32 v244, 3, v1
    v_lshlrev_b32 v{V_D}, 10, v244
    v_and_b32 v245, 7, v1
    v_lshlrev_b32 v244, 1, v244
    v_and_b32 v244, 4, v244
    v_xor_b32 v245, v245, v244
    v_lshl_add_u32 v{V_D}, v245, 4, v{V_D}
    s_mul_i32 s{S_DG}, s38, {688*1024}
    s_lshl_b32 s41, s37, 7
    s_add_u32 s{S_DG}, s{S_DG}, s41
    s_lshl_b32 s41, s39, 13
    s_add_u32 s{S_DG}, s{S_DG}, s41
    s_lshl_b32 s{S_DL}, s3, 10
    s_mul_i32 s41, s37, 10
    s_lshr_b32 s41, s41, 3
    s_lshl_b32 s41, s41, 16
    s_add_u32 s{S_DR}, s{S_DG}, s41
    s_add_u32 s{S_DE}, s{S_DG}, {40*16384}
    """)
S_DR, S_DE, S_AB, S_AE = 82, 83, 97, 100
def wd_op(step, tag):
    t = f"s_add_u32 m0, s{S_DL}, {WD_ORDER[step]*4096}\n"
    if not opt("rot", 0) or step >= 40:
        t += f"s_add_u32 s{S_T}, s{S_DG}, {step*16384}\n"
    else:
        if step and step % 4 == 0:
            t += f"s_add_u32 s{S_DR}, s{S_DR}, 65536\ns_cmp_eq_u32 s{S_DR}, s{S_DE}\ns_cselect_b32 s{S_DR}, s{S_DG}, s{S_DR}\n"
        t += f"s_add_u32 s{S_T}, s{S_DR}, {(step % 4)*16384}\n"
    t += f"buffer_load_dwordx4 v{V_D}, {srd(S_WD)}, s{S_T} offen {opt('dpol','')} lds"
    return (t, tag)

def k3_ids(A):
    A(sl_expr() + "\ns_mov_b32 s37, s38\n" + rb_expr())
def k3_pre(A):
    wd_setup(A)
    k3_ids(A)
    A(f"""
    s_lshl_b32 s45, s36, 2
    s_add_u32 s45, s45, s3
    s_lshl_b32 s46, s45, 15
    s_add_u32 s46, s46, {WS_H2}
    v_lshlrev_b32 v4, 4, v1
    v_bfe_u32 v5, v1, 1, 1
    v_mul_u32_u24 v5, {UOFF}, v5
    v_bfe_u32 v6, v1, 2, 2
    v_bfe_u32 v7, v1, 5, 1
    v_lshl_add_u32 v6, v7, 3, v6
    v_mul_u32_u24 v6, 192, v6
    v_add_u32 v5, v5, v6
    v_bfe_u32 v6, v1, 4, 1
    v_lshl_add_u32 v5, v6, 4, v5
    v_and_b32 v6, 1, v1
    v_lshl_add_u32 v5, v6, 3, v5
    v_add_u32 v6, {2*SLOT}, v5
    v_add_u32 v7, {4*SLOT}, v5
    s_mul_i32 s47, s45, {86*1024}
    s_mul_i32 s48, s37, {6*1024}
    s_add_u32 s47, s47, s48
    s_add_u32 s47, s47, {WS_ACT}
    s_add_u32 s48, s47, 2048
    s_add_u32 s51, s47, 4096
    s_cmp_eq_u32 s37, 14
    s_cselect_b32 s48, {WS_SIZE}, s48
    s_cselect_b32 s51, {WS_SIZE}, s51
    s_lshl_b32 s49, s2, 2
    s_add_u32 s49, s49, s3
    s_mul_i32 s49, s49, 11
    v_min_u32 v246, 10, v1
    v_add_u32 v246, s49, v246
    v_lshlrev_b32 v246, 7, v246
    v_mov_b32 v14, {LOG2E}
    v_mov_b32 v15, {LOG2E}
    s_lshl_b32 s61, s36, 4
    s_add_u32 s61, s61, s37
    s_lshl_b32 s61, s61, 7
    s_add_u32 s61, s61, {WS_F3}
    s_lshl_b32 s62, s36, 11
    s_add_u32 s62, s62, {WS_F2}
    """)

def x1_ops():
    return [(f"buffer_store_dwordx2 {v(168+(uu*2+nt)*2,2)}, v176, {srd(S_WS)}, s{80+uu} offen offset:{nt*512} sc1", "x1") for uu in range(2) for nt in range(2)]
def k3_main(A, idle):
    ACC, AF, NAF = 16, 112, 8
    T, PK = 144, 160
    done = A.label("k3done")
    def h2_op(k):
        t = "s_add_u32 s46, s46, 4096\n" if (k and k % 4 == 0) else ""
        return (t + f"buffer_load_dwordx4 {a(4*k,4)}, v4, {srd(S_WS)}, s46 offen offset:{(k%4)*1024} sc1", None)
    H0 = opt("h0", 12)
    for k in range(H0): A(h2_op(k)[0])
    order = [(k, j) for k in range(32) for j in range(6)]
    def slot_of(k):
        ch = k // 4
        return ch if ch < 6 else ch - 6
    def frag_read(n):
        k, j = order[n]
        sl = slot_of(k)
        base = ("v5", "v6", "v7")[sl // 2]
        off = (sl % 2)*SLOT + (k % 4)*16*192 + j*32
        b = AF + (n % NAF)*4
        return f"ds_read_b64_tr_b16 {v(b,2)}, {base} offset:{off}\nds_read_b64_tr_b16 {v(b+2,2)}, {base} offset:{off+4*192}"
    side = []
    n0 = 0
    for k in range(H0, 32): side.append((n0, *h2_op(k))); n0 += 2
    pfB = opt("pfB", 4) + opt("pf3", 2)
    for ch in range(pfB, 6):
        for op in wchunk_ops(ch, ch, f"w{ch}"): side.append((n0, *op)); n0 += 2
    if opt("touch", 11) == 10:
        side.append((max(n0, opt("dtn", 0)), f"s_mov_b64 exec, 0x7ff\nbuffer_load_dword v244, v246, {srd(S_WD)}, 0 offen\ns_mov_b64 exec, -1", None)); n0 = max(n0, opt("dtn", 0)) + 2
    if opt("latex1", 2) == 2:
        for op in x1_ops(): side.append((n0, *op)); n0 += 2
    n0 = max(n0, 48)
    for ch in (6, 7):
        for op in wchunk_ops(ch, ch-6, f"w{ch}"): side.append((n0, *op)); n0 += 2
    for st_ in range(0, 3): side.append((n0, *wd_op(st_, "wd"))); n0 += 3
    n0 = max(n0, 96)
    for st_ in range(3, 14): side.append((n0, *wd_op(st_, "wd"))); n0 += 3
    n0 = max(n0, 138)
    for st_ in range(14, 20): side.append((n0, *wd_op(st_, "wd"))); n0 += 3
    n0 = max(n0, 162)
    for st_ in range(20, 27): side.append((n0, *wd_op(st_, "wd"))); n0 += 3
    PF = NAF - 2
    late = opt("pfBpos", 1) == 3 or opt("pf3", 2)
    if late:
        A("v_accvgpr_read_b32 v13, a0\ns_barrier")
    ts(A, "issued")
    for n in range(PF): A(frag_read(n))
    tc(A, "first")
    for n, (k, j) in enumerate(order):
        acc = ACC + 16*j
        if n % 2 == 0: A.touch_regs([("v", AF+((n+1)%NAF)*4+3)])
        A(f"v_mfma_f32_32x32x16_bf16 {v(acc,16)}, {v(AF+(n%NAF)*4,4)}, {a(4*k,4)}, {v(acc,16) if k else 0}")
        if n == 0: ts(A, "first")
        if side and side[0][0] <= n:
            _, t, tag = side.pop(0); A(t, tag=tag)
        extra = [ch for ch in range(pfB, 5) if n == 24*ch - PF - 1]
        for ch in extra:
            A.wait_tag(f"w{ch}"); A("s_barrier")
        if n in (47, 95, 137, 161):
            if n == 95 and pfB <= 5: A.wait_tag("w5")
            if n == 137: A.wait_tag("w6")
            if n == 161: A.wait_tag("w7")
            A("s_barrier")
            ts(A, f"n{n}")
        if n + PF < 192: A(frag_read(n+PF))
    assert not side, side
    ts(A, "mfma")
    tc(A, "mfma")
    def epi(j):
        acc = ACC + 16*j; pk = PK + 4*(j & 1); t0 = T + 8*(j & 1)
        for hf in range(2):
            g = acc + 8*hf; t = t0 + 4*hf
            for h in range(2): A(f"v_pk_mul_f32 {v(t+2*h,2)}, {v(g+2*h,2)}, v[14:15]")
        for i in range(8): A(f"v_exp_f32 v{t0+i}, v{t0+i}")
        for hf in range(2):
            g, u = acc + 8*hf, acc + 8*hf + 4
            for h in range(2): A(f"v_pk_mul_f32 {v(g+2*h,2)}, {v(g+2*h,2)}, {v(u+2*h,2)}")
        for h in range(4): A(f"v_pk_add_f32 {v(t0+2*h,2)}, {v(t0+2*h,2)}, 1.0 op_sel_hi:[1,0]")
        for i in range(8): A(f"v_rcp_f32 v{t0+i}, v{t0+i}")
        for hf in range(2):
            g = acc + 8*hf; t = t0 + 4*hf
            for h in range(2): A(f"v_pk_mul_f32 {v(g+2*h,2)}, {v(g+2*h,2)}, {v(t+2*h,2)}")
        for hf in range(2):
            g = acc + 8*hf
            A(f"v_cvt_pk_bf16_f32 v{pk+2*hf}, v{g}, v{g+1}\nv_cvt_pk_bf16_f32 v{pk+2*hf+1}, v{g+2}, v{g+3}")
        A(f"buffer_store_dwordx4 {v(pk,4)}, v4, {srd(S_WS)}, s{(47,48,51)[j//2]} offen offset:{(j%2)*1024} sc1", tag="st")
    for j in range(6): epi(j)
    ts(A, "stiss3")
    A(f"s_branch {done}\n{idle}:")
    A.reset()
    if opt("touch", 11) == 11:
        A(f"""
        s_lshl_b32 s49, s36, 2
        s_add_u32 s49, s49, s3
        s_mul_i32 s49, s49, {172*128}
        v_lshlrev_b32 v246, 7, v1
        buffer_load_dword v244, v246, {srd(S_WD)}, s49 offen
        s_add_u32 s50, s49, 8192
        buffer_load_dword v245, v246, {srd(S_WD)}, s50 offen
        s_add_u32 s50, s49, {108*128}
        buffer_load_dword v247, v246, {srd(S_WD)}, s50 offen
        """)
    if opt("latex1", 2) == 2:
        for op in x1_ops(): A(*op)
    for st_ in range(27): A(*wd_op(st_, "wd"))
    A(f"{done}:")
    A.reset()

def k4_pre(A):
    k4_ids(A)
    A(f"""
    s_lshl_b32 s44, s36, 1
    s_add_u32 s44, s44, s39
    s_mul_i32 s44, s44, {86*1024}
    s_mul_i32 s45, s38, {43*1024}
    s_add_u32 s44, s44, s45
    s_add_u32 s44, s44, {WS_ACT}
    s_mov_b32 s{S_AB}, s44
    s_add_u32 s{S_AE}, s44, 40960
    s_mul_i32 s45, s37, {10 if opt("rot", 0) else 0}
    s_lshr_b32 s45, s45, 3
    s_lshl_b32 s45, s45, 12
    s_add_u32 s44, s44, s45
    v_lshlrev_b32 v4, 4, v1
    v_lshrrev_b32 v8, 3, v0
    v_and_b32 v9, 7, v0
    s_lshl_b32 s46, s36, 16
    s_lshl_b32 s47, s37, 7
    s_add_u32 s46, s46, s47
    s_add_u32 s46, s46, {WS_X1}
    s_add_u32 s48, s46, 32768
    v_lshlrev_b32 v10, 10, v8
    v_lshl_add_u32 v10, v9, 4, v10
    v_lshlrev_b32 v11, 5, v9
    s_lshl_b32 s47, s37, 8
    s_add_u32 s47, s47, {WS_MOD+5*2048}
    s_sub_u32 s49, 64, s36
    s_cmp_eq_u32 s36, 0
    s_cselect_b32 s49, 32, s49
    v_and_b32 v12, 1, v8
    v_cmp_ne_u32 vcc, 0, v12
    v_mov_b32 v12, s36
    v_mov_b32 v13, s49
    v_cndmask_b32 v12, v12, v13, vcc
    v_lshrrev_b32 v13, 1, v8
    v_lshl_add_u32 v12, v13, 6, v12
    v_lshlrev_b32 v12, 10, v12
    v_lshl_add_u32 v12, v9, 4, v12
    s_lshl_b32 s49, s37, 7
    s_add_u32 s50, s49, 0x100000
    v_bfe_u32 v6, v1, 2, 2
    v_bfe_u32 v7, v1, 5, 1
    v_lshl_add_u32 v7, v7, 2, v6
    v_lshlrev_b32 v7, 7, v7
    v_bfe_u32 v13, v1, 4, 1
    v_lshl_add_u32 v7, v13, 5, v7
    v_and_b32 v13, 3, v1
    v_lshl_add_u32 v7, v13, 3, v7
    s_lshl_b32 s41, s38, 11
    v_add_u32 v7, s41, v7
    v_bfe_u32 v13, v1, 3, 1
    v_lshlrev_b32 v13, 6, v13
    v_xor_b32 v6, v7, v13
    v_xor_b32 v7, 64, v6
    v_add_u32 v14, 0x10000, v6
    v_add_u32 v15, 0x10000, v7
    v_add_u32 v16, 0x20000, v6
    v_add_u32 v17, 0x20000, v7
    s_mov_b32 s62, {WS_F3}
    s_lshr_b32 s51, s36, 1
    s_lshl_b32 s51, s51, 4
    v_cmp_eq_u32 vcc, 15, v2
    v_cndmask_b32 v250, v2, 0, vcc
    v_add_u32 v250, s51, v250
    """)
    if opt("latex1", 2):
        A(f"""
        v_and_b32 v251, 7, v1
        v_lshlrev_b32 v251, 5, v251
        s_and_b32 s51, s36, 7
        s_lshr_b32 s52, s36, 3
        s_lshl_b32 s52, s52, 3
        s_add_u32 s51, s51, s52
        v_add_u32 v251, s51, v251
        """)
        if opt("T", 4) == 4:
            A("v_bfe_u32 v252, v251, 1, 2\nv_lshlrev_b32 v252, 2, v252\nv_bfe_u32 v253, v251, 3, 2\nv_add_u32 v252, v252, v253\nv_and_b32 v253, 1, v251\nv_lshlrev_b32 v253, 3, v253\nv_lshrrev_b32 v251, 5, v251")
        else:
            A("v_bfe_u32 v252, v251, 2, 1\nv_lshlrev_b32 v252, 3, v252\nv_bfe_u32 v253, v251, 3, 3\nv_add_u32 v252, v252, v253\nv_and_b32 v253, 3, v251\nv_lshlrev_b32 v253, 2, v253\nv_lshrrev_b32 v251, 6, v251")
        A("v_add_u32 v251, v251, v253\nv_lshl_add_u32 v251, v252, 4, v251\nv_cmp_gt_u32 vcc, 16, v1\nv_cndmask_b32 v250, v251, v250, vcc")
    A("v_lshlrev_b32 v250, 7, v250")

def wd_rest(A):
    for st_ in range(27, 40): A(*wd_op(st_, "dr"))

def k4_main(A):
    ACC, AF, NAF = 32, 64, 8
    XG = 96
    def act_op(k):
        t = "s_add_u32 s44, s44, 4096\n" if (k and k % 4 == 0) else ""
        if opt("rot", 0) and k and k % 4 == 0:
            t = f"s_mov_b32 s44, s{S_AE}\n" if k == 40 else t + f"s_cmp_eq_u32 s44, s{S_AE}\ns_cselect_b32 s44, s{S_AB}, s44\n"
        return (t + f"buffer_load_dwordx4 {a(4*k,4)}, v4, {srd(S_WS)}, s44 offen offset:{(k%4)*1024} sc1", None)
    H0 = opt("a0", 14)
    for k in range(H0): A(act_op(k)[0])
    def frag_read(n):
        k, t = n // 2, n % 2
        ad = WD_ORDER[k]*4096
        base = (("v6", "v7"), ("v14", "v15"), ("v16", "v17"))[ad >> 16][t]
        off = ad & 0xffff
        b = AF + (n % NAF)*4
        return f"ds_read_b64_tr_b16 {v(b,2)}, {base} offset:{off}\nds_read_b64_tr_b16 {v(b+2,2)}, {base} offset:{off+1024}"
    side = []
    n0 = 0
    for k in range(H0, 43): side.append((n0, *act_op(k))); n0 += opt("astep", 1)
    PF = NAF - 2
    N = 86
    ts(A, "issued4")
    for n in range(PF): A(frag_read(n))
    for n in range(N):
        k, t = n // 2, n % 2
        if n % 2 == 0: A.touch_regs([("v", AF+((n+1)%NAF)*4+3)])
        A(f"v_mfma_f32_32x32x16_bf16 {v(ACC+16*t,16)}, {v(AF+(n%NAF)*4,4)}, {a(4*k,4)}, {v(ACC+16*t,16) if k else 0}")
        if n == 0: ts(A, "first4"); tc(A, "first4")
        if side and side[0][0] <= n:
            _, tx, tag = side.pop(0); A(tx, tag=tag)
        if n == 47:
            A.wait_tag("dr"); A("s_barrier")
            for st_ in range(40, 43): A(*wd_op(st_, "do"))
            A(f"buffer_load_dwordx4 {v(XG,4)}, v10, {srd(S_WS)}, s46 offen sc1")
            A(f"buffer_load_dwordx4 {v(XG+4,4)}, v10, {srd(S_WS)}, s48 offen sc1")
            A(f"buffer_load_dwordx4 {v(XG+8,4)}, v11, {srd(S_WS)}, s47 offen sc1")
            A(f"buffer_load_dwordx4 {v(XG+12,4)}, v11, {srd(S_WS)}, s47 offen offset:16 sc1")
        if n == 73:
            A.wait_tag("do"); A("s_barrier")
        if n + PF < N: A(frag_read(n+PF))
    assert not side
    ts(A, "mfma4"); tc(A, "mfma4")
    RS = 272
    A(f"""
    s_lshl_b32 s51, s38, 1
    s_add_u32 s51, s51, s39
    s_mul_i32 s51, s51, {32*RS}
    v_and_b32 v6, 31, v1
    v_mul_u32_u24 v6, {RS}, v6
    v_bfe_u32 v7, v1, 5, 1
    v_lshl_add_u32 v6, v7, 4, v6
    v_add_u32 v6, s51, v6
    v_mul_u32_u24 v7, {RS}, v8
    v_lshl_add_u32 v7, v9, 5, v7
    """)
    for t in range(2):
        for j in range(4):
            A(f"ds_write_b128 v6, {v(ACC+16*t+4*j,4)} offset:{t*128+j*32}")
    XF = 112
    for it in range(2):
        for h in range(4): A(f"v_lshlrev_b32 v{XF+it*8+2*h}, 16, v{XG+it*4+h}\nv_and_b32 v{XF+it*8+2*h+1}, 0xffff0000, v{XG+it*4+h}")
    A("s_waitcnt lgkmcnt(0)\ns_barrier")
    RD = 128
    for it in range(2):
        for kh in range(2):
            for hf in range(2):
                A(f"ds_read_b128 {v(RD+it*16+kh*8+hf*4,4)}, v7 offset:{(kh*64+it*32)*RS+hf*16}")
    for it in range(2):
        z = RD + it*16
        for h in range(4): A(f"v_pk_add_f32 {v(z+2*h,2)}, {v(z+2*h,2)}, {v(z+8+2*h,2)}")
        for h in range(4): A(f"v_pk_fma_f32 {v(z+2*h,2)}, {v(z+2*h,2)}, {v(XG+8+2*h,2)}, {v(XF+it*8+2*h,2)}")
        if opt("scale", 0):
            for h in range(8): A(f"v_mul_f32 v{z+h}, {fbits(1 + opt('scale', 0)/1000)}, v{z+h}")
        for h in range(4): A(f"v_cvt_pk_bf16_f32 v{z+8+h}, v{z+2*h}, v{z+2*h+1}")
        A(f"buffer_store_dwordx4 {v(z+8,4)}, v12, {srd(S_OUT)}, s{49+it} offen {opt('outsc', 'sc1')}")

def flag_set(A, soff, keep=0, reset=True):
    sk = A.label("fs")
    A(f"""
    s_waitcnt vmcnt({keep}) lgkmcnt(0)
    s_barrier
    s_cmp_lg_u32 s3, 0
    s_cbranch_scc1 {sk}
    v_mov_b32 v250, 0
    v_mov_b32 v251, s{S_TOK}
    s_mov_b64 exec, 1
    buffer_store_dword v251, v250, {srd(S_WS)}, s{soff} offen sc1
    s_mov_b64 exec, -1
    {sk}:
    """)
    A.reset()

def late_prefetch(A, chunks, do_touch, nonln):
    n = 0
    if do_touch: touch(A, nonln=nonln); n += 3
    wchunks(A, chunks); n += 6*len(list(chunks))
    return n

def poll(A, kind, soff, others=None, after0=None):
    sk, lp, w0, jn = A.label("pk"), A.label("pl"), A.label("p0"), A.label("pj")
    A(f"s_cmp_eq_u32 s3, 0\ns_cbranch_scc1 {w0}")
    if others: others(A)
    A(f"s_branch {jn}\n{w0}:\ns_mov_b32 s{S_CNT}, 0")
    shrink = opt("shrink", 1)
    slp = f"s_sleep {opt('slp', 0)}\n" if opt("slp", 0) else ""
    if kind == "l16": A("v_lshlrev_b32 v250, 7, v2")
    elif kind.startswith("s64"): A("v_lshlrev_b32 v250, 6, v1")
    NG = int(kind[-1]) if kind.startswith("s64") else 0
    if not NG:
        if shrink: A(f"s_mov_b64 exec, {'0xffffff' if kind == 'lst' else '0xffff'}")
        A(f"""
        {lp}:
        buffer_load_dword v252, v250, {srd(S_WS)}, s{soff} offen sc1
        s_add_u32 s{S_CNT}, s{S_CNT}, 1
        s_waitcnt vmcnt(0)
        v_cmp_ne_u32 vcc, s{S_TOK}, v252
        s_cmp_ge_u32 s{S_CNT}, {MAXPOLL}
        s_cbranch_scc1 {sk}
        """)
        if shrink: A(f"s_and_b64 exec, exec, vcc\ns_cbranch_execz {sk}\n{slp}s_branch {lp}")
        else: A(f"{slp}s_cbranch_vccnz {lp}")
        A(f"{sk}:\ns_mov_b64 exec, -1")
    else:
        for j in range(1, 4): A(f"s_add_u32 s{71+j}, s{soff}, {j*4096}")
        if opt("pre1", 0):
            l1, d1 = A.label("p1"), A.label("p2")
            A(f"""
            s_and_b32 s92, s2, 127
            s_lshl_b32 s92, s92, 6
            s_add_u32 s92, s92, s{soff}
            v_mov_b32 v251, 0
            s_mov_b64 exec, 1
            {l1}:
            buffer_load_dword v252, v251, {srd(S_WS)}, s92 offen sc1
            s_add_u32 s{S_CNT}, s{S_CNT}, 1
            s_waitcnt vmcnt(0)
            v_cmp_ne_u32 vcc, s{S_TOK}, v252
            s_cmp_ge_u32 s{S_CNT}, {MAXPOLL}
            s_cbranch_scc1 {d1}
            s_cbranch_vccnz {l1}
            {d1}:
            s_mov_b64 exec, -1
            """)
        M = [84, 86, 88, 90]
        for j in range(4): A(f"s_mov_b64 s[{M[j]}:{M[j]+1}], {-1 if j < NG else 0}")
        A(f"{lp}:")
        for j in range(NG):
            sj = A.label("ps")
            A(f"s_mov_b64 exec, s[{M[j]}:{M[j]+1}]\ns_cbranch_execz {sj}")
            A(f"buffer_load_dword v{252+j}, v250, {srd(S_WS)}, s{soff if j == 0 else 71+j} offen sc1\n{sj}:")
        A(f"s_add_u32 s{S_CNT}, s{S_CNT}, 1\ns_waitcnt vmcnt(0)")
        for j in range(NG):
            A(f"s_mov_b64 exec, s[{M[j]}:{M[j]+1}]\nv_cmp_ne_u32 s[{M[j]}:{M[j]+1}], s{S_TOK}, v{252+j}" if shrink else f"s_mov_b64 exec, -1\nv_cmp_ne_u32 s[92:93], s{S_TOK}, v{252+j}\ns_cmp_lg_u64 s[92:93], 0\ns_cselect_b64 s[{M[j]}:{M[j]+1}], -1, 0")
        A(f"""
        s_or_b64 s[92:93], s[84:85], s[86:87]
        s_or_b64 s[94:95], s[88:89], s[90:91]
        s_cmp_ge_u32 s{S_CNT}, {MAXPOLL}
        s_cbranch_scc1 {sk}
        s_or_b64 s[92:93], s[92:93], s[94:95]
        s_cbranch_scc0 {sk}
        {slp}s_branch {lp}
        {sk}:
        s_mov_b64 exec, -1
        """)
    A.reset()
    if after0: after0(A)
    A(f"{jn}:\ns_barrier")

def build():
    A = Asm()
    name = NAME + "_kernel"
    kernel_begin(A, name)
    done = A.label("done")
    if TS: A("s_memrealtime s[62:63]\ns_waitcnt lgkmcnt(0)")
    entry(A, done)
    if TS:
        A("v_mov_b32 v248, 0\nv_writelane_b32 v248, s62, 0"); _ts["n"] = 1; _ts["names"] = ["entry"]
    m, i_, e = A.label("k1mod"), A.label("k1idle"), A.label("k1end")
    tok = f"s_waitcnt lgkmcnt(0)\ns_mul_i32 s{S_TOK}, s{S_TOK}, 0x9e3779b1\ns_add_u32 s{S_TOK}, s{S_TOK}, 0x7f4a7c15\ns_lshl_b32 s62, s2, 6\ns_add_u32 s62, s62, {WS_F1}"
    pfA = range(opt("pfA", 0)); tm = opt("touch", 11)
    A(f"s_cmp_ge_u32 s2, 128\ns_cbranch_scc1 {m}")
    k1_ln(A)
    ts(A, "stiss")
    if tm == 9: touch(A, "gu")
    keep = (2 if tm == 9 else 0) + late_prefetch(A, pfA if opt("pfApos", 0) == 3 else [], tm == 5, False)
    A(tok); flag_set(A, 62, keep)
    A(f"s_branch {e}\n{m}:\ns_cmp_ge_u32 s2, 224\ns_cbranch_scc1 {i_}")
    A.reset()
    k1_mod(A)
    tsx(A, 62)
    A.reset()
    keep = late_prefetch(A, pfA if opt("pfMpos", 0) == 3 else [], tm in (5, 6), tm == 6)
    A(tok); flag_set(A, 62, keep)
    if tm == 4 and opt("tafter", 0): touch(A, nonln=True)
    A(f"s_branch {e}\n{i_}:")
    A.reset()
    A(small_srd(S_X, 2097152) + "\n" + small_srd(S_C, 1024) + "\ns_waitcnt lgkmcnt(0)")
    common_setup(A)
    A(tok); flag_set(A, 62, 63)
    if opt("idledelay", 1):
        A(f"v_lshlrev_b32 v4, 2, v0\nbuffer_load_dword v8, v4, {srd(S_C)}, 0 offen\ns_waitcnt vmcnt(0)")
    if tm == 7: touch_early(A)
    if tm == 9: touch(A, "gu")
    if tm in (10, 11): touch(A, "gu", nonln=True)
    if tm in (2, 5): touch(A)
    if tm in (3, 4, 6): touch(A, nonln=True)
    wchunks(A, pfA)
    A(f"{e}:")
    A.reset()
    ts(A, "f1set")
    k2_pre(A, (lambda: wchunks(A, range(opt("pfA", 0), opt("pfA", 0) + opt("pf1", 3)))) if not opt("prefirst", 1) and not opt("w3", 1) else None)
    if opt("touch", 11) == 7: touch_late_setup(A)
    if opt("touch", 11) == 7 and opt("tlate", 0) == 0: touch_late(A)
    ts(A, "pre")
    w3 = opt("w3", 1)
    if opt("prefirst", 1) and not w3: wchunks(A, range(opt("pfA", 0), opt("pfA", 0) + opt("pf1", 3)))
    A(f"s_mov_b32 s63, {WS_F1}")
    poll(A, "s64x2" if opt("sepmod", 1) else "s64x4", 63, others=(lambda A_: w3_chunks(A_, range(opt("pf1", 3)))) if w3 else None)
    A.reset()
    ts(A, "sync1")
    k2_main(A)
    ts(A, "stiss2")
    keep = late_prefetch(A, range(opt("pfA", 0) + opt("pf1", 3), opt("pfB", 4)) if opt("pfBpos", 1) == 3 else [], False, False)
    flag_set(A, 62, keep + (4 if opt("latex1", 2) == 1 else 0))
    ts(A, "f2set")
    wchunks(A, range(opt("pfB", 4), opt("pfB", 4) + opt("pf3", 2)))
    k3_pre(A)
    idle3 = A.label("k3idle")
    A(f"s_cmp_eq_u32 s37, 15\ns_cbranch_scc1 {idle3}")
    poll(A, "l16", 62)
    A.reset()
    ts(A, "sync2")
    k3_main(A, idle3)
    flag_set(A, 61)
    ts(A, "f3set")
    k4_pre(A)
    poll(A, "lst", 62, others=wd_rest, after0=wd_rest)
    ts(A, "sync3")
    k4_main(A)
    sk = A.label("ep")
    A(f"""
    s_or_b32 s63, s2, s3
    s_cmp_lg_u32 s63, 0
    s_cbranch_scc1 {sk}
    v_mov_b32 v250, 0
    v_mov_b32 v251, s{S_TOK}
    s_mov_b32 s63, {WS_EP}
    s_mov_b64 exec, 1
    buffer_store_dword v251, v250, {srd(S_WS)}, s63 offen sc1
    s_mov_b64 exec, -1
    {sk}:
    """)
    ts(A, "end")
    probe_end(A)
    ts_flush(A)
    A(f"{done}:\ns_endpgm")
    code = A.finalize()
    return [(None, (256,1,1), (256,1,1), LDS_TOTAL)], code, [kernel_desc(name, 256, 172)]

if __name__ == "__main__":
    hdr = [l.rstrip("\n") for l in open("cdna_kernels/%s.s.ref" % NAME) if l.startswith(";") and "@launch" not in l][:15]
    out = sys.argv[1]
    for kv in sys.argv[2:]:
        k_, v_ = kv.split("=")
        OPT[k_] = int(v_) if v_.lstrip("-").isdigit() else v_
    TS = bool(opt("ts", 0)); PROBE = opt("probe", None)
    launches, code, descs = build()
    open(out, "w").write(file_text(hdr, launches, code, descs))
    if TS: json.dump([_ts["names"]], open(out[:-2] + ".json", "w"))
```

```python
import re

def v(i, n=1):
    return f"v{i}" if n == 1 else f"v[{i}:{i+n-1}]"
def a(i, n=1):
    return f"a{i}" if n == 1 else f"a[{i}:{i+n-1}]"
def s(i, n=1):
    return f"s{i}" if n == 1 else f"s[{i}:{i+n-1}]"

_reg_re = re.compile(r"^(-|abs\(|\|)?([vas])(?:(\d+)|\[(\d+):(\d+)\])\)?\|?$")

def parse_reg(tok):
    tok = tok.strip()
    if tok in ("vcc",): return [("s", "vcc")]
    if tok in ("vcc_lo", "vcc_hi"): return [("s", "vcc")]
    if tok in ("exec", "exec_lo", "exec_hi"): return [("s", "exec")]
    if tok == "m0": return [("s", "m0")]
    m = _reg_re.match(tok)
    if not m: return []
    k = m.group(2)
    if m.group(3) is not None:
        return [(k, int(m.group(3)))]
    return [(k, i) for i in range(int(m.group(4)), int(m.group(5)) + 1)]

TRANS = ("v_exp_f32", "v_log_f32", "v_rcp_f32", "v_rsq_f32", "v_sqrt_f32", "v_sin_f32", "v_cos_f32", "v_rcp_iflag_f32")

class Ins:
    __slots__ = ("text", "op", "dst", "src", "kind", "tag", "mods", "srcC", "passes", "wide", "srcAB")
    def __init__(self, text, tag=None):
        self.text = text; self.tag = tag
        t = text.split(";")[0].strip()
        self.dst = []; self.src = []; self.kind = "other"; self.srcC = []; self.srcAB = []; self.passes = 0; self.wide = False
        if t.endswith(":") or t.startswith(".") or not t:
            self.op = t; self.kind = "label" if t.endswith(":") else "dir"; self.mods = ""; return
        sp = t.split(None, 1)
        self.op = op = sp[0]
        rest = sp[1] if len(sp) > 1 else ""
        parts = [p.strip() for p in rest.split(",")] if rest else []
        ops = []
        mods = ""
        for i, p in enumerate(parts):
            q = p.split()
            if not q: continue
            ops.append(q[0])
            if len(q) > 1: mods += " " + " ".join(q[1:])
        self.mods = mods = rest
        R = [parse_reg(o) for o in ops]
        flat = lambda L: [x for y in L for x in y]
        if op.startswith("v_mfma"):
            self.kind = "mfma"
            self.dst = R[0]; self.srcAB = R[1] + R[2]; self.srcC = R[3] if len(R) > 3 else []
            self.src = self.srcAB + self.srcC
            if "32x32x16" in op or "32x32x8" in op: self.passes = 8
            elif "16x16x4_f32" in op: self.passes = 8; self.kind = "mfma_s"
            elif "32x32x2_f32" in op: self.passes = 16; self.kind = "mfma_s"
            elif "16x16x32" in op or "16x16x16" in op: self.passes = 4
            else: raise ValueError("unknown mfma " + op)
        elif op.startswith("v_"):
            self.kind = "valu"
            if op.startswith("v_cmp"):
                self.dst = R[0]; self.src = flat(R[1:])
            elif op.startswith("v_swap") or op.startswith("v_permlane"):
                self.dst = R[0] + R[1]; self.src = R[0] + R[1]
            elif op.startswith(("v_add_co", "v_sub_co", "v_addc_co", "v_subb_co")):
                self.dst = R[0] + R[1]; self.src = flat(R[2:])
            else:
                self.dst = R[0]; self.src = flat(R[1:])
                if op.startswith(("v_fmac", "v_dot2c", "v_pk_fmac", "v_writelane")) or "dpp" in op or "row_" in mods or "quad_perm" in mods:
                    self.src = self.src + R[0]
                if op.startswith("v_cndmask") and len(R) == 3:
                    self.src = self.src + [("s", "vcc")]
        elif op.startswith(("buffer_", "global_")):
            if op.startswith(("buffer_inv", "buffer_wbl2")):
                self.kind = "vmem"; return
            self.kind = "vmem"
            islds = re.search(r"\blds\b", mods) is not None or "load_lds" in op
            if "load" in op and not islds:
                self.dst = R[0]; self.src = flat(R[1:])
            elif "atomic" in op and "sc0" in mods:
                self.dst = R[0]; self.src = flat(R)
            else:
                self.src = flat(R)
                if islds: self.src.append(("s", "m0")); self.kind = "vmem_lds"
                if "store" in op and ("x4" in op or "x3" in op):
                    self.wide = True
                    self.srcC = R[0] if op.startswith("buffer_") else R[1]
        elif op.startswith("ds_"):
            self.kind = "ds"
            if op.startswith(("ds_read", "ds_bpermute", "ds_permute", "ds_swizzle")):
                self.dst = R[0]; self.src = flat(R[1:])
            else:
                self.src = flat(R)
        elif op.startswith(("s_load", "s_buffer_load", "s_memtime", "s_memrealtime")):
            self.kind = "smem"; self.dst = R[0]; self.src = flat(R[1:])
        elif op.startswith("s_waitcnt"):
            self.kind = "wait"
        elif op.startswith(("s_cbranch", "s_branch", "s_endpgm", "s_setpc")):
            self.kind = "branch"
        elif op == "s_nop":
            self.kind = "nop"
        elif op.startswith("s_"):
            self.kind = "salu"
            if op.startswith(("s_cmp", "s_bitcmp", "s_barrier", "s_sleep", "s_setprio")):
                self.src = flat(R)
            else:
                self.dst = R[0] if R else []; self.src = flat(R[1:])
                if "saveexec" in op: self.dst = self.dst + [("s", "exec")]; self.src = self.src + [("s", "exec")]
                if op.startswith(("s_addk", "s_mulk")): self.src = self.src + R[0]
        else:
            raise ValueError("unknown instruction " + text)

def pair_req(P, I):
    S = set(I.src); D = set(I.dst)
    isvalu = I.kind == "valu"
    ismf = I.kind in ("mfma", "mfma_s")
    isdpp = isvalu and ("dpp" in I.op or "row_" in I.mods or "quad_perm" in I.mods)
    PD = set(P.dst)
    req = 0
    if P.kind == "valu":
        pv = {r for r in PD if r[0] in "va"}
        ps = {r for r in PD if r[0] == "s"}
        if ismf and pv & S: req = max(req, 2)
        if isvalu and pv & S:
            if isdpp or I.op.startswith("v_permlane"): req = max(req, 2)
            if I.op.startswith(("v_readlane", "v_readfirstlane")): req = max(req, 1)
            if P.op.split("_e")[0] in TRANS and I.op.split("_e")[0] not in TRANS: req = max(req, 1)
            if "op_sel" in P.mods and not P.op.startswith("v_pk") or "sdwa" in P.op: req = max(req, 1)
        if ps & S:
            if isvalu: req = max(req, 4 if I.op.startswith(("v_readlane", "v_writelane")) else 2)
            if I.kind in ("vmem", "vmem_lds"): req = max(req, 5)
            if I.kind in ("salu", "smem", "branch"): req = max(req, 1)
        if ("s", "vcc") in ps and I.op.startswith("s_cbranch_vcc"): req = max(req, 1)
    elif P.kind in ("mfma", "mfma_s"):
        xdl = P.kind == "mfma"
        p = P.passes
        t_valu = {2: 5, 4: 8, 8: 12, 16: 20}[p] if xdl else {2: 4, 4: 6, 8: 10, 16: 18}[p]
        t_c = {2: 4, 4: 6, 8: 10, 16: 18}[p]
        if ismf:
            if PD & set(I.srcAB): req = max(req, t_valu)
            if PD & set(I.srcC):
                same = (P.dst == I.srcC and P.passes == I.passes and P.kind == I.kind)
                if not same: req = max(req, t_c)
            elif PD & D:
                req = max(req, t_c)
        elif (PD & (S | D)) and I.kind in ("valu", "vmem", "vmem_lds", "ds"):
            req = max(req, t_valu)
        if isvalu and xdl and set(P.srcC) & D: req = max(req, {2: 1, 4: 3, 8: 7, 16: 15}[p])
    elif P.kind == "salu":
        if ("s", "m0") in PD and I.kind == "vmem_lds": req = max(req, 1)
    elif P.kind == "vmem" and P.wide:
        if set(P.srcC) & D: req = max(req, 2)
    return req

class Asm:
    def __init__(self):
        self.ins = []
        self.nlabel = 0
    def __call__(self, text, tag=None):
        for l in text.split("\n"):
            l = l.strip()
            if not l or l.startswith(";"): continue
            self.ins.append(Ins(l, tag))
    def label(self, base="L"):
        Asm._n = getattr(Asm, "_n", 0) + 1
        return f".{base}_{Asm._n}"
    def c(self, text):
        for l in text.strip("\n").split("\n"):
            self.ins.append(Ins("; " + l.strip()))
    def wait_tag(self, tag):
        i = Ins("s_nop 0"); i.kind = "waittag"; i.tag = tag; self.ins.append(i)
    def touch_regs(self, regs):
        i = Ins("s_nop 0"); i.kind = "touch"; i.src = list(regs); self.ins.append(i)
    def drop_tag(self, tag):
        i = Ins("s_nop 0"); i.kind = "droptag"; i.tag = tag; self.ins.append(i)
    def reset(self):
        i = Ins("s_nop 0"); i.kind = "reset"; self.ins.append(i)
    def extend(self, other):
        self.ins.extend(other.ins)

    def _insert_waits(self):
        out = []
        vm = []
        lg = []
        def need(q, regs, getset):
            idx = -1
            for n, e in enumerate(q):
                if getset(e) & regs: idx = n
            return idx
        for I in self.ins:
            if I.kind == "reset":
                vm.clear(); lg.clear(); continue
            if I.kind == "droptag":
                vm[:] = [e for e in vm if e[0] != I.tag]; continue
            if I.tag == "spin":
                out.append(I); continue
            if I.kind == "waittag":
                idx = -1
                for n, e in enumerate(vm):
                    if e[0] == I.tag: idx = n
                if idx >= 0:
                    cnt = len(vm) - 1 - idx
                    out.append(Ins(f"s_waitcnt vmcnt({min(cnt,63)})"))
                    del vm[:idx + 1]
                continue
            if I.kind == "wait":
                m = re.search(r"vmcnt\((\d+)\)", I.text)
                if m:
                    n = int(m.group(1))
                    if len(vm) > n: del vm[:len(vm) - n]
                m = re.search(r"lgkmcnt\((\d+)\)", I.text)
                if m:
                    n = int(m.group(1))
                    if n == 0: lg.clear()
                    elif len(lg) > n and not any(e[0] == "smem" for e in lg): del lg[:len(lg) - n]
                out.append(I); continue
            regs = set(I.src) | set(I.dst)
            if regs:
                idx = need(vm, regs, lambda e: e[1])
                w = []
                if idx >= 0:
                    cnt = len(vm) - 1 - idx
                    if cnt > 63: cnt = 63;
                    w.append(f"vmcnt({cnt})"); del vm[:len(vm) - cnt]
                idx = need(lg, regs, lambda e: e[1])
                if idx >= 0:
                    if any(e[0] == "smem" for e in lg):
                        w.append("lgkmcnt(0)"); lg.clear()
                    else:
                        cnt = min(len(lg) - 1 - idx, 15)
                        w.append(f"lgkmcnt({cnt})"); del lg[:len(lg) - cnt]
                if w: out.append(Ins("s_waitcnt " + " ".join(w)))
            if I.kind in ("vmem", "vmem_lds"):
                vm.append((I.tag, set(I.dst)))
                if len(vm) > 63:
                    pass
            elif I.kind == "ds":
                lg.append(("ds", set(I.dst)))
            elif I.kind == "smem":
                lg.append(("smem", set(I.dst)))
            if I.kind != "touch": out.append(I)
        self.ins = out

    def _hazards(self):
        out = []
        def states(I):
            if I.kind == "nop": return int(I.text.split()[1]) + 1
            if I.kind in ("label", "dir"): return 0
            return 1
        for I in self.ins:
            if I.kind in ("label", "dir", "nop", "wait"):
                out.append(I); continue
            needw = 0
            dist = 0
            S = set(I.src); D = set(I.dst)
            isvalu = I.kind == "valu"
            ismf = I.kind in ("mfma", "mfma_s")
            isdpp = isvalu and ("dpp" in I.op or "row_" in I.mods or "quad_perm" in I.mods)
            for P in reversed(out):
                if dist >= 21: break
                req = pair_req(P, I)
                if req > dist: needw = max(needw, req - dist)
                dist += states(P)
            while needw > 0:
                n = min(needw, 16)
                out.append(Ins(f"s_nop {n-1}")); needw -= n
            out.append(I)
        self.ins = out

    def finalize(self, waits=True, hazards=True):
        if waits: self._insert_waits()
        else: self.ins = [i for i in self.ins if i.kind not in ("reset", "waittag", "touch", "droptag")]
        if hazards: self._hazards()
        lines = []
        for I in self.ins:
            if I.kind in ("label", "dir"): lines.append(I.text)
            else: lines.append("  " + I.text)
        return "\n".join(lines) + "\n"
    def text(self):
        return self.finalize(waits=False, hazards=False)

def kernel_begin(A, name):
    A(f".globl {name}")
    A(".p2align 8")
    A(f".type {name},@function")
    A(f"{name}:")

def kernel_desc(name, nvgpr, nagpr=0, nsgpr=102, ids="x", denorm=True):
    acc = max(4, (nvgpr + 3) // 4 * 4)
    total = acc + nagpr if nagpr else nvgpr
    t = [f".amdhsa_kernel {name}",
         f"  .amdhsa_next_free_vgpr {total}",
         f"  .amdhsa_next_free_sgpr {nsgpr}",
         f"  .amdhsa_accum_offset {acc}",
         "  .amdhsa_group_segment_fixed_size 0",
         "  .amdhsa_kernarg_size 112",
         "  .amdhsa_user_sgpr_count 2",
         "  .amdhsa_user_sgpr_kernarg_segment_ptr 1",
         "  .amdhsa_system_sgpr_workgroup_id_x 1"]
    if "y" in ids:
        t.append("  .amdhsa_system_sgpr_workgroup_id_y 1")
    if denorm:
        t.append("  .amdhsa_float_denorm_mode_32 3")
    t.append(".end_amdhsa_kernel")
    return "\n".join(t) + "\n"

def file_text(header_lines, launches, code, descs):
    out = []
    out += header_lines
    if len(launches) == 1 and launches[0][0] is None:
        g, b, lds = launches[0][1:]
        out.append(f"; @launch grid=({g[0]},{g[1]},{g[2]}) block=({b[0]},{b[1]},{b[2]}) lds={lds}")
    else:
        for (k, g, b, lds) in launches:
            out.append(f"; @launch kernel={k} grid=({g[0]},{g[1]},{g[2]}) block=({b[0]},{b[1]},{b[2]}) lds={lds}")
    out.append('.amdgcn_target "amdgcn-amd-amdhsa--gfx950"')
    out.append(".text")
    out.append(code)
    out.append('.section .rodata,"a"')
    for d in descs:
        out.append(".p2align 6")
        out.append(d)
    return "\n".join(out)
```

```python
import sys, struct, math, json
from asmlib import *

NAME = "adaLN_cond__spectral_fnet__swiglu_ffn__prompt"
def fbits(x): return "0x%08x" % struct.unpack("<I", struct.pack("<f", x))[0]
OPT = {}
def opt(k, d): return OPT.get(k, d)

WS_U   = 0
WS_MOD = 0x240000
WS_H2  = 0x300000
WS_X1  = 0x500000
WS_ACT = 0x800000
WS_FLG = 0xE00000
WS_TS  = 0xF00000
WS_SIZE = 0x1000000
WS_EP  = WS_FLG
WS_F1  = WS_FLG + 0x1000
WS_F2  = WS_FLG + 0x10000
WS_F3  = WS_FLG + 0x20000
def SLOTSTR(): return 65536 + opt("upad", 0)
def USLOT(): return 512 if opt("upm", 0) else SLOTSTR()
def UOCT(): return 16384 if opt("upm", 0) else 512
def UN2(): return 65536 + opt("upad", 0) if opt("upm", 0) else 2048
MAXPOLL = int(__import__('os').environ.get('MAXPOLL', '60000'))
LDS_TOTAL = 163840
SLOT = 24640; UOFF = 12320
XCS = 1040
XWS = 16 * XCS
XIMG = LDS_TOTAL - 4 * XWS
XTAB = XIMG - 384
MW = XIMG
MSC = MW + 32768
MRED = MSC + 1024
K2EX = 123200
K2HB = K2EX + 18432
S_X, S_WG, S_WU, S_WD, S_C, S_WM, S_OUT, S_WS = 4, 8, 12, 16, 20, 24, 28, 32
S_TOK, S_CNT, S_SL, S_WL, S_DG, S_DL, S_T, S_T2 = 64, 65, 66, 67, 68, 69, 70, 75
V_W = 240
V_D = 243
def srd(b): return s(b, 4)
LOG2E = fbits(-math.log2(math.e))

TS = False
PROBE = None
_ts = {"n": 0, "names": []}
def ts(A, name=None, cyc=False):
    if not TS: return
    if opt("tsonly", None) and name not in opt("tsonly", "").split("+") and name not in ("f1set", "end"): return
    n = _ts["n"]; _ts["n"] += 1
    _ts["names"].append(("c:" if cyc else "") + name)
    A(f"{'s_memtime' if cyc else 's_memrealtime'} s[98:99]\ns_waitcnt lgkmcnt(0)\nv_writelane_b32 v248, s98, {n}")
def tsx(A, lane):
    if TS: A(f"s_memrealtime s[98:99]\ns_waitcnt lgkmcnt(0)\nv_writelane_b32 v248, s98, {lane}")
def tc(A, name=None): ts(A, name, True)
def probe_end(A):
    if PROBE is None: return
    lp = A.label("pr")
    idx = _ts["names"].index(PROBE)
    A(f"""
    s_waitcnt vmcnt(0) lgkmcnt(0)
    v_readlane_b32 s90, v248, 0
    v_readlane_b32 s91, v248, {idx}
    s_nop 4
    s_sub_u32 s91, s91, s90
    s_cmp_gt_u32 s91, 20000
    s_cselect_b32 s91, 0, s91
    s_add_u32 s91, s91, 6000
    {lp}:
    s_memrealtime s[92:93]
    s_waitcnt lgkmcnt(0)
    s_sub_u32 s92, s92, s90
    s_cmp_lt_u32 s92, s91
    s_cbranch_scc1 {lp}
    """)
def ts_flush(A):
    if not TS: return
    sk = A.label("tsk")
    A(f"s_waitcnt vmcnt(0) lgkmcnt(0)\ns_cmp_lg_u32 s3, 0\ns_cbranch_scc1 {sk}")
    A(f"s_lshl_b32 s64, s2, 8\ns_add_u32 s64, s64, {WS_TS}\nv_lshlrev_b32 v1, 2, v1")
    A(f"buffer_store_dword v248, v1, {srd(S_WS)}, s64 offen")
    A(f"s_waitcnt vmcnt(0)\n{sk}:")

def bf16r(A, dst, src):
    A(f"v_cvt_pk_bf16_f32 {dst}, {src}, {src}\nv_lshlrev_b32 {dst}, 16, {dst}")

def sl_expr(d=38, t=39):
    if opt("T", 4) == 2:
        return f"s_lshr_b32 s{d}, s2, 4"
    if opt("T", 4) == 4:
        return f"s_and_b32 s{d}, s2, 1\ns_lshl_b32 s{d}, s{d}, 3\ns_lshr_b32 s{t}, s2, 5\ns_add_u32 s{d}, s{d}, s{t}"
    return f"s_and_b32 s{d}, s2, 3\ns_lshl_b32 s{d}, s{d}, 2\ns_lshr_b32 s{t}, s2, 6\ns_add_u32 s{d}, s{d}, s{t}"
def rb_expr():
    if opt("T", 4) == 2:
        return "s_and_b32 s36, s2, 7\ns_lshl_b32 s36, s36, 1\ns_bfe_u32 s39, s2, 0x10003\ns_add_u32 s36, s36, s39"
    if opt("T", 4) == 4:
        return "s_bfe_u32 s36, s2, 0x20001\ns_lshl_b32 s36, s36, 2\ns_bfe_u32 s39, s2, 0x20003\ns_add_u32 s36, s36, s39"
    return "s_bfe_u32 s36, s2, 0x10002\ns_lshl_b32 s36, s36, 3\ns_bfe_u32 s39, s2, 0x30003\ns_add_u32 s36, s36, s39"
def entry(A, done):
    CP = opt("codepf", 1)
    A(f"""
    s_cmp_ge_u32 s2, 256
    s_cbranch_scc1 {done}
    s_load_dwordx2 s[4:5], s[0:1], 0
    s_load_dwordx2 s[24:25], s[0:1], 80
    s_load_dwordx2 s[20:21], s[0:1], 72
    s_load_dwordx2 s[32:33], s[0:1], 104
    s_load_dwordx2 s[8:9], s[0:1], 48
    s_load_dwordx2 s[12:13], s[0:1], 56
    s_load_dwordx2 s[16:17], s[0:1], 64
    s_load_dwordx2 s[28:29], s[0:1], 88
    v_lshrrev_b32 v2, 6, v0
    v_and_b32 v1, 63, v0
    v_readfirstlane_b32 s3, v2
    """)
    if CP:
        A(f"""
        s_getpc_b64 s[40:41]
        s_and_b32 s40, s40, 0xffffff00
        s_lshr_b32 s42, s2, 3
        s_lshl_b32 s42, s42, 2
        s_add_u32 s42, s42, s3
        s_and_b32 s42, s42, {opt("cpmask", 15)}
        s_lshl_b32 s42, s42, 11
        v_and_b32 v250, 15, v0
        v_lshlrev_b32 v250, 7, v250
        v_add_u32 v250, s42, v250
        v_min_u32 v250, .Lend-{NAME}_kernel, v250
        global_load_dword v249, v250, s[40:41]
        """)
    A("v_and_b32 v2, 15, v0\nv_bfe_u32 v3, v0, 4, 2")

def common_setup(A):
    for b, sz in ((S_WG, 1409024), (S_WU, 1409024), (S_WD, 1409024), (S_OUT, 2097152), (S_WS, WS_SIZE)):
        A(f"s_mov_b32 s{b+2}, {sz}\ns_mov_b32 s{b+3}, 0x20000")
    A(f"s_add_u32 s72, s32, {WS_EP}\ns_addc_u32 s73, s33, 0\ns_load_dword s{S_TOK}, s[72:73], 0")
    A(f"""
    {sl_expr(72, 73)}
    s_mul_i32 s{S_SL}, s72, 192
    s_cmp_eq_u32 s72, 15
    s_cselect_b32 s{S_SL}, 0x200000, s{S_SL}
    s_mul_i32 s{S_WL}, s3, 3072
    s_mul_i32 s72, s3, 192
    s_mov_b32 s73, 0x15555556
    """)
    for i in range(3):
        A(f"""
        v_add_u32 v{V_W+i}, s72, v1
        v_add_u32 v{V_W+i}, {64*i}, v{V_W+i}
        v_mul_hi_u32 v244, v{V_W+i}, s73
        v_mul_u32_u24 v245, 12, v244
        v_sub_u32 v{V_W+i}, v{V_W+i}, v245
        v_lshlrev_b32 v{V_W+i}, 4, v{V_W+i}
        v_mul_u32_u24 v244, 2752, v244
        v_add_u32 v{V_W+i}, v{V_W+i}, v244
        """)
    if opt("touch", 11) in (1, 2, 3, 4, 5, 6, 8, 9, 10, 11): touch_setup(A, opt("touch", 11) in (3, 4, 6, 10, 11))
V_W3 = 224
def w3_setup(A):
    A(f"s_sub_u32 s72, s3, 1\ns_lshl_b32 s96, s72, 12\ns_lshl_b32 s72, s72, 8\ns_mov_b32 s73, 0x15555556")
    for i in range(4):
        A(f"""
        v_add_u32 v{V_W3+i}, s72, v1
        v_add_u32 v{V_W3+i}, {64*i}, v{V_W3+i}
        v_mul_hi_u32 v244, v{V_W3+i}, s73
        v_mul_u32_u24 v245, 12, v244
        v_sub_u32 v{V_W3+i}, v{V_W3+i}, v245
        v_lshlrev_b32 v{V_W3+i}, 4, v{V_W3+i}
        v_mul_u32_u24 v244, 2752, v244
        v_add_u32 v{V_W3+i}, v{V_W3+i}, v244
        """)
def w3_chunks(A, chunks):
    w3_setup(A)
    for ch in chunks:
        A(f"s_add_u32 s{S_T2}, s{S_SL}, {ch*64*2752}")
        for mtx, sr in ((0, S_WG), (1, S_WU)):
            for i in range(4):
                A(f"s_add_u32 m0, s96, {ch*SLOT+mtx*UOFF+i*1024}\nbuffer_load_dwordx4 v{V_W3+i}, {srd(sr)}, s{S_T2} offen lds")
def code_pf_text(label, dst, nlines=64):
    here = f".Lpc_{label.strip('.')}"
    return f"""s_getpc_b64 s[72:73]
    {here}:
    s_add_u32 s72, s72, {label}-{here}
    s_addc_u32 s73, s73, 0
    v_min_u32 v{dst}, {nlines-1}, v1
    v_lshlrev_b32 v{dst}, 7, v{dst}
    v_min_u32 v{dst}, .Lend-{label}, v{dst}
    global_load_dword v{dst}, v{dst}, s[72:73]"""
def small_srd(b, sz): return f"s_mov_b32 s{b+2}, {sz}\ns_mov_b32 s{b+3}, 0x20000"

def touch_setup(A, nonln=False):
    n = 22 if nonln else 11
    A(f"""
    s_lshl_b32 s{S_T}, s2, 2
    s_add_u32 s{S_T}, s{S_T}, s3
    s_and_b32 s{S_T}, s{S_T}, {511 if nonln else 1023}
    s_mul_i32 s{S_T}, s{S_T}, {n}
    v_min_u32 v246, {n-1}, v1
    v_add_u32 v246, s{S_T}, v246
    v_lshlrev_b32 v246, 7, v246
    """)
def touch(A, which="gud", nonln=False):
    pol = opt("tpol", "")
    A(f"s_mov_b64 exec, {hex((1 << (22 if nonln else 11)) - 1)}")
    if "g" in which: A(f"buffer_load_dword v236, v246, {srd(S_WG)}, 0 offen {pol}")
    if "u" in which: A(f"buffer_load_dword v237, v246, {srd(S_WU)}, 0 offen {pol}")
    if "d" in which: A(f"buffer_load_dword v238, v246, {srd(S_WD)}, 0 offen {pol}")
    A("s_mov_b64 exec, -1")

def touch_early(A):
    rows = 64 * opt("terows", 5)
    n = (rows * 2752 // 128 + 127) // 128
    A(f"""
    s_sub_u32 s38, s2, 224
    s_lshl_b32 s38, s38, 2
    s_add_u32 s38, s38, s3
    s_mul_i32 s38, s38, {n}
    v_min_u32 v246, {n-1}, v1
    v_add_u32 v246, s38, v246
    v_lshlrev_b32 v246, 7, v246
    buffer_load_dword v247, v246, {srd(S_WG)}, 0 offen
    buffer_load_dword v245, v246, {srd(S_WU)}, 0 offen
    """)
    for j in range(1, (n + 63) // 64):
        A(f"""
        v_add_u32 v244, {64*j}, v1
        v_min_u32 v244, {n-1}, v244
        v_add_u32 v244, s38, v244
        v_lshlrev_b32 v244, 7, v244
        buffer_load_dword v239, v244, {srd(S_WG)}, 0 offen
        buffer_load_dword v238, v244, {srd(S_WU)}, 0 offen
        """)
def touch_late_setup(A):
    rows0 = 64 * opt("terows", 5)
    n = ((512 - rows0) * 2752 // 128 + 1023) // 1024
    A(f"""
    s_lshl_b32 s{S_T}, s2, 2
    s_add_u32 s{S_T}, s{S_T}, s3
    s_mul_i32 s71, s{S_T}, 11
    s_mul_i32 s{S_T}, s{S_T}, {n}
    s_add_u32 s{S_T}, s{S_T}, {rows0*2752//128}
    v_min_u32 v246, {max(n-1,0)}, v1
    v_add_u32 v246, s{S_T}, v246
    v_lshlrev_b32 v246, 7, v246
    v_min_u32 v247, 10, v1
    v_add_u32 v247, s71, v247
    v_lshlrev_b32 v247, 7, v247
    """)
def touch_late(A):
    A(f"""
    s_mov_b64 exec, 0x7ff
    buffer_load_dword v245, v246, {srd(S_WG)}, 0 offen
    buffer_load_dword v244, v246, {srd(S_WU)}, 0 offen
    buffer_load_dword v246, v247, {srd(S_WD)}, 0 offen
    s_mov_b64 exec, -1
    """)

def wchunk_ops(chunk, slot, tag):
    ops = []
    for mtx, sr in ((0, S_WG), (1, S_WU)):
        for i in range(3):
            t = f"s_add_u32 m0, s{S_WL}, {slot*SLOT+mtx*UOFF+i*1024}\n"
            if mtx == 0 and i == 0: t += f"s_add_u32 s{S_T2}, s{S_SL}, {chunk*64*2752}\n"
            t += f"buffer_load_dwordx4 v{V_W+i}, {srd(sr)}, s{S_T2} offen {opt('wpol','')} lds"
            ops.append((t, tag))
    return ops
def wchunks(A, chunks):
    for ch in chunks:
        for t, tag in wchunk_ops(ch, ch, f"w{ch}"): A(t, tag=tag)

def k1_ln(A):
    A(f"""
    s_and_b32 s38, s2, 7
    s_lshr_b32 s39, s2, 3
    s_lshr_b32 s40, s39, 2
    s_lshl_b32 s40, s40, 3
    s_add_u32 s36, s38, s40
    s_and_b32 s37, s39, 3
    v_lshrrev_b32 v4, 2, v1
    v_sub_u32 v5, 0, v3
    v_xor_b32 v5, v5, v1
    v_and_b32 v5, 3, v5
    v_lshlrev_b32 v4, 15, v4
    v_lshl_add_u32 v4, v5, 4, v4
    s_lshl_b32 s38, s3, 9
    s_add_u32 s38, s38, s36
    s_lshl_b32 s38, s38, 10
    s_mul_i32 s39, s3, {XWS}
    s_add_u32 s39, s39, {XIMG}
    {small_srd(S_X, 2097152)}
    s_waitcnt lgkmcnt(0)
    """)
    ts(A, "prolog")
    for i in range(16):
        A(f"s_add_u32 m0, s39, {i*(XCS-64)}")
        A(f"buffer_load_dwordx4 v4, {srd(S_X)}, s38 offen offset:{i*64} {opt('xpol','')} lds", tag=f"x{i}")
    common_setup(A)
    BC, NV = 16, 48
    A("""
    v_lshlrev_b32 v5, 3, v3
    v_cvt_f32_u32 v5, v5
    s_and_b32 s40, s3, 1
    s_lshl_b32 s40, s40, 4
    v_add_u32 v6, s40, v2
    v_cmp_eq_u32 vcc, 0, v6
    v_cvt_f32_u32 v6, v6
    v_mul_f32 v6, 0x3c800000, v6
    v_mov_b32 v8, 0x3e800000
    v_cndmask_b32 v9, v6, 0.5, vcc
    v_cndmask_b32 v10, v8, 0, vcc
    """)
    for ks in range(2):
        for j in range(8):
            A(f"v_add_f32 v{NV}, {fbits(32*ks+j)}, v5\nv_mul_f32 v{BC+ks*8+j}, v{NV}, v6\nv_fma_f32 v{BC+16+ks*8+j}, v{NV}, v9, v10")
    for i in range(32): A(f"v_cos_f32 v{BC+i}, v{BC+i}")
    ONES, G, SA = 112, 116, 120
    for i in range(4): A(f"v_mov_b32 v{ONES+i}, 0x3f803f80")
    A(f"""
    v_lshrrev_b32 v5, 2, v2
    v_sub_u32 v5, 0, v5
    v_xor_b32 v5, v5, v3
    v_and_b32 v5, 3, v5
    v_lshlrev_b32 v5, 4, v5
    v_lshl_add_u32 v5, v2, 6, v5
    v_add_u32 v5, s39, v5
    v_lshrrev_b32 v6, 1, v3
    v_mul_u32_u24 v6, {XWS}, v6
    v_and_b32 v7, 3, v1
    v_mul_u32_u24 v7, {XCS}, v7
    v_add_u32 v6, v6, v7
    v_and_b32 v7, 1, v3
    v_lshl_add_u32 v6, v7, 9, v6
    v_bfe_u32 v8, v1, 2, 2
    v_lshl_add_u32 v6, v8, 6, v6
    s_lshr_b32 s41, s3, 1
    s_mul_i32 s42, s41, {8*XCS}
    s_add_u32 s42, s42, {XIMG}
    v_add_u32 v6, s42, v6
    v_lshlrev_b32 v7, 1, v7
    v_xor_b32 v8, s37, v7
    v_lshl_add_u32 v11, v8, 4, v6
    v_xor_b32 v8, 3, v8
    v_lshl_add_u32 v12, v8, 4, v6
    v_add_u32 v12, 256, v12
    s_lshl_b32 s42, s3, 6
    s_add_u32 s42, s42, {XTAB}
    v_lshl_add_u32 v7, v2, 2, s42
    s_lshl_b32 s42, s3, 5
    s_add_u32 s42, s42, {XTAB+256}
    v_lshl_add_u32 v13, v2, 1, s42
    v_lshlrev_b32 v8, 5, v3
    v_add_u32 v8, {XTAB}, v8
    v_lshlrev_b32 v14, 4, v3
    v_add_u32 v14, {XTAB+256}, v14
    s_mov_b32 s42, 0x22222222
    s_mov_b32 s43, 0x22222222
    s_mov_b32 s44, 0x44444444
    s_mov_b32 s45, 0x44444444
    s_mov_b32 s46, 0x88888888
    s_mov_b32 s47, 0x88888888
    v_add_u32 v9, s40, v2
    v_mul_u32_u24 v9, {USLOT()}, v9
    v_lshl_add_u32 v9, v3, 4, v9
    s_mul_i32 s48, s36, {UN2()}
    s_mul_i32 s49, s37, {UOCT()}
    s_add_u32 s48, s48, s49
    s_lshl_b32 s49, s41, 7
    s_add_u32 s48, s48, s49
    s_add_u32 s48, s48, {WS_U}
    """)
    ts(A, "const")
    R = 48
    pfl = [op for ch in range(opt("pfA", 0)) for op in wchunk_ops(ch, ch, f"w{ch}")] if opt("pfApos", 0) == 2 else []
    for i in range(16):
        A.wait_tag(f"x{i}")
        A(f"ds_read_b128 {v(R+4*i,4)}, v5 offset:{i*XCS}")
        for _ in range(2 if i >= 14 - len(pfl)//2 + 7 else 1):
            if pfl and i >= opt("pfAi", 2): A(*pfl.pop(0))
        if i >= 1:
            k = i - 1
            A(f"v_mfma_f32_16x16x32_bf16 {v(G,4)}, {v(R+4*k,4)}, {v(R+4*k,4)}, {v(G,4) if k else 0}")
            A(f"v_mfma_f32_16x16x32_bf16 {v(SA,4)}, {v(ONES,4)}, {v(R+4*k,4)}, {v(SA,4) if k else 0}")
    A("s_barrier")
    late_pf = pfl
    A(f"v_mfma_f32_16x16x32_bf16 {v(G,4)}, {v(R+60,4)}, {v(R+60,4)}, {v(G,4)}")
    A(f"v_mfma_f32_16x16x32_bf16 {v(SA,4)}, {v(ONES,4)}, {v(R+60,4)}, {v(SA,4)}")
    ts(A, "xarr")
    if opt("touch", 11) == 2: touch(A)
    if opt("pfA", 0) and opt("pfApos", 0) == 1: wchunks(A, range(opt("pfA", 0)))
    X = 128
    for tl in range(4):
        for ks in range(2):
            b = X + (tl*2+ks)*4
            off = ks*2*XWS + (tl >> 1)*4*XCS + 8*(tl & 1)
            A(f"ds_read_b64_tr_b16 {v(b,2)}, v11 offset:{off}\nds_read_b64_tr_b16 {v(b+2,2)}, v12 offset:{off}")
    A(f"""
    v_cndmask_b32 v10, v{G}, v{G+1}, s[42:43]
    v_cndmask_b32 v10, v10, v{G+2}, s[44:45]
    v_cndmask_b32 v10, v10, v{G+3}, s[46:47]
    v_mul_f32 v15, 0xbb000000, v{SA}
    v_mul_f32 v10, 0x3b000000, v10
    v_fma_f32 v10, -v15, v15, v10
    v_max_f32 v10, 0, v10
    v_cvt_pk_bf16_f32 v15, v15, v10
    v_and_b32 v10, 0xffff0000, v15
    v_add_f32 v10, {fbits(1e-5)}, v10
    """)
    bf16r(A, "v10", "v10")
    A("v_sqrt_f32 v10, v10")
    bf16r(A, "v10", "v10")
    A("""
    v_rcp_f32 v10, v10
    s_mov_b32 exec_lo, 0x00f0000f
    s_mov_b32 exec_hi, 0xf0000f00
    ds_write_b16 v13, v15
    ds_write_b32 v7, v10
    s_mov_b64 exec, -1
    s_waitcnt lgkmcnt(0)
    s_barrier
    """)
    ts(A, "stats")
    for op in late_pf: A(*op)
    TR, AM, BP, CM, ACC, PK = 48, 64, 72, 88, 160, 96
    for ks in range(2):
        for hf in range(2): A(f"ds_read_b128 {v(TR+ks*8+hf*4,4)}, v8 offset:{ks*128+hf*16}")
        A(f"ds_read_b128 {v(AM+ks*4,4)}, v14 offset:{ks*64}")
    for ks in range(2):
        for c in range(2):
            for jj in range(4):
                b = BC + c*16 + ks*8 + 2*jj
                A(f"v_pk_mul_f32 {v(b,2)}, {v(b,2)}, {v(TR+ks*8+2*jj,2)}")
            for jj in range(4):
                b = BC + c*16 + ks*8 + 2*jj
                A(f"v_cvt_pk_bf16_f32 v{BP+(c*2+ks)*4+jj}, v{b}, v{b+1}")
    for ks in range(2):
        for c in range(2):
            A(f"v_mfma_f32_16x16x32_bf16 {v(CM+4*c,4)}, {v(AM+ks*4,4)}, {v(BP+(c*2+ks)*4,4)}, {v(CM+4*c,4) if ks else 0}")
    for tl in range(4):
        for c in range(2):
            acc = ACC + (tl*2+c)*4
            A(f"v_mfma_f32_16x16x32_bf16 {v(acc,4)}, {v(X+(tl*2)*4,4)}, {v(BP+(c*2)*4,4)}, {v(CM+4*c,4)}")
        for c in range(2):
            acc = ACC + (tl*2+c)*4
            A(f"v_mfma_f32_16x16x32_bf16 {v(acc,4)}, {v(X+(tl*2+1)*4,4)}, {v(BP+(c*2+1)*4,4)}, {v(acc,4)}")
        if tl >= 1: k1_store(A, tl-1, ACC, PK)
    k1_store(A, 3, ACC, PK)

def k1_store(A, tl, ACC, PK):
    acc = ACC + tl*8; pk = PK + tl*4
    for r in range(4): A(f"v_cvt_pk_bf16_f32 v{pk+r}, v{acc+r}, v{acc+4+r}")
    A(f"buffer_store_dwordx4 {v(pk,4)}, v9, {srd(S_WS)}, s48 offen offset:{(tl&1)*256+(tl>>1)*64} sc1", tag="st")

def k1_mod(A):
    A(f"""
    s_and_b32 s38, s2, 7
    s_lshr_b32 s39, s2, 3
    s_mul_i32 s38, s38, 12
    s_add_u32 s36, s38, s39
    s_sub_u32 s36, s36, 16
    v_lshlrev_b32 v4, 2, v0
    {small_srd(S_C, 1024)}
    {small_srd(S_WM, 3145728)}
    {small_srd(S_X, 2097152)}
    v_lshrrev_b32 v5, 2, v1
    v_mul_u32_u24 v5, 6144, v5
    v_and_b32 v6, 3, v1
    v_lshl_add_u32 v5, v6, 4, v5
    s_mul_i32 s38, s3, {128*6144}
    s_lshl_b32 s39, s36, 6
    s_add_u32 s38, s38, s39
    s_lshl_b32 s39, s3, 13
    s_add_u32 s39, s39, {MW}
    s_waitcnt lgkmcnt(0)
    buffer_load_dword v8, v4, {srd(S_C)}, 0 offen
    """)
    if opt("touch", 11) == 3: touch(A, nonln=True)
    if opt("moddelay", 0): A("v_mov_b32 v8, v8")
    for i in range(8):
        A(f"s_add_u32 m0, s39, {i*1024}")
        if i: A(f"s_add_u32 s38, s38, {16*6144}")
        A(f"buffer_load_dwordx4 v5, {srd(S_WM)}, s38 offen {opt('mpol','nt')} lds", tag="wm")
    common_setup(A)
    A(f"""
    v_bfe_u32 v6, v1, 2, 2
    v_lshl_add_u32 v6, v3, 3, v6
    v_lshlrev_b32 v6, 6, v6
    v_and_b32 v7, 3, v1
    v_lshl_add_u32 v6, v7, 3, v6
    v_add_u32 v6, s39, v6
    v_add_u32 v4, {MSC}, v4
    s_lshl_b32 s40, s3, 8
    s_add_u32 s40, s40, {MSC}
    v_lshl_add_u32 v7, v3, 4, s40
    v_lshlrev_b32 v9, 16, v8
    v_and_b32 v10, 0xffff0000, v8
    v_mul_f32 v11, {LOG2E}, v9
    v_mul_f32 v12, {LOG2E}, v10
    v_exp_f32 v11, v11
    v_exp_f32 v12, v12
    v_add_f32 v11, 1.0, v11
    v_add_f32 v12, 1.0, v12
    v_rcp_f32 v11, v11
    v_rcp_f32 v12, v12
    v_mul_f32 v9, v9, v11
    v_mul_f32 v10, v10, v12
    v_cvt_pk_bf16_f32 v9, v9, v10
    ds_write_b32 v4, v9
    """)
    SF, WF, ACC = 16, 32, 64
    A("s_waitcnt lgkmcnt(0)")
    tsx(A, 60)
    for ks in range(4): A(f"ds_read_b128 {v(SF+4*ks,4)}, v7 offset:{ks*64}")
    A(f"""
    v_and_b32 v10, 31, v1
    s_lshr_b32 s40, s36, 4
    s_and_b32 s41, s36, 15
    s_lshl_b32 s41, s41, 5
    v_add_u32 v10, s41, v10
    v_lshrrev_b32 v15, 8, v10
    v_lshlrev_b32 v15, 8, v15
    v_bfe_u32 v72, v10, 2, 2
    v_lshl_add_u32 v15, v72, 6, v15
    v_bfe_u32 v72, v10, 4, 4
    v_lshl_add_u32 v15, v72, 2, v15
    v_and_b32 v72, 3, v10
    v_add_u32 v15, v15, v72
    v_bfe_u32 v72, v10, 3, 2
    v_lshlrev_b32 v73, 7, v72
    v_bfe_u32 v72, v10, 7, 2
    v_lshl_add_u32 v73, v72, 5, v73
    v_and_b32 v72, 7, v10
    v_lshl_add_u32 v73, v72, 2, v73
    v_bfe_u32 v72, v10, 5, 2
    v_add_u32 v73, v73, v72
    s_cmp_lt_u32 s40, 2
    s_cselect_b64 vcc, -1, 0
    v_cndmask_b32 v15, v15, v73, vcc
    s_cmp_eq_u32 s40, 5
    s_cselect_b64 vcc, -1, 0
    v_cndmask_b32 v10, v15, v10, vcc
    v_lshlrev_b32 v10, 2, v10
    s_lshl_b32 s41, s40, 11
    s_add_u32 s41, s41, {WS_MOD}
    s_cmp_eq_u32 s40, 1
    s_cselect_b32 s42, 1.0, 0
    s_cmp_eq_u32 s40, 4
    s_cselect_b32 s42, 1.0, s42
    s_lshl_b32 s43, s3, 7
    s_add_u32 s43, s43, {MRED}
    v_lshl_add_u32 v9, v2, 2, s43
    v_and_b32 v74, 31, v1
    v_lshlrev_b32 v74, 2, v74
    v_add_u32 v74, {MRED}, v74
    """)
    A.wait_tag("wm")
    tsx(A, 61)
    if opt("touch", 11) == 2: touch(A)
    if opt("touch", 11) == 4 and not opt("tafter", 0): touch(A, nonln=True)
    if opt("touch", 11) == 9: touch(A, "gu")
    if opt("touch", 11) in (10, 11): touch(A, "gu", nonln=True)
    if opt("pfA", 0) and opt("pfMpos", 0) == 1: wchunks(A, range(opt("pfA", 0)))
    for ks in range(4):
        for nt in range(2):
            b = WF + (ks*2+nt)*4
            off = ks*2048 + nt*32
            A(f"ds_read_b64_tr_b16 {v(b,2)}, v6 offset:{off}\nds_read_b64_tr_b16 {v(b+2,2)}, v6 offset:{off+256}")
    for ks in range(4):
        for nt in range(2):
            A(f"v_mfma_f32_16x16x32_bf16 {v(ACC+4*nt,4)}, {v(SF+4*ks,4)}, {v(WF+(ks*2+nt)*4,4)}, {v(ACC+4*nt,4) if ks else 0}")
    skip = A.label("modskip")
    A(f"""
    s_mov_b64 exec, 0xffff
    ds_write_b32 v9, v{ACC}
    ds_write_b32 v9, v{ACC+4} offset:64
    s_mov_b64 exec, -1
    s_waitcnt lgkmcnt(0)
    s_barrier
    s_cmp_lg_u32 s3, 0
    s_cbranch_scc1 {skip}
    ds_read_b32 v11, v74
    ds_read_b32 v12, v74 offset:128
    ds_read_b32 v13, v74 offset:256
    ds_read_b32 v14, v74 offset:384
    v_add_f32 v11, v11, v12
    v_add_f32 v13, v13, v14
    v_add_f32 v11, v11, v13
    """)
    bf16r(A, "v11", "v11")
    A("v_add_f32 v11, s42, v11")
    bf16r(A, "v11", "v11")
    A(f"""
    s_mov_b32 exec_hi, 0
    buffer_store_dword v11, v10, {srd(S_WS)}, s41 offen sc1
    s_mov_b64 exec, -1
    {skip}:
    """)

K2 = dict(BS=16, CC=24, CS=26, TW=28, BH=44, U=64, XR=128, CA=136, GA=168, CB=176, SB=184, Z=192, XF=224)
def k2_pre(A, hook=None):
    r = K2
    if opt("T", 4) == 2: A("s_and_b32 s36, s2, 7\ns_lshl_b32 s36, s36, 2\ns_bfe_u32 s37, s2, 0x20003")
    else: A("s_and_b32 s36, s2, 7\ns_bfe_u32 s37, s2, 0x20003\ns_lshl_b32 s37, s37, 3")
    A("""
    s_add_u32 s36, s36, s37
    s_lshr_b32 s37, s2, 5
    s_sub_u32 s39, 64, s36
    s_cmp_eq_u32 s36, 0
    s_cselect_b32 s39, 32, s39
    s_cselect_b64 s[40:41], -1, 0
    s_lshl_b32 s42, s37, 2
    s_add_u32 s43, s42, s3
    s_lshl_b32 s43, s43, 6
    s_add_u32 s44, s43, s36
    s_add_u32 s45, s43, s39
    s_lshl_b32 s44, s44, 10
    s_lshl_b32 s45, s45, 10
    v_lshlrev_b32 v4, 5, v2
    v_lshl_add_u32 v4, v3, 3, v4
    """)
    for uu in range(2):
        for nt in range(2):
            A(f"buffer_load_dwordx2 {v(r['XR']+(uu*2+nt)*2,2)}, v4, {srd(S_X)}, s{44+uu} offen offset:{nt*512}")
    if hook: hook()
    A("""
    v_lshrrev_b32 v5, 2, v2
    v_add_u32 v5, s42, v5
    v_lshlrev_b32 v5, 6, v5
    v_and_b32 v6, 2, v2
    v_cmp_ne_u32 vcc, 0, v6
    v_mov_b32 v7, s36
    v_mov_b32 v8, s39
    v_cndmask_b32 v7, v7, v8, vcc
    v_add_u32 v5, v5, v7
    v_cvt_f32_u32 v5, v5
    v_mul_f32 v5, 0x3a000000, v5
    v_and_b32 v6, 1, v2
    v_cvt_f32_u32 v6, v6
    v_mul_f32 v6, 0x3e800000, v6
    v_mov_b32 v7, 0xbe800000
    v_mov_b32 v8, 0x3e800000
    v_cndmask_b32 v7, v7, v8, vcc
    v_cndmask_b32 v7, v7, 0, s[40:41]
    v_add_f32 v7, v7, v6
    v_cndmask_b32 v8, 1.0, 0, vcc
    v_cndmask_b32 v9, 0, 1.0, vcc
    v_cndmask_b32 v8, 1.0, v8, s[40:41]
    v_cndmask_b32 v9, 1.0, v9, s[40:41]
    v_lshlrev_b32 v10, 2, v3
    v_cvt_f32_u32 v10, v10
    """)
    T = 64
    NQ = 72
    for ks in range(2):
        for i in range(4): A(f"v_add_f32 v{NQ+ks*4+i}, {fbits(16*ks+i)}, v10")
    for ks in range(2):
        for i in range(4):
            A(f"v_fma_f32 v{T+2*i}, v{NQ+ks*4+i}, v5, v6\nv_fma_f32 v{T+2*i+1}, v{NQ+ks*4+i}, v5, v7")
        for i in range(8): A(f"v_cos_f32 v{T+i}, v{T+i}")
        for i in range(4):
            A(f"v_pk_mul_f32 {v(T+2*i,2)}, {v(T+2*i,2)}, v[8:9]")
            A(f"v_cvt_pk_bf16_f32 v{r['BS']+ks*4+i}, v{T+2*i}, v{T+2*i+1}")
    A("v_cvt_f32_u32 v12, v2\nv_mul_f32 v13, 0x3d800000, v12")
    for j in range(4): A(f"v_mul_f32 v{T+j}, v{NQ+j}, v13")
    for j in range(4): A(f"v_sin_f32 v{T+4+j}, v{T+j}")
    for j in range(4): A(f"v_cos_f32 v{T+j}, v{T+j}")
    for jj in range(2):
        A(f"v_cvt_pk_bf16_f32 v{r['CC']+jj}, v{T+2*jj}, v{T+2*jj+1}\nv_cvt_pk_bf16_f32 v{r['CS']+jj}, v{T+4+2*jj}, v{T+5+2*jj}")
    A("v_mul_f32 v13, 0x3b000000, v12\ns_lshl_b32 s46, s3, 3\nv_cvt_f32_u32 v14, s46")
    for t in range(8):
        A(f"v_add_f32 v11, {fbits(t)}, v14\nv_mul_f32 v{T+t}, v11, v13")
    for t in range(8):
        A(f"v_cos_f32 v{r['TW']+2*t}, v{T+t}\nv_sin_f32 v{r['TW']+2*t+1}, v{T+t}")
    for nt in range(2):
        A(f"v_add_f32 v13, {fbits(16*nt)}, v12\nv_mul_f32 v13, 0x3d000000, v13")
        for ks in range(2):
            for i in range(4): A(f"v_mul_f32 v{T+i}, v{NQ+ks*4+i}, v13")
            for i in range(4): A(f"v_sin_f32 v{T+4+i}, v{T+i}")
            for i in range(4): A(f"v_cos_f32 v{T+i}, v{T+i}")
            for i in range(4): A(f"v_cvt_pk_bf16_f32 v{r['BH']+(nt*2+ks)*4+i}, v{T+i}, v{T+4+i}")
    A(f"""
    v_mul_u32_u24 v5, {4*UN2()}, v3
    v_lshl_add_u32 v5, v2, 4, v5
    s_mul_i32 s46, s36, {USLOT()}
    s_mul_i32 s47, s3, {UOCT()}
    s_add_u32 s46, s46, s47
    s_add_u32 s46, s46, {WS_U}
    s_add_u32 s47, s46, {2*UN2()}
    s_add_u32 s48, s46, {16*UN2()}
    s_add_u32 s49, s46, {18*UN2()}
    s_add_u32 s76, s46, {UN2()}
    s_add_u32 s77, s47, {UN2()}
    s_add_u32 s78, s48, {UN2()}
    s_add_u32 s79, s49, {UN2()}
    v_lshlrev_b32 v6, 7, v3
    s_lshl_b32 s50, s3, 9
    s_add_u32 s50, s50, {WS_MOD}
    s_cmp_eq_u32 s2, 0
    s_cselect_b32 s59, s50, {WS_SIZE}
    v_lshlrev_b32 v7, 4, v1
    v_lshl_add_u32 v8, v3, 5, v2
    v_mul_u32_u24 v8, 144, v8
    s_lshl_b32 s51, s3, 5
    s_add_u32 s51, s51, {K2EX}
    v_add_u32 v8, s51, v8
    v_mul_u32_u24 v9, 144, v2
    v_lshl_add_u32 v9, v3, 4, v9
    s_mul_i32 s51, s3, {32*144}
    s_add_u32 s51, s51, {K2EX}
    v_add_u32 v9, s51, v9
    s_mul_i32 s51, s3, 2080
    s_add_u32 s51, s51, {K2HB}
    v_add_u32 v10, s51, v4
    v_and_b32 v11, 7, v0
    v_lshrrev_b32 v12, 3, v0
    v_mul_u32_u24 v13, 1040, v11
    v_lshl_add_u32 v13, v12, 4, v13
    v_add_u32 v13, {K2HB}, v13
    v_lshlrev_b32 v11, 4, v11
    v_lshl_add_u32 v11, v12, 9, v11
    s_lshl_b32 s51, s36, 3
    s_add_u32 s51, s51, s37
    s_lshl_b32 s52, s51, 13
    s_lshl_b32 s53, s3, 11
    s_add_u32 s52, s52, s53
    s_add_u32 s52, s52, {WS_X1}
    s_add_u32 s53, s52, 1024
    s_lshr_b32 s54, s51, 2
    s_lshl_b32 s54, s54, 15
    s_and_b32 s55, s51, 3
    s_lshl_b32 s55, s55, 7
    s_add_u32 s54, s54, s55
    s_add_u32 s54, s54, {WS_H2}
    s_add_u32 s55, s54, 16384
    s_mov_b32 s56, {WS_MOD+2*2048}
    s_mov_b32 s57, {WS_MOD+3*2048}
    s_mov_b32 s58, {WS_MOD+4*2048}
    s_lshl_b32 s62, s51, 7
    s_add_u32 s62, s62, {WS_F2}
    v_lshlrev_b32 v250, 6, v1
    """)

def k2_main(A):
    r = K2
    U, Z = r['U'], r['Z']
    sk0 = A.label("k2sl")
    A(f"s_cmp_lg_u32 s2, 0\ns_cbranch_scc1 {sk0}")
    for t in range(0 if opt("sepmod", 1) else 8):
        A(f"buffer_load_dwordx4 {a(4*t,4)}, v6, {srd(S_WS)}, s50 offen offset:{t*16} sc1")
    A(f"{sk0}:")
    sep = opt("sepmod", 1)
    if sep:
        m0 = A.label("k2m0")
        A(f"s_cmp_lg_u32 s3, 0\ns_cbranch_scc1 {m0}")
        A(f"buffer_load_dword v254, v250, {srd(S_WS)}, s73 offen sc1\nbuffer_load_dword v255, v250, {srd(S_WS)}, s74 offen sc1\n{m0}:", tag="spin")
    for hh in range(2):
        for ks in range(2):
            for i in range(4):
                A(f"buffer_load_dwordx4 {v(U+((ks*2+hh)*4+i)*4,4)}, v5, {srd(S_WS)}, s{(46, 76)[i&1]+ks*2+(i>>1)} offen offset:{hh*256} sc1")
    if sep:
        m1, lp1 = A.label("k2m1"), A.label("k2ml")
        A(f"""
        s_cmp_lg_u32 s3, 0
        s_cbranch_scc1 {m1}
        s_mov_b32 s{S_CNT}, 0
        s_waitcnt vmcnt(16)
        {lp1}:
        v_xor_b32 v254, s{S_TOK}, v254
        v_xor_b32 v255, s{S_TOK}, v255
        v_or_b32 v254, v254, v255
        v_cmp_ne_u32 vcc, 0, v254
        s_add_u32 s{S_CNT}, s{S_CNT}, 1
        s_cmp_ge_u32 s{S_CNT}, {MAXPOLL}
        s_cbranch_scc1 {m1}
        s_cbranch_vccz {m1}
        buffer_load_dword v254, v250, {srd(S_WS)}, s73 offen sc1
        buffer_load_dword v255, v250, {srd(S_WS)}, s74 offen sc1
        s_waitcnt vmcnt(0)
        s_branch {lp1}
        {m1}:
        s_barrier
        """, tag="spin")
        sk1 = A.label("k2s1")
        A(f"s_cmp_lg_u32 s2, 0\ns_cbranch_scc1 {sk1}")
        for t in range(8):
            A(f"buffer_load_dwordx4 {a(4*t,4)}, v6, {srd(S_WS)}, s50 offen offset:{t*16} sc1", tag="spin")
        A(f"{sk1}:", tag="spin")
    for t in range(8):
        A(f"buffer_load_dwordx4 {v(r['CA']+4*t,4)}, v6, {srd(S_WS)}, s50 offen offset:{2048+t*16} sc1")
    for nm, sr in (("GA", 56), ("CB", 58), ("SB", 57)):
        for nt in range(2):
            A(f"buffer_load_dwordx4 {v(r[nm]+nt*4,4)}, v7, {srd(S_WS)}, s{sr} offen offset:{nt*1024} sc1")
    A.touch_regs([("v", U)])
    for uu in range(2):
        for nt in range(2):
            xr = r['XR'] + (uu*2+nt)*2; xf = r['XF'] + (uu*2+nt)*4
            A(f"v_lshlrev_b32 v{xf}, 16, v{xr}\nv_and_b32 v{xf+1}, 0xffff0000, v{xr}\nv_lshlrev_b32 v{xf+2}, 16, v{xr+1}\nv_and_b32 v{xf+3}, 0xffff0000, v{xr+1}")
    pfl = [op for ch in range(opt("pfA", 0) + opt("pf1", 3), opt("pfB", 4)) for op in wchunk_ops(ch, ch, f"w{ch}")]
    if opt("pfBpos", 1) == 0:
        for op in pfl: A(*op)
    if opt("pfBpos", 1) in (0, 3): pfl = []
    if opt("touch", 11) == 7 and opt("tlate", 0) == 1: touch_late(A)
    if opt("touch", 11) == 8: touch(A)
    if opt("touch", 11) == 9: touch(A, "d")
    if TS and opt("tsu", 1): A(f"v_mov_b32 v{U+60}, v{U+60}"); ts(A, "uarr")
    for hh in range(2):
        for ks in range(2):
            b = U + (ks*2+hh)*16
            for i in range(4):
                for t in range(i+1, 4): A(f"v_swap_b32 v{b+4*i+t}, v{b+4*t+i}")
        for t in range(4):
            for ks in range(2):
                z = Z + (hh*4+t)*4
                A(f"v_mfma_f32_16x16x32_bf16 {v(z,4)}, {v(U+(ks*2+hh)*16+4*t,4)}, {v(r['BS']+ks*4,4)}, {v(z,4) if ks else 0}")
                if pfl and opt("pfBpos", 1) != 4 and (hh == 1 or opt("pfBpos", 1) == 2): A(*pfl.pop(0))
    if opt("pfBpos", 1) != 4:
        for op in pfl: A(*op)
        pfl = []
    ZP, P, Q = 64, 80, 112
    for t in range(8):
        for h in range(2): A(f"v_pk_mul_f32 {v(Z+4*t+2*h,2)}, {v(Z+4*t+2*h,2)}, {v(r['CA']+4*t+2*h,2)}")
    sk = A.label("k2sa")
    A(f"s_cmp_lg_u32 s2, 0\ns_cbranch_scc1 {sk}")
    A("s_mov_b32 s59, 0x45000000\ns_mov_b32 exec_lo, 0x00010001\ns_mov_b32 exec_hi, 0x00010001")
    for i in range(32):
        A(f"v_accvgpr_read_b32 v{P}, a{i}\nv_fma_f32 v{Z+i}, v{P}, s59, v{Z+i}")
    A(f"s_mov_b64 exec, -1\n{sk}:")
    for t in range(8):
        A(f"v_cvt_pk_bf16_f32 v{ZP+2*t}, v{Z+4*t}, v{Z+4*t+1}\nv_cvt_pk_bf16_f32 v{ZP+2*t+1}, v{Z+4*t+2}, v{Z+4*t+3}")
        if t >= 1:
            A(f"v_mfma_f32_16x16x16_bf16 {v(P+4*(t-1),4)}, {v(ZP+2*(t-1),2)}, {v(r['CC'],2)}, 0")
            A(f"v_mfma_f32_16x16x16_bf16 {v(Z+4*(t-1),4)}, {v(ZP+2*(t-1),2)}, {v(r['CS'],2)}, 0")
    A(f"v_mfma_f32_16x16x16_bf16 {v(P+28,4)}, {v(ZP+14,2)}, {v(r['CC'],2)}, 0")
    A(f"v_mfma_f32_16x16x16_bf16 {v(Z+28,4)}, {v(ZP+14,2)}, {v(r['CS'],2)}, 0")
    Q = Z; W = 112
    for hh in range(2):
        for uu in range(2):
            idx = [(P+4*(hh*4+t4)+2*uu, Q+4*(hh*4+t4)+2*uu, r['TW']+2*(hh*4+t4), W+uu*8+hh*4+t4) for t4 in range(4)]
            for p, q, tw, w in idx: A(f"v_pk_add_f32 {v(p,2)}, {v(p,2)}, {v(q,2)} op_sel:[0,1] op_sel_hi:[1,0] neg_hi:[0,1]")
            for p, q, tw, w in idx: A(f"v_pk_mul_f32 {v(q,2)}, {v(p,2)}, {v(tw,2)} op_sel:[0,0] op_sel_hi:[1,0]")
            for p, q, tw, w in idx: A(f"v_pk_fma_f32 {v(q,2)}, {v(p,2)}, {v(tw,2)}, {v(q,2)} op_sel:[1,1,0] op_sel_hi:[0,1,1] neg_hi:[1,0,0]")
            for p, q, tw, w in idx: A(f"v_cvt_pk_bf16_f32 v{w}, v{q}, v{q+1}")
            A(f"ds_write_b128 v8, {v(W+uu*8+hh*4,4)} offset:{uu*16*144+hh*16}")
    A("s_waitcnt lgkmcnt(0)\ns_barrier")
    ts(A, "h1")
    AF, Y = 80, 96
    for uu in range(2):
        for ks in range(2):
            A(f"ds_read_b128 {v(AF+(uu*2+ks)*4,4)}, v9 offset:{uu*16*144+ks*64}")
    for op in pfl[:4]: A(*op)
    pfl = pfl[4:]
    for uu in range(2):
        for ks in range(2):
            for nt in range(2):
                y = Y + (uu*2+nt)*4
                A(f"v_mfma_f32_16x16x32_bf16 {v(y,4)}, {v(AF+(uu*2+ks)*4,4)}, {v(r['BH']+(nt*2+ks)*4,4)}, {v(y,4) if ks else 0}")
                if pfl: A(*pfl.pop(0))
    for op in pfl: A(*op)
    XP = 168 if opt("latex1", 2) == 2 else 112
    for uu in range(2):
        for nt in range(2):
            y = Y + (uu*2+nt)*4; xf = r['XF'] + (uu*2+nt)*4; g = r['GA'] + nt*4
            for h in range(2):
                A(f"v_pk_fma_f32 {v(y+2*h,2)}, {v(y+2*h,2)}, {v(g+2*h,2)}, {v(xf+2*h,2)}")
        y = Y + uu*8; t = 64 + 4*uu
        A(f"v_pk_add_f32 {v(t,2)}, {v(y,2)}, {v(y+2,2)}\nv_pk_mul_f32 {v(t+2,2)}, {v(y,2)}, {v(y,2)}")
        A(f"v_pk_add_f32 {v(t,2)}, {v(t,2)}, {v(y+4,2)}\nv_pk_fma_f32 {v(t+2,2)}, {v(y+2,2)}, {v(y+2,2)}, {v(t+2,2)}")
        A(f"v_pk_add_f32 {v(t,2)}, {v(t,2)}, {v(y+6,2)}\nv_pk_fma_f32 {v(t+2,2)}, {v(y+4,2)}, {v(y+4,2)}, {v(t+2,2)}")
        A(f"v_add_f32 v{72+2*uu}, v{t}, v{t+1}\nv_pk_fma_f32 {v(t+2,2)}, {v(y+6,2)}, {v(y+6,2)}, {v(t+2,2)}")
        A(f"v_add_f32 v{73+2*uu}, v{t+2}, v{t+3}")
    def x1_store(uu, nt):
        y = Y + (uu*2+nt)*4; xp = XP + (uu*2+nt)*2
        A(f"v_cvt_pk_bf16_f32 v{xp}, v{y}, v{y+1}\nv_cvt_pk_bf16_f32 v{xp+1}, v{y+2}, v{y+3}")
        A(f"buffer_store_dwordx2 {v(xp,2)}, v4, {srd(S_WS)}, s{52+uu} offen offset:{nt*512} sc1", tag="st")
    late_x1 = opt("latex1", 2)
    def x1_cvt(uu, nt):
        y = Y + (uu*2+nt)*4; xp = XP + (uu*2+nt)*2
        A(f"v_cvt_pk_bf16_f32 v{xp}, v{y}, v{y+1}\nv_cvt_pk_bf16_f32 v{xp+1}, v{y+2}, v{y+3}")
    def x1_st(uu, nt):
        A(f"buffer_store_dwordx2 {v(XP+(uu*2+nt)*2,2)}, v4, {srd(S_WS)}, s{52+uu} offen offset:{nt*512} sc1", tag="x1")
    if late_x1: x1_store = x1_cvt
    A("v_permlane16_swap_b32 v72, v73\nv_permlane16_swap_b32 v74, v75\nv_add_f32 v72, v72, v73\nv_add_f32 v74, v74, v75")
    x1_store(0, 0)
    A("v_permlane32_swap_b32 v72, v74\nv_add_f32 v72, v72, v74")
    x1_store(0, 1)
    A("v_add_f32 v72, v72, v72 row_ror:8")
    A(f"v_mov_b32 v76, 0x3b000000\nv_mov_b32 v77, {fbits(1e-5)}")
    A("v_add_f32 v72, v72, v72 row_ror:4")
    x1_store(1, 0)
    A("v_add_f32 v72, v72, v72 row_ror:2")
    x1_store(1, 1)
    A("""
    v_add_f32 v72, v72, v72 row_ror:1
    v_mul_f32 v72, v72, v76
    v_readlane_b32 s40, v72, 0
    v_readlane_b32 s41, v72, 16
    v_readlane_b32 s42, v72, 32
    v_readlane_b32 s43, v72, 48
    v_mov_b32 v64, s40
    v_mov_b32 v66, s42
    v_fma_f32 v65, -v64, v64, s41
    v_fma_f32 v67, -v66, v66, s43
    v_max_f32 v65, 0, v65
    v_max_f32 v67, 0, v67
    v_add_f32 v65, v65, v77
    v_add_f32 v67, v67, v77
    v_rsq_f32 v65, v65
    v_rsq_f32 v67, v67
    v_mul_f32 v64, -v64, v65
    v_mul_f32 v66, -v66, v67
    """)
    HP = 120
    for uu in range(2):
        for nt in range(2):
            y = Y + (uu*2+nt)*4
            for h in range(2):
                A(f"v_pk_fma_f32 {v(y+2*h,2)}, {v(y+2*h,2)}, {v(64+2*uu,2)}, {v(64+2*uu,2)} op_sel:[0,1,0] op_sel_hi:[1,1,0]")
            for h in range(2):
                A(f"v_pk_fma_f32 {v(y+2*h,2)}, {v(y+2*h,2)}, {v(r['CB']+nt*4+2*h,2)}, {v(r['SB']+nt*4+2*h,2)}")
            hp = HP + (uu*2+nt)*2
            A(f"v_cvt_pk_bf16_f32 v{hp}, v{y}, v{y+1}\nv_cvt_pk_bf16_f32 v{hp+1}, v{y+2}, v{y+3}")
            A(f"ds_write_b64 v10, {v(hp,2)} offset:{uu*1040+nt*512}")
    A("s_waitcnt lgkmcnt(0)\ns_barrier")
    A("ds_read_b128 v[64:67], v13\nds_read_b128 v[68:71], v13 offset:512")
    A(f"buffer_store_dwordx4 v[64:67], v11, {srd(S_WS)}, s54 offen {LOC('h')}", tag="st")
    A(f"buffer_store_dwordx4 v[68:71], v11, {srd(S_WS)}, s55 offen {LOC('h')}", tag="st")
    if late_x1 == 1:
        for uu in range(2):
            for nt in range(2): x1_st(uu, nt)
    if late_x1 == 2:
        A("v_mov_b32 v176, v4\ns_mov_b32 s80, s52\ns_mov_b32 s81, s53")

WD_ORDER = [37, 38, 39] + list(range(13, 37)) + list(range(0, 13)) + [37, 38, 39]
def k4_ids(A):
    if opt("R", 4) == 4:
        A("s_and_b32 s36, s2, 7\ns_lshl_b32 s36, s36, 2\ns_bfe_u32 s38, s2, 0x20003\ns_add_u32 s36, s36, s38\ns_lshr_b32 s37, s2, 5")
    else:
        A("s_bfe_u32 s36, s2, 0x20001\ns_lshl_b32 s36, s36, 3\ns_bfe_u32 s38, s2, 0x30003\ns_add_u32 s36, s36, s38\ns_and_b32 s37, s2, 1\ns_lshl_b32 s37, s37, 2\ns_lshr_b32 s38, s2, 6\ns_add_u32 s37, s37, s38")
    A("s_lshr_b32 s38, s3, 1\ns_and_b32 s39, s3, 1")
def wd_setup(A):
    k4_ids(A)
    A(f"""
    v_lshrrev_b32 v244, 3, v1
    v_lshlrev_b32 v{V_D}, 10, v244
    v_and_b32 v245, 7, v1
    v_lshlrev_b32 v244, 1, v244
    v_and_b32 v244, 4, v244
    v_xor_b32 v245, v245, v244
    v_lshl_add_u32 v{V_D}, v245, 4, v{V_D}
    s_mul_i32 s{S_DG}, s38, {688*1024}
    s_lshl_b32 s41, s37, 7
    s_add_u32 s{S_DG}, s{S_DG}, s41
    s_lshl_b32 s41, s39, 13
    s_add_u32 s{S_DG}, s{S_DG}, s41
    s_lshl_b32 s{S_DL}, s3, 10
    s_mul_i32 s41, s37, 10
    s_lshr_b32 s41, s41, 3
    s_lshl_b32 s41, s41, 16
    s_add_u32 s{S_DR}, s{S_DG}, s41
    s_add_u32 s{S_DE}, s{S_DG}, {40*16384}
    """)
S_DR, S_DE, S_AB, S_AE = 82, 83, 97, 100
def wd_op(step, tag):
    t = f"s_add_u32 m0, s{S_DL}, {WD_ORDER[step]*4096}\n"
    if not opt("rot", 0) or step >= 40:
        t += f"s_add_u32 s{S_T}, s{S_DG}, {step*16384}\n"
    else:
        if step and step % 4 == 0:
            t += f"s_add_u32 s{S_DR}, s{S_DR}, 65536\ns_cmp_eq_u32 s{S_DR}, s{S_DE}\ns_cselect_b32 s{S_DR}, s{S_DG}, s{S_DR}\n"
        t += f"s_add_u32 s{S_T}, s{S_DR}, {(step % 4)*16384}\n"
    t += f"buffer_load_dwordx4 v{V_D}, {srd(S_WD)}, s{S_T} offen {opt('dpol','')} lds"
    return (t, tag)

def k3_ids(A):
    A(sl_expr() + "\ns_mov_b32 s37, s38\n" + rb_expr())
def k3_pre(A):
    wd_setup(A)
    k3_ids(A)
    A(f"""
    s_lshl_b32 s45, s36, 2
    s_add_u32 s45, s45, s3
    s_lshl_b32 s46, s45, 15
    s_add_u32 s46, s46, {WS_H2}
    v_lshlrev_b32 v4, 4, v1
    v_bfe_u32 v5, v1, 1, 1
    v_mul_u32_u24 v5, {UOFF}, v5
    v_bfe_u32 v6, v1, 2, 2
    v_bfe_u32 v7, v1, 5, 1
    v_lshl_add_u32 v6, v7, 3, v6
    v_mul_u32_u24 v6, 192, v6
    v_add_u32 v5, v5, v6
    v_bfe_u32 v6, v1, 4, 1
    v_lshl_add_u32 v5, v6, 4, v5
    v_and_b32 v6, 1, v1
    v_lshl_add_u32 v5, v6, 3, v5
    v_add_u32 v6, {2*SLOT}, v5
    v_add_u32 v7, {4*SLOT}, v5
    s_mul_i32 s47, s45, {86*1024}
    s_mul_i32 s48, s37, {6*1024}
    s_add_u32 s47, s47, s48
    s_add_u32 s47, s47, {WS_ACT}
    s_add_u32 s48, s47, 2048
    s_add_u32 s51, s47, 4096
    s_cmp_eq_u32 s37, 14
    s_cselect_b32 s48, {WS_SIZE}, s48
    s_cselect_b32 s51, {WS_SIZE}, s51
    s_lshl_b32 s49, s2, 2
    s_add_u32 s49, s49, s3
    s_mul_i32 s49, s49, 11
    v_min_u32 v246, 10, v1
    v_add_u32 v246, s49, v246
    v_lshlrev_b32 v246, 7, v246
    v_mov_b32 v14, {LOG2E}
    v_mov_b32 v15, {LOG2E}
    s_lshl_b32 s61, s36, 4
    s_add_u32 s61, s61, s37
    s_lshl_b32 s61, s61, 7
    s_add_u32 s61, s61, {WS_F3}
    s_lshl_b32 s62, s36, 11
    s_add_u32 s62, s62, {WS_F2}
    """)

def x1_ops():
    return [(f"buffer_store_dwordx2 {v(168+(uu*2+nt)*2,2)}, v176, {srd(S_WS)}, s{80+uu} offen offset:{nt*512} {LOC('x')}", "x1") for uu in range(2) for nt in range(2)]
def k3_main(A, idle):
    done = A.label("k3done")
    if opt("short14", 1):
        short = A.label("k3short")
        A(f"s_cmp_eq_u32 s37, 14\ns_cbranch_scc1 {short}")
        k3_body(A, 6)
        A(f"s_branch {done}\n{short}:")
        A.reset()
        k3_body(A, 2)
    else:
        k3_body(A, 6)
    k3_tail(A, idle, done)

def k3_body(A, NT):
    ACC, AF, NAF = 16, 112, 8
    T, PK = 144, 160
    full = NT == 6
    def h2_op(k):
        t = "s_add_u32 s46, s46, 4096\n" if (k and k % 4 == 0) else ""
        return (t + f"buffer_load_dwordx4 {a(4*k,4)}, v4, {srd(S_WS)}, s46 offen offset:{(k%4)*1024} {LDP('h')}", None)
    H0 = opt("h0", 12)
    for k in range(H0): A(h2_op(k)[0])
    order = [(k, j) for k in range(32) for j in range(NT)]
    N = len(order)
    def slot_of(k):
        ch = k // 4
        return ch if ch < 6 else ch - 6
    def frag_read(n):
        k, j = order[n]
        sl = slot_of(k)
        base = ("v5", "v6", "v7")[sl // 2]
        off = (sl % 2)*SLOT + (k % 4)*16*192 + j*32
        b = AF + (n % NAF)*4
        return f"ds_read_b64_tr_b16 {v(b,2)}, {base} offset:{off}\nds_read_b64_tr_b16 {v(b+2,2)}, {base} offset:{off+4*192}"
    PF = NAF - 2
    CH = 4*NT
    b01, b23, b6, b7 = 2*CH - 1, 4*CH - 1, 6*CH - PF - 1, 7*CH - PF - 1
    assert b6 >= 5*CH - 1 and b7 >= 6*CH - 1
    bars = {b01: [], b23: [], b6: ["w6"], b7: ["w7"]}
    pfB = opt("pfB", 4) + opt("pf3", 2)
    for ch in range(pfB, 6):
        nb = ch*CH - PF - 1
        if ch == 5 and b23 <= nb: bars[b23].append("w5")
        else: bars.setdefault(nb, []).append(f"w{ch}")
    sc = lambda x: x*NT // 6
    side = []
    n0 = 0
    def add(op, step):
        nonlocal n0
        side.append((sc(n0), *op)); n0 += step
    for k in range(H0, 32): add(h2_op(k), 2)
    for ch in range(pfB, 6):
        for op in wchunk_ops(ch, ch, f"w{ch}"): add(op, 2)
    for op in x1_ops(): add(op, 2)
    def at_least(n):
        nonlocal n0
        while sc(n0) <= n: n0 += 1
    at_least(b01)
    for ch in (6, 7):
        for op in wchunk_ops(ch, ch-6, f"w{ch}"): add(op, 2)
    for st_ in range(0, 3): add(wd_op(st_, "wd"), 3)
    if opt("cpf", 0) & 4 and full: side.append((max(n0, opt("cpn", 90)), code_pf_text(".Lk3epi", 249, 60), None))
    at_least(b23)
    for st_ in range(3, 14): add(wd_op(st_, "wd"), 3)
    at_least(b6)
    for st_ in range(14, 20): add(wd_op(st_, "wd"), 3)
    at_least(b7)
    for st_ in range(20, 27): add(wd_op(st_, "wd"), 3)
    A("v_accvgpr_read_b32 v13, a0\ns_barrier")
    if full: ts(A, "issued")
    for n in range(PF): A(frag_read(n))
    if full: tc(A, "first")
    for n, (k, j) in enumerate(order):
        acc = ACC + 16*j
        if n % 2 == 0: A.touch_regs([("v", AF+((n+1)%NAF)*4+3)])
        A(f"v_mfma_f32_32x32x16_bf16 {v(acc,16)}, {v(AF+(n%NAF)*4,4)}, {a(4*k,4)}, {v(acc,16) if k else 0}")
        if n == 0 and full: ts(A, "first")
        while side and side[0][0] <= n:
            _, t, tag = side.pop(0); A(t, tag=tag)
            if full: break
        if n in bars:
            for tg in bars[n]: A.wait_tag(tg)
            A("s_barrier")
            if full: ts(A, f"n{n}")
        if n + PF < N: A(frag_read(n+PF))
    for _, t, tag in side: A(t, tag=tag)
    if full:
        A(".Lk3epi:")
        ts(A, "mfma")
        tc(A, "mfma")
    def epi(j):
        acc = ACC + 16*j; pk = PK + 4*(j & 1); t0 = T + 8*(j & 1)
        for hf in range(2):
            g = acc + 8*hf; t = t0 + 4*hf
            for h in range(2): A(f"v_pk_mul_f32 {v(t+2*h,2)}, {v(g+2*h,2)}, v[14:15]")
        for i in range(8): A(f"v_exp_f32 v{t0+i}, v{t0+i}")
        for hf in range(2):
            g, u = acc + 8*hf, acc + 8*hf + 4
            for h in range(2): A(f"v_pk_mul_f32 {v(g+2*h,2)}, {v(g+2*h,2)}, {v(u+2*h,2)}")
        for h in range(4): A(f"v_pk_add_f32 {v(t0+2*h,2)}, {v(t0+2*h,2)}, 1.0 op_sel_hi:[1,0]")
        for i in range(8): A(f"v_rcp_f32 v{t0+i}, v{t0+i}")
        for hf in range(2):
            g = acc + 8*hf; t = t0 + 4*hf
            for h in range(2): A(f"v_pk_mul_f32 {v(g+2*h,2)}, {v(g+2*h,2)}, {v(t+2*h,2)}")
        for hf in range(2):
            g = acc + 8*hf
            A(f"v_cvt_pk_bf16_f32 v{pk+2*hf}, v{g}, v{g+1}\nv_cvt_pk_bf16_f32 v{pk+2*hf+1}, v{g+2}, v{g+3}")
        A(f"buffer_store_dwordx4 {v(pk,4)}, v4, {srd(S_WS)}, s{(47,48,51)[j//2]} offen offset:{(j%2)*1024} {LOC('a')}", tag="st")
    for j in range(NT): epi(j)
    if full: ts(A, "stiss3")

def k3_tail(A, idle, done):
    A(f"s_branch {done}\n{idle}:")
    A.reset()
    A("s_waitcnt vmcnt(0)\ns_barrier")
    if opt("touch", 11) == 11:
        A(f"""
        s_lshl_b32 s49, s36, 2
        s_add_u32 s49, s49, s3
        s_mul_i32 s49, s49, {172*128}
        v_lshlrev_b32 v246, 7, v1
        buffer_load_dword v236, v246, {srd(S_WD)}, s49 offen
        s_add_u32 s50, s49, 8192
        buffer_load_dword v237, v246, {srd(S_WD)}, s50 offen
        s_add_u32 s50, s49, {108*128}
        buffer_load_dword v238, v246, {srd(S_WD)}, s50 offen
        """)
    if opt("latex1", 2) == 2:
        for op in x1_ops(): A(*op)
    for st_ in range(27): A(*wd_op(st_, "wd"))
    A(f"{done}:")
    A.reset()

def k4_pre(A):
    k4_ids(A)
    A(f"""
    s_lshl_b32 s44, s36, 1
    s_add_u32 s44, s44, s39
    s_mul_i32 s44, s44, {86*1024}
    s_mul_i32 s45, s38, {43*1024}
    s_add_u32 s44, s44, s45
    s_add_u32 s44, s44, {WS_ACT}
    s_mov_b32 s{S_AB}, s44
    s_add_u32 s{S_AE}, s44, 40960
    s_mul_i32 s45, s37, {10 if opt("rot", 0) else 0}
    s_lshr_b32 s45, s45, 3
    s_lshl_b32 s45, s45, 12
    s_add_u32 s44, s44, s45
    v_lshlrev_b32 v4, 4, v1
    v_lshrrev_b32 v8, 3, v0
    v_and_b32 v9, 7, v0
    s_lshl_b32 s46, s36, 16
    s_lshl_b32 s47, s37, 7
    s_add_u32 s46, s46, s47
    s_add_u32 s46, s46, {WS_X1}
    s_add_u32 s48, s46, 32768
    v_lshlrev_b32 v10, 10, v8
    v_lshl_add_u32 v10, v9, 4, v10
    v_lshlrev_b32 v11, 5, v9
    s_lshl_b32 s47, s37, 8
    s_add_u32 s47, s47, {WS_MOD+5*2048}
    s_sub_u32 s49, 64, s36
    s_cmp_eq_u32 s36, 0
    s_cselect_b32 s49, 32, s49
    v_and_b32 v12, 1, v8
    v_cmp_ne_u32 vcc, 0, v12
    v_mov_b32 v12, s36
    v_mov_b32 v13, s49
    v_cndmask_b32 v12, v12, v13, vcc
    v_lshrrev_b32 v13, 1, v8
    v_lshl_add_u32 v12, v13, 6, v12
    v_lshlrev_b32 v12, 10, v12
    v_lshl_add_u32 v12, v9, 4, v12
    s_lshl_b32 s49, s37, 7
    s_add_u32 s50, s49, 0x100000
    v_bfe_u32 v6, v1, 2, 2
    v_bfe_u32 v7, v1, 5, 1
    v_lshl_add_u32 v7, v7, 2, v6
    v_lshlrev_b32 v7, 7, v7
    v_bfe_u32 v13, v1, 4, 1
    v_lshl_add_u32 v7, v13, 5, v7
    v_and_b32 v13, 3, v1
    v_lshl_add_u32 v7, v13, 3, v7
    s_lshl_b32 s41, s38, 11
    v_add_u32 v7, s41, v7
    v_bfe_u32 v13, v1, 3, 1
    v_lshlrev_b32 v13, 6, v13
    v_xor_b32 v6, v7, v13
    v_xor_b32 v7, 64, v6
    v_add_u32 v14, 0x10000, v6
    v_add_u32 v15, 0x10000, v7
    v_add_u32 v16, 0x20000, v6
    v_add_u32 v17, 0x20000, v7
    s_mov_b32 s62, {WS_F3}
    s_lshr_b32 s51, s36, 1
    s_lshl_b32 s51, s51, 4
    v_cmp_eq_u32 vcc, 15, v2
    v_cndmask_b32 v250, v2, 0, vcc
    v_add_u32 v250, s51, v250
    """)
    if opt("latex1", 2):
        A(f"""
        v_and_b32 v251, 7, v1
        v_lshlrev_b32 v251, 5, v251
        """)
        if opt("T", 4) == 2: A("s_lshr_b32 s51, s36, 2\ns_and_b32 s52, s36, 3")
        else: A("s_and_b32 s51, s36, 7\ns_lshr_b32 s52, s36, 3")
        A("s_lshl_b32 s52, s52, 3\ns_add_u32 s51, s51, s52\nv_add_u32 v251, s51, v251")
        if opt("T", 4) == 2:
            A("v_and_b32 v252, 7, v251\nv_lshlrev_b32 v252, 1, v252\nv_bfe_u32 v253, v251, 3, 1\nv_add_u32 v252, v252, v253\nv_mov_b32 v253, 0\nv_lshrrev_b32 v251, 4, v251")
        elif opt("T", 4) == 4:
            A("v_bfe_u32 v252, v251, 1, 2\nv_lshlrev_b32 v252, 2, v252\nv_bfe_u32 v253, v251, 3, 2\nv_add_u32 v252, v252, v253\nv_and_b32 v253, 1, v251\nv_lshlrev_b32 v253, 3, v253\nv_lshrrev_b32 v251, 5, v251")
        else:
            A("v_bfe_u32 v252, v251, 2, 1\nv_lshlrev_b32 v252, 3, v252\nv_bfe_u32 v253, v251, 3, 3\nv_add_u32 v252, v252, v253\nv_and_b32 v253, 3, v251\nv_lshlrev_b32 v253, 2, v253\nv_lshrrev_b32 v251, 6, v251")
        A("v_add_u32 v251, v251, v253\nv_lshl_add_u32 v251, v252, 4, v251\nv_cmp_gt_u32 vcc, 16, v1\nv_cndmask_b32 v250, v251, v250, vcc")
    A("v_lshlrev_b32 v250, 7, v250")

def wd_rest(A):
    for st_ in range(27, 40): A(*wd_op(st_, "dr"))

def k4_main(A):
    ACC, AF, NAF = 32, 64, 8
    XG = 96
    def act_op(k):
        t = "s_add_u32 s44, s44, 4096\n" if (k and k % 4 == 0) else ""
        if opt("rot", 0) and k and k % 4 == 0:
            t = f"s_mov_b32 s44, s{S_AE}\n" if k == 40 else t + f"s_cmp_eq_u32 s44, s{S_AE}\ns_cselect_b32 s44, s{S_AB}, s44\n"
        return (t + f"buffer_load_dwordx4 {a(4*k,4)}, v4, {srd(S_WS)}, s44 offen offset:{(k%4)*1024} {LDP('a')}", None)
    H0 = opt("a0", 14)
    for k in range(H0): A(act_op(k)[0])
    TL = opt("k4tail", 4)
    order4 = [(k, t) for k in range(43 - TL) for t in range(2)] + [(k, t) for t in range(2) for k in range(43 - TL, 43)]
    def frag_read(n):
        k, t = order4[n]
        ad = WD_ORDER[k]*4096
        base = (("v6", "v7"), ("v14", "v15"), ("v16", "v17"))[ad >> 16][t]
        off = ad & 0xffff
        b = AF + (n % NAF)*4
        return f"ds_read_b64_tr_b16 {v(b,2)}, {base} offset:{off}\nds_read_b64_tr_b16 {v(b+2,2)}, {base} offset:{off+1024}"
    side = []
    n0 = 0
    for k in range(H0, 43): side.append((n0, *act_op(k))); n0 += opt("astep", 1)
    PF = NAF - 2
    N = 86
    ts(A, "issued4")
    for n in range(PF): A(frag_read(n))
    RS = 272
    early = []
    for n in range(N):
        k, t = order4[n]
        if n % 2 == 0: A.touch_regs([("v", AF+((n+1)%NAF)*4+3)])
        A(f"v_mfma_f32_32x32x16_bf16 {v(ACC+16*t,16)}, {v(AF+(n%NAF)*4,4)}, {a(4*k,4)}, {v(ACC+16*t,16) if k else 0}")
        if n == 0: ts(A, "first4"); tc(A, "first4")
        if side and side[0][0] <= n:
            _, tx, tag = side.pop(0); A(tx, tag=tag)
        if n == 47:
            A.wait_tag("dr"); A("s_barrier")
            for st_ in range(40, 43): A(*wd_op(st_, "do"))
            A(f"buffer_load_dwordx4 {v(XG,4)}, v10, {srd(S_WS)}, s46 offen {LDP('x')}")
            A(f"buffer_load_dwordx4 {v(XG+4,4)}, v10, {srd(S_WS)}, s48 offen {LDP('x')}")
            A(f"buffer_load_dwordx4 {v(XG+8,4)}, v11, {srd(S_WS)}, s47 offen sc1")
            A(f"buffer_load_dwordx4 {v(XG+12,4)}, v11, {srd(S_WS)}, s47 offen offset:16 sc1")
        if n == 73:
            A.wait_tag("do"); A("s_barrier")
            A(f"""
            s_mul_i32 s51, s3, {32*RS}
            v_and_b32 v18, 31, v1
            v_mul_u32_u24 v18, {RS}, v18
            v_bfe_u32 v19, v1, 5, 1
            v_lshl_add_u32 v18, v19, 4, v18
            v_add_u32 v18, s51, v18
            v_mul_u32_u24 v19, {RS}, v8
            v_lshl_add_u32 v19, v9, 5, v19
            """)
        if n + PF < N: A(frag_read(n+PF))
        if TL >= 3 and n == N - TL + 1: early = list(range(4))
        if early and n >= N - TL + 1:
            for _ in range(-(-len(early) // (N - n))):
                j = early.pop(0); A(f"ds_write_b128 v18, {v(ACC+4*j,4)} offset:{j*32}")
    assert not side
    ts(A, "mfma4"); tc(A, "mfma4")
    XF = 112
    for it in range(2):
        for h in range(4): A(f"v_lshlrev_b32 v{XF+it*8+2*h}, 16, v{XG+it*4+h}\nv_and_b32 v{XF+it*8+2*h+1}, 0xffff0000, v{XG+it*4+h}")
    for t in range(1 if TL >= 3 else 0, 2):
        for j in range(4):
            A(f"ds_write_b128 v18, {v(ACC+16*t+4*j,4)} offset:{t*128+j*32}")
    A("s_waitcnt lgkmcnt(0)\ns_barrier")
    RD = 128
    for it in range(2):
        for kh in range(2):
            for hf in range(2):
                A(f"ds_read_b128 {v(RD+it*16+kh*8+hf*4,4)}, v19 offset:{(kh*64+it*32)*RS+hf*16}")
    for it in range(2):
        z = RD + it*16
        for h in range(4): A(f"v_pk_add_f32 {v(z+2*h,2)}, {v(z+2*h,2)}, {v(z+8+2*h,2)}")
        for h in range(4): A(f"v_pk_fma_f32 {v(z+2*h,2)}, {v(z+2*h,2)}, {v(XG+8+2*h,2)}, {v(XF+it*8+2*h,2)}")
        if opt("scale", 0):
            for h in range(8): A(f"v_mul_f32 v{z+h}, {fbits(1 + opt('scale', 0)/1000)}, v{z+h}")
        for h in range(4): A(f"v_cvt_pk_bf16_f32 v{z+8+h}, v{z+2*h}, v{z+2*h+1}")
        A(f"buffer_store_dwordx4 {v(z+8,4)}, v12, {srd(S_OUT)}, s{49+it} offen {opt('outsc', 'sc1')}")

def LOC(c): return "" if c in opt("loc", "") else "sc1"
def LDP(c): return opt("ldp", "nt") if c in opt("loc", "") else "sc1"
def PLP(c): return opt("plp", "nt") if c in opt("loc", "") else "sc1"
def flag_set(A, soff, keep=0, reset=True, c="-"):
    sk = A.label("fs")
    A(f"""
    s_waitcnt vmcnt({keep}) lgkmcnt(0)
    s_barrier
    s_cmp_lg_u32 s3, 0
    s_cbranch_scc1 {sk}
    v_mov_b32 v250, 0
    v_mov_b32 v251, s{S_TOK}
    s_mov_b64 exec, 1
    buffer_store_dword v251, v250, {srd(S_WS)}, s{soff} offen {LOC(c)}
    s_mov_b64 exec, -1
    {sk}:
    """)
    A.reset()

def late_prefetch(A, chunks, do_touch, nonln):
    n = 0
    if do_touch: touch(A, nonln=nonln); n += 3
    wchunks(A, chunks); n += 6*len(list(chunks))
    return n

def poll(A, kind, soff, others=None, after0=None):
    sk, lp, w0, jn = A.label("pk"), A.label("pl"), A.label("p0"), A.label("pj")
    A(f"s_cmp_eq_u32 s3, 0\ns_cbranch_scc1 {w0}")
    if others: others(A)
    A(f"s_branch {jn}\n{w0}:\ns_mov_b32 s{S_CNT}, 0")
    shrink = opt("shrink", 1)
    slp = f"s_sleep {opt('slp', 0)}\n" if opt("slp", 0) else ""
    if kind == "l16": A("v_lshlrev_b32 v250, 7, v2")
    elif kind.startswith("s64"): A("v_lshlrev_b32 v250, 6, v1")
    NG = int(kind[-1]) if kind.startswith("s64") else 0
    if not NG:
        if shrink: A(f"s_mov_b64 exec, {'0xffffff' if kind == 'lst' else '0xffff'}")
        A(f"""
        {lp}:
        buffer_load_dword v252, v250, {srd(S_WS)}, s{soff} offen {PLP('h' if kind == 'l16' else 'a')}
        s_add_u32 s{S_CNT}, s{S_CNT}, 1
        s_waitcnt vmcnt(0)
        v_cmp_ne_u32 vcc, s{S_TOK}, v252
        s_cmp_ge_u32 s{S_CNT}, {MAXPOLL}
        s_cbranch_scc1 {sk}
        """)
        if shrink: A(f"s_and_b64 exec, exec, vcc\ns_cbranch_execz {sk}\n{slp}s_branch {lp}")
        else: A(f"{slp}s_cbranch_vccnz {lp}")
        A(f"{sk}:\ns_mov_b64 exec, -1")
    else:
        for j in range(1, 4): A(f"s_add_u32 s{71+j}, s{soff}, {j*4096}")
        if opt("pre1", 0):
            l1, d1 = A.label("p1"), A.label("p2")
            A(f"""
            s_and_b32 s92, s2, 127
            s_lshl_b32 s92, s92, 6
            s_add_u32 s92, s92, s{soff}
            v_mov_b32 v251, 0
            s_mov_b64 exec, 1
            {l1}:
            buffer_load_dword v252, v251, {srd(S_WS)}, s92 offen sc1
            s_add_u32 s{S_CNT}, s{S_CNT}, 1
            s_waitcnt vmcnt(0)
            v_cmp_ne_u32 vcc, s{S_TOK}, v252
            s_cmp_ge_u32 s{S_CNT}, {MAXPOLL}
            s_cbranch_scc1 {d1}
            s_cbranch_vccnz {l1}
            {d1}:
            s_mov_b64 exec, -1
            """)
        M = [84, 86, 88, 90]
        for j in range(4): A(f"s_mov_b64 s[{M[j]}:{M[j]+1}], {-1 if j < NG else 0}")
        A(f"{lp}:")
        for j in range(NG):
            sj = A.label("ps")
            A(f"s_mov_b64 exec, s[{M[j]}:{M[j]+1}]\ns_cbranch_execz {sj}")
            A(f"buffer_load_dword v{252+j}, v250, {srd(S_WS)}, s{soff if j == 0 else 71+j} offen sc1\n{sj}:")
        A(f"s_add_u32 s{S_CNT}, s{S_CNT}, 1\ns_waitcnt vmcnt(0)")
        for j in range(NG):
            A(f"s_mov_b64 exec, s[{M[j]}:{M[j]+1}]\nv_cmp_ne_u32 s[{M[j]}:{M[j]+1}], s{S_TOK}, v{252+j}" if shrink else f"s_mov_b64 exec, -1\nv_cmp_ne_u32 s[92:93], s{S_TOK}, v{252+j}\ns_cmp_lg_u64 s[92:93], 0\ns_cselect_b64 s[{M[j]}:{M[j]+1}], -1, 0")
        A(f"""
        s_or_b64 s[92:93], s[84:85], s[86:87]
        s_or_b64 s[94:95], s[88:89], s[90:91]
        s_cmp_ge_u32 s{S_CNT}, {MAXPOLL}
        s_cbranch_scc1 {sk}
        s_or_b64 s[92:93], s[92:93], s[94:95]
        s_cbranch_scc0 {sk}
        {slp}s_branch {lp}
        {sk}:
        s_mov_b64 exec, -1
        """)
    A.reset()
    if after0: after0(A)
    A(f"{jn}:\ns_barrier")

def build():
    A = Asm()
    name = NAME + "_kernel"
    kernel_begin(A, name)
    done = A.label("done")
    if TS: A("s_memrealtime s[62:63]\ns_waitcnt lgkmcnt(0)")
    entry(A, done)
    if TS:
        A("v_mov_b32 v248, 0\nv_writelane_b32 v248, s62, 0"); _ts["n"] = 1; _ts["names"] = ["entry"]
    m, i_, e = A.label("k1mod"), A.label("k1idle"), A.label("k1end")
    tok = f"s_waitcnt lgkmcnt(0)\ns_mul_i32 s{S_TOK}, s{S_TOK}, 0x9e3779b1\ns_add_u32 s{S_TOK}, s{S_TOK}, 0x7f4a7c15\ns_lshl_b32 s62, s2, 6\ns_add_u32 s62, s62, {WS_F1}"
    pfA = range(opt("pfA", 0)); tm = opt("touch", 11)
    A(f"s_cmp_ge_u32 s2, 128\ns_cbranch_scc1 {m}")
    k1_ln(A)
    ts(A, "stiss")
    if tm == 9: touch(A, "gu")
    keep = (2 if tm == 9 else 0) + late_prefetch(A, pfA if opt("pfApos", 0) == 3 else [], tm == 5, False)
    A(tok); flag_set(A, 62, keep)
    A(f"s_branch {e}\n{m}:\ns_cmp_ge_u32 s2, 224\ns_cbranch_scc1 {i_}")
    A.reset()
    k1_mod(A)
    tsx(A, 62)
    A.reset()
    keep = late_prefetch(A, pfA if opt("pfMpos", 0) == 3 else [], tm in (5, 6), tm == 6)
    A(tok); flag_set(A, 62, keep)
    if tm == 4 and opt("tafter", 0): touch(A, nonln=True)
    A(f"s_branch {e}\n{i_}:")
    A.reset()
    A(small_srd(S_X, 2097152) + "\n" + small_srd(S_C, 1024) + "\ns_waitcnt lgkmcnt(0)")
    common_setup(A)
    A(tok); flag_set(A, 62, 63)
    if opt("idledelay", 1):
        A(f"v_lshlrev_b32 v4, 2, v0\nbuffer_load_dword v8, v4, {srd(S_C)}, 0 offen\ns_waitcnt vmcnt(0)")
    if tm == 7: touch_early(A)
    if tm == 9: touch(A, "gu")
    if tm in (10, 11): touch(A, "gu", nonln=True)
    if tm in (2, 5): touch(A)
    if tm in (3, 4, 6): touch(A, nonln=True)
    wchunks(A, pfA)
    A(f"{e}:")
    A.reset()
    ts(A, "f1set")
    if opt("cpf", 0) & 1: A(code_pf_text(".Lk2code", 249, 48))
    k2_pre(A, (lambda: wchunks(A, range(opt("pfA", 0), opt("pfA", 0) + opt("pf1", 3)))) if not opt("prefirst", 1) and not opt("w3", 1) else None)
    if opt("touch", 11) == 7: touch_late_setup(A)
    if opt("touch", 11) == 7 and opt("tlate", 0) == 0: touch_late(A)
    ts(A, "pre")
    w3 = opt("w3", 1)
    if opt("prefirst", 1) and not w3: wchunks(A, range(opt("pfA", 0), opt("pfA", 0) + opt("pf1", 3)))
    A(f"s_mov_b32 s63, {WS_F1}")
    poll(A, "s64x2" if opt("sepmod", 1) else "s64x4", 63, others=(lambda A_: w3_chunks(A_, range(opt("pf1", 3)))) if w3 else None)
    A.reset()
    ts(A, "sync1")
    A(".Lk2code:")
    k2_main(A)
    ts(A, "stiss2")
    keep = late_prefetch(A, range(opt("pfA", 0) + opt("pf1", 3), opt("pfB", 4)) if opt("pfBpos", 1) == 3 else [], False, False)
    flag_set(A, 62, keep + (4 if opt("latex1", 2) == 1 else 0), c="h")
    ts(A, "f2set")
    wchunks(A, range(opt("pfB", 4), opt("pfB", 4) + opt("pf3", 2)))
    if opt("cpf", 0) & 2: A(code_pf_text(".Lk3code", 249, 64))
    k3_pre(A)
    idle3 = A.label("k3idle")
    A(f"s_cmp_eq_u32 s37, 15\ns_cbranch_scc1 {idle3}")
    poll(A, "l16", 62)
    A.reset()
    ts(A, "sync2")
    A(".Lk3code:")
    k3_main(A, idle3)
    flag_set(A, 61, c="a")
    ts(A, "f3set")
    k4_pre(A)
    poll(A, "lst", 62, others=wd_rest, after0=wd_rest)
    ts(A, "sync3")
    k4_main(A)
    sk = A.label("ep")
    A(f"""
    s_or_b32 s63, s2, s3
    s_cmp_lg_u32 s63, 0
    s_cbranch_scc1 {sk}
    v_mov_b32 v250, 0
    v_mov_b32 v251, s{S_TOK}
    s_mov_b32 s63, {WS_EP}
    s_mov_b64 exec, 1
    buffer_store_dword v251, v250, {srd(S_WS)}, s63 offen sc1
    s_mov_b64 exec, -1
    {sk}:
    """)
    ts(A, "end")
    probe_end(A)
    ts_flush(A)
    A(f"{done}:\n.Lend:\ns_endpgm")
    if opt("jit", 0):
        import random
        rnd = random.Random(opt("jit", 0)); out = []
        def delay():
            lb = A.label("jit")
            c = f"s_cmp_eq_u32 s3, {rnd.randrange(4)}\ns_cbranch_scc0 {lb}" if rnd.random() < 0.6 else f"s_bitcmp1_b32 s2, {rnd.randrange(8)}\ns_cbranch_scc0 {lb}"
            return [Ins(x) for x in (c + f"\ns_sleep {rnd.randrange(2, 40)}\n{lb}:").split("\n")]
        for I in A.ins:
            if I.op == "s_barrier":
                if rnd.random() < 0.7: out += delay()
                out.append(I)
                if rnd.random() < 0.7: out += delay()
            else: out.append(I)
        A.ins = out
    code = A.finalize()
    return [(None, (256,1,1), (256,1,1), LDS_TOTAL)], code, [kernel_desc(name, 256, 172)]

if __name__ == "__main__":
    hdr = [l.rstrip("\n") for l in open("cdna_kernels/%s.s.ref" % NAME) if l.startswith(";") and "@launch" not in l][:15]
    out = sys.argv[1]
    for kv in sys.argv[2:]:
        k_, v_ = kv.split("=")
        OPT[k_] = int(v_) if v_.lstrip("-").isdigit() else v_
    TS = bool(opt("ts", 0)); PROBE = opt("probe", None)
    launches, code, descs = build()
    open(out, "w").write(file_text(hdr, launches, code, descs))
    if TS: json.dump([_ts["names"]], open(out[:-2] + ".json", "w"))
```

```python
import sys, struct, math, json
from asmlib import *

NAME = "adaLN_cond__spectral_fnet__swiglu_ffn__prompt"
def fbits(x): return "0x%08x" % struct.unpack("<I", struct.pack("<f", x))[0]
OPT = {}
def opt(k, d): return OPT.get(k, d)

WS_U   = 0
WS_MOD = 0x240000
WS_H2  = 0x300000
WS_X1  = 0x500000
WS_ACT = 0x800000
WS_FLG = 0xE00000
WS_TS  = 0xF00000
WS_SIZE = 0x1000000
WS_EP  = WS_FLG
WS_F1  = WS_FLG + 0x1000
WS_F2  = WS_FLG + 0x10000
WS_F3  = WS_FLG + 0x20000
def SLOTSTR(): return 65536 + opt("upad", 0)
def USLOT(): return 512 if opt("upm", 0) else SLOTSTR()
def UOCT(): return 16384 if opt("upm", 0) else 512
def UN2(): return 65536 + opt("upad", 0) if opt("upm", 0) else 2048
MAXPOLL = int(__import__('os').environ.get('MAXPOLL', '60000'))
LDS_TOTAL = 163840
SLOT = 24640; UOFF = 12320
XCS = 1040
XWS = 16 * XCS
XIMG = LDS_TOTAL - 4 * XWS
XTAB = XIMG - 384
MW = XIMG
MSC = MW + 32768
MRED = MSC + 1024
K2EX = 123200
K2HB = K2EX + 18432
S_X, S_WG, S_WU, S_WD, S_C, S_WM, S_OUT, S_WS = 4, 8, 12, 16, 20, 24, 28, 32
S_TOK, S_CNT, S_SL, S_WL, S_DG, S_DL, S_T, S_T2 = 64, 65, 66, 67, 68, 69, 70, 75
V_W = 240
V_D = 243
def srd(b): return s(b, 4)
LOG2E = fbits(-math.log2(math.e))

TS = False
PROBE = None
_ts = {"n": 0, "names": []}
def ts(A, name=None, cyc=False):
    if not TS: return
    if opt("tsonly", None) and name not in opt("tsonly", "").split("+") and name not in ("f1set", "end"): return
    n = _ts["n"]; _ts["n"] += 1
    _ts["names"].append(("c:" if cyc else "") + name)
    A(f"{'s_memtime' if cyc else 's_memrealtime'} s[98:99]\ns_waitcnt lgkmcnt(0)\nv_writelane_b32 v248, s98, {n}")
def tsx(A, lane):
    if TS: A(f"s_memrealtime s[98:99]\ns_waitcnt lgkmcnt(0)\nv_writelane_b32 v248, s98, {lane}")
def tc(A, name=None): ts(A, name, True)
def probe_end(A):
    if PROBE is None: return
    lp = A.label("pr")
    idx = _ts["names"].index(PROBE)
    A(f"""
    s_waitcnt vmcnt(0) lgkmcnt(0)
    v_readlane_b32 s90, v248, 0
    v_readlane_b32 s91, v248, {idx}
    s_nop 4
    s_sub_u32 s91, s91, s90
    s_cmp_gt_u32 s91, 20000
    s_cselect_b32 s91, 0, s91
    s_add_u32 s91, s91, 6000
    {lp}:
    s_memrealtime s[92:93]
    s_waitcnt lgkmcnt(0)
    s_sub_u32 s92, s92, s90
    s_cmp_lt_u32 s92, s91
    s_cbranch_scc1 {lp}
    """)
def ts_flush(A):
    if not TS: return
    sk = A.label("tsk")
    A(f"s_waitcnt vmcnt(0) lgkmcnt(0)\ns_cmp_lg_u32 s3, 0\ns_cbranch_scc1 {sk}")
    A(f"s_lshl_b32 s64, s2, 8\ns_add_u32 s64, s64, {WS_TS}\nv_lshlrev_b32 v1, 2, v1")
    A(f"buffer_store_dword v248, v1, {srd(S_WS)}, s64 offen")
    A(f"s_waitcnt vmcnt(0)\n{sk}:")

def bf16r(A, dst, src):
    A(f"v_cvt_pk_bf16_f32 {dst}, {src}, {src}\nv_lshlrev_b32 {dst}, 16, {dst}")

def sl_expr(d=38, t=39):
    if opt("T", 4) == 2:
        return f"s_lshr_b32 s{d}, s2, 4"
    if opt("T", 4) == 4:
        return f"s_and_b32 s{d}, s2, 1\ns_lshl_b32 s{d}, s{d}, 3\ns_lshr_b32 s{t}, s2, 5\ns_add_u32 s{d}, s{d}, s{t}"
    return f"s_and_b32 s{d}, s2, 3\ns_lshl_b32 s{d}, s{d}, 2\ns_lshr_b32 s{t}, s2, 6\ns_add_u32 s{d}, s{d}, s{t}"
def rb_expr():
    if opt("T", 4) == 2:
        return "s_and_b32 s36, s2, 7\ns_lshl_b32 s36, s36, 1\ns_bfe_u32 s39, s2, 0x10003\ns_add_u32 s36, s36, s39"
    if opt("T", 4) == 4:
        return "s_bfe_u32 s36, s2, 0x20001\ns_lshl_b32 s36, s36, 2\ns_bfe_u32 s39, s2, 0x20003\ns_add_u32 s36, s36, s39"
    return "s_bfe_u32 s36, s2, 0x10002\ns_lshl_b32 s36, s36, 3\ns_bfe_u32 s39, s2, 0x30003\ns_add_u32 s36, s36, s39"
def entry(A, done):
    CP = opt("codepf", 1)
    A(f"""
    s_cmp_ge_u32 s2, 256
    s_cbranch_scc1 {done}
    s_load_dwordx2 s[4:5], s[0:1], 0
    s_load_dwordx2 s[24:25], s[0:1], 80
    s_load_dwordx2 s[20:21], s[0:1], 72
    s_load_dwordx2 s[32:33], s[0:1], 104
    s_load_dwordx2 s[8:9], s[0:1], 48
    s_load_dwordx2 s[12:13], s[0:1], 56
    s_load_dwordx2 s[16:17], s[0:1], 64
    s_load_dwordx2 s[28:29], s[0:1], 88
    v_lshrrev_b32 v2, 6, v0
    v_and_b32 v1, 63, v0
    v_readfirstlane_b32 s3, v2
    """)
    if CP:
        A(f"""
        s_getpc_b64 s[40:41]
        s_and_b32 s40, s40, 0xffffff00
        s_lshr_b32 s42, s2, 3
        s_lshl_b32 s42, s42, 2
        s_add_u32 s42, s42, s3
        s_and_b32 s42, s42, {opt("cpmask", 15)}
        s_lshl_b32 s42, s42, 11
        v_and_b32 v250, 15, v0
        v_lshlrev_b32 v250, 7, v250
        v_add_u32 v250, s42, v250
        v_min_u32 v250, .Lend-{NAME}_kernel, v250
        global_load_dword v249, v250, s[40:41]
        """)
    A("v_and_b32 v2, 15, v0\nv_bfe_u32 v3, v0, 4, 2")

def common_setup(A):
    for b, sz in ((S_WG, 1409024), (S_WU, 1409024), (S_WD, 1409024), (S_OUT, 2097152), (S_WS, WS_SIZE)):
        A(f"s_mov_b32 s{b+2}, {sz}\ns_mov_b32 s{b+3}, 0x20000")
    A(f"s_add_u32 s72, s32, {WS_EP}\ns_addc_u32 s73, s33, 0\ns_load_dword s{S_TOK}, s[72:73], 0")
    A(f"""
    {sl_expr(72, 73)}
    s_mul_i32 s{S_SL}, s72, 192
    s_cmp_eq_u32 s72, 15
    s_cselect_b32 s{S_SL}, 0x200000, s{S_SL}
    s_mul_i32 s{S_WL}, s3, 3072
    s_mul_i32 s72, s3, 192
    s_mov_b32 s73, 0x15555556
    """)
    for i in range(3):
        A(f"""
        v_add_u32 v{V_W+i}, s72, v1
        v_add_u32 v{V_W+i}, {64*i}, v{V_W+i}
        v_mul_hi_u32 v244, v{V_W+i}, s73
        v_mul_u32_u24 v245, 12, v244
        v_sub_u32 v{V_W+i}, v{V_W+i}, v245
        v_lshlrev_b32 v{V_W+i}, 4, v{V_W+i}
        v_mul_u32_u24 v244, 2752, v244
        v_add_u32 v{V_W+i}, v{V_W+i}, v244
        """)
    if opt("tlb", 0):
        A(f"""
        v_lshlrev_b32 v239, {opt("tlb", 0)}, v1
        v_add_u32 v239, 0x2ff000, v239
        v_min_u32 v239, {WS_SIZE - 64}, v239
        buffer_load_dword v235, v239, {srd(S_WS)}, 0 offen
        v_mov_b32 v239, 0
        buffer_load_dword v234, v239, {srd(S_OUT)}, 0 offen
        """)
    if opt("touch", 11) in (1, 2, 3, 4, 5, 6, 8, 9, 10, 11): touch_setup(A, opt("touch", 11) in (3, 4, 6, 10, 11))
V_W3 = 224
def w3_setup(A):
    A(f"s_sub_u32 s72, s3, 1\ns_lshl_b32 s96, s72, 12\ns_lshl_b32 s72, s72, 8\ns_mov_b32 s73, 0x15555556")
    for i in range(4):
        A(f"""
        v_add_u32 v{V_W3+i}, s72, v1
        v_add_u32 v{V_W3+i}, {64*i}, v{V_W3+i}
        v_mul_hi_u32 v244, v{V_W3+i}, s73
        v_mul_u32_u24 v245, 12, v244
        v_sub_u32 v{V_W3+i}, v{V_W3+i}, v245
        v_lshlrev_b32 v{V_W3+i}, 4, v{V_W3+i}
        v_mul_u32_u24 v244, 2752, v244
        v_add_u32 v{V_W3+i}, v{V_W3+i}, v244
        """)
def w3_chunks(A, chunks):
    w3_setup(A)
    for ch in chunks:
        A(f"s_add_u32 s{S_T2}, s{S_SL}, {ch*64*2752}")
        for mtx, sr in ((0, S_WG), (1, S_WU)):
            for i in range(4):
                A(f"s_add_u32 m0, s96, {ch*SLOT+mtx*UOFF+i*1024}\nbuffer_load_dwordx4 v{V_W3+i}, {srd(sr)}, s{S_T2} offen lds")
def code_pf_text(label, dst, nlines=64):
    here = f".Lpc_{label.strip('.')}"
    return f"""s_getpc_b64 s[72:73]
    {here}:
    s_add_u32 s72, s72, {label}-{here}
    s_addc_u32 s73, s73, 0
    v_min_u32 v{dst}, {nlines-1}, v1
    v_lshlrev_b32 v{dst}, 7, v{dst}
    v_min_u32 v{dst}, .Lend-{label}, v{dst}
    global_load_dword v{dst}, v{dst}, s[72:73]"""
def small_srd(b, sz): return f"s_mov_b32 s{b+2}, {sz}\ns_mov_b32 s{b+3}, 0x20000"

def touch_setup(A, nonln=False):
    n = 22 if nonln else 11
    A(f"""
    s_lshl_b32 s{S_T}, s2, 2
    s_add_u32 s{S_T}, s{S_T}, s3
    s_and_b32 s{S_T}, s{S_T}, {511 if nonln else 1023}
    s_mul_i32 s{S_T}, s{S_T}, {n}
    v_min_u32 v246, {n-1}, v1
    v_add_u32 v246, s{S_T}, v246
    v_lshlrev_b32 v246, 7, v246
    """)
def touch(A, which="gud", nonln=False):
    pol = opt("tpol", "")
    A(f"s_mov_b64 exec, {hex((1 << (22 if nonln else 11)) - 1)}")
    if "g" in which: A(f"buffer_load_dword v236, v246, {srd(S_WG)}, 0 offen {pol}")
    if "u" in which: A(f"buffer_load_dword v237, v246, {srd(S_WU)}, 0 offen {pol}")
    if "d" in which: A(f"buffer_load_dword v238, v246, {srd(S_WD)}, 0 offen {pol}")
    A("s_mov_b64 exec, -1")

def touch_early(A):
    rows = 64 * opt("terows", 5)
    n = (rows * 2752 // 128 + 127) // 128
    A(f"""
    s_sub_u32 s38, s2, 224
    s_lshl_b32 s38, s38, 2
    s_add_u32 s38, s38, s3
    s_mul_i32 s38, s38, {n}
    v_min_u32 v246, {n-1}, v1
    v_add_u32 v246, s38, v246
    v_lshlrev_b32 v246, 7, v246
    buffer_load_dword v247, v246, {srd(S_WG)}, 0 offen
    buffer_load_dword v245, v246, {srd(S_WU)}, 0 offen
    """)
    for j in range(1, (n + 63) // 64):
        A(f"""
        v_add_u32 v244, {64*j}, v1
        v_min_u32 v244, {n-1}, v244
        v_add_u32 v244, s38, v244
        v_lshlrev_b32 v244, 7, v244
        buffer_load_dword v239, v244, {srd(S_WG)}, 0 offen
        buffer_load_dword v238, v244, {srd(S_WU)}, 0 offen
        """)
def touch_late_setup(A):
    rows0 = 64 * opt("terows", 5)
    n = ((512 - rows0) * 2752 // 128 + 1023) // 1024
    A(f"""
    s_lshl_b32 s{S_T}, s2, 2
    s_add_u32 s{S_T}, s{S_T}, s3
    s_mul_i32 s71, s{S_T}, 11
    s_mul_i32 s{S_T}, s{S_T}, {n}
    s_add_u32 s{S_T}, s{S_T}, {rows0*2752//128}
    v_min_u32 v246, {max(n-1,0)}, v1
    v_add_u32 v246, s{S_T}, v246
    v_lshlrev_b32 v246, 7, v246
    v_min_u32 v247, 10, v1
    v_add_u32 v247, s71, v247
    v_lshlrev_b32 v247, 7, v247
    """)
def touch_late(A):
    A(f"""
    s_mov_b64 exec, 0x7ff
    buffer_load_dword v245, v246, {srd(S_WG)}, 0 offen
    buffer_load_dword v244, v246, {srd(S_WU)}, 0 offen
    buffer_load_dword v246, v247, {srd(S_WD)}, 0 offen
    s_mov_b64 exec, -1
    """)

def wchunk_ops(chunk, slot, tag):
    ops = []
    for mtx, sr in ((0, S_WG), (1, S_WU)):
        for i in range(3):
            t = f"s_add_u32 m0, s{S_WL}, {slot*SLOT+mtx*UOFF+i*1024}\n"
            if mtx == 0 and i == 0: t += f"s_add_u32 s{S_T2}, s{S_SL}, {chunk*64*2752}\n"
            t += f"buffer_load_dwordx4 v{V_W+i}, {srd(sr)}, s{S_T2} offen {opt('wpol','')} lds"
            ops.append((t, tag))
    return ops
def wchunks(A, chunks):
    for ch in chunks:
        for t, tag in wchunk_ops(ch, ch, f"w{ch}"): A(t, tag=tag)

def k1_ln(A):
    A(f"""
    s_and_b32 s38, s2, 7
    s_lshr_b32 s39, s2, 3
    s_lshr_b32 s40, s39, 2
    s_lshl_b32 s40, s40, 3
    s_add_u32 s36, s38, s40
    s_and_b32 s37, s39, 3
    v_lshrrev_b32 v4, 2, v1
    v_sub_u32 v5, 0, v3
    v_xor_b32 v5, v5, v1
    v_and_b32 v5, 3, v5
    v_lshlrev_b32 v4, 15, v4
    v_lshl_add_u32 v4, v5, 4, v4
    s_lshl_b32 s38, s3, 9
    s_add_u32 s38, s38, s36
    s_lshl_b32 s38, s38, 10
    s_mul_i32 s39, s3, {XWS}
    s_add_u32 s39, s39, {XIMG}
    {small_srd(S_X, 2097152)}
    s_waitcnt lgkmcnt(0)
    """)
    ts(A, "prolog")
    for i in range(16):
        A(f"s_add_u32 m0, s39, {i*(XCS-64)}")
        A(f"buffer_load_dwordx4 v4, {srd(S_X)}, s38 offen offset:{i*64} {opt('xpol','')} lds", tag=f"x{i}")
    common_setup(A)
    BC, NV = 16, 48
    A("""
    v_lshlrev_b32 v5, 3, v3
    v_cvt_f32_u32 v5, v5
    s_and_b32 s40, s3, 1
    s_lshl_b32 s40, s40, 4
    v_add_u32 v6, s40, v2
    v_cmp_eq_u32 vcc, 0, v6
    v_cvt_f32_u32 v6, v6
    v_mul_f32 v6, 0x3c800000, v6
    v_mov_b32 v8, 0x3e800000
    v_cndmask_b32 v9, v6, 0.5, vcc
    v_cndmask_b32 v10, v8, 0, vcc
    """)
    for ks in range(2):
        for j in range(8):
            A(f"v_add_f32 v{NV}, {fbits(32*ks+j)}, v5\nv_mul_f32 v{BC+ks*8+j}, v{NV}, v6\nv_fma_f32 v{BC+16+ks*8+j}, v{NV}, v9, v10")
    for i in range(32): A(f"v_cos_f32 v{BC+i}, v{BC+i}")
    ONES, G, SA = 112, 116, 120
    for i in range(4): A(f"v_mov_b32 v{ONES+i}, 0x3f803f80")
    A(f"""
    v_lshrrev_b32 v5, 2, v2
    v_sub_u32 v5, 0, v5
    v_xor_b32 v5, v5, v3
    v_and_b32 v5, 3, v5
    v_lshlrev_b32 v5, 4, v5
    v_lshl_add_u32 v5, v2, 6, v5
    v_add_u32 v5, s39, v5
    v_lshrrev_b32 v6, 1, v3
    v_mul_u32_u24 v6, {XWS}, v6
    v_and_b32 v7, 3, v1
    v_mul_u32_u24 v7, {XCS}, v7
    v_add_u32 v6, v6, v7
    v_and_b32 v7, 1, v3
    v_lshl_add_u32 v6, v7, 9, v6
    v_bfe_u32 v8, v1, 2, 2
    v_lshl_add_u32 v6, v8, 6, v6
    s_lshr_b32 s41, s3, 1
    s_mul_i32 s42, s41, {8*XCS}
    s_add_u32 s42, s42, {XIMG}
    v_add_u32 v6, s42, v6
    v_lshlrev_b32 v7, 1, v7
    v_xor_b32 v8, s37, v7
    v_lshl_add_u32 v11, v8, 4, v6
    v_xor_b32 v8, 3, v8
    v_lshl_add_u32 v12, v8, 4, v6
    v_add_u32 v12, 256, v12
    s_lshl_b32 s42, s3, 6
    s_add_u32 s42, s42, {XTAB}
    v_lshl_add_u32 v7, v2, 2, s42
    s_lshl_b32 s42, s3, 5
    s_add_u32 s42, s42, {XTAB+256}
    v_lshl_add_u32 v13, v2, 1, s42
    v_lshlrev_b32 v8, 5, v3
    v_add_u32 v8, {XTAB}, v8
    v_lshlrev_b32 v14, 4, v3
    v_add_u32 v14, {XTAB+256}, v14
    s_mov_b32 s42, 0x22222222
    s_mov_b32 s43, 0x22222222
    s_mov_b32 s44, 0x44444444
    s_mov_b32 s45, 0x44444444
    s_mov_b32 s46, 0x88888888
    s_mov_b32 s47, 0x88888888
    v_add_u32 v9, s40, v2
    v_mul_u32_u24 v9, {USLOT()}, v9
    v_lshl_add_u32 v9, v3, 4, v9
    s_mul_i32 s48, s36, {UN2()}
    s_mul_i32 s49, s37, {UOCT()}
    s_add_u32 s48, s48, s49
    s_lshl_b32 s49, s41, 7
    s_add_u32 s48, s48, s49
    s_add_u32 s48, s48, {WS_U}
    """)
    ts(A, "const")
    R = 48
    pfl = [op for ch in range(opt("pfA", 0)) for op in wchunk_ops(ch, ch, f"w{ch}")] if opt("pfApos", 0) == 2 else []
    for i in range(16):
        A.wait_tag(f"x{i}")
        A(f"ds_read_b128 {v(R+4*i,4)}, v5 offset:{i*XCS}")
        for _ in range(2 if i >= 14 - len(pfl)//2 + 7 else 1):
            if pfl and i >= opt("pfAi", 2): A(*pfl.pop(0))
        if i >= 1:
            k = i - 1
            A(f"v_mfma_f32_16x16x32_bf16 {v(G,4)}, {v(R+4*k,4)}, {v(R+4*k,4)}, {v(G,4) if k else 0}")
            A(f"v_mfma_f32_16x16x32_bf16 {v(SA,4)}, {v(ONES,4)}, {v(R+4*k,4)}, {v(SA,4) if k else 0}")
    A("s_barrier")
    late_pf = pfl
    A(f"v_mfma_f32_16x16x32_bf16 {v(G,4)}, {v(R+60,4)}, {v(R+60,4)}, {v(G,4)}")
    A(f"v_mfma_f32_16x16x32_bf16 {v(SA,4)}, {v(ONES,4)}, {v(R+60,4)}, {v(SA,4)}")
    ts(A, "xarr")
    if opt("touch", 11) == 2: touch(A)
    if opt("pfA", 0) and opt("pfApos", 0) == 1: wchunks(A, range(opt("pfA", 0)))
    X = 128
    for tl in range(4):
        for ks in range(2):
            b = X + (tl*2+ks)*4
            off = ks*2*XWS + (tl >> 1)*4*XCS + 8*(tl & 1)
            A(f"ds_read_b64_tr_b16 {v(b,2)}, v11 offset:{off}\nds_read_b64_tr_b16 {v(b+2,2)}, v12 offset:{off}")
    A(f"""
    v_cndmask_b32 v10, v{G}, v{G+1}, s[42:43]
    v_cndmask_b32 v10, v10, v{G+2}, s[44:45]
    v_cndmask_b32 v10, v10, v{G+3}, s[46:47]
    v_mul_f32 v15, 0xbb000000, v{SA}
    v_mul_f32 v10, 0x3b000000, v10
    v_fma_f32 v10, -v15, v15, v10
    v_max_f32 v10, 0, v10
    v_cvt_pk_bf16_f32 v15, v15, v10
    v_and_b32 v10, 0xffff0000, v15
    v_add_f32 v10, {fbits(1e-5)}, v10
    """)
    bf16r(A, "v10", "v10")
    A("v_sqrt_f32 v10, v10")
    bf16r(A, "v10", "v10")
    A("""
    v_rcp_f32 v10, v10
    s_mov_b32 exec_lo, 0x00f0000f
    s_mov_b32 exec_hi, 0xf0000f00
    ds_write_b16 v13, v15
    ds_write_b32 v7, v10
    s_mov_b64 exec, -1
    s_waitcnt lgkmcnt(0)
    s_barrier
    """)
    ts(A, "stats")
    for op in late_pf: A(*op)
    TR, AM, BP, CM, ACC, PK = 48, 64, 72, 88, 160, 96
    for ks in range(2):
        for hf in range(2): A(f"ds_read_b128 {v(TR+ks*8+hf*4,4)}, v8 offset:{ks*128+hf*16}")
        A(f"ds_read_b128 {v(AM+ks*4,4)}, v14 offset:{ks*64}")
    for ks in range(2):
        for c in range(2):
            for jj in range(4):
                b = BC + c*16 + ks*8 + 2*jj
                A(f"v_pk_mul_f32 {v(b,2)}, {v(b,2)}, {v(TR+ks*8+2*jj,2)}")
            for jj in range(4):
                b = BC + c*16 + ks*8 + 2*jj
                A(f"v_cvt_pk_bf16_f32 v{BP+(c*2+ks)*4+jj}, v{b}, v{b+1}")
    for ks in range(2):
        for c in range(2):
            A(f"v_mfma_f32_16x16x32_bf16 {v(CM+4*c,4)}, {v(AM+ks*4,4)}, {v(BP+(c*2+ks)*4,4)}, {v(CM+4*c,4) if ks else 0}")
    for tl in range(4):
        for c in range(2):
            acc = ACC + (tl*2+c)*4
            A(f"v_mfma_f32_16x16x32_bf16 {v(acc,4)}, {v(X+(tl*2)*4,4)}, {v(BP+(c*2)*4,4)}, {v(CM+4*c,4)}")
        for c in range(2):
            acc = ACC + (tl*2+c)*4
            A(f"v_mfma_f32_16x16x32_bf16 {v(acc,4)}, {v(X+(tl*2+1)*4,4)}, {v(BP+(c*2+1)*4,4)}, {v(acc,4)}")
        if tl >= 1: k1_store(A, tl-1, ACC, PK)
    k1_store(A, 3, ACC, PK)

def k1_store(A, tl, ACC, PK):
    acc = ACC + tl*8; pk = PK + tl*4
    for r in range(4): A(f"v_cvt_pk_bf16_f32 v{pk+r}, v{acc+r}, v{acc+4+r}")
    A(f"buffer_store_dwordx4 {v(pk,4)}, v9, {srd(S_WS)}, s48 offen offset:{(tl&1)*256+(tl>>1)*64} sc1", tag="st")

def k1_mod(A):
    A(f"""
    s_and_b32 s38, s2, 7
    s_lshr_b32 s39, s2, 3
    s_mul_i32 s38, s38, 12
    s_add_u32 s36, s38, s39
    s_sub_u32 s36, s36, 16
    v_lshlrev_b32 v4, 2, v0
    {small_srd(S_C, 1024)}
    {small_srd(S_WM, 3145728)}
    {small_srd(S_X, 2097152)}
    v_lshrrev_b32 v5, 2, v1
    v_mul_u32_u24 v5, 6144, v5
    v_and_b32 v6, 3, v1
    v_lshl_add_u32 v5, v6, 4, v5
    s_mul_i32 s38, s3, {128*6144}
    s_lshl_b32 s39, s36, 6
    s_add_u32 s38, s38, s39
    s_lshl_b32 s39, s3, 13
    s_add_u32 s39, s39, {MW}
    s_waitcnt lgkmcnt(0)
    buffer_load_dword v8, v4, {srd(S_C)}, 0 offen
    """)
    if opt("touch", 11) == 3: touch(A, nonln=True)
    if opt("moddelay", 0): A("v_mov_b32 v8, v8")
    for i in range(8):
        A(f"s_add_u32 m0, s39, {i*1024}")
        if i: A(f"s_add_u32 s38, s38, {16*6144}")
        A(f"buffer_load_dwordx4 v5, {srd(S_WM)}, s38 offen {opt('mpol','nt')} lds", tag="wm")
    common_setup(A)
    A(f"""
    v_bfe_u32 v6, v1, 2, 2
    v_lshl_add_u32 v6, v3, 3, v6
    v_lshlrev_b32 v6, 6, v6
    v_and_b32 v7, 3, v1
    v_lshl_add_u32 v6, v7, 3, v6
    v_add_u32 v6, s39, v6
    v_add_u32 v4, {MSC}, v4
    s_lshl_b32 s40, s3, 8
    s_add_u32 s40, s40, {MSC}
    v_lshl_add_u32 v7, v3, 4, s40
    v_lshlrev_b32 v9, 16, v8
    v_and_b32 v10, 0xffff0000, v8
    v_mul_f32 v11, {LOG2E}, v9
    v_mul_f32 v12, {LOG2E}, v10
    v_exp_f32 v11, v11
    v_exp_f32 v12, v12
    v_add_f32 v11, 1.0, v11
    v_add_f32 v12, 1.0, v12
    v_rcp_f32 v11, v11
    v_rcp_f32 v12, v12
    v_mul_f32 v9, v9, v11
    v_mul_f32 v10, v10, v12
    v_cvt_pk_bf16_f32 v9, v9, v10
    ds_write_b32 v4, v9
    """)
    SF, WF, ACC = 16, 32, 64
    A("s_waitcnt lgkmcnt(0)")
    tsx(A, 60)
    for ks in range(4): A(f"ds_read_b128 {v(SF+4*ks,4)}, v7 offset:{ks*64}")
    A(f"""
    v_and_b32 v10, 31, v1
    s_lshr_b32 s40, s36, 4
    s_and_b32 s41, s36, 15
    s_lshl_b32 s41, s41, 5
    v_add_u32 v10, s41, v10
    v_lshrrev_b32 v15, 8, v10
    v_lshlrev_b32 v15, 8, v15
    v_bfe_u32 v72, v10, 2, 2
    v_lshl_add_u32 v15, v72, 6, v15
    v_bfe_u32 v72, v10, 4, 4
    v_lshl_add_u32 v15, v72, 2, v15
    v_and_b32 v72, 3, v10
    v_add_u32 v15, v15, v72
    v_bfe_u32 v72, v10, 3, 2
    v_lshlrev_b32 v73, 7, v72
    v_bfe_u32 v72, v10, 7, 2
    v_lshl_add_u32 v73, v72, 5, v73
    v_and_b32 v72, 7, v10
    v_lshl_add_u32 v73, v72, 2, v73
    v_bfe_u32 v72, v10, 5, 2
    v_add_u32 v73, v73, v72
    s_cmp_lt_u32 s40, 2
    s_cselect_b64 vcc, -1, 0
    v_cndmask_b32 v15, v15, v73, vcc
    s_cmp_eq_u32 s40, 5
    s_cselect_b64 vcc, -1, 0
    v_cndmask_b32 v10, v15, v10, vcc
    v_lshlrev_b32 v10, 2, v10
    s_lshl_b32 s41, s40, 11
    s_add_u32 s41, s41, {WS_MOD}
    s_cmp_eq_u32 s40, 1
    s_cselect_b32 s42, 1.0, 0
    s_cmp_eq_u32 s40, 4
    s_cselect_b32 s42, 1.0, s42
    s_lshl_b32 s43, s3, 7
    s_add_u32 s43, s43, {MRED}
    v_lshl_add_u32 v9, v2, 2, s43
    v_and_b32 v74, 31, v1
    v_lshlrev_b32 v74, 2, v74
    v_add_u32 v74, {MRED}, v74
    """)
    A.wait_tag("wm")
    tsx(A, 61)
    if opt("touch", 11) == 2: touch(A)
    if opt("touch", 11) == 4 and not opt("tafter", 0): touch(A, nonln=True)
    if opt("touch", 11) == 9: touch(A, "gu")
    if opt("touch", 11) in (10, 11): touch(A, "gu", nonln=True)
    if opt("pfA", 0) and opt("pfMpos", 0) == 1: wchunks(A, range(opt("pfA", 0)))
    for ks in range(4):
        for nt in range(2):
            b = WF + (ks*2+nt)*4
            off = ks*2048 + nt*32
            A(f"ds_read_b64_tr_b16 {v(b,2)}, v6 offset:{off}\nds_read_b64_tr_b16 {v(b+2,2)}, v6 offset:{off+256}")
    for ks in range(4):
        for nt in range(2):
            A(f"v_mfma_f32_16x16x32_bf16 {v(ACC+4*nt,4)}, {v(SF+4*ks,4)}, {v(WF+(ks*2+nt)*4,4)}, {v(ACC+4*nt,4) if ks else 0}")
    skip = A.label("modskip")
    A(f"""
    s_mov_b64 exec, 0xffff
    ds_write_b32 v9, v{ACC}
    ds_write_b32 v9, v{ACC+4} offset:64
    s_mov_b64 exec, -1
    s_waitcnt lgkmcnt(0)
    s_barrier
    s_cmp_lg_u32 s3, 0
    s_cbranch_scc1 {skip}
    ds_read_b32 v11, v74
    ds_read_b32 v12, v74 offset:128
    ds_read_b32 v13, v74 offset:256
    ds_read_b32 v14, v74 offset:384
    v_add_f32 v11, v11, v12
    v_add_f32 v13, v13, v14
    v_add_f32 v11, v11, v13
    """)
    bf16r(A, "v11", "v11")
    A("v_add_f32 v11, s42, v11")
    bf16r(A, "v11", "v11")
    A(f"""
    s_mov_b32 exec_hi, 0
    buffer_store_dword v11, v10, {srd(S_WS)}, s41 offen sc1
    s_mov_b64 exec, -1
    {skip}:
    """)

K2 = dict(BS=16, CC=24, CS=26, TW=28, BH=44, U=64, XR=128, CA=136, GA=168, CB=176, SB=184, Z=192, XF=224)
def k2_pre(A, hook=None):
    r = K2
    if opt("T", 4) == 2: A("s_and_b32 s36, s2, 7\ns_lshl_b32 s36, s36, 2\ns_bfe_u32 s37, s2, 0x20003")
    else: A("s_and_b32 s36, s2, 7\ns_bfe_u32 s37, s2, 0x20003\ns_lshl_b32 s37, s37, 3")
    A("""
    s_add_u32 s36, s36, s37
    s_lshr_b32 s37, s2, 5
    s_sub_u32 s39, 64, s36
    s_cmp_eq_u32 s36, 0
    s_cselect_b32 s39, 32, s39
    s_cselect_b64 s[40:41], -1, 0
    s_lshl_b32 s42, s37, 2
    s_add_u32 s43, s42, s3
    s_lshl_b32 s43, s43, 6
    s_add_u32 s44, s43, s36
    s_add_u32 s45, s43, s39
    s_lshl_b32 s44, s44, 10
    s_lshl_b32 s45, s45, 10
    v_lshlrev_b32 v4, 5, v2
    v_lshl_add_u32 v4, v3, 3, v4
    """)
    for uu in range(2):
        for nt in range(2):
            A(f"buffer_load_dwordx2 {v(r['XR']+(uu*2+nt)*2,2)}, v4, {srd(S_X)}, s{44+uu} offen offset:{nt*512}")
    if hook: hook()
    A("""
    v_lshrrev_b32 v5, 2, v2
    v_add_u32 v5, s42, v5
    v_lshlrev_b32 v5, 6, v5
    v_and_b32 v6, 2, v2
    v_cmp_ne_u32 vcc, 0, v6
    v_mov_b32 v7, s36
    v_mov_b32 v8, s39
    v_cndmask_b32 v7, v7, v8, vcc
    v_add_u32 v5, v5, v7
    v_cvt_f32_u32 v5, v5
    v_mul_f32 v5, 0x3a000000, v5
    v_and_b32 v6, 1, v2
    v_cvt_f32_u32 v6, v6
    v_mul_f32 v6, 0x3e800000, v6
    v_mov_b32 v7, 0xbe800000
    v_mov_b32 v8, 0x3e800000
    v_cndmask_b32 v7, v7, v8, vcc
    v_cndmask_b32 v7, v7, 0, s[40:41]
    v_add_f32 v7, v7, v6
    v_cndmask_b32 v8, 1.0, 0, vcc
    v_cndmask_b32 v9, 0, 1.0, vcc
    v_cndmask_b32 v8, 1.0, v8, s[40:41]
    v_cndmask_b32 v9, 1.0, v9, s[40:41]
    v_lshlrev_b32 v10, 2, v3
    v_cvt_f32_u32 v10, v10
    """)
    T = 64
    NQ = 72
    for ks in range(2):
        for i in range(4): A(f"v_add_f32 v{NQ+ks*4+i}, {fbits(16*ks+i)}, v10")
    for ks in range(2):
        for i in range(4):
            A(f"v_fma_f32 v{T+2*i}, v{NQ+ks*4+i}, v5, v6\nv_fma_f32 v{T+2*i+1}, v{NQ+ks*4+i}, v5, v7")
        for i in range(8): A(f"v_cos_f32 v{T+i}, v{T+i}")
        for i in range(4):
            A(f"v_pk_mul_f32 {v(T+2*i,2)}, {v(T+2*i,2)}, v[8:9]")
            A(f"v_cvt_pk_bf16_f32 v{r['BS']+ks*4+i}, v{T+2*i}, v{T+2*i+1}")
    A("v_cvt_f32_u32 v12, v2\nv_mul_f32 v13, 0x3d800000, v12")
    for j in range(4): A(f"v_mul_f32 v{T+j}, v{NQ+j}, v13")
    for j in range(4): A(f"v_sin_f32 v{T+4+j}, v{T+j}")
    for j in range(4): A(f"v_cos_f32 v{T+j}, v{T+j}")
    for jj in range(2):
        A(f"v_cvt_pk_bf16_f32 v{r['CC']+jj}, v{T+2*jj}, v{T+2*jj+1}\nv_cvt_pk_bf16_f32 v{r['CS']+jj}, v{T+4+2*jj}, v{T+5+2*jj}")
    A("v_mul_f32 v13, 0x3b000000, v12\ns_lshl_b32 s46, s3, 3\nv_cvt_f32_u32 v14, s46")
    for t in range(8):
        A(f"v_add_f32 v11, {fbits(t)}, v14\nv_mul_f32 v{T+t}, v11, v13")
    for t in range(8):
        A(f"v_cos_f32 v{r['TW']+2*t}, v{T+t}\nv_sin_f32 v{r['TW']+2*t+1}, v{T+t}")
    for nt in range(2):
        A(f"v_add_f32 v13, {fbits(16*nt)}, v12\nv_mul_f32 v13, 0x3d000000, v13")
        for ks in range(2):
            for i in range(4): A(f"v_mul_f32 v{T+i}, v{NQ+ks*4+i}, v13")
            for i in range(4): A(f"v_sin_f32 v{T+4+i}, v{T+i}")
            for i in range(4): A(f"v_cos_f32 v{T+i}, v{T+i}")
            for i in range(4): A(f"v_cvt_pk_bf16_f32 v{r['BH']+(nt*2+ks)*4+i}, v{T+i}, v{T+4+i}")
    A(f"""
    v_mul_u32_u24 v5, {4*UN2()}, v3
    v_lshl_add_u32 v5, v2, 4, v5
    s_mul_i32 s46, s36, {USLOT()}
    s_mul_i32 s47, s3, {UOCT()}
    s_add_u32 s46, s46, s47
    s_add_u32 s46, s46, {WS_U}
    s_add_u32 s47, s46, {2*UN2()}
    s_add_u32 s48, s46, {16*UN2()}
    s_add_u32 s49, s46, {18*UN2()}
    s_add_u32 s76, s46, {UN2()}
    s_add_u32 s77, s47, {UN2()}
    s_add_u32 s78, s48, {UN2()}
    s_add_u32 s79, s49, {UN2()}
    v_lshlrev_b32 v6, 7, v3
    s_lshl_b32 s50, s3, 9
    s_add_u32 s50, s50, {WS_MOD}
    s_cmp_eq_u32 s2, 0
    s_cselect_b32 s59, s50, {WS_SIZE}
    v_lshlrev_b32 v7, 4, v1
    v_lshl_add_u32 v8, v3, 5, v2
    v_mul_u32_u24 v8, 144, v8
    s_lshl_b32 s51, s3, 5
    s_add_u32 s51, s51, {K2EX}
    v_add_u32 v8, s51, v8
    v_mul_u32_u24 v9, 144, v2
    v_lshl_add_u32 v9, v3, 4, v9
    s_mul_i32 s51, s3, {32*144}
    s_add_u32 s51, s51, {K2EX}
    v_add_u32 v9, s51, v9
    s_mul_i32 s51, s3, 2080
    s_add_u32 s51, s51, {K2HB}
    v_add_u32 v10, s51, v4
    v_and_b32 v11, 7, v0
    v_lshrrev_b32 v12, 3, v0
    v_mul_u32_u24 v13, 1040, v11
    v_lshl_add_u32 v13, v12, 4, v13
    v_add_u32 v13, {K2HB}, v13
    v_lshlrev_b32 v11, 4, v11
    v_lshl_add_u32 v11, v12, 9, v11
    s_lshl_b32 s51, s36, 3
    s_add_u32 s51, s51, s37
    s_lshl_b32 s52, s51, 13
    s_lshl_b32 s53, s3, 11
    s_add_u32 s52, s52, s53
    s_add_u32 s52, s52, {WS_X1}
    s_add_u32 s53, s52, 1024
    s_lshr_b32 s54, s51, 2
    s_lshl_b32 s54, s54, 15
    s_and_b32 s55, s51, 3
    s_lshl_b32 s55, s55, 7
    s_add_u32 s54, s54, s55
    s_add_u32 s54, s54, {WS_H2}
    s_add_u32 s55, s54, 16384
    s_mov_b32 s56, {WS_MOD+2*2048}
    s_mov_b32 s57, {WS_MOD+3*2048}
    s_mov_b32 s58, {WS_MOD+4*2048}
    s_lshl_b32 s62, s51, 7
    s_add_u32 s62, s62, {WS_F2}
    v_lshlrev_b32 v250, 6, v1
    """)

def k2_main(A):
    r = K2
    U, Z = r['U'], r['Z']
    sk0 = A.label("k2sl")
    A(f"s_cmp_lg_u32 s2, 0\ns_cbranch_scc1 {sk0}")
    for t in range(0 if opt("sepmod", 1) else 8):
        A(f"buffer_load_dwordx4 {a(4*t,4)}, v6, {srd(S_WS)}, s50 offen offset:{t*16} sc1")
    A(f"{sk0}:")
    sep = opt("sepmod", 1)
    if sep:
        m0 = A.label("k2m0")
        A(f"s_cmp_lg_u32 s3, 0\ns_cbranch_scc1 {m0}")
        A(f"buffer_load_dword v254, v250, {srd(S_WS)}, s73 offen sc1\nbuffer_load_dword v255, v250, {srd(S_WS)}, s74 offen sc1\n{m0}:", tag="spin")
    for hh in range(2):
        for ks in range(2):
            for i in range(4):
                A(f"buffer_load_dwordx4 {v(U+((ks*2+hh)*4+i)*4,4)}, v5, {srd(S_WS)}, s{(46, 76)[i&1]+ks*2+(i>>1)} offen offset:{hh*256} sc1")
    if sep:
        m1, lp1 = A.label("k2m1"), A.label("k2ml")
        A(f"""
        s_cmp_lg_u32 s3, 0
        s_cbranch_scc1 {m1}
        s_mov_b32 s{S_CNT}, 0
        s_waitcnt vmcnt(16)
        {lp1}:
        v_xor_b32 v254, s{S_TOK}, v254
        v_xor_b32 v255, s{S_TOK}, v255
        v_or_b32 v254, v254, v255
        v_cmp_ne_u32 vcc, 0, v254
        s_add_u32 s{S_CNT}, s{S_CNT}, 1
        s_cmp_ge_u32 s{S_CNT}, {MAXPOLL}
        s_cbranch_scc1 {m1}
        s_cbranch_vccz {m1}
        buffer_load_dword v254, v250, {srd(S_WS)}, s73 offen sc1
        buffer_load_dword v255, v250, {srd(S_WS)}, s74 offen sc1
        s_waitcnt vmcnt(0)
        s_branch {lp1}
        {m1}:
        s_barrier
        """, tag="spin")
        sk1 = A.label("k2s1")
        A(f"s_cmp_lg_u32 s2, 0\ns_cbranch_scc1 {sk1}")
        for t in range(8):
            A(f"buffer_load_dwordx4 {a(4*t,4)}, v6, {srd(S_WS)}, s50 offen offset:{t*16} sc1", tag="spin")
        A(f"{sk1}:", tag="spin")
    for t in range(8):
        A(f"buffer_load_dwordx4 {v(r['CA']+4*t,4)}, v6, {srd(S_WS)}, s50 offen offset:{2048+t*16} sc1")
    for nm, sr in (("GA", 56), ("CB", 58), ("SB", 57)):
        for nt in range(2):
            A(f"buffer_load_dwordx4 {v(r[nm]+nt*4,4)}, v7, {srd(S_WS)}, s{sr} offen offset:{nt*1024} sc1")
    A.touch_regs([("v", U)])
    for uu in range(2):
        for nt in range(2):
            xr = r['XR'] + (uu*2+nt)*2; xf = r['XF'] + (uu*2+nt)*4
            A(f"v_lshlrev_b32 v{xf}, 16, v{xr}\nv_and_b32 v{xf+1}, 0xffff0000, v{xr}\nv_lshlrev_b32 v{xf+2}, 16, v{xr+1}\nv_and_b32 v{xf+3}, 0xffff0000, v{xr+1}")
    pfl = [op for ch in range(opt("pfA", 0) + opt("pf1", 3), opt("pfB", 4)) for op in wchunk_ops(ch, ch, f"w{ch}")]
    if opt("pfBpos", 1) == 0:
        for op in pfl: A(*op)
    if opt("pfBpos", 1) in (0, 3): pfl = []
    if opt("touch", 11) == 7 and opt("tlate", 0) == 1: touch_late(A)
    if opt("touch", 11) == 8: touch(A)
    if opt("touch", 11) == 9: touch(A, "d")
    if TS and opt("tsu", 1): A(f"v_mov_b32 v{U+60}, v{U+60}"); ts(A, "uarr")
    for hh in range(2):
        for ks in range(2):
            b = U + (ks*2+hh)*16
            for i in range(4):
                for t in range(i+1, 4): A(f"v_swap_b32 v{b+4*i+t}, v{b+4*t+i}")
        for t in range(4):
            for ks in range(2):
                z = Z + (hh*4+t)*4
                A(f"v_mfma_f32_16x16x32_bf16 {v(z,4)}, {v(U+(ks*2+hh)*16+4*t,4)}, {v(r['BS']+ks*4,4)}, {v(z,4) if ks else 0}")
                if pfl and opt("pfBpos", 1) != 4 and (hh == 1 or opt("pfBpos", 1) == 2): A(*pfl.pop(0))
    if opt("pfBpos", 1) != 4:
        for op in pfl: A(*op)
        pfl = []
    ZP, P, Q = 64, 80, 112
    for t in range(8):
        for h in range(2): A(f"v_pk_mul_f32 {v(Z+4*t+2*h,2)}, {v(Z+4*t+2*h,2)}, {v(r['CA']+4*t+2*h,2)}")
    sk = A.label("k2sa")
    A(f"s_cmp_lg_u32 s2, 0\ns_cbranch_scc1 {sk}")
    A("s_mov_b32 s59, 0x45000000\ns_mov_b32 exec_lo, 0x00010001\ns_mov_b32 exec_hi, 0x00010001")
    for i in range(32):
        A(f"v_accvgpr_read_b32 v{P}, a{i}\nv_fma_f32 v{Z+i}, v{P}, s59, v{Z+i}")
    A(f"s_mov_b64 exec, -1\n{sk}:")
    for t in range(8):
        A(f"v_cvt_pk_bf16_f32 v{ZP+2*t}, v{Z+4*t}, v{Z+4*t+1}\nv_cvt_pk_bf16_f32 v{ZP+2*t+1}, v{Z+4*t+2}, v{Z+4*t+3}")
        if t >= 1:
            A(f"v_mfma_f32_16x16x16_bf16 {v(P+4*(t-1),4)}, {v(ZP+2*(t-1),2)}, {v(r['CC'],2)}, 0")
            A(f"v_mfma_f32_16x16x16_bf16 {v(Z+4*(t-1),4)}, {v(ZP+2*(t-1),2)}, {v(r['CS'],2)}, 0")
    A(f"v_mfma_f32_16x16x16_bf16 {v(P+28,4)}, {v(ZP+14,2)}, {v(r['CC'],2)}, 0")
    A(f"v_mfma_f32_16x16x16_bf16 {v(Z+28,4)}, {v(ZP+14,2)}, {v(r['CS'],2)}, 0")
    Q = Z; W = 112
    for hh in range(2):
        for uu in range(2):
            idx = [(P+4*(hh*4+t4)+2*uu, Q+4*(hh*4+t4)+2*uu, r['TW']+2*(hh*4+t4), W+uu*8+hh*4+t4) for t4 in range(4)]
            for p, q, tw, w in idx: A(f"v_pk_add_f32 {v(p,2)}, {v(p,2)}, {v(q,2)} op_sel:[0,1] op_sel_hi:[1,0] neg_hi:[0,1]")
            for p, q, tw, w in idx: A(f"v_pk_mul_f32 {v(q,2)}, {v(p,2)}, {v(tw,2)} op_sel:[0,0] op_sel_hi:[1,0]")
            for p, q, tw, w in idx: A(f"v_pk_fma_f32 {v(q,2)}, {v(p,2)}, {v(tw,2)}, {v(q,2)} op_sel:[1,1,0] op_sel_hi:[0,1,1] neg_hi:[1,0,0]")
            for p, q, tw, w in idx: A(f"v_cvt_pk_bf16_f32 v{w}, v{q}, v{q+1}")
            A(f"ds_write_b128 v8, {v(W+uu*8+hh*4,4)} offset:{uu*16*144+hh*16}")
    A("s_waitcnt lgkmcnt(0)\ns_barrier")
    ts(A, "h1")
    AF, Y = 80, 96
    for uu in range(2):
        for ks in range(2):
            A(f"ds_read_b128 {v(AF+(uu*2+ks)*4,4)}, v9 offset:{uu*16*144+ks*64}")
    for op in pfl[:4]: A(*op)
    pfl = pfl[4:]
    for uu in range(2):
        for ks in range(2):
            for nt in range(2):
                y = Y + (uu*2+nt)*4
                A(f"v_mfma_f32_16x16x32_bf16 {v(y,4)}, {v(AF+(uu*2+ks)*4,4)}, {v(r['BH']+(nt*2+ks)*4,4)}, {v(y,4) if ks else 0}")
                if pfl: A(*pfl.pop(0))
    for op in pfl: A(*op)
    XP = 168 if opt("latex1", 2) == 2 else 112
    for uu in range(2):
        for nt in range(2):
            y = Y + (uu*2+nt)*4; xf = r['XF'] + (uu*2+nt)*4; g = r['GA'] + nt*4
            for h in range(2):
                A(f"v_pk_fma_f32 {v(y+2*h,2)}, {v(y+2*h,2)}, {v(g+2*h,2)}, {v(xf+2*h,2)}")
        y = Y + uu*8; t = 64 + 4*uu
        A(f"v_pk_add_f32 {v(t,2)}, {v(y,2)}, {v(y+2,2)}\nv_pk_mul_f32 {v(t+2,2)}, {v(y,2)}, {v(y,2)}")
        A(f"v_pk_add_f32 {v(t,2)}, {v(t,2)}, {v(y+4,2)}\nv_pk_fma_f32 {v(t+2,2)}, {v(y+2,2)}, {v(y+2,2)}, {v(t+2,2)}")
        A(f"v_pk_add_f32 {v(t,2)}, {v(t,2)}, {v(y+6,2)}\nv_pk_fma_f32 {v(t+2,2)}, {v(y+4,2)}, {v(y+4,2)}, {v(t+2,2)}")
        A(f"v_add_f32 v{72+2*uu}, v{t}, v{t+1}\nv_pk_fma_f32 {v(t+2,2)}, {v(y+6,2)}, {v(y+6,2)}, {v(t+2,2)}")
        A(f"v_add_f32 v{73+2*uu}, v{t+2}, v{t+3}")
    def x1_store(uu, nt):
        y = Y + (uu*2+nt)*4; xp = XP + (uu*2+nt)*2
        A(f"v_cvt_pk_bf16_f32 v{xp}, v{y}, v{y+1}\nv_cvt_pk_bf16_f32 v{xp+1}, v{y+2}, v{y+3}")
        A(f"buffer_store_dwordx2 {v(xp,2)}, v4, {srd(S_WS)}, s{52+uu} offen offset:{nt*512} sc1", tag="st")
    late_x1 = opt("latex1", 2)
    def x1_cvt(uu, nt):
        y = Y + (uu*2+nt)*4; xp = XP + (uu*2+nt)*2
        A(f"v_cvt_pk_bf16_f32 v{xp}, v{y}, v{y+1}\nv_cvt_pk_bf16_f32 v{xp+1}, v{y+2}, v{y+3}")
    def x1_st(uu, nt):
        A(f"buffer_store_dwordx2 {v(XP+(uu*2+nt)*2,2)}, v4, {srd(S_WS)}, s{52+uu} offen offset:{nt*512} sc1", tag="x1")
    if late_x1: x1_store = x1_cvt
    A("v_permlane16_swap_b32 v72, v73\nv_permlane16_swap_b32 v74, v75\nv_add_f32 v72, v72, v73\nv_add_f32 v74, v74, v75")
    x1_store(0, 0)
    A("v_permlane32_swap_b32 v72, v74\nv_add_f32 v72, v72, v74")
    x1_store(0, 1)
    A("v_add_f32 v72, v72, v72 row_ror:8")
    A(f"v_mov_b32 v76, 0x3b000000\nv_mov_b32 v77, {fbits(1e-5)}")
    A("v_add_f32 v72, v72, v72 row_ror:4")
    x1_store(1, 0)
    A("v_add_f32 v72, v72, v72 row_ror:2")
    x1_store(1, 1)
    A("""
    v_add_f32 v72, v72, v72 row_ror:1
    v_mul_f32 v72, v72, v76
    v_readlane_b32 s40, v72, 0
    v_readlane_b32 s41, v72, 16
    v_readlane_b32 s42, v72, 32
    v_readlane_b32 s43, v72, 48
    v_mov_b32 v64, s40
    v_mov_b32 v66, s42
    v_fma_f32 v65, -v64, v64, s41
    v_fma_f32 v67, -v66, v66, s43
    v_max_f32 v65, 0, v65
    v_max_f32 v67, 0, v67
    v_add_f32 v65, v65, v77
    v_add_f32 v67, v67, v77
    v_rsq_f32 v65, v65
    v_rsq_f32 v67, v67
    v_mul_f32 v64, -v64, v65
    v_mul_f32 v66, -v66, v67
    """)
    HP = 120
    for uu in range(2):
        for nt in range(2):
            y = Y + (uu*2+nt)*4
            for h in range(2):
                A(f"v_pk_fma_f32 {v(y+2*h,2)}, {v(y+2*h,2)}, {v(64+2*uu,2)}, {v(64+2*uu,2)} op_sel:[0,1,0] op_sel_hi:[1,1,0]")
            for h in range(2):
                A(f"v_pk_fma_f32 {v(y+2*h,2)}, {v(y+2*h,2)}, {v(r['CB']+nt*4+2*h,2)}, {v(r['SB']+nt*4+2*h,2)}")
            hp = HP + (uu*2+nt)*2
            A(f"v_cvt_pk_bf16_f32 v{hp}, v{y}, v{y+1}\nv_cvt_pk_bf16_f32 v{hp+1}, v{y+2}, v{y+3}")
            A(f"ds_write_b64 v10, {v(hp,2)} offset:{uu*1040+nt*512}")
    A("s_waitcnt lgkmcnt(0)\ns_barrier")
    A("ds_read_b128 v[64:67], v13\nds_read_b128 v[68:71], v13 offset:512")
    A(f"buffer_store_dwordx4 v[64:67], v11, {srd(S_WS)}, s54 offen {LOC('h')}", tag="st")
    A(f"buffer_store_dwordx4 v[68:71], v11, {srd(S_WS)}, s55 offen {LOC('h')}", tag="st")
    if late_x1 == 1:
        for uu in range(2):
            for nt in range(2): x1_st(uu, nt)
    if late_x1 == 2:
        A("v_mov_b32 v176, v4\ns_mov_b32 s80, s52\ns_mov_b32 s81, s53")

WD_ORDER = [37, 38, 39] + list(range(13, 37)) + list(range(0, 13)) + [37, 38, 39]
def k4_ids(A):
    if opt("R", 4) == 4:
        A("s_and_b32 s36, s2, 7\ns_lshl_b32 s36, s36, 2\ns_bfe_u32 s38, s2, 0x20003\ns_add_u32 s36, s36, s38\ns_lshr_b32 s37, s2, 5")
    else:
        A("s_bfe_u32 s36, s2, 0x20001\ns_lshl_b32 s36, s36, 3\ns_bfe_u32 s38, s2, 0x30003\ns_add_u32 s36, s36, s38\ns_and_b32 s37, s2, 1\ns_lshl_b32 s37, s37, 2\ns_lshr_b32 s38, s2, 6\ns_add_u32 s37, s37, s38")
    A("s_lshr_b32 s38, s3, 1\ns_and_b32 s39, s3, 1")
def wd_setup(A):
    k4_ids(A)
    A(f"""
    v_lshrrev_b32 v244, 3, v1
    v_lshlrev_b32 v{V_D}, 10, v244
    v_and_b32 v245, 7, v1
    v_lshlrev_b32 v244, 1, v244
    v_and_b32 v244, 4, v244
    v_xor_b32 v245, v245, v244
    v_lshl_add_u32 v{V_D}, v245, 4, v{V_D}
    s_mul_i32 s{S_DG}, s38, {688*1024}
    s_lshl_b32 s41, s37, 7
    s_add_u32 s{S_DG}, s{S_DG}, s41
    s_lshl_b32 s41, s39, 13
    s_add_u32 s{S_DG}, s{S_DG}, s41
    s_lshl_b32 s{S_DL}, s3, 10
    s_mul_i32 s41, s37, 10
    s_lshr_b32 s41, s41, 3
    s_lshl_b32 s41, s41, 16
    s_add_u32 s{S_DR}, s{S_DG}, s41
    s_add_u32 s{S_DE}, s{S_DG}, {40*16384}
    """)
S_DR, S_DE, S_AB, S_AE = 82, 83, 97, 100
def wd_op(step, tag):
    t = f"s_add_u32 m0, s{S_DL}, {WD_ORDER[step]*4096}\n"
    if not opt("rot", 0) or step >= 40:
        t += f"s_add_u32 s{S_T}, s{S_DG}, {step*16384}\n"
    else:
        if step and step % 4 == 0:
            t += f"s_add_u32 s{S_DR}, s{S_DR}, 65536\ns_cmp_eq_u32 s{S_DR}, s{S_DE}\ns_cselect_b32 s{S_DR}, s{S_DG}, s{S_DR}\n"
        t += f"s_add_u32 s{S_T}, s{S_DR}, {(step % 4)*16384}\n"
    t += f"buffer_load_dwordx4 v{V_D}, {srd(S_WD)}, s{S_T} offen {opt('dpol','')} lds"
    return (t, tag)

def k3_ids(A):
    A(sl_expr() + "\ns_mov_b32 s37, s38\n" + rb_expr())
def k3_pre(A):
    wd_setup(A)
    k3_ids(A)
    A(f"""
    s_lshl_b32 s45, s36, 2
    s_add_u32 s45, s45, s3
    s_lshl_b32 s46, s45, 15
    s_add_u32 s46, s46, {WS_H2}
    v_lshlrev_b32 v4, 4, v1
    v_bfe_u32 v5, v1, 1, 1
    v_mul_u32_u24 v5, {UOFF}, v5
    v_bfe_u32 v6, v1, 2, 2
    v_bfe_u32 v7, v1, 5, 1
    v_lshl_add_u32 v6, v7, 3, v6
    v_mul_u32_u24 v6, 192, v6
    v_add_u32 v5, v5, v6
    v_bfe_u32 v6, v1, 4, 1
    v_lshl_add_u32 v5, v6, 4, v5
    v_and_b32 v6, 1, v1
    v_lshl_add_u32 v5, v6, 3, v5
    v_add_u32 v6, {2*SLOT}, v5
    v_add_u32 v7, {4*SLOT}, v5
    s_mul_i32 s47, s45, {86*1024}
    s_mul_i32 s48, s37, {6*1024}
    s_add_u32 s47, s47, s48
    s_add_u32 s47, s47, {WS_ACT}
    s_add_u32 s48, s47, 2048
    s_add_u32 s51, s47, 4096
    s_cmp_eq_u32 s37, 14
    s_cselect_b32 s48, {WS_SIZE}, s48
    s_cselect_b32 s51, {WS_SIZE}, s51
    s_lshl_b32 s49, s2, 2
    s_add_u32 s49, s49, s3
    s_mul_i32 s49, s49, 11
    v_min_u32 v246, 10, v1
    v_add_u32 v246, s49, v246
    v_lshlrev_b32 v246, 7, v246
    v_mov_b32 v14, {LOG2E}
    v_mov_b32 v15, {LOG2E}
    s_lshl_b32 s61, s36, 4
    s_add_u32 s61, s61, s37
    s_lshl_b32 s61, s61, 7
    s_add_u32 s61, s61, {WS_F3}
    s_lshl_b32 s62, s36, 11
    s_add_u32 s62, s62, {WS_F2}
    """)

def x1_ops():
    return [(f"buffer_store_dwordx2 {v(168+(uu*2+nt)*2,2)}, v176, {srd(S_WS)}, s{80+uu} offen offset:{nt*512} {LOC('x')}", "x1") for uu in range(2) for nt in range(2)]
def k3_main(A, idle):
    done = A.label("k3done")
    if opt("short14", 1):
        short = A.label("k3short")
        A(f"s_cmp_eq_u32 s37, 14\ns_cbranch_scc1 {short}")
        k3_body(A, 6)
        A(f"s_branch {done}\n{short}:")
        A.reset()
        k3_body(A, 2)
    else:
        k3_body(A, 6)
    k3_tail(A, idle, done)

def k3_body(A, NT):
    ACC, AF, NAF = 16, 112, 8
    T, PK = 144, 160
    full = NT == 6
    def h2_op(k):
        t = "s_add_u32 s46, s46, 4096\n" if (k and k % 4 == 0) else ""
        return (t + f"buffer_load_dwordx4 {a(4*k,4)}, v4, {srd(S_WS)}, s46 offen offset:{(k%4)*1024} {LDP('h')}", None)
    H0 = opt("h0", 12)
    for k in range(H0): A(h2_op(k)[0])
    order = [(k, j) for k in range(32) for j in range(NT)]
    N = len(order)
    def slot_of(k):
        ch = k // 4
        return ch if ch < 6 else ch - 6
    def frag_read(n):
        k, j = order[n]
        sl = slot_of(k)
        base = ("v5", "v6", "v7")[sl // 2]
        off = (sl % 2)*SLOT + (k % 4)*16*192 + j*32
        b = AF + (n % NAF)*4
        return f"ds_read_b64_tr_b16 {v(b,2)}, {base} offset:{off}\nds_read_b64_tr_b16 {v(b+2,2)}, {base} offset:{off+4*192}"
    PF = NAF - 2
    CH = 4*NT
    b01, b23, b6, b7 = 2*CH - 1, 4*CH - 1, 6*CH - PF - 1, 7*CH - PF - 1
    assert b6 >= 5*CH - 1 and b7 >= 6*CH - 1
    bars = {b01: [], b23: [], b6: ["w6"], b7: ["w7"]}
    pfB = opt("pfB", 4) + opt("pf3", 2)
    for ch in range(pfB, 6):
        nb = ch*CH - PF - 1
        if ch == 5 and b23 <= nb: bars[b23].append("w5")
        else: bars.setdefault(nb, []).append(f"w{ch}")
    sc = lambda x: x*NT // 6
    side = []
    n0 = 0
    def add(op, step):
        nonlocal n0
        side.append((sc(n0), *op)); n0 += step
    for k in range(H0, 32): add(h2_op(k), 2)
    for ch in range(pfB, 6):
        for op in wchunk_ops(ch, ch, f"w{ch}"): add(op, 2)
    for op in x1_ops(): add(op, 2)
    def at_least(n):
        nonlocal n0
        while sc(n0) <= n: n0 += 1
    at_least(b01)
    for ch in (6, 7):
        for op in wchunk_ops(ch, ch-6, f"w{ch}"): add(op, 2)
    for st_ in range(0, 3): add(wd_op(st_, "wd"), 3)
    if opt("cpf", 0) & 4 and full: side.append((max(n0, opt("cpn", 90)), code_pf_text(".Lk3epi", 249, 60), None))
    at_least(b23)
    for st_ in range(3, 14): add(wd_op(st_, "wd"), 3)
    at_least(b6)
    for st_ in range(14, 20): add(wd_op(st_, "wd"), 3)
    at_least(b7)
    for st_ in range(20, 27): add(wd_op(st_, "wd"), 3)
    A("v_accvgpr_read_b32 v13, a0\ns_barrier")
    if full: ts(A, "issued")
    for n in range(PF): A(frag_read(n))
    if full: tc(A, "first")
    for n, (k, j) in enumerate(order):
        acc = ACC + 16*j
        if n % 2 == 0: A.touch_regs([("v", AF+((n+1)%NAF)*4+3)])
        A(f"v_mfma_f32_32x32x16_bf16 {v(acc,16)}, {v(AF+(n%NAF)*4,4)}, {a(4*k,4)}, {v(acc,16) if k else 0}")
        if n == 0 and full: ts(A, "first")
        while side and side[0][0] <= n:
            _, t, tag = side.pop(0); A(t, tag=tag)
            if full: break
        if n in bars:
            for tg in bars[n]: A.wait_tag(tg)
            A("s_barrier")
            if full: ts(A, f"n{n}")
        if n + PF < N: A(frag_read(n+PF))
    for _, t, tag in side: A(t, tag=tag)
    if full:
        A(".Lk3epi:")
        ts(A, "mfma")
        tc(A, "mfma")
    def epi(j):
        acc = ACC + 16*j; pk = PK + 4*(j & 1); t0 = T + 8*(j & 1)
        for hf in range(2):
            g = acc + 8*hf; t = t0 + 4*hf
            for h in range(2): A(f"v_pk_mul_f32 {v(t+2*h,2)}, {v(g+2*h,2)}, v[14:15]")
        for i in range(8): A(f"v_exp_f32 v{t0+i}, v{t0+i}")
        for hf in range(2):
            g, u = acc + 8*hf, acc + 8*hf + 4
            for h in range(2): A(f"v_pk_mul_f32 {v(g+2*h,2)}, {v(g+2*h,2)}, {v(u+2*h,2)}")
        for h in range(4): A(f"v_pk_add_f32 {v(t0+2*h,2)}, {v(t0+2*h,2)}, 1.0 op_sel_hi:[1,0]")
        for i in range(8): A(f"v_rcp_f32 v{t0+i}, v{t0+i}")
        for hf in range(2):
            g = acc + 8*hf; t = t0 + 4*hf
            for h in range(2): A(f"v_pk_mul_f32 {v(g+2*h,2)}, {v(g+2*h,2)}, {v(t+2*h,2)}")
        for hf in range(2):
            g = acc + 8*hf
            A(f"v_cvt_pk_bf16_f32 v{pk+2*hf}, v{g}, v{g+1}\nv_cvt_pk_bf16_f32 v{pk+2*hf+1}, v{g+2}, v{g+3}")
        A(f"buffer_store_dwordx4 {v(pk,4)}, v4, {srd(S_WS)}, s{(47,48,51)[j//2]} offen offset:{(j%2)*1024} {LOC('a')}", tag="st")
    for j in range(NT): epi(j)
    if full: ts(A, "stiss3")

def k3_tail(A, idle, done):
    A(f"s_branch {done}\n{idle}:")
    A.reset()
    A("s_waitcnt vmcnt(0)\ns_barrier")
    if opt("touch", 11) == 11:
        A(f"""
        s_lshl_b32 s49, s36, 2
        s_add_u32 s49, s49, s3
        s_mul_i32 s49, s49, {172*128}
        v_lshlrev_b32 v246, 7, v1
        buffer_load_dword v236, v246, {srd(S_WD)}, s49 offen
        s_add_u32 s50, s49, 8192
        buffer_load_dword v237, v246, {srd(S_WD)}, s50 offen
        s_add_u32 s50, s49, {108*128}
        buffer_load_dword v238, v246, {srd(S_WD)}, s50 offen
        """)
    if opt("latex1", 2) == 2:
        for op in x1_ops(): A(*op)
    for st_ in range(27): A(*wd_op(st_, "wd"))
    A(f"{done}:")
    A.reset()

def k4_pre(A):
    k4_ids(A)
    A(f"""
    s_lshl_b32 s44, s36, 1
    s_add_u32 s44, s44, s39
    s_mul_i32 s44, s44, {86*1024}
    s_mul_i32 s45, s38, {43*1024}
    s_add_u32 s44, s44, s45
    s_add_u32 s44, s44, {WS_ACT}
    s_mov_b32 s{S_AB}, s44
    s_add_u32 s{S_AE}, s44, 40960
    s_mul_i32 s45, s37, {10 if opt("rot", 0) else 0}
    s_lshr_b32 s45, s45, 3
    s_lshl_b32 s45, s45, 12
    s_add_u32 s44, s44, s45
    v_lshlrev_b32 v4, 4, v1
    v_lshrrev_b32 v8, 3, v0
    v_and_b32 v9, 7, v0
    s_lshl_b32 s46, s36, 16
    s_lshl_b32 s47, s37, 7
    s_add_u32 s46, s46, s47
    s_add_u32 s46, s46, {WS_X1}
    s_add_u32 s48, s46, 32768
    v_lshlrev_b32 v10, 10, v8
    v_lshl_add_u32 v10, v9, 4, v10
    v_lshlrev_b32 v11, 5, v9
    s_lshl_b32 s47, s37, 8
    s_add_u32 s47, s47, {WS_MOD+5*2048}
    s_sub_u32 s49, 64, s36
    s_cmp_eq_u32 s36, 0
    s_cselect_b32 s49, 32, s49
    v_and_b32 v12, 1, v8
    v_cmp_ne_u32 vcc, 0, v12
    v_mov_b32 v12, s36
    v_mov_b32 v13, s49
    v_cndmask_b32 v12, v12, v13, vcc
    v_lshrrev_b32 v13, 1, v8
    v_lshl_add_u32 v12, v13, 6, v12
    v_lshlrev_b32 v12, 10, v12
    v_lshl_add_u32 v12, v9, 4, v12
    s_lshl_b32 s49, s37, 7
    s_add_u32 s50, s49, 0x100000
    v_bfe_u32 v6, v1, 2, 2
    v_bfe_u32 v7, v1, 5, 1
    v_lshl_add_u32 v7, v7, 2, v6
    v_lshlrev_b32 v7, 7, v7
    v_bfe_u32 v13, v1, 4, 1
    v_lshl_add_u32 v7, v13, 5, v7
    v_and_b32 v13, 3, v1
    v_lshl_add_u32 v7, v13, 3, v7
    s_lshl_b32 s41, s38, 11
    v_add_u32 v7, s41, v7
    v_bfe_u32 v13, v1, 3, 1
    v_lshlrev_b32 v13, 6, v13
    v_xor_b32 v6, v7, v13
    v_xor_b32 v7, 64, v6
    v_add_u32 v14, 0x10000, v6
    v_add_u32 v15, 0x10000, v7
    v_add_u32 v16, 0x20000, v6
    v_add_u32 v17, 0x20000, v7
    s_mov_b32 s62, {WS_F3}
    s_lshr_b32 s51, s36, 1
    s_lshl_b32 s51, s51, 4
    v_cmp_eq_u32 vcc, 15, v2
    v_cndmask_b32 v250, v2, 0, vcc
    v_add_u32 v250, s51, v250
    """)
    if opt("latex1", 2):
        A(f"""
        v_and_b32 v251, 7, v1
        v_lshlrev_b32 v251, 5, v251
        """)
        if opt("T", 4) == 2: A("s_lshr_b32 s51, s36, 2\ns_and_b32 s52, s36, 3")
        else: A("s_and_b32 s51, s36, 7\ns_lshr_b32 s52, s36, 3")
        A("s_lshl_b32 s52, s52, 3\ns_add_u32 s51, s51, s52\nv_add_u32 v251, s51, v251")
        if opt("T", 4) == 2:
            A("v_and_b32 v252, 7, v251\nv_lshlrev_b32 v252, 1, v252\nv_bfe_u32 v253, v251, 3, 1\nv_add_u32 v252, v252, v253\nv_mov_b32 v253, 0\nv_lshrrev_b32 v251, 4, v251")
        elif opt("T", 4) == 4:
            A("v_bfe_u32 v252, v251, 1, 2\nv_lshlrev_b32 v252, 2, v252\nv_bfe_u32 v253, v251, 3, 2\nv_add_u32 v252, v252, v253\nv_and_b32 v253, 1, v251\nv_lshlrev_b32 v253, 3, v253\nv_lshrrev_b32 v251, 5, v251")
        else:
            A("v_bfe_u32 v252, v251, 2, 1\nv_lshlrev_b32 v252, 3, v252\nv_bfe_u32 v253, v251, 3, 3\nv_add_u32 v252, v252, v253\nv_and_b32 v253, 3, v251\nv_lshlrev_b32 v253, 2, v253\nv_lshrrev_b32 v251, 6, v251")
        A("v_add_u32 v251, v251, v253\nv_lshl_add_u32 v251, v252, 4, v251\nv_cmp_gt_u32 vcc, 16, v1\nv_cndmask_b32 v250, v251, v250, vcc")
    A("v_lshlrev_b32 v250, 7, v250")

def wd_rest(A):
    for st_ in range(27, 40): A(*wd_op(st_, "dr"))

def k4_main(A):
    ACC, AF, NAF = 32, 64, 8
    XG = 96
    def act_op(k):
        t = "s_add_u32 s44, s44, 4096\n" if (k and k % 4 == 0) else ""
        if opt("rot", 0) and k and k % 4 == 0:
            t = f"s_mov_b32 s44, s{S_AE}\n" if k == 40 else t + f"s_cmp_eq_u32 s44, s{S_AE}\ns_cselect_b32 s44, s{S_AB}, s44\n"
        return (t + f"buffer_load_dwordx4 {a(4*k,4)}, v4, {srd(S_WS)}, s44 offen offset:{(k%4)*1024} {LDP('a')}", None)
    H0 = opt("a0", 14)
    for k in range(H0): A(act_op(k)[0])
    TL = opt("k4tail", 4)
    order4 = [(k, t) for k in range(43 - TL) for t in range(2)] + [(k, t) for t in range(2) for k in range(43 - TL, 43)]
    def frag_read(n):
        k, t = order4[n]
        ad = WD_ORDER[k]*4096
        base = (("v6", "v7"), ("v14", "v15"), ("v16", "v17"))[ad >> 16][t]
        off = ad & 0xffff
        b = AF + (n % NAF)*4
        return f"ds_read_b64_tr_b16 {v(b,2)}, {base} offset:{off}\nds_read_b64_tr_b16 {v(b+2,2)}, {base} offset:{off+1024}"
    side = []
    n0 = 0
    for k in range(H0, 43): side.append((n0, *act_op(k))); n0 += opt("astep", 1)
    PF = NAF - 2
    N = 86
    ts(A, "issued4")
    for n in range(PF): A(frag_read(n))
    RS = 272
    early = []
    for n in range(N):
        k, t = order4[n]
        if n % 2 == 0: A.touch_regs([("v", AF+((n+1)%NAF)*4+3)])
        A(f"v_mfma_f32_32x32x16_bf16 {v(ACC+16*t,16)}, {v(AF+(n%NAF)*4,4)}, {a(4*k,4)}, {v(ACC+16*t,16) if k else 0}")
        if n == 0: ts(A, "first4"); tc(A, "first4")
        if side and side[0][0] <= n:
            _, tx, tag = side.pop(0); A(tx, tag=tag)
        if n == 47:
            A.wait_tag("dr"); A("s_barrier")
            for st_ in range(40, 43): A(*wd_op(st_, "do"))
            A(f"buffer_load_dwordx4 {v(XG,4)}, v10, {srd(S_WS)}, s46 offen {LDP('x')}")
            A(f"buffer_load_dwordx4 {v(XG+4,4)}, v10, {srd(S_WS)}, s48 offen {LDP('x')}")
            A(f"buffer_load_dwordx4 {v(XG+8,4)}, v11, {srd(S_WS)}, s47 offen sc1")
            A(f"buffer_load_dwordx4 {v(XG+12,4)}, v11, {srd(S_WS)}, s47 offen offset:16 sc1")
        if n == 73:
            A.wait_tag("do"); A("s_barrier")
            A(f"""
            s_mul_i32 s51, s3, {32*RS}
            v_and_b32 v18, 31, v1
            v_mul_u32_u24 v18, {RS}, v18
            v_bfe_u32 v19, v1, 5, 1
            v_lshl_add_u32 v18, v19, 4, v18
            v_add_u32 v18, s51, v18
            v_mul_u32_u24 v19, {RS}, v8
            v_lshl_add_u32 v19, v9, 5, v19
            """)
        if n + PF < N: A(frag_read(n+PF))
        if TL >= 3 and n == N - TL + 1: early = list(range(4))
        if early and n >= N - TL + 1:
            for _ in range(-(-len(early) // (N - n))):
                j = early.pop(0); A(f"ds_write_b128 v18, {v(ACC+4*j,4)} offset:{j*32}")
    assert not side
    ts(A, "mfma4"); tc(A, "mfma4")
    XF = 112
    for it in range(2):
        for h in range(4): A(f"v_lshlrev_b32 v{XF+it*8+2*h}, 16, v{XG+it*4+h}\nv_and_b32 v{XF+it*8+2*h+1}, 0xffff0000, v{XG+it*4+h}")
    for t in range(1 if TL >= 3 else 0, 2):
        for j in range(4):
            A(f"ds_write_b128 v18, {v(ACC+16*t+4*j,4)} offset:{t*128+j*32}")
    A("s_waitcnt lgkmcnt(0)\ns_barrier")
    RD = 128
    for it in range(2):
        for kh in range(2):
            for hf in range(2):
                A(f"ds_read_b128 {v(RD+it*16+kh*8+hf*4,4)}, v19 offset:{(kh*64+it*32)*RS+hf*16}")
    for it in range(2):
        z = RD + it*16
        for h in range(4): A(f"v_pk_add_f32 {v(z+2*h,2)}, {v(z+2*h,2)}, {v(z+8+2*h,2)}")
        for h in range(4): A(f"v_pk_fma_f32 {v(z+2*h,2)}, {v(z+2*h,2)}, {v(XG+8+2*h,2)}, {v(XF+it*8+2*h,2)}")
        if opt("scale", 0):
            for h in range(8): A(f"v_mul_f32 v{z+h}, {fbits(1 + opt('scale', 0)/1000)}, v{z+h}")
        for h in range(4): A(f"v_cvt_pk_bf16_f32 v{z+8+h}, v{z+2*h}, v{z+2*h+1}")
        A(f"buffer_store_dwordx4 {v(z+8,4)}, v12, {srd(S_OUT)}, s{49+it} offen {opt('outsc', 'sc1')}")

def LOC(c): return "" if c in opt("loc", "") else "sc1"
def LDP(c): return opt("ldp", "nt") if c in opt("loc", "") else "sc1"
def PLP(c): return opt("plp", "nt") if c in opt("loc", "") else "sc1"
def flag_set(A, soff, keep=0, reset=True, c="-"):
    sk = A.label("fs")
    A(f"""
    s_waitcnt vmcnt({keep}) lgkmcnt(0)
    s_barrier
    s_cmp_lg_u32 s3, 0
    s_cbranch_scc1 {sk}
    v_mov_b32 v250, 0
    v_mov_b32 v251, s{S_TOK}
    s_mov_b64 exec, 1
    buffer_store_dword v251, v250, {srd(S_WS)}, s{soff} offen {LOC(c)}
    s_mov_b64 exec, -1
    {sk}:
    """)
    A.reset()

def late_prefetch(A, chunks, do_touch, nonln):
    n = 0
    if do_touch: touch(A, nonln=nonln); n += 3
    wchunks(A, chunks); n += 6*len(list(chunks))
    return n

def poll(A, kind, soff, others=None, after0=None):
    sk, lp, w0, jn = A.label("pk"), A.label("pl"), A.label("p0"), A.label("pj")
    A(f"s_cmp_eq_u32 s3, 0\ns_cbranch_scc1 {w0}")
    if others: others(A)
    A(f"s_branch {jn}\n{w0}:\ns_mov_b32 s{S_CNT}, 0")
    shrink = opt("shrink", 1)
    slp = f"s_sleep {opt('slp', 0)}\n" if opt("slp", 0) else ""
    if kind == "l16": A("v_lshlrev_b32 v250, 7, v2")
    elif kind.startswith("s64"): A("v_lshlrev_b32 v250, 6, v1")
    NG = int(kind[-1]) if kind.startswith("s64") else 0
    if not NG:
        if shrink: A(f"s_mov_b64 exec, {'0xffffff' if kind == 'lst' else '0xffff'}")
        A(f"""
        {lp}:
        buffer_load_dword v252, v250, {srd(S_WS)}, s{soff} offen {PLP('h' if kind == 'l16' else 'a')}
        s_add_u32 s{S_CNT}, s{S_CNT}, 1
        s_waitcnt vmcnt(0)
        v_cmp_ne_u32 vcc, s{S_TOK}, v252
        s_cmp_ge_u32 s{S_CNT}, {MAXPOLL}
        s_cbranch_scc1 {sk}
        """)
        if shrink: A(f"s_and_b64 exec, exec, vcc\ns_cbranch_execz {sk}\n{slp}s_branch {lp}")
        else: A(f"{slp}s_cbranch_vccnz {lp}")
        A(f"{sk}:\ns_mov_b64 exec, -1")
    else:
        for j in range(1, 4): A(f"s_add_u32 s{71+j}, s{soff}, {j*4096}")
        if opt("pre1", 0):
            l1, d1 = A.label("p1"), A.label("p2")
            A(f"""
            s_and_b32 s92, s2, 127
            s_lshl_b32 s92, s92, 6
            s_add_u32 s92, s92, s{soff}
            v_mov_b32 v251, 0
            s_mov_b64 exec, 1
            {l1}:
            buffer_load_dword v252, v251, {srd(S_WS)}, s92 offen sc1
            s_add_u32 s{S_CNT}, s{S_CNT}, 1
            s_waitcnt vmcnt(0)
            v_cmp_ne_u32 vcc, s{S_TOK}, v252
            s_cmp_ge_u32 s{S_CNT}, {MAXPOLL}
            s_cbranch_scc1 {d1}
            s_cbranch_vccnz {l1}
            {d1}:
            s_mov_b64 exec, -1
            """)
        M = [84, 86, 88, 90]
        for j in range(4): A(f"s_mov_b64 s[{M[j]}:{M[j]+1}], {-1 if j < NG else 0}")
        A(f"{lp}:")
        for j in range(NG):
            sj = A.label("ps")
            A(f"s_mov_b64 exec, s[{M[j]}:{M[j]+1}]\ns_cbranch_execz {sj}")
            A(f"buffer_load_dword v{252+j}, v250, {srd(S_WS)}, s{soff if j == 0 else 71+j} offen sc1\n{sj}:")
        A(f"s_add_u32 s{S_CNT}, s{S_CNT}, 1\ns_waitcnt vmcnt(0)")
        for j in range(NG):
            A(f"s_mov_b64 exec, s[{M[j]}:{M[j]+1}]\nv_cmp_ne_u32 s[{M[j]}:{M[j]+1}], s{S_TOK}, v{252+j}" if shrink else f"s_mov_b64 exec, -1\nv_cmp_ne_u32 s[92:93], s{S_TOK}, v{252+j}\ns_cmp_lg_u64 s[92:93], 0\ns_cselect_b64 s[{M[j]}:{M[j]+1}], -1, 0")
        A(f"""
        s_or_b64 s[92:93], s[84:85], s[86:87]
        s_or_b64 s[94:95], s[88:89], s[90:91]
        s_cmp_ge_u32 s{S_CNT}, {MAXPOLL}
        s_cbranch_scc1 {sk}
        s_or_b64 s[92:93], s[92:93], s[94:95]
        s_cbranch_scc0 {sk}
        {slp}s_branch {lp}
        {sk}:
        s_mov_b64 exec, -1
        """)
    A.reset()
    if after0: after0(A)
    A(f"{jn}:\ns_barrier")

def build():
    A = Asm()
    name = NAME + "_kernel"
    kernel_begin(A, name)
    done = A.label("done")
    if TS: A("s_memrealtime s[62:63]\ns_waitcnt lgkmcnt(0)")
    entry(A, done)
    if TS:
        A("v_mov_b32 v248, 0\nv_writelane_b32 v248, s62, 0"); _ts["n"] = 1; _ts["names"] = ["entry"]
    m, i_, e = A.label("k1mod"), A.label("k1idle"), A.label("k1end")
    tok = f"s_waitcnt lgkmcnt(0)\ns_mul_i32 s{S_TOK}, s{S_TOK}, 0x9e3779b1\ns_add_u32 s{S_TOK}, s{S_TOK}, 0x7f4a7c15\ns_lshl_b32 s62, s2, 6\ns_add_u32 s62, s62, {WS_F1}"
    pfA = range(opt("pfA", 0)); tm = opt("touch", 11)
    A(f"s_cmp_ge_u32 s2, 128\ns_cbranch_scc1 {m}")
    k1_ln(A)
    ts(A, "stiss")
    if tm == 9: touch(A, "gu")
    keep = (2 if tm == 9 else 0) + late_prefetch(A, pfA if opt("pfApos", 0) == 3 else [], tm == 5, False)
    A(tok); flag_set(A, 62, keep)
    A(f"s_branch {e}\n{m}:\ns_cmp_ge_u32 s2, 224\ns_cbranch_scc1 {i_}")
    A.reset()
    k1_mod(A)
    tsx(A, 62)
    A.reset()
    keep = late_prefetch(A, pfA if opt("pfMpos", 0) == 3 else [], tm in (5, 6), tm == 6)
    A(tok); flag_set(A, 62, keep)
    if tm == 4 and opt("tafter", 0): touch(A, nonln=True)
    A(f"s_branch {e}\n{i_}:")
    A.reset()
    A(small_srd(S_X, 2097152) + "\n" + small_srd(S_C, 1024) + "\ns_waitcnt lgkmcnt(0)")
    common_setup(A)
    A(tok); flag_set(A, 62, 63)
    if opt("idledelay", 1):
        A(f"v_lshlrev_b32 v4, 2, v0\nbuffer_load_dword v8, v4, {srd(S_C)}, 0 offen\ns_waitcnt vmcnt(0)")
    if tm == 7: touch_early(A)
    if tm == 9: touch(A, "gu")
    if tm in (10, 11): touch(A, "gu", nonln=True)
    if tm in (2, 5): touch(A)
    if tm in (3, 4, 6): touch(A, nonln=True)
    wchunks(A, pfA)
    A(f"{e}:")
    A.reset()
    ts(A, "f1set")
    if opt("cpf", 0) & 1: A(code_pf_text(".Lk2code", 249, 48))
    k2_pre(A, (lambda: wchunks(A, range(opt("pfA", 0), opt("pfA", 0) + opt("pf1", 3)))) if not opt("prefirst", 1) and not opt("w3", 1) else None)
    if opt("touch", 11) == 7: touch_late_setup(A)
    if opt("touch", 11) == 7 and opt("tlate", 0) == 0: touch_late(A)
    ts(A, "pre")
    w3 = opt("w3", 1)
    if opt("prefirst", 1) and not w3: wchunks(A, range(opt("pfA", 0), opt("pfA", 0) + opt("pf1", 3)))
    A(f"s_mov_b32 s63, {WS_F1}")
    poll(A, "s64x2" if opt("sepmod", 1) else "s64x4", 63, others=(lambda A_: w3_chunks(A_, range(opt("pf1", 3)))) if w3 else None)
    A.reset()
    ts(A, "sync1")
    A(".Lk2code:")
    k2_main(A)
    ts(A, "stiss2")
    keep = late_prefetch(A, range(opt("pfA", 0) + opt("pf1", 3), opt("pfB", 4)) if opt("pfBpos", 1) == 3 else [], False, False)
    flag_set(A, 62, keep + (4 if opt("latex1", 2) == 1 else 0), c="h")
    ts(A, "f2set")
    wchunks(A, range(opt("pfB", 4), opt("pfB", 4) + opt("pf3", 2)))
    if opt("cpf", 0) & 2: A(code_pf_text(".Lk3code", 249, 64))
    k3_pre(A)
    idle3 = A.label("k3idle")
    A(f"s_cmp_eq_u32 s37, 15\ns_cbranch_scc1 {idle3}")
    poll(A, "l16", 62)
    A.reset()
    ts(A, "sync2")
    A(".Lk3code:")
    k3_main(A, idle3)
    flag_set(A, 61, c="a")
    ts(A, "f3set")
    k4_pre(A)
    poll(A, "lst", 62, others=wd_rest, after0=wd_rest)
    ts(A, "sync3")
    k4_main(A)
    sk = A.label("ep")
    A(f"""
    s_or_b32 s63, s2, s3
    s_cmp_lg_u32 s63, 0
    s_cbranch_scc1 {sk}
    v_mov_b32 v250, 0
    v_mov_b32 v251, s{S_TOK}
    s_mov_b32 s63, {WS_EP}
    s_mov_b64 exec, 1
    buffer_store_dword v251, v250, {srd(S_WS)}, s63 offen sc1
    s_mov_b64 exec, -1
    {sk}:
    """)
    ts(A, "end")
    probe_end(A)
    ts_flush(A)
    A(f"{done}:\n.Lend:\ns_endpgm")
    if opt("jit", 0):
        import random
        rnd = random.Random(opt("jit", 0)); out = []
        def delay():
            lb = A.label("jit")
            c = f"s_cmp_eq_u32 s3, {rnd.randrange(4)}\ns_cbranch_scc0 {lb}" if rnd.random() < 0.6 else f"s_bitcmp1_b32 s2, {rnd.randrange(8)}\ns_cbranch_scc0 {lb}"
            return [Ins(x) for x in (c + f"\ns_sleep {rnd.randrange(2, 40)}\n{lb}:").split("\n")]
        for I in A.ins:
            if I.op == "s_barrier":
                if rnd.random() < 0.7: out += delay()
                out.append(I)
                if rnd.random() < 0.7: out += delay()
            else: out.append(I)
        A.ins = out
    code = A.finalize()
    return [(None, (256,1,1), (256,1,1), LDS_TOTAL)], code, [kernel_desc(name, 256, 172)]

if __name__ == "__main__":
    hdr = [l.rstrip("\n") for l in open("cdna_kernels/%s.s.ref" % NAME) if l.startswith(";") and "@launch" not in l][:15]
    out = sys.argv[1]
    for kv in sys.argv[2:]:
        k_, v_ = kv.split("=")
        OPT[k_] = int(v_) if v_.lstrip("-").isdigit() else v_
    TS = bool(opt("ts", 0)); PROBE = opt("probe", None)
    launches, code, descs = build()
    open(out, "w").write(file_text(hdr, launches, code, descs))
    if TS: json.dump([_ts["names"]], open(out[:-2] + ".json", "w"))
```

```python
import sys, struct, math, json
from asmlib import *

NAME = "adaLN_cond__spectral_fnet__swiglu_ffn__prompt"
def fbits(x): return "0x%08x" % struct.unpack("<I", struct.pack("<f", x))[0]
OPT = {}
def opt(k, d): return OPT.get(k, d)

WS_U   = 0
WS_MOD = 0x240000
WS_H2  = 0x300000
WS_X1  = 0x500000
WS_ACT = 0x800000
WS_FLG = 0xE00000
WS_TS  = 0xF00000
WS_SIZE = 0x1000000
WS_EP  = WS_FLG
WS_F1  = WS_FLG + 0x1000
WS_F2  = WS_FLG + 0x10000
WS_F3  = WS_FLG + 0x20000
def SLOTSTR(): return 65536 + opt("upad", 0)
def USLOT(): return 512 if opt("upm", 0) else SLOTSTR()
def UOCT(): return 16384 if opt("upm", 0) else 512
def UN2(): return 65536 + opt("upad", 0) if opt("upm", 0) else 2048
MAXPOLL = int(__import__('os').environ.get('MAXPOLL', '60000'))
LDS_TOTAL = 163840
SLOT = 24640; UOFF = 12320
XCS = 1040
XWS = 16 * XCS
XIMG = LDS_TOTAL - 4 * XWS
XTAB = XIMG - 384
MW = XIMG
MSC = MW + 32768
MRED = MSC + 1024
K2EX = 123200
K2HB = K2EX + 18432
S_X, S_WG, S_WU, S_WD, S_C, S_WM, S_OUT, S_WS = 4, 8, 12, 16, 20, 24, 28, 32
S_TOK, S_CNT, S_SL, S_WL, S_DG, S_DL, S_T, S_T2 = 64, 65, 66, 67, 68, 69, 70, 75
V_W = 240
V_D = 243
def srd(b): return s(b, 4)
LOG2E = fbits(-math.log2(math.e))

TS = False
PROBE = None
_ts = {"n": 0, "names": []}
def ts(A, name=None, cyc=False):
    if not TS: return
    if opt("tsonly", None) and name not in opt("tsonly", "").split("+") and name not in ("f1set", "end"): return
    n = _ts["n"]; _ts["n"] += 1
    _ts["names"].append(("c:" if cyc else "") + name)
    A(f"{'s_memtime' if cyc else 's_memrealtime'} s[98:99]\ns_waitcnt lgkmcnt(0)\nv_writelane_b32 v248, s98, {n}")
def tsx(A, lane):
    if TS: A(f"s_memrealtime s[98:99]\ns_waitcnt lgkmcnt(0)\nv_writelane_b32 v248, s98, {lane}")
def tc(A, name=None): ts(A, name, True)
def probe_end(A):
    if PROBE is None: return
    lp = A.label("pr")
    idx = _ts["names"].index(PROBE)
    A(f"""
    s_waitcnt vmcnt(0) lgkmcnt(0)
    v_readlane_b32 s90, v248, 0
    v_readlane_b32 s91, v248, {idx}
    s_nop 4
    s_sub_u32 s91, s91, s90
    s_cmp_gt_u32 s91, 20000
    s_cselect_b32 s91, 0, s91
    s_add_u32 s91, s91, 6000
    {lp}:
    s_memrealtime s[92:93]
    s_waitcnt lgkmcnt(0)
    s_sub_u32 s92, s92, s90
    s_cmp_lt_u32 s92, s91
    s_cbranch_scc1 {lp}
    """)
def ts_flush(A):
    if not TS: return
    sk = A.label("tsk")
    A(f"s_waitcnt vmcnt(0) lgkmcnt(0)\ns_cmp_lg_u32 s3, 0\ns_cbranch_scc1 {sk}")
    A(f"s_lshl_b32 s64, s2, 8\ns_add_u32 s64, s64, {WS_TS}\nv_lshlrev_b32 v1, 2, v1")
    A(f"buffer_store_dword v248, v1, {srd(S_WS)}, s64 offen")
    A(f"s_waitcnt vmcnt(0)\n{sk}:")

def bf16r(A, dst, src):
    A(f"v_cvt_pk_bf16_f32 {dst}, {src}, {src}\nv_lshlrev_b32 {dst}, 16, {dst}")

def sl_expr(d=38, t=39):
    if opt("T", 4) == 2:
        return f"s_lshr_b32 s{d}, s2, 4"
    if opt("T", 4) == 4:
        return f"s_and_b32 s{d}, s2, 1\ns_lshl_b32 s{d}, s{d}, 3\ns_lshr_b32 s{t}, s2, 5\ns_add_u32 s{d}, s{d}, s{t}"
    return f"s_and_b32 s{d}, s2, 3\ns_lshl_b32 s{d}, s{d}, 2\ns_lshr_b32 s{t}, s2, 6\ns_add_u32 s{d}, s{d}, s{t}"
def rb_expr():
    if opt("T", 4) == 2:
        return "s_and_b32 s36, s2, 7\ns_lshl_b32 s36, s36, 1\ns_bfe_u32 s39, s2, 0x10003\ns_add_u32 s36, s36, s39"
    if opt("T", 4) == 4:
        return "s_bfe_u32 s36, s2, 0x20001\ns_lshl_b32 s36, s36, 2\ns_bfe_u32 s39, s2, 0x20003\ns_add_u32 s36, s36, s39"
    return "s_bfe_u32 s36, s2, 0x10002\ns_lshl_b32 s36, s36, 3\ns_bfe_u32 s39, s2, 0x30003\ns_add_u32 s36, s36, s39"
def entry(A, done):
    CP = opt("codepf", 1)
    A(f"""
    s_cmp_ge_u32 s2, 256
    s_cbranch_scc1 {done}
    s_load_dwordx2 s[4:5], s[0:1], 0
    s_load_dwordx2 s[24:25], s[0:1], 80
    s_load_dwordx2 s[20:21], s[0:1], 72
    s_load_dwordx2 s[32:33], s[0:1], 104
    s_load_dwordx2 s[8:9], s[0:1], 48
    s_load_dwordx2 s[12:13], s[0:1], 56
    s_load_dwordx2 s[16:17], s[0:1], 64
    s_load_dwordx2 s[28:29], s[0:1], 88
    v_lshrrev_b32 v2, 6, v0
    v_and_b32 v1, 63, v0
    v_readfirstlane_b32 s3, v2
    """)
    if CP:
        A(f"""
        s_getpc_b64 s[40:41]
        s_and_b32 s40, s40, 0xffffff00
        s_lshr_b32 s42, s2, 3
        s_lshl_b32 s42, s42, 2
        s_add_u32 s42, s42, s3
        s_and_b32 s42, s42, {opt("cpmask", 15)}
        s_lshl_b32 s42, s42, 11
        v_and_b32 v250, 15, v0
        v_lshlrev_b32 v250, 7, v250
        v_add_u32 v250, s42, v250
        v_min_u32 v250, .Lend-{NAME}_kernel, v250
        global_load_dword v249, v250, s[40:41]
        """)
    A("v_and_b32 v2, 15, v0\nv_bfe_u32 v3, v0, 4, 2")

def common_setup(A, part=3, ln=False):
    if part & 1: common_early(A)
    if part & 2: common_late(A, ln)
def common_early(A):
    for b, sz in ((S_WG, 1409024), (S_WU, 1409024), (S_WD, 1409024), (S_OUT, 2097152), (S_WS, WS_SIZE)):
        A(f"s_mov_b32 s{b+2}, {sz}\ns_mov_b32 s{b+3}, 0x20000")
    A(f"s_add_u32 s72, s32, {WS_EP}\ns_addc_u32 s73, s33, 0\ns_load_dword s{S_TOK}, s[72:73], 0")
def common_late(A, ln):
    A(f"""
    {sl_expr(72, 73)}
    s_mul_i32 s{S_SL}, s72, 192
    s_cmp_eq_u32 s72, 15
    s_cselect_b32 s{S_SL}, 0x200000, s{S_SL}
    s_mul_i32 s{S_WL}, s3, 3072
    s_mul_i32 s72, s3, 192
    s_mov_b32 s73, 0x15555556
    """)
    for i in range(3):
        A(f"""
        v_add_u32 v{V_W+i}, s72, v1
        v_add_u32 v{V_W+i}, {64*i}, v{V_W+i}
        v_mul_hi_u32 v244, v{V_W+i}, s73
        v_mul_u32_u24 v245, 12, v244
        v_sub_u32 v{V_W+i}, v{V_W+i}, v245
        v_lshlrev_b32 v{V_W+i}, 4, v{V_W+i}
        v_mul_u32_u24 v244, 2752, v244
        v_add_u32 v{V_W+i}, v{V_W+i}, v244
        """)
    if opt("tlb", 0):
        A(f"""
        v_lshlrev_b32 v239, {opt("tlb", 0)}, v1
        v_add_u32 v239, 0x2ff000, v239
        v_min_u32 v239, {WS_SIZE - 64}, v239
        buffer_load_dword v235, v239, {srd(S_WS)}, 0 offen
        v_mov_b32 v239, 0
        buffer_load_dword v234, v239, {srd(S_OUT)}, 0 offen
        """)
    if not ln and opt("touch", 11) in (1, 2, 3, 4, 5, 6, 8, 9, 10, 11): touch_setup(A, opt("touch", 11) in (3, 4, 6, 10, 11))
V_W3 = 224
def w3_setup(A):
    A(f"s_sub_u32 s72, s3, 1\ns_lshl_b32 s96, s72, 12\ns_lshl_b32 s72, s72, 8\ns_mov_b32 s73, 0x15555556")
    for i in range(4):
        A(f"""
        v_add_u32 v{V_W3+i}, s72, v1
        v_add_u32 v{V_W3+i}, {64*i}, v{V_W3+i}
        v_mul_hi_u32 v244, v{V_W3+i}, s73
        v_mul_u32_u24 v245, 12, v244
        v_sub_u32 v{V_W3+i}, v{V_W3+i}, v245
        v_lshlrev_b32 v{V_W3+i}, 4, v{V_W3+i}
        v_mul_u32_u24 v244, 2752, v244
        v_add_u32 v{V_W3+i}, v{V_W3+i}, v244
        """)
def w3_chunks(A, chunks):
    w3_setup(A)
    for ch in chunks:
        A(f"s_add_u32 s{S_T2}, s{S_SL}, {ch*64*2752}")
        for mtx, sr in ((0, S_WG), (1, S_WU)):
            for i in range(4):
                A(f"s_add_u32 m0, s96, {ch*SLOT+mtx*UOFF+i*1024}\nbuffer_load_dwordx4 v{V_W3+i}, {srd(sr)}, s{S_T2} offen lds")
def code_pf_text(label, dst, nlines=64):
    here = f".Lpc_{label.strip('.')}"
    return f"""s_getpc_b64 s[72:73]
    {here}:
    s_add_u32 s72, s72, {label}-{here}
    s_addc_u32 s73, s73, 0
    v_min_u32 v{dst}, {nlines-1}, v1
    v_lshlrev_b32 v{dst}, 7, v{dst}
    v_min_u32 v{dst}, .Lend-{label}, v{dst}
    global_load_dword v{dst}, v{dst}, s[72:73]"""
def small_srd(b, sz): return f"s_mov_b32 s{b+2}, {sz}\ns_mov_b32 s{b+3}, 0x20000"

def touch_setup(A, nonln=False):
    n = 22 if nonln else 11
    A(f"""
    s_lshl_b32 s{S_T}, s2, 2
    s_add_u32 s{S_T}, s{S_T}, s3
    s_and_b32 s{S_T}, s{S_T}, {511 if nonln else 1023}
    s_mul_i32 s{S_T}, s{S_T}, {n}
    v_min_u32 v246, {n-1}, v1
    v_add_u32 v246, s{S_T}, v246
    v_lshlrev_b32 v246, 7, v246
    """)
def touch(A, which="gud", nonln=False):
    pol = opt("tpol", "")
    A(f"s_mov_b64 exec, {hex((1 << (22 if nonln else 11)) - 1)}")
    if "g" in which: A(f"buffer_load_dword v236, v246, {srd(S_WG)}, 0 offen {pol}")
    if "u" in which: A(f"buffer_load_dword v237, v246, {srd(S_WU)}, 0 offen {pol}")
    if "d" in which: A(f"buffer_load_dword v238, v246, {srd(S_WD)}, 0 offen {pol}")
    A("s_mov_b64 exec, -1")

def touch_early(A):
    rows = 64 * opt("terows", 5)
    n = (rows * 2752 // 128 + 127) // 128
    A(f"""
    s_sub_u32 s38, s2, 224
    s_lshl_b32 s38, s38, 2
    s_add_u32 s38, s38, s3
    s_mul_i32 s38, s38, {n}
    v_min_u32 v246, {n-1}, v1
    v_add_u32 v246, s38, v246
    v_lshlrev_b32 v246, 7, v246
    buffer_load_dword v247, v246, {srd(S_WG)}, 0 offen
    buffer_load_dword v245, v246, {srd(S_WU)}, 0 offen
    """)
    for j in range(1, (n + 63) // 64):
        A(f"""
        v_add_u32 v244, {64*j}, v1
        v_min_u32 v244, {n-1}, v244
        v_add_u32 v244, s38, v244
        v_lshlrev_b32 v244, 7, v244
        buffer_load_dword v239, v244, {srd(S_WG)}, 0 offen
        buffer_load_dword v238, v244, {srd(S_WU)}, 0 offen
        """)
def touch_late_setup(A):
    rows0 = 64 * opt("terows", 5)
    n = ((512 - rows0) * 2752 // 128 + 1023) // 1024
    A(f"""
    s_lshl_b32 s{S_T}, s2, 2
    s_add_u32 s{S_T}, s{S_T}, s3
    s_mul_i32 s71, s{S_T}, 11
    s_mul_i32 s{S_T}, s{S_T}, {n}
    s_add_u32 s{S_T}, s{S_T}, {rows0*2752//128}
    v_min_u32 v246, {max(n-1,0)}, v1
    v_add_u32 v246, s{S_T}, v246
    v_lshlrev_b32 v246, 7, v246
    v_min_u32 v247, 10, v1
    v_add_u32 v247, s71, v247
    v_lshlrev_b32 v247, 7, v247
    """)
def touch_late(A):
    A(f"""
    s_mov_b64 exec, 0x7ff
    buffer_load_dword v245, v246, {srd(S_WG)}, 0 offen
    buffer_load_dword v244, v246, {srd(S_WU)}, 0 offen
    buffer_load_dword v246, v247, {srd(S_WD)}, 0 offen
    s_mov_b64 exec, -1
    """)

def wchunk_ops(chunk, slot, tag):
    ops = []
    for mtx, sr in ((0, S_WG), (1, S_WU)):
        for i in range(3):
            t = f"s_add_u32 m0, s{S_WL}, {slot*SLOT+mtx*UOFF+i*1024}\n"
            if mtx == 0 and i == 0: t += f"s_add_u32 s{S_T2}, s{S_SL}, {chunk*64*2752}\n"
            t += f"buffer_load_dwordx4 v{V_W+i}, {srd(sr)}, s{S_T2} offen {opt('wpol','')} lds"
            ops.append((t, tag))
    return ops
def wchunks(A, chunks):
    for ch in chunks:
        for t, tag in wchunk_ops(ch, ch, f"w{ch}"): A(t, tag=tag)

def k1_ln(A):
    A(f"""
    s_and_b32 s38, s2, 7
    s_lshr_b32 s39, s2, 3
    s_lshr_b32 s40, s39, 2
    s_lshl_b32 s40, s40, 3
    s_add_u32 s36, s38, s40
    s_and_b32 s37, s39, 3
    v_lshrrev_b32 v4, 2, v1
    v_sub_u32 v5, 0, v3
    v_xor_b32 v5, v5, v1
    v_and_b32 v5, 3, v5
    v_lshlrev_b32 v4, 15, v4
    v_lshl_add_u32 v4, v5, 4, v4
    s_lshl_b32 s38, s3, 9
    s_add_u32 s38, s38, s36
    s_lshl_b32 s38, s38, 10
    s_mul_i32 s39, s3, {XWS}
    s_add_u32 s39, s39, {XIMG}
    {small_srd(S_X, 2097152)}
    s_waitcnt lgkmcnt(0)
    """)
    ts(A, "prolog")
    for i in range(16):
        A(f"s_add_u32 m0, s39, {i*(XCS-64)}")
        A(f"buffer_load_dwordx4 v4, {srd(S_X)}, s38 offen offset:{i*64} {opt('xpol','')} lds", tag=f"x{i}")
    common_setup(A, 1 if opt("lateset", 0) else 3, True)
    BC, NV = 16, 48
    A("""
    v_lshlrev_b32 v5, 3, v3
    v_cvt_f32_u32 v5, v5
    s_and_b32 s40, s3, 1
    s_lshl_b32 s40, s40, 4
    v_add_u32 v6, s40, v2
    v_cmp_eq_u32 vcc, 0, v6
    v_cvt_f32_u32 v6, v6
    v_mul_f32 v6, 0x3c800000, v6
    v_mov_b32 v8, 0x3e800000
    v_cndmask_b32 v9, v6, 0.5, vcc
    v_cndmask_b32 v10, v8, 0, vcc
    """)
    for ks in range(2):
        for j in range(8):
            A(f"v_add_f32 v{NV}, {fbits(32*ks+j)}, v5\nv_mul_f32 v{BC+ks*8+j}, v{NV}, v6\nv_fma_f32 v{BC+16+ks*8+j}, v{NV}, v9, v10")
    for i in range(32): A(f"v_cos_f32 v{BC+i}, v{BC+i}")
    ONES, G, SA = 112, 116, 120
    for i in range(4): A(f"v_mov_b32 v{ONES+i}, 0x3f803f80")
    A(f"""
    v_lshrrev_b32 v5, 2, v2
    v_sub_u32 v5, 0, v5
    v_xor_b32 v5, v5, v3
    v_and_b32 v5, 3, v5
    v_lshlrev_b32 v5, 4, v5
    v_lshl_add_u32 v5, v2, 6, v5
    v_add_u32 v5, s39, v5
    v_lshrrev_b32 v6, 1, v3
    v_mul_u32_u24 v6, {XWS}, v6
    v_and_b32 v7, 3, v1
    v_mul_u32_u24 v7, {XCS}, v7
    v_add_u32 v6, v6, v7
    v_and_b32 v7, 1, v3
    v_lshl_add_u32 v6, v7, 9, v6
    v_bfe_u32 v8, v1, 2, 2
    v_lshl_add_u32 v6, v8, 6, v6
    s_lshr_b32 s41, s3, 1
    s_mul_i32 s42, s41, {8*XCS}
    s_add_u32 s42, s42, {XIMG}
    v_add_u32 v6, s42, v6
    v_lshlrev_b32 v7, 1, v7
    v_xor_b32 v8, s37, v7
    v_lshl_add_u32 v11, v8, 4, v6
    v_xor_b32 v8, 3, v8
    v_lshl_add_u32 v12, v8, 4, v6
    v_add_u32 v12, 256, v12
    s_lshl_b32 s42, s3, 6
    s_add_u32 s42, s42, {XTAB}
    v_lshl_add_u32 v7, v2, 2, s42
    s_lshl_b32 s42, s3, 5
    s_add_u32 s42, s42, {XTAB+256}
    v_lshl_add_u32 v13, v2, 1, s42
    v_lshlrev_b32 v8, 5, v3
    v_add_u32 v8, {XTAB}, v8
    v_lshlrev_b32 v14, 4, v3
    v_add_u32 v14, {XTAB+256}, v14
    s_mov_b32 s42, 0x22222222
    s_mov_b32 s43, 0x22222222
    s_mov_b32 s44, 0x44444444
    s_mov_b32 s45, 0x44444444
    s_mov_b32 s46, 0x88888888
    s_mov_b32 s47, 0x88888888
    v_add_u32 v9, s40, v2
    v_mul_u32_u24 v9, {USLOT()}, v9
    v_lshl_add_u32 v9, v3, 4, v9
    s_mul_i32 s48, s36, {UN2()}
    s_mul_i32 s49, s37, {UOCT()}
    s_add_u32 s48, s48, s49
    s_lshl_b32 s49, s41, 7
    s_add_u32 s48, s48, s49
    s_add_u32 s48, s48, {WS_U}
    """)
    ts(A, "const")
    R = 48
    pfl = [op for ch in range(opt("pfA", 0)) for op in wchunk_ops(ch, ch, f"w{ch}")] if opt("pfApos", 0) == 2 else []
    for i in range(16):
        A.wait_tag(f"x{i}")
        A(f"ds_read_b128 {v(R+4*i,4)}, v5 offset:{i*XCS}")
        for _ in range(2 if i >= 14 - len(pfl)//2 + 7 else 1):
            if pfl and i >= opt("pfAi", 2): A(*pfl.pop(0))
        if i >= 1:
            k = i - 1
            A(f"v_mfma_f32_16x16x32_bf16 {v(G,4)}, {v(R+4*k,4)}, {v(R+4*k,4)}, {v(G,4) if k else 0}")
            A(f"v_mfma_f32_16x16x32_bf16 {v(SA,4)}, {v(ONES,4)}, {v(R+4*k,4)}, {v(SA,4) if k else 0}")
    A("s_barrier")
    late_pf = pfl
    A(f"v_mfma_f32_16x16x32_bf16 {v(G,4)}, {v(R+60,4)}, {v(R+60,4)}, {v(G,4)}")
    A(f"v_mfma_f32_16x16x32_bf16 {v(SA,4)}, {v(ONES,4)}, {v(R+60,4)}, {v(SA,4)}")
    ts(A, "xarr")
    if opt("touch", 11) == 2: touch(A)
    if opt("pfA", 0) and opt("pfApos", 0) == 1: wchunks(A, range(opt("pfA", 0)))
    X = 128
    for tl in range(4):
        for ks in range(2):
            b = X + (tl*2+ks)*4
            off = ks*2*XWS + (tl >> 1)*4*XCS + 8*(tl & 1)
            A(f"ds_read_b64_tr_b16 {v(b,2)}, v11 offset:{off}\nds_read_b64_tr_b16 {v(b+2,2)}, v12 offset:{off}")
    A(f"""
    v_cndmask_b32 v10, v{G}, v{G+1}, s[42:43]
    v_cndmask_b32 v10, v10, v{G+2}, s[44:45]
    v_cndmask_b32 v10, v10, v{G+3}, s[46:47]
    v_mul_f32 v15, 0xbb000000, v{SA}
    v_mul_f32 v10, 0x3b000000, v10
    v_fma_f32 v10, -v15, v15, v10
    v_max_f32 v10, 0, v10
    v_cvt_pk_bf16_f32 v15, v15, v10
    v_and_b32 v10, 0xffff0000, v15
    v_add_f32 v10, {fbits(1e-5)}, v10
    """)
    bf16r(A, "v10", "v10")
    A("v_sqrt_f32 v10, v10")
    bf16r(A, "v10", "v10")
    A("""
    v_rcp_f32 v10, v10
    s_mov_b32 exec_lo, 0x00f0000f
    s_mov_b32 exec_hi, 0xf0000f00
    ds_write_b16 v13, v15
    ds_write_b32 v7, v10
    s_mov_b64 exec, -1
    s_waitcnt lgkmcnt(0)
    s_barrier
    """)
    ts(A, "stats")
    for op in late_pf: A(*op)
    TR, AM, BP, CM, ACC, PK = 48, 64, 72, 88, 160, 96
    for ks in range(2):
        for hf in range(2): A(f"ds_read_b128 {v(TR+ks*8+hf*4,4)}, v8 offset:{ks*128+hf*16}")
        A(f"ds_read_b128 {v(AM+ks*4,4)}, v14 offset:{ks*64}")
    for ks in range(2):
        for c in range(2):
            for jj in range(4):
                b = BC + c*16 + ks*8 + 2*jj
                A(f"v_pk_mul_f32 {v(b,2)}, {v(b,2)}, {v(TR+ks*8+2*jj,2)}")
            for jj in range(4):
                b = BC + c*16 + ks*8 + 2*jj
                A(f"v_cvt_pk_bf16_f32 v{BP+(c*2+ks)*4+jj}, v{b}, v{b+1}")
    for ks in range(2):
        for c in range(2):
            A(f"v_mfma_f32_16x16x32_bf16 {v(CM+4*c,4)}, {v(AM+ks*4,4)}, {v(BP+(c*2+ks)*4,4)}, {v(CM+4*c,4) if ks else 0}")
    for tl in range(4):
        for c in range(2):
            acc = ACC + (tl*2+c)*4
            A(f"v_mfma_f32_16x16x32_bf16 {v(acc,4)}, {v(X+(tl*2)*4,4)}, {v(BP+(c*2)*4,4)}, {v(CM+4*c,4)}")
        for c in range(2):
            acc = ACC + (tl*2+c)*4
            A(f"v_mfma_f32_16x16x32_bf16 {v(acc,4)}, {v(X+(tl*2+1)*4,4)}, {v(BP+(c*2+1)*4,4)}, {v(acc,4)}")
        if tl >= 1: k1_store(A, tl-1, ACC, PK)
    k1_store(A, 3, ACC, PK)

def k1_store(A, tl, ACC, PK):
    acc = ACC + tl*8; pk = PK + tl*4
    for r in range(4): A(f"v_cvt_pk_bf16_f32 v{pk+r}, v{acc+r}, v{acc+4+r}")
    A(f"buffer_store_dwordx4 {v(pk,4)}, v9, {srd(S_WS)}, s48 offen offset:{(tl&1)*256+(tl>>1)*64} sc1", tag="st")

def k1_mod(A):
    A(f"""
    s_and_b32 s38, s2, 7
    s_lshr_b32 s39, s2, 3
    s_mul_i32 s38, s38, 12
    s_add_u32 s36, s38, s39
    s_sub_u32 s36, s36, 16
    v_lshlrev_b32 v4, 2, v0
    {small_srd(S_C, 1024)}
    {small_srd(S_WM, 3145728)}
    {small_srd(S_X, 2097152)}
    v_lshrrev_b32 v5, 2, v1
    v_mul_u32_u24 v5, 6144, v5
    v_and_b32 v6, 3, v1
    v_lshl_add_u32 v5, v6, 4, v5
    s_mul_i32 s38, s3, {128*6144}
    s_lshl_b32 s39, s36, 6
    s_add_u32 s38, s38, s39
    s_lshl_b32 s39, s3, 13
    s_add_u32 s39, s39, {MW}
    s_waitcnt lgkmcnt(0)
    buffer_load_dword v8, v4, {srd(S_C)}, 0 offen
    """)
    if opt("touch", 11) == 3: touch(A, nonln=True)
    if opt("moddelay", 0): A("v_mov_b32 v8, v8")
    for i in range(8):
        A(f"s_add_u32 m0, s39, {i*1024}")
        if i: A(f"s_add_u32 s38, s38, {16*6144}")
        A(f"buffer_load_dwordx4 v5, {srd(S_WM)}, s38 offen {opt('mpol','nt')} lds", tag="wm")
    common_setup(A)
    A(f"""
    v_bfe_u32 v6, v1, 2, 2
    v_lshl_add_u32 v6, v3, 3, v6
    v_lshlrev_b32 v6, 6, v6
    v_and_b32 v7, 3, v1
    v_lshl_add_u32 v6, v7, 3, v6
    v_add_u32 v6, s39, v6
    v_add_u32 v4, {MSC}, v4
    s_lshl_b32 s40, s3, 8
    s_add_u32 s40, s40, {MSC}
    v_lshl_add_u32 v7, v3, 4, s40
    v_lshlrev_b32 v9, 16, v8
    v_and_b32 v10, 0xffff0000, v8
    v_mul_f32 v11, {LOG2E}, v9
    v_mul_f32 v12, {LOG2E}, v10
    v_exp_f32 v11, v11
    v_exp_f32 v12, v12
    v_add_f32 v11, 1.0, v11
    v_add_f32 v12, 1.0, v12
    v_rcp_f32 v11, v11
    v_rcp_f32 v12, v12
    v_mul_f32 v9, v9, v11
    v_mul_f32 v10, v10, v12
    v_cvt_pk_bf16_f32 v9, v9, v10
    ds_write_b32 v4, v9
    """)
    SF, WF, ACC = 16, 32, 64
    A("s_waitcnt lgkmcnt(0)")
    tsx(A, 60)
    for ks in range(4): A(f"ds_read_b128 {v(SF+4*ks,4)}, v7 offset:{ks*64}")
    A(f"""
    v_and_b32 v10, 31, v1
    s_lshr_b32 s40, s36, 4
    s_and_b32 s41, s36, 15
    s_lshl_b32 s41, s41, 5
    v_add_u32 v10, s41, v10
    v_lshrrev_b32 v15, 8, v10
    v_lshlrev_b32 v15, 8, v15
    v_bfe_u32 v72, v10, 2, 2
    v_lshl_add_u32 v15, v72, 6, v15
    v_bfe_u32 v72, v10, 4, 4
    v_lshl_add_u32 v15, v72, 2, v15
    v_and_b32 v72, 3, v10
    v_add_u32 v15, v15, v72
    v_bfe_u32 v72, v10, 3, 2
    v_lshlrev_b32 v73, 7, v72
    v_bfe_u32 v72, v10, 7, 2
    v_lshl_add_u32 v73, v72, 5, v73
    v_and_b32 v72, 7, v10
    v_lshl_add_u32 v73, v72, 2, v73
    v_bfe_u32 v72, v10, 5, 2
    v_add_u32 v73, v73, v72
    s_cmp_lt_u32 s40, 2
    s_cselect_b64 vcc, -1, 0
    v_cndmask_b32 v15, v15, v73, vcc
    s_cmp_eq_u32 s40, 5
    s_cselect_b64 vcc, -1, 0
    v_cndmask_b32 v10, v15, v10, vcc
    v_lshlrev_b32 v10, 2, v10
    s_lshl_b32 s41, s40, 11
    s_add_u32 s41, s41, {WS_MOD}
    s_cmp_eq_u32 s40, 1
    s_cselect_b32 s42, 1.0, 0
    s_cmp_eq_u32 s40, 4
    s_cselect_b32 s42, 1.0, s42
    s_lshl_b32 s43, s3, 7
    s_add_u32 s43, s43, {MRED}
    v_lshl_add_u32 v9, v2, 2, s43
    v_and_b32 v74, 31, v1
    v_lshlrev_b32 v74, 2, v74
    v_add_u32 v74, {MRED}, v74
    """)
    A.wait_tag("wm")
    tsx(A, 61)
    if opt("touch", 11) == 2: touch(A)
    if opt("touch", 11) == 4 and not opt("tafter", 0): touch(A, nonln=True)
    if opt("touch", 11) == 9: touch(A, "gu")
    if opt("touch", 11) in (10, 11): touch(A, "gu", nonln=True)
    if opt("pfA", 0) and opt("pfMpos", 0) == 1: wchunks(A, range(opt("pfA", 0)))
    for ks in range(4):
        for nt in range(2):
            b = WF + (ks*2+nt)*4
            off = ks*2048 + nt*32
            A(f"ds_read_b64_tr_b16 {v(b,2)}, v6 offset:{off}\nds_read_b64_tr_b16 {v(b+2,2)}, v6 offset:{off+256}")
    for ks in range(4):
        for nt in range(2):
            A(f"v_mfma_f32_16x16x32_bf16 {v(ACC+4*nt,4)}, {v(SF+4*ks,4)}, {v(WF+(ks*2+nt)*4,4)}, {v(ACC+4*nt,4) if ks else 0}")
    skip = A.label("modskip")
    A(f"""
    s_mov_b64 exec, 0xffff
    ds_write_b32 v9, v{ACC}
    ds_write_b32 v9, v{ACC+4} offset:64
    s_mov_b64 exec, -1
    s_waitcnt lgkmcnt(0)
    s_barrier
    s_cmp_lg_u32 s3, 0
    s_cbranch_scc1 {skip}
    ds_read_b32 v11, v74
    ds_read_b32 v12, v74 offset:128
    ds_read_b32 v13, v74 offset:256
    ds_read_b32 v14, v74 offset:384
    v_add_f32 v11, v11, v12
    v_add_f32 v13, v13, v14
    v_add_f32 v11, v11, v13
    """)
    bf16r(A, "v11", "v11")
    A("v_add_f32 v11, s42, v11")
    bf16r(A, "v11", "v11")
    A(f"""
    s_mov_b32 exec_hi, 0
    buffer_store_dword v11, v10, {srd(S_WS)}, s41 offen sc1
    s_mov_b64 exec, -1
    {skip}:
    """)

K2 = dict(BS=16, CC=24, CS=26, TW=28, BH=44, U=64, XR=128, CA=136, GA=168, CB=176, SB=184, Z=192, XF=224)
def k2_pre(A, hook=None):
    r = K2
    if opt("T", 4) == 2: A("s_and_b32 s36, s2, 7\ns_lshl_b32 s36, s36, 2\ns_bfe_u32 s37, s2, 0x20003")
    else: A("s_and_b32 s36, s2, 7\ns_bfe_u32 s37, s2, 0x20003\ns_lshl_b32 s37, s37, 3")
    A("""
    s_add_u32 s36, s36, s37
    s_lshr_b32 s37, s2, 5
    s_sub_u32 s39, 64, s36
    s_cmp_eq_u32 s36, 0
    s_cselect_b32 s39, 32, s39
    s_cselect_b64 s[40:41], -1, 0
    s_lshl_b32 s42, s37, 2
    s_add_u32 s43, s42, s3
    s_lshl_b32 s43, s43, 6
    s_add_u32 s44, s43, s36
    s_add_u32 s45, s43, s39
    s_lshl_b32 s44, s44, 10
    s_lshl_b32 s45, s45, 10
    v_lshlrev_b32 v4, 5, v2
    v_lshl_add_u32 v4, v3, 3, v4
    """)
    for uu in range(2):
        for nt in range(2):
            A(f"buffer_load_dwordx2 {v(r['XR']+(uu*2+nt)*2,2)}, v4, {srd(S_X)}, s{44+uu} offen offset:{nt*512}")
    if hook: hook()
    A("""
    v_lshrrev_b32 v5, 2, v2
    v_add_u32 v5, s42, v5
    v_lshlrev_b32 v5, 6, v5
    v_and_b32 v6, 2, v2
    v_cmp_ne_u32 vcc, 0, v6
    v_mov_b32 v7, s36
    v_mov_b32 v8, s39
    v_cndmask_b32 v7, v7, v8, vcc
    v_add_u32 v5, v5, v7
    v_cvt_f32_u32 v5, v5
    v_mul_f32 v5, 0x3a000000, v5
    v_and_b32 v6, 1, v2
    v_cvt_f32_u32 v6, v6
    v_mul_f32 v6, 0x3e800000, v6
    v_mov_b32 v7, 0xbe800000
    v_mov_b32 v8, 0x3e800000
    v_cndmask_b32 v7, v7, v8, vcc
    v_cndmask_b32 v7, v7, 0, s[40:41]
    v_add_f32 v7, v7, v6
    v_cndmask_b32 v8, 1.0, 0, vcc
    v_cndmask_b32 v9, 0, 1.0, vcc
    v_cndmask_b32 v8, 1.0, v8, s[40:41]
    v_cndmask_b32 v9, 1.0, v9, s[40:41]
    v_lshlrev_b32 v10, 2, v3
    v_cvt_f32_u32 v10, v10
    """)
    T = 64
    NQ = 72
    for ks in range(2):
        for i in range(4): A(f"v_add_f32 v{NQ+ks*4+i}, {fbits(16*ks+i)}, v10")
    for ks in range(2):
        for i in range(4):
            A(f"v_fma_f32 v{T+2*i}, v{NQ+ks*4+i}, v5, v6\nv_fma_f32 v{T+2*i+1}, v{NQ+ks*4+i}, v5, v7")
        for i in range(8): A(f"v_cos_f32 v{T+i}, v{T+i}")
        for i in range(4):
            A(f"v_pk_mul_f32 {v(T+2*i,2)}, {v(T+2*i,2)}, v[8:9]")
            A(f"v_cvt_pk_bf16_f32 v{r['BS']+ks*4+i}, v{T+2*i}, v{T+2*i+1}")
    A("v_cvt_f32_u32 v12, v2\nv_mul_f32 v13, 0x3d800000, v12")
    for j in range(4): A(f"v_mul_f32 v{T+j}, v{NQ+j}, v13")
    for j in range(4): A(f"v_sin_f32 v{T+4+j}, v{T+j}")
    for j in range(4): A(f"v_cos_f32 v{T+j}, v{T+j}")
    for jj in range(2):
        A(f"v_cvt_pk_bf16_f32 v{r['CC']+jj}, v{T+2*jj}, v{T+2*jj+1}\nv_cvt_pk_bf16_f32 v{r['CS']+jj}, v{T+4+2*jj}, v{T+5+2*jj}")
    A("v_mul_f32 v13, 0x3b000000, v12\ns_lshl_b32 s46, s3, 3\nv_cvt_f32_u32 v14, s46")
    for t in range(8):
        A(f"v_add_f32 v11, {fbits(t)}, v14\nv_mul_f32 v{T+t}, v11, v13")
    for t in range(8):
        A(f"v_cos_f32 v{r['TW']+2*t}, v{T+t}\nv_sin_f32 v{r['TW']+2*t+1}, v{T+t}")
    for nt in range(2):
        A(f"v_add_f32 v13, {fbits(16*nt)}, v12\nv_mul_f32 v13, 0x3d000000, v13")
        for ks in range(2):
            for i in range(4): A(f"v_mul_f32 v{T+i}, v{NQ+ks*4+i}, v13")
            for i in range(4): A(f"v_sin_f32 v{T+4+i}, v{T+i}")
            for i in range(4): A(f"v_cos_f32 v{T+i}, v{T+i}")
            for i in range(4): A(f"v_cvt_pk_bf16_f32 v{r['BH']+(nt*2+ks)*4+i}, v{T+i}, v{T+4+i}")
    A(f"""
    v_mul_u32_u24 v5, {4*UN2()}, v3
    v_lshl_add_u32 v5, v2, 4, v5
    s_mul_i32 s46, s36, {USLOT()}
    s_mul_i32 s47, s3, {UOCT()}
    s_add_u32 s46, s46, s47
    s_add_u32 s46, s46, {WS_U}
    s_add_u32 s47, s46, {2*UN2()}
    s_add_u32 s48, s46, {16*UN2()}
    s_add_u32 s49, s46, {18*UN2()}
    s_add_u32 s76, s46, {UN2()}
    s_add_u32 s77, s47, {UN2()}
    s_add_u32 s78, s48, {UN2()}
    s_add_u32 s79, s49, {UN2()}
    v_lshlrev_b32 v6, 7, v3
    s_lshl_b32 s50, s3, 9
    s_add_u32 s50, s50, {WS_MOD}
    s_cmp_eq_u32 s2, 0
    s_cselect_b32 s59, s50, {WS_SIZE}
    v_lshlrev_b32 v7, 4, v1
    v_lshl_add_u32 v8, v3, 5, v2
    v_mul_u32_u24 v8, 144, v8
    s_lshl_b32 s51, s3, 5
    s_add_u32 s51, s51, {K2EX}
    v_add_u32 v8, s51, v8
    v_mul_u32_u24 v9, 144, v2
    v_lshl_add_u32 v9, v3, 4, v9
    s_mul_i32 s51, s3, {32*144}
    s_add_u32 s51, s51, {K2EX}
    v_add_u32 v9, s51, v9
    s_mul_i32 s51, s3, 2080
    s_add_u32 s51, s51, {K2HB}
    v_add_u32 v10, s51, v4
    v_and_b32 v11, 7, v0
    v_lshrrev_b32 v12, 3, v0
    v_mul_u32_u24 v13, 1040, v11
    v_lshl_add_u32 v13, v12, 4, v13
    v_add_u32 v13, {K2HB}, v13
    v_lshlrev_b32 v11, 4, v11
    v_lshl_add_u32 v11, v12, 9, v11
    s_lshl_b32 s51, s36, 3
    s_add_u32 s51, s51, s37
    s_lshl_b32 s52, s51, 13
    s_lshl_b32 s53, s3, 11
    s_add_u32 s52, s52, s53
    s_add_u32 s52, s52, {WS_X1}
    s_add_u32 s53, s52, 1024
    s_lshr_b32 s54, s51, 2
    s_lshl_b32 s54, s54, 15
    s_and_b32 s55, s51, 3
    s_lshl_b32 s55, s55, 7
    s_add_u32 s54, s54, s55
    s_add_u32 s54, s54, {WS_H2}
    s_add_u32 s55, s54, 16384
    s_mov_b32 s56, {WS_MOD+2*2048}
    s_mov_b32 s57, {WS_MOD+3*2048}
    s_mov_b32 s58, {WS_MOD+4*2048}
    s_lshl_b32 s62, s51, 7
    s_add_u32 s62, s62, {WS_F2}
    v_lshlrev_b32 v250, 6, v1
    """)

def k2_main(A):
    r = K2
    U, Z = r['U'], r['Z']
    sk0 = A.label("k2sl")
    A(f"s_cmp_lg_u32 s2, 0\ns_cbranch_scc1 {sk0}")
    for t in range(0 if opt("sepmod", 1) else 8):
        A(f"buffer_load_dwordx4 {a(4*t,4)}, v6, {srd(S_WS)}, s50 offen offset:{t*16} sc1")
    A(f"{sk0}:")
    sep = opt("sepmod", 1)
    if sep:
        m0 = A.label("k2m0")
        A(f"s_cmp_lg_u32 s3, 0\ns_cbranch_scc1 {m0}")
        A(f"buffer_load_dword v254, v250, {srd(S_WS)}, s73 offen sc1\nbuffer_load_dword v255, v250, {srd(S_WS)}, s74 offen sc1\n{m0}:", tag="spin")
    for hh in range(2):
        for ks in range(2):
            for i in range(4):
                A(f"buffer_load_dwordx4 {v(U+((ks*2+hh)*4+i)*4,4)}, v5, {srd(S_WS)}, s{(46, 76)[i&1]+ks*2+(i>>1)} offen offset:{hh*256} sc1")
    if sep:
        m1, lp1 = A.label("k2m1"), A.label("k2ml")
        A(f"""
        s_cmp_lg_u32 s3, 0
        s_cbranch_scc1 {m1}
        s_mov_b32 s{S_CNT}, 0
        s_waitcnt vmcnt(16)
        {lp1}:
        v_xor_b32 v254, s{S_TOK}, v254
        v_xor_b32 v255, s{S_TOK}, v255
        v_or_b32 v254, v254, v255
        v_cmp_ne_u32 vcc, 0, v254
        s_add_u32 s{S_CNT}, s{S_CNT}, 1
        s_cmp_ge_u32 s{S_CNT}, {MAXPOLL}
        s_cbranch_scc1 {m1}
        s_cbranch_vccz {m1}
        buffer_load_dword v254, v250, {srd(S_WS)}, s73 offen sc1
        buffer_load_dword v255, v250, {srd(S_WS)}, s74 offen sc1
        s_waitcnt vmcnt(0)
        s_branch {lp1}
        {m1}:
        s_barrier
        """, tag="spin")
        sk1 = A.label("k2s1")
        A(f"s_cmp_lg_u32 s2, 0\ns_cbranch_scc1 {sk1}")
        for t in range(8):
            A(f"buffer_load_dwordx4 {a(4*t,4)}, v6, {srd(S_WS)}, s50 offen offset:{t*16} sc1", tag="spin")
        A(f"{sk1}:", tag="spin")
    for t in range(8):
        A(f"buffer_load_dwordx4 {v(r['CA']+4*t,4)}, v6, {srd(S_WS)}, s50 offen offset:{2048+t*16} sc1")
    for nm, sr in (("GA", 56), ("CB", 58), ("SB", 57)):
        for nt in range(2):
            A(f"buffer_load_dwordx4 {v(r[nm]+nt*4,4)}, v7, {srd(S_WS)}, s{sr} offen offset:{nt*1024} sc1")
    A.touch_regs([("v", U)])
    for uu in range(2):
        for nt in range(2):
            xr = r['XR'] + (uu*2+nt)*2; xf = r['XF'] + (uu*2+nt)*4
            A(f"v_lshlrev_b32 v{xf}, 16, v{xr}\nv_and_b32 v{xf+1}, 0xffff0000, v{xr}\nv_lshlrev_b32 v{xf+2}, 16, v{xr+1}\nv_and_b32 v{xf+3}, 0xffff0000, v{xr+1}")
    pfl = [op for ch in range(opt("pfA", 0) + opt("pf1", 3), opt("pfB", 4)) for op in wchunk_ops(ch, ch, f"w{ch}")]
    if opt("pfBpos", 1) == 0:
        for op in pfl: A(*op)
    if opt("pfBpos", 1) in (0, 3): pfl = []
    if opt("touch", 11) == 7 and opt("tlate", 0) == 1: touch_late(A)
    if opt("touch", 11) == 8: touch(A)
    if opt("touch", 11) == 9: touch(A, "d")
    if TS and opt("tsu", 1): A(f"v_mov_b32 v{U+60}, v{U+60}"); ts(A, "uarr")
    for hh in range(2):
        for ks in range(2):
            b = U + (ks*2+hh)*16
            for i in range(4):
                for t in range(i+1, 4): A(f"v_swap_b32 v{b+4*i+t}, v{b+4*t+i}")
        for t in range(4):
            for ks in range(2):
                z = Z + (hh*4+t)*4
                A(f"v_mfma_f32_16x16x32_bf16 {v(z,4)}, {v(U+(ks*2+hh)*16+4*t,4)}, {v(r['BS']+ks*4,4)}, {v(z,4) if ks else 0}")
                if pfl and opt("pfBpos", 1) != 4 and (hh == 1 or opt("pfBpos", 1) == 2): A(*pfl.pop(0))
    if opt("pfBpos", 1) != 4:
        for op in pfl: A(*op)
        pfl = []
    ZP, P, Q = 64, 80, 112
    ts(A, "s2")
    for t in range(8):
        for h in range(2): A(f"v_pk_mul_f32 {v(Z+4*t+2*h,2)}, {v(Z+4*t+2*h,2)}, {v(r['CA']+4*t+2*h,2)}")
    sk = A.label("k2sa")
    A(f"s_cmp_lg_u32 s2, 0\ns_cbranch_scc1 {sk}")
    A("s_mov_b32 s59, 0x45000000\ns_mov_b32 exec_lo, 0x00010001\ns_mov_b32 exec_hi, 0x00010001")
    for i in range(32):
        A(f"v_accvgpr_read_b32 v{P}, a{i}\nv_fma_f32 v{Z+i}, v{P}, s59, v{Z+i}")
    A(f"s_mov_b64 exec, -1\n{sk}:")
    for t in range(8):
        A(f"v_cvt_pk_bf16_f32 v{ZP+2*t}, v{Z+4*t}, v{Z+4*t+1}\nv_cvt_pk_bf16_f32 v{ZP+2*t+1}, v{Z+4*t+2}, v{Z+4*t+3}")
        if t >= 1:
            A(f"v_mfma_f32_16x16x16_bf16 {v(P+4*(t-1),4)}, {v(ZP+2*(t-1),2)}, {v(r['CC'],2)}, 0")
            A(f"v_mfma_f32_16x16x16_bf16 {v(Z+4*(t-1),4)}, {v(ZP+2*(t-1),2)}, {v(r['CS'],2)}, 0")
    A(f"v_mfma_f32_16x16x16_bf16 {v(P+28,4)}, {v(ZP+14,2)}, {v(r['CC'],2)}, 0")
    A(f"v_mfma_f32_16x16x16_bf16 {v(Z+28,4)}, {v(ZP+14,2)}, {v(r['CS'],2)}, 0")
    Q = Z; W = 112
    ts(A, "h1m")
    for hh in range(2):
        for uu in range(2):
            idx = [(P+4*(hh*4+t4)+2*uu, Q+4*(hh*4+t4)+2*uu, r['TW']+2*(hh*4+t4), W+uu*8+hh*4+t4) for t4 in range(4)]
            for p, q, tw, w in idx: A(f"v_pk_add_f32 {v(p,2)}, {v(p,2)}, {v(q,2)} op_sel:[0,1] op_sel_hi:[1,0] neg_hi:[0,1]")
            for p, q, tw, w in idx: A(f"v_pk_mul_f32 {v(q,2)}, {v(p,2)}, {v(tw,2)} op_sel:[0,0] op_sel_hi:[1,0]")
            for p, q, tw, w in idx: A(f"v_pk_fma_f32 {v(q,2)}, {v(p,2)}, {v(tw,2)}, {v(q,2)} op_sel:[1,1,0] op_sel_hi:[0,1,1] neg_hi:[1,0,0]")
            for p, q, tw, w in idx: A(f"v_cvt_pk_bf16_f32 v{w}, v{q}, v{q+1}")
            A(f"ds_write_b128 v8, {v(W+uu*8+hh*4,4)} offset:{uu*16*144+hh*16}")
    A("s_waitcnt lgkmcnt(0)\ns_barrier")
    ts(A, "h1")
    AF, Y = 80, 96
    for uu in range(2):
        for ks in range(2):
            A(f"ds_read_b128 {v(AF+(uu*2+ks)*4,4)}, v9 offset:{uu*16*144+ks*64}")
    for op in pfl[:4]: A(*op)
    pfl = pfl[4:]
    for uu in range(2):
        for ks in range(2):
            for nt in range(2):
                y = Y + (uu*2+nt)*4
                A(f"v_mfma_f32_16x16x32_bf16 {v(y,4)}, {v(AF+(uu*2+ks)*4,4)}, {v(r['BH']+(nt*2+ks)*4,4)}, {v(y,4) if ks else 0}")
                if pfl: A(*pfl.pop(0))
    for op in pfl: A(*op)
    XP = 168 if opt("latex1", 2) == 2 else 112
    ts(A, "h2m")
    for uu in range(2):
        for nt in range(2):
            y = Y + (uu*2+nt)*4; xf = r['XF'] + (uu*2+nt)*4; g = r['GA'] + nt*4
            for h in range(2):
                A(f"v_pk_fma_f32 {v(y+2*h,2)}, {v(y+2*h,2)}, {v(g+2*h,2)}, {v(xf+2*h,2)}")
        y = Y + uu*8; t = 64 + 4*uu
        A(f"v_pk_add_f32 {v(t,2)}, {v(y,2)}, {v(y+2,2)}\nv_pk_mul_f32 {v(t+2,2)}, {v(y,2)}, {v(y,2)}")
        A(f"v_pk_add_f32 {v(t,2)}, {v(t,2)}, {v(y+4,2)}\nv_pk_fma_f32 {v(t+2,2)}, {v(y+2,2)}, {v(y+2,2)}, {v(t+2,2)}")
        A(f"v_pk_add_f32 {v(t,2)}, {v(t,2)}, {v(y+6,2)}\nv_pk_fma_f32 {v(t+2,2)}, {v(y+4,2)}, {v(y+4,2)}, {v(t+2,2)}")
        A(f"v_add_f32 v{72+2*uu}, v{t}, v{t+1}\nv_pk_fma_f32 {v(t+2,2)}, {v(y+6,2)}, {v(y+6,2)}, {v(t+2,2)}")
        A(f"v_add_f32 v{73+2*uu}, v{t+2}, v{t+3}")
    def x1_store(uu, nt):
        y = Y + (uu*2+nt)*4; xp = XP + (uu*2+nt)*2
        A(f"v_cvt_pk_bf16_f32 v{xp}, v{y}, v{y+1}\nv_cvt_pk_bf16_f32 v{xp+1}, v{y+2}, v{y+3}")
        A(f"buffer_store_dwordx2 {v(xp,2)}, v4, {srd(S_WS)}, s{52+uu} offen offset:{nt*512} sc1", tag="st")
    late_x1 = opt("latex1", 2)
    def x1_cvt(uu, nt):
        y = Y + (uu*2+nt)*4; xp = XP + (uu*2+nt)*2
        A(f"v_cvt_pk_bf16_f32 v{xp}, v{y}, v{y+1}\nv_cvt_pk_bf16_f32 v{xp+1}, v{y+2}, v{y+3}")
    def x1_st(uu, nt):
        A(f"buffer_store_dwordx2 {v(XP+(uu*2+nt)*2,2)}, v4, {srd(S_WS)}, s{52+uu} offen offset:{nt*512} sc1", tag="x1")
    if late_x1: x1_store = x1_cvt
    A("v_permlane16_swap_b32 v72, v73\nv_permlane16_swap_b32 v74, v75\nv_add_f32 v72, v72, v73\nv_add_f32 v74, v74, v75")
    x1_store(0, 0)
    A("v_permlane32_swap_b32 v72, v74\nv_add_f32 v72, v72, v74")
    x1_store(0, 1)
    A("v_add_f32 v72, v72, v72 row_ror:8")
    A(f"v_mov_b32 v76, 0x3b000000\nv_mov_b32 v77, {fbits(1e-5)}")
    A("v_add_f32 v72, v72, v72 row_ror:4")
    x1_store(1, 0)
    A("v_add_f32 v72, v72, v72 row_ror:2")
    x1_store(1, 1)
    A("""
    v_add_f32 v72, v72, v72 row_ror:1
    v_mul_f32 v72, v72, v76
    v_readlane_b32 s40, v72, 0
    v_readlane_b32 s41, v72, 16
    v_readlane_b32 s42, v72, 32
    v_readlane_b32 s43, v72, 48
    v_mov_b32 v64, s40
    v_mov_b32 v66, s42
    v_fma_f32 v65, -v64, v64, s41
    v_fma_f32 v67, -v66, v66, s43
    v_max_f32 v65, 0, v65
    v_max_f32 v67, 0, v67
    v_add_f32 v65, v65, v77
    v_add_f32 v67, v67, v77
    v_rsq_f32 v65, v65
    v_rsq_f32 v67, v67
    v_mul_f32 v64, -v64, v65
    v_mul_f32 v66, -v66, v67
    """)
    HP = 120
    ts(A, "ln2")
    for uu in range(2):
        for nt in range(2):
            y = Y + (uu*2+nt)*4
            for h in range(2):
                A(f"v_pk_fma_f32 {v(y+2*h,2)}, {v(y+2*h,2)}, {v(64+2*uu,2)}, {v(64+2*uu,2)} op_sel:[0,1,0] op_sel_hi:[1,1,0]")
            for h in range(2):
                A(f"v_pk_fma_f32 {v(y+2*h,2)}, {v(y+2*h,2)}, {v(r['CB']+nt*4+2*h,2)}, {v(r['SB']+nt*4+2*h,2)}")
            hp = HP + (uu*2+nt)*2
            A(f"v_cvt_pk_bf16_f32 v{hp}, v{y}, v{y+1}\nv_cvt_pk_bf16_f32 v{hp+1}, v{y+2}, v{y+3}")
            A(f"ds_write_b64 v10, {v(hp,2)} offset:{uu*1040+nt*512}")
    A("s_waitcnt lgkmcnt(0)\ns_barrier")
    ts(A, "hb")
    A("ds_read_b128 v[64:67], v13\nds_read_b128 v[68:71], v13 offset:512")
    A(f"buffer_store_dwordx4 v[64:67], v11, {srd(S_WS)}, s54 offen {LOC('h')}", tag="st")
    A(f"buffer_store_dwordx4 v[68:71], v11, {srd(S_WS)}, s55 offen {LOC('h')}", tag="st")
    if late_x1 == 1:
        for uu in range(2):
            for nt in range(2): x1_st(uu, nt)
    if late_x1 == 2:
        A("v_mov_b32 v176, v4\ns_mov_b32 s80, s52\ns_mov_b32 s81, s53")

WD_ORDER = [37, 38, 39] + list(range(13, 37)) + list(range(0, 13)) + [37, 38, 39]
def k4_ids(A):
    if opt("R", 4) == 4:
        A("s_and_b32 s36, s2, 7\ns_lshl_b32 s36, s36, 2\ns_bfe_u32 s38, s2, 0x20003\ns_add_u32 s36, s36, s38\ns_lshr_b32 s37, s2, 5")
    else:
        A("s_bfe_u32 s36, s2, 0x20001\ns_lshl_b32 s36, s36, 3\ns_bfe_u32 s38, s2, 0x30003\ns_add_u32 s36, s36, s38\ns_and_b32 s37, s2, 1\ns_lshl_b32 s37, s37, 2\ns_lshr_b32 s38, s2, 6\ns_add_u32 s37, s37, s38")
    A("s_lshr_b32 s38, s3, 1\ns_and_b32 s39, s3, 1")
def wd_setup(A):
    k4_ids(A)
    A(f"""
    v_lshrrev_b32 v244, 3, v1
    v_lshlrev_b32 v{V_D}, 10, v244
    v_and_b32 v245, 7, v1
    v_lshlrev_b32 v244, 1, v244
    v_and_b32 v244, 4, v244
    v_xor_b32 v245, v245, v244
    v_lshl_add_u32 v{V_D}, v245, 4, v{V_D}
    s_mul_i32 s{S_DG}, s38, {688*1024}
    s_lshl_b32 s41, s37, 7
    s_add_u32 s{S_DG}, s{S_DG}, s41
    s_lshl_b32 s41, s39, 13
    s_add_u32 s{S_DG}, s{S_DG}, s41
    s_lshl_b32 s{S_DL}, s3, 10
    """)
    if opt("two", 0):
        A(f"""
        s_lshl_b32 s41, s37, 7
        s_lshl_b32 s42, s39, 13
        s_add_u32 s41, s41, s42
        s_mul_i32 s{S_DG}, s38, {6*16384}
        s_add_u32 s{S_DG}, s{S_DG}, s41
        s_add_u32 s42, s38, 84
        s_lshl_b32 s42, s42, 14
        s_add_u32 s{S_DG2}, s42, s41
        """)
        return
    A(f"""
    s_mul_i32 s41, s37, 10
    s_lshr_b32 s41, s41, 3
    s_lshl_b32 s41, s41, 16
    s_add_u32 s{S_DR}, s{S_DG}, s41
    s_add_u32 s{S_DE}, s{S_DG}, {40*16384}
    """)
S_DR, S_DE, S_AB, S_AE = 82, 83, 97, 100
S_DG2, S_ACT, S_ACT2, S_AT = 82, 83, 97, 100
WS_F3B = WS_FLG + 0x30000
NA = 3
def steps4():
    return [None] + [(i, j) for i in range(7) for j in range(NA)] + [(i, j) for i in range(7) for j in range(NA, 6)]
NSA = 1 + 7*NA
def wd_op(step, tag):
    if opt("two", 0):
        st = steps4()[step]
        t = f"s_add_u32 m0, s{S_DL}, {WD_ORDER[step]*4096}\n"
        if st is None: so = S_DG2; t += "s_nop 0\n"
        else: so = S_T; t += f"s_add_u32 s{S_T}, s{S_DG}, {(12*st[0]+st[1])*16384}\n"
        return (t + f"buffer_load_dwordx4 v{V_D}, {srd(S_WD)}, s{so} offen lds", tag)
    return wd_op1(step, tag)
def wd_op1(step, tag):
    t = f"s_add_u32 m0, s{S_DL}, {WD_ORDER[step]*4096}\n"
    if not opt("rot", 0) or step >= 40:
        t += f"s_add_u32 s{S_T}, s{S_DG}, {step*16384}\n"
    else:
        if step and step % 4 == 0:
            t += f"s_add_u32 s{S_DR}, s{S_DR}, 65536\ns_cmp_eq_u32 s{S_DR}, s{S_DE}\ns_cselect_b32 s{S_DR}, s{S_DG}, s{S_DR}\n"
        t += f"s_add_u32 s{S_T}, s{S_DR}, {(step % 4)*16384}\n"
    t += f"buffer_load_dwordx4 v{V_D}, {srd(S_WD)}, s{S_T} offen {opt('dpol','')} lds"
    return (t, tag)

def k3_ids(A):
    A(sl_expr() + "\ns_mov_b32 s37, s38\n" + rb_expr())
def k3_pre(A):
    wd_setup(A)
    k3_ids(A)
    A(f"""
    s_lshl_b32 s45, s36, 2
    s_add_u32 s45, s45, s3
    s_lshl_b32 s46, s45, 15
    s_add_u32 s46, s46, {WS_H2}
    v_lshlrev_b32 v4, 4, v1
    v_bfe_u32 v5, v1, 1, 1
    v_mul_u32_u24 v5, {UOFF}, v5
    v_bfe_u32 v6, v1, 2, 2
    v_bfe_u32 v7, v1, 5, 1
    v_lshl_add_u32 v6, v7, 3, v6
    v_mul_u32_u24 v6, 192, v6
    v_add_u32 v5, v5, v6
    v_bfe_u32 v6, v1, 4, 1
    v_lshl_add_u32 v5, v6, 4, v5
    v_and_b32 v6, 1, v1
    v_lshl_add_u32 v5, v6, 3, v5
    v_add_u32 v6, {2*SLOT}, v5
    v_add_u32 v7, {4*SLOT}, v5
    s_mul_i32 s47, s45, {86*1024}
    s_mul_i32 s48, s37, {6*1024}
    s_add_u32 s47, s47, s48
    s_add_u32 s47, s47, {WS_ACT}
    s_add_u32 s48, s47, 2048
    s_add_u32 s51, s47, 4096
    s_cmp_eq_u32 s37, 14
    s_cselect_b32 s48, {WS_SIZE}, s48
    s_cselect_b32 s51, {WS_SIZE}, s51
    s_lshl_b32 s49, s2, 2
    s_add_u32 s49, s49, s3
    s_mul_i32 s49, s49, 11
    v_min_u32 v246, 10, v1
    v_add_u32 v246, s49, v246
    v_lshlrev_b32 v246, 7, v246
    v_mov_b32 v14, {LOG2E}
    v_mov_b32 v15, {LOG2E}
    s_lshl_b32 s61, s36, 4
    s_add_u32 s61, s61, s37
    s_lshl_b32 s61, s61, 7
    s_add_u32 s61, s61, {WS_F3}
    s_lshl_b32 s62, s36, 11
    s_add_u32 s62, s62, {WS_F2}
    """)

def x1_ops():
    return [(f"buffer_store_dwordx2 {v(168+(uu*2+nt)*2,2)}, v176, {srd(S_WS)}, s{80+uu} offen offset:{nt*512} {LOC('x')}", "x1") for uu in range(2) for nt in range(2)]
def k3_main(A, idle):
    done = A.label("k3done")
    if opt("short14", 1):
        short = A.label("k3short")
        A(f"s_cmp_eq_u32 s37, 14\ns_cbranch_scc1 {short}")
        k3_body(A, 6)
        A(f"s_branch {done}\n{short}:")
        A.reset()
        k3_body(A, 2)
    else:
        k3_body(A, 6)
    k3_tail(A, idle, done)

def k3_body(A, NT):
    ACC, AF, NAF = 16, 112, 8
    T, PK = 144, 160
    full = NT == 6
    def h2_op(k):
        t = "s_add_u32 s46, s46, 4096\n" if (k and k % 4 == 0) else ""
        return (t + f"buffer_load_dwordx4 {a(4*k,4)}, v4, {srd(S_WS)}, s46 offen offset:{(k%4)*1024} {LDP('h')}", None)
    H0 = opt("h0", 12)
    for k in range(H0): A(h2_op(k)[0])
    order = [(k, j) for k in range(32) for j in range(NT)]
    N = len(order)
    def slot_of(k):
        ch = k // 4
        return ch if ch < 6 else ch - 6
    def frag_read(n):
        k, j = order[n]
        sl = slot_of(k)
        base = ("v5", "v6", "v7")[sl // 2]
        off = (sl % 2)*SLOT + (k % 4)*16*192 + j*32
        b = AF + (n % NAF)*4
        return f"ds_read_b64_tr_b16 {v(b,2)}, {base} offset:{off}\nds_read_b64_tr_b16 {v(b+2,2)}, {base} offset:{off+4*192}"
    PF = NAF - 2
    CH = 4*NT
    b01, b23, b6, b7 = 2*CH - 1, 4*CH - 1, 6*CH - PF - 1, 7*CH - PF - 1
    assert b6 >= 5*CH - 1 and b7 >= 6*CH - 1
    bars = {b01: [], b23: [], b6: ["w6"], b7: ["w7"]}
    pfB = opt("pfB", 4) + opt("pf3", 2)
    for ch in range(pfB, 6):
        nb = ch*CH - PF - 1
        if ch == 5 and b23 <= nb: bars[b23].append("w5")
        else: bars.setdefault(nb, []).append(f"w{ch}")
    sc = lambda x: x*NT // 6
    side = []
    n0 = 0
    def add(op, step):
        nonlocal n0
        side.append((sc(n0), *op)); n0 += step
    for k in range(H0, 32): add(h2_op(k), 2)
    for ch in range(pfB, 6):
        for op in wchunk_ops(ch, ch, f"w{ch}"): add(op, 2)
    for op in x1_ops(): add(op, 2)
    def at_least(n):
        nonlocal n0
        while sc(n0) <= n: n0 += 1
    at_least(b01)
    for ch in (6, 7):
        for op in wchunk_ops(ch, ch-6, f"w{ch}"): add(op, 2)
    for st_ in range(0, 3): add(wd_op(st_, "wd"), 3)
    if opt("cpf", 0) & 4 and full: side.append((max(n0, opt("cpn", 90)), code_pf_text(".Lk3epi", 249, 60), None))
    at_least(b23)
    for st_ in range(3, 14): add(wd_op(st_, "wd"), 3)
    at_least(b6)
    for st_ in range(14, 20): add(wd_op(st_, "wd"), 3)
    at_least(b7)
    for st_ in range(20, 27): add(wd_op(st_, "wd"), 3)
    A("v_accvgpr_read_b32 v13, a0\ns_barrier")
    if full: ts(A, "issued")
    for n in range(PF): A(frag_read(n))
    if full: tc(A, "first")
    for n, (k, j) in enumerate(order):
        acc = ACC + 16*j
        if n % 2 == 0: A.touch_regs([("v", AF+((n+1)%NAF)*4+3)])
        A(f"v_mfma_f32_32x32x16_bf16 {v(acc,16)}, {v(AF+(n%NAF)*4,4)}, {a(4*k,4)}, {v(acc,16) if k else 0}")
        if n == 0 and full: ts(A, "first")
        while side and side[0][0] <= n:
            _, t, tag = side.pop(0); A(t, tag=tag)
            if full: break
        if n in bars:
            for tg in bars[n]: A.wait_tag(tg)
            A("s_barrier")
            if full: ts(A, f"n{n}")
        if n + PF < N: A(frag_read(n+PF))
    for _, t, tag in side: A(t, tag=tag)
    if full:
        A(".Lk3epi:")
        ts(A, "mfma")
        tc(A, "mfma")
    def epi(j):
        acc = ACC + 16*j; pk = PK + 4*(j & 1); t0 = T + 8*(j & 1)
        for hf in range(2):
            g = acc + 8*hf; t = t0 + 4*hf
            for h in range(2): A(f"v_pk_mul_f32 {v(t+2*h,2)}, {v(g+2*h,2)}, v[14:15]")
        for i in range(8): A(f"v_exp_f32 v{t0+i}, v{t0+i}")
        for hf in range(2):
            g, u = acc + 8*hf, acc + 8*hf + 4
            for h in range(2): A(f"v_pk_mul_f32 {v(g+2*h,2)}, {v(g+2*h,2)}, {v(u+2*h,2)}")
        for h in range(4): A(f"v_pk_add_f32 {v(t0+2*h,2)}, {v(t0+2*h,2)}, 1.0 op_sel_hi:[1,0]")
        for i in range(8): A(f"v_rcp_f32 v{t0+i}, v{t0+i}")
        for hf in range(2):
            g = acc + 8*hf; t = t0 + 4*hf
            for h in range(2): A(f"v_pk_mul_f32 {v(g+2*h,2)}, {v(g+2*h,2)}, {v(t+2*h,2)}")
        for hf in range(2):
            g = acc + 8*hf
            A(f"v_cvt_pk_bf16_f32 v{pk+2*hf}, v{g}, v{g+1}\nv_cvt_pk_bf16_f32 v{pk+2*hf+1}, v{g+2}, v{g+3}")
        A(f"buffer_store_dwordx4 {v(pk,4)}, v4, {srd(S_WS)}, s{(47,48,51)[j//2]} offen offset:{(j%2)*1024} {LOC('a')}", tag=("sA" if j < NA else "sB"))
    for j in range(NT): epi(j)
    if opt("two", 0):
        A.wait_tag("sA")
        skA = A.label("fa")
        A(f"""
        s_barrier
        s_cmp_lg_u32 s3, 0
        s_cbranch_scc1 {skA}
        v_mov_b32 v250, 0
        v_mov_b32 v251, s{S_TOK}
        s_mov_b64 exec, 1
        buffer_store_dword v251, v250, {srd(S_WS)}, s61 offen sc1
        s_mov_b64 exec, -1
        {skA}:
        """, tag="spin")
    if full: ts(A, "stiss3")

def k3_tail(A, idle, done):
    A(f"s_branch {done}\n{idle}:")
    A.reset()
    A("s_waitcnt vmcnt(0)\ns_barrier")
    if opt("touch", 11) == 11:
        A(f"""
        s_lshl_b32 s49, s36, 2
        s_add_u32 s49, s49, s3
        s_mul_i32 s49, s49, {172*128}
        v_lshlrev_b32 v246, 7, v1
        buffer_load_dword v236, v246, {srd(S_WD)}, s49 offen
        s_add_u32 s50, s49, 8192
        buffer_load_dword v237, v246, {srd(S_WD)}, s50 offen
        s_add_u32 s50, s49, {108*128}
        buffer_load_dword v238, v246, {srd(S_WD)}, s50 offen
        """)
    if opt("latex1", 2) == 2:
        for op in x1_ops(): A(*op)
    for st_ in range(27): A(*wd_op(st_, "wd"))
    A(f"s_waitcnt vmcnt(0)\n{done}:")
    A.reset()

def k4_pre(A):
    k4_ids(A)
    A(f"""
    s_lshl_b32 s44, s36, 1
    s_add_u32 s44, s44, s39
    s_mul_i32 s44, s44, {86*1024}
    s_mul_i32 s45, s38, {43*1024}
    s_add_u32 s44, s44, s45
    s_add_u32 s44, s44, {WS_ACT}
    """)
    if opt("two", 0):
        A(f"""
        s_mul_i32 s45, s38, {37*1024}
        s_sub_u32 s44, s44, s45
        s_add_u32 s45, s38, 84
        s_mul_i32 s51, s38, {6*1024}
        s_sub_u32 s{S_ACT2}, s44, s51
        s_lshl_b32 s45, s45, 10
        s_add_u32 s{S_ACT2}, s{S_ACT2}, s45
        s_mov_b32 s{S_ACT}, s44
        """)
    A(f"""
    v_lshlrev_b32 v4, 4, v1
    v_lshrrev_b32 v8, 3, v0
    v_and_b32 v9, 7, v0
    s_lshl_b32 s46, s36, 16
    s_lshl_b32 s47, s37, 7
    s_add_u32 s46, s46, s47
    s_add_u32 s46, s46, {WS_X1}
    s_add_u32 s48, s46, 32768
    v_lshlrev_b32 v10, 10, v8
    v_lshl_add_u32 v10, v9, 4, v10
    v_lshlrev_b32 v11, 5, v9
    s_lshl_b32 s47, s37, 8
    s_add_u32 s47, s47, {WS_MOD+5*2048}
    s_sub_u32 s49, 64, s36
    s_cmp_eq_u32 s36, 0
    s_cselect_b32 s49, 32, s49
    v_and_b32 v12, 1, v8
    v_cmp_ne_u32 vcc, 0, v12
    v_mov_b32 v12, s36
    v_mov_b32 v13, s49
    v_cndmask_b32 v12, v12, v13, vcc
    v_lshrrev_b32 v13, 1, v8
    v_lshl_add_u32 v12, v13, 6, v12
    v_lshlrev_b32 v12, 10, v12
    v_lshl_add_u32 v12, v9, 4, v12
    s_lshl_b32 s49, s37, 7
    s_add_u32 s50, s49, 0x100000
    v_bfe_u32 v6, v1, 2, 2
    v_bfe_u32 v7, v1, 5, 1
    v_lshl_add_u32 v7, v7, 2, v6
    v_lshlrev_b32 v7, 7, v7
    v_bfe_u32 v13, v1, 4, 1
    v_lshl_add_u32 v7, v13, 5, v7
    v_and_b32 v13, 3, v1
    v_lshl_add_u32 v7, v13, 3, v7
    s_lshl_b32 s41, s38, 11
    v_add_u32 v7, s41, v7
    v_bfe_u32 v13, v1, 3, 1
    v_lshlrev_b32 v13, 6, v13
    v_xor_b32 v6, v7, v13
    v_xor_b32 v7, 64, v6
    v_add_u32 v14, 0x10000, v6
    v_add_u32 v15, 0x10000, v7
    v_add_u32 v16, 0x20000, v6
    v_add_u32 v17, 0x20000, v7
    s_mov_b32 s62, {WS_F3}
    s_lshr_b32 s51, s36, 1
    s_lshl_b32 s51, s51, 4
    v_cmp_eq_u32 vcc, 15, v2
    v_cndmask_b32 v250, v2, 0, vcc
    v_add_u32 v250, s51, v250
    """)
    if opt("latex1", 2):
        A(f"""
        v_and_b32 v251, 7, v1
        v_lshlrev_b32 v251, 5, v251
        """)
        if opt("T", 4) == 2: A("s_lshr_b32 s51, s36, 2\ns_and_b32 s52, s36, 3")
        else: A("s_and_b32 s51, s36, 7\ns_lshr_b32 s52, s36, 3")
        A("s_lshl_b32 s52, s52, 3\ns_add_u32 s51, s51, s52\nv_add_u32 v251, s51, v251")
        if opt("T", 4) == 2:
            A("v_and_b32 v252, 7, v251\nv_lshlrev_b32 v252, 1, v252\nv_bfe_u32 v253, v251, 3, 1\nv_add_u32 v252, v252, v253\nv_mov_b32 v253, 0\nv_lshrrev_b32 v251, 4, v251")
        elif opt("T", 4) == 4:
            A("v_bfe_u32 v252, v251, 1, 2\nv_lshlrev_b32 v252, 2, v252\nv_bfe_u32 v253, v251, 3, 2\nv_add_u32 v252, v252, v253\nv_and_b32 v253, 1, v251\nv_lshlrev_b32 v253, 3, v253\nv_lshrrev_b32 v251, 5, v251")
        else:
            A("v_bfe_u32 v252, v251, 2, 1\nv_lshlrev_b32 v252, 3, v252\nv_bfe_u32 v253, v251, 3, 3\nv_add_u32 v252, v252, v253\nv_and_b32 v253, 3, v251\nv_lshlrev_b32 v253, 2, v253\nv_lshrrev_b32 v251, 6, v251")
        A("v_add_u32 v251, v251, v253\nv_lshl_add_u32 v251, v252, 4, v251\nv_cmp_gt_u32 vcc, 16, v1\nv_cndmask_b32 v250, v251, v250, vcc")
    A("v_lshlrev_b32 v250, 7, v250")
    if opt("two", 0):
        A(f"v_mov_b32 v249, v250\nv_cmp_eq_u32 vcc, 15, v2\nv_cndmask_b32 v250, v2, 0, vcc\ns_lshr_b32 s51, s36, 1\ns_lshl_b32 s51, s51, 4\nv_add_u32 v250, s51, v250\nv_lshlrev_b32 v250, 7, v250\ns_mov_b32 s63, {WS_F3B}")

def wd_rest(A):
    for st_ in range(27, 40): A(*wd_op(st_, "dr"))
def wd_rest3(A):
    wd_rest(A)
    assert WD_ORDER[27:40] == list(range(13))
    A(f"s_lshl_b32 s74, s37, 7")
    for w in range(1, 4):
        sk = A.label("wr")
        A(f"s_cmp_lg_u32 s3, {w}\ns_cbranch_scc1 {sk}")
        for st_ in range(27 + w - 1, 40, 3):
            st = steps4()[st_] if opt("two", 0) else None
            row = (12*st[0] + st[1]) if st else st_
            A(f"s_mov_b32 m0, {WD_ORDER[st_]*4096}\ns_add_u32 s{S_T}, s74, {row*16384}\nbuffer_load_dwordx4 v{V_D}, {srd(S_WD)}, s{S_T} offen lds")
        A(f"{sk}:")

def k4_main(A):
    ACC, AF, NAF = 32, 64, 8
    XG = 96
    def act_op(k):
        if opt("two", 0):
            st = steps4()[k]
            if st is None: return (f"buffer_load_dwordx4 {a(4*k,4)}, v4, {srd(S_WS)}, s{S_ACT2} offen sc1", None)
            off = (12*st[0] + st[1])*1024
            prev = steps4()[k-1]
            t = ""
            if prev is None or ((12*prev[0] + prev[1])*1024) >> 12 != off >> 12:
                t = f"s_add_u32 s{S_AT}, s{S_ACT}, {off & ~0xfff}\n"
            return (t + f"buffer_load_dwordx4 {a(4*k,4)}, v4, {srd(S_WS)}, s{S_AT} offen offset:{off & 0xfff} sc1", None)
        t = "s_add_u32 s44, s44, 4096\n" if (k and k % 4 == 0) else ""
        if opt("rot", 0) and k and k % 4 == 0:
            t = f"s_mov_b32 s44, s{S_AE}\n" if k == 40 else t + f"s_cmp_eq_u32 s44, s{S_AE}\ns_cselect_b32 s44, s{S_AB}, s44\n"
        return (t + f"buffer_load_dwordx4 {a(4*k,4)}, v4, {srd(S_WS)}, s44 offen offset:{(k%4)*1024} {LDP('a')}", None)
    H0 = opt("a0", 14)
    for k in range(H0): A(act_op(k)[0])
    TL = opt("k4tail", 4)
    order4 = [(k, t) for k in range(43 - TL) for t in range(2)] + [(k, t) for t in range(2) for k in range(43 - TL, 43)]
    def frag_read(n):
        k, t = order4[n]
        ad = WD_ORDER[k]*4096
        base = (("v6", "v7"), ("v14", "v15"), ("v16", "v17"))[ad >> 16][t]
        off = ad & 0xffff
        b = AF + (n % NAF)*4
        return f"ds_read_b64_tr_b16 {v(b,2)}, {base} offset:{off}\nds_read_b64_tr_b16 {v(b+2,2)}, {base} offset:{off+1024}"
    two = opt("two", 0)
    nchk = opt("nchk", 12)
    if two:
        pb = A.label("pb")
        A(f"s_cmp_lg_u32 s3, 0\ns_cbranch_scc1 {pb}\nbuffer_load_dword v252, v249, {srd(S_WS)}, s63 offen sc1\n{pb}:", tag="spin")
    side = []
    n0 = 0
    for k in range(H0, 43):
        if two and k == NSA: n0 = max(n0, nchk + 1)
        side.append((n0, *act_op(k))); n0 += opt("astep", 1)
    PF = NAF - 2
    N = 86
    ts(A, "issued4")
    for n in range(PF): A(frag_read(n))
    RS = 272
    early = []
    for n in range(N):
        k, t = order4[n]
        if n % 2 == 0: A.touch_regs([("v", AF+((n+1)%NAF)*4+3)])
        A(f"v_mfma_f32_32x32x16_bf16 {v(ACC+16*t,16)}, {v(AF+(n%NAF)*4,4)}, {a(4*k,4)}, {v(ACC+16*t,16) if k else 0}")
        if n == 0: ts(A, "first4"); tc(A, "first4")
        if side and side[0][0] <= n:
            _, tx, tag = side.pop(0); A(tx, tag=tag)
        if two and n == nchk:
            assert side[0][0] > nchk
            pc, lp = A.label("pc"), A.label("pcl")
            A(f"""
            s_cmp_lg_u32 s3, 0
            s_cbranch_scc1 {pc}
            s_mov_b32 s{S_CNT}, 0
            s_waitcnt vmcnt({NSA - H0})
            {lp}:
            v_cmp_ne_u32 vcc, s{S_TOK}, v252
            s_add_u32 s{S_CNT}, s{S_CNT}, 1
            s_cmp_ge_u32 s{S_CNT}, {MAXPOLL}
            s_cbranch_scc1 {pc}
            s_cbranch_vccz {pc}
            buffer_load_dword v252, v249, {srd(S_WS)}, s63 offen sc1
            s_waitcnt vmcnt(0)
            s_branch {lp}
            {pc}:
            s_barrier
            """, tag="spin")
            ts(A, "sync3b")
        if n == 47:
            A.wait_tag("dr"); A("s_barrier")
            for st_ in range(40, 43): A(*wd_op(st_, "do"))
            A(f"buffer_load_dwordx4 {v(XG,4)}, v10, {srd(S_WS)}, s46 offen {LDP('x')}")
            A(f"buffer_load_dwordx4 {v(XG+4,4)}, v10, {srd(S_WS)}, s48 offen {LDP('x')}")
            A(f"buffer_load_dwordx4 {v(XG+8,4)}, v11, {srd(S_WS)}, s47 offen sc1")
            A(f"buffer_load_dwordx4 {v(XG+12,4)}, v11, {srd(S_WS)}, s47 offen offset:16 sc1")
        if n == 73:
            A.wait_tag("do"); A("s_barrier")
            A(f"""
            s_mul_i32 s51, s3, {32*RS}
            v_and_b32 v18, 31, v1
            v_mul_u32_u24 v18, {RS}, v18
            v_bfe_u32 v19, v1, 5, 1
            v_lshl_add_u32 v18, v19, 4, v18
            v_add_u32 v18, s51, v18
            v_mul_u32_u24 v19, {RS}, v8
            v_lshl_add_u32 v19, v9, 5, v19
            """)
        if n + PF < N: A(frag_read(n+PF))
        if TL >= 3 and n == N - TL + 1: early = list(range(4))
        if early and n >= N - TL + 1:
            for _ in range(-(-len(early) // (N - n))):
                j = early.pop(0); A(f"ds_write_b128 v18, {v(ACC+4*j,4)} offset:{j*32}")
    assert not side
    ts(A, "mfma4"); tc(A, "mfma4")
    XF = 112
    for it in range(2):
        for h in range(4): A(f"v_lshlrev_b32 v{XF+it*8+2*h}, 16, v{XG+it*4+h}\nv_and_b32 v{XF+it*8+2*h+1}, 0xffff0000, v{XG+it*4+h}")
    for t in range(1 if TL >= 3 else 0, 2):
        for j in range(4):
            A(f"ds_write_b128 v18, {v(ACC+16*t+4*j,4)} offset:{t*128+j*32}")
    A("s_waitcnt lgkmcnt(0)\ns_barrier")
    RD = 128
    for it in range(2):
        for kh in range(2):
            for hf in range(2):
                A(f"ds_read_b128 {v(RD+it*16+kh*8+hf*4,4)}, v19 offset:{(kh*64+it*32)*RS+hf*16}")
    for it in range(2):
        z = RD + it*16
        for h in range(4): A(f"v_pk_add_f32 {v(z+2*h,2)}, {v(z+2*h,2)}, {v(z+8+2*h,2)}")
        for h in range(4): A(f"v_pk_fma_f32 {v(z+2*h,2)}, {v(z+2*h,2)}, {v(XG+8+2*h,2)}, {v(XF+it*8+2*h,2)}")
        if opt("scale", 0):
            for h in range(8): A(f"v_mul_f32 v{z+h}, {fbits(1 + opt('scale', 0)/1000)}, v{z+h}")
        for h in range(4): A(f"v_cvt_pk_bf16_f32 v{z+8+h}, v{z+2*h}, v{z+2*h+1}")
        A(f"buffer_store_dwordx4 {v(z+8,4)}, v12, {srd(S_OUT)}, s{49+it} offen {opt('outsc', 'sc1')}")

def LOC(c): return "" if c in opt("loc", "") else "sc1"
def LDP(c): return opt("ldp", "nt") if c in opt("loc", "") else "sc1"
def PLP(c): return opt("plp", "nt") if c in opt("loc", "") else "sc1"
def flag_set(A, soff, keep=0, reset=True, c="-", w0extra=False):
    sk = A.label("fs")
    if w0extra:
        l0, l1 = A.label("fw"), A.label("fx")
        A(f"s_cmp_eq_u32 s3, 0\ns_cbranch_scc1 {l0}\ns_waitcnt vmcnt(0)\ns_branch {l1}\n{l0}:\ns_waitcnt vmcnt(1)\n{l1}:")
        keep = 1
    A(f"""
    s_waitcnt vmcnt({keep}) lgkmcnt(0)
    s_barrier
    s_cmp_lg_u32 s3, 0
    s_cbranch_scc1 {sk}
    v_mov_b32 v250, 0
    v_mov_b32 v251, s{S_TOK}
    s_mov_b64 exec, 1
    buffer_store_dword v251, v250, {srd(S_WS)}, s{soff} offen {LOC(c)}
    s_mov_b64 exec, -1
    {sk}:
    """)
    A.reset()

def late_prefetch(A, chunks, do_touch, nonln):
    n = 0
    if do_touch: touch(A, nonln=nonln); n += 3
    wchunks(A, chunks); n += 6*len(list(chunks))
    return n

def poll(A, kind, soff, others=None, after0=None):
    sk, lp, w0, jn = A.label("pk"), A.label("pl"), A.label("p0"), A.label("pj")
    A(f"s_cmp_eq_u32 s3, 0\ns_cbranch_scc1 {w0}")
    if others: others(A)
    A(f"s_branch {jn}\n{w0}:\ns_mov_b32 s{S_CNT}, 0")
    shrink = opt("shrink", 1)
    slp = f"s_sleep {opt('slp', 0)}\n" if opt("slp", 0) else ""
    if kind == "l16": A("v_lshlrev_b32 v250, 7, v2")
    elif kind.startswith("s64"): A("v_lshlrev_b32 v250, 6, v1")
    NG = int(kind[-1]) if kind.startswith("s64") else 0
    if not NG:
        if shrink: A(f"s_mov_b64 exec, {'0xffffff' if kind == 'lst' else '0xffff'}")
        A(f"""
        {lp}:
        buffer_load_dword v252, v250, {srd(S_WS)}, s{soff} offen {PLP('h' if kind == 'l16' else 'a')}
        s_add_u32 s{S_CNT}, s{S_CNT}, 1
        s_waitcnt vmcnt(0)
        v_cmp_ne_u32 vcc, s{S_TOK}, v252
        s_cmp_ge_u32 s{S_CNT}, {MAXPOLL}
        s_cbranch_scc1 {sk}
        """)
        if shrink: A(f"s_and_b64 exec, exec, vcc\ns_cbranch_execz {sk}\n{slp}s_branch {lp}")
        else: A(f"{slp}s_cbranch_vccnz {lp}")
        A(f"{sk}:\ns_mov_b64 exec, -1")
    else:
        for j in range(1, 4): A(f"s_add_u32 s{71+j}, s{soff}, {j*4096}")
        if opt("pre1", 0):
            l1, d1 = A.label("p1"), A.label("p2")
            A(f"""
            s_and_b32 s92, s2, 127
            s_lshl_b32 s92, s92, 6
            s_add_u32 s92, s92, s{soff}
            v_mov_b32 v251, 0
            s_mov_b64 exec, 1
            {l1}:
            buffer_load_dword v252, v251, {srd(S_WS)}, s92 offen sc1
            s_add_u32 s{S_CNT}, s{S_CNT}, 1
            s_waitcnt vmcnt(0)
            v_cmp_ne_u32 vcc, s{S_TOK}, v252
            s_cmp_ge_u32 s{S_CNT}, {MAXPOLL}
            s_cbranch_scc1 {d1}
            s_cbranch_vccnz {l1}
            {d1}:
            s_mov_b64 exec, -1
            """)
        M = [84, 86, 88, 90]
        for j in range(4): A(f"s_mov_b64 s[{M[j]}:{M[j]+1}], {-1 if j < NG else 0}")
        A(f"{lp}:")
        for j in range(NG):
            sj = A.label("ps")
            A(f"s_mov_b64 exec, s[{M[j]}:{M[j]+1}]\ns_cbranch_execz {sj}")
            A(f"buffer_load_dword v{252+j}, v250, {srd(S_WS)}, s{soff if j == 0 else 71+j} offen sc1\n{sj}:")
        A(f"s_add_u32 s{S_CNT}, s{S_CNT}, 1\ns_waitcnt vmcnt(0)")
        for j in range(NG):
            A(f"s_mov_b64 exec, s[{M[j]}:{M[j]+1}]\nv_cmp_ne_u32 s[{M[j]}:{M[j]+1}], s{S_TOK}, v{252+j}" if shrink else f"s_mov_b64 exec, -1\nv_cmp_ne_u32 s[92:93], s{S_TOK}, v{252+j}\ns_cmp_lg_u64 s[92:93], 0\ns_cselect_b64 s[{M[j]}:{M[j]+1}], -1, 0")
        A(f"""
        s_or_b64 s[92:93], s[84:85], s[86:87]
        s_or_b64 s[94:95], s[88:89], s[90:91]
        s_cmp_ge_u32 s{S_CNT}, {MAXPOLL}
        s_cbranch_scc1 {sk}
        s_or_b64 s[92:93], s[92:93], s[94:95]
        s_cbranch_scc0 {sk}
        {slp}s_branch {lp}
        {sk}:
        s_mov_b64 exec, -1
        """)
    A.reset()
    if after0: after0(A)
    A(f"{jn}:\ns_barrier")

def build():
    A = Asm()
    name = NAME + "_kernel"
    kernel_begin(A, name)
    done = A.label("done")
    if TS: A("s_memrealtime s[62:63]\ns_waitcnt lgkmcnt(0)")
    entry(A, done)
    if TS:
        A("v_mov_b32 v248, 0\nv_writelane_b32 v248, s62, 0"); _ts["n"] = 1; _ts["names"] = ["entry"]
    m, i_, e = A.label("k1mod"), A.label("k1idle"), A.label("k1end")
    tok = f"s_waitcnt lgkmcnt(0)\ns_mul_i32 s{S_TOK}, s{S_TOK}, 0x9e3779b1\ns_add_u32 s{S_TOK}, s{S_TOK}, 0x7f4a7c15\ns_lshl_b32 s62, s2, 6\ns_add_u32 s62, s62, {WS_F1}"
    pfA = range(opt("pfA", 0)); tm = opt("touch", 11)
    A(f"s_cmp_ge_u32 s2, 128\ns_cbranch_scc1 {m}")
    k1_ln(A)
    ts(A, "stiss")
    if opt("lateset", 0): common_setup(A, 2, True)
    if tm == 9: touch(A, "gu")
    keep = (2 if tm == 9 else 0) + late_prefetch(A, pfA if opt("pfApos", 0) == 3 else [], tm == 5, False)
    A(tok); flag_set(A, 62, keep)
    A(f"s_branch {e}\n{m}:\ns_cmp_ge_u32 s2, 224\ns_cbranch_scc1 {i_}")
    A.reset()
    k1_mod(A)
    tsx(A, 62)
    A.reset()
    keep = late_prefetch(A, pfA if opt("pfMpos", 0) == 3 else [], tm in (5, 6), tm == 6)
    A(tok); flag_set(A, 62, keep)
    if tm == 4 and opt("tafter", 0): touch(A, nonln=True)
    A(f"s_branch {e}\n{i_}:")
    A.reset()
    A(small_srd(S_X, 2097152) + "\n" + small_srd(S_C, 1024) + "\ns_waitcnt lgkmcnt(0)")
    common_setup(A)
    A(tok); flag_set(A, 62, 63)
    if opt("idledelay", 0):
        A(f"v_lshlrev_b32 v4, 2, v0\nbuffer_load_dword v8, v4, {srd(S_C)}, 0 offen\ns_waitcnt vmcnt(0)")
    if tm == 7: touch_early(A)
    if tm == 9: touch(A, "gu")
    if tm in (10, 11): touch(A, "gu", nonln=True)
    if tm in (2, 5): touch(A)
    if tm in (3, 4, 6): touch(A, nonln=True)
    wchunks(A, pfA)
    A(f"{e}:")
    A.reset()
    ts(A, "f1set")
    if opt("cpf", 0) & 1: A(code_pf_text(".Lk2code", 249, 48))
    k2_pre(A, (lambda: wchunks(A, range(opt("pfA", 0), opt("pfA", 0) + opt("pf1", 3)))) if not opt("prefirst", 1) and not opt("w3", 1) else None)
    if opt("touch", 11) == 7: touch_late_setup(A)
    if opt("touch", 11) == 7 and opt("tlate", 0) == 0: touch_late(A)
    ts(A, "pre")
    w3 = opt("w3", 1)
    if opt("prefirst", 1) and not w3: wchunks(A, range(opt("pfA", 0), opt("pfA", 0) + opt("pf1", 3)))
    A(f"s_mov_b32 s63, {WS_F1}")
    poll(A, "s64x2" if opt("sepmod", 1) else "s64x4", 63, others=(lambda A_: w3_chunks(A_, range(opt("pf1", 3)))) if w3 else None)
    A.reset()
    ts(A, "sync1")
    A(".Lk2code:")
    k2_main(A)
    ts(A, "stiss2")
    keep = late_prefetch(A, range(opt("pfA", 0) + opt("pf1", 3), opt("pfB", 4)) if opt("pfBpos", 1) == 3 else [], False, False)
    flag_set(A, 62, keep + (4 if opt("latex1", 2) == 1 else 0), c="h")
    ts(A, "f2set")
    if not opt("w3b", 0): wchunks(A, range(opt("pfB", 4), opt("pfB", 4) + opt("pf3", 2)))
    if opt("cpf", 0) & 2: A(code_pf_text(".Lk3code", 249, 64))
    k3_pre(A)
    idle3 = A.label("k3idle")
    A(f"s_cmp_eq_u32 s37, 15\ns_cbranch_scc1 {idle3}")
    poll(A, "l16", 62, others=(lambda A_: w3_chunks(A_, range(opt("pfB", 4), opt("pfB", 4) + opt("pf3", 2)))) if opt("w3b", 0) else None)
    A.reset()
    ts(A, "sync2")
    A(".Lk3code:")
    k3_main(A, idle3)
    if opt("two", 0): A(f"s_add_u32 s61, s61, {WS_F3B - WS_F3}")
    flag_set(A, 61, c="a", w0extra=bool(opt("two", 0)))
    ts(A, "f3set")
    k4_pre(A)
    poll(A, "lst", 62, others=wd_rest3 if opt("wr3", 1) else wd_rest, after0=None if opt("wr3", 1) else wd_rest)
    ts(A, "sync3")
    k4_main(A)
    sk = A.label("ep")
    A(f"""
    s_or_b32 s63, s2, s3
    s_cmp_lg_u32 s63, 0
    s_cbranch_scc1 {sk}
    v_mov_b32 v250, 0
    v_mov_b32 v251, s{S_TOK}
    s_mov_b32 s63, {WS_EP}
    s_mov_b64 exec, 1
    buffer_store_dword v251, v250, {srd(S_WS)}, s63 offen sc1
    s_mov_b64 exec, -1
    {sk}:
    """)
    ts(A, "end")
    probe_end(A)
    ts_flush(A)
    A(f"{done}:\n.Lend:\ns_endpgm")
    if opt("jit", 0):
        import random
        rnd = random.Random(opt("jit", 0)); out = []
        def delay():
            lb = A.label("jit")
            c = f"s_cmp_eq_u32 s3, {rnd.randrange(4)}\ns_cbranch_scc0 {lb}" if rnd.random() < 0.6 else f"s_bitcmp1_b32 s2, {rnd.randrange(8)}\ns_cbranch_scc0 {lb}"
            return [Ins(x) for x in (c + f"\ns_sleep {rnd.randrange(2, 40)}\n{lb}:").split("\n")]
        for I in A.ins:
            if I.op == "s_barrier":
                if rnd.random() < 0.7: out += delay()
                out.append(I)
                if rnd.random() < 0.7: out += delay()
            else: out.append(I)
        A.ins = out
    code = A.finalize()
    return [(None, (256,1,1), (256,1,1), LDS_TOTAL)], code, [kernel_desc(name, 256, 172)]

if __name__ == "__main__":
    hdr = [l.rstrip("\n") for l in open("cdna_kernels/%s.s.ref" % NAME) if l.startswith(";") and "@launch" not in l][:15]
    out = sys.argv[1]
    for kv in sys.argv[2:]:
        k_, v_ = kv.split("=")
        OPT[k_] = int(v_) if v_.lstrip("-").isdigit() else v_
    TS = bool(opt("ts", 0)); PROBE = opt("probe", None)
    launches, code, descs = build()
    open(out, "w").write(file_text(hdr, launches, code, descs))
    if TS: json.dump([_ts["names"]], open(out[:-2] + ".json", "w"))
```

```python
import sys, struct, math, json
from asmlib import *

NAME = "adaLN_cond__spectral_fnet__swiglu_ffn__prompt"
def fbits(x): return "0x%08x" % struct.unpack("<I", struct.pack("<f", x))[0]
OPT = {}
def opt(k, d): return OPT.get(k, d)

WS_U   = 0
WS_MOD = 0x240000
WS_H2  = 0x300000
WS_X1  = 0x500000
WS_ACT = 0x800000
WS_FLG = 0xE00000
WS_TS  = 0xF00000
WS_SIZE = 0x1000000
WS_EP  = WS_FLG
WS_F1  = WS_FLG + 0x1000
WS_F2  = WS_FLG + 0x10000
WS_F3  = WS_FLG + 0x20000
def SLOTSTR(): return 65536 + opt("upad", 0)
def USLOT(): return 512 if opt("upm", 0) else SLOTSTR()
def UOCT(): return 16384 if opt("upm", 0) else 512
def UN2(): return 65536 + opt("upad", 0) if opt("upm", 0) else 2048
MAXPOLL = int(__import__('os').environ.get('MAXPOLL', '60000'))
LDS_TOTAL = 163840
SLOT = 24640; UOFF = 12320
XCS = 1040
XWS = 16 * XCS
XIMG = LDS_TOTAL - 4 * XWS
XTAB = XIMG - 384
MW = XIMG
MSC = MW + 32768
MRED = MSC + 1024
K2EX = 123200
K2HB = K2EX + 18432
S_X, S_WG, S_WU, S_WD, S_C, S_WM, S_OUT, S_WS = 4, 8, 12, 16, 20, 24, 28, 32
S_TOK, S_CNT, S_SL, S_WL, S_DG, S_DL, S_T, S_T2 = 64, 65, 66, 67, 68, 69, 70, 75
V_W = 240
V_D = 243
def srd(b): return s(b, 4)
LOG2E = fbits(-math.log2(math.e))

TS = False
PROBE = None
_ts = {"n": 0, "names": []}
def ts(A, name=None, cyc=False):
    if not TS: return
    if opt("tsonly", None) and name not in opt("tsonly", "").split("+") and name not in ("f1set", "end"): return
    n = _ts["n"]; _ts["n"] += 1
    _ts["names"].append(("c:" if cyc else "") + name)
    A(f"{'s_memtime' if cyc else 's_memrealtime'} s[98:99]\ns_waitcnt lgkmcnt(0)\nv_writelane_b32 v248, s98, {n}")
def tsx(A, lane):
    if TS: A(f"s_memrealtime s[98:99]\ns_waitcnt lgkmcnt(0)\nv_writelane_b32 v248, s98, {lane}")
def tc(A, name=None): ts(A, name, True)
def probe_end(A):
    if PROBE is None: return
    lp = A.label("pr")
    idx = _ts["names"].index(PROBE)
    A(f"""
    s_waitcnt vmcnt(0) lgkmcnt(0)
    v_readlane_b32 s90, v248, 0
    v_readlane_b32 s91, v248, {idx}
    s_nop 4
    s_sub_u32 s91, s91, s90
    s_cmp_gt_u32 s91, 20000
    s_cselect_b32 s91, 0, s91
    s_add_u32 s91, s91, 6000
    {lp}:
    s_memrealtime s[92:93]
    s_waitcnt lgkmcnt(0)
    s_sub_u32 s92, s92, s90
    s_cmp_lt_u32 s92, s91
    s_cbranch_scc1 {lp}
    """)
def ts_flush(A):
    if not TS: return
    sk = A.label("tsk")
    A(f"s_waitcnt vmcnt(0) lgkmcnt(0)\ns_cmp_lg_u32 s3, 0\ns_cbranch_scc1 {sk}")
    A(f"s_lshl_b32 s64, s2, 8\ns_add_u32 s64, s64, {WS_TS}\nv_lshlrev_b32 v1, 2, v1")
    A(f"buffer_store_dword v248, v1, {srd(S_WS)}, s64 offen")
    A(f"s_waitcnt vmcnt(0)\n{sk}:")

def bf16r(A, dst, src):
    A(f"v_cvt_pk_bf16_f32 {dst}, {src}, {src}\nv_lshlrev_b32 {dst}, 16, {dst}")

def sl_expr(d=38, t=39):
    if opt("T", 4) == 2:
        return f"s_lshr_b32 s{d}, s2, 4"
    if opt("T", 4) == 4:
        return f"s_and_b32 s{d}, s2, 1\ns_lshl_b32 s{d}, s{d}, 3\ns_lshr_b32 s{t}, s2, 5\ns_add_u32 s{d}, s{d}, s{t}"
    return f"s_and_b32 s{d}, s2, 3\ns_lshl_b32 s{d}, s{d}, 2\ns_lshr_b32 s{t}, s2, 6\ns_add_u32 s{d}, s{d}, s{t}"
def rb_expr():
    if opt("T", 4) == 2:
        return "s_and_b32 s36, s2, 7\ns_lshl_b32 s36, s36, 1\ns_bfe_u32 s39, s2, 0x10003\ns_add_u32 s36, s36, s39"
    if opt("T", 4) == 4:
        return "s_bfe_u32 s36, s2, 0x20001\ns_lshl_b32 s36, s36, 2\ns_bfe_u32 s39, s2, 0x20003\ns_add_u32 s36, s36, s39"
    return "s_bfe_u32 s36, s2, 0x10002\ns_lshl_b32 s36, s36, 3\ns_bfe_u32 s39, s2, 0x30003\ns_add_u32 s36, s36, s39"
def entry(A, done):
    A.c('---- entry: over-launched workgroups leave; kernel-argument loads; code prefetch into L2 ----')
    CP = opt("codepf", 1)
    A(f"""
    s_cmp_ge_u32 s2, 256
    s_cbranch_scc1 {done}
    s_load_dwordx2 s[4:5], s[0:1], 0
    s_load_dwordx2 s[24:25], s[0:1], 80
    s_load_dwordx2 s[20:21], s[0:1], 72
    s_load_dwordx2 s[32:33], s[0:1], 104
    s_load_dwordx2 s[8:9], s[0:1], 48
    s_load_dwordx2 s[12:13], s[0:1], 56
    s_load_dwordx2 s[16:17], s[0:1], 64
    s_load_dwordx2 s[28:29], s[0:1], 88
    v_lshrrev_b32 v2, 6, v0
    v_and_b32 v1, 63, v0
    v_readfirstlane_b32 s3, v2
    """)
    if CP:
        A(f"""
        s_getpc_b64 s[40:41]
        s_and_b32 s40, s40, 0xffffff00
        s_lshr_b32 s42, s2, 3
        s_lshl_b32 s42, s42, 2
        s_add_u32 s42, s42, s3
        s_and_b32 s42, s42, {opt("cpmask", 15)}
        s_lshl_b32 s42, s42, 11
        v_and_b32 v250, 15, v0
        v_lshlrev_b32 v250, 7, v250
        v_add_u32 v250, s42, v250
        v_min_u32 v250, .Lend-{NAME}_kernel, v250
        global_load_dword v249, v250, s[40:41]
        """)
    A("v_and_b32 v2, 15, v0\nv_bfe_u32 v3, v0, 4, 2")

def common_setup(A, part=3, ln=False):
    if part & 1: common_early(A)
    if part & 2: common_late(A, ln)
def common_early(A):
    for b, sz in ((S_WG, 1409024), (S_WU, 1409024), (S_WD, 1409024), (S_OUT, 2097152), (S_WS, WS_SIZE)):
        A(f"s_mov_b32 s{b+2}, {sz}\ns_mov_b32 s{b+3}, 0x20000")
    A(f"s_add_u32 s72, s32, {WS_EP}\ns_addc_u32 s73, s33, 0\ns_load_dword s{S_TOK}, s[72:73], 0")
def common_late(A, ln):
    A(f"""
    {sl_expr(72, 73)}
    s_mul_i32 s{S_SL}, s72, 192
    s_cmp_eq_u32 s72, 15
    s_cselect_b32 s{S_SL}, 0x200000, s{S_SL}
    s_mul_i32 s{S_WL}, s3, 3072
    s_mul_i32 s72, s3, 192
    s_mov_b32 s73, 0x15555556
    """)
    for i in range(3):
        A(f"""
        v_add_u32 v{V_W+i}, s72, v1
        v_add_u32 v{V_W+i}, {64*i}, v{V_W+i}
        v_mul_hi_u32 v244, v{V_W+i}, s73
        v_mul_u32_u24 v245, 12, v244
        v_sub_u32 v{V_W+i}, v{V_W+i}, v245
        v_lshlrev_b32 v{V_W+i}, 4, v{V_W+i}
        v_mul_u32_u24 v244, 2752, v244
        v_add_u32 v{V_W+i}, v{V_W+i}, v244
        """)
    if opt("tlb", 0):
        A(f"""
        v_lshlrev_b32 v239, {opt("tlb", 0)}, v1
        v_add_u32 v239, 0x2ff000, v239
        v_min_u32 v239, {WS_SIZE - 64}, v239
        buffer_load_dword v235, v239, {srd(S_WS)}, 0 offen
        v_mov_b32 v239, 0
        buffer_load_dword v234, v239, {srd(S_OUT)}, 0 offen
        """)
    if not ln and opt("touch", 11) in (1, 2, 3, 4, 5, 6, 8, 9, 10, 11): touch_setup(A, opt("touch", 11) in (3, 4, 6, 10, 11))
V_W3 = 224
def w3_setup(A):
    A(f"s_sub_u32 s72, s3, 1\ns_lshl_b32 s96, s72, 12\ns_lshl_b32 s72, s72, 8\ns_mov_b32 s73, 0x15555556")
    for i in range(4):
        A(f"""
        v_add_u32 v{V_W3+i}, s72, v1
        v_add_u32 v{V_W3+i}, {64*i}, v{V_W3+i}
        v_mul_hi_u32 v244, v{V_W3+i}, s73
        v_mul_u32_u24 v245, 12, v244
        v_sub_u32 v{V_W3+i}, v{V_W3+i}, v245
        v_lshlrev_b32 v{V_W3+i}, 4, v{V_W3+i}
        v_mul_u32_u24 v244, 2752, v244
        v_add_u32 v{V_W3+i}, v{V_W3+i}, v244
        """)
def w3_chunks(A, chunks):
    w3_setup(A)
    for ch in chunks:
        A(f"s_add_u32 s{S_T2}, s{S_SL}, {ch*64*2752}")
        for mtx, sr in ((0, S_WG), (1, S_WU)):
            for i in range(4):
                A(f"s_add_u32 m0, s96, {ch*SLOT+mtx*UOFF+i*1024}\nbuffer_load_dwordx4 v{V_W3+i}, {srd(sr)}, s{S_T2} offen lds")
def code_pf_text(label, dst, nlines=64):
    here = f".Lpc_{label.strip('.')}"
    return f"""s_getpc_b64 s[72:73]
    {here}:
    s_add_u32 s72, s72, {label}-{here}
    s_addc_u32 s73, s73, 0
    v_min_u32 v{dst}, {nlines-1}, v1
    v_lshlrev_b32 v{dst}, 7, v{dst}
    v_min_u32 v{dst}, .Lend-{label}, v{dst}
    global_load_dword v{dst}, v{dst}, s[72:73]"""
def small_srd(b, sz): return f"s_mov_b32 s{b+2}, {sz}\ns_mov_b32 s{b+3}, 0x20000"

def touch_setup(A, nonln=False):
    n = 22 if nonln else 11
    A(f"""
    s_lshl_b32 s{S_T}, s2, 2
    s_add_u32 s{S_T}, s{S_T}, s3
    s_and_b32 s{S_T}, s{S_T}, {511 if nonln else 1023}
    s_mul_i32 s{S_T}, s{S_T}, {n}
    v_min_u32 v246, {n-1}, v1
    v_add_u32 v246, s{S_T}, v246
    v_lshlrev_b32 v246, 7, v246
    """)
def touch(A, which="gud", nonln=False):
    pol = opt("tpol", "")
    A(f"s_mov_b64 exec, {hex((1 << (22 if nonln else 11)) - 1)}")
    if "g" in which: A(f"buffer_load_dword v236, v246, {srd(S_WG)}, 0 offen {pol}")
    if "u" in which: A(f"buffer_load_dword v237, v246, {srd(S_WU)}, 0 offen {pol}")
    if "d" in which: A(f"buffer_load_dword v238, v246, {srd(S_WD)}, 0 offen {pol}")
    A("s_mov_b64 exec, -1")

def touch_early(A):
    rows = 64 * opt("terows", 5)
    n = (rows * 2752 // 128 + 127) // 128
    A(f"""
    s_sub_u32 s38, s2, 224
    s_lshl_b32 s38, s38, 2
    s_add_u32 s38, s38, s3
    s_mul_i32 s38, s38, {n}
    v_min_u32 v246, {n-1}, v1
    v_add_u32 v246, s38, v246
    v_lshlrev_b32 v246, 7, v246
    buffer_load_dword v247, v246, {srd(S_WG)}, 0 offen
    buffer_load_dword v245, v246, {srd(S_WU)}, 0 offen
    """)
    for j in range(1, (n + 63) // 64):
        A(f"""
        v_add_u32 v244, {64*j}, v1
        v_min_u32 v244, {n-1}, v244
        v_add_u32 v244, s38, v244
        v_lshlrev_b32 v244, 7, v244
        buffer_load_dword v239, v244, {srd(S_WG)}, 0 offen
        buffer_load_dword v238, v244, {srd(S_WU)}, 0 offen
        """)
def touch_late_setup(A):
    rows0 = 64 * opt("terows", 5)
    n = ((512 - rows0) * 2752 // 128 + 1023) // 1024
    A(f"""
    s_lshl_b32 s{S_T}, s2, 2
    s_add_u32 s{S_T}, s{S_T}, s3
    s_mul_i32 s71, s{S_T}, 11
    s_mul_i32 s{S_T}, s{S_T}, {n}
    s_add_u32 s{S_T}, s{S_T}, {rows0*2752//128}
    v_min_u32 v246, {max(n-1,0)}, v1
    v_add_u32 v246, s{S_T}, v246
    v_lshlrev_b32 v246, 7, v246
    v_min_u32 v247, 10, v1
    v_add_u32 v247, s71, v247
    v_lshlrev_b32 v247, 7, v247
    """)
def touch_late(A):
    A(f"""
    s_mov_b64 exec, 0x7ff
    buffer_load_dword v245, v246, {srd(S_WG)}, 0 offen
    buffer_load_dword v244, v246, {srd(S_WU)}, 0 offen
    buffer_load_dword v246, v247, {srd(S_WD)}, 0 offen
    s_mov_b64 exec, -1
    """)

def wchunk_ops(chunk, slot, tag):
    ops = []
    for mtx, sr in ((0, S_WG), (1, S_WU)):
        for i in range(3):
            t = f"s_add_u32 m0, s{S_WL}, {slot*SLOT+mtx*UOFF+i*1024}\n"
            if mtx == 0 and i == 0: t += f"s_add_u32 s{S_T2}, s{S_SL}, {chunk*64*2752}\n"
            t += f"buffer_load_dwordx4 v{V_W+i}, {srd(sr)}, s{S_T2} offen {opt('wpol','')} lds"
            ops.append((t, tag))
    return ops
def wchunks(A, chunks):
    for ch in chunks:
        for t, tag in wchunk_ops(ch, ch, f"w{ch}"): A(t, tag=tag)

def k1_ln(A):
    A.c('==== phase 1a (workgroups 0..127): LayerNorm-1 statistics of 64 rows n = 32*n1 + n2 and the 64-point DFT over n1 ====\nrows -> LDS (DMA), sum / sum of squares by MFMA, U[slot][n2][d] = sum_n1 W64^(n1*slot) * r[n1] * (x - mean) -> workspace')
    A(f"""
    s_and_b32 s38, s2, 7
    s_lshr_b32 s39, s2, 3
    s_lshr_b32 s40, s39, 2
    s_lshl_b32 s40, s40, 3
    s_add_u32 s36, s38, s40
    s_and_b32 s37, s39, 3
    v_lshrrev_b32 v4, 2, v1
    v_sub_u32 v5, 0, v3
    v_xor_b32 v5, v5, v1
    v_and_b32 v5, 3, v5
    v_lshlrev_b32 v4, 15, v4
    v_lshl_add_u32 v4, v5, 4, v4
    s_lshl_b32 s38, s3, 9
    s_add_u32 s38, s38, s36
    s_lshl_b32 s38, s38, 10
    s_mul_i32 s39, s3, {XWS}
    s_add_u32 s39, s39, {XIMG}
    {small_srd(S_X, 2097152)}
    s_waitcnt lgkmcnt(0)
    """)
    ts(A, "prolog")
    for i in range(16):
        A(f"s_add_u32 m0, s39, {i*(XCS-64)}")
        A(f"buffer_load_dwordx4 v4, {srd(S_X)}, s38 offen offset:{i*64} {opt('xpol','')} lds", tag=f"x{i}")
    common_setup(A, 1 if opt("lateset", 0) else 3, True)
    BC, NV = 16, 48
    A("""
    v_lshlrev_b32 v5, 3, v3
    v_cvt_f32_u32 v5, v5
    s_and_b32 s40, s3, 1
    s_lshl_b32 s40, s40, 4
    v_add_u32 v6, s40, v2
    v_cmp_eq_u32 vcc, 0, v6
    v_cvt_f32_u32 v6, v6
    v_mul_f32 v6, 0x3c800000, v6
    v_mov_b32 v8, 0x3e800000
    v_cndmask_b32 v9, v6, 0.5, vcc
    v_cndmask_b32 v10, v8, 0, vcc
    """)
    for ks in range(2):
        for j in range(8):
            A(f"v_add_f32 v{NV}, {fbits(32*ks+j)}, v5\nv_mul_f32 v{BC+ks*8+j}, v{NV}, v6\nv_fma_f32 v{BC+16+ks*8+j}, v{NV}, v9, v10")
    for i in range(32): A(f"v_cos_f32 v{BC+i}, v{BC+i}")
    ONES, G, SA = 112, 116, 120
    for i in range(4): A(f"v_mov_b32 v{ONES+i}, 0x3f803f80")
    A(f"""
    v_lshrrev_b32 v5, 2, v2
    v_sub_u32 v5, 0, v5
    v_xor_b32 v5, v5, v3
    v_and_b32 v5, 3, v5
    v_lshlrev_b32 v5, 4, v5
    v_lshl_add_u32 v5, v2, 6, v5
    v_add_u32 v5, s39, v5
    v_lshrrev_b32 v6, 1, v3
    v_mul_u32_u24 v6, {XWS}, v6
    v_and_b32 v7, 3, v1
    v_mul_u32_u24 v7, {XCS}, v7
    v_add_u32 v6, v6, v7
    v_and_b32 v7, 1, v3
    v_lshl_add_u32 v6, v7, 9, v6
    v_bfe_u32 v8, v1, 2, 2
    v_lshl_add_u32 v6, v8, 6, v6
    s_lshr_b32 s41, s3, 1
    s_mul_i32 s42, s41, {8*XCS}
    s_add_u32 s42, s42, {XIMG}
    v_add_u32 v6, s42, v6
    v_lshlrev_b32 v7, 1, v7
    v_xor_b32 v8, s37, v7
    v_lshl_add_u32 v11, v8, 4, v6
    v_xor_b32 v8, 3, v8
    v_lshl_add_u32 v12, v8, 4, v6
    v_add_u32 v12, 256, v12
    s_lshl_b32 s42, s3, 6
    s_add_u32 s42, s42, {XTAB}
    v_lshl_add_u32 v7, v2, 2, s42
    s_lshl_b32 s42, s3, 5
    s_add_u32 s42, s42, {XTAB+256}
    v_lshl_add_u32 v13, v2, 1, s42
    v_lshlrev_b32 v8, 5, v3
    v_add_u32 v8, {XTAB}, v8
    v_lshlrev_b32 v14, 4, v3
    v_add_u32 v14, {XTAB+256}, v14
    s_mov_b32 s42, 0x22222222
    s_mov_b32 s43, 0x22222222
    s_mov_b32 s44, 0x44444444
    s_mov_b32 s45, 0x44444444
    s_mov_b32 s46, 0x88888888
    s_mov_b32 s47, 0x88888888
    v_add_u32 v9, s40, v2
    v_mul_u32_u24 v9, {USLOT()}, v9
    v_lshl_add_u32 v9, v3, 4, v9
    s_mul_i32 s48, s36, {UN2()}
    s_mul_i32 s49, s37, {UOCT()}
    s_add_u32 s48, s48, s49
    s_lshl_b32 s49, s41, 7
    s_add_u32 s48, s48, s49
    s_add_u32 s48, s48, {WS_U}
    """)
    ts(A, "const")
    R = 48
    pfl = [op for ch in range(opt("pfA", 0)) for op in wchunk_ops(ch, ch, f"w{ch}")] if opt("pfApos", 0) == 2 else []
    for i in range(16):
        A.wait_tag(f"x{i}")
        A(f"ds_read_b128 {v(R+4*i,4)}, v5 offset:{i*XCS}")
        for _ in range(2 if i >= 14 - len(pfl)//2 + 7 else 1):
            if pfl and i >= opt("pfAi", 2): A(*pfl.pop(0))
        if i >= 1:
            k = i - 1
            A(f"v_mfma_f32_16x16x32_bf16 {v(G,4)}, {v(R+4*k,4)}, {v(R+4*k,4)}, {v(G,4) if k else 0}")
            A(f"v_mfma_f32_16x16x32_bf16 {v(SA,4)}, {v(ONES,4)}, {v(R+4*k,4)}, {v(SA,4) if k else 0}")
    A("s_barrier")
    late_pf = pfl
    A(f"v_mfma_f32_16x16x32_bf16 {v(G,4)}, {v(R+60,4)}, {v(R+60,4)}, {v(G,4)}")
    A(f"v_mfma_f32_16x16x32_bf16 {v(SA,4)}, {v(ONES,4)}, {v(R+60,4)}, {v(SA,4)}")
    ts(A, "xarr")
    if opt("touch", 11) == 2: touch(A)
    if opt("pfA", 0) and opt("pfApos", 0) == 1: wchunks(A, range(opt("pfA", 0)))
    X = 128
    for tl in range(4):
        for ks in range(2):
            b = X + (tl*2+ks)*4
            off = ks*2*XWS + (tl >> 1)*4*XCS + 8*(tl & 1)
            A(f"ds_read_b64_tr_b16 {v(b,2)}, v11 offset:{off}\nds_read_b64_tr_b16 {v(b+2,2)}, v12 offset:{off}")
    A(f"""
    v_cndmask_b32 v10, v{G}, v{G+1}, s[42:43]
    v_cndmask_b32 v10, v10, v{G+2}, s[44:45]
    v_cndmask_b32 v10, v10, v{G+3}, s[46:47]
    v_mul_f32 v15, 0xbb000000, v{SA}
    v_mul_f32 v10, 0x3b000000, v10
    v_fma_f32 v10, -v15, v15, v10
    v_max_f32 v10, 0, v10
    v_cvt_pk_bf16_f32 v15, v15, v10
    v_and_b32 v10, 0xffff0000, v15
    v_add_f32 v10, {fbits(1e-5)}, v10
    """)
    bf16r(A, "v10", "v10")
    A("v_sqrt_f32 v10, v10")
    bf16r(A, "v10", "v10")
    A("""
    v_rcp_f32 v10, v10
    s_mov_b32 exec_lo, 0x00f0000f
    s_mov_b32 exec_hi, 0xf0000f00
    ds_write_b16 v13, v15
    ds_write_b32 v7, v10
    s_mov_b64 exec, -1
    s_waitcnt lgkmcnt(0)
    s_barrier
    """)
    ts(A, "stats")
    for op in late_pf: A(*op)
    TR, AM, BP, CM, ACC, PK = 48, 64, 72, 88, 160, 96
    for ks in range(2):
        for hf in range(2): A(f"ds_read_b128 {v(TR+ks*8+hf*4,4)}, v8 offset:{ks*128+hf*16}")
        A(f"ds_read_b128 {v(AM+ks*4,4)}, v14 offset:{ks*64}")
    for ks in range(2):
        for c in range(2):
            for jj in range(4):
                b = BC + c*16 + ks*8 + 2*jj
                A(f"v_pk_mul_f32 {v(b,2)}, {v(b,2)}, {v(TR+ks*8+2*jj,2)}")
            for jj in range(4):
                b = BC + c*16 + ks*8 + 2*jj
                A(f"v_cvt_pk_bf16_f32 v{BP+(c*2+ks)*4+jj}, v{b}, v{b+1}")
    for ks in range(2):
        for c in range(2):
            A(f"v_mfma_f32_16x16x32_bf16 {v(CM+4*c,4)}, {v(AM+ks*4,4)}, {v(BP+(c*2+ks)*4,4)}, {v(CM+4*c,4) if ks else 0}")
    for tl in range(4):
        for c in range(2):
            acc = ACC + (tl*2+c)*4
            A(f"v_mfma_f32_16x16x32_bf16 {v(acc,4)}, {v(X+(tl*2)*4,4)}, {v(BP+(c*2)*4,4)}, {v(CM+4*c,4)}")
        for c in range(2):
            acc = ACC + (tl*2+c)*4
            A(f"v_mfma_f32_16x16x32_bf16 {v(acc,4)}, {v(X+(tl*2+1)*4,4)}, {v(BP+(c*2+1)*4,4)}, {v(acc,4)}")
        if tl >= 1: k1_store(A, tl-1, ACC, PK)
    k1_store(A, 3, ACC, PK)

def k1_store(A, tl, ACC, PK):
    acc = ACC + tl*8; pk = PK + tl*4
    for r in range(4): A(f"v_cvt_pk_bf16_f32 v{pk+r}, v{acc+r}, v{acc+4+r}")
    A(f"buffer_store_dwordx4 {v(pk,4)}, v9, {srd(S_WS)}, s48 offen offset:{(tl&1)*256+(tl>>1)*64} sc1", tag="st")

def k1_mod(A):
    A.c('==== phase 1b (workgroups 128..223): mod = silu(c) @ w_mod, 32 columns per workgroup ====')
    A(f"""
    s_and_b32 s38, s2, 7
    s_lshr_b32 s39, s2, 3
    s_mul_i32 s38, s38, 12
    s_add_u32 s36, s38, s39
    s_sub_u32 s36, s36, 16
    v_lshlrev_b32 v4, 2, v0
    {small_srd(S_C, 1024)}
    {small_srd(S_WM, 3145728)}
    {small_srd(S_X, 2097152)}
    v_lshrrev_b32 v5, 2, v1
    v_mul_u32_u24 v5, 6144, v5
    v_and_b32 v6, 3, v1
    v_lshl_add_u32 v5, v6, 4, v5
    s_mul_i32 s38, s3, {128*6144}
    s_lshl_b32 s39, s36, 6
    s_add_u32 s38, s38, s39
    s_lshl_b32 s39, s3, 13
    s_add_u32 s39, s39, {MW}
    s_waitcnt lgkmcnt(0)
    buffer_load_dword v8, v4, {srd(S_C)}, 0 offen
    """)
    if opt("touch", 11) == 3: touch(A, nonln=True)
    if opt("moddelay", 0): A("v_mov_b32 v8, v8")
    for i in range(8):
        A(f"s_add_u32 m0, s39, {i*1024}")
        if i: A(f"s_add_u32 s38, s38, {16*6144}")
        A(f"buffer_load_dwordx4 v5, {srd(S_WM)}, s38 offen {opt('mpol','nt')} lds", tag="wm")
    common_setup(A)
    A(f"""
    v_bfe_u32 v6, v1, 2, 2
    v_lshl_add_u32 v6, v3, 3, v6
    v_lshlrev_b32 v6, 6, v6
    v_and_b32 v7, 3, v1
    v_lshl_add_u32 v6, v7, 3, v6
    v_add_u32 v6, s39, v6
    v_add_u32 v4, {MSC}, v4
    s_lshl_b32 s40, s3, 8
    s_add_u32 s40, s40, {MSC}
    v_lshl_add_u32 v7, v3, 4, s40
    v_lshlrev_b32 v9, 16, v8
    v_and_b32 v10, 0xffff0000, v8
    v_mul_f32 v11, {LOG2E}, v9
    v_mul_f32 v12, {LOG2E}, v10
    v_exp_f32 v11, v11
    v_exp_f32 v12, v12
    v_add_f32 v11, 1.0, v11
    v_add_f32 v12, 1.0, v12
    v_rcp_f32 v11, v11
    v_rcp_f32 v12, v12
    v_mul_f32 v9, v9, v11
    v_mul_f32 v10, v10, v12
    v_cvt_pk_bf16_f32 v9, v9, v10
    ds_write_b32 v4, v9
    """)
    SF, WF, ACC = 16, 32, 64
    A("s_waitcnt lgkmcnt(0)")
    tsx(A, 60)
    for ks in range(4): A(f"ds_read_b128 {v(SF+4*ks,4)}, v7 offset:{ks*64}")
    A(f"""
    v_and_b32 v10, 31, v1
    s_lshr_b32 s40, s36, 4
    s_and_b32 s41, s36, 15
    s_lshl_b32 s41, s41, 5
    v_add_u32 v10, s41, v10
    v_lshrrev_b32 v15, 8, v10
    v_lshlrev_b32 v15, 8, v15
    v_bfe_u32 v72, v10, 2, 2
    v_lshl_add_u32 v15, v72, 6, v15
    v_bfe_u32 v72, v10, 4, 4
    v_lshl_add_u32 v15, v72, 2, v15
    v_and_b32 v72, 3, v10
    v_add_u32 v15, v15, v72
    v_bfe_u32 v72, v10, 3, 2
    v_lshlrev_b32 v73, 7, v72
    v_bfe_u32 v72, v10, 7, 2
    v_lshl_add_u32 v73, v72, 5, v73
    v_and_b32 v72, 7, v10
    v_lshl_add_u32 v73, v72, 2, v73
    v_bfe_u32 v72, v10, 5, 2
    v_add_u32 v73, v73, v72
    s_cmp_lt_u32 s40, 2
    s_cselect_b64 vcc, -1, 0
    v_cndmask_b32 v15, v15, v73, vcc
    s_cmp_eq_u32 s40, 5
    s_cselect_b64 vcc, -1, 0
    v_cndmask_b32 v10, v15, v10, vcc
    v_lshlrev_b32 v10, 2, v10
    s_lshl_b32 s41, s40, 11
    s_add_u32 s41, s41, {WS_MOD}
    s_cmp_eq_u32 s40, 1
    s_cselect_b32 s42, 1.0, 0
    s_cmp_eq_u32 s40, 4
    s_cselect_b32 s42, 1.0, s42
    s_lshl_b32 s43, s3, 7
    s_add_u32 s43, s43, {MRED}
    v_lshl_add_u32 v9, v2, 2, s43
    s_sub_u32 s44, s40, 3
    s_cmp_lt_u32 s44, 2
    s_cselect_b32 s43, {fbits(math.log2(math.e))}, 1.0
    s_cmp_eq_u32 s40, 5
    s_cselect_b32 s43, {fbits(1/math.log2(math.e)**2)}, s43
    v_and_b32 v74, 31, v1
    v_lshlrev_b32 v74, 2, v74
    v_add_u32 v74, {MRED}, v74
    """)
    A.wait_tag("wm")
    tsx(A, 61)
    if opt("touch", 11) == 2: touch(A)
    if opt("touch", 11) == 4 and not opt("tafter", 0): touch(A, nonln=True)
    if opt("touch", 11) == 9: touch(A, "gu")
    if opt("touch", 11) in (10, 11): touch(A, "gu", nonln=True)
    if opt("pfA", 0) and opt("pfMpos", 0) == 1: wchunks(A, range(opt("pfA", 0)))
    for ks in range(4):
        for nt in range(2):
            b = WF + (ks*2+nt)*4
            off = ks*2048 + nt*32
            A(f"ds_read_b64_tr_b16 {v(b,2)}, v6 offset:{off}\nds_read_b64_tr_b16 {v(b+2,2)}, v6 offset:{off+256}")
    for ks in range(4):
        for nt in range(2):
            A(f"v_mfma_f32_16x16x32_bf16 {v(ACC+4*nt,4)}, {v(SF+4*ks,4)}, {v(WF+(ks*2+nt)*4,4)}, {v(ACC+4*nt,4) if ks else 0}")
    skip = A.label("modskip")
    A(f"""
    s_mov_b64 exec, 0xffff
    ds_write_b32 v9, v{ACC}
    ds_write_b32 v9, v{ACC+4} offset:64
    s_mov_b64 exec, -1
    s_waitcnt lgkmcnt(0)
    s_barrier
    s_cmp_lg_u32 s3, 0
    s_cbranch_scc1 {skip}
    ds_read_b32 v11, v74
    ds_read_b32 v12, v74 offset:128
    ds_read_b32 v13, v74 offset:256
    ds_read_b32 v14, v74 offset:384
    v_add_f32 v11, v11, v12
    v_add_f32 v13, v13, v14
    v_add_f32 v11, v11, v13
    """)
    bf16r(A, "v11", "v11")
    A("v_add_f32 v11, s42, v11")
    bf16r(A, "v11", "v11")
    if opt("fold", 1): A("v_mul_f32 v11, s43, v11")
    A(f"""
    s_mov_b32 exec_hi, 0
    buffer_store_dword v11, v10, {srd(S_WS)}, s41 offen sc1
    s_mov_b64 exec, -1
    {skip}:
    """)

K2 = dict(BS=16, CC=24, CS=26, TW=28, BH=44, U=64, XR=128, CA=136, GA=168, CB=176, SB=184, Z=192, XF=224)
def k2_pre(A, hook=None):
    A.c('==== phase 2 set-up: twiddle / DFT constants (v_cos / v_sin), residual rows, addresses ====')
    r = K2
    if opt("T", 4) == 2: A("s_and_b32 s36, s2, 7\ns_lshl_b32 s36, s36, 2\ns_bfe_u32 s37, s2, 0x20003")
    else: A("s_and_b32 s36, s2, 7\ns_bfe_u32 s37, s2, 0x20003\ns_lshl_b32 s37, s37, 3")
    A("""
    s_add_u32 s36, s36, s37
    s_lshr_b32 s37, s2, 5
    s_sub_u32 s39, 64, s36
    s_cmp_eq_u32 s36, 0
    s_cselect_b32 s39, 32, s39
    s_cselect_b64 s[40:41], -1, 0
    s_lshl_b32 s42, s37, 2
    s_add_u32 s43, s42, s3
    s_lshl_b32 s43, s43, 6
    s_add_u32 s44, s43, s36
    s_add_u32 s45, s43, s39
    s_lshl_b32 s44, s44, 10
    s_lshl_b32 s45, s45, 10
    v_lshlrev_b32 v4, 5, v2
    v_lshl_add_u32 v4, v3, 3, v4
    """)
    for uu in range(2):
        for nt in range(2):
            A(f"buffer_load_dwordx2 {v(r['XR']+(uu*2+nt)*2,2)}, v4, {srd(S_X)}, s{44+uu} offen offset:{nt*512}")
    if hook: hook()
    A("""
    v_lshrrev_b32 v5, 2, v2
    v_add_u32 v5, s42, v5
    v_lshlrev_b32 v5, 6, v5
    v_and_b32 v6, 2, v2
    v_cmp_ne_u32 vcc, 0, v6
    v_mov_b32 v7, s36
    v_mov_b32 v8, s39
    v_cndmask_b32 v7, v7, v8, vcc
    v_add_u32 v5, v5, v7
    v_cvt_f32_u32 v5, v5
    v_mul_f32 v5, 0x3a000000, v5
    v_and_b32 v6, 1, v2
    v_cvt_f32_u32 v6, v6
    v_mul_f32 v6, 0x3e800000, v6
    v_mov_b32 v7, 0xbe800000
    v_mov_b32 v8, 0x3e800000
    v_cndmask_b32 v7, v7, v8, vcc
    v_cndmask_b32 v7, v7, 0, s[40:41]
    v_add_f32 v7, v7, v6
    v_cndmask_b32 v8, 1.0, 0, vcc
    v_cndmask_b32 v9, 0, 1.0, vcc
    v_cndmask_b32 v8, 1.0, v8, s[40:41]
    v_cndmask_b32 v9, 1.0, v9, s[40:41]
    v_lshlrev_b32 v10, 2, v3
    v_cvt_f32_u32 v10, v10
    """)
    T = 64
    NQ = 72
    for ks in range(2):
        for i in range(4): A(f"v_add_f32 v{NQ+ks*4+i}, {fbits(16*ks+i)}, v10")
    for ks in range(2):
        for i in range(4):
            A(f"v_fma_f32 v{T+2*i}, v{NQ+ks*4+i}, v5, v6\nv_fma_f32 v{T+2*i+1}, v{NQ+ks*4+i}, v5, v7")
        for i in range(8): A(f"v_cos_f32 v{T+i}, v{T+i}")
        for i in range(4):
            A(f"v_pk_mul_f32 {v(T+2*i,2)}, {v(T+2*i,2)}, v[8:9]")
            A(f"v_cvt_pk_bf16_f32 v{r['BS']+ks*4+i}, v{T+2*i}, v{T+2*i+1}")
    A("v_cvt_f32_u32 v12, v2\nv_mul_f32 v13, 0x3d800000, v12")
    for j in range(4): A(f"v_mul_f32 v{T+j}, v{NQ+j}, v13")
    for j in range(4): A(f"v_sin_f32 v{T+4+j}, v{T+j}")
    for j in range(4): A(f"v_cos_f32 v{T+j}, v{T+j}")
    for jj in range(2):
        A(f"v_cvt_pk_bf16_f32 v{r['CC']+jj}, v{T+2*jj}, v{T+2*jj+1}\nv_cvt_pk_bf16_f32 v{r['CS']+jj}, v{T+4+2*jj}, v{T+5+2*jj}")
    A("v_mul_f32 v13, 0x3b000000, v12\ns_lshl_b32 s46, s3, 3\nv_cvt_f32_u32 v14, s46")
    for t in range(8):
        A(f"v_add_f32 v11, {fbits(t)}, v14\nv_mul_f32 v{T+t}, v11, v13")
    for t in range(8):
        A(f"v_cos_f32 v{r['TW']+2*t}, v{T+t}\nv_sin_f32 v{r['TW']+2*t+1}, v{T+t}")
    for nt in range(2):
        A(f"v_add_f32 v13, {fbits(16*nt)}, v12\nv_mul_f32 v13, 0x3d000000, v13")
        for ks in range(2):
            for i in range(4): A(f"v_mul_f32 v{T+i}, v{NQ+ks*4+i}, v13")
            for i in range(4): A(f"v_sin_f32 v{T+4+i}, v{T+i}")
            for i in range(4): A(f"v_cos_f32 v{T+i}, v{T+i}")
            for i in range(4): A(f"v_cvt_pk_bf16_f32 v{r['BH']+(nt*2+ks)*4+i}, v{T+i}, v{T+4+i}")
    A(f"""
    v_mul_u32_u24 v5, {4*UN2()}, v3
    v_lshl_add_u32 v5, v2, 4, v5
    s_mul_i32 s46, s36, {USLOT()}
    s_mul_i32 s47, s3, {UOCT()}
    s_add_u32 s46, s46, s47
    s_add_u32 s46, s46, {WS_U}
    s_add_u32 s47, s46, {2*UN2()}
    s_add_u32 s48, s46, {16*UN2()}
    s_add_u32 s49, s46, {18*UN2()}
    s_add_u32 s76, s46, {UN2()}
    s_add_u32 s77, s47, {UN2()}
    s_add_u32 s78, s48, {UN2()}
    s_add_u32 s79, s49, {UN2()}
    v_lshlrev_b32 v6, 7, v3
    s_lshl_b32 s50, s3, 9
    s_add_u32 s50, s50, {WS_MOD}
    s_cmp_eq_u32 s2, 0
    s_cselect_b32 s59, s50, {WS_SIZE}
    v_lshlrev_b32 v7, 4, v1
    v_lshl_add_u32 v8, v3, 5, v2
    v_mul_u32_u24 v8, 144, v8
    s_lshl_b32 s51, s3, 5
    s_add_u32 s51, s51, {K2EX}
    v_add_u32 v8, s51, v8
    v_mul_u32_u24 v9, 144, v2
    v_lshl_add_u32 v9, v3, 4, v9
    s_mul_i32 s51, s3, {32*144}
    s_add_u32 s51, s51, {K2EX}
    v_add_u32 v9, s51, v9
    s_mul_i32 s51, s3, 2080
    s_add_u32 s51, s51, {K2HB}
    v_add_u32 v10, s51, v4
    v_and_b32 v11, 7, v0
    v_lshrrev_b32 v12, 3, v0
    v_mul_u32_u24 v13, 1040, v11
    v_lshl_add_u32 v13, v12, 4, v13
    v_add_u32 v13, {K2HB}, v13
    v_lshlrev_b32 v11, 4, v11
    v_lshl_add_u32 v11, v12, 9, v11
    s_lshl_b32 s51, s36, 3
    s_add_u32 s51, s51, s37
    s_lshl_b32 s52, s51, 13
    s_lshl_b32 s53, s3, 11
    s_add_u32 s52, s52, s53
    s_add_u32 s52, s52, {WS_X1}
    s_add_u32 s53, s52, 1024
    s_lshr_b32 s54, s51, 2
    s_lshl_b32 s54, s54, 15
    s_and_b32 s55, s51, 3
    s_lshl_b32 s55, s55, 7
    s_add_u32 s54, s54, s55
    s_add_u32 s54, s54, {WS_H2}
    s_add_u32 s55, s54, 16384
    s_mov_b32 s56, {WS_MOD+2*2048}
    s_mov_b32 s57, {WS_MOD+3*2048}
    s_mov_b32 s58, {WS_MOD+4*2048}
    s_lshl_b32 s62, s51, 7
    s_add_u32 s62, s62, {WS_F2}
    v_lshlrev_b32 v250, 6, v1
    """)

def k2_main(A):
    A.c('==== phase 2: 8 output rows per workgroup ====\n32-point DFT over n2 (with twiddles), * (1 + scale) (+ 2048 * shift for row 0), 512-point hidden DFT as 16 x 32,\nx1 = x + gate * y, LayerNorm-2, modulation -> h2')
    r = K2
    U, Z = r['U'], r['Z']
    sk0 = A.label("k2sl")
    A(f"s_cmp_lg_u32 s2, 0\ns_cbranch_scc1 {sk0}")
    for t in range(0 if opt("sepmod", 1) else 8):
        A(f"buffer_load_dwordx4 {a(4*t,4)}, v6, {srd(S_WS)}, s50 offen offset:{t*16} sc1")
    A(f"{sk0}:")
    sep = opt("sepmod", 1)
    if sep:
        m0 = A.label("k2m0")
        A(f"s_cmp_lg_u32 s3, 0\ns_cbranch_scc1 {m0}")
        A(f"buffer_load_dword v254, v250, {srd(S_WS)}, s73 offen sc1\nbuffer_load_dword v255, v250, {srd(S_WS)}, s74 offen sc1\n{m0}:", tag="spin")
    for hh in range(2):
        for ks in range(2):
            for i in range(4):
                A(f"buffer_load_dwordx4 {v(U+((ks*2+hh)*4+i)*4,4)}, v5, {srd(S_WS)}, s{(46, 76)[i&1]+ks*2+(i>>1)} offen offset:{hh*256} sc1")
    if sep:
        m1, lp1 = A.label("k2m1"), A.label("k2ml")
        A(f"""
        s_cmp_lg_u32 s3, 0
        s_cbranch_scc1 {m1}
        s_mov_b32 s{S_CNT}, 0
        s_waitcnt vmcnt(16)
        {lp1}:
        v_xor_b32 v254, s{S_TOK}, v254
        v_xor_b32 v255, s{S_TOK}, v255
        v_or_b32 v254, v254, v255
        v_cmp_ne_u32 vcc, 0, v254
        s_add_u32 s{S_CNT}, s{S_CNT}, 1
        s_cmp_ge_u32 s{S_CNT}, {MAXPOLL}
        s_cbranch_scc1 {m1}
        s_cbranch_vccz {m1}
        buffer_load_dword v254, v250, {srd(S_WS)}, s73 offen sc1
        buffer_load_dword v255, v250, {srd(S_WS)}, s74 offen sc1
        s_waitcnt vmcnt(0)
        s_branch {lp1}
        {m1}:
        s_barrier
        """, tag="spin")
        sk1 = A.label("k2s1")
        A(f"s_cmp_lg_u32 s2, 0\ns_cbranch_scc1 {sk1}")
        for t in range(8):
            A(f"buffer_load_dwordx4 {a(4*t,4)}, v6, {srd(S_WS)}, s50 offen offset:{t*16} sc1", tag="spin")
        A(f"{sk1}:", tag="spin")
    for t in range(8):
        A(f"buffer_load_dwordx4 {v(r['CA']+4*t,4)}, v6, {srd(S_WS)}, s50 offen offset:{2048+t*16} sc1")
    for nm, sr in (("GA", 56), ("CB", 58), ("SB", 57)):
        for nt in range(2):
            A(f"buffer_load_dwordx4 {v(r[nm]+nt*4,4)}, v7, {srd(S_WS)}, s{sr} offen offset:{nt*1024} sc1")
    A.touch_regs([("v", U)])
    for uu in range(2):
        for nt in range(2):
            xr = r['XR'] + (uu*2+nt)*2; xf = r['XF'] + (uu*2+nt)*4
            A(f"v_lshlrev_b32 v{xf}, 16, v{xr}\nv_and_b32 v{xf+1}, 0xffff0000, v{xr}\nv_lshlrev_b32 v{xf+2}, 16, v{xr+1}\nv_and_b32 v{xf+3}, 0xffff0000, v{xr+1}")
    pfl = [op for ch in range(opt("pfA", 0) + opt("pf1", 3), opt("pfB", 4)) for op in wchunk_ops(ch, ch, f"w{ch}")]
    if opt("pfBpos", 1) == 0:
        for op in pfl: A(*op)
    if opt("pfBpos", 1) in (0, 3): pfl = []
    if opt("touch", 11) == 7 and opt("tlate", 0) == 1: touch_late(A)
    if opt("touch", 11) == 8: touch(A)
    if opt("touch", 11) == 9: touch(A, "d")
    if TS and opt("tsu", 1): A(f"v_mov_b32 v{U+60}, v{U+60}"); ts(A, "uarr")
    for hh in range(2):
        for ks in range(2):
            b = U + (ks*2+hh)*16
            for i in range(4):
                for t in range(i+1, 4): A(f"v_swap_b32 v{b+4*i+t}, v{b+4*t+i}")
        for t in range(4):
            for ks in range(2):
                z = Z + (hh*4+t)*4
                A(f"v_mfma_f32_16x16x32_bf16 {v(z,4)}, {v(U+(ks*2+hh)*16+4*t,4)}, {v(r['BS']+ks*4,4)}, {v(z,4) if ks else 0}")
                if pfl and opt("pfBpos", 1) != 4 and (hh == 1 or opt("pfBpos", 1) == 2): A(*pfl.pop(0))
    if opt("pfBpos", 1) != 4:
        for op in pfl: A(*op)
        pfl = []
    ZP, P, Q = 64, 80, 112
    ts(A, "s2")
    for t in range(8):
        for h in range(2): A(f"v_pk_mul_f32 {v(Z+4*t+2*h,2)}, {v(Z+4*t+2*h,2)}, {v(r['CA']+4*t+2*h,2)}")
    sk = A.label("k2sa")
    A(f"s_cmp_lg_u32 s2, 0\ns_cbranch_scc1 {sk}")
    A("s_mov_b32 s59, 0x45000000\ns_mov_b32 exec_lo, 0x00010001\ns_mov_b32 exec_hi, 0x00010001")
    for i in range(32):
        A(f"v_accvgpr_read_b32 v{P}, a{i}\nv_fma_f32 v{Z+i}, v{P}, s59, v{Z+i}")
    A(f"s_mov_b64 exec, -1\n{sk}:")
    for t in range(8):
        A(f"v_cvt_pk_bf16_f32 v{ZP+2*t}, v{Z+4*t}, v{Z+4*t+1}\nv_cvt_pk_bf16_f32 v{ZP+2*t+1}, v{Z+4*t+2}, v{Z+4*t+3}")
        if t >= 1:
            A(f"v_mfma_f32_16x16x16_bf16 {v(P+4*(t-1),4)}, {v(ZP+2*(t-1),2)}, {v(r['CC'],2)}, 0")
            A(f"v_mfma_f32_16x16x16_bf16 {v(Z+4*(t-1),4)}, {v(ZP+2*(t-1),2)}, {v(r['CS'],2)}, 0")
    A(f"v_mfma_f32_16x16x16_bf16 {v(P+28,4)}, {v(ZP+14,2)}, {v(r['CC'],2)}, 0")
    A(f"v_mfma_f32_16x16x16_bf16 {v(Z+28,4)}, {v(ZP+14,2)}, {v(r['CS'],2)}, 0")
    Q = Z; W = 112
    ts(A, "h1m")
    for hh in range(2):
        for uu in range(2):
            idx = [(P+4*(hh*4+t4)+2*uu, Q+4*(hh*4+t4)+2*uu, r['TW']+2*(hh*4+t4), W+uu*8+hh*4+t4) for t4 in range(4)]
            for p, q, tw, w in idx: A(f"v_pk_add_f32 {v(p,2)}, {v(p,2)}, {v(q,2)} op_sel:[0,1] op_sel_hi:[1,0] neg_hi:[0,1]")
            for p, q, tw, w in idx: A(f"v_pk_mul_f32 {v(q,2)}, {v(p,2)}, {v(tw,2)} op_sel:[0,0] op_sel_hi:[1,0]")
            for p, q, tw, w in idx: A(f"v_pk_fma_f32 {v(q,2)}, {v(p,2)}, {v(tw,2)}, {v(q,2)} op_sel:[1,1,0] op_sel_hi:[0,1,1] neg_hi:[1,0,0]")
            for p, q, tw, w in idx: A(f"v_cvt_pk_bf16_f32 v{w}, v{q}, v{q+1}")
            A(f"ds_write_b128 v8, {v(W+uu*8+hh*4,4)} offset:{uu*16*144+hh*16}")
    A("s_waitcnt lgkmcnt(0)\ns_barrier")
    ts(A, "h1")
    AF, Y = 80, 96
    for uu in range(2):
        for ks in range(2):
            A(f"ds_read_b128 {v(AF+(uu*2+ks)*4,4)}, v9 offset:{uu*16*144+ks*64}")
    for op in pfl[:4]: A(*op)
    pfl = pfl[4:]
    for uu in range(2):
        for ks in range(2):
            for nt in range(2):
                y = Y + (uu*2+nt)*4
                A(f"v_mfma_f32_16x16x32_bf16 {v(y,4)}, {v(AF+(uu*2+ks)*4,4)}, {v(r['BH']+(nt*2+ks)*4,4)}, {v(y,4) if ks else 0}")
                if pfl: A(*pfl.pop(0))
    for op in pfl: A(*op)
    XP = 168 if opt("latex1", 2) == 2 else 112
    ts(A, "h2m")
    for uu in range(2):
        for nt in range(2):
            y = Y + (uu*2+nt)*4; xf = r['XF'] + (uu*2+nt)*4; g = r['GA'] + nt*4
            for h in range(2):
                A(f"v_pk_fma_f32 {v(y+2*h,2)}, {v(y+2*h,2)}, {v(g+2*h,2)}, {v(xf+2*h,2)}")
        y = Y + uu*8; t = 64 + 4*uu
        A(f"v_pk_add_f32 {v(t,2)}, {v(y,2)}, {v(y+2,2)}\nv_pk_mul_f32 {v(t+2,2)}, {v(y,2)}, {v(y,2)}")
        A(f"v_pk_add_f32 {v(t,2)}, {v(t,2)}, {v(y+4,2)}\nv_pk_fma_f32 {v(t+2,2)}, {v(y+2,2)}, {v(y+2,2)}, {v(t+2,2)}")
        A(f"v_pk_add_f32 {v(t,2)}, {v(t,2)}, {v(y+6,2)}\nv_pk_fma_f32 {v(t+2,2)}, {v(y+4,2)}, {v(y+4,2)}, {v(t+2,2)}")
        A(f"v_add_f32 v{72+2*uu}, v{t}, v{t+1}\nv_pk_fma_f32 {v(t+2,2)}, {v(y+6,2)}, {v(y+6,2)}, {v(t+2,2)}")
        A(f"v_add_f32 v{73+2*uu}, v{t+2}, v{t+3}")
    def x1_store(uu, nt):
        y = Y + (uu*2+nt)*4; xp = XP + (uu*2+nt)*2
        A(f"v_cvt_pk_bf16_f32 v{xp}, v{y}, v{y+1}\nv_cvt_pk_bf16_f32 v{xp+1}, v{y+2}, v{y+3}")
        A(f"buffer_store_dwordx2 {v(xp,2)}, v4, {srd(S_WS)}, s{52+uu} offen offset:{nt*512} sc1", tag="st")
    late_x1 = opt("latex1", 2)
    def x1_cvt(uu, nt):
        y = Y + (uu*2+nt)*4; xp = XP + (uu*2+nt)*2
        A(f"v_cvt_pk_bf16_f32 v{xp}, v{y}, v{y+1}\nv_cvt_pk_bf16_f32 v{xp+1}, v{y+2}, v{y+3}")
    def x1_st(uu, nt):
        A(f"buffer_store_dwordx2 {v(XP+(uu*2+nt)*2,2)}, v4, {srd(S_WS)}, s{52+uu} offen offset:{nt*512} sc1", tag="x1")
    if late_x1: x1_store = x1_cvt
    A("v_permlane16_swap_b32 v72, v73\nv_permlane16_swap_b32 v74, v75\nv_add_f32 v72, v72, v73\nv_add_f32 v74, v74, v75")
    x1_store(0, 0)
    A("v_permlane32_swap_b32 v72, v74\nv_add_f32 v72, v72, v74")
    x1_store(0, 1)
    A("v_add_f32 v72, v72, v72 row_ror:8")
    A(f"v_mov_b32 v76, 0x3b000000\nv_mov_b32 v77, {fbits(1e-5)}")
    A("v_add_f32 v72, v72, v72 row_ror:4")
    x1_store(1, 0)
    A("v_add_f32 v72, v72, v72 row_ror:2")
    x1_store(1, 1)
    A("""
    v_add_f32 v72, v72, v72 row_ror:1
    v_mul_f32 v72, v72, v76
    v_readlane_b32 s40, v72, 0
    v_readlane_b32 s41, v72, 16
    v_readlane_b32 s42, v72, 32
    v_readlane_b32 s43, v72, 48
    v_mov_b32 v64, s40
    v_mov_b32 v66, s42
    v_fma_f32 v65, -v64, v64, s41
    v_fma_f32 v67, -v66, v66, s43
    v_max_f32 v65, 0, v65
    v_max_f32 v67, 0, v67
    v_add_f32 v65, v65, v77
    v_add_f32 v67, v67, v77
    v_rsq_f32 v65, v65
    v_rsq_f32 v67, v67
    v_mul_f32 v64, -v64, v65
    v_mul_f32 v66, -v66, v67
    """)
    HP = 120
    ts(A, "ln2")
    for uu in range(2):
        for nt in range(2):
            y = Y + (uu*2+nt)*4
            for h in range(2):
                A(f"v_pk_fma_f32 {v(y+2*h,2)}, {v(y+2*h,2)}, {v(64+2*uu,2)}, {v(64+2*uu,2)} op_sel:[0,1,0] op_sel_hi:[1,1,0]")
            for h in range(2):
                A(f"v_pk_fma_f32 {v(y+2*h,2)}, {v(y+2*h,2)}, {v(r['CB']+nt*4+2*h,2)}, {v(r['SB']+nt*4+2*h,2)}")
            hp = HP + (uu*2+nt)*2
            A(f"v_cvt_pk_bf16_f32 v{hp}, v{y}, v{y+1}\nv_cvt_pk_bf16_f32 v{hp+1}, v{y+2}, v{y+3}")
            A(f"ds_write_b64 v10, {v(hp,2)} offset:{uu*1040+nt*512}")
    A("s_waitcnt lgkmcnt(0)\ns_barrier")
    ts(A, "hb")
    A("ds_read_b128 v[64:67], v13\nds_read_b128 v[68:71], v13 offset:512")
    A(f"buffer_store_dwordx4 v[64:67], v11, {srd(S_WS)}, s54 offen {LOC('h')}", tag="st")
    A(f"buffer_store_dwordx4 v[68:71], v11, {srd(S_WS)}, s55 offen {LOC('h')}", tag="st")
    if late_x1 == 1:
        for uu in range(2):
            for nt in range(2): x1_st(uu, nt)
    if late_x1 == 2:
        A("v_mov_b32 v176, v4\ns_mov_b32 s80, s52\ns_mov_b32 s81, s53")

WD_ORDER = [37, 38, 39] + list(range(13, 37)) + list(range(0, 13)) + [37, 38, 39]
def k4_ids(A):
    if opt("R", 4) == 4:
        A("s_and_b32 s36, s2, 7\ns_lshl_b32 s36, s36, 2\ns_bfe_u32 s38, s2, 0x20003\ns_add_u32 s36, s36, s38\ns_lshr_b32 s37, s2, 5")
    else:
        A("s_bfe_u32 s36, s2, 0x20001\ns_lshl_b32 s36, s36, 3\ns_bfe_u32 s38, s2, 0x30003\ns_add_u32 s36, s36, s38\ns_and_b32 s37, s2, 1\ns_lshl_b32 s37, s37, 2\ns_lshr_b32 s38, s2, 6\ns_add_u32 s37, s37, s38")
    A("s_lshr_b32 s38, s3, 1\ns_and_b32 s39, s3, 1")
def wd_setup(A):
    k4_ids(A)
    A(f"""
    v_lshrrev_b32 v244, 3, v1
    v_lshlrev_b32 v{V_D}, 10, v244
    v_and_b32 v245, 7, v1
    v_lshlrev_b32 v244, 1, v244
    v_and_b32 v244, 4, v244
    v_xor_b32 v245, v245, v244
    v_lshl_add_u32 v{V_D}, v245, 4, v{V_D}
    s_mul_i32 s{S_DG}, s38, {688*1024}
    s_lshl_b32 s41, s37, 7
    s_add_u32 s{S_DG}, s{S_DG}, s41
    s_lshl_b32 s41, s39, 13
    s_add_u32 s{S_DG}, s{S_DG}, s41
    s_lshl_b32 s{S_DL}, s3, 10
    """)
    if opt("two", 0):
        A(f"""
        s_lshl_b32 s41, s37, 7
        s_lshl_b32 s42, s39, 13
        s_add_u32 s41, s41, s42
        s_mul_i32 s{S_DG}, s38, {6*16384}
        s_add_u32 s{S_DG}, s{S_DG}, s41
        s_add_u32 s42, s38, 84
        s_lshl_b32 s42, s42, 14
        s_add_u32 s{S_DG2}, s42, s41
        """)
        return
    A(f"""
    s_mul_i32 s41, s37, 10
    s_lshr_b32 s41, s41, 3
    s_lshl_b32 s41, s41, 16
    s_add_u32 s{S_DR}, s{S_DG}, s41
    s_add_u32 s{S_DE}, s{S_DG}, {40*16384}
    """)
S_DR, S_DE, S_AB, S_AE = 82, 83, 97, 100
S_DG2, S_ACT, S_ACT2, S_AT = 82, 83, 97, 100
WS_F3B = WS_FLG + 0x30000
NA = 3
def steps4():
    return [None] + [(i, j) for i in range(7) for j in range(NA)] + [(i, j) for i in range(7) for j in range(NA, 6)]
NSA = 1 + 7*NA
def wd_op(step, tag):
    if opt("two", 0):
        st = steps4()[step]
        t = f"s_add_u32 m0, s{S_DL}, {WD_ORDER[step]*4096}\n"
        if st is None: so = S_DG2; t += "s_nop 0\n"
        else: so = S_T; t += f"s_add_u32 s{S_T}, s{S_DG}, {(12*st[0]+st[1])*16384}\n"
        return (t + f"buffer_load_dwordx4 v{V_D}, {srd(S_WD)}, s{so} offen lds", tag)
    return wd_op1(step, tag)
def wd_op1(step, tag):
    t = f"s_add_u32 m0, s{S_DL}, {WD_ORDER[step]*4096}\n"
    if not opt("rot", 0) or step >= 40:
        t += f"s_add_u32 s{S_T}, s{S_DG}, {step*16384}\n"
    else:
        if step and step % 4 == 0:
            t += f"s_add_u32 s{S_DR}, s{S_DR}, 65536\ns_cmp_eq_u32 s{S_DR}, s{S_DE}\ns_cselect_b32 s{S_DR}, s{S_DG}, s{S_DR}\n"
        t += f"s_add_u32 s{S_T}, s{S_DR}, {(step % 4)*16384}\n"
    t += f"buffer_load_dwordx4 v{V_D}, {srd(S_WD)}, s{S_T} offen {opt('dpol','')} lds"
    return (t, tag)

def k3_ids(A):
    A(sl_expr() + "\ns_mov_b32 s37, s38\n" + rb_expr())
def k3_pre(A):
    A.c('==== phase 3 / 4 set-up ====')
    wd_setup(A)
    k3_ids(A)
    A(f"""
    s_lshl_b32 s45, s36, 2
    s_add_u32 s45, s45, s3
    s_lshl_b32 s46, s45, 15
    s_add_u32 s46, s46, {WS_H2}
    v_lshlrev_b32 v4, 4, v1
    v_bfe_u32 v5, v1, 1, 1
    v_mul_u32_u24 v5, {UOFF}, v5
    v_bfe_u32 v6, v1, 2, 2
    v_bfe_u32 v7, v1, 5, 1
    v_lshl_add_u32 v6, v7, 3, v6
    v_mul_u32_u24 v6, 192, v6
    v_add_u32 v5, v5, v6
    v_bfe_u32 v6, v1, 4, 1
    v_lshl_add_u32 v5, v6, 4, v5
    v_and_b32 v6, 1, v1
    v_lshl_add_u32 v5, v6, 3, v5
    v_add_u32 v6, {2*SLOT}, v5
    v_add_u32 v7, {4*SLOT}, v5
    s_mul_i32 s47, s45, {86*1024}
    s_mul_i32 s48, s37, {6*1024}
    s_add_u32 s47, s47, s48
    s_add_u32 s47, s47, {WS_ACT}
    s_add_u32 s48, s47, 2048
    s_add_u32 s51, s47, 4096
    s_cmp_eq_u32 s37, 14
    s_cselect_b32 s48, {WS_SIZE}, s48
    s_cselect_b32 s51, {WS_SIZE}, s51
    s_lshl_b32 s49, s2, 2
    s_add_u32 s49, s49, s3
    s_mul_i32 s49, s49, 11
    v_min_u32 v246, 10, v1
    v_add_u32 v246, s49, v246
    v_lshlrev_b32 v246, 7, v246
    v_mov_b32 v14, {LOG2E}
    v_mov_b32 v15, {LOG2E}
    s_lshl_b32 s61, s36, 4
    s_add_u32 s61, s61, s37
    s_lshl_b32 s61, s61, 7
    s_add_u32 s61, s61, {WS_F3}
    s_lshl_b32 s62, s36, 11
    s_add_u32 s62, s62, {WS_F2}
    """)

def x1_ops():
    return [(f"buffer_store_dwordx2 {v(168+(uu*2+nt)*2,2)}, v176, {srd(S_WS)}, s{80+uu} offen offset:{nt*512} {LOC('x')}", "x1") for uu in range(2) for nt in range(2)]
def k3_main(A, idle):
    done = A.label("k3done")
    if opt("short14", 1):
        short = A.label("k3short")
        A(f"s_cmp_eq_u32 s37, 14\ns_cbranch_scc1 {short}")
        k3_body(A, 6)
        A(f"s_branch {done}\n{short}:")
        A.reset()
        k3_body(A, 2)
    else:
        k3_body(A, 6)
    k3_tail(A, idle, done)

def k3_body(A, NT):
    A.c('==== phase 3: h2[128 rows] @ (w_gate | w_up)[96 columns each], act = silu(g) * u ; w_down streams into the freed LDS ====')
    ACC, AF, NAF = 16, 112, 8
    T, PK = 144, 160
    full = NT == 6
    def h2_op(k):
        t = "s_add_u32 s46, s46, 4096\n" if (k and k % 4 == 0) else ""
        return (t + f"buffer_load_dwordx4 {a(4*k,4)}, v4, {srd(S_WS)}, s46 offen offset:{(k%4)*1024} {LDP('h')}", None)
    H0 = opt("h0", 12)
    for k in range(H0): A(h2_op(k)[0])
    order = [(k, j) for k in range(32) for j in range(NT)]
    N = len(order)
    def slot_of(k):
        ch = k // 4
        return ch if ch < 6 else ch - 6
    def frag_read(n):
        k, j = order[n]
        sl = slot_of(k)
        base = ("v5", "v6", "v7")[sl // 2]
        off = (sl % 2)*SLOT + (k % 4)*16*192 + j*32
        b = AF + (n % NAF)*4
        return f"ds_read_b64_tr_b16 {v(b,2)}, {base} offset:{off}\nds_read_b64_tr_b16 {v(b+2,2)}, {base} offset:{off+4*192}"
    PF = NAF - 2
    CH = 4*NT
    b01, b23, b6, b7 = 2*CH - 1, 4*CH - 1, 6*CH - PF - 1, 7*CH - PF - 1
    assert b6 >= 5*CH - 1 and b7 >= 6*CH - 1
    bars = {b01: [], b23: [], b6: ["w6"], b7: ["w7"]}
    pfB = opt("pfB", 4) + opt("pf3", 2)
    for ch in range(pfB, 6):
        nb = ch*CH - PF - 1
        if ch == 5 and b23 <= nb: bars[b23].append("w5")
        else: bars.setdefault(nb, []).append(f"w{ch}")
    sc = lambda x: x*NT // 6
    side = []
    n0 = 0
    def add(op, step):
        nonlocal n0
        side.append((sc(n0), *op)); n0 += step
    for k in range(H0, 32): add(h2_op(k), 2)
    for ch in range(pfB, 6):
        for op in wchunk_ops(ch, ch, f"w{ch}"): add(op, 2)
    for op in x1_ops(): add(op, 2)
    def at_least(n):
        nonlocal n0
        while sc(n0) <= n: n0 += 1
    at_least(b01)
    for ch in (6, 7):
        for op in wchunk_ops(ch, ch-6, f"w{ch}"): add(op, 2)
    for st_ in range(0, 3): add(wd_op(st_, "wd"), 3)
    if opt("cpf", 0) & 4 and full: side.append((max(n0, opt("cpn", 90)), code_pf_text(".Lk3epi", 249, 60), None))
    at_least(b23)
    for st_ in range(3, 14): add(wd_op(st_, "wd"), 3)
    at_least(b6)
    for st_ in range(14, 20): add(wd_op(st_, "wd"), 3)
    at_least(b7)
    for st_ in range(20, 27): add(wd_op(st_, "wd"), 3)
    assert opt("pfB", 4) >= 2
    if not opt("nostartbar", 1): A("v_accvgpr_read_b32 v13, a0\ns_barrier")
    if full: ts(A, "issued")
    for n in range(PF): A(frag_read(n))
    if full: tc(A, "first")
    for n, (k, j) in enumerate(order):
        acc = ACC + 16*j
        if n % 2 == 0: A.touch_regs([("v", AF+((n+1)%NAF)*4+3)])
        A(f"v_mfma_f32_32x32x16_bf16 {v(acc,16)}, {v(AF+(n%NAF)*4,4)}, {a(4*k,4)}, {v(acc,16) if k else 0}")
        if n == 0 and full: ts(A, "first")
        while side and side[0][0] <= n:
            _, t, tag = side.pop(0); A(t, tag=tag)
            if full: break
        if n in bars:
            for tg in bars[n]: A.wait_tag(tg)
            A("s_barrier")
            if full: ts(A, f"n{n}")
        if n + PF < N: A(frag_read(n+PF))
    for _, t, tag in side: A(t, tag=tag)
    if full:
        A(".Lk3epi:")
        ts(A, "mfma")
        tc(A, "mfma")
    def epi(j):
        acc = ACC + 16*j; pk = PK + 4*(j & 1); t0 = T + 8*(j & 1)
        if opt("fold", 1):
            for i in range(8): A(f"v_exp_f32 v{t0+i}, -v{acc + 8*(i//4) + i%4}")
        else:
            for hf in range(2):
                g = acc + 8*hf; t = t0 + 4*hf
                for h in range(2): A(f"v_pk_mul_f32 {v(t+2*h,2)}, {v(g+2*h,2)}, v[14:15]")
            for i in range(8): A(f"v_exp_f32 v{t0+i}, v{t0+i}")
        for hf in range(2):
            g, u = acc + 8*hf, acc + 8*hf + 4
            for h in range(2): A(f"v_pk_mul_f32 {v(g+2*h,2)}, {v(g+2*h,2)}, {v(u+2*h,2)}")
        for h in range(4): A(f"v_pk_add_f32 {v(t0+2*h,2)}, {v(t0+2*h,2)}, 1.0 op_sel_hi:[1,0]")
        for i in range(8): A(f"v_rcp_f32 v{t0+i}, v{t0+i}")
        for hf in range(2):
            g = acc + 8*hf; t = t0 + 4*hf
            for h in range(2): A(f"v_pk_mul_f32 {v(g+2*h,2)}, {v(g+2*h,2)}, {v(t+2*h,2)}")
        for hf in range(2):
            g = acc + 8*hf
            A(f"v_cvt_pk_bf16_f32 v{pk+2*hf}, v{g}, v{g+1}\nv_cvt_pk_bf16_f32 v{pk+2*hf+1}, v{g+2}, v{g+3}")
        A(f"buffer_store_dwordx4 {v(pk,4)}, v4, {srd(S_WS)}, s{(47,48,51)[j//2]} offen offset:{(j%2)*1024} {LOC('a')}", tag=("sA" if j < NA else "sB"))
    for j in range(NT): epi(j)
    if opt("two", 0):
        A.wait_tag("sA")
        skA = A.label("fa")
        A(f"""
        s_barrier
        s_cmp_lg_u32 s3, 0
        s_cbranch_scc1 {skA}
        v_mov_b32 v250, 0
        v_mov_b32 v251, s{S_TOK}
        s_mov_b64 exec, 1
        buffer_store_dword v251, v250, {srd(S_WS)}, s61 offen sc1
        s_mov_b64 exec, -1
        {skA}:
        """, tag="spin")
    if full: ts(A, "stiss3")

def k3_tail(A, idle, done):
    A.c('---- phase 3, workgroups without columns: warm w_down, fetch their own w_down image ----')
    A(f"s_branch {done}\n{idle}:")
    A.reset()
    A("s_waitcnt vmcnt(0)\ns_barrier")
    if opt("touch", 11) == 11:
        A(f"""
        s_lshl_b32 s49, s36, 2
        s_add_u32 s49, s49, s3
        s_mul_i32 s49, s49, {172*128}
        v_lshlrev_b32 v246, 7, v1
        buffer_load_dword v236, v246, {srd(S_WD)}, s49 offen
        s_add_u32 s50, s49, 8192
        buffer_load_dword v237, v246, {srd(S_WD)}, s50 offen
        s_add_u32 s50, s49, {108*128}
        buffer_load_dword v238, v246, {srd(S_WD)}, s50 offen
        """)
    if opt("latex1", 2) == 2:
        for op in x1_ops(): A(*op)
    for st_ in range(27): A(*wd_op(st_, "wd"))
    A(f"s_waitcnt vmcnt(0)\n{done}:")
    A.reset()

def k4_pre(A):
    k4_ids(A)
    A(f"""
    s_lshl_b32 s44, s36, 1
    s_add_u32 s44, s44, s39
    s_mul_i32 s44, s44, {86*1024}
    s_mul_i32 s45, s38, {43*1024}
    s_add_u32 s44, s44, s45
    s_add_u32 s44, s44, {WS_ACT}
    """)
    if opt("two", 0):
        A(f"""
        s_mul_i32 s45, s38, {37*1024}
        s_sub_u32 s44, s44, s45
        s_add_u32 s45, s38, 84
        s_mul_i32 s51, s38, {6*1024}
        s_sub_u32 s{S_ACT2}, s44, s51
        s_lshl_b32 s45, s45, 10
        s_add_u32 s{S_ACT2}, s{S_ACT2}, s45
        s_mov_b32 s{S_ACT}, s44
        """)
    A(f"""
    v_lshlrev_b32 v4, 4, v1
    v_lshrrev_b32 v8, 3, v0
    v_and_b32 v9, 7, v0
    s_lshl_b32 s46, s36, 16
    s_lshl_b32 s47, s37, 7
    s_add_u32 s46, s46, s47
    s_add_u32 s46, s46, {WS_X1}
    s_add_u32 s48, s46, 32768
    v_lshlrev_b32 v10, 10, v8
    v_lshl_add_u32 v10, v9, 4, v10
    v_lshlrev_b32 v11, 5, v9
    s_lshl_b32 s47, s37, 8
    s_add_u32 s47, s47, {WS_MOD+5*2048}
    s_sub_u32 s49, 64, s36
    s_cmp_eq_u32 s36, 0
    s_cselect_b32 s49, 32, s49
    v_and_b32 v12, 1, v8
    v_cmp_ne_u32 vcc, 0, v12
    v_mov_b32 v12, s36
    v_mov_b32 v13, s49
    v_cndmask_b32 v12, v12, v13, vcc
    v_lshrrev_b32 v13, 1, v8
    v_lshl_add_u32 v12, v13, 6, v12
    v_lshlrev_b32 v12, 10, v12
    v_lshl_add_u32 v12, v9, 4, v12
    s_lshl_b32 s49, s37, 7
    s_add_u32 s50, s49, 0x100000
    v_bfe_u32 v6, v1, 2, 2
    v_bfe_u32 v7, v1, 5, 1
    v_lshl_add_u32 v7, v7, 2, v6
    v_lshlrev_b32 v7, 7, v7
    v_bfe_u32 v13, v1, 4, 1
    v_lshl_add_u32 v7, v13, 5, v7
    v_and_b32 v13, 3, v1
    v_lshl_add_u32 v7, v13, 3, v7
    s_lshl_b32 s41, s38, 11
    v_add_u32 v7, s41, v7
    v_bfe_u32 v13, v1, 3, 1
    v_lshlrev_b32 v13, 6, v13
    v_xor_b32 v6, v7, v13
    v_xor_b32 v7, 64, v6
    v_add_u32 v14, 0x10000, v6
    v_add_u32 v15, 0x10000, v7
    v_add_u32 v16, 0x20000, v6
    v_add_u32 v17, 0x20000, v7
    s_mov_b32 s62, {WS_F3}
    s_lshr_b32 s51, s36, 1
    s_lshl_b32 s51, s51, 4
    v_cmp_eq_u32 vcc, 15, v2
    v_cndmask_b32 v250, v2, 0, vcc
    v_add_u32 v250, s51, v250
    """)
    if opt("latex1", 2):
        A(f"""
        v_and_b32 v251, 7, v1
        v_lshlrev_b32 v251, 5, v251
        """)
        if opt("T", 4) == 2: A("s_lshr_b32 s51, s36, 2\ns_and_b32 s52, s36, 3")
        else: A("s_and_b32 s51, s36, 7\ns_lshr_b32 s52, s36, 3")
        A("s_lshl_b32 s52, s52, 3\ns_add_u32 s51, s51, s52\nv_add_u32 v251, s51, v251")
        if opt("T", 4) == 2:
            A("v_and_b32 v252, 7, v251\nv_lshlrev_b32 v252, 1, v252\nv_bfe_u32 v253, v251, 3, 1\nv_add_u32 v252, v252, v253\nv_mov_b32 v253, 0\nv_lshrrev_b32 v251, 4, v251")
        elif opt("T", 4) == 4:
            A("v_bfe_u32 v252, v251, 1, 2\nv_lshlrev_b32 v252, 2, v252\nv_bfe_u32 v253, v251, 3, 2\nv_add_u32 v252, v252, v253\nv_and_b32 v253, 1, v251\nv_lshlrev_b32 v253, 3, v253\nv_lshrrev_b32 v251, 5, v251")
        else:
            A("v_bfe_u32 v252, v251, 2, 1\nv_lshlrev_b32 v252, 3, v252\nv_bfe_u32 v253, v251, 3, 3\nv_add_u32 v252, v252, v253\nv_and_b32 v253, 3, v251\nv_lshlrev_b32 v253, 2, v253\nv_lshrrev_b32 v251, 6, v251")
        A("v_add_u32 v251, v251, v253\nv_lshl_add_u32 v251, v252, 4, v251\nv_cmp_gt_u32 vcc, 16, v1\nv_cndmask_b32 v250, v251, v250, vcc")
    A("v_lshlrev_b32 v250, 7, v250")
    if opt("two", 0):
        A(f"v_mov_b32 v249, v250\nv_cmp_eq_u32 vcc, 15, v2\nv_cndmask_b32 v250, v2, 0, vcc\ns_lshr_b32 s51, s36, 1\ns_lshl_b32 s51, s51, 4\nv_add_u32 v250, s51, v250\nv_lshlrev_b32 v250, 7, v250\ns_mov_b32 s63, {WS_F3B}")

def wd_rest(A):
    for st_ in range(27, 40): A(*wd_op(st_, "dr"))
def wd_rest3(A):
    wd_rest(A)
    assert WD_ORDER[27:40] == list(range(13))
    A(f"s_lshl_b32 s74, s37, 7")
    for w in range(1, 4):
        sk = A.label("wr")
        A(f"s_cmp_lg_u32 s3, {w}\ns_cbranch_scc1 {sk}")
        for st_ in range(27 + w - 1, 40, 3):
            st = steps4()[st_] if opt("two", 0) else None
            row = (12*st[0] + st[1]) if st else st_
            A(f"s_mov_b32 m0, {WD_ORDER[st_]*4096}\ns_add_u32 s{S_T}, s74, {row*16384}\nbuffer_load_dwordx4 v{V_D}, {srd(S_WD)}, s{S_T} offen lds")
        A(f"{sk}:")

def k4_main(A):
    A.c('==== phase 4: out[64 x 64] = x1 + gate * (act @ w_down), K split over wave pairs, reduced through LDS ====')
    ACC, AF, NAF = 32, 64, 8
    XG = 96
    def act_op(k):
        if opt("two", 0):
            st = steps4()[k]
            if st is None: return (f"buffer_load_dwordx4 {a(4*k,4)}, v4, {srd(S_WS)}, s{S_ACT2} offen sc1", None)
            off = (12*st[0] + st[1])*1024
            prev = steps4()[k-1]
            t = ""
            if prev is None or ((12*prev[0] + prev[1])*1024) >> 12 != off >> 12:
                t = f"s_add_u32 s{S_AT}, s{S_ACT}, {off & ~0xfff}\n"
            return (t + f"buffer_load_dwordx4 {a(4*k,4)}, v4, {srd(S_WS)}, s{S_AT} offen offset:{off & 0xfff} sc1", None)
        t = "s_add_u32 s44, s44, 4096\n" if (k and k % 4 == 0) else ""
        if opt("rot", 0) and k and k % 4 == 0:
            t = f"s_mov_b32 s44, s{S_AE}\n" if k == 40 else t + f"s_cmp_eq_u32 s44, s{S_AE}\ns_cselect_b32 s44, s{S_AB}, s44\n"
        return (t + f"buffer_load_dwordx4 {a(4*k,4)}, v4, {srd(S_WS)}, s44 offen offset:{(k%4)*1024} {LDP('a')}", None)
    H0 = opt("a0", 14)
    for k in range(H0): A(act_op(k)[0])
    TL = opt("k4tail", 4)
    order4 = [(k, t) for k in range(43 - TL) for t in range(2)] + [(k, t) for t in range(2) for k in range(43 - TL, 43)]
    def frag_read(n):
        k, t = order4[n]
        ad = WD_ORDER[k]*4096
        base = (("v6", "v7"), ("v14", "v15"), ("v16", "v17"))[ad >> 16][t]
        off = ad & 0xffff
        b = AF + (n % NAF)*4
        return f"ds_read_b64_tr_b16 {v(b,2)}, {base} offset:{off}\nds_read_b64_tr_b16 {v(b+2,2)}, {base} offset:{off+1024}"
    two = opt("two", 0)
    nchk = opt("nchk", 12)
    if two:
        pb = A.label("pb")
        A(f"s_cmp_lg_u32 s3, 0\ns_cbranch_scc1 {pb}\nbuffer_load_dword v252, v249, {srd(S_WS)}, s63 offen sc1\n{pb}:", tag="spin")
    side = []
    n0 = 0
    for k in range(H0, 43):
        if two and k == NSA: n0 = max(n0, nchk + 1)
        side.append((n0, *act_op(k))); n0 += opt("astep", 1)
    PF = NAF - 2
    N = 86
    ts(A, "issued4")
    for n in range(PF): A(frag_read(n))
    RS = 272
    early = []
    for n in range(N):
        k, t = order4[n]
        if n % 2 == 0: A.touch_regs([("v", AF+((n+1)%NAF)*4+3)])
        A(f"v_mfma_f32_32x32x16_bf16 {v(ACC+16*t,16)}, {v(AF+(n%NAF)*4,4)}, {a(4*k,4)}, {v(ACC+16*t,16) if k else 0}")
        if n == 0: ts(A, "first4"); tc(A, "first4")
        if side and side[0][0] <= n:
            _, tx, tag = side.pop(0); A(tx, tag=tag)
        if two and n == nchk:
            assert side[0][0] > nchk
            pc, lp = A.label("pc"), A.label("pcl")
            A(f"""
            s_cmp_lg_u32 s3, 0
            s_cbranch_scc1 {pc}
            s_mov_b32 s{S_CNT}, 0
            s_waitcnt vmcnt({NSA - H0})
            {lp}:
            v_cmp_ne_u32 vcc, s{S_TOK}, v252
            s_add_u32 s{S_CNT}, s{S_CNT}, 1
            s_cmp_ge_u32 s{S_CNT}, {MAXPOLL}
            s_cbranch_scc1 {pc}
            s_cbranch_vccz {pc}
            buffer_load_dword v252, v249, {srd(S_WS)}, s63 offen sc1
            s_waitcnt vmcnt(0)
            s_branch {lp}
            {pc}:
            s_barrier
            """, tag="spin")
            ts(A, "sync3b")
        if n == 47:
            A.wait_tag("dr"); A("s_barrier")
            for st_ in range(40, 43): A(*wd_op(st_, "do"))
            A(f"buffer_load_dwordx4 {v(XG,4)}, v10, {srd(S_WS)}, s46 offen {LDP('x')}")
            A(f"buffer_load_dwordx4 {v(XG+4,4)}, v10, {srd(S_WS)}, s48 offen {LDP('x')}")
            A(f"buffer_load_dwordx4 {v(XG+8,4)}, v11, {srd(S_WS)}, s47 offen sc1")
            A(f"buffer_load_dwordx4 {v(XG+12,4)}, v11, {srd(S_WS)}, s47 offen offset:16 sc1")
        if n == 73:
            A.wait_tag("do"); A("s_barrier")
            A(f"""
            s_mul_i32 s51, s3, {32*RS}
            v_and_b32 v18, 31, v1
            v_mul_u32_u24 v18, {RS}, v18
            v_bfe_u32 v19, v1, 5, 1
            v_lshl_add_u32 v18, v19, 4, v18
            v_add_u32 v18, s51, v18
            v_mul_u32_u24 v19, {RS}, v8
            v_lshl_add_u32 v19, v9, 5, v19
            """)
        if n + PF < N: A(frag_read(n+PF))
        if TL >= 3 and n == N - TL + 1: early = list(range(4))
        if early and n >= N - TL + 1:
            for _ in range(-(-len(early) // (N - n))):
                j = early.pop(0); A(f"ds_write_b128 v18, {v(ACC+4*j,4)} offset:{j*32}")
    assert not side
    ts(A, "mfma4"); tc(A, "mfma4")
    XF = 112
    for it in range(2):
        for h in range(4): A(f"v_lshlrev_b32 v{XF+it*8+2*h}, 16, v{XG+it*4+h}\nv_and_b32 v{XF+it*8+2*h+1}, 0xffff0000, v{XG+it*4+h}")
    for t in range(1 if TL >= 3 else 0, 2):
        for j in range(4):
            A(f"ds_write_b128 v18, {v(ACC+16*t+4*j,4)} offset:{t*128+j*32}")
    A("s_waitcnt lgkmcnt(0)\ns_barrier")
    RD = 128
    for it in range(2):
        for kh in range(2):
            for hf in range(2):
                A(f"ds_read_b128 {v(RD+it*16+kh*8+hf*4,4)}, v19 offset:{(kh*64+it*32)*RS+hf*16}")
    for it in range(2):
        z = RD + it*16
        for h in range(4): A(f"v_pk_add_f32 {v(z+2*h,2)}, {v(z+2*h,2)}, {v(z+8+2*h,2)}")
        for h in range(4): A(f"v_pk_fma_f32 {v(z+2*h,2)}, {v(z+2*h,2)}, {v(XG+8+2*h,2)}, {v(XF+it*8+2*h,2)}")
        if opt("scale", 0):
            for h in range(8): A(f"v_mul_f32 v{z+h}, {fbits(1 + opt('scale', 0)/1000)}, v{z+h}")
        for h in range(4): A(f"v_cvt_pk_bf16_f32 v{z+8+h}, v{z+2*h}, v{z+2*h+1}")
        A(f"buffer_store_dwordx4 {v(z+8,4)}, v12, {srd(S_OUT)}, s{49+it} offen {opt('outsc', 'sc1')}")

def LOC(c): return "" if c in opt("loc", "") else "sc1"
def LDP(c): return opt("ldp", "nt") if c in opt("loc", "") else "sc1"
def PLP(c): return opt("plp", "nt") if c in opt("loc", "") else "sc1"
def flag_set(A, soff, keep=0, reset=True, c="-", w0extra=False):
    sk = A.label("fs")
    A.c("hand-off: all stores of the workgroup are complete -> wave 0 publishes this launch's token")
    if w0extra:
        l0, l1 = A.label("fw"), A.label("fx")
        A(f"s_cmp_eq_u32 s3, 0\ns_cbranch_scc1 {l0}\ns_waitcnt vmcnt(0)\ns_branch {l1}\n{l0}:\ns_waitcnt vmcnt(1)\n{l1}:")
        keep = 1
    A(f"""
    s_waitcnt vmcnt({keep}) lgkmcnt(0)
    s_barrier
    s_cmp_lg_u32 s3, 0
    s_cbranch_scc1 {sk}
    v_mov_b32 v250, 0
    v_mov_b32 v251, s{S_TOK}
    s_mov_b64 exec, 1
    buffer_store_dword v251, v250, {srd(S_WS)}, s{soff} offen {LOC(c)}
    s_mov_b64 exec, -1
    {sk}:
    """)
    A.reset()

def late_prefetch(A, chunks, do_touch, nonln):
    n = 0
    if do_touch: touch(A, nonln=nonln); n += 3
    wchunks(A, chunks); n += 6*len(list(chunks))
    return n

def poll(A, kind, soff, others=None, after0=None):
    sk, lp, w0, jn = A.label("pk"), A.label("pl"), A.label("p0"), A.label("pj")
    A.c("hand-off: wave 0 waits (bounded) for the producers' tokens, the other waves prefetch weights")
    A(f"s_cmp_eq_u32 s3, 0\ns_cbranch_scc1 {w0}")
    if others: others(A)
    A(f"s_branch {jn}\n{w0}:\ns_mov_b32 s{S_CNT}, 0")
    shrink = opt("shrink", 1)
    slp = f"s_sleep {opt('slp', 0)}\n" if opt("slp", 0) else ""
    if kind == "l16": A("v_lshlrev_b32 v250, 7, v2")
    elif kind.startswith("s64"): A("v_lshlrev_b32 v250, 6, v1")
    NG = int(kind[-1]) if kind.startswith("s64") else 0
    if not NG:
        if shrink: A(f"s_mov_b64 exec, {'0xffffff' if kind == 'lst' else '0xffff'}")
        A(f"""
        {lp}:
        buffer_load_dword v252, v250, {srd(S_WS)}, s{soff} offen {PLP('h' if kind == 'l16' else 'a')}
        s_add_u32 s{S_CNT}, s{S_CNT}, 1
        s_waitcnt vmcnt(0)
        v_cmp_ne_u32 vcc, s{S_TOK}, v252
        s_cmp_ge_u32 s{S_CNT}, {MAXPOLL}
        s_cbranch_scc1 {sk}
        """)
        if shrink: A(f"s_and_b64 exec, exec, vcc\ns_cbranch_execz {sk}\n{slp}s_branch {lp}")
        else: A(f"{slp}s_cbranch_vccnz {lp}")
        A(f"{sk}:\ns_mov_b64 exec, -1")
    else:
        for j in range(1, 4): A(f"s_add_u32 s{71+j}, s{soff}, {j*4096}")
        if opt("pre1", 0):
            l1, d1 = A.label("p1"), A.label("p2")
            A(f"""
            s_and_b32 s92, s2, 127
            s_lshl_b32 s92, s92, 6
            s_add_u32 s92, s92, s{soff}
            v_mov_b32 v251, 0
            s_mov_b64 exec, 1
            {l1}:
            buffer_load_dword v252, v251, {srd(S_WS)}, s92 offen sc1
            s_add_u32 s{S_CNT}, s{S_CNT}, 1
            s_waitcnt vmcnt(0)
            v_cmp_ne_u32 vcc, s{S_TOK}, v252
            s_cmp_ge_u32 s{S_CNT}, {MAXPOLL}
            s_cbranch_scc1 {d1}
            s_cbranch_vccnz {l1}
            {d1}:
            s_mov_b64 exec, -1
            """)
        M = [84, 86, 88, 90]
        for j in range(4): A(f"s_mov_b64 s[{M[j]}:{M[j]+1}], {-1 if j < NG else 0}")
        A(f"{lp}:")
        for j in range(NG):
            sj = A.label("ps")
            A(f"s_mov_b64 exec, s[{M[j]}:{M[j]+1}]\ns_cbranch_execz {sj}")
            A(f"buffer_load_dword v{252+j}, v250, {srd(S_WS)}, s{soff if j == 0 else 71+j} offen sc1\n{sj}:")
        A(f"s_add_u32 s{S_CNT}, s{S_CNT}, 1\ns_waitcnt vmcnt(0)")
        for j in range(NG):
            A(f"s_mov_b64 exec, s[{M[j]}:{M[j]+1}]\nv_cmp_ne_u32 s[{M[j]}:{M[j]+1}], s{S_TOK}, v{252+j}" if shrink else f"s_mov_b64 exec, -1\nv_cmp_ne_u32 s[92:93], s{S_TOK}, v{252+j}\ns_cmp_lg_u64 s[92:93], 0\ns_cselect_b64 s[{M[j]}:{M[j]+1}], -1, 0")
        A(f"""
        s_or_b64 s[92:93], s[84:85], s[86:87]
        s_or_b64 s[94:95], s[88:89], s[90:91]
        s_cmp_ge_u32 s{S_CNT}, {MAXPOLL}
        s_cbranch_scc1 {sk}
        s_or_b64 s[92:93], s[92:93], s[94:95]
        s_cbranch_scc0 {sk}
        {slp}s_branch {lp}
        {sk}:
        s_mov_b64 exec, -1
        """)
    A.reset()
    if after0: after0(A)
    A(f"{jn}:\ns_barrier")

def build():
    A = Asm()
    name = NAME + "_kernel"
    kernel_begin(A, name)
    done = A.label("done")
    if TS: A("s_memrealtime s[62:63]\ns_waitcnt lgkmcnt(0)")
    entry(A, done)
    if TS:
        A("v_mov_b32 v248, 0\nv_writelane_b32 v248, s62, 0"); _ts["n"] = 1; _ts["names"] = ["entry"]
    m, i_, e = A.label("k1mod"), A.label("k1idle"), A.label("k1end")
    tok = f"s_waitcnt lgkmcnt(0)\ns_mul_i32 s{S_TOK}, s{S_TOK}, 0x9e3779b1\ns_add_u32 s{S_TOK}, s{S_TOK}, 0x7f4a7c15\ns_lshl_b32 s62, s2, 6\ns_add_u32 s62, s62, {WS_F1}"
    pfA = range(opt("pfA", 0)); tm = opt("touch", 11)
    A(f"s_cmp_ge_u32 s2, 128\ns_cbranch_scc1 {m}")
    k1_ln(A)
    ts(A, "stiss")
    if opt("lateset", 0): common_setup(A, 2, True)
    if tm == 9: touch(A, "gu")
    keep = (2 if tm == 9 else 0) + late_prefetch(A, pfA if opt("pfApos", 0) == 3 else [], tm == 5, False)
    A(tok); flag_set(A, 62, keep)
    A(f"s_branch {e}\n{m}:\ns_cmp_ge_u32 s2, 224\ns_cbranch_scc1 {i_}")
    A.reset()
    k1_mod(A)
    tsx(A, 62)
    A.reset()
    keep = late_prefetch(A, pfA if opt("pfMpos", 0) == 3 else [], tm in (5, 6), tm == 6)
    A(tok); flag_set(A, 62, keep)
    if tm == 4 and opt("tafter", 0): touch(A, nonln=True)
    A(f"s_branch {e}\n{i_}:")
    A.reset()
    A(small_srd(S_X, 2097152) + "\n" + small_srd(S_C, 1024) + "\ns_waitcnt lgkmcnt(0)")
    common_setup(A)
    A(tok); flag_set(A, 62, 63)
    if opt("idledelay", 0):
        A(f"v_lshlrev_b32 v4, 2, v0\nbuffer_load_dword v8, v4, {srd(S_C)}, 0 offen\ns_waitcnt vmcnt(0)")
    if tm == 7: touch_early(A)
    if tm == 9: touch(A, "gu")
    if tm in (10, 11): touch(A, "gu", nonln=True)
    if tm in (2, 5): touch(A)
    if tm in (3, 4, 6): touch(A, nonln=True)
    wchunks(A, pfA)
    A(f"{e}:")
    A.reset()
    ts(A, "f1set")
    if opt("cpf", 0) & 1: A(code_pf_text(".Lk2code", 249, 48))
    k2_pre(A, (lambda: wchunks(A, range(opt("pfA", 0), opt("pfA", 0) + opt("pf1", 3)))) if not opt("prefirst", 1) and not opt("w3", 1) else None)
    if opt("touch", 11) == 7: touch_late_setup(A)
    if opt("touch", 11) == 7 and opt("tlate", 0) == 0: touch_late(A)
    ts(A, "pre")
    w3 = opt("w3", 1)
    if opt("prefirst", 1) and not w3: wchunks(A, range(opt("pfA", 0), opt("pfA", 0) + opt("pf1", 3)))
    A(f"s_mov_b32 s63, {WS_F1}")
    poll(A, "s64x2" if opt("sepmod", 1) else "s64x4", 63, others=(lambda A_: w3_chunks(A_, range(opt("pf1", 3)))) if w3 else None)
    A.reset()
    ts(A, "sync1")
    A(".Lk2code:")
    k2_main(A)
    ts(A, "stiss2")
    keep = late_prefetch(A, range(opt("pfA", 0) + opt("pf1", 3), opt("pfB", 4)) if opt("pfBpos", 1) == 3 else [], False, False)
    flag_set(A, 62, keep + (4 if opt("latex1", 2) == 1 else 0), c="h")
    ts(A, "f2set")
    if not opt("w3b", 0): wchunks(A, range(opt("pfB", 4), opt("pfB", 4) + opt("pf3", 2)))
    if opt("cpf", 0) & 2: A(code_pf_text(".Lk3code", 249, 64))
    k3_pre(A)
    idle3 = A.label("k3idle")
    A(f"s_cmp_eq_u32 s37, 15\ns_cbranch_scc1 {idle3}")
    poll(A, "l16", 62, others=(lambda A_: w3_chunks(A_, range(opt("pfB", 4), opt("pfB", 4) + opt("pf3", 2)))) if opt("w3b", 0) else None)
    A.reset()
    ts(A, "sync2")
    A(".Lk3code:")
    k3_main(A, idle3)
    if opt("two", 0): A(f"s_add_u32 s61, s61, {WS_F3B - WS_F3}")
    flag_set(A, 61, c="a", w0extra=bool(opt("two", 0)))
    ts(A, "f3set")
    k4_pre(A)
    poll(A, "lst", 62, others=wd_rest3 if opt("wr3", 1) else wd_rest, after0=None if opt("wr3", 1) else wd_rest)
    ts(A, "sync3")
    k4_main(A)
    sk = A.label("ep")
    A(f"""
    s_or_b32 s63, s2, s3
    s_cmp_lg_u32 s63, 0
    s_cbranch_scc1 {sk}
    v_mov_b32 v250, 0
    v_mov_b32 v251, s{S_TOK}
    s_mov_b32 s63, {WS_EP}
    s_mov_b64 exec, 1
    buffer_store_dword v251, v250, {srd(S_WS)}, s63 offen sc1
    s_mov_b64 exec, -1
    {sk}:
    """)
    ts(A, "end")
    probe_end(A)
    ts_flush(A)
    A(f"{done}:\n.Lend:\ns_endpgm")
    if opt("jit", 0):
        import random
        rnd = random.Random(opt("jit", 0)); out = []
        def delay():
            lb = A.label("jit")
            c = f"s_cmp_eq_u32 s3, {rnd.randrange(4)}\ns_cbranch_scc0 {lb}" if rnd.random() < 0.6 else f"s_bitcmp1_b32 s2, {rnd.randrange(8)}\ns_cbranch_scc0 {lb}"
            return [Ins(x) for x in (c + f"\ns_sleep {rnd.randrange(2, 40)}\n{lb}:").split("\n")]
        for I in A.ins:
            if I.op == "s_barrier":
                if rnd.random() < 0.7: out += delay()
                out.append(I)
                if rnd.random() < 0.7: out += delay()
            else: out.append(I)
        A.ins = out
    code = A.finalize()
    return [(None, (256,1,1), (256,1,1), LDS_TOTAL)], code, [kernel_desc(name, 256, 172)]

if __name__ == "__main__":
    hdr = [l.rstrip("\n") for l in open("cdna_kernels/%s.s.ref" % NAME) if l.startswith(";") and "@launch" not in l][:15]
    hdr += ["; " + l for l in """
One persistent launch, 256 workgroups (one per CU) of 4 waves, four phases separated by flag hand-offs in d_ws.
The two DFTs (constant cos / sin matrices) are evaluated as Cooley-Tukey factorisations on the matrix cores:
  rows 2048 = 64 x 32 (phase 1 / phase 2), columns 512 = 16 x 32 (phase 2); the row DFT is applied before the
  column modulation, which commutes with it (the shift only reaches output row 0).
Hand-offs: write-through (sc1) stores, drain, barrier, token store; consumers poll with sc1 loads.  The token is
derived from an epoch word in d_ws that workgroup 0 advances at the end, so stale flags of earlier launches never match.
Workgroup -> role maps assume id % 8 = die for L2 locality only; any placement is correct.
""".strip().split("\n")]
    out = sys.argv[1]
    for kv in sys.argv[2:]:
        k_, v_ = kv.split("=")
        OPT[k_] = int(v_) if v_.lstrip("-").isdigit() else v_
    TS = bool(opt("ts", 0)); PROBE = opt("probe", None)
    launches, code, descs = build()
    open(out, "w").write(file_text(hdr, launches, code, descs))
    if TS: json.dump([_ts["names"]], open(out[:-2] + ".json", "w"))
```

```python
import sys, struct, math, json
from asmlib import *

NAME = "adaLN_cond__spectral_fnet__swiglu_ffn__prompt"
def fbits(x): return "0x%08x" % struct.unpack("<I", struct.pack("<f", x))[0]
OPT = {}
def opt(k, d): return OPT.get(k, d)

WS_U   = 0
WS_MOD = 0x240000
WS_H2  = 0x300000
WS_X1  = 0x500000
WS_ACT = 0x800000
WS_FLG = 0xE00000
WS_TS  = 0xF00000
WS_SIZE = 0x1000000
WS_EP  = WS_FLG
WS_F1  = WS_FLG + 0x1000
WS_F2  = WS_FLG + 0x10000
WS_F3  = WS_FLG + 0x20000
def SLOTSTR(): return 65536 + opt("upad", 0)
def USLOT(): return 512 if opt("upm", 0) else SLOTSTR()
def UOCT(): return 16384 if opt("upm", 0) else 512
def UN2(): return 65536 + opt("upad", 0) if opt("upm", 0) else 2048
MAXPOLL = int(__import__('os').environ.get('MAXPOLL', '60000'))
LDS_TOTAL = 163840
SLOT = 24640; UOFF = 12320
XCS = 1040
XWS = 16 * XCS
XIMG = LDS_TOTAL - 4 * XWS
XTAB = XIMG - 384
MW = XIMG
MSC = MW + 32768
MRED = MSC + 1024
K2EX = 123200
K2HB = K2EX + 18432
S_X, S_WG, S_WU, S_WD, S_C, S_WM, S_OUT, S_WS = 4, 8, 12, 16, 20, 24, 28, 32
S_TOK, S_CNT, S_SL, S_WL, S_DG, S_DL, S_T, S_T2 = 64, 65, 66, 67, 68, 69, 70, 75
V_W = 240
V_D = 243
def srd(b): return s(b, 4)
LOG2E = fbits(-math.log2(math.e))

TS = False
PROBE = None
_ts = {"n": 0, "names": []}
def ts(A, name=None, cyc=False):
    if not TS: return
    if opt("tsonly", None) and name not in opt("tsonly", "").split("+") and name not in ("f1set", "end"): return
    n = _ts["n"]; _ts["n"] += 1
    _ts["names"].append(("c:" if cyc else "") + name)
    A(f"{'s_memtime' if cyc else 's_memrealtime'} s[98:99]\ns_waitcnt lgkmcnt(0)\nv_writelane_b32 v248, s98, {n}")
def tsx(A, lane):
    if TS: A(f"s_memrealtime s[98:99]\ns_waitcnt lgkmcnt(0)\nv_writelane_b32 v248, s98, {lane}")
def tc(A, name=None): ts(A, name, True)
def probe_end(A):
    if PROBE is None: return
    lp = A.label("pr")
    idx = _ts["names"].index(PROBE)
    A(f"""
    s_waitcnt vmcnt(0) lgkmcnt(0)
    v_readlane_b32 s90, v248, 0
    v_readlane_b32 s91, v248, {idx}
    s_nop 4
    s_sub_u32 s91, s91, s90
    s_cmp_gt_u32 s91, 20000
    s_cselect_b32 s91, 0, s91
    s_add_u32 s91, s91, 6000
    {lp}:
    s_memrealtime s[92:93]
    s_waitcnt lgkmcnt(0)
    s_sub_u32 s92, s92, s90
    s_cmp_lt_u32 s92, s91
    s_cbranch_scc1 {lp}
    """)
def ts_flush(A):
    if not TS: return
    sk = A.label("tsk")
    A(f"s_waitcnt vmcnt(0) lgkmcnt(0)\ns_cmp_lg_u32 s3, 0\ns_cbranch_scc1 {sk}")
    A(f"s_lshl_b32 s64, s2, 8\ns_add_u32 s64, s64, {WS_TS}\nv_lshlrev_b32 v1, 2, v1")
    A(f"buffer_store_dword v248, v1, {srd(S_WS)}, s64 offen")
    A(f"s_waitcnt vmcnt(0)\n{sk}:")

def bf16r(A, dst, src):
    A(f"v_cvt_pk_bf16_f32 {dst}, {src}, {src}\nv_lshlrev_b32 {dst}, 16, {dst}")

_lbl = [None, 0]
def SLBL():
    _lbl[1] += 1; _lbl[0] = f".sl_{_lbl[1]}"; return _lbl[0]
def sl_expr(d=38, t=39):
    if opt("T", 4) == 2:
        return f"s_lshr_b32 s{d}, s2, 4"
    if opt("T", 4) == 4 and opt("bal", 1):
        return f"s_and_b32 s{d}, s2, 1\ns_mul_i32 s{d}, s{d}, 7\ns_lshr_b32 s{t}, s2, 5\ns_add_u32 s{d}, s{d}, s{t}\ns_cmp_eq_u32 s{t}, 7\ns_cbranch_scc0 {SLBL()}\ns_and_b32 s{d}, s2, 1\ns_add_u32 s{d}, s{d}, 14\n{_lbl[0]}:"
    if opt("T", 4) == 4:
        return f"s_and_b32 s{d}, s2, 1\ns_lshl_b32 s{d}, s{d}, 3\ns_lshr_b32 s{t}, s2, 5\ns_add_u32 s{d}, s{d}, s{t}"
    return f"s_and_b32 s{d}, s2, 3\ns_lshl_b32 s{d}, s{d}, 2\ns_lshr_b32 s{t}, s2, 6\ns_add_u32 s{d}, s{d}, s{t}"
def rb_expr():
    if opt("T", 4) == 2:
        return "s_and_b32 s36, s2, 7\ns_lshl_b32 s36, s36, 1\ns_bfe_u32 s39, s2, 0x10003\ns_add_u32 s36, s36, s39"
    if opt("T", 4) == 4:
        return "s_bfe_u32 s36, s2, 0x20001\ns_lshl_b32 s36, s36, 2\ns_bfe_u32 s39, s2, 0x20003\ns_add_u32 s36, s36, s39"
    return "s_bfe_u32 s36, s2, 0x10002\ns_lshl_b32 s36, s36, 3\ns_bfe_u32 s39, s2, 0x30003\ns_add_u32 s36, s36, s39"
def entry(A, done):
    A.c('---- entry: over-launched workgroups leave; kernel-argument loads; code prefetch into L2 ----')
    CP = opt("codepf", 1)
    A(f"""
    s_cmp_ge_u32 s2, 256
    s_cbranch_scc1 {done}
    s_load_dwordx2 s[4:5], s[0:1], 0
    s_load_dwordx2 s[24:25], s[0:1], 80
    s_load_dwordx2 s[20:21], s[0:1], 72
    s_load_dwordx2 s[32:33], s[0:1], 104
    s_load_dwordx2 s[8:9], s[0:1], 48
    s_load_dwordx2 s[12:13], s[0:1], 56
    s_load_dwordx2 s[16:17], s[0:1], 64
    s_load_dwordx2 s[28:29], s[0:1], 88
    v_lshrrev_b32 v2, 6, v0
    v_and_b32 v1, 63, v0
    v_readfirstlane_b32 s3, v2
    """)
    if CP:
        A(f"""
        s_getpc_b64 s[40:41]
        s_and_b32 s40, s40, 0xffffff00
        s_lshr_b32 s42, s2, 3
        s_lshl_b32 s42, s42, 2
        s_add_u32 s42, s42, s3
        s_and_b32 s42, s42, {opt("cpmask", 15)}
        s_lshl_b32 s42, s42, 11
        v_and_b32 v250, 15, v0
        v_lshlrev_b32 v250, 7, v250
        v_add_u32 v250, s42, v250
        v_min_u32 v250, .Lend-{NAME}_kernel, v250
        global_load_dword v249, v250, s[40:41]
        """)
    A("v_and_b32 v2, 15, v0\nv_bfe_u32 v3, v0, 4, 2")

def common_setup(A, part=3, ln=False):
    if part & 1: common_early(A)
    if part & 2: common_late(A, ln)
def common_early(A):
    for b, sz in ((S_WG, 1409024), (S_WU, 1409024), (S_WD, 1409024), (S_OUT, 2097152), (S_WS, WS_SIZE)):
        A(f"s_mov_b32 s{b+2}, {sz}\ns_mov_b32 s{b+3}, 0x20000")
    A(f"s_add_u32 s72, s32, {WS_EP}\ns_addc_u32 s73, s33, 0\ns_load_dword s{S_TOK}, s[72:73], 0")
def common_late(A, ln):
    A(f"""
    {sl_expr(72, 73)}
    s_mul_i32 s{S_SL}, s72, 192
    s_cmp_eq_u32 s72, 15
    s_cselect_b32 s{S_SL}, 0x200000, s{S_SL}
    s_mul_i32 s{S_WL}, s3, 3072
    s_mul_i32 s72, s3, 192
    s_mov_b32 s73, 0x15555556
    """)
    for i in range(3):
        A(f"""
        v_add_u32 v{V_W+i}, s72, v1
        v_add_u32 v{V_W+i}, {64*i}, v{V_W+i}
        v_mul_hi_u32 v244, v{V_W+i}, s73
        v_mul_u32_u24 v245, 12, v244
        v_sub_u32 v{V_W+i}, v{V_W+i}, v245
        v_lshlrev_b32 v{V_W+i}, 4, v{V_W+i}
        v_mul_u32_u24 v244, 2752, v244
        v_add_u32 v{V_W+i}, v{V_W+i}, v244
        """)
    if opt("tlb", 0):
        A(f"""
        v_lshlrev_b32 v239, {opt("tlb", 0)}, v1
        v_add_u32 v239, 0x2ff000, v239
        v_min_u32 v239, {WS_SIZE - 64}, v239
        buffer_load_dword v235, v239, {srd(S_WS)}, 0 offen
        v_mov_b32 v239, 0
        buffer_load_dword v234, v239, {srd(S_OUT)}, 0 offen
        """)
    if not ln and opt("touch", 11) in (1, 2, 3, 4, 5, 6, 8, 9, 10, 11): touch_setup(A, opt("touch", 11) in (3, 4, 6, 10, 11))
V_W3 = 224
def w3_setup(A):
    A(f"s_sub_u32 s72, s3, 1\ns_lshl_b32 s96, s72, 12\ns_lshl_b32 s72, s72, 8\ns_mov_b32 s73, 0x15555556")
    for i in range(4):
        A(f"""
        v_add_u32 v{V_W3+i}, s72, v1
        v_add_u32 v{V_W3+i}, {64*i}, v{V_W3+i}
        v_mul_hi_u32 v244, v{V_W3+i}, s73
        v_mul_u32_u24 v245, 12, v244
        v_sub_u32 v{V_W3+i}, v{V_W3+i}, v245
        v_lshlrev_b32 v{V_W3+i}, 4, v{V_W3+i}
        v_mul_u32_u24 v244, 2752, v244
        v_add_u32 v{V_W3+i}, v{V_W3+i}, v244
        """)
def w3_chunks(A, chunks):
    w3_setup(A)
    for ch in chunks:
        A(f"s_add_u32 s{S_T2}, s{S_SL}, {ch*64*2752}")
        for mtx, sr in ((0, S_WG), (1, S_WU)):
            for i in range(4):
                A(f"s_add_u32 m0, s96, {ch*SLOT+mtx*UOFF+i*1024}\nbuffer_load_dwordx4 v{V_W3+i}, {srd(sr)}, s{S_T2} offen lds")
def code_pf_text(label, dst, nlines=64):
    here = f".Lpc_{label.strip('.')}"
    return f"""s_getpc_b64 s[72:73]
    {here}:
    s_add_u32 s72, s72, {label}-{here}
    s_addc_u32 s73, s73, 0
    v_min_u32 v{dst}, {nlines-1}, v1
    v_lshlrev_b32 v{dst}, 7, v{dst}
    v_min_u32 v{dst}, .Lend-{label}, v{dst}
    global_load_dword v{dst}, v{dst}, s[72:73]"""
def small_srd(b, sz): return f"s_mov_b32 s{b+2}, {sz}\ns_mov_b32 s{b+3}, 0x20000"

def touch_setup(A, nonln=False):
    n = 22 if nonln else 11
    A(f"""
    s_lshl_b32 s{S_T}, s2, 2
    s_add_u32 s{S_T}, s{S_T}, s3
    s_and_b32 s{S_T}, s{S_T}, {511 if nonln else 1023}
    s_mul_i32 s{S_T}, s{S_T}, {n}
    v_min_u32 v246, {n-1}, v1
    v_add_u32 v246, s{S_T}, v246
    v_lshlrev_b32 v246, 7, v246
    """)
def touch(A, which="gud", nonln=False):
    pol = opt("tpol", "")
    A(f"s_mov_b64 exec, {hex((1 << (22 if nonln else 11)) - 1)}")
    if "g" in which: A(f"buffer_load_dword v236, v246, {srd(S_WG)}, 0 offen {pol}")
    if "u" in which: A(f"buffer_load_dword v237, v246, {srd(S_WU)}, 0 offen {pol}")
    if "d" in which: A(f"buffer_load_dword v238, v246, {srd(S_WD)}, 0 offen {pol}")
    A("s_mov_b64 exec, -1")

def touch_early(A):
    rows = 64 * opt("terows", 5)
    n = (rows * 2752 // 128 + 127) // 128
    A(f"""
    s_sub_u32 s38, s2, 224
    s_lshl_b32 s38, s38, 2
    s_add_u32 s38, s38, s3
    s_mul_i32 s38, s38, {n}
    v_min_u32 v246, {n-1}, v1
    v_add_u32 v246, s38, v246
    v_lshlrev_b32 v246, 7, v246
    buffer_load_dword v247, v246, {srd(S_WG)}, 0 offen
    buffer_load_dword v245, v246, {srd(S_WU)}, 0 offen
    """)
    for j in range(1, (n + 63) // 64):
        A(f"""
        v_add_u32 v244, {64*j}, v1
        v_min_u32 v244, {n-1}, v244
        v_add_u32 v244, s38, v244
        v_lshlrev_b32 v244, 7, v244
        buffer_load_dword v239, v244, {srd(S_WG)}, 0 offen
        buffer_load_dword v238, v244, {srd(S_WU)}, 0 offen
        """)
def touch_late_setup(A):
    rows0 = 64 * opt("terows", 5)
    n = ((512 - rows0) * 2752 // 128 + 1023) // 1024
    A(f"""
    s_lshl_b32 s{S_T}, s2, 2
    s_add_u32 s{S_T}, s{S_T}, s3
    s_mul_i32 s71, s{S_T}, 11
    s_mul_i32 s{S_T}, s{S_T}, {n}
    s_add_u32 s{S_T}, s{S_T}, {rows0*2752//128}
    v_min_u32 v246, {max(n-1,0)}, v1
    v_add_u32 v246, s{S_T}, v246
    v_lshlrev_b32 v246, 7, v246
    v_min_u32 v247, 10, v1
    v_add_u32 v247, s71, v247
    v_lshlrev_b32 v247, 7, v247
    """)
def touch_late(A):
    A(f"""
    s_mov_b64 exec, 0x7ff
    buffer_load_dword v245, v246, {srd(S_WG)}, 0 offen
    buffer_load_dword v244, v246, {srd(S_WU)}, 0 offen
    buffer_load_dword v246, v247, {srd(S_WD)}, 0 offen
    s_mov_b64 exec, -1
    """)

def wchunk_ops(chunk, slot, tag):
    ops = []
    for mtx, sr in ((0, S_WG), (1, S_WU)):
        for i in range(3):
            t = f"s_add_u32 m0, s{S_WL}, {slot*SLOT+mtx*UOFF+i*1024}\n"
            if mtx == 0 and i == 0: t += f"s_add_u32 s{S_T2}, s{S_SL}, {chunk*64*2752}\n"
            t += f"buffer_load_dwordx4 v{V_W+i}, {srd(sr)}, s{S_T2} offen {opt('wpol','')} lds"
            ops.append((t, tag))
    return ops
def wchunks(A, chunks):
    for ch in chunks:
        for t, tag in wchunk_ops(ch, ch, f"w{ch}"): A(t, tag=tag)

def k1_ln(A):
    A.c('==== phase 1a (workgroups 0..127): LayerNorm-1 statistics of 64 rows n = 32*n1 + n2 and the 64-point DFT over n1 ====\nrows -> LDS (DMA), sum / sum of squares by MFMA, U[slot][n2][d] = sum_n1 W64^(n1*slot) * r[n1] * (x - mean) -> workspace')
    A(f"""
    s_and_b32 s38, s2, 7
    s_lshr_b32 s39, s2, 3
    s_lshr_b32 s40, s39, 2
    s_lshl_b32 s40, s40, 3
    s_add_u32 s36, s38, s40
    s_and_b32 s37, s39, 3
    v_lshrrev_b32 v4, 2, v1
    v_sub_u32 v5, 0, v3
    v_xor_b32 v5, v5, v1
    v_and_b32 v5, 3, v5
    v_lshlrev_b32 v4, 15, v4
    v_lshl_add_u32 v4, v5, 4, v4
    s_lshl_b32 s38, s3, 9
    s_add_u32 s38, s38, s36
    s_lshl_b32 s38, s38, 10
    s_mul_i32 s39, s3, {XWS}
    s_add_u32 s39, s39, {XIMG}
    {small_srd(S_X, 2097152)}
    s_waitcnt lgkmcnt(0)
    """)
    ts(A, "prolog")
    for i in range(16):
        A(f"s_add_u32 m0, s39, {i*(XCS-64)}")
        A(f"buffer_load_dwordx4 v4, {srd(S_X)}, s38 offen offset:{i*64} {opt('xpol','')} lds", tag=f"x{i}")
    common_setup(A, 1 if opt("lateset", 0) else 3, True)
    BC, NV = 16, 48
    A("""
    v_lshlrev_b32 v5, 3, v3
    v_cvt_f32_u32 v5, v5
    s_and_b32 s40, s3, 1
    s_lshl_b32 s40, s40, 4
    v_add_u32 v6, s40, v2
    v_cmp_eq_u32 vcc, 0, v6
    v_cvt_f32_u32 v6, v6
    v_mul_f32 v6, 0x3c800000, v6
    v_mov_b32 v8, 0x3e800000
    v_cndmask_b32 v9, v6, 0.5, vcc
    v_cndmask_b32 v10, v8, 0, vcc
    """)
    for ks in range(2):
        for j in range(8):
            A(f"v_add_f32 v{NV}, {fbits(32*ks+j)}, v5\nv_mul_f32 v{BC+ks*8+j}, v{NV}, v6\nv_fma_f32 v{BC+16+ks*8+j}, v{NV}, v9, v10")
    for i in range(32): A(f"v_cos_f32 v{BC+i}, v{BC+i}")
    ONES, G, SA = 112, 116, 120
    for i in range(4): A(f"v_mov_b32 v{ONES+i}, 0x3f803f80")
    A(f"""
    v_lshrrev_b32 v5, 2, v2
    v_sub_u32 v5, 0, v5
    v_xor_b32 v5, v5, v3
    v_and_b32 v5, 3, v5
    v_lshlrev_b32 v5, 4, v5
    v_lshl_add_u32 v5, v2, 6, v5
    v_add_u32 v5, s39, v5
    v_lshrrev_b32 v6, 1, v3
    v_mul_u32_u24 v6, {XWS}, v6
    v_and_b32 v7, 3, v1
    v_mul_u32_u24 v7, {XCS}, v7
    v_add_u32 v6, v6, v7
    v_and_b32 v7, 1, v3
    v_lshl_add_u32 v6, v7, 9, v6
    v_bfe_u32 v8, v1, 2, 2
    v_lshl_add_u32 v6, v8, 6, v6
    s_lshr_b32 s41, s3, 1
    s_mul_i32 s42, s41, {8*XCS}
    s_add_u32 s42, s42, {XIMG}
    v_add_u32 v6, s42, v6
    v_lshlrev_b32 v7, 1, v7
    v_xor_b32 v8, s37, v7
    v_lshl_add_u32 v11, v8, 4, v6
    v_xor_b32 v8, 3, v8
    v_lshl_add_u32 v12, v8, 4, v6
    v_add_u32 v12, 256, v12
    s_lshl_b32 s42, s3, 6
    s_add_u32 s42, s42, {XTAB}
    v_lshl_add_u32 v7, v2, 2, s42
    s_lshl_b32 s42, s3, 5
    s_add_u32 s42, s42, {XTAB+256}
    v_lshl_add_u32 v13, v2, 1, s42
    v_lshlrev_b32 v8, 5, v3
    v_add_u32 v8, {XTAB}, v8
    v_lshlrev_b32 v14, 4, v3
    v_add_u32 v14, {XTAB+256}, v14
    s_mov_b32 s42, 0x22222222
    s_mov_b32 s43, 0x22222222
    s_mov_b32 s44, 0x44444444
    s_mov_b32 s45, 0x44444444
    s_mov_b32 s46, 0x88888888
    s_mov_b32 s47, 0x88888888
    v_add_u32 v9, s40, v2
    v_mul_u32_u24 v9, {USLOT()}, v9
    v_lshl_add_u32 v9, v3, 4, v9
    s_mul_i32 s48, s36, {UN2()}
    s_mul_i32 s49, s37, {UOCT()}
    s_add_u32 s48, s48, s49
    s_lshl_b32 s49, s41, 7
    s_add_u32 s48, s48, s49
    s_add_u32 s48, s48, {WS_U}
    """)
    ts(A, "const")
    R = 48
    pfl = [op for ch in range(opt("pfA", 0)) for op in wchunk_ops(ch, ch, f"w{ch}")] if opt("pfApos", 0) == 2 else []
    for i in range(16):
        A.wait_tag(f"x{i}")
        A(f"ds_read_b128 {v(R+4*i,4)}, v5 offset:{i*XCS}")
        for _ in range(2 if i >= 14 - len(pfl)//2 + 7 else 1):
            if pfl and i >= opt("pfAi", 2): A(*pfl.pop(0))
        if i >= 1:
            k = i - 1
            A(f"v_mfma_f32_16x16x32_bf16 {v(G,4)}, {v(R+4*k,4)}, {v(R+4*k,4)}, {v(G,4) if k else 0}")
            A(f"v_mfma_f32_16x16x32_bf16 {v(SA,4)}, {v(ONES,4)}, {v(R+4*k,4)}, {v(SA,4) if k else 0}")
    A("s_barrier")
    late_pf = pfl
    A(f"v_mfma_f32_16x16x32_bf16 {v(G,4)}, {v(R+60,4)}, {v(R+60,4)}, {v(G,4)}")
    A(f"v_mfma_f32_16x16x32_bf16 {v(SA,4)}, {v(ONES,4)}, {v(R+60,4)}, {v(SA,4)}")
    ts(A, "xarr")
    if opt("touch", 11) == 2: touch(A)
    if opt("pfA", 0) and opt("pfApos", 0) == 1: wchunks(A, range(opt("pfA", 0)))
    X = 128
    for tl in range(4):
        for ks in range(2):
            b = X + (tl*2+ks)*4
            off = ks*2*XWS + (tl >> 1)*4*XCS + 8*(tl & 1)
            A(f"ds_read_b64_tr_b16 {v(b,2)}, v11 offset:{off}\nds_read_b64_tr_b16 {v(b+2,2)}, v12 offset:{off}")
    A(f"""
    v_cndmask_b32 v10, v{G}, v{G+1}, s[42:43]
    v_cndmask_b32 v10, v10, v{G+2}, s[44:45]
    v_cndmask_b32 v10, v10, v{G+3}, s[46:47]
    v_mul_f32 v15, 0xbb000000, v{SA}
    v_mul_f32 v10, 0x3b000000, v10
    v_fma_f32 v10, -v15, v15, v10
    v_max_f32 v10, 0, v10
    v_cvt_pk_bf16_f32 v15, v15, v10
    v_and_b32 v10, 0xffff0000, v15
    v_add_f32 v10, {fbits(1e-5)}, v10
    """)
    bf16r(A, "v10", "v10")
    A("v_sqrt_f32 v10, v10")
    bf16r(A, "v10", "v10")
    A("""
    v_rcp_f32 v10, v10
    s_mov_b32 exec_lo, 0x00f0000f
    s_mov_b32 exec_hi, 0xf0000f00
    ds_write_b16 v13, v15
    ds_write_b32 v7, v10
    s_mov_b64 exec, -1
    s_waitcnt lgkmcnt(0)
    s_barrier
    """)
    ts(A, "stats")
    for op in late_pf: A(*op)
    TR, AM, BP, CM, ACC, PK = 48, 64, 72, 88, 160, 96
    for ks in range(2):
        for hf in range(2): A(f"ds_read_b128 {v(TR+ks*8+hf*4,4)}, v8 offset:{ks*128+hf*16}")
        A(f"ds_read_b128 {v(AM+ks*4,4)}, v14 offset:{ks*64}")
    for ks in range(2):
        for c in range(2):
            for jj in range(4):
                b = BC + c*16 + ks*8 + 2*jj
                A(f"v_pk_mul_f32 {v(b,2)}, {v(b,2)}, {v(TR+ks*8+2*jj,2)}")
            for jj in range(4):
                b = BC + c*16 + ks*8 + 2*jj
                A(f"v_cvt_pk_bf16_f32 v{BP+(c*2+ks)*4+jj}, v{b}, v{b+1}")
    for ks in range(2):
        for c in range(2):
            A(f"v_mfma_f32_16x16x32_bf16 {v(CM+4*c,4)}, {v(AM+ks*4,4)}, {v(BP+(c*2+ks)*4,4)}, {v(CM+4*c,4) if ks else 0}")
    for tl in range(4):
        for c in range(2):
            acc = ACC + (tl*2+c)*4
            A(f"v_mfma_f32_16x16x32_bf16 {v(acc,4)}, {v(X+(tl*2)*4,4)}, {v(BP+(c*2)*4,4)}, {v(CM+4*c,4)}")
        for c in range(2):
            acc = ACC + (tl*2+c)*4
            A(f"v_mfma_f32_16x16x32_bf16 {v(acc,4)}, {v(X+(tl*2+1)*4,4)}, {v(BP+(c*2+1)*4,4)}, {v(acc,4)}")
        if tl >= 1: k1_store(A, tl-1, ACC, PK)
    k1_store(A, 3, ACC, PK)

def k1_store(A, tl, ACC, PK):
    acc = ACC + tl*8; pk = PK + tl*4
    for r in range(4): A(f"v_cvt_pk_bf16_f32 v{pk+r}, v{acc+r}, v{acc+4+r}")
    A(f"buffer_store_dwordx4 {v(pk,4)}, v9, {srd(S_WS)}, s48 offen offset:{(tl&1)*256+(tl>>1)*64} sc1", tag="st")

def k1_mod(A):
    A.c('==== phase 1b (workgroups 128..223): mod = silu(c) @ w_mod, 32 columns per workgroup ====')
    A(f"""
    s_and_b32 s38, s2, 7
    s_lshr_b32 s39, s2, 3
    s_mul_i32 s38, s38, 12
    s_add_u32 s36, s38, s39
    s_sub_u32 s36, s36, 16
    v_lshlrev_b32 v4, 2, v0
    {small_srd(S_C, 1024)}
    {small_srd(S_WM, 3145728)}
    {small_srd(S_X, 2097152)}
    v_lshrrev_b32 v5, 2, v1
    v_mul_u32_u24 v5, 6144, v5
    v_and_b32 v6, 3, v1
    v_lshl_add_u32 v5, v6, 4, v5
    s_mul_i32 s38, s3, {128*6144}
    s_lshl_b32 s39, s36, 6
    s_add_u32 s38, s38, s39
    s_lshl_b32 s39, s3, 13
    s_add_u32 s39, s39, {MW}
    s_waitcnt lgkmcnt(0)
    buffer_load_dword v8, v4, {srd(S_C)}, 0 offen
    """)
    if opt("touch", 11) == 3: touch(A, nonln=True)
    if opt("moddelay", 0): A("v_mov_b32 v8, v8")
    for i in range(8):
        A(f"s_add_u32 m0, s39, {i*1024}")
        if i: A(f"s_add_u32 s38, s38, {16*6144}")
        A(f"buffer_load_dwordx4 v5, {srd(S_WM)}, s38 offen {opt('mpol','nt')} lds", tag="wm")
    common_setup(A)
    A(f"""
    v_bfe_u32 v6, v1, 2, 2
    v_lshl_add_u32 v6, v3, 3, v6
    v_lshlrev_b32 v6, 6, v6
    v_and_b32 v7, 3, v1
    v_lshl_add_u32 v6, v7, 3, v6
    v_add_u32 v6, s39, v6
    v_add_u32 v4, {MSC}, v4
    s_lshl_b32 s40, s3, 8
    s_add_u32 s40, s40, {MSC}
    v_lshl_add_u32 v7, v3, 4, s40
    v_lshlrev_b32 v9, 16, v8
    v_and_b32 v10, 0xffff0000, v8
    v_mul_f32 v11, {LOG2E}, v9
    v_mul_f32 v12, {LOG2E}, v10
    v_exp_f32 v11, v11
    v_exp_f32 v12, v12
    v_add_f32 v11, 1.0, v11
    v_add_f32 v12, 1.0, v12
    v_rcp_f32 v11, v11
    v_rcp_f32 v12, v12
    v_mul_f32 v9, v9, v11
    v_mul_f32 v10, v10, v12
    v_cvt_pk_bf16_f32 v9, v9, v10
    ds_write_b32 v4, v9
    """)
    SF, WF, ACC = 16, 32, 64
    A("s_waitcnt lgkmcnt(0)")
    tsx(A, 60)
    for ks in range(4): A(f"ds_read_b128 {v(SF+4*ks,4)}, v7 offset:{ks*64}")
    A(f"""
    v_and_b32 v10, 31, v1
    s_lshr_b32 s40, s36, 4
    s_and_b32 s41, s36, 15
    s_lshl_b32 s41, s41, 5
    v_add_u32 v10, s41, v10
    v_lshrrev_b32 v15, 8, v10
    v_lshlrev_b32 v15, 8, v15
    v_bfe_u32 v72, v10, 2, 2
    v_lshl_add_u32 v15, v72, 6, v15
    v_bfe_u32 v72, v10, 4, 4
    v_lshl_add_u32 v15, v72, 2, v15
    v_and_b32 v72, 3, v10
    v_add_u32 v15, v15, v72
    v_bfe_u32 v72, v10, 3, 2
    v_lshlrev_b32 v73, 7, v72
    v_bfe_u32 v72, v10, 7, 2
    v_lshl_add_u32 v73, v72, 5, v73
    v_and_b32 v72, 7, v10
    v_lshl_add_u32 v73, v72, 2, v73
    v_bfe_u32 v72, v10, 5, 2
    v_add_u32 v73, v73, v72
    s_cmp_lt_u32 s40, 2
    s_cselect_b64 vcc, -1, 0
    v_cndmask_b32 v15, v15, v73, vcc
    s_cmp_eq_u32 s40, 5
    s_cselect_b64 vcc, -1, 0
    v_cndmask_b32 v10, v15, v10, vcc
    v_lshlrev_b32 v10, 2, v10
    s_lshl_b32 s41, s40, 11
    s_add_u32 s41, s41, {WS_MOD}
    s_cmp_eq_u32 s40, 1
    s_cselect_b32 s42, 1.0, 0
    s_cmp_eq_u32 s40, 4
    s_cselect_b32 s42, 1.0, s42
    s_lshl_b32 s43, s3, 7
    s_add_u32 s43, s43, {MRED}
    v_lshl_add_u32 v9, v2, 2, s43
    s_sub_u32 s44, s40, 3
    s_cmp_lt_u32 s44, 2
    s_cselect_b32 s43, {fbits(math.log2(math.e))}, 1.0
    s_cmp_eq_u32 s40, 5
    s_cselect_b32 s43, {fbits(1/math.log2(math.e)**2)}, s43
    v_and_b32 v74, 31, v1
    v_lshlrev_b32 v74, 2, v74
    v_add_u32 v74, {MRED}, v74
    """)
    A.wait_tag("wm")
    tsx(A, 61)
    if opt("touch", 11) == 2: touch(A)
    if opt("touch", 11) == 4 and not opt("tafter", 0): touch(A, nonln=True)
    if opt("touch", 11) == 9: touch(A, "gu")
    if opt("touch", 11) in (10, 11): touch(A, "gu", nonln=True)
    if opt("pfA", 0) and opt("pfMpos", 0) == 1: wchunks(A, range(opt("pfA", 0)))
    for ks in range(4):
        for nt in range(2):
            b = WF + (ks*2+nt)*4
            off = ks*2048 + nt*32
            A(f"ds_read_b64_tr_b16 {v(b,2)}, v6 offset:{off}\nds_read_b64_tr_b16 {v(b+2,2)}, v6 offset:{off+256}")
    for ks in range(4):
        for nt in range(2):
            A(f"v_mfma_f32_16x16x32_bf16 {v(ACC+4*nt,4)}, {v(SF+4*ks,4)}, {v(WF+(ks*2+nt)*4,4)}, {v(ACC+4*nt,4) if ks else 0}")
    skip = A.label("modskip")
    A(f"""
    s_mov_b64 exec, 0xffff
    ds_write_b32 v9, v{ACC}
    ds_write_b32 v9, v{ACC+4} offset:64
    s_mov_b64 exec, -1
    s_waitcnt lgkmcnt(0)
    s_barrier
    s_cmp_lg_u32 s3, 0
    s_cbranch_scc1 {skip}
    ds_read_b32 v11, v74
    ds_read_b32 v12, v74 offset:128
    ds_read_b32 v13, v74 offset:256
    ds_read_b32 v14, v74 offset:384
    v_add_f32 v11, v11, v12
    v_add_f32 v13, v13, v14
    v_add_f32 v11, v11, v13
    """)
    bf16r(A, "v11", "v11")
    A("v_add_f32 v11, s42, v11")
    bf16r(A, "v11", "v11")
    if opt("fold", 1): A("v_mul_f32 v11, s43, v11")
    A(f"""
    s_mov_b32 exec_hi, 0
    buffer_store_dword v11, v10, {srd(S_WS)}, s41 offen sc1
    s_mov_b64 exec, -1
    {skip}:
    """)

K2 = dict(BS=16, CC=24, CS=26, TW=28, BH=44, U=64, XR=128, CA=136, GA=168, CB=176, SB=184, Z=192, XF=224)
def k2_pre(A, hook=None):
    A.c('==== phase 2 set-up: twiddle / DFT constants (v_cos / v_sin), residual rows, addresses ====')
    r = K2
    if opt("T", 4) == 2: A("s_and_b32 s36, s2, 7\ns_lshl_b32 s36, s36, 2\ns_bfe_u32 s37, s2, 0x20003")
    else: A("s_and_b32 s36, s2, 7\ns_bfe_u32 s37, s2, 0x20003\ns_lshl_b32 s37, s37, 3")
    A("""
    s_add_u32 s36, s36, s37
    s_lshr_b32 s37, s2, 5
    s_sub_u32 s39, 64, s36
    s_cmp_eq_u32 s36, 0
    s_cselect_b32 s39, 32, s39
    s_cselect_b64 s[40:41], -1, 0
    s_lshl_b32 s42, s37, 2
    s_add_u32 s43, s42, s3
    s_lshl_b32 s43, s43, 6
    s_add_u32 s44, s43, s36
    s_add_u32 s45, s43, s39
    s_lshl_b32 s44, s44, 10
    s_lshl_b32 s45, s45, 10
    v_lshlrev_b32 v4, 5, v2
    v_lshl_add_u32 v4, v3, 3, v4
    """)
    for uu in range(2):
        for nt in range(2):
            A(f"buffer_load_dwordx2 {v(r['XR']+(uu*2+nt)*2,2)}, v4, {srd(S_X)}, s{44+uu} offen offset:{nt*512}")
    if hook: hook()
    A("""
    v_lshrrev_b32 v5, 2, v2
    v_add_u32 v5, s42, v5
    v_lshlrev_b32 v5, 6, v5
    v_and_b32 v6, 2, v2
    v_cmp_ne_u32 vcc, 0, v6
    v_mov_b32 v7, s36
    v_mov_b32 v8, s39
    v_cndmask_b32 v7, v7, v8, vcc
    v_add_u32 v5, v5, v7
    v_cvt_f32_u32 v5, v5
    v_mul_f32 v5, 0x3a000000, v5
    v_and_b32 v6, 1, v2
    v_cvt_f32_u32 v6, v6
    v_mul_f32 v6, 0x3e800000, v6
    v_mov_b32 v7, 0xbe800000
    v_mov_b32 v8, 0x3e800000
    v_cndmask_b32 v7, v7, v8, vcc
    v_cndmask_b32 v7, v7, 0, s[40:41]
    v_add_f32 v7, v7, v6
    v_cndmask_b32 v8, 1.0, 0, vcc
    v_cndmask_b32 v9, 0, 1.0, vcc
    v_cndmask_b32 v8, 1.0, v8, s[40:41]
    v_cndmask_b32 v9, 1.0, v9, s[40:41]
    v_lshlrev_b32 v10, 2, v3
    v_cvt_f32_u32 v10, v10
    """)
    T = 64
    NQ = 72
    for ks in range(2):
        for i in range(4): A(f"v_add_f32 v{NQ+ks*4+i}, {fbits(16*ks+i)}, v10")
    for ks in range(2):
        for i in range(4):
            A(f"v_fma_f32 v{T+2*i}, v{NQ+ks*4+i}, v5, v6\nv_fma_f32 v{T+2*i+1}, v{NQ+ks*4+i}, v5, v7")
        for i in range(8): A(f"v_cos_f32 v{T+i}, v{T+i}")
        for i in range(4):
            A(f"v_pk_mul_f32 {v(T+2*i,2)}, {v(T+2*i,2)}, v[8:9]")
            A(f"v_cvt_pk_bf16_f32 v{r['BS']+ks*4+i}, v{T+2*i}, v{T+2*i+1}")
    A("v_cvt_f32_u32 v12, v2\nv_mul_f32 v13, 0x3d800000, v12")
    for j in range(4): A(f"v_mul_f32 v{T+j}, v{NQ+j}, v13")
    for j in range(4): A(f"v_sin_f32 v{T+4+j}, v{T+j}")
    for j in range(4): A(f"v_cos_f32 v{T+j}, v{T+j}")
    for jj in range(2):
        A(f"v_cvt_pk_bf16_f32 v{r['CC']+jj}, v{T+2*jj}, v{T+2*jj+1}\nv_cvt_pk_bf16_f32 v{r['CS']+jj}, v{T+4+2*jj}, v{T+5+2*jj}")
    A("v_mul_f32 v13, 0x3b000000, v12\ns_lshl_b32 s46, s3, 3\nv_cvt_f32_u32 v14, s46")
    for t in range(8):
        A(f"v_add_f32 v11, {fbits(t)}, v14\nv_mul_f32 v{T+t}, v11, v13")
    for t in range(8):
        A(f"v_cos_f32 v{r['TW']+2*t}, v{T+t}\nv_sin_f32 v{r['TW']+2*t+1}, v{T+t}")
    for nt in range(2):
        A(f"v_add_f32 v13, {fbits(16*nt)}, v12\nv_mul_f32 v13, 0x3d000000, v13")
        for ks in range(2):
            for i in range(4): A(f"v_mul_f32 v{T+i}, v{NQ+ks*4+i}, v13")
            for i in range(4): A(f"v_sin_f32 v{T+4+i}, v{T+i}")
            for i in range(4): A(f"v_cos_f32 v{T+i}, v{T+i}")
            for i in range(4): A(f"v_cvt_pk_bf16_f32 v{r['BH']+(nt*2+ks)*4+i}, v{T+i}, v{T+4+i}")
    A(f"""
    v_mul_u32_u24 v5, {4*UN2()}, v3
    v_lshl_add_u32 v5, v2, 4, v5
    s_mul_i32 s46, s36, {USLOT()}
    s_mul_i32 s47, s3, {UOCT()}
    s_add_u32 s46, s46, s47
    s_add_u32 s46, s46, {WS_U}
    s_add_u32 s47, s46, {2*UN2()}
    s_add_u32 s48, s46, {16*UN2()}
    s_add_u32 s49, s46, {18*UN2()}
    s_add_u32 s76, s46, {UN2()}
    s_add_u32 s77, s47, {UN2()}
    s_add_u32 s78, s48, {UN2()}
    s_add_u32 s79, s49, {UN2()}
    v_lshlrev_b32 v6, 7, v3
    s_lshl_b32 s50, s3, 9
    s_add_u32 s50, s50, {WS_MOD}
    s_cmp_eq_u32 s2, 0
    s_cselect_b32 s59, s50, {WS_SIZE}
    v_lshlrev_b32 v7, 4, v1
    v_lshl_add_u32 v8, v3, 5, v2
    v_mul_u32_u24 v8, 144, v8
    s_lshl_b32 s51, s3, 5
    s_add_u32 s51, s51, {K2EX}
    v_add_u32 v8, s51, v8
    v_mul_u32_u24 v9, 144, v2
    v_lshl_add_u32 v9, v3, 4, v9
    s_mul_i32 s51, s3, {32*144}
    s_add_u32 s51, s51, {K2EX}
    v_add_u32 v9, s51, v9
    s_mul_i32 s51, s3, 2080
    s_add_u32 s51, s51, {K2HB}
    v_add_u32 v10, s51, v4
    v_and_b32 v11, 7, v0
    v_lshrrev_b32 v12, 3, v0
    v_mul_u32_u24 v13, 1040, v11
    v_lshl_add_u32 v13, v12, 4, v13
    v_add_u32 v13, {K2HB}, v13
    v_lshlrev_b32 v11, 4, v11
    v_lshl_add_u32 v11, v12, 9, v11
    s_lshl_b32 s51, s36, 3
    s_add_u32 s51, s51, s37
    s_lshl_b32 s52, s51, 13
    s_lshl_b32 s53, s3, 11
    s_add_u32 s52, s52, s53
    s_add_u32 s52, s52, {WS_X1}
    s_add_u32 s53, s52, 1024
    s_lshr_b32 s54, s51, 2
    s_lshl_b32 s54, s54, 15
    s_and_b32 s55, s51, 3
    s_lshl_b32 s55, s55, 7
    s_add_u32 s54, s54, s55
    s_add_u32 s54, s54, {WS_H2}
    s_add_u32 s55, s54, 16384
    s_mov_b32 s56, {WS_MOD+2*2048}
    s_mov_b32 s57, {WS_MOD+3*2048}
    s_mov_b32 s58, {WS_MOD+4*2048}
    s_lshl_b32 s62, s51, 7
    s_add_u32 s62, s62, {WS_F2}
    v_lshlrev_b32 v250, 6, v1
    """)

def k2_main(A):
    A.c('==== phase 2: 8 output rows per workgroup ====\n32-point DFT over n2 (with twiddles), * (1 + scale) (+ 2048 * shift for row 0), 512-point hidden DFT as 16 x 32,\nx1 = x + gate * y, LayerNorm-2, modulation -> h2')
    r = K2
    U, Z = r['U'], r['Z']
    sk0 = A.label("k2sl")
    A(f"s_cmp_lg_u32 s2, 0\ns_cbranch_scc1 {sk0}")
    for t in range(0 if opt("sepmod", 1) else 8):
        A(f"buffer_load_dwordx4 {a(4*t,4)}, v6, {srd(S_WS)}, s50 offen offset:{t*16} sc1")
    A(f"{sk0}:")
    sep = opt("sepmod", 1)
    if sep:
        m0 = A.label("k2m0")
        A(f"s_cmp_lg_u32 s3, 0\ns_cbranch_scc1 {m0}")
        A(f"buffer_load_dword v254, v250, {srd(S_WS)}, s73 offen sc1\nbuffer_load_dword v255, v250, {srd(S_WS)}, s74 offen sc1\n{m0}:", tag="spin")
    for hh in range(2):
        for ks in range(2):
            for i in range(4):
                A(f"buffer_load_dwordx4 {v(U+((ks*2+hh)*4+i)*4,4)}, v5, {srd(S_WS)}, s{(46, 76)[i&1]+ks*2+(i>>1)} offen offset:{hh*256} sc1")
    if sep:
        m1, lp1 = A.label("k2m1"), A.label("k2ml")
        A(f"""
        s_cmp_lg_u32 s3, 0
        s_cbranch_scc1 {m1}
        s_mov_b32 s{S_CNT}, 0
        s_waitcnt vmcnt(16)
        {lp1}:
        v_xor_b32 v254, s{S_TOK}, v254
        v_xor_b32 v255, s{S_TOK}, v255
        v_or_b32 v254, v254, v255
        v_cmp_ne_u32 vcc, 0, v254
        s_add_u32 s{S_CNT}, s{S_CNT}, 1
        s_cmp_ge_u32 s{S_CNT}, {MAXPOLL}
        s_cbranch_scc1 {m1}
        s_cbranch_vccz {m1}
        buffer_load_dword v254, v250, {srd(S_WS)}, s73 offen sc1
        buffer_load_dword v255, v250, {srd(S_WS)}, s74 offen sc1
        s_waitcnt vmcnt(0)
        s_branch {lp1}
        {m1}:
        s_barrier
        """, tag="spin")
        sk1 = A.label("k2s1")
        A(f"s_cmp_lg_u32 s2, 0\ns_cbranch_scc1 {sk1}")
        for t in range(8):
            A(f"buffer_load_dwordx4 {a(4*t,4)}, v6, {srd(S_WS)}, s50 offen offset:{t*16} sc1", tag="spin")
        A(f"{sk1}:", tag="spin")
    for t in range(8):
        A(f"buffer_load_dwordx4 {v(r['CA']+4*t,4)}, v6, {srd(S_WS)}, s50 offen offset:{2048+t*16} sc1")
    for nm, sr in (("GA", 56), ("CB", 58), ("SB", 57)):
        for nt in range(2):
            A(f"buffer_load_dwordx4 {v(r[nm]+nt*4,4)}, v7, {srd(S_WS)}, s{sr} offen offset:{nt*1024} sc1")
    A.touch_regs([("v", U)])
    for uu in range(2):
        for nt in range(2):
            xr = r['XR'] + (uu*2+nt)*2; xf = r['XF'] + (uu*2+nt)*4
            A(f"v_lshlrev_b32 v{xf}, 16, v{xr}\nv_and_b32 v{xf+1}, 0xffff0000, v{xr}\nv_lshlrev_b32 v{xf+2}, 16, v{xr+1}\nv_and_b32 v{xf+3}, 0xffff0000, v{xr+1}")
    pfl = [op for ch in range(opt("pfA", 0) + opt("pf1", 3), opt("pfB", 4)) for op in wchunk_ops(ch, ch, f"w{ch}")]
    if opt("pfBpos", 1) == 0:
        for op in pfl: A(*op)
    if opt("pfBpos", 1) in (0, 3): pfl = []
    if opt("touch", 11) == 7 and opt("tlate", 0) == 1: touch_late(A)
    if opt("touch", 11) == 8: touch(A)
    if opt("touch", 11) == 9: touch(A, "d")
    if TS and opt("tsu", 1): A(f"v_mov_b32 v{U+60}, v{U+60}"); ts(A, "uarr")
    for hh in range(2):
        for ks in range(2):
            b = U + (ks*2+hh)*16
            for i in range(4):
                for t in range(i+1, 4): A(f"v_swap_b32 v{b+4*i+t}, v{b+4*t+i}")
        for t in range(4):
            for ks in range(2):
                z = Z + (hh*4+t)*4
                A(f"v_mfma_f32_16x16x32_bf16 {v(z,4)}, {v(U+(ks*2+hh)*16+4*t,4)}, {v(r['BS']+ks*4,4)}, {v(z,4) if ks else 0}")
                if pfl and opt("pfBpos", 1) != 4 and (hh == 1 or opt("pfBpos", 1) == 2): A(*pfl.pop(0))
    if opt("pfBpos", 1) != 4:
        for op in pfl: A(*op)
        pfl = []
    ZP, P, Q = 64, 80, 112
    ts(A, "s2")
    for t in range(8):
        for h in range(2): A(f"v_pk_mul_f32 {v(Z+4*t+2*h,2)}, {v(Z+4*t+2*h,2)}, {v(r['CA']+4*t+2*h,2)}")
    sk = A.label("k2sa")
    A(f"s_cmp_lg_u32 s2, 0\ns_cbranch_scc1 {sk}")
    A("s_mov_b32 s59, 0x45000000\ns_mov_b32 exec_lo, 0x00010001\ns_mov_b32 exec_hi, 0x00010001")
    for i in range(32):
        A(f"v_accvgpr_read_b32 v{P}, a{i}\nv_fma_f32 v{Z+i}, v{P}, s59, v{Z+i}")
    A(f"s_mov_b64 exec, -1\n{sk}:")
    for t in range(8):
        A(f"v_cvt_pk_bf16_f32 v{ZP+2*t}, v{Z+4*t}, v{Z+4*t+1}\nv_cvt_pk_bf16_f32 v{ZP+2*t+1}, v{Z+4*t+2}, v{Z+4*t+3}")
        if t >= 1:
            A(f"v_mfma_f32_16x16x16_bf16 {v(P+4*(t-1),4)}, {v(ZP+2*(t-1),2)}, {v(r['CC'],2)}, 0")
            A(f"v_mfma_f32_16x16x16_bf16 {v(Z+4*(t-1),4)}, {v(ZP+2*(t-1),2)}, {v(r['CS'],2)}, 0")
    A(f"v_mfma_f32_16x16x16_bf16 {v(P+28,4)}, {v(ZP+14,2)}, {v(r['CC'],2)}, 0")
    A(f"v_mfma_f32_16x16x16_bf16 {v(Z+28,4)}, {v(ZP+14,2)}, {v(r['CS'],2)}, 0")
    Q = Z; W = 112
    ts(A, "h1m")
    for hh in range(2):
        for uu in range(2):
            idx = [(P+4*(hh*4+t4)+2*uu, Q+4*(hh*4+t4)+2*uu, r['TW']+2*(hh*4+t4), W+uu*8+hh*4+t4) for t4 in range(4)]
            for p, q, tw, w in idx: A(f"v_pk_add_f32 {v(p,2)}, {v(p,2)}, {v(q,2)} op_sel:[0,1] op_sel_hi:[1,0] neg_hi:[0,1]")
            for p, q, tw, w in idx: A(f"v_pk_mul_f32 {v(q,2)}, {v(p,2)}, {v(tw,2)} op_sel:[0,0] op_sel_hi:[1,0]")
            for p, q, tw, w in idx: A(f"v_pk_fma_f32 {v(q,2)}, {v(p,2)}, {v(tw,2)}, {v(q,2)} op_sel:[1,1,0] op_sel_hi:[0,1,1] neg_hi:[1,0,0]")
            for p, q, tw, w in idx: A(f"v_cvt_pk_bf16_f32 v{w}, v{q}, v{q+1}")
            A(f"ds_write_b128 v8, {v(W+uu*8+hh*4,4)} offset:{uu*16*144+hh*16}")
    A("s_waitcnt lgkmcnt(0)\ns_barrier")
    ts(A, "h1")
    AF, Y = 80, 96
    for uu in range(2):
        for ks in range(2):
            A(f"ds_read_b128 {v(AF+(uu*2+ks)*4,4)}, v9 offset:{uu*16*144+ks*64}")
    for op in pfl[:4]: A(*op)
    pfl = pfl[4:]
    for uu in range(2):
        for ks in range(2):
            for nt in range(2):
                y = Y + (uu*2+nt)*4
                A(f"v_mfma_f32_16x16x32_bf16 {v(y,4)}, {v(AF+(uu*2+ks)*4,4)}, {v(r['BH']+(nt*2+ks)*4,4)}, {v(y,4) if ks else 0}")
                if pfl: A(*pfl.pop(0))
    for op in pfl: A(*op)
    XP = 168 if opt("latex1", 2) == 2 else 112
    ts(A, "h2m")
    for uu in range(2):
        for nt in range(2):
            y = Y + (uu*2+nt)*4; xf = r['XF'] + (uu*2+nt)*4; g = r['GA'] + nt*4
            for h in range(2):
                A(f"v_pk_fma_f32 {v(y+2*h,2)}, {v(y+2*h,2)}, {v(g+2*h,2)}, {v(xf+2*h,2)}")
        y = Y + uu*8; t = 64 + 4*uu
        A(f"v_pk_add_f32 {v(t,2)}, {v(y,2)}, {v(y+2,2)}\nv_pk_mul_f32 {v(t+2,2)}, {v(y,2)}, {v(y,2)}")
        A(f"v_pk_add_f32 {v(t,2)}, {v(t,2)}, {v(y+4,2)}\nv_pk_fma_f32 {v(t+2,2)}, {v(y+2,2)}, {v(y+2,2)}, {v(t+2,2)}")
        A(f"v_pk_add_f32 {v(t,2)}, {v(t,2)}, {v(y+6,2)}\nv_pk_fma_f32 {v(t+2,2)}, {v(y+4,2)}, {v(y+4,2)}, {v(t+2,2)}")
        A(f"v_add_f32 v{72+2*uu}, v{t}, v{t+1}\nv_pk_fma_f32 {v(t+2,2)}, {v(y+6,2)}, {v(y+6,2)}, {v(t+2,2)}")
        A(f"v_add_f32 v{73+2*uu}, v{t+2}, v{t+3}")
    def x1_store(uu, nt):
        y = Y + (uu*2+nt)*4; xp = XP + (uu*2+nt)*2
        A(f"v_cvt_pk_bf16_f32 v{xp}, v{y}, v{y+1}\nv_cvt_pk_bf16_f32 v{xp+1}, v{y+2}, v{y+3}")
        A(f"buffer_store_dwordx2 {v(xp,2)}, v4, {srd(S_WS)}, s{52+uu} offen offset:{nt*512} sc1", tag="st")
    late_x1 = opt("latex1", 2)
    def x1_cvt(uu, nt):
        y = Y + (uu*2+nt)*4; xp = XP + (uu*2+nt)*2
        A(f"v_cvt_pk_bf16_f32 v{xp}, v{y}, v{y+1}\nv_cvt_pk_bf16_f32 v{xp+1}, v{y+2}, v{y+3}")
    def x1_st(uu, nt):
        A(f"buffer_store_dwordx2 {v(XP+(uu*2+nt)*2,2)}, v4, {srd(S_WS)}, s{52+uu} offen offset:{nt*512} sc1", tag="x1")
    if late_x1: x1_store = x1_cvt
    A("v_permlane16_swap_b32 v72, v73\nv_permlane16_swap_b32 v74, v75\nv_add_f32 v72, v72, v73\nv_add_f32 v74, v74, v75")
    x1_store(0, 0)
    A("v_permlane32_swap_b32 v72, v74\nv_add_f32 v72, v72, v74")
    x1_store(0, 1)
    A("v_add_f32 v72, v72, v72 row_ror:8")
    A(f"v_mov_b32 v76, 0x3b000000\nv_mov_b32 v77, {fbits(1e-5)}")
    A("v_add_f32 v72, v72, v72 row_ror:4")
    x1_store(1, 0)
    A("v_add_f32 v72, v72, v72 row_ror:2")
    x1_store(1, 1)
    A("""
    v_add_f32 v72, v72, v72 row_ror:1
    v_mul_f32 v72, v72, v76
    v_readlane_b32 s40, v72, 0
    v_readlane_b32 s41, v72, 16
    v_readlane_b32 s42, v72, 32
    v_readlane_b32 s43, v72, 48
    v_mov_b32 v64, s40
    v_mov_b32 v66, s42
    v_fma_f32 v65, -v64, v64, s41
    v_fma_f32 v67, -v66, v66, s43
    v_max_f32 v65, 0, v65
    v_max_f32 v67, 0, v67
    v_add_f32 v65, v65, v77
    v_add_f32 v67, v67, v77
    v_rsq_f32 v65, v65
    v_rsq_f32 v67, v67
    v_mul_f32 v64, -v64, v65
    v_mul_f32 v66, -v66, v67
    """)
    HP = 120
    ts(A, "ln2")
    for uu in range(2):
        for nt in range(2):
            y = Y + (uu*2+nt)*4
            for h in range(2):
                A(f"v_pk_fma_f32 {v(y+2*h,2)}, {v(y+2*h,2)}, {v(64+2*uu,2)}, {v(64+2*uu,2)} op_sel:[0,1,0] op_sel_hi:[1,1,0]")
            for h in range(2):
                A(f"v_pk_fma_f32 {v(y+2*h,2)}, {v(y+2*h,2)}, {v(r['CB']+nt*4+2*h,2)}, {v(r['SB']+nt*4+2*h,2)}")
            hp = HP + (uu*2+nt)*2
            A(f"v_cvt_pk_bf16_f32 v{hp}, v{y}, v{y+1}\nv_cvt_pk_bf16_f32 v{hp+1}, v{y+2}, v{y+3}")
            A(f"ds_write_b64 v10, {v(hp,2)} offset:{uu*1040+nt*512}")
    A("s_waitcnt lgkmcnt(0)\ns_barrier")
    ts(A, "hb")
    A("ds_read_b128 v[64:67], v13\nds_read_b128 v[68:71], v13 offset:512")
    A(f"buffer_store_dwordx4 v[64:67], v11, {srd(S_WS)}, s54 offen {LOC('h')}", tag="st")
    A(f"buffer_store_dwordx4 v[68:71], v11, {srd(S_WS)}, s55 offen {LOC('h')}", tag="st")
    if late_x1 == 1:
        for uu in range(2):
            for nt in range(2): x1_st(uu, nt)
    if late_x1 == 2:
        A("v_mov_b32 v176, v4\ns_mov_b32 s80, s52\ns_mov_b32 s81, s53")

WD_ORDER = [37, 38, 39] + list(range(13, 37)) + list(range(0, 13)) + [37, 38, 39]
def k4_ids(A):
    if opt("R", 4) == 4:
        A("s_and_b32 s36, s2, 7\ns_lshl_b32 s36, s36, 2\ns_bfe_u32 s38, s2, 0x20003\ns_add_u32 s36, s36, s38\ns_lshr_b32 s37, s2, 5")
    else:
        A("s_bfe_u32 s36, s2, 0x20001\ns_lshl_b32 s36, s36, 3\ns_bfe_u32 s38, s2, 0x30003\ns_add_u32 s36, s36, s38\ns_and_b32 s37, s2, 1\ns_lshl_b32 s37, s37, 2\ns_lshr_b32 s38, s2, 6\ns_add_u32 s37, s37, s38")
    A("s_lshr_b32 s38, s3, 1\ns_and_b32 s39, s3, 1")
def wd_setup(A):
    k4_ids(A)
    A(f"""
    v_lshrrev_b32 v244, 3, v1
    v_lshlrev_b32 v{V_D}, 10, v244
    v_and_b32 v245, 7, v1
    v_lshlrev_b32 v244, 1, v244
    v_and_b32 v244, 4, v244
    v_xor_b32 v245, v245, v244
    v_lshl_add_u32 v{V_D}, v245, 4, v{V_D}
    s_mul_i32 s{S_DG}, s38, {688*1024}
    s_lshl_b32 s41, s37, 7
    s_add_u32 s{S_DG}, s{S_DG}, s41
    s_lshl_b32 s41, s39, 13
    s_add_u32 s{S_DG}, s{S_DG}, s41
    s_lshl_b32 s{S_DL}, s3, 10
    """)
    if opt("two", 0):
        A(f"""
        s_lshl_b32 s41, s37, 7
        s_lshl_b32 s42, s39, 13
        s_add_u32 s41, s41, s42
        s_mul_i32 s{S_DG}, s38, {6*16384}
        s_add_u32 s{S_DG}, s{S_DG}, s41
        s_add_u32 s42, s38, 84
        s_lshl_b32 s42, s42, 14
        s_add_u32 s{S_DG2}, s42, s41
        """)
        return
    A(f"""
    s_mul_i32 s41, s37, 10
    s_lshr_b32 s41, s41, 3
    s_lshl_b32 s41, s41, 16
    s_add_u32 s{S_DR}, s{S_DG}, s41
    s_add_u32 s{S_DE}, s{S_DG}, {40*16384}
    """)
S_DR, S_DE, S_AB, S_AE = 82, 83, 97, 100
S_DG2, S_ACT, S_ACT2, S_AT = 82, 83, 97, 100
WS_F3B = WS_FLG + 0x30000
NA = 3
def steps4():
    return [None] + [(i, j) for i in range(7) for j in range(NA)] + [(i, j) for i in range(7) for j in range(NA, 6)]
NSA = 1 + 7*NA
def wd_op(step, tag):
    if opt("two", 0):
        st = steps4()[step]
        t = f"s_add_u32 m0, s{S_DL}, {WD_ORDER[step]*4096}\n"
        if st is None: so = S_DG2; t += "s_nop 0\n"
        else: so = S_T; t += f"s_add_u32 s{S_T}, s{S_DG}, {(12*st[0]+st[1])*16384}\n"
        return (t + f"buffer_load_dwordx4 v{V_D}, {srd(S_WD)}, s{so} offen lds", tag)
    return wd_op1(step, tag)
def wd_op1(step, tag):
    t = f"s_add_u32 m0, s{S_DL}, {WD_ORDER[step]*4096}\n"
    if not opt("rot", 0) or step >= 40:
        t += f"s_add_u32 s{S_T}, s{S_DG}, {step*16384}\n"
    else:
        if step and step % 4 == 0:
            t += f"s_add_u32 s{S_DR}, s{S_DR}, 65536\ns_cmp_eq_u32 s{S_DR}, s{S_DE}\ns_cselect_b32 s{S_DR}, s{S_DG}, s{S_DR}\n"
        t += f"s_add_u32 s{S_T}, s{S_DR}, {(step % 4)*16384}\n"
    t += f"buffer_load_dwordx4 v{V_D}, {srd(S_WD)}, s{S_T} offen {opt('dpol','')} lds"
    return (t, tag)

def k3_ids(A):
    A(sl_expr() + "\ns_mov_b32 s37, s38\n" + rb_expr())
def k3_pre(A):
    A.c('==== phase 3 / 4 set-up ====')
    wd_setup(A)
    k3_ids(A)
    A(f"""
    s_lshl_b32 s45, s36, 2
    s_add_u32 s45, s45, s3
    s_lshl_b32 s46, s45, 15
    s_add_u32 s46, s46, {WS_H2}
    v_lshlrev_b32 v4, 4, v1
    v_bfe_u32 v5, v1, 1, 1
    v_mul_u32_u24 v5, {UOFF}, v5
    v_bfe_u32 v6, v1, 2, 2
    v_bfe_u32 v7, v1, 5, 1
    v_lshl_add_u32 v6, v7, 3, v6
    v_mul_u32_u24 v6, 192, v6
    v_add_u32 v5, v5, v6
    v_bfe_u32 v6, v1, 4, 1
    v_lshl_add_u32 v5, v6, 4, v5
    v_and_b32 v6, 1, v1
    v_lshl_add_u32 v5, v6, 3, v5
    v_add_u32 v6, {2*SLOT}, v5
    v_add_u32 v7, {4*SLOT}, v5
    s_mul_i32 s47, s45, {86*1024}
    s_mul_i32 s48, s37, {6*1024}
    s_add_u32 s47, s47, s48
    s_add_u32 s47, s47, {WS_ACT}
    s_add_u32 s48, s47, 2048
    s_add_u32 s51, s47, 4096
    s_cmp_eq_u32 s37, 14
    s_cselect_b32 s48, {WS_SIZE}, s48
    s_cselect_b32 s51, {WS_SIZE}, s51
    s_lshl_b32 s49, s2, 2
    s_add_u32 s49, s49, s3
    s_mul_i32 s49, s49, 11
    v_min_u32 v246, 10, v1
    v_add_u32 v246, s49, v246
    v_lshlrev_b32 v246, 7, v246
    v_mov_b32 v14, {LOG2E}
    v_mov_b32 v15, {LOG2E}
    s_lshl_b32 s61, s36, 4
    s_add_u32 s61, s61, s37
    s_lshl_b32 s61, s61, 7
    s_add_u32 s61, s61, {WS_F3}
    s_lshl_b32 s62, s36, 11
    s_add_u32 s62, s62, {WS_F2}
    """)

def x1_ops():
    return [(f"buffer_store_dwordx2 {v(168+(uu*2+nt)*2,2)}, v176, {srd(S_WS)}, s{80+uu} offen offset:{nt*512} {LOC('x')}", "x1") for uu in range(2) for nt in range(2)]
def k3_main(A, idle):
    done = A.label("k3done")
    if opt("short14", 1):
        short = A.label("k3short")
        A(f"s_cmp_eq_u32 s37, 14\ns_cbranch_scc1 {short}")
        k3_body(A, 6)
        A(f"s_branch {done}\n{short}:")
        A.reset()
        k3_body(A, 2)
    else:
        k3_body(A, 6)
    k3_tail(A, idle, done)

def k3_body(A, NT):
    A.c('==== phase 3: h2[128 rows] @ (w_gate | w_up)[96 columns each], act = silu(g) * u ; w_down streams into the freed LDS ====')
    ACC, AF, NAF = 16, 112, 8
    T, PK = 144, 160
    full = NT == 6
    def h2_op(k):
        t = "s_add_u32 s46, s46, 4096\n" if (k and k % 4 == 0) else ""
        return (t + f"buffer_load_dwordx4 {a(4*k,4)}, v4, {srd(S_WS)}, s46 offen offset:{(k%4)*1024} {LDP('h')}", None)
    H0 = opt("h0", 12)
    for k in range(H0): A(h2_op(k)[0])
    order = [(k, j) for k in range(32) for j in range(NT)]
    N = len(order)
    def slot_of(k):
        ch = k // 4
        return ch if ch < 6 else ch - 6
    def frag_read(n):
        k, j = order[n]
        sl = slot_of(k)
        base = ("v5", "v6", "v7")[sl // 2]
        off = (sl % 2)*SLOT + (k % 4)*16*192 + j*32
        b = AF + (n % NAF)*4
        return f"ds_read_b64_tr_b16 {v(b,2)}, {base} offset:{off}\nds_read_b64_tr_b16 {v(b+2,2)}, {base} offset:{off+4*192}"
    PF = NAF - 2
    CH = 4*NT
    b01, b23, b6, b7 = 2*CH - 1, 4*CH - 1, 6*CH - PF - 1, 7*CH - PF - 1
    assert b6 >= 5*CH - 1 and b7 >= 6*CH - 1
    bars = {b01: [], b23: [], b6: ["w6"], b7: ["w7"]}
    pfB = opt("pfB", 4) + opt("pf3", 2)
    for ch in range(pfB, 6):
        nb = ch*CH - PF - 1
        if ch == 5 and b23 <= nb: bars[b23].append("w5")
        else: bars.setdefault(nb, []).append(f"w{ch}")
    sc = lambda x: x*NT // 6
    side = []
    n0 = 0
    def add(op, step):
        nonlocal n0
        side.append((sc(n0), *op)); n0 += step
    for k in range(H0, 32): add(h2_op(k), 2)
    for ch in range(pfB, 6):
        for op in wchunk_ops(ch, ch, f"w{ch}"): add(op, 2)
    for op in x1_ops(): add(op, 2)
    def at_least(n):
        nonlocal n0
        while sc(n0) <= n: n0 += 1
    at_least(b01)
    for ch in (6, 7):
        for op in wchunk_ops(ch, ch-6, f"w{ch}"): add(op, 2)
    for st_ in range(0, 3): add(wd_op(st_, "wd"), 3)
    if opt("cpf", 0) & 4 and full: side.append((max(n0, opt("cpn", 90)), code_pf_text(".Lk3epi", 249, 60), None))
    at_least(b23)
    for st_ in range(3, 14): add(wd_op(st_, "wd"), 3)
    at_least(b6)
    for st_ in range(14, 20): add(wd_op(st_, "wd"), 3)
    at_least(b7)
    for st_ in range(20, 27): add(wd_op(st_, "wd"), 3)
    assert opt("pfB", 4) >= 2
    if not opt("nostartbar", 1): A("v_accvgpr_read_b32 v13, a0\ns_barrier")
    if full: ts(A, "issued")
    for n in range(PF): A(frag_read(n))
    if full: tc(A, "first")
    for n, (k, j) in enumerate(order):
        acc = ACC + 16*j
        if n % 2 == 0: A.touch_regs([("v", AF+((n+1)%NAF)*4+3)])
        A(f"v_mfma_f32_32x32x16_bf16 {v(acc,16)}, {v(AF+(n%NAF)*4,4)}, {a(4*k,4)}, {v(acc,16) if k else 0}")
        if n == 0 and full: ts(A, "first")
        while side and side[0][0] <= n:
            _, t, tag = side.pop(0); A(t, tag=tag)
            if full: break
        if n in bars:
            for tg in bars[n]: A.wait_tag(tg)
            A("s_barrier")
            if full: ts(A, f"n{n}")
        if n + PF < N: A(frag_read(n+PF))
    for _, t, tag in side: A(t, tag=tag)
    if full:
        A(".Lk3epi:")
        ts(A, "mfma")
        tc(A, "mfma")
    def epi(j):
        acc = ACC + 16*j; pk = PK + 4*(j & 1); t0 = T + 8*(j & 1)
        if opt("fold", 1):
            for i in range(8): A(f"v_exp_f32 v{t0+i}, -v{acc + 8*(i//4) + i%4}")
        else:
            for hf in range(2):
                g = acc + 8*hf; t = t0 + 4*hf
                for h in range(2): A(f"v_pk_mul_f32 {v(t+2*h,2)}, {v(g+2*h,2)}, v[14:15]")
            for i in range(8): A(f"v_exp_f32 v{t0+i}, v{t0+i}")
        for hf in range(2):
            g, u = acc + 8*hf, acc + 8*hf + 4
            for h in range(2): A(f"v_pk_mul_f32 {v(g+2*h,2)}, {v(g+2*h,2)}, {v(u+2*h,2)}")
        for h in range(4): A(f"v_pk_add_f32 {v(t0+2*h,2)}, {v(t0+2*h,2)}, 1.0 op_sel_hi:[1,0]")
        for i in range(8): A(f"v_rcp_f32 v{t0+i}, v{t0+i}")
        for hf in range(2):
            g = acc + 8*hf; t = t0 + 4*hf
            for h in range(2): A(f"v_pk_mul_f32 {v(g+2*h,2)}, {v(g+2*h,2)}, {v(t+2*h,2)}")
        for hf in range(2):
            g = acc + 8*hf
            A(f"v_cvt_pk_bf16_f32 v{pk+2*hf}, v{g}, v{g+1}\nv_cvt_pk_bf16_f32 v{pk+2*hf+1}, v{g+2}, v{g+3}")
        A(f"buffer_store_dwordx4 {v(pk,4)}, v4, {srd(S_WS)}, s{(47,48,51)[j//2]} offen offset:{(j%2)*1024} {LOC('a')}", tag=("sA" if j < NA else "sB"))
    for j in range(NT): epi(j)
    if opt("two", 0):
        A.wait_tag("sA")
        skA = A.label("fa")
        A(f"""
        s_barrier
        s_cmp_lg_u32 s3, 0
        s_cbranch_scc1 {skA}
        v_mov_b32 v250, 0
        v_mov_b32 v251, s{S_TOK}
        s_mov_b64 exec, 1
        buffer_store_dword v251, v250, {srd(S_WS)}, s61 offen sc1
        s_mov_b64 exec, -1
        {skA}:
        """, tag="spin")
    if full: ts(A, "stiss3")

def k3_tail(A, idle, done):
    A.c('---- phase 3, workgroups without columns: warm w_down, fetch their own w_down image ----')
    A(f"s_branch {done}\n{idle}:")
    A.reset()
    A("s_waitcnt vmcnt(0)\ns_barrier")
    if opt("touch", 11) == 11:
        A(f"""
        s_lshl_b32 s49, s36, 2
        s_add_u32 s49, s49, s3
        s_mul_i32 s49, s49, {172*128}
        v_lshlrev_b32 v246, 7, v1
        buffer_load_dword v236, v246, {srd(S_WD)}, s49 offen
        s_add_u32 s50, s49, 8192
        buffer_load_dword v237, v246, {srd(S_WD)}, s50 offen
        s_add_u32 s50, s49, {108*128}
        buffer_load_dword v238, v246, {srd(S_WD)}, s50 offen
        """)
    if opt("latex1", 2) == 2:
        for op in x1_ops(): A(*op)
    for st_ in range(27): A(*wd_op(st_, "wd"))
    A(f"s_waitcnt vmcnt(0)\n{done}:")
    A.reset()

def k4_list(A):
    k4_ids(A)
    A(f"""
    s_mov_b32 s62, {WS_F3}
    s_lshr_b32 s51, s36, 1
    s_lshl_b32 s51, s51, 4
    v_cmp_eq_u32 vcc, 15, v2
    v_cndmask_b32 v250, v2, 0, vcc
    v_add_u32 v250, s51, v250
    """)
    if opt("latex1", 2):
        A(f"""
        v_and_b32 v251, 7, v1
        v_lshlrev_b32 v251, 5, v251
        """)
        if opt("T", 4) == 2: A("s_lshr_b32 s51, s36, 2\ns_and_b32 s52, s36, 3")
        else: A("s_and_b32 s51, s36, 7\ns_lshr_b32 s52, s36, 3")
        A("s_lshl_b32 s52, s52, 3\ns_add_u32 s51, s51, s52\nv_add_u32 v251, s51, v251")
        if opt("T", 4) == 2:
            A("v_and_b32 v252, 7, v251\nv_lshlrev_b32 v252, 1, v252\nv_bfe_u32 v253, v251, 3, 1\nv_add_u32 v252, v252, v253\nv_mov_b32 v253, 0\nv_lshrrev_b32 v251, 4, v251")
        elif opt("T", 4) == 4 and opt("bal", 1):
            A("v_bfe_u32 v252, v251, 1, 2\nv_lshlrev_b32 v252, 2, v252\nv_bfe_u32 v253, v251, 3, 2\nv_add_u32 v252, v252, v253\nv_and_b32 v253, 1, v251\nv_lshrrev_b32 v251, 5, v251\nv_cmp_eq_u32 vcc, 7, v251\nv_add_u32 v254, 7, v253\nv_mul_u32_u24 v253, 7, v253\nv_cndmask_b32 v253, v253, v254, vcc")
        elif opt("T", 4) == 4:
            A("v_bfe_u32 v252, v251, 1, 2\nv_lshlrev_b32 v252, 2, v252\nv_bfe_u32 v253, v251, 3, 2\nv_add_u32 v252, v252, v253\nv_and_b32 v253, 1, v251\nv_lshlrev_b32 v253, 3, v253\nv_lshrrev_b32 v251, 5, v251")
        else:
            A("v_bfe_u32 v252, v251, 2, 1\nv_lshlrev_b32 v252, 3, v252\nv_bfe_u32 v253, v251, 3, 3\nv_add_u32 v252, v252, v253\nv_and_b32 v253, 3, v251\nv_lshlrev_b32 v253, 2, v253\nv_lshrrev_b32 v251, 6, v251")
        A("v_add_u32 v251, v251, v253\nv_lshl_add_u32 v251, v252, 4, v251\nv_cmp_gt_u32 vcc, 16, v1\nv_cndmask_b32 v250, v251, v250, vcc")
    A("v_lshlrev_b32 v250, 7, v250")
def k4_pre(A):
    k4_list(A)
    if opt("stag", 0) & 2: poll_head(A, 62, 250)
    A(f"""
    s_lshl_b32 s44, s36, 1
    s_add_u32 s44, s44, s39
    s_mul_i32 s44, s44, {86*1024}
    s_mul_i32 s45, s38, {43*1024}
    s_add_u32 s44, s44, s45
    s_add_u32 s44, s44, {WS_ACT}
    """)
    if opt("two", 0):
        A(f"""
        s_mul_i32 s45, s38, {37*1024}
        s_sub_u32 s44, s44, s45
        s_add_u32 s45, s38, 84
        s_mul_i32 s51, s38, {6*1024}
        s_sub_u32 s{S_ACT2}, s44, s51
        s_lshl_b32 s45, s45, 10
        s_add_u32 s{S_ACT2}, s{S_ACT2}, s45
        s_mov_b32 s{S_ACT}, s44
        """)
    A(f"""
    v_lshlrev_b32 v4, 4, v1
    v_lshrrev_b32 v8, 3, v0
    v_and_b32 v9, 7, v0
    s_lshl_b32 s46, s36, 16
    s_lshl_b32 s47, s37, 7
    s_add_u32 s46, s46, s47
    s_add_u32 s46, s46, {WS_X1}
    s_add_u32 s48, s46, 32768
    v_lshlrev_b32 v10, 10, v8
    v_lshl_add_u32 v10, v9, 4, v10
    v_lshlrev_b32 v11, 5, v9
    s_lshl_b32 s47, s37, 8
    s_add_u32 s47, s47, {WS_MOD+5*2048}
    s_sub_u32 s49, 64, s36
    s_cmp_eq_u32 s36, 0
    s_cselect_b32 s49, 32, s49
    v_and_b32 v12, 1, v8
    v_cmp_ne_u32 vcc, 0, v12
    v_mov_b32 v12, s36
    v_mov_b32 v13, s49
    v_cndmask_b32 v12, v12, v13, vcc
    v_lshrrev_b32 v13, 1, v8
    v_lshl_add_u32 v12, v13, 6, v12
    v_lshlrev_b32 v12, 10, v12
    v_lshl_add_u32 v12, v9, 4, v12
    s_lshl_b32 s49, s37, 7
    s_add_u32 s50, s49, 0x100000
    v_bfe_u32 v6, v1, 2, 2
    v_bfe_u32 v7, v1, 5, 1
    v_lshl_add_u32 v7, v7, 2, v6
    v_lshlrev_b32 v7, 7, v7
    v_bfe_u32 v13, v1, 4, 1
    v_lshl_add_u32 v7, v13, 5, v7
    v_and_b32 v13, 3, v1
    v_lshl_add_u32 v7, v13, 3, v7
    s_lshl_b32 s41, s38, 11
    v_add_u32 v7, s41, v7
    v_bfe_u32 v13, v1, 3, 1
    v_lshlrev_b32 v13, 6, v13
    v_xor_b32 v6, v7, v13
    v_xor_b32 v7, 64, v6
    v_add_u32 v14, 0x10000, v6
    v_add_u32 v15, 0x10000, v7
    v_add_u32 v16, 0x20000, v6
    v_add_u32 v17, 0x20000, v7
    """)
    if opt("two", 0):
        A(f"v_mov_b32 v249, v250\nv_cmp_eq_u32 vcc, 15, v2\nv_cndmask_b32 v250, v2, 0, vcc\ns_lshr_b32 s51, s36, 1\ns_lshl_b32 s51, s51, 4\nv_add_u32 v250, s51, v250\nv_lshlrev_b32 v250, 7, v250\ns_mov_b32 s63, {WS_F3B}")

def wd_rest(A):
    for st_ in range(27, 40): A(*wd_op(st_, "dr"))
def wd_rest3(A):
    wd_rest(A)
    assert WD_ORDER[27:40] == list(range(13))
    A(f"s_lshl_b32 s74, s37, 7")
    for w in range(1, 4):
        sk = A.label("wr")
        A(f"s_cmp_lg_u32 s3, {w}\ns_cbranch_scc1 {sk}")
        for st_ in range(27 + w - 1, 40, 3):
            st = steps4()[st_] if opt("two", 0) else None
            row = (12*st[0] + st[1]) if st else st_
            A(f"s_mov_b32 m0, {WD_ORDER[st_]*4096}\ns_add_u32 s{S_T}, s74, {row*16384}\nbuffer_load_dwordx4 v{V_D}, {srd(S_WD)}, s{S_T} offen lds")
        A(f"{sk}:")

def k4_main(A):
    A.c('==== phase 4: out[64 x 64] = x1 + gate * (act @ w_down), K split over wave pairs, reduced through LDS ====')
    ACC, AF, NAF = 32, 64, 8
    XG = 96
    def act_op(k):
        if opt("two", 0):
            st = steps4()[k]
            if st is None: return (f"buffer_load_dwordx4 {a(4*k,4)}, v4, {srd(S_WS)}, s{S_ACT2} offen sc1", None)
            off = (12*st[0] + st[1])*1024
            prev = steps4()[k-1]
            t = ""
            if prev is None or ((12*prev[0] + prev[1])*1024) >> 12 != off >> 12:
                t = f"s_add_u32 s{S_AT}, s{S_ACT}, {off & ~0xfff}\n"
            return (t + f"buffer_load_dwordx4 {a(4*k,4)}, v4, {srd(S_WS)}, s{S_AT} offen offset:{off & 0xfff} sc1", None)
        t = "s_add_u32 s44, s44, 4096\n" if (k and k % 4 == 0) else ""
        if opt("rot", 0) and k and k % 4 == 0:
            t = f"s_mov_b32 s44, s{S_AE}\n" if k == 40 else t + f"s_cmp_eq_u32 s44, s{S_AE}\ns_cselect_b32 s44, s{S_AB}, s44\n"
        return (t + f"buffer_load_dwordx4 {a(4*k,4)}, v4, {srd(S_WS)}, s44 offen offset:{(k%4)*1024} {LDP('a')}", None)
    H0 = opt("a0", 14)
    for k in range(H0): A(act_op(k)[0])
    TL = opt("k4tail", 4)
    order4 = [(k, t) for k in range(43 - TL) for t in range(2)] + [(k, t) for t in range(2) for k in range(43 - TL, 43)]
    def frag_read(n):
        k, t = order4[n]
        ad = WD_ORDER[k]*4096
        base = (("v6", "v7"), ("v14", "v15"), ("v16", "v17"))[ad >> 16][t]
        off = ad & 0xffff
        b = AF + (n % NAF)*4
        return f"ds_read_b64_tr_b16 {v(b,2)}, {base} offset:{off}\nds_read_b64_tr_b16 {v(b+2,2)}, {base} offset:{off+1024}"
    two = opt("two", 0)
    nchk = opt("nchk", 12)
    if two:
        pb = A.label("pb")
        A(f"s_cmp_lg_u32 s3, 0\ns_cbranch_scc1 {pb}\nbuffer_load_dword v252, v249, {srd(S_WS)}, s63 offen sc1\n{pb}:", tag="spin")
    side = []
    n0 = 0
    for k in range(H0, 43):
        if two and k == NSA: n0 = max(n0, nchk + 1)
        side.append((n0, *act_op(k))); n0 += opt("astep", 1)
    PF = NAF - 2
    N = 86
    ts(A, "issued4")
    for n in range(PF): A(frag_read(n))
    RS = 272
    early = []
    for n in range(N):
        k, t = order4[n]
        if n % 2 == 0: A.touch_regs([("v", AF+((n+1)%NAF)*4+3)])
        A(f"v_mfma_f32_32x32x16_bf16 {v(ACC+16*t,16)}, {v(AF+(n%NAF)*4,4)}, {a(4*k,4)}, {v(ACC+16*t,16) if k else 0}")
        if n == 0: ts(A, "first4"); tc(A, "first4")
        if side and side[0][0] <= n:
            _, tx, tag = side.pop(0); A(tx, tag=tag)
        if two and n == nchk:
            assert side[0][0] > nchk
            pc, lp = A.label("pc"), A.label("pcl")
            A(f"""
            s_cmp_lg_u32 s3, 0
            s_cbranch_scc1 {pc}
            s_mov_b32 s{S_CNT}, 0
            s_waitcnt vmcnt({NSA - H0})
            {lp}:
            v_cmp_ne_u32 vcc, s{S_TOK}, v252
            s_add_u32 s{S_CNT}, s{S_CNT}, 1
            s_cmp_ge_u32 s{S_CNT}, {MAXPOLL}
            s_cbranch_scc1 {pc}
            s_cbranch_vccz {pc}
            buffer_load_dword v252, v249, {srd(S_WS)}, s63 offen sc1
            s_waitcnt vmcnt(0)
            s_branch {lp}
            {pc}:
            s_barrier
            """, tag="spin")
            ts(A, "sync3b")
        if n == 47:
            A.wait_tag("dr"); A("s_barrier")
            for st_ in range(40, 43): A(*wd_op(st_, "do"))
            A(f"buffer_load_dwordx4 {v(XG,4)}, v10, {srd(S_WS)}, s46 offen {LDP('x')}")
            A(f"buffer_load_dwordx4 {v(XG+4,4)}, v10, {srd(S_WS)}, s48 offen {LDP('x')}")
            A(f"buffer_load_dwordx4 {v(XG+8,4)}, v11, {srd(S_WS)}, s47 offen sc1")
            A(f"buffer_load_dwordx4 {v(XG+12,4)}, v11, {srd(S_WS)}, s47 offen offset:16 sc1")
        if n == 73:
            A.wait_tag("do"); A("s_barrier")
            A(f"""
            s_mul_i32 s51, s3, {32*RS}
            v_and_b32 v18, 31, v1
            v_mul_u32_u24 v18, {RS}, v18
            v_bfe_u32 v19, v1, 5, 1
            v_lshl_add_u32 v18, v19, 4, v18
            v_add_u32 v18, s51, v18
            v_mul_u32_u24 v19, {RS}, v8
            v_lshl_add_u32 v19, v9, 5, v19
            """)
        if n + PF < N: A(frag_read(n+PF))
        if TL >= 3 and n == N - TL + 1: early = list(range(4))
        if early and n >= N - TL + 1:
            for _ in range(-(-len(early) // (N - n))):
                j = early.pop(0); A(f"ds_write_b128 v18, {v(ACC+4*j,4)} offset:{j*32}")
    assert not side
    ts(A, "mfma4"); tc(A, "mfma4")
    XF = 112
    for it in range(2):
        for h in range(4): A(f"v_lshlrev_b32 v{XF+it*8+2*h}, 16, v{XG+it*4+h}\nv_and_b32 v{XF+it*8+2*h+1}, 0xffff0000, v{XG+it*4+h}")
    for t in range(1 if TL >= 3 else 0, 2):
        for j in range(4):
            A(f"ds_write_b128 v18, {v(ACC+16*t+4*j,4)} offset:{t*128+j*32}")
    A("s_waitcnt lgkmcnt(0)\ns_barrier")
    RD = 128
    for it in range(2):
        for kh in range(2):
            for hf in range(2):
                A(f"ds_read_b128 {v(RD+it*16+kh*8+hf*4,4)}, v19 offset:{(kh*64+it*32)*RS+hf*16}")
    for it in range(2):
        z = RD + it*16
        for h in range(4): A(f"v_pk_add_f32 {v(z+2*h,2)}, {v(z+2*h,2)}, {v(z+8+2*h,2)}")
        for h in range(4): A(f"v_pk_fma_f32 {v(z+2*h,2)}, {v(z+2*h,2)}, {v(XG+8+2*h,2)}, {v(XF+it*8+2*h,2)}")
        if opt("scale", 0):
            for h in range(8): A(f"v_mul_f32 v{z+h}, {fbits(1 + opt('scale', 0)/1000)}, v{z+h}")
        for h in range(4): A(f"v_cvt_pk_bf16_f32 v{z+8+h}, v{z+2*h}, v{z+2*h+1}")
        A(f"buffer_store_dwordx4 {v(z+8,4)}, v12, {srd(S_OUT)}, s{49+it} offen {opt('outsc', 'sc1')}")

def LOC(c): return "" if c in opt("loc", "") else "sc1"
def LDP(c): return opt("ldp", "nt") if c in opt("loc", "") else "sc1"
def PLP(c): return opt("plp", "nt") if c in opt("loc", "") else "sc1"
def flag_set(A, soff, keep=0, reset=True, c="-", w0extra=False):
    sk = A.label("fs")
    A.c("hand-off: all stores of the workgroup are complete -> wave 0 publishes this launch's token")
    if w0extra:
        l0, l1 = A.label("fw"), A.label("fx")
        A(f"s_cmp_eq_u32 s3, 0\ns_cbranch_scc1 {l0}\ns_waitcnt vmcnt(0)\ns_branch {l1}\n{l0}:\ns_waitcnt vmcnt(1)\n{l1}:")
        keep = 1
    A(f"""
    s_waitcnt vmcnt({keep}) lgkmcnt(0)
    s_barrier
    s_cmp_lg_u32 s3, 0
    s_cbranch_scc1 {sk}
    v_mov_b32 v250, 0
    v_mov_b32 v251, s{S_TOK}
    s_mov_b64 exec, 1
    buffer_store_dword v251, v250, {srd(S_WS)}, s{soff} offen {LOC(c)}
    s_mov_b64 exec, -1
    {sk}:
    """)
    A.reset()

def late_prefetch(A, chunks, do_touch, nonln):
    n = 0
    if do_touch: touch(A, nonln=nonln); n += 3
    wchunks(A, chunks); n += 6*len(list(chunks))
    return n

def poll(A, kind, soff, others=None, after0=None):
    sk, lp, w0, jn = A.label("pk"), A.label("pl"), A.label("p0"), A.label("pj")
    A.c("hand-off: wave 0 waits (bounded) for the producers' tokens, the other waves prefetch weights")
    A(f"s_cmp_eq_u32 s3, 0\ns_cbranch_scc1 {w0}")
    if others: others(A)
    A(f"s_branch {jn}\n{w0}:\ns_mov_b32 s{S_CNT}, 0")
    shrink = opt("shrink", 1)
    slp = f"s_sleep {opt('slp', 0)}\n" if opt("slp", 0) else ""
    if kind == "l16": A("v_lshlrev_b32 v250, 7, v2")
    elif kind.startswith("s64"): A("v_lshlrev_b32 v250, 6, v1")
    NG = int(kind[-1]) if kind.startswith("s64") else 0
    if not NG:
        if shrink: A(f"s_mov_b64 exec, {'0xffffff' if kind == 'lst' else '0xffff'}")
        A(f"""
        {lp}:
        buffer_load_dword v252, v250, {srd(S_WS)}, s{soff} offen {PLP('h' if kind == 'l16' else 'a')}
        s_add_u32 s{S_CNT}, s{S_CNT}, 1
        s_waitcnt vmcnt(0)
        v_cmp_ne_u32 vcc, s{S_TOK}, v252
        s_cmp_ge_u32 s{S_CNT}, {MAXPOLL}
        s_cbranch_scc1 {sk}
        """)
        if shrink: A(f"s_and_b64 exec, exec, vcc\ns_cbranch_execz {sk}\n{slp}s_branch {lp}")
        else: A(f"{slp}s_cbranch_vccnz {lp}")
        A(f"{sk}:\ns_mov_b64 exec, -1")
    else:
        for j in range(1, 4): A(f"s_add_u32 s{71+j}, s{soff}, {j*4096}")
        if opt("pre1", 0):
            l1, d1 = A.label("p1"), A.label("p2")
            A(f"""
            s_and_b32 s92, s2, 127
            s_lshl_b32 s92, s92, 6
            s_add_u32 s92, s92, s{soff}
            v_mov_b32 v251, 0
            s_mov_b64 exec, 1
            {l1}:
            buffer_load_dword v252, v251, {srd(S_WS)}, s92 offen sc1
            s_add_u32 s{S_CNT}, s{S_CNT}, 1
            s_waitcnt vmcnt(0)
            v_cmp_ne_u32 vcc, s{S_TOK}, v252
            s_cmp_ge_u32 s{S_CNT}, {MAXPOLL}
            s_cbranch_scc1 {d1}
            s_cbranch_vccnz {l1}
            {d1}:
            s_mov_b64 exec, -1
            """)
        M = [84, 86, 88, 90]
        for j in range(4): A(f"s_mov_b64 s[{M[j]}:{M[j]+1}], {-1 if j < NG else 0}")
        A(f"{lp}:")
        for j in range(NG):
            sj = A.label("ps")
            A(f"s_mov_b64 exec, s[{M[j]}:{M[j]+1}]\ns_cbranch_execz {sj}")
            A(f"buffer_load_dword v{252+j}, v250, {srd(S_WS)}, s{soff if j == 0 else 71+j} offen sc1\n{sj}:")
        A(f"s_add_u32 s{S_CNT}, s{S_CNT}, 1\ns_waitcnt vmcnt(0)")
        for j in range(NG):
            A(f"s_mov_b64 exec, s[{M[j]}:{M[j]+1}]\nv_cmp_ne_u32 s[{M[j]}:{M[j]+1}], s{S_TOK}, v{252+j}" if shrink else f"s_mov_b64 exec, -1\nv_cmp_ne_u32 s[92:93], s{S_TOK}, v{252+j}\ns_cmp_lg_u64 s[92:93], 0\ns_cselect_b64 s[{M[j]}:{M[j]+1}], -1, 0")
        A(f"""
        s_or_b64 s[92:93], s[84:85], s[86:87]
        s_or_b64 s[94:95], s[88:89], s[90:91]
        s_cmp_ge_u32 s{S_CNT}, {MAXPOLL}
        s_cbranch_scc1 {sk}
        s_or_b64 s[92:93], s[92:93], s[94:95]
        s_cbranch_scc0 {sk}
        {slp}s_branch {lp}
        {sk}:
        s_mov_b64 exec, -1
        """)
    A.reset()
    if after0: after0(A)
    A(f"{jn}:\ns_barrier")

def poll_head(A, soff, vaddr):
    sk = A.label("ph")
    A(f"s_cmp_lg_u32 s3, 0\ns_cbranch_scc1 {sk}\nbuffer_load_dword v253, v{vaddr}, {srd(S_WS)}, s{soff} offen sc1\n{sk}:", tag="spin")
def poll_stag(A, soff, vaddr, others=None):
    sk, lp, w0, jn = A.label("pk"), A.label("pl"), A.label("p0"), A.label("pj")
    A.c("hand-off: wave 0 waits (bounded) for the producers' tokens with two staggered reads in flight")
    A(f"s_cmp_eq_u32 s3, 0\ns_cbranch_scc1 {w0}")
    if others: others(A)
    A(f"""
    s_branch {jn}
    {w0}:
    s_mov_b32 s{S_CNT}, 0
    {lp}:
    buffer_load_dword v252, v{vaddr}, {srd(S_WS)}, s{soff} offen sc1
    s_waitcnt vmcnt(1)
    v_cmp_ne_u32 vcc, s{S_TOK}, v253
    s_add_u32 s{S_CNT}, s{S_CNT}, 1
    s_cbranch_vccz {sk}
    buffer_load_dword v253, v{vaddr}, {srd(S_WS)}, s{soff} offen sc1
    s_waitcnt vmcnt(1)
    v_cmp_ne_u32 vcc, s{S_TOK}, v252
    s_cmp_ge_u32 s{S_CNT}, {MAXPOLL}
    s_cbranch_scc1 {sk}
    s_cbranch_vccnz {lp}
    {sk}:
    """, tag="spin")
    A.reset()
    A(f"{jn}:\ns_barrier")

def build():
    A = Asm()
    name = NAME + "_kernel"
    kernel_begin(A, name)
    done = A.label("done")
    if TS: A("s_memrealtime s[62:63]\ns_waitcnt lgkmcnt(0)")
    entry(A, done)
    if TS:
        A("v_mov_b32 v248, 0\nv_writelane_b32 v248, s62, 0"); _ts["n"] = 1; _ts["names"] = ["entry"]
    m, i_, e = A.label("k1mod"), A.label("k1idle"), A.label("k1end")
    tok = f"s_waitcnt lgkmcnt(0)\ns_mul_i32 s{S_TOK}, s{S_TOK}, 0x9e3779b1\ns_add_u32 s{S_TOK}, s{S_TOK}, 0x7f4a7c15\ns_lshl_b32 s62, s2, 6\ns_add_u32 s62, s62, {WS_F1}"
    pfA = range(opt("pfA", 0)); tm = opt("touch", 11)
    A(f"s_cmp_ge_u32 s2, 128\ns_cbranch_scc1 {m}")
    k1_ln(A)
    ts(A, "stiss")
    if opt("lateset", 0): common_setup(A, 2, True)
    if tm == 9: touch(A, "gu")
    keep = (2 if tm == 9 else 0) + late_prefetch(A, pfA if opt("pfApos", 0) == 3 else [], tm == 5, False)
    A(tok); flag_set(A, 62, keep)
    A(f"s_branch {e}\n{m}:\ns_cmp_ge_u32 s2, 224\ns_cbranch_scc1 {i_}")
    A.reset()
    k1_mod(A)
    tsx(A, 62)
    A.reset()
    keep = late_prefetch(A, pfA if opt("pfMpos", 0) == 3 else [], tm in (5, 6), tm == 6)
    A(tok); flag_set(A, 62, keep)
    if tm == 4 and opt("tafter", 0): touch(A, nonln=True)
    A(f"s_branch {e}\n{i_}:")
    A.reset()
    A(small_srd(S_X, 2097152) + "\n" + small_srd(S_C, 1024) + "\ns_waitcnt lgkmcnt(0)")
    common_setup(A)
    A(tok); flag_set(A, 62, 63)
    if opt("idledelay", 0):
        A(f"v_lshlrev_b32 v4, 2, v0\nbuffer_load_dword v8, v4, {srd(S_C)}, 0 offen\ns_waitcnt vmcnt(0)")
    if tm == 7: touch_early(A)
    if tm == 9: touch(A, "gu")
    if tm in (10, 11): touch(A, "gu", nonln=True)
    if tm in (2, 5): touch(A)
    if tm in (3, 4, 6): touch(A, nonln=True)
    wchunks(A, pfA)
    A(f"{e}:")
    A.reset()
    ts(A, "f1set")
    if opt("cpf", 0) & 1: A(code_pf_text(".Lk2code", 249, 48))
    k2_pre(A, (lambda: wchunks(A, range(opt("pfA", 0), opt("pfA", 0) + opt("pf1", 3)))) if not opt("prefirst", 1) and not opt("w3", 1) else None)
    if opt("touch", 11) == 7: touch_late_setup(A)
    if opt("touch", 11) == 7 and opt("tlate", 0) == 0: touch_late(A)
    ts(A, "pre")
    w3 = opt("w3", 1)
    if opt("prefirst", 1) and not w3: wchunks(A, range(opt("pfA", 0), opt("pfA", 0) + opt("pf1", 3)))
    A(f"s_mov_b32 s63, {WS_F1}")
    poll(A, "s64x2" if opt("sepmod", 1) else "s64x4", 63, others=(lambda A_: w3_chunks(A_, range(opt("pf1", 3)))) if w3 else None)
    A.reset()
    ts(A, "sync1")
    A(".Lk2code:")
    k2_main(A)
    ts(A, "stiss2")
    keep = late_prefetch(A, range(opt("pfA", 0) + opt("pf1", 3), opt("pfB", 4)) if opt("pfBpos", 1) == 3 else [], False, False)
    flag_set(A, 62, keep + (4 if opt("latex1", 2) == 1 else 0), c="h")
    ts(A, "f2set")
    if not opt("w3b", 0): wchunks(A, range(opt("pfB", 4), opt("pfB", 4) + opt("pf3", 2)))
    stag = opt("stag", 0)
    if stag & 1:
        A(rb_expr() + f"\ns_lshl_b32 s63, s36, 11\ns_add_u32 s63, s63, {WS_F2}\nv_lshlrev_b32 v247, 7, v2")
        poll_head(A, 63, 247)
    k3_pre(A)
    idle3 = A.label("k3idle")
    A(f"s_cmp_eq_u32 s37, 15\ns_cbranch_scc1 {idle3}")
    if stag & 1: poll_stag(A, 63, 247)
    else: poll(A, "l16", 62, others=(lambda A_: w3_chunks(A_, range(opt("pfB", 4), opt("pfB", 4) + opt("pf3", 2)))) if opt("w3b", 0) else None)
    A.reset()
    ts(A, "sync2")
    A(".Lk3code:")
    k3_main(A, idle3)
    if opt("two", 0): A(f"s_add_u32 s61, s61, {WS_F3B - WS_F3}")
    flag_set(A, 61, c="a", w0extra=bool(opt("two", 0)))
    ts(A, "f3set")
    k4_pre(A)
    if stag & 2: poll_stag(A, 62, 250, others=wd_rest3)
    else: poll(A, "lst", 62, others=wd_rest3 if opt("wr3", 1) else wd_rest, after0=None if opt("wr3", 1) else wd_rest)
    ts(A, "sync3")
    k4_main(A)
    sk = A.label("ep")
    A(f"""
    s_or_b32 s63, s2, s3
    s_cmp_lg_u32 s63, 0
    s_cbranch_scc1 {sk}
    v_mov_b32 v250, 0
    v_mov_b32 v251, s{S_TOK}
    s_mov_b32 s63, {WS_EP}
    s_mov_b64 exec, 1
    buffer_store_dword v251, v250, {srd(S_WS)}, s63 offen sc1
    s_mov_b64 exec, -1
    {sk}:
    """)
    ts(A, "end")
    probe_end(A)
    ts_flush(A)
    A(f"{done}:\n.Lend:\ns_endpgm")
    if opt("jit", 0):
        import random
        rnd = random.Random(opt("jit", 0)); out = []
        def delay():
            lb = A.label("jit")
            c = f"s_cmp_eq_u32 s3, {rnd.randrange(4)}\ns_cbranch_scc0 {lb}" if rnd.random() < 0.6 else f"s_bitcmp1_b32 s2, {rnd.randrange(8)}\ns_cbranch_scc0 {lb}"
            return [Ins(x) for x in (c + f"\ns_sleep {rnd.randrange(2, 40)}\n{lb}:").split("\n")]
        for I in A.ins:
            if I.op == "s_barrier":
                if rnd.random() < 0.7: out += delay()
                out.append(I)
                if rnd.random() < 0.7: out += delay()
            else: out.append(I)
        A.ins = out
    code = A.finalize()
    return [(None, (256,1,1), (256,1,1), LDS_TOTAL)], code, [kernel_desc(name, 256, 172)]

if __name__ == "__main__":
    hdr = [l.rstrip("\n") for l in open("cdna_kernels/%s.s.ref" % NAME) if l.startswith(";") and "@launch" not in l][:15]
    hdr += ["; " + l for l in """
One persistent launch, 256 workgroups (one per CU) of 4 waves, four phases separated by flag hand-offs in d_ws.
The two DFTs (constant cos / sin matrices) are evaluated as Cooley-Tukey factorisations on the matrix cores:
  rows 2048 = 64 x 32 (phase 1 / phase 2), columns 512 = 16 x 32 (phase 2); the row DFT is applied before the
  column modulation, which commutes with it (the shift only reaches output row 0).
Hand-offs: write-through (sc1) stores, drain, barrier, token store; consumers poll with sc1 loads.  The token is
derived from an epoch word in d_ws that workgroup 0 advances at the end, so stale flags of earlier launches never match.
Workgroup -> role maps assume id % 8 = die for L2 locality only; any placement is correct.
""".strip().split("\n")]
    out = sys.argv[1]
    for kv in sys.argv[2:]:
        k_, v_ = kv.split("=")
        OPT[k_] = int(v_) if v_.lstrip("-").isdigit() else v_
    TS = bool(opt("ts", 0)); PROBE = opt("probe", None)
    launches, code, descs = build()
    open(out, "w").write(file_text(hdr, launches, code, descs))
    if TS: json.dump([_ts["names"]], open(out[:-2] + ".json", "w"))
```

```python
import sys, struct, math, json
from asmlib import *

NAME = "adaLN_cond__spectral_fnet__swiglu_ffn__prompt"
def fbits(x): return "0x%08x" % struct.unpack("<I", struct.pack("<f", x))[0]
OPT = {}
def opt(k, d): return OPT.get(k, d)

WS_U   = 0
WS_MOD = 0x240000
WS_H2  = 0x300000
WS_X1  = 0x500000
WS_ACT = 0x800000
WS_FLG = 0xE00000
WS_TS  = 0xF00000
WS_SIZE = 0x1000000
WS_EP  = WS_FLG
WS_F1  = WS_FLG + 0x1000
WS_F2  = WS_FLG + 0x10000
WS_F3  = WS_FLG + 0x20000
def SLOTSTR(): return 65536 + opt("upad", 0)
def USLOT(): return 512 if opt("upm", 0) else SLOTSTR()
def UOCT(): return 16384 if opt("upm", 0) else 512
def UN2(): return 65536 + opt("upad", 0) if opt("upm", 0) else 2048
MAXPOLL = int(__import__('os').environ.get('MAXPOLL', '60000'))
LDS_TOTAL = 163840
SLOT = 24640; UOFF = 12320
XCS = 1040
XWS = 16 * XCS
XIMG = LDS_TOTAL - 4 * XWS
XTAB = XIMG - 384
MW = XIMG
MSC = MW + 32768
MRED = MSC + 1024
K2EX = 123200
K2HB = K2EX + 18432
S_X, S_WG, S_WU, S_WD, S_C, S_WM, S_OUT, S_WS = 4, 8, 12, 16, 20, 24, 28, 32
S_TOK, S_CNT, S_SL, S_WL, S_DG, S_DL, S_T, S_T2 = 64, 65, 66, 67, 68, 69, 70, 75
V_W = 240
V_D = 243
def srd(b): return s(b, 4)
LOG2E = fbits(-math.log2(math.e))

TS = False
PROBE = None
_ts = {"n": 0, "names": []}
def ts(A, name=None, cyc=False):
    if not TS: return
    if opt("tsonly", None) and name not in opt("tsonly", "").split("+") and name not in ("f1set", "end"): return
    n = _ts["n"]; _ts["n"] += 1
    _ts["names"].append(("c:" if cyc else "") + name)
    A(f"{'s_memtime' if cyc else 's_memrealtime'} s[98:99]\ns_waitcnt lgkmcnt(0)\nv_writelane_b32 v248, s98, {n}")
def tsx(A, lane):
    if TS: A(f"s_memrealtime s[98:99]\ns_waitcnt lgkmcnt(0)\nv_writelane_b32 v248, s98, {lane}")
def tc(A, name=None): ts(A, name, True)
def probe_end(A):
    if PROBE is None: return
    lp = A.label("pr")
    idx = _ts["names"].index(PROBE)
    A(f"""
    s_waitcnt vmcnt(0) lgkmcnt(0)
    v_readlane_b32 s90, v248, 0
    v_readlane_b32 s91, v248, {idx}
    s_nop 4
    s_sub_u32 s91, s91, s90
    s_cmp_gt_u32 s91, 20000
    s_cselect_b32 s91, 0, s91
    s_add_u32 s91, s91, 6000
    {lp}:
    s_memrealtime s[92:93]
    s_waitcnt lgkmcnt(0)
    s_sub_u32 s92, s92, s90
    s_cmp_lt_u32 s92, s91
    s_cbranch_scc1 {lp}
    """)
def ts_flush(A):
    if not TS: return
    sk = A.label("tsk")
    A(f"s_waitcnt vmcnt(0) lgkmcnt(0)\ns_cmp_lg_u32 s3, 0\ns_cbranch_scc1 {sk}")
    A(f"s_lshl_b32 s64, s2, 8\ns_add_u32 s64, s64, {WS_TS}\nv_lshlrev_b32 v1, 2, v1")
    A(f"buffer_store_dword v248, v1, {srd(S_WS)}, s64 offen")
    A(f"s_waitcnt vmcnt(0)\n{sk}:")

def bf16r(A, dst, src):
    A(f"v_cvt_pk_bf16_f32 {dst}, {src}, {src}\nv_lshlrev_b32 {dst}, 16, {dst}")

_lbl = [None, 0]
def SLBL():
    _lbl[1] += 1; _lbl[0] = f".sl_{_lbl[1]}"; return _lbl[0]
def sl_expr(d=38, t=39):
    if opt("T", 4) == 2:
        return f"s_lshr_b32 s{d}, s2, 4"
    if opt("T", 4) == 4 and opt("bal", 0):
        return f"s_and_b32 s{d}, s2, 1\ns_mul_i32 s{d}, s{d}, 7\ns_lshr_b32 s{t}, s2, 5\ns_add_u32 s{d}, s{d}, s{t}\ns_cmp_eq_u32 s{t}, 7\ns_cbranch_scc0 {SLBL()}\ns_and_b32 s{d}, s2, 1\ns_add_u32 s{d}, s{d}, 14\n{_lbl[0]}:"
    if opt("T", 4) == 4:
        return f"s_and_b32 s{d}, s2, 1\ns_lshl_b32 s{d}, s{d}, 3\ns_lshr_b32 s{t}, s2, 5\ns_add_u32 s{d}, s{d}, s{t}"
    return f"s_and_b32 s{d}, s2, 3\ns_lshl_b32 s{d}, s{d}, 2\ns_lshr_b32 s{t}, s2, 6\ns_add_u32 s{d}, s{d}, s{t}"
def rb_expr():
    if opt("T", 4) == 2:
        return "s_and_b32 s36, s2, 7\ns_lshl_b32 s36, s36, 1\ns_bfe_u32 s39, s2, 0x10003\ns_add_u32 s36, s36, s39"
    if opt("T", 4) == 4:
        return "s_bfe_u32 s36, s2, 0x20001\ns_lshl_b32 s36, s36, 2\ns_bfe_u32 s39, s2, 0x20003\ns_add_u32 s36, s36, s39"
    return "s_bfe_u32 s36, s2, 0x10002\ns_lshl_b32 s36, s36, 3\ns_bfe_u32 s39, s2, 0x30003\ns_add_u32 s36, s36, s39"
KREST = """s_load_dwordx2 s[24:25], s[0:1], 80
    s_load_dwordx2 s[20:21], s[0:1], 72
    s_load_dwordx2 s[32:33], s[0:1], 104
    s_load_dwordx2 s[8:9], s[0:1], 48
    s_load_dwordx2 s[12:13], s[0:1], 56
    s_load_dwordx2 s[16:17], s[0:1], 64
    s_load_dwordx2 s[28:29], s[0:1], 88"""
def entry(A, done):
    A.c('---- entry: over-launched workgroups leave; kernel-argument loads; code prefetch into L2 ----')
    CP = opt("codepf", 1)
    A(f"""
    s_cmp_ge_u32 s2, 256
    s_cbranch_scc1 {done}
    s_load_dwordx2 s[4:5], s[0:1], 0
    {"" if opt("karg", 0) else KREST}
    v_lshrrev_b32 v2, 6, v0
    v_and_b32 v1, 63, v0
    v_readfirstlane_b32 s3, v2
    """)
    if CP:
        A(f"""
        s_getpc_b64 s[40:41]
        s_and_b32 s40, s40, 0xffffff00
        s_lshr_b32 s42, s2, 3
        s_lshl_b32 s42, s42, 2
        s_add_u32 s42, s42, s3
        s_and_b32 s42, s42, {opt("cpmask", 15)}
        s_lshl_b32 s42, s42, 11
        v_and_b32 v250, 15, v0
        v_lshlrev_b32 v250, 7, v250
        v_add_u32 v250, s42, v250
        v_min_u32 v250, .Lend-{NAME}_kernel, v250
        global_load_dword v249, v250, s[40:41]
        """)
    A("v_and_b32 v2, 15, v0\nv_bfe_u32 v3, v0, 4, 2")

def common_setup(A, part=3, ln=False):
    if part & 1: common_early(A)
    if part & 2: common_late(A, ln)
def common_early(A):
    for b, sz in ((S_WG, 1409024), (S_WU, 1409024), (S_WD, 1409024), (S_OUT, 2097152), (S_WS, WS_SIZE)):
        A(f"s_mov_b32 s{b+2}, {sz}\ns_mov_b32 s{b+3}, 0x20000")
    A(f"s_add_u32 s72, s32, {WS_EP}\ns_addc_u32 s73, s33, 0\ns_load_dword s{S_TOK}, s[72:73], 0")
def common_late(A, ln):
    A(f"""
    {sl_expr(72, 73)}
    s_mul_i32 s{S_SL}, s72, 192
    s_cmp_eq_u32 s72, 15
    s_cselect_b32 s{S_SL}, 0x200000, s{S_SL}
    s_mul_i32 s{S_WL}, s3, 3072
    s_mul_i32 s72, s3, 192
    s_mov_b32 s73, 0x15555556
    """)
    for i in range(3):
        A(f"""
        v_add_u32 v{V_W+i}, s72, v1
        v_add_u32 v{V_W+i}, {64*i}, v{V_W+i}
        v_mul_hi_u32 v244, v{V_W+i}, s73
        v_mul_u32_u24 v245, 12, v244
        v_sub_u32 v{V_W+i}, v{V_W+i}, v245
        v_lshlrev_b32 v{V_W+i}, 4, v{V_W+i}
        v_mul_u32_u24 v244, 2752, v244
        v_add_u32 v{V_W+i}, v{V_W+i}, v244
        """)
    if opt("tlb", 0):
        A(f"""
        v_lshlrev_b32 v239, {opt("tlb", 0)}, v1
        v_add_u32 v239, 0x2ff000, v239
        v_min_u32 v239, {WS_SIZE - 64}, v239
        buffer_load_dword v235, v239, {srd(S_WS)}, 0 offen
        v_mov_b32 v239, 0
        buffer_load_dword v234, v239, {srd(S_OUT)}, 0 offen
        """)
    if not ln and opt("touch", 11) in (1, 2, 3, 4, 5, 6, 8, 9, 10, 11): touch_setup(A, opt("touch", 11) in (3, 4, 6, 10, 11))
V_W3 = 224
def w3_setup(A):
    A(f"s_sub_u32 s72, s3, 1\ns_lshl_b32 s96, s72, 12\ns_lshl_b32 s72, s72, 8\ns_mov_b32 s73, 0x15555556")
    for i in range(4):
        A(f"""
        v_add_u32 v{V_W3+i}, s72, v1
        v_add_u32 v{V_W3+i}, {64*i}, v{V_W3+i}
        v_mul_hi_u32 v244, v{V_W3+i}, s73
        v_mul_u32_u24 v245, 12, v244
        v_sub_u32 v{V_W3+i}, v{V_W3+i}, v245
        v_lshlrev_b32 v{V_W3+i}, 4, v{V_W3+i}
        v_mul_u32_u24 v244, 2752, v244
        v_add_u32 v{V_W3+i}, v{V_W3+i}, v244
        """)
def w3_chunks(A, chunks):
    w3_setup(A)
    for ch in chunks:
        A(f"s_add_u32 s{S_T2}, s{S_SL}, {ch*64*2752}")
        for mtx, sr in ((0, S_WG), (1, S_WU)):
            for i in range(4):
                A(f"s_add_u32 m0, s96, {ch*SLOT+mtx*UOFF+i*1024}\nbuffer_load_dwordx4 v{V_W3+i}, {srd(sr)}, s{S_T2} offen lds")
def code_pf_text(label, dst, nlines=64):
    here = f".Lpc_{label.strip('.')}"
    return f"""s_getpc_b64 s[72:73]
    {here}:
    s_add_u32 s72, s72, {label}-{here}
    s_addc_u32 s73, s73, 0
    v_min_u32 v{dst}, {nlines-1}, v1
    v_lshlrev_b32 v{dst}, 7, v{dst}
    v_min_u32 v{dst}, .Lend-{label}, v{dst}
    global_load_dword v{dst}, v{dst}, s[72:73]"""
def small_srd(b, sz): return f"s_mov_b32 s{b+2}, {sz}\ns_mov_b32 s{b+3}, 0x20000"

def touch_setup(A, nonln=False):
    n = 22 if nonln else 11
    A(f"""
    s_lshl_b32 s{S_T}, s2, 2
    s_add_u32 s{S_T}, s{S_T}, s3
    s_and_b32 s{S_T}, s{S_T}, {511 if nonln else 1023}
    s_mul_i32 s{S_T}, s{S_T}, {n}
    v_min_u32 v246, {n-1}, v1
    v_add_u32 v246, s{S_T}, v246
    v_lshlrev_b32 v246, 7, v246
    """)
def touch(A, which="gud", nonln=False):
    pol = opt("tpol", "")
    A(f"s_mov_b64 exec, {hex((1 << (22 if nonln else 11)) - 1)}")
    if "g" in which: A(f"buffer_load_dword v236, v246, {srd(S_WG)}, 0 offen {pol}")
    if "u" in which: A(f"buffer_load_dword v237, v246, {srd(S_WU)}, 0 offen {pol}")
    if "d" in which: A(f"buffer_load_dword v238, v246, {srd(S_WD)}, 0 offen {pol}")
    A("s_mov_b64 exec, -1")

def touch_early(A):
    rows = 64 * opt("terows", 5)
    n = (rows * 2752 // 128 + 127) // 128
    A(f"""
    s_sub_u32 s38, s2, 224
    s_lshl_b32 s38, s38, 2
    s_add_u32 s38, s38, s3
    s_mul_i32 s38, s38, {n}
    v_min_u32 v246, {n-1}, v1
    v_add_u32 v246, s38, v246
    v_lshlrev_b32 v246, 7, v246
    buffer_load_dword v247, v246, {srd(S_WG)}, 0 offen
    buffer_load_dword v245, v246, {srd(S_WU)}, 0 offen
    """)
    for j in range(1, (n + 63) // 64):
        A(f"""
        v_add_u32 v244, {64*j}, v1
        v_min_u32 v244, {n-1}, v244
        v_add_u32 v244, s38, v244
        v_lshlrev_b32 v244, 7, v244
        buffer_load_dword v239, v244, {srd(S_WG)}, 0 offen
        buffer_load_dword v238, v244, {srd(S_WU)}, 0 offen
        """)
def touch_late_setup(A):
    rows0 = 64 * opt("terows", 5)
    n = ((512 - rows0) * 2752 // 128 + 1023) // 1024
    A(f"""
    s_lshl_b32 s{S_T}, s2, 2
    s_add_u32 s{S_T}, s{S_T}, s3
    s_mul_i32 s71, s{S_T}, 11
    s_mul_i32 s{S_T}, s{S_T}, {n}
    s_add_u32 s{S_T}, s{S_T}, {rows0*2752//128}
    v_min_u32 v246, {max(n-1,0)}, v1
    v_add_u32 v246, s{S_T}, v246
    v_lshlrev_b32 v246, 7, v246
    v_min_u32 v247, 10, v1
    v_add_u32 v247, s71, v247
    v_lshlrev_b32 v247, 7, v247
    """)
def touch_late(A):
    A(f"""
    s_mov_b64 exec, 0x7ff
    buffer_load_dword v245, v246, {srd(S_WG)}, 0 offen
    buffer_load_dword v244, v246, {srd(S_WU)}, 0 offen
    buffer_load_dword v246, v247, {srd(S_WD)}, 0 offen
    s_mov_b64 exec, -1
    """)

def wchunk_ops(chunk, slot, tag):
    ops = []
    for mtx, sr in ((0, S_WG), (1, S_WU)):
        for i in range(3):
            t = f"s_add_u32 m0, s{S_WL}, {slot*SLOT+mtx*UOFF+i*1024}\n"
            if mtx == 0 and i == 0: t += f"s_add_u32 s{S_T2}, s{S_SL}, {chunk*64*2752}\n"
            t += f"buffer_load_dwordx4 v{V_W+i}, {srd(sr)}, s{S_T2} offen {opt('wpol','')} lds"
            ops.append((t, tag))
    return ops
def wchunks(A, chunks):
    for ch in chunks:
        for t, tag in wchunk_ops(ch, ch, f"w{ch}"): A(t, tag=tag)

def k1_ln(A):
    A.c('==== phase 1a (workgroups 0..127): LayerNorm-1 statistics of 64 rows n = 32*n1 + n2 and the 64-point DFT over n1 ====\nrows -> LDS (DMA), sum / sum of squares by MFMA, U[slot][n2][d] = sum_n1 W64^(n1*slot) * r[n1] * (x - mean) -> workspace')
    A(f"""
    s_and_b32 s38, s2, 7
    s_lshr_b32 s39, s2, 3
    s_lshr_b32 s40, s39, 2
    s_lshl_b32 s40, s40, 3
    s_add_u32 s36, s38, s40
    s_and_b32 s37, s39, 3
    v_lshrrev_b32 v4, 2, v1
    v_sub_u32 v5, 0, v3
    v_xor_b32 v5, v5, v1
    v_and_b32 v5, 3, v5
    v_lshlrev_b32 v4, 15, v4
    v_lshl_add_u32 v4, v5, 4, v4
    s_lshl_b32 s38, s3, 9
    s_add_u32 s38, s38, s36
    s_lshl_b32 s38, s38, 10
    s_mul_i32 s39, s3, {XWS}
    s_add_u32 s39, s39, {XIMG}
    {small_srd(S_X, 2097152)}
    s_waitcnt lgkmcnt(0)
    """)
    ts(A, "prolog")
    for i in range(16):
        A(f"s_add_u32 m0, s39, {i*(XCS-64)}")
        A(f"buffer_load_dwordx4 v4, {srd(S_X)}, s38 offen offset:{i*64} {opt('xpol','')} lds", tag=f"x{i}")
    if opt("karg", 0): A(KREST + "\ns_waitcnt lgkmcnt(0)")
    common_setup(A, 1 if opt("lateset", 0) else 3, True)
    BC, NV = 16, 48
    A("""
    v_lshlrev_b32 v5, 3, v3
    v_cvt_f32_u32 v5, v5
    s_and_b32 s40, s3, 1
    s_lshl_b32 s40, s40, 4
    v_add_u32 v6, s40, v2
    v_cmp_eq_u32 vcc, 0, v6
    v_cvt_f32_u32 v6, v6
    v_mul_f32 v6, 0x3c800000, v6
    v_mov_b32 v8, 0x3e800000
    v_cndmask_b32 v9, v6, 0.5, vcc
    v_cndmask_b32 v10, v8, 0, vcc
    """)
    for ks in range(2):
        for j in range(8):
            A(f"v_add_f32 v{NV}, {fbits(32*ks+j)}, v5\nv_mul_f32 v{BC+ks*8+j}, v{NV}, v6\nv_fma_f32 v{BC+16+ks*8+j}, v{NV}, v9, v10")
    for i in range(32): A(f"v_cos_f32 v{BC+i}, v{BC+i}")
    ONES, G, SA = 112, 116, 120
    for i in range(4): A(f"v_mov_b32 v{ONES+i}, 0x3f803f80")
    A(f"""
    v_lshrrev_b32 v5, 2, v2
    v_sub_u32 v5, 0, v5
    v_xor_b32 v5, v5, v3
    v_and_b32 v5, 3, v5
    v_lshlrev_b32 v5, 4, v5
    v_lshl_add_u32 v5, v2, 6, v5
    v_add_u32 v5, s39, v5
    v_lshrrev_b32 v6, 1, v3
    v_mul_u32_u24 v6, {XWS}, v6
    v_and_b32 v7, 3, v1
    v_mul_u32_u24 v7, {XCS}, v7
    v_add_u32 v6, v6, v7
    v_and_b32 v7, 1, v3
    v_lshl_add_u32 v6, v7, 9, v6
    v_bfe_u32 v8, v1, 2, 2
    v_lshl_add_u32 v6, v8, 6, v6
    s_lshr_b32 s41, s3, 1
    s_mul_i32 s42, s41, {8*XCS}
    s_add_u32 s42, s42, {XIMG}
    v_add_u32 v6, s42, v6
    v_lshlrev_b32 v7, 1, v7
    v_xor_b32 v8, s37, v7
    v_lshl_add_u32 v11, v8, 4, v6
    v_xor_b32 v8, 3, v8
    v_lshl_add_u32 v12, v8, 4, v6
    v_add_u32 v12, 256, v12
    s_lshl_b32 s42, s3, 6
    s_add_u32 s42, s42, {XTAB}
    v_lshl_add_u32 v7, v2, 2, s42
    s_lshl_b32 s42, s3, 5
    s_add_u32 s42, s42, {XTAB+256}
    v_lshl_add_u32 v13, v2, 1, s42
    v_lshlrev_b32 v8, 5, v3
    v_add_u32 v8, {XTAB}, v8
    v_lshlrev_b32 v14, 4, v3
    v_add_u32 v14, {XTAB+256}, v14
    s_mov_b32 s42, 0x22222222
    s_mov_b32 s43, 0x22222222
    s_mov_b32 s44, 0x44444444
    s_mov_b32 s45, 0x44444444
    s_mov_b32 s46, 0x88888888
    s_mov_b32 s47, 0x88888888
    v_add_u32 v9, s40, v2
    v_mul_u32_u24 v9, {USLOT()}, v9
    v_lshl_add_u32 v9, v3, 4, v9
    s_mul_i32 s48, s36, {UN2()}
    s_mul_i32 s49, s37, {UOCT()}
    s_add_u32 s48, s48, s49
    s_lshl_b32 s49, s41, 7
    s_add_u32 s48, s48, s49
    s_add_u32 s48, s48, {WS_U}
    """)
    ts(A, "const")
    R = 48
    pfl = [op for ch in range(opt("pfA", 0)) for op in wchunk_ops(ch, ch, f"w{ch}")] if opt("pfApos", 0) == 2 else []
    for i in range(16):
        A.wait_tag(f"x{i}")
        A(f"ds_read_b128 {v(R+4*i,4)}, v5 offset:{i*XCS}")
        for _ in range(2 if i >= 14 - len(pfl)//2 + 7 else 1):
            if pfl and i >= opt("pfAi", 2): A(*pfl.pop(0))
        if i >= 1:
            k = i - 1
            A(f"v_mfma_f32_16x16x32_bf16 {v(G,4)}, {v(R+4*k,4)}, {v(R+4*k,4)}, {v(G,4) if k else 0}")
            A(f"v_mfma_f32_16x16x32_bf16 {v(SA,4)}, {v(ONES,4)}, {v(R+4*k,4)}, {v(SA,4) if k else 0}")
    A("s_barrier")
    late_pf = pfl
    A(f"v_mfma_f32_16x16x32_bf16 {v(G,4)}, {v(R+60,4)}, {v(R+60,4)}, {v(G,4)}")
    A(f"v_mfma_f32_16x16x32_bf16 {v(SA,4)}, {v(ONES,4)}, {v(R+60,4)}, {v(SA,4)}")
    ts(A, "xarr")
    if opt("touch", 11) == 2: touch(A)
    if opt("pfA", 0) and opt("pfApos", 0) == 1: wchunks(A, range(opt("pfA", 0)))
    X = 128
    for tl in range(4):
        for ks in range(2):
            b = X + (tl*2+ks)*4
            off = ks*2*XWS + (tl >> 1)*4*XCS + 8*(tl & 1)
            A(f"ds_read_b64_tr_b16 {v(b,2)}, v11 offset:{off}\nds_read_b64_tr_b16 {v(b+2,2)}, v12 offset:{off}")
    A(f"""
    v_cndmask_b32 v10, v{G}, v{G+1}, s[42:43]
    v_cndmask_b32 v10, v10, v{G+2}, s[44:45]
    v_cndmask_b32 v10, v10, v{G+3}, s[46:47]
    v_mul_f32 v15, 0xbb000000, v{SA}
    v_mul_f32 v10, 0x3b000000, v10
    v_fma_f32 v10, -v15, v15, v10
    v_max_f32 v10, 0, v10
    v_cvt_pk_bf16_f32 v15, v15, v10
    v_and_b32 v10, 0xffff0000, v15
    v_add_f32 v10, {fbits(1e-5)}, v10
    """)
    bf16r(A, "v10", "v10")
    A("v_sqrt_f32 v10, v10")
    bf16r(A, "v10", "v10")
    A("""
    v_rcp_f32 v10, v10
    s_mov_b32 exec_lo, 0x00f0000f
    s_mov_b32 exec_hi, 0xf0000f00
    ds_write_b16 v13, v15
    ds_write_b32 v7, v10
    s_mov_b64 exec, -1
    s_waitcnt lgkmcnt(0)
    s_barrier
    """)
    ts(A, "stats")
    for op in late_pf: A(*op)
    TR, AM, BP, CM, ACC, PK = 48, 64, 72, 88, 160, 96
    for ks in range(2):
        for hf in range(2): A(f"ds_read_b128 {v(TR+ks*8+hf*4,4)}, v8 offset:{ks*128+hf*16}")
        A(f"ds_read_b128 {v(AM+ks*4,4)}, v14 offset:{ks*64}")
    for ks in range(2):
        for c in range(2):
            for jj in range(4):
                b = BC + c*16 + ks*8 + 2*jj
                A(f"v_pk_mul_f32 {v(b,2)}, {v(b,2)}, {v(TR+ks*8+2*jj,2)}")
            for jj in range(4):
                b = BC + c*16 + ks*8 + 2*jj
                A(f"v_cvt_pk_bf16_f32 v{BP+(c*2+ks)*4+jj}, v{b}, v{b+1}")
    for ks in range(2):
        for c in range(2):
            A(f"v_mfma_f32_16x16x32_bf16 {v(CM+4*c,4)}, {v(AM+ks*4,4)}, {v(BP+(c*2+ks)*4,4)}, {v(CM+4*c,4) if ks else 0}")
    for tl in range(4):
        for c in range(2):
            acc = ACC + (tl*2+c)*4
            A(f"v_mfma_f32_16x16x32_bf16 {v(acc,4)}, {v(X+(tl*2)*4,4)}, {v(BP+(c*2)*4,4)}, {v(CM+4*c,4)}")
        for c in range(2):
            acc = ACC + (tl*2+c)*4
            A(f"v_mfma_f32_16x16x32_bf16 {v(acc,4)}, {v(X+(tl*2+1)*4,4)}, {v(BP+(c*2+1)*4,4)}, {v(acc,4)}")
        if tl >= 1: k1_store(A, tl-1, ACC, PK)
    k1_store(A, 3, ACC, PK)

def k1_store(A, tl, ACC, PK):
    acc = ACC + tl*8; pk = PK + tl*4
    for r in range(4): A(f"v_cvt_pk_bf16_f32 v{pk+r}, v{acc+r}, v{acc+4+r}")
    A(f"buffer_store_dwordx4 {v(pk,4)}, v9, {srd(S_WS)}, s48 offen offset:{(tl&1)*256+(tl>>1)*64} sc1", tag="st")

def k1_mod(A):
    if opt("karg", 0): A(KREST)
    A.c('==== phase 1b (workgroups 128..223): mod = silu(c) @ w_mod, 32 columns per workgroup ====')
    A(f"""
    s_and_b32 s38, s2, 7
    s_lshr_b32 s39, s2, 3
    s_mul_i32 s38, s38, 12
    s_add_u32 s36, s38, s39
    s_sub_u32 s36, s36, 16
    v_lshlrev_b32 v4, 2, v0
    {small_srd(S_C, 1024)}
    {small_srd(S_WM, 3145728)}
    {small_srd(S_X, 2097152)}
    v_lshrrev_b32 v5, 2, v1
    v_mul_u32_u24 v5, 6144, v5
    v_and_b32 v6, 3, v1
    v_lshl_add_u32 v5, v6, 4, v5
    s_mul_i32 s38, s3, {128*6144}
    s_lshl_b32 s39, s36, 6
    s_add_u32 s38, s38, s39
    s_lshl_b32 s39, s3, 13
    s_add_u32 s39, s39, {MW}
    s_waitcnt lgkmcnt(0)
    buffer_load_dword v8, v4, {srd(S_C)}, 0 offen
    """)
    if opt("touch", 11) == 3: touch(A, nonln=True)
    if opt("moddelay", 0): A("v_mov_b32 v8, v8")
    for i in range(8):
        A(f"s_add_u32 m0, s39, {i*1024}")
        if i: A(f"s_add_u32 s38, s38, {16*6144}")
        A(f"buffer_load_dwordx4 v5, {srd(S_WM)}, s38 offen {opt('mpol','nt')} lds", tag="wm")
    common_setup(A)
    A(f"""
    v_bfe_u32 v6, v1, 2, 2
    v_lshl_add_u32 v6, v3, 3, v6
    v_lshlrev_b32 v6, 6, v6
    v_and_b32 v7, 3, v1
    v_lshl_add_u32 v6, v7, 3, v6
    v_add_u32 v6, s39, v6
    v_add_u32 v4, {MSC}, v4
    s_lshl_b32 s40, s3, 8
    s_add_u32 s40, s40, {MSC}
    v_lshl_add_u32 v7, v3, 4, s40
    v_lshlrev_b32 v9, 16, v8
    v_and_b32 v10, 0xffff0000, v8
    v_mul_f32 v11, {LOG2E}, v9
    v_mul_f32 v12, {LOG2E}, v10
    v_exp_f32 v11, v11
    v_exp_f32 v12, v12
    v_add_f32 v11, 1.0, v11
    v_add_f32 v12, 1.0, v12
    v_rcp_f32 v11, v11
    v_rcp_f32 v12, v12
    v_mul_f32 v9, v9, v11
    v_mul_f32 v10, v10, v12
    v_cvt_pk_bf16_f32 v9, v9, v10
    ds_write_b32 v4, v9
    """)
    SF, WF, ACC = 16, 32, 64
    A("s_waitcnt lgkmcnt(0)")
    tsx(A, 60)
    for ks in range(4): A(f"ds_read_b128 {v(SF+4*ks,4)}, v7 offset:{ks*64}")
    A(f"""
    v_and_b32 v10, 31, v1
    s_lshr_b32 s40, s36, 4
    s_and_b32 s41, s36, 15
    s_lshl_b32 s41, s41, 5
    v_add_u32 v10, s41, v10
    v_lshrrev_b32 v15, 8, v10
    v_lshlrev_b32 v15, 8, v15
    v_bfe_u32 v72, v10, 2, 2
    v_lshl_add_u32 v15, v72, 6, v15
    v_bfe_u32 v72, v10, 4, 4
    v_lshl_add_u32 v15, v72, 2, v15
    v_and_b32 v72, 3, v10
    v_add_u32 v15, v15, v72
    v_bfe_u32 v72, v10, 3, 2
    v_lshlrev_b32 v73, 7, v72
    v_bfe_u32 v72, v10, 7, 2
    v_lshl_add_u32 v73, v72, 5, v73
    v_and_b32 v72, 7, v10
    v_lshl_add_u32 v73, v72, 2, v73
    v_bfe_u32 v72, v10, 5, 2
    v_add_u32 v73, v73, v72
    s_cmp_lt_u32 s40, 2
    s_cselect_b64 vcc, -1, 0
    v_cndmask_b32 v15, v15, v73, vcc
    s_cmp_eq_u32 s40, 5
    s_cselect_b64 vcc, -1, 0
    v_cndmask_b32 v10, v15, v10, vcc
    v_lshlrev_b32 v10, 2, v10
    s_lshl_b32 s41, s40, 11
    s_add_u32 s41, s41, {WS_MOD}
    s_cmp_eq_u32 s40, 1
    s_cselect_b32 s42, 1.0, 0
    s_cmp_eq_u32 s40, 4
    s_cselect_b32 s42, 1.0, s42
    s_lshl_b32 s43, s3, 7
    s_add_u32 s43, s43, {MRED}
    v_lshl_add_u32 v9, v2, 2, s43
    s_sub_u32 s44, s40, 3
    s_cmp_lt_u32 s44, 2
    s_cselect_b32 s43, {fbits(math.log2(math.e))}, 1.0
    s_cmp_eq_u32 s40, 5
    s_cselect_b32 s43, {fbits(1/math.log2(math.e)**2)}, s43
    v_and_b32 v74, 31, v1
    v_lshlrev_b32 v74, 2, v74
    v_add_u32 v74, {MRED}, v74
    """)
    A.wait_tag("wm")
    tsx(A, 61)
    if opt("touch", 11) == 2: touch(A)
    if opt("touch", 11) == 4 and not opt("tafter", 0): touch(A, nonln=True)
    if opt("touch", 11) == 9: touch(A, "gu")
    if opt("touch", 11) in (10, 11): touch(A, "gu", nonln=True)
    if opt("pfA", 0) and opt("pfMpos", 0) == 1: wchunks(A, range(opt("pfA", 0)))
    for ks in range(4):
        for nt in range(2):
            b = WF + (ks*2+nt)*4
            off = ks*2048 + nt*32
            A(f"ds_read_b64_tr_b16 {v(b,2)}, v6 offset:{off}\nds_read_b64_tr_b16 {v(b+2,2)}, v6 offset:{off+256}")
    for ks in range(4):
        for nt in range(2):
            A(f"v_mfma_f32_16x16x32_bf16 {v(ACC+4*nt,4)}, {v(SF+4*ks,4)}, {v(WF+(ks*2+nt)*4,4)}, {v(ACC+4*nt,4) if ks else 0}")
    skip = A.label("modskip")
    A(f"""
    s_mov_b64 exec, 0xffff
    ds_write_b32 v9, v{ACC}
    ds_write_b32 v9, v{ACC+4} offset:64
    s_mov_b64 exec, -1
    s_waitcnt lgkmcnt(0)
    s_barrier
    s_cmp_lg_u32 s3, 0
    s_cbranch_scc1 {skip}
    ds_read_b32 v11, v74
    ds_read_b32 v12, v74 offset:128
    ds_read_b32 v13, v74 offset:256
    ds_read_b32 v14, v74 offset:384
    v_add_f32 v11, v11, v12
    v_add_f32 v13, v13, v14
    v_add_f32 v11, v11, v13
    """)
    bf16r(A, "v11", "v11")
    A("v_add_f32 v11, s42, v11")
    bf16r(A, "v11", "v11")
    if opt("fold", 1): A("v_mul_f32 v11, s43, v11")
    A(f"""
    s_mov_b32 exec_hi, 0
    buffer_store_dword v11, v10, {srd(S_WS)}, s41 offen sc1
    s_mov_b64 exec, -1
    {skip}:
    """)

K2 = dict(BS=16, CC=24, CS=26, TW=28, BH=44, U=64, XR=128, CA=136, GA=168, CB=176, SB=184, Z=192, XF=224)
def k2_pre(A, hook=None):
    A.c('==== phase 2 set-up: twiddle / DFT constants (v_cos / v_sin), residual rows, addresses ====')
    r = K2
    if opt("T", 4) == 2: A("s_and_b32 s36, s2, 7\ns_lshl_b32 s36, s36, 2\ns_bfe_u32 s37, s2, 0x20003")
    else: A("s_and_b32 s36, s2, 7\ns_bfe_u32 s37, s2, 0x20003\ns_lshl_b32 s37, s37, 3")
    A("""
    s_add_u32 s36, s36, s37
    s_lshr_b32 s37, s2, 5
    s_sub_u32 s39, 64, s36
    s_cmp_eq_u32 s36, 0
    s_cselect_b32 s39, 32, s39
    s_cselect_b64 s[40:41], -1, 0
    s_lshl_b32 s42, s37, 2
    s_add_u32 s43, s42, s3
    s_lshl_b32 s43, s43, 6
    s_add_u32 s44, s43, s36
    s_add_u32 s45, s43, s39
    s_lshl_b32 s44, s44, 10
    s_lshl_b32 s45, s45, 10
    v_lshlrev_b32 v4, 5, v2
    v_lshl_add_u32 v4, v3, 3, v4
    """)
    for uu in range(2):
        for nt in range(2):
            A(f"buffer_load_dwordx2 {v(r['XR']+(uu*2+nt)*2,2)}, v4, {srd(S_X)}, s{44+uu} offen offset:{nt*512}")
    if hook: hook()
    A("""
    v_lshrrev_b32 v5, 2, v2
    v_add_u32 v5, s42, v5
    v_lshlrev_b32 v5, 6, v5
    v_and_b32 v6, 2, v2
    v_cmp_ne_u32 vcc, 0, v6
    v_mov_b32 v7, s36
    v_mov_b32 v8, s39
    v_cndmask_b32 v7, v7, v8, vcc
    v_add_u32 v5, v5, v7
    v_cvt_f32_u32 v5, v5
    v_mul_f32 v5, 0x3a000000, v5
    v_and_b32 v6, 1, v2
    v_cvt_f32_u32 v6, v6
    v_mul_f32 v6, 0x3e800000, v6
    v_mov_b32 v7, 0xbe800000
    v_mov_b32 v8, 0x3e800000
    v_cndmask_b32 v7, v7, v8, vcc
    v_cndmask_b32 v7, v7, 0, s[40:41]
    v_add_f32 v7, v7, v6
    v_cndmask_b32 v8, 1.0, 0, vcc
    v_cndmask_b32 v9, 0, 1.0, vcc
    v_cndmask_b32 v8, 1.0, v8, s[40:41]
    v_cndmask_b32 v9, 1.0, v9, s[40:41]
    v_lshlrev_b32 v10, 2, v3
    v_cvt_f32_u32 v10, v10
    """)
    T = 64
    NQ = 72
    for ks in range(2):
        for i in range(4): A(f"v_add_f32 v{NQ+ks*4+i}, {fbits(16*ks+i)}, v10")
    for ks in range(2):
        for i in range(4):
            A(f"v_fma_f32 v{T+2*i}, v{NQ+ks*4+i}, v5, v6\nv_fma_f32 v{T+2*i+1}, v{NQ+ks*4+i}, v5, v7")
        for i in range(8): A(f"v_cos_f32 v{T+i}, v{T+i}")
        for i in range(4):
            A(f"v_pk_mul_f32 {v(T+2*i,2)}, {v(T+2*i,2)}, v[8:9]")
            A(f"v_cvt_pk_bf16_f32 v{r['BS']+ks*4+i}, v{T+2*i}, v{T+2*i+1}")
    A("v_cvt_f32_u32 v12, v2\nv_mul_f32 v13, 0x3d800000, v12")
    for j in range(4): A(f"v_mul_f32 v{T+j}, v{NQ+j}, v13")
    for j in range(4): A(f"v_sin_f32 v{T+4+j}, v{T+j}")
    for j in range(4): A(f"v_cos_f32 v{T+j}, v{T+j}")
    for jj in range(2):
        A(f"v_cvt_pk_bf16_f32 v{r['CC']+jj}, v{T+2*jj}, v{T+2*jj+1}\nv_cvt_pk_bf16_f32 v{r['CS']+jj}, v{T+4+2*jj}, v{T+5+2*jj}")
    A("v_mul_f32 v13, 0x3b000000, v12\ns_lshl_b32 s46, s3, 3\nv_cvt_f32_u32 v14, s46")
    for t in range(8):
        A(f"v_add_f32 v11, {fbits(t)}, v14\nv_mul_f32 v{T+t}, v11, v13")
    for t in range(8):
        A(f"v_cos_f32 v{r['TW']+2*t}, v{T+t}\nv_sin_f32 v{r['TW']+2*t+1}, v{T+t}")
    for nt in range(2):
        A(f"v_add_f32 v13, {fbits(16*nt)}, v12\nv_mul_f32 v13, 0x3d000000, v13")
        for ks in range(2):
            for i in range(4): A(f"v_mul_f32 v{T+i}, v{NQ+ks*4+i}, v13")
            for i in range(4): A(f"v_sin_f32 v{T+4+i}, v{T+i}")
            for i in range(4): A(f"v_cos_f32 v{T+i}, v{T+i}")
            for i in range(4): A(f"v_cvt_pk_bf16_f32 v{r['BH']+(nt*2+ks)*4+i}, v{T+i}, v{T+4+i}")
    A(f"""
    v_mul_u32_u24 v5, {4*UN2()}, v3
    v_lshl_add_u32 v5, v2, 4, v5
    s_mul_i32 s46, s36, {USLOT()}
    s_mul_i32 s47, s3, {UOCT()}
    s_add_u32 s46, s46, s47
    s_add_u32 s46, s46, {WS_U}
    s_add_u32 s47, s46, {2*UN2()}
    s_add_u32 s48, s46, {16*UN2()}
    s_add_u32 s49, s46, {18*UN2()}
    s_add_u32 s76, s46, {UN2()}
    s_add_u32 s77, s47, {UN2()}
    s_add_u32 s78, s48, {UN2()}
    s_add_u32 s79, s49, {UN2()}
    v_lshlrev_b32 v6, 7, v3
    s_lshl_b32 s50, s3, 9
    s_add_u32 s50, s50, {WS_MOD}
    s_cmp_eq_u32 s2, 0
    s_cselect_b32 s59, s50, {WS_SIZE}
    v_lshlrev_b32 v7, 4, v1
    v_lshl_add_u32 v8, v3, 5, v2
    v_mul_u32_u24 v8, 144, v8
    s_lshl_b32 s51, s3, 5
    s_add_u32 s51, s51, {K2EX}
    v_add_u32 v8, s51, v8
    v_mul_u32_u24 v9, 144, v2
    v_lshl_add_u32 v9, v3, 4, v9
    s_mul_i32 s51, s3, {32*144}
    s_add_u32 s51, s51, {K2EX}
    v_add_u32 v9, s51, v9
    s_mul_i32 s51, s3, 2080
    s_add_u32 s51, s51, {K2HB}
    v_add_u32 v10, s51, v4
    v_and_b32 v11, 7, v0
    v_lshrrev_b32 v12, 3, v0
    v_mul_u32_u24 v13, 1040, v11
    v_lshl_add_u32 v13, v12, 4, v13
    v_add_u32 v13, {K2HB}, v13
    v_lshlrev_b32 v11, 4, v11
    v_lshl_add_u32 v11, v12, 9, v11
    s_lshl_b32 s51, s36, 3
    s_add_u32 s51, s51, s37
    s_lshl_b32 s52, s51, 13
    s_lshl_b32 s53, s3, 11
    s_add_u32 s52, s52, s53
    s_add_u32 s52, s52, {WS_X1}
    s_add_u32 s53, s52, 1024
    s_lshr_b32 s54, s51, 2
    s_lshl_b32 s54, s54, 15
    s_and_b32 s55, s51, 3
    s_lshl_b32 s55, s55, 7
    s_add_u32 s54, s54, s55
    s_add_u32 s54, s54, {WS_H2}
    s_add_u32 s55, s54, 16384
    s_mov_b32 s56, {WS_MOD+2*2048}
    s_mov_b32 s57, {WS_MOD+3*2048}
    s_mov_b32 s58, {WS_MOD+4*2048}
    s_lshl_b32 s62, s51, 7
    s_add_u32 s62, s62, {WS_F2}
    v_lshlrev_b32 v250, 6, v1
    """)

def k2_main(A):
    A.c('==== phase 2: 8 output rows per workgroup ====\n32-point DFT over n2 (with twiddles), * (1 + scale) (+ 2048 * shift for row 0), 512-point hidden DFT as 16 x 32,\nx1 = x + gate * y, LayerNorm-2, modulation -> h2')
    r = K2
    U, Z = r['U'], r['Z']
    sk0 = A.label("k2sl")
    A(f"s_cmp_lg_u32 s2, 0\ns_cbranch_scc1 {sk0}")
    for t in range(0 if opt("sepmod", 1) else 8):
        A(f"buffer_load_dwordx4 {a(4*t,4)}, v6, {srd(S_WS)}, s50 offen offset:{t*16} sc1")
    A(f"{sk0}:")
    sep = opt("sepmod", 1)
    if sep:
        m0 = A.label("k2m0")
        A(f"s_cmp_lg_u32 s3, 0\ns_cbranch_scc1 {m0}")
        A(f"buffer_load_dword v254, v250, {srd(S_WS)}, s73 offen sc1\nbuffer_load_dword v255, v250, {srd(S_WS)}, s74 offen sc1\n{m0}:", tag="spin")
    for hh in range(2):
        for ks in range(2):
            for i in range(4):
                A(f"buffer_load_dwordx4 {v(U+((ks*2+hh)*4+i)*4,4)}, v5, {srd(S_WS)}, s{(46, 76)[i&1]+ks*2+(i>>1)} offen offset:{hh*256} sc1")
    if sep:
        m1, lp1 = A.label("k2m1"), A.label("k2ml")
        A(f"""
        s_cmp_lg_u32 s3, 0
        s_cbranch_scc1 {m1}
        s_mov_b32 s{S_CNT}, 0
        s_waitcnt vmcnt(16)
        {lp1}:
        v_xor_b32 v254, s{S_TOK}, v254
        v_xor_b32 v255, s{S_TOK}, v255
        v_or_b32 v254, v254, v255
        v_cmp_ne_u32 vcc, 0, v254
        s_add_u32 s{S_CNT}, s{S_CNT}, 1
        s_cmp_ge_u32 s{S_CNT}, {MAXPOLL}
        s_cbranch_scc1 {m1}
        s_cbranch_vccz {m1}
        buffer_load_dword v254, v250, {srd(S_WS)}, s73 offen sc1
        buffer_load_dword v255, v250, {srd(S_WS)}, s74 offen sc1
        s_waitcnt vmcnt(0)
        s_branch {lp1}
        {m1}:
        s_barrier
        """, tag="spin")
        sk1 = A.label("k2s1")
        A(f"s_cmp_lg_u32 s2, 0\ns_cbranch_scc1 {sk1}")
        for t in range(8):
            A(f"buffer_load_dwordx4 {a(4*t,4)}, v6, {srd(S_WS)}, s50 offen offset:{t*16} sc1", tag="spin")
        A(f"{sk1}:", tag="spin")
    for t in range(8):
        A(f"buffer_load_dwordx4 {v(r['CA']+4*t,4)}, v6, {srd(S_WS)}, s50 offen offset:{2048+t*16} sc1")
    for nm, sr in (("GA", 56), ("CB", 58), ("SB", 57)):
        for nt in range(2):
            A(f"buffer_load_dwordx4 {v(r[nm]+nt*4,4)}, v7, {srd(S_WS)}, s{sr} offen offset:{nt*1024} sc1")
    A.touch_regs([("v", U)])
    for uu in range(2):
        for nt in range(2):
            xr = r['XR'] + (uu*2+nt)*2; xf = r['XF'] + (uu*2+nt)*4
            A(f"v_lshlrev_b32 v{xf}, 16, v{xr}\nv_and_b32 v{xf+1}, 0xffff0000, v{xr}\nv_lshlrev_b32 v{xf+2}, 16, v{xr+1}\nv_and_b32 v{xf+3}, 0xffff0000, v{xr+1}")
    pfl = [op for ch in range(opt("pfA", 0) + opt("pf1", 3), opt("pfB", 4)) for op in wchunk_ops(ch, ch, f"w{ch}")]
    if opt("pfBpos", 2) == 0:
        for op in pfl: A(*op)
    if opt("pfBpos", 2) in (0, 3): pfl = []
    if opt("touch", 11) == 7 and opt("tlate", 0) == 1: touch_late(A)
    if opt("touch", 11) == 8: touch(A)
    if opt("touch", 11) == 9: touch(A, "d")
    if TS and opt("tsu", 1): A(f"v_mov_b32 v{U+60}, v{U+60}"); ts(A, "uarr")
    for hh in range(2):
        for ks in range(2):
            b = U + (ks*2+hh)*16
            for i in range(4):
                for t in range(i+1, 4): A(f"v_swap_b32 v{b+4*i+t}, v{b+4*t+i}")
        for t in range(4):
            for ks in range(2):
                z = Z + (hh*4+t)*4
                A(f"v_mfma_f32_16x16x32_bf16 {v(z,4)}, {v(U+(ks*2+hh)*16+4*t,4)}, {v(r['BS']+ks*4,4)}, {v(z,4) if ks else 0}")
                if pfl and opt("pfBpos", 2) != 4 and (hh == 1 or opt("pfBpos", 2) == 2): A(*pfl.pop(0))
    if opt("pfBpos", 2) != 4:
        for op in pfl: A(*op)
        pfl = []
    ZP, P, Q = 64, 80, 112
    ts(A, "s2")
    for t in range(8):
        for h in range(2): A(f"v_pk_mul_f32 {v(Z+4*t+2*h,2)}, {v(Z+4*t+2*h,2)}, {v(r['CA']+4*t+2*h,2)}")
    sk = A.label("k2sa")
    A(f"s_cmp_lg_u32 s2, 0\ns_cbranch_scc1 {sk}")
    A("s_mov_b32 s59, 0x45000000\ns_mov_b32 exec_lo, 0x00010001\ns_mov_b32 exec_hi, 0x00010001")
    for i in range(32):
        A(f"v_accvgpr_read_b32 v{P}, a{i}\nv_fma_f32 v{Z+i}, v{P}, s59, v{Z+i}")
    A(f"s_mov_b64 exec, -1\n{sk}:")
    for t in range(8):
        A(f"v_cvt_pk_bf16_f32 v{ZP+2*t}, v{Z+4*t}, v{Z+4*t+1}\nv_cvt_pk_bf16_f32 v{ZP+2*t+1}, v{Z+4*t+2}, v{Z+4*t+3}")
        if t >= 1:
            A(f"v_mfma_f32_16x16x16_bf16 {v(P+4*(t-1),4)}, {v(ZP+2*(t-1),2)}, {v(r['CC'],2)}, 0")
            A(f"v_mfma_f32_16x16x16_bf16 {v(Z+4*(t-1),4)}, {v(ZP+2*(t-1),2)}, {v(r['CS'],2)}, 0")
    A(f"v_mfma_f32_16x16x16_bf16 {v(P+28,4)}, {v(ZP+14,2)}, {v(r['CC'],2)}, 0")
    A(f"v_mfma_f32_16x16x16_bf16 {v(Z+28,4)}, {v(ZP+14,2)}, {v(r['CS'],2)}, 0")
    Q = Z; W = 112
    ts(A, "h1m")
    for hh in range(2):
        for uu in range(2):
            idx = [(P+4*(hh*4+t4)+2*uu, Q+4*(hh*4+t4)+2*uu, r['TW']+2*(hh*4+t4), W+uu*8+hh*4+t4) for t4 in range(4)]
            for p, q, tw, w in idx: A(f"v_pk_add_f32 {v(p,2)}, {v(p,2)}, {v(q,2)} op_sel:[0,1] op_sel_hi:[1,0] neg_hi:[0,1]")
            for p, q, tw, w in idx: A(f"v_pk_mul_f32 {v(q,2)}, {v(p,2)}, {v(tw,2)} op_sel:[0,0] op_sel_hi:[1,0]")
            for p, q, tw, w in idx: A(f"v_pk_fma_f32 {v(q,2)}, {v(p,2)}, {v(tw,2)}, {v(q,2)} op_sel:[1,1,0] op_sel_hi:[0,1,1] neg_hi:[1,0,0]")
            for p, q, tw, w in idx: A(f"v_cvt_pk_bf16_f32 v{w}, v{q}, v{q+1}")
            A(f"ds_write_b128 v8, {v(W+uu*8+hh*4,4)} offset:{uu*16*144+hh*16}")
    A("s_waitcnt lgkmcnt(0)\ns_barrier")
    ts(A, "h1")
    AF, Y = 80, 96
    for uu in range(2):
        for ks in range(2):
            A(f"ds_read_b128 {v(AF+(uu*2+ks)*4,4)}, v9 offset:{uu*16*144+ks*64}")
    for op in pfl[:4]: A(*op)
    pfl = pfl[4:]
    for uu in range(2):
        for ks in range(2):
            for nt in range(2):
                y = Y + (uu*2+nt)*4
                A(f"v_mfma_f32_16x16x32_bf16 {v(y,4)}, {v(AF+(uu*2+ks)*4,4)}, {v(r['BH']+(nt*2+ks)*4,4)}, {v(y,4) if ks else 0}")
                if pfl: A(*pfl.pop(0))
    for op in pfl: A(*op)
    XP = 168 if opt("latex1", 2) == 2 else 112
    ts(A, "h2m")
    for uu in range(2):
        for nt in range(2):
            y = Y + (uu*2+nt)*4; xf = r['XF'] + (uu*2+nt)*4; g = r['GA'] + nt*4
            for h in range(2):
                A(f"v_pk_fma_f32 {v(y+2*h,2)}, {v(y+2*h,2)}, {v(g+2*h,2)}, {v(xf+2*h,2)}")
        y = Y + uu*8; t = 64 + 4*uu
        A(f"v_pk_add_f32 {v(t,2)}, {v(y,2)}, {v(y+2,2)}\nv_pk_mul_f32 {v(t+2,2)}, {v(y,2)}, {v(y,2)}")
        A(f"v_pk_add_f32 {v(t,2)}, {v(t,2)}, {v(y+4,2)}\nv_pk_fma_f32 {v(t+2,2)}, {v(y+2,2)}, {v(y+2,2)}, {v(t+2,2)}")
        A(f"v_pk_add_f32 {v(t,2)}, {v(t,2)}, {v(y+6,2)}\nv_pk_fma_f32 {v(t+2,2)}, {v(y+4,2)}, {v(y+4,2)}, {v(t+2,2)}")
        A(f"v_add_f32 v{72+2*uu}, v{t}, v{t+1}\nv_pk_fma_f32 {v(t+2,2)}, {v(y+6,2)}, {v(y+6,2)}, {v(t+2,2)}")
        A(f"v_add_f32 v{73+2*uu}, v{t+2}, v{t+3}")
    def x1_store(uu, nt):
        y = Y + (uu*2+nt)*4; xp = XP + (uu*2+nt)*2
        A(f"v_cvt_pk_bf16_f32 v{xp}, v{y}, v{y+1}\nv_cvt_pk_bf16_f32 v{xp+1}, v{y+2}, v{y+3}")
        A(f"buffer_store_dwordx2 {v(xp,2)}, v4, {srd(S_WS)}, s{52+uu} offen offset:{nt*512} sc1", tag="st")
    late_x1 = opt("latex1", 2)
    def x1_cvt(uu, nt):
        y = Y + (uu*2+nt)*4; xp = XP + (uu*2+nt)*2
        A(f"v_cvt_pk_bf16_f32 v{xp}, v{y}, v{y+1}\nv_cvt_pk_bf16_f32 v{xp+1}, v{y+2}, v{y+3}")
    def x1_st(uu, nt):
        A(f"buffer_store_dwordx2 {v(XP+(uu*2+nt)*2,2)}, v4, {srd(S_WS)}, s{52+uu} offen offset:{nt*512} sc1", tag="x1")
    if late_x1: x1_store = x1_cvt
    A("v_permlane16_swap_b32 v72, v73\nv_permlane16_swap_b32 v74, v75\nv_add_f32 v72, v72, v73\nv_add_f32 v74, v74, v75")
    x1_store(0, 0)
    A("v_permlane32_swap_b32 v72, v74\nv_add_f32 v72, v72, v74")
    x1_store(0, 1)
    A("v_add_f32 v72, v72, v72 row_ror:8")
    A(f"v_mov_b32 v76, 0x3b000000\nv_mov_b32 v77, {fbits(1e-5)}")
    A("v_add_f32 v72, v72, v72 row_ror:4")
    x1_store(1, 0)
    A("v_add_f32 v72, v72, v72 row_ror:2")
    x1_store(1, 1)
    A("""
    v_add_f32 v72, v72, v72 row_ror:1
    v_mul_f32 v72, v72, v76
    v_readlane_b32 s40, v72, 0
    v_readlane_b32 s41, v72, 16
    v_readlane_b32 s42, v72, 32
    v_readlane_b32 s43, v72, 48
    v_mov_b32 v64, s40
    v_mov_b32 v66, s42
    v_fma_f32 v65, -v64, v64, s41
    v_fma_f32 v67, -v66, v66, s43
    v_max_f32 v65, 0, v65
    v_max_f32 v67, 0, v67
    v_add_f32 v65, v65, v77
    v_add_f32 v67, v67, v77
    v_rsq_f32 v65, v65
    v_rsq_f32 v67, v67
    v_mul_f32 v64, -v64, v65
    v_mul_f32 v66, -v66, v67
    """)
    HP = 120
    ts(A, "ln2")
    for uu in range(2):
        for nt in range(2):
            y = Y + (uu*2+nt)*4
            for h in range(2):
                A(f"v_pk_fma_f32 {v(y+2*h,2)}, {v(y+2*h,2)}, {v(64+2*uu,2)}, {v(64+2*uu,2)} op_sel:[0,1,0] op_sel_hi:[1,1,0]")
            for h in range(2):
                A(f"v_pk_fma_f32 {v(y+2*h,2)}, {v(y+2*h,2)}, {v(r['CB']+nt*4+2*h,2)}, {v(r['SB']+nt*4+2*h,2)}")
            hp = HP + (uu*2+nt)*2
            A(f"v_cvt_pk_bf16_f32 v{hp}, v{y}, v{y+1}\nv_cvt_pk_bf16_f32 v{hp+1}, v{y+2}, v{y+3}")
            A(f"ds_write_b64 v10, {v(hp,2)} offset:{uu*1040+nt*512}")
    A("s_waitcnt lgkmcnt(0)\ns_barrier")
    ts(A, "hb")
    A("ds_read_b128 v[64:67], v13\nds_read_b128 v[68:71], v13 offset:512")
    A(f"buffer_store_dwordx4 v[64:67], v11, {srd(S_WS)}, s54 offen {LOC('h')}", tag="st")
    A(f"buffer_store_dwordx4 v[68:71], v11, {srd(S_WS)}, s55 offen {LOC('h')}", tag="st")
    if late_x1 == 1:
        for uu in range(2):
            for nt in range(2): x1_st(uu, nt)
    if late_x1 == 2:
        A("v_mov_b32 v176, v4\ns_mov_b32 s80, s52\ns_mov_b32 s81, s53")

WD_ORDER = [37, 38, 39] + list(range(13, 37)) + list(range(0, 13)) + [37, 38, 39]
def k4_ids(A):
    if opt("R", 4) == 4:
        A("s_and_b32 s36, s2, 7\ns_lshl_b32 s36, s36, 2\ns_bfe_u32 s38, s2, 0x20003\ns_add_u32 s36, s36, s38\ns_lshr_b32 s37, s2, 5")
    else:
        A("s_bfe_u32 s36, s2, 0x20001\ns_lshl_b32 s36, s36, 3\ns_bfe_u32 s38, s2, 0x30003\ns_add_u32 s36, s36, s38\ns_and_b32 s37, s2, 1\ns_lshl_b32 s37, s37, 2\ns_lshr_b32 s38, s2, 6\ns_add_u32 s37, s37, s38")
    A("s_lshr_b32 s38, s3, 1\ns_and_b32 s39, s3, 1")
def wd_setup(A):
    k4_ids(A)
    A(f"""
    v_lshrrev_b32 v244, 3, v1
    v_lshlrev_b32 v{V_D}, 10, v244
    v_and_b32 v245, 7, v1
    v_lshlrev_b32 v244, 1, v244
    v_and_b32 v244, 4, v244
    v_xor_b32 v245, v245, v244
    v_lshl_add_u32 v{V_D}, v245, 4, v{V_D}
    s_mul_i32 s{S_DG}, s38, {688*1024}
    s_lshl_b32 s41, s37, 7
    s_add_u32 s{S_DG}, s{S_DG}, s41
    s_lshl_b32 s41, s39, 13
    s_add_u32 s{S_DG}, s{S_DG}, s41
    s_lshl_b32 s{S_DL}, s3, 10
    """)
    if opt("two", 0):
        A(f"""
        s_lshl_b32 s41, s37, 7
        s_lshl_b32 s42, s39, 13
        s_add_u32 s41, s41, s42
        s_mul_i32 s{S_DG}, s38, {6*16384}
        s_add_u32 s{S_DG}, s{S_DG}, s41
        s_add_u32 s42, s38, 84
        s_lshl_b32 s42, s42, 14
        s_add_u32 s{S_DG2}, s42, s41
        """)
        return
    A(f"""
    s_mul_i32 s41, s37, 10
    s_lshr_b32 s41, s41, 3
    s_lshl_b32 s41, s41, 16
    s_add_u32 s{S_DR}, s{S_DG}, s41
    s_add_u32 s{S_DE}, s{S_DG}, {40*16384}
    """)
S_DR, S_DE, S_AB, S_AE = 82, 83, 97, 100
S_DG2, S_ACT, S_ACT2, S_AT = 82, 83, 97, 100
WS_F3B = WS_FLG + 0x30000
NA = 3
def steps4():
    return [None] + [(i, j) for i in range(7) for j in range(NA)] + [(i, j) for i in range(7) for j in range(NA, 6)]
NSA = 1 + 7*NA
def wd_op(step, tag):
    if opt("two", 0):
        st = steps4()[step]
        t = f"s_add_u32 m0, s{S_DL}, {WD_ORDER[step]*4096}\n"
        if st is None: so = S_DG2; t += "s_nop 0\n"
        else: so = S_T; t += f"s_add_u32 s{S_T}, s{S_DG}, {(12*st[0]+st[1])*16384}\n"
        return (t + f"buffer_load_dwordx4 v{V_D}, {srd(S_WD)}, s{so} offen lds", tag)
    return wd_op1(step, tag)
def wd_op1(step, tag):
    t = f"s_add_u32 m0, s{S_DL}, {WD_ORDER[step]*4096}\n"
    if not opt("rot", 0) or step >= 40:
        t += f"s_add_u32 s{S_T}, s{S_DG}, {step*16384}\n"
    else:
        if step and step % 4 == 0:
            t += f"s_add_u32 s{S_DR}, s{S_DR}, 65536\ns_cmp_eq_u32 s{S_DR}, s{S_DE}\ns_cselect_b32 s{S_DR}, s{S_DG}, s{S_DR}\n"
        t += f"s_add_u32 s{S_T}, s{S_DR}, {(step % 4)*16384}\n"
    t += f"buffer_load_dwordx4 v{V_D}, {srd(S_WD)}, s{S_T} offen {opt('dpol','')} lds"
    return (t, tag)

def k3_ids(A):
    A(sl_expr() + "\ns_mov_b32 s37, s38\n" + rb_expr())
def k3_pre(A):
    A.c('==== phase 3 / 4 set-up ====')
    wd_setup(A)
    k3_ids(A)
    A(f"""
    s_lshl_b32 s45, s36, 2
    s_add_u32 s45, s45, s3
    s_lshl_b32 s46, s45, 15
    s_add_u32 s46, s46, {WS_H2}
    v_lshlrev_b32 v4, 4, v1
    v_bfe_u32 v5, v1, 1, 1
    v_mul_u32_u24 v5, {UOFF}, v5
    v_bfe_u32 v6, v1, 2, 2
    v_bfe_u32 v7, v1, 5, 1
    v_lshl_add_u32 v6, v7, 3, v6
    v_mul_u32_u24 v6, 192, v6
    v_add_u32 v5, v5, v6
    v_bfe_u32 v6, v1, 4, 1
    v_lshl_add_u32 v5, v6, 4, v5
    v_and_b32 v6, 1, v1
    v_lshl_add_u32 v5, v6, 3, v5
    v_add_u32 v6, {2*SLOT}, v5
    v_add_u32 v7, {4*SLOT}, v5
    s_mul_i32 s47, s45, {86*1024}
    s_mul_i32 s48, s37, {6*1024}
    s_add_u32 s47, s47, s48
    s_add_u32 s47, s47, {WS_ACT}
    s_add_u32 s48, s47, 2048
    s_add_u32 s51, s47, 4096
    s_cmp_eq_u32 s37, 14
    s_cselect_b32 s48, {WS_SIZE}, s48
    s_cselect_b32 s51, {WS_SIZE}, s51
    s_lshl_b32 s49, s2, 2
    s_add_u32 s49, s49, s3
    s_mul_i32 s49, s49, 11
    v_min_u32 v246, 10, v1
    v_add_u32 v246, s49, v246
    v_lshlrev_b32 v246, 7, v246
    v_mov_b32 v14, {LOG2E}
    v_mov_b32 v15, {LOG2E}
    s_lshl_b32 s61, s36, 4
    s_add_u32 s61, s61, s37
    s_lshl_b32 s61, s61, 7
    s_add_u32 s61, s61, {WS_F3}
    s_lshl_b32 s62, s36, 11
    s_add_u32 s62, s62, {WS_F2}
    """)

def x1_ops():
    return [(f"buffer_store_dwordx2 {v(168+(uu*2+nt)*2,2)}, v176, {srd(S_WS)}, s{80+uu} offen offset:{nt*512} {LOC('x')}", "x1") for uu in range(2) for nt in range(2)]
def k3_main(A, idle):
    done = A.label("k3done")
    if opt("short14", 1):
        short = A.label("k3short")
        A(f"s_cmp_eq_u32 s37, 14\ns_cbranch_scc1 {short}")
        k3_body(A, 6)
        A(f"s_branch {done}\n{short}:")
        A.reset()
        k3_body(A, 2)
    else:
        k3_body(A, 6)
    k3_tail(A, idle, done)

def k3_body(A, NT):
    A.c('==== phase 3: h2[128 rows] @ (w_gate | w_up)[96 columns each], act = silu(g) * u ; w_down streams into the freed LDS ====')
    ACC, AF, NAF = 16, 112, 8
    T, PK = 144, 160
    full = NT == 6
    def h2_op(k):
        t = "s_add_u32 s46, s46, 4096\n" if (k and k % 4 == 0) else ""
        return (t + f"buffer_load_dwordx4 {a(4*k,4)}, v4, {srd(S_WS)}, s46 offen offset:{(k%4)*1024} {LDP('h')}", None)
    H0 = opt("h0", 9)
    for k in range(H0): A(h2_op(k)[0])
    order = [(k, j) for k in range(32) for j in range(NT)]
    N = len(order)
    def slot_of(k):
        ch = k // 4
        return ch if ch < 6 else ch - 6
    def frag_read(n):
        k, j = order[n]
        sl = slot_of(k)
        base = ("v5", "v6", "v7")[sl // 2]
        off = (sl % 2)*SLOT + (k % 4)*16*192 + j*32
        b = AF + (n % NAF)*4
        return f"ds_read_b64_tr_b16 {v(b,2)}, {base} offset:{off}\nds_read_b64_tr_b16 {v(b+2,2)}, {base} offset:{off+4*192}"
    PF = NAF - 2
    CH = 4*NT
    b01, b23, b6, b7 = 2*CH - 1, 4*CH - 1, 6*CH - PF - 1, 7*CH - PF - 1
    assert b6 >= 5*CH - 1 and b7 >= 6*CH - 1
    bars = {b01: [], b23: [], b6: ["w6"], b7: ["w7"]}
    pfB = opt("pfB", 4) + opt("pf3", 2)
    for ch in range(pfB, 6):
        nb = ch*CH - PF - 1
        if ch == 5 and b23 <= nb: bars[b23].append("w5")
        else: bars.setdefault(nb, []).append(f"w{ch}")
    sc = lambda x: x*NT // 6
    side = []
    n0 = 0
    def add(op, step):
        nonlocal n0
        side.append((sc(n0), *op)); n0 += step
    for k in range(H0, 32): add(h2_op(k), 2)
    for ch in range(pfB, 6):
        for op in wchunk_ops(ch, ch, f"w{ch}"): add(op, 2)
    if opt("x1pos", 1) == 0:
        for op in x1_ops(): add(op, 2)
    def at_least(n):
        nonlocal n0
        while sc(n0) <= n: n0 += 1
    if opt("tact", 0) == 1 and full:
        side.append((sc(n0), f"v_lshlrev_b32 v13, 7, v1\nv_min_u32 v13, {47*128}, v13\nbuffer_load_dword v12, v13, {srd(S_WS)}, s47 offen", None)); n0 += 2
    at_least(b01)
    for ch in (6, 7):
        for op in wchunk_ops(ch, ch-6, f"w{ch}"): add(op, 2)
    if opt("x1pos", 1) == 1:
        for op in x1_ops(): add(op, 2)
    for st_ in range(0, 3): add(wd_op(st_, "wd"), 3)
    if opt("cpf", 0) & 4 and full: side.append((max(n0, opt("cpn", 90)), code_pf_text(".Lk3epi", 249, 60), None))
    at_least(b23)
    for st_ in range(3, 14): add(wd_op(st_, "wd"), opt("wdsp", 3))
    at_least(b6)
    for st_ in range(14, 20): add(wd_op(st_, "wd"), 3)
    at_least(b7)
    for st_ in range(20, 27): add(wd_op(st_, "wd"), 3)
    if opt("tact", 0) == 2 and full:
        side.insert([i for i, x in enumerate(side) if x[0] > opt("tactn", 100)][0], (opt("tactn", 100), f"v_lshlrev_b32 v13, 7, v1\nv_min_u32 v13, {47*128}, v13\nbuffer_load_dword v12, v13, {srd(S_WS)}, s47 offen", None))
    assert opt("pfB", 4) >= 2
    if not opt("nostartbar", 1): A("v_accvgpr_read_b32 v13, a0\ns_barrier")
    if full: ts(A, "issued")
    for n in range(PF): A(frag_read(n))
    if full: tc(A, "first")
    for n, (k, j) in enumerate(order):
        acc = ACC + 16*j
        if n % 2 == 0: A.touch_regs([("v", AF+((n+1)%NAF)*4+3)])
        A(f"v_mfma_f32_32x32x16_bf16 {v(acc,16)}, {v(AF+(n%NAF)*4,4)}, {a(4*k,4)}, {v(acc,16) if k else 0}")
        if n == 0 and full: ts(A, "first")
        while side and side[0][0] <= n:
            _, t, tag = side.pop(0); A(t, tag=tag)
            if full: break
        if n in bars:
            for tg in bars[n]: A.wait_tag(tg)
            A("s_barrier")
            if full: ts(A, f"n{n}")
        if n + PF < N: A(frag_read(n+PF))
    for _, t, tag in side: A(t, tag=tag)
    if full:
        A(".Lk3epi:")
        ts(A, "mfma")
        tc(A, "mfma")
    def epi(j):
        acc = ACC + 16*j; pk = PK + 4*(j & 1); t0 = T + 8*(j & 1)
        if opt("fold", 1):
            for i in range(8): A(f"v_exp_f32 v{t0+i}, -v{acc + 8*(i//4) + i%4}")
        else:
            for hf in range(2):
                g = acc + 8*hf; t = t0 + 4*hf
                for h in range(2): A(f"v_pk_mul_f32 {v(t+2*h,2)}, {v(g+2*h,2)}, v[14:15]")
            for i in range(8): A(f"v_exp_f32 v{t0+i}, v{t0+i}")
        for hf in range(2):
            g, u = acc + 8*hf, acc + 8*hf + 4
            for h in range(2): A(f"v_pk_mul_f32 {v(g+2*h,2)}, {v(g+2*h,2)}, {v(u+2*h,2)}")
        for h in range(4): A(f"v_pk_add_f32 {v(t0+2*h,2)}, {v(t0+2*h,2)}, 1.0 op_sel_hi:[1,0]")
        for i in range(8): A(f"v_rcp_f32 v{t0+i}, v{t0+i}")
        for hf in range(2):
            g = acc + 8*hf; t = t0 + 4*hf
            for h in range(2): A(f"v_pk_mul_f32 {v(g+2*h,2)}, {v(g+2*h,2)}, {v(t+2*h,2)}")
        for hf in range(2):
            g = acc + 8*hf
            A(f"v_cvt_pk_bf16_f32 v{pk+2*hf}, v{g}, v{g+1}\nv_cvt_pk_bf16_f32 v{pk+2*hf+1}, v{g+2}, v{g+3}")
        A(f"buffer_store_dwordx4 {v(pk,4)}, v4, {srd(S_WS)}, s{(47,48,51)[j//2]} offen offset:{(j%2)*1024} {LOC('a')}", tag=("sA" if j < NA else "sB"))
    for j in range(NT): epi(j)
    if opt("two", 0):
        A.wait_tag("sA")
        skA = A.label("fa")
        A(f"""
        s_barrier
        s_cmp_lg_u32 s3, 0
        s_cbranch_scc1 {skA}
        v_mov_b32 v250, 0
        v_mov_b32 v251, s{S_TOK}
        s_mov_b64 exec, 1
        buffer_store_dword v251, v250, {srd(S_WS)}, s61 offen sc1
        s_mov_b64 exec, -1
        {skA}:
        """, tag="spin")
    if full: ts(A, "stiss3")

def k3_tail(A, idle, done):
    A.c('---- phase 3, workgroups without columns: warm w_down, fetch their own w_down image ----')
    A(f"s_branch {done}\n{idle}:")
    A.reset()
    A("s_waitcnt vmcnt(0)\ns_barrier")
    if opt("touch", 11) == 11:
        A(f"""
        s_lshl_b32 s49, s36, 2
        s_add_u32 s49, s49, s3
        s_mul_i32 s49, s49, {172*128}
        v_lshlrev_b32 v246, 7, v1
        buffer_load_dword v236, v246, {srd(S_WD)}, s49 offen
        s_add_u32 s50, s49, 8192
        buffer_load_dword v237, v246, {srd(S_WD)}, s50 offen
        s_add_u32 s50, s49, {108*128}
        buffer_load_dword v238, v246, {srd(S_WD)}, s50 offen
        """)
    if opt("latex1", 2) == 2:
        for op in x1_ops(): A(*op)
    for st_ in range(27): A(*wd_op(st_, "wd"))
    A(f"s_waitcnt vmcnt(0)\n{done}:")
    A.reset()

def k4_list(A):
    k4_ids(A)
    A(f"""
    s_mov_b32 s62, {WS_F3}
    s_lshr_b32 s51, s36, 1
    s_lshl_b32 s51, s51, 4
    v_cmp_eq_u32 vcc, 15, v2
    v_cndmask_b32 v250, v2, 0, vcc
    v_add_u32 v250, s51, v250
    """)
    if opt("latex1", 2):
        A(f"""
        v_and_b32 v251, 7, v1
        v_lshlrev_b32 v251, 5, v251
        """)
        if opt("T", 4) == 2: A("s_lshr_b32 s51, s36, 2\ns_and_b32 s52, s36, 3")
        else: A("s_and_b32 s51, s36, 7\ns_lshr_b32 s52, s36, 3")
        A("s_lshl_b32 s52, s52, 3\ns_add_u32 s51, s51, s52\nv_add_u32 v251, s51, v251")
        if opt("T", 4) == 2:
            A("v_and_b32 v252, 7, v251\nv_lshlrev_b32 v252, 1, v252\nv_bfe_u32 v253, v251, 3, 1\nv_add_u32 v252, v252, v253\nv_mov_b32 v253, 0\nv_lshrrev_b32 v251, 4, v251")
        elif opt("T", 4) == 4 and opt("bal", 0):
            A("v_bfe_u32 v252, v251, 1, 2\nv_lshlrev_b32 v252, 2, v252\nv_bfe_u32 v253, v251, 3, 2\nv_add_u32 v252, v252, v253\nv_and_b32 v253, 1, v251\nv_lshrrev_b32 v251, 5, v251\nv_cmp_eq_u32 vcc, 7, v251\nv_add_u32 v254, 7, v253\nv_mul_u32_u24 v253, 7, v253\nv_cndmask_b32 v253, v253, v254, vcc")
        elif opt("T", 4) == 4:
            A("v_bfe_u32 v252, v251, 1, 2\nv_lshlrev_b32 v252, 2, v252\nv_bfe_u32 v253, v251, 3, 2\nv_add_u32 v252, v252, v253\nv_and_b32 v253, 1, v251\nv_lshlrev_b32 v253, 3, v253\nv_lshrrev_b32 v251, 5, v251")
        else:
            A("v_bfe_u32 v252, v251, 2, 1\nv_lshlrev_b32 v252, 3, v252\nv_bfe_u32 v253, v251, 3, 3\nv_add_u32 v252, v252, v253\nv_and_b32 v253, 3, v251\nv_lshlrev_b32 v253, 2, v253\nv_lshrrev_b32 v251, 6, v251")
        A("v_add_u32 v251, v251, v253\nv_lshl_add_u32 v251, v252, 4, v251\nv_cmp_gt_u32 vcc, 16, v1\nv_cndmask_b32 v250, v251, v250, vcc")
    A("v_lshlrev_b32 v250, 7, v250")
def k4_pre(A):
    k4_list(A)
    if opt("stag", 0) & 2: poll_head(A, 62, 250)
    A(f"""
    s_lshl_b32 s44, s36, 1
    s_add_u32 s44, s44, s39
    s_mul_i32 s44, s44, {86*1024}
    s_mul_i32 s45, s38, {43*1024}
    s_add_u32 s44, s44, s45
    s_add_u32 s44, s44, {WS_ACT}
    """)
    if opt("two", 0):
        A(f"""
        s_mul_i32 s45, s38, {37*1024}
        s_sub_u32 s44, s44, s45
        s_add_u32 s45, s38, 84
        s_mul_i32 s51, s38, {6*1024}
        s_sub_u32 s{S_ACT2}, s44, s51
        s_lshl_b32 s45, s45, 10
        s_add_u32 s{S_ACT2}, s{S_ACT2}, s45
        s_mov_b32 s{S_ACT}, s44
        """)
    A(f"""
    v_lshlrev_b32 v4, 4, v1
    v_lshrrev_b32 v8, 3, v0
    v_and_b32 v9, 7, v0
    s_lshl_b32 s46, s36, 16
    s_lshl_b32 s47, s37, 7
    s_add_u32 s46, s46, s47
    s_add_u32 s46, s46, {WS_X1}
    s_add_u32 s48, s46, 32768
    v_lshlrev_b32 v10, 10, v8
    v_lshl_add_u32 v10, v9, 4, v10
    v_lshlrev_b32 v11, 5, v9
    s_lshl_b32 s47, s37, 8
    s_add_u32 s47, s47, {WS_MOD+5*2048}
    s_sub_u32 s49, 64, s36
    s_cmp_eq_u32 s36, 0
    s_cselect_b32 s49, 32, s49
    v_and_b32 v12, 1, v8
    v_cmp_ne_u32 vcc, 0, v12
    v_mov_b32 v12, s36
    v_mov_b32 v13, s49
    v_cndmask_b32 v12, v12, v13, vcc
    v_lshrrev_b32 v13, 1, v8
    v_lshl_add_u32 v12, v13, 6, v12
    v_lshlrev_b32 v12, 10, v12
    v_lshl_add_u32 v12, v9, 4, v12
    s_lshl_b32 s49, s37, 7
    s_add_u32 s50, s49, 0x100000
    v_bfe_u32 v6, v1, 2, 2
    v_bfe_u32 v7, v1, 5, 1
    v_lshl_add_u32 v7, v7, 2, v6
    v_lshlrev_b32 v7, 7, v7
    v_bfe_u32 v13, v1, 4, 1
    v_lshl_add_u32 v7, v13, 5, v7
    v_and_b32 v13, 3, v1
    v_lshl_add_u32 v7, v13, 3, v7
    s_lshl_b32 s41, s38, 11
    v_add_u32 v7, s41, v7
    v_bfe_u32 v13, v1, 3, 1
    v_lshlrev_b32 v13, 6, v13
    v_xor_b32 v6, v7, v13
    v_xor_b32 v7, 64, v6
    v_add_u32 v14, 0x10000, v6
    v_add_u32 v15, 0x10000, v7
    v_add_u32 v16, 0x20000, v6
    v_add_u32 v17, 0x20000, v7
    """)
    if opt("two", 0):
        A(f"v_mov_b32 v249, v250\nv_cmp_eq_u32 vcc, 15, v2\nv_cndmask_b32 v250, v2, 0, vcc\ns_lshr_b32 s51, s36, 1\ns_lshl_b32 s51, s51, 4\nv_add_u32 v250, s51, v250\nv_lshlrev_b32 v250, 7, v250\ns_mov_b32 s63, {WS_F3B}")

def wd_rest(A):
    for st_ in range(27, 40): A(*wd_op(st_, "dr"))
def wd_rest3(A):
    wd_rest(A)
    assert WD_ORDER[27:40] == list(range(13))
    A(f"s_lshl_b32 s74, s37, 7")
    for w in range(1, 4):
        sk = A.label("wr")
        A(f"s_cmp_lg_u32 s3, {w}\ns_cbranch_scc1 {sk}")
        for st_ in range(27 + w - 1, 40, 3):
            st = steps4()[st_] if opt("two", 0) else None
            row = (12*st[0] + st[1]) if st else st_
            A(f"s_mov_b32 m0, {WD_ORDER[st_]*4096}\ns_add_u32 s{S_T}, s74, {row*16384}\nbuffer_load_dwordx4 v{V_D}, {srd(S_WD)}, s{S_T} offen lds")
        A(f"{sk}:")

def k4_main(A):
    A.c('==== phase 4: out[64 x 64] = x1 + gate * (act @ w_down), K split over wave pairs, reduced through LDS ====')
    ACC, AF, NAF = 32, 64, 8
    XG = 96
    def act_op(k):
        if opt("two", 0):
            st = steps4()[k]
            if st is None: return (f"buffer_load_dwordx4 {a(4*k,4)}, v4, {srd(S_WS)}, s{S_ACT2} offen sc1", None)
            off = (12*st[0] + st[1])*1024
            prev = steps4()[k-1]
            t = ""
            if prev is None or ((12*prev[0] + prev[1])*1024) >> 12 != off >> 12:
                t = f"s_add_u32 s{S_AT}, s{S_ACT}, {off & ~0xfff}\n"
            return (t + f"buffer_load_dwordx4 {a(4*k,4)}, v4, {srd(S_WS)}, s{S_AT} offen offset:{off & 0xfff} sc1", None)
        t = "s_add_u32 s44, s44, 4096\n" if (k and k % 4 == 0) else ""
        if opt("rot", 0) and k and k % 4 == 0:
            t = f"s_mov_b32 s44, s{S_AE}\n" if k == 40 else t + f"s_cmp_eq_u32 s44, s{S_AE}\ns_cselect_b32 s44, s{S_AB}, s44\n"
        return (t + f"buffer_load_dwordx4 {a(4*k,4)}, v4, {srd(S_WS)}, s44 offen offset:{(k%4)*1024} {LDP('a')}", None)
    H0 = opt("a0", 12)
    for k in range(H0): A(act_op(k)[0])
    TL = opt("k4tail", 4)
    order4 = [(k, t) for k in range(43 - TL) for t in range(2)] + [(k, t) for t in range(2) for k in range(43 - TL, 43)]
    def frag_read(n):
        k, t = order4[n]
        ad = WD_ORDER[k]*4096
        base = (("v6", "v7"), ("v14", "v15"), ("v16", "v17"))[ad >> 16][t]
        off = ad & 0xffff
        b = AF + (n % NAF)*4
        return f"ds_read_b64_tr_b16 {v(b,2)}, {base} offset:{off}\nds_read_b64_tr_b16 {v(b+2,2)}, {base} offset:{off+1024}"
    two = opt("two", 0)
    nchk = opt("nchk", 12)
    if two:
        pb = A.label("pb")
        A(f"s_cmp_lg_u32 s3, 0\ns_cbranch_scc1 {pb}\nbuffer_load_dword v252, v249, {srd(S_WS)}, s63 offen sc1\n{pb}:", tag="spin")
    side = []
    n0 = 0
    for k in range(H0, 43):
        if two and k == NSA: n0 = max(n0, nchk + 1)
        side.append((n0, *act_op(k))); n0 += opt("astep", 1)
    PF = NAF - 2
    N = 86
    ts(A, "issued4")
    for n in range(PF): A(frag_read(n))
    RS = 272
    early = []
    for n in range(N):
        k, t = order4[n]
        if n % 2 == 0: A.touch_regs([("v", AF+((n+1)%NAF)*4+3)])
        A(f"v_mfma_f32_32x32x16_bf16 {v(ACC+16*t,16)}, {v(AF+(n%NAF)*4,4)}, {a(4*k,4)}, {v(ACC+16*t,16) if k else 0}")
        if n == 0: ts(A, "first4"); tc(A, "first4")
        if side and side[0][0] <= n:
            _, tx, tag = side.pop(0); A(tx, tag=tag)
        if two and n == nchk:
            assert side[0][0] > nchk
            pc, lp = A.label("pc"), A.label("pcl")
            A(f"""
            s_cmp_lg_u32 s3, 0
            s_cbranch_scc1 {pc}
            s_mov_b32 s{S_CNT}, 0
            s_waitcnt vmcnt({NSA - H0})
            {lp}:
            v_cmp_ne_u32 vcc, s{S_TOK}, v252
            s_add_u32 s{S_CNT}, s{S_CNT}, 1
            s_cmp_ge_u32 s{S_CNT}, {MAXPOLL}
            s_cbranch_scc1 {pc}
            s_cbranch_vccz {pc}
            buffer_load_dword v252, v249, {srd(S_WS)}, s63 offen sc1
            s_waitcnt vmcnt(0)
            s_branch {lp}
            {pc}:
            s_barrier
            """, tag="spin")
            ts(A, "sync3b")
        if n == 47:
            A.wait_tag("dr"); A("s_barrier")
            for st_ in range(40, 43): A(*wd_op(st_, "do"))
            A(f"buffer_load_dwordx4 {v(XG,4)}, v10, {srd(S_WS)}, s46 offen {LDP('x')}")
            A(f"buffer_load_dwordx4 {v(XG+4,4)}, v10, {srd(S_WS)}, s48 offen {LDP('x')}")
            A(f"buffer_load_dwordx4 {v(XG+8,4)}, v11, {srd(S_WS)}, s47 offen sc1")
            A(f"buffer_load_dwordx4 {v(XG+12,4)}, v11, {srd(S_WS)}, s47 offen offset:16 sc1")
        if n == 73:
            A.wait_tag("do"); A("s_barrier")
            A(f"""
            s_mul_i32 s51, s3, {32*RS}
            v_and_b32 v18, 31, v1
            v_mul_u32_u24 v18, {RS}, v18
            v_bfe_u32 v19, v1, 5, 1
            v_lshl_add_u32 v18, v19, 4, v18
            v_add_u32 v18, s51, v18
            v_mul_u32_u24 v19, {RS}, v8
            v_lshl_add_u32 v19, v9, 5, v19
            """)
        if n + PF < N: A(frag_read(n+PF))
        if TL >= 3 and n == N - TL + 1: early = list(range(4))
        if early and n >= N - TL + 1:
            for _ in range(-(-len(early) // (N - n))):
                j = early.pop(0); A(f"ds_write_b128 v18, {v(ACC+4*j,4)} offset:{j*32}")
    assert not side
    ts(A, "mfma4"); tc(A, "mfma4")
    XF = 112
    for it in range(2):
        for h in range(4): A(f"v_lshlrev_b32 v{XF+it*8+2*h}, 16, v{XG+it*4+h}\nv_and_b32 v{XF+it*8+2*h+1}, 0xffff0000, v{XG+it*4+h}")
    for t in range(1 if TL >= 3 else 0, 2):
        for j in range(4):
            A(f"ds_write_b128 v18, {v(ACC+16*t+4*j,4)} offset:{t*128+j*32}")
    A("s_waitcnt lgkmcnt(0)\ns_barrier")
    RD = 128
    for it in range(2):
        for kh in range(2):
            for hf in range(2):
                A(f"ds_read_b128 {v(RD+it*16+kh*8+hf*4,4)}, v19 offset:{(kh*64+it*32)*RS+hf*16}")
    for it in range(2):
        z = RD + it*16
        for h in range(4): A(f"v_pk_add_f32 {v(z+2*h,2)}, {v(z+2*h,2)}, {v(z+8+2*h,2)}")
        for h in range(4): A(f"v_pk_fma_f32 {v(z+2*h,2)}, {v(z+2*h,2)}, {v(XG+8+2*h,2)}, {v(XF+it*8+2*h,2)}")
        if opt("scale", 0):
            for h in range(8): A(f"v_mul_f32 v{z+h}, {fbits(1 + opt('scale', 0)/1000)}, v{z+h}")
        for h in range(4): A(f"v_cvt_pk_bf16_f32 v{z+8+h}, v{z+2*h}, v{z+2*h+1}")
        A(f"buffer_store_dwordx4 {v(z+8,4)}, v12, {srd(S_OUT)}, s{49+it} offen {opt('outsc', 'sc1')}")

def LOC(c): return "" if c in opt("loc", "") else "sc1"
def LDP(c): return opt("ldp", "nt") if c in opt("loc", "") else "sc1"
def PLP(c): return opt("plp", "nt") if c in opt("loc", "") else opt("pp", "sc1").replace("+", " ")
def flag_set(A, soff, keep=0, reset=True, c="-", w0extra=False):
    sk = A.label("fs")
    A.c("hand-off: all stores of the workgroup are complete -> wave 0 publishes this launch's token")
    if w0extra:
        l0, l1 = A.label("fw"), A.label("fx")
        A(f"s_cmp_eq_u32 s3, 0\ns_cbranch_scc1 {l0}\ns_waitcnt vmcnt(0)\ns_branch {l1}\n{l0}:\ns_waitcnt vmcnt(1)\n{l1}:")
        keep = 1
    A(f"""
    s_waitcnt vmcnt({keep}) lgkmcnt(0)
    s_barrier
    s_cmp_lg_u32 s3, 0
    s_cbranch_scc1 {sk}
    v_mov_b32 v250, 0
    v_mov_b32 v251, s{S_TOK}
    s_mov_b64 exec, 1
    buffer_store_dword v251, v250, {srd(S_WS)}, s{soff} offen {opt("fp", "sc1").replace("+", " ") if LOC(c) else ""}
    s_mov_b64 exec, -1
    {sk}:
    """)
    A.reset()

def late_prefetch(A, chunks, do_touch, nonln):
    n = 0
    if do_touch: touch(A, nonln=nonln); n += 3
    wchunks(A, chunks); n += 6*len(list(chunks))
    return n

def poll(A, kind, soff, others=None, after0=None):
    sk, lp, w0, jn = A.label("pk"), A.label("pl"), A.label("p0"), A.label("pj")
    A.c("hand-off: wave 0 waits (bounded) for the producers' tokens, the other waves prefetch weights")
    A(f"s_cmp_eq_u32 s3, 0\ns_cbranch_scc1 {w0}")
    if others: others(A)
    A(f"s_branch {jn}\n{w0}:\ns_mov_b32 s{S_CNT}, 0")
    shrink = opt("shrink", 1)
    slp = f"s_sleep {opt('slp', 0)}\n" if opt("slp", 0) else ""
    if kind == "l16": A("v_lshlrev_b32 v250, 7, v2")
    elif kind.startswith("s64"): A("v_lshlrev_b32 v250, 6, v1")
    NG = int(kind[-1]) if kind.startswith("s64") else 0
    if not NG:
        if shrink: A(f"s_mov_b64 exec, {'0xffffff' if kind == 'lst' else '0xffff'}")
        A(f"""
        {lp}:
        buffer_load_dword v252, v250, {srd(S_WS)}, s{soff} offen {PLP('h' if kind == 'l16' else 'a')}
        s_add_u32 s{S_CNT}, s{S_CNT}, 1
        s_waitcnt vmcnt(0)
        v_cmp_ne_u32 vcc, s{S_TOK}, v252
        s_cmp_ge_u32 s{S_CNT}, {MAXPOLL}
        s_cbranch_scc1 {sk}
        """)
        if shrink: A(f"s_and_b64 exec, exec, vcc\ns_cbranch_execz {sk}\n{slp}s_branch {lp}")
        else: A(f"{slp}s_cbranch_vccnz {lp}")
        A(f"{sk}:\ns_mov_b64 exec, -1")
    else:
        for j in range(1, 4): A(f"s_add_u32 s{71+j}, s{soff}, {j*4096}")
        if opt("pre1", 0):
            l1, d1 = A.label("p1"), A.label("p2")
            if opt("pre1", 0) == 2: A(f"s_cmp_lt_u32 s2, 128\ns_cbranch_scc1 {d1}")
            A(f"""
            s_and_b32 s92, s2, 127
            s_lshl_b32 s92, s92, 6
            s_add_u32 s92, s92, s{soff}
            v_mov_b32 v251, 0
            s_mov_b64 exec, 1
            {l1}:
            buffer_load_dword v252, v251, {srd(S_WS)}, s92 offen sc1
            s_add_u32 s{S_CNT}, s{S_CNT}, 1
            s_waitcnt vmcnt(0)
            v_cmp_ne_u32 vcc, s{S_TOK}, v252
            s_cmp_ge_u32 s{S_CNT}, {MAXPOLL}
            s_cbranch_scc1 {d1}
            s_cbranch_vccnz {l1}
            {d1}:
            s_mov_b64 exec, -1
            """)
        M = [84, 86, 88, 90]
        for j in range(4): A(f"s_mov_b64 s[{M[j]}:{M[j]+1}], {-1 if j < NG else 0}")
        A(f"{lp}:")
        for j in range(NG):
            sj = A.label("ps")
            A(f"s_mov_b64 exec, s[{M[j]}:{M[j]+1}]\ns_cbranch_execz {sj}")
            A(f"buffer_load_dword v{252+j}, v250, {srd(S_WS)}, s{soff if j == 0 else 71+j} offen {PLP('-')}\n{sj}:")
        A(f"s_add_u32 s{S_CNT}, s{S_CNT}, 1\ns_waitcnt vmcnt(0)")
        for j in range(NG):
            A(f"s_mov_b64 exec, s[{M[j]}:{M[j]+1}]\nv_cmp_ne_u32 s[{M[j]}:{M[j]+1}], s{S_TOK}, v{252+j}" if shrink else f"s_mov_b64 exec, -1\nv_cmp_ne_u32 s[92:93], s{S_TOK}, v{252+j}\ns_cmp_lg_u64 s[92:93], 0\ns_cselect_b64 s[{M[j]}:{M[j]+1}], -1, 0")
        A(f"""
        s_or_b64 s[92:93], s[84:85], s[86:87]
        s_or_b64 s[94:95], s[88:89], s[90:91]
        s_cmp_ge_u32 s{S_CNT}, {MAXPOLL}
        s_cbranch_scc1 {sk}
        s_or_b64 s[92:93], s[92:93], s[94:95]
        s_cbranch_scc0 {sk}
        {slp}s_branch {lp}
        {sk}:
        s_mov_b64 exec, -1
        """)
    A.reset()
    if after0: after0(A)
    A(f"{jn}:\ns_barrier")

def poll_head(A, soff, vaddr):
    sk = A.label("ph")
    A(f"s_cmp_lg_u32 s3, 0\ns_cbranch_scc1 {sk}\nbuffer_load_dword v253, v{vaddr}, {srd(S_WS)}, s{soff} offen sc1\n{sk}:", tag="spin")
def poll_stag(A, soff, vaddr, others=None):
    sk, lp, w0, jn = A.label("pk"), A.label("pl"), A.label("p0"), A.label("pj")
    A.c("hand-off: wave 0 waits (bounded) for the producers' tokens with two staggered reads in flight")
    A(f"s_cmp_eq_u32 s3, 0\ns_cbranch_scc1 {w0}")
    if others: others(A)
    A(f"""
    s_branch {jn}
    {w0}:
    s_mov_b32 s{S_CNT}, 0
    {lp}:
    buffer_load_dword v252, v{vaddr}, {srd(S_WS)}, s{soff} offen sc1
    s_waitcnt vmcnt(1)
    v_cmp_ne_u32 vcc, s{S_TOK}, v253
    s_add_u32 s{S_CNT}, s{S_CNT}, 1
    s_cbranch_vccz {sk}
    buffer_load_dword v253, v{vaddr}, {srd(S_WS)}, s{soff} offen sc1
    s_waitcnt vmcnt(1)
    v_cmp_ne_u32 vcc, s{S_TOK}, v252
    s_cmp_ge_u32 s{S_CNT}, {MAXPOLL}
    s_cbranch_scc1 {sk}
    s_cbranch_vccnz {lp}
    {sk}:
    """, tag="spin")
    A.reset()
    A(f"{jn}:\ns_barrier")

def build():
    A = Asm()
    name = NAME + "_kernel"
    kernel_begin(A, name)
    done = A.label("done")
    if TS: A("s_memrealtime s[62:63]\ns_waitcnt lgkmcnt(0)")
    entry(A, done)
    if TS:
        A("v_mov_b32 v248, 0\nv_writelane_b32 v248, s62, 0"); _ts["n"] = 1; _ts["names"] = ["entry"]
    m, i_, e = A.label("k1mod"), A.label("k1idle"), A.label("k1end")
    tok = f"s_waitcnt lgkmcnt(0)\ns_mul_i32 s{S_TOK}, s{S_TOK}, 0x9e3779b1\ns_add_u32 s{S_TOK}, s{S_TOK}, 0x7f4a7c15\ns_lshl_b32 s62, s2, 6\ns_add_u32 s62, s62, {WS_F1}"
    pfA = range(opt("pfA", 0)); tm = opt("touch", 11)
    A(f"s_cmp_ge_u32 s2, 128\ns_cbranch_scc1 {m}")
    k1_ln(A)
    ts(A, "stiss")
    if opt("lateset", 0): common_setup(A, 2, True)
    if tm == 9: touch(A, "gu")
    keep = (2 if tm == 9 else 0) + late_prefetch(A, pfA if opt("pfApos", 0) == 3 else [], tm == 5, False)
    A(tok); flag_set(A, 62, keep)
    A(f"s_branch {e}\n{m}:\ns_cmp_ge_u32 s2, 224\ns_cbranch_scc1 {i_}")
    A.reset()
    k1_mod(A)
    tsx(A, 62)
    A.reset()
    keep = late_prefetch(A, pfA if opt("pfMpos", 0) == 3 else [], tm in (5, 6), tm == 6)
    A(tok); flag_set(A, 62, keep)
    if tm == 4 and opt("tafter", 0): touch(A, nonln=True)
    A(f"s_branch {e}\n{i_}:")
    A.reset()
    if opt("karg", 0): A(KREST)
    A(small_srd(S_X, 2097152) + "\n" + small_srd(S_C, 1024) + "\ns_waitcnt lgkmcnt(0)")
    common_setup(A)
    A(tok); flag_set(A, 62, 63)
    if opt("idledelay", 0):
        A(f"v_lshlrev_b32 v4, 2, v0\nbuffer_load_dword v8, v4, {srd(S_C)}, 0 offen\ns_waitcnt vmcnt(0)")
    if tm == 7: touch_early(A)
    def pre_own(base, dst):
        A(f"""
        s_sub_u32 s38, s2, 224
        s_lshl_b32 s38, s38, 2
        s_add_u32 s38, s38, s3
        s_lshl_b32 s38, s38, 14
        s_add_u32 s38, s38, {base}
        s_add_u32 s39, s38, 8192
        v_lshlrev_b32 v235, 7, v1
        buffer_load_dword v{dst}, v235, {srd(S_WS)}, s38 offen
        buffer_load_dword v{dst+1}, v235, {srd(S_WS)}, s39 offen
        """)
    if opt("tu", 0): pre_own(WS_U, 230)
    if tm == 9: touch(A, "gu")
    if tm in (10, 11): touch(A, "gu", nonln=True)
    if opt("th2", 0): pre_own(WS_H2, 232)
    if tm in (2, 5): touch(A)
    if tm in (3, 4, 6): touch(A, nonln=True)
    wchunks(A, pfA)
    A(f"{e}:")
    A.reset()
    ts(A, "f1set")
    if opt("cpf", 0) & 1: A(code_pf_text(".Lk2code", 249, 48))
    k2_pre(A, (lambda: wchunks(A, range(opt("pfA", 0), opt("pfA", 0) + opt("pf1", 3)))) if not opt("prefirst", 1) and not opt("w3", 1) else None)
    if opt("touch", 11) == 7: touch_late_setup(A)
    if opt("touch", 11) == 7 and opt("tlate", 0) == 0: touch_late(A)
    ts(A, "pre")
    w3 = opt("w3", 1)
    if opt("prefirst", 1) and not w3: wchunks(A, range(opt("pfA", 0), opt("pfA", 0) + opt("pf1", 3)))
    A(f"s_mov_b32 s63, {WS_F1}")
    poll(A, "s64x2" if opt("sepmod", 1) else "s64x4", 63, others=(lambda A_: w3_chunks(A_, range(opt("pf1", 3)))) if w3 else None)
    A.reset()
    ts(A, "sync1")
    A(".Lk2code:")
    k2_main(A)
    ts(A, "stiss2")
    keep = late_prefetch(A, range(opt("pfA", 0) + opt("pf1", 3), opt("pfB", 4)) if opt("pfBpos", 2) == 3 else [], False, False)
    flag_set(A, 62, keep + (4 if opt("latex1", 2) == 1 else 0), c="h")
    ts(A, "f2set")
    if not opt("w3b", 0): wchunks(A, range(opt("pfB", 4), opt("pfB", 4) + opt("pf3", 2)))
    stag = opt("stag", 0)
    if stag & 1:
        A(rb_expr() + f"\ns_lshl_b32 s63, s36, 11\ns_add_u32 s63, s63, {WS_F2}\nv_lshlrev_b32 v247, 7, v2")
        poll_head(A, 63, 247)
    k3_pre(A)
    idle3 = A.label("k3idle")
    A(f"s_cmp_eq_u32 s37, 15\ns_cbranch_scc1 {idle3}")
    if stag & 1: poll_stag(A, 63, 247)
    else: poll(A, "l16", 62, others=(lambda A_: w3_chunks(A_, range(opt("pfB", 4), opt("pfB", 4) + opt("pf3", 2)))) if opt("w3b", 0) else None)
    A.reset()
    ts(A, "sync2")
    A(".Lk3code:")
    k3_main(A, idle3)
    if opt("two", 0): A(f"s_add_u32 s61, s61, {WS_F3B - WS_F3}")
    flag_set(A, 61, c="a", w0extra=bool(opt("two", 0)))
    ts(A, "f3set")
    k4_pre(A)
    if stag & 2: poll_stag(A, 62, 250, others=wd_rest3)
    else: poll(A, "lst", 62, others=wd_rest3 if opt("wr3", 1) else wd_rest, after0=None if opt("wr3", 1) else wd_rest)
    ts(A, "sync3")
    k4_main(A)
    sk = A.label("ep")
    A(f"""
    s_or_b32 s63, s2, s3
    s_cmp_lg_u32 s63, 0
    s_cbranch_scc1 {sk}
    v_mov_b32 v250, 0
    v_mov_b32 v251, s{S_TOK}
    s_mov_b32 s63, {WS_EP}
    s_mov_b64 exec, 1
    buffer_store_dword v251, v250, {srd(S_WS)}, s63 offen sc1
    s_mov_b64 exec, -1
    {sk}:
    """)
    ts(A, "end")
    probe_end(A)
    ts_flush(A)
    A(f"{done}:\n.Lend:\ns_endpgm")
    if opt("jit", 0):
        import random
        rnd = random.Random(opt("jit", 0)); out = []
        def delay():
            lb = A.label("jit")
            c = f"s_cmp_eq_u32 s3, {rnd.randrange(4)}\ns_cbranch_scc0 {lb}" if rnd.random() < 0.6 else f"s_bitcmp1_b32 s2, {rnd.randrange(8)}\ns_cbranch_scc0 {lb}"
            return [Ins(x) for x in (c + f"\ns_sleep {rnd.randrange(2, 40)}\n{lb}:").split("\n")]
        for I in A.ins:
            if I.op == "s_barrier":
                if rnd.random() < 0.7: out += delay()
                out.append(I)
                if rnd.random() < 0.7: out += delay()
            else: out.append(I)
        A.ins = out
    code = A.finalize()
    return [(None, (256,1,1), (256,1,1), LDS_TOTAL)], code, [kernel_desc(name, 256, 172)]

if __name__ == "__main__":
    hdr = [l.rstrip("\n") for l in open("cdna_kernels/%s.s.ref" % NAME) if l.startswith(";") and "@launch" not in l][:15]
    hdr += ["; " + l for l in """
One persistent launch, 256 workgroups (one per CU) of 4 waves, four phases separated by flag hand-offs in d_ws.
The two DFTs (constant cos / sin matrices) are evaluated as Cooley-Tukey factorisations on the matrix cores:
  rows 2048 = 64 x 32 (phase 1 / phase 2), columns 512 = 16 x 32 (phase 2); the row DFT is applied before the
  column modulation, which commutes with it (the shift only reaches output row 0).
Hand-offs: write-through (sc1) stores, drain, barrier, token store; consumers poll with sc1 loads.  The token is
derived from an epoch word in d_ws that workgroup 0 advances at the end, so stale flags of earlier launches never match.
Workgroup -> role maps assume id % 8 = die for L2 locality only; any placement is correct.
""".strip().split("\n")]
    out = sys.argv[1]
    for kv in sys.argv[2:]:
        k_, v_ = kv.split("=")
        OPT[k_] = int(v_) if v_.lstrip("-").isdigit() else v_
    TS = bool(opt("ts", 0)); PROBE = opt("probe", None)
    launches, code, descs = build()
    open(out, "w").write(file_text(hdr, launches, code, descs))
    if TS: json.dump([_ts["names"]], open(out[:-2] + ".json", "w"))
```

```python
import sys, struct, math, json
from asmlib import *

NAME = "adaLN_cond__spectral_fnet__swiglu_ffn__prompt"
def fbits(x): return "0x%08x" % struct.unpack("<I", struct.pack("<f", x))[0]
OPT = {}
def opt(k, d): return OPT.get(k, d)

WS_U   = 0
WS_MOD = 0x240000
WS_H2  = 0x300000
WS_X1  = 0x500000
WS_ACT = 0x800000
WS_FLG = 0xE00000
WS_TS  = 0xF00000
WS_SIZE = 0x1000000
WS_EP  = WS_FLG
WS_F1  = WS_FLG + 0x1000
WS_F2  = WS_FLG + 0x10000
WS_F3  = WS_FLG + 0x20000
def SLOTSTR(): return 65536 + opt("upad", 0)
def USLOT(): return 512 if opt("upm", 0) else SLOTSTR()
def UOCT(): return 16384 if opt("upm", 0) else 512
def UN2(): return 65536 + opt("upad", 0) if opt("upm", 0) else 2048
MAXPOLL = int(__import__('os').environ.get('MAXPOLL', '60000'))
LDS_TOTAL = 163840
SLOT = 24640; UOFF = 12320
XCS = 1040
XWS = 16 * XCS
XIMG = LDS_TOTAL - 4 * XWS
XTAB = XIMG - 384
MW = XIMG
MSC = MW + 32768
MRED = MSC + 1024
K2EX = 123200
K2HB = K2EX + 18432
S_X, S_WG, S_WU, S_WD, S_C, S_WM, S_OUT, S_WS = 4, 8, 12, 16, 20, 24, 28, 32
S_TOK, S_CNT, S_SL, S_WL, S_DG, S_DL, S_T, S_T2 = 64, 65, 66, 67, 68, 69, 70, 75
V_W = 240
V_D = 243
def srd(b): return s(b, 4)
LOG2E = fbits(-math.log2(math.e))

TS = False
PROBE = None
_ts = {"n": 0, "names": []}
def ts(A, name=None, cyc=False):
    if not TS: return
    if opt("tsonly", None) and name not in opt("tsonly", "").split("+") and name not in ("f1set", "end"): return
    n = _ts["n"]; _ts["n"] += 1
    _ts["names"].append(("c:" if cyc else "") + name)
    A(f"{'s_memtime' if cyc else 's_memrealtime'} s[98:99]\ns_waitcnt lgkmcnt(0)\nv_writelane_b32 v248, s98, {n}")
def tsx(A, lane):
    if TS: A(f"s_memrealtime s[98:99]\ns_waitcnt lgkmcnt(0)\nv_writelane_b32 v248, s98, {lane}")
def tc(A, name=None): ts(A, name, True)
def probe_end(A):
    if PROBE is None: return
    lp = A.label("pr")
    idx = _ts["names"].index(PROBE)
    A(f"""
    s_waitcnt vmcnt(0) lgkmcnt(0)
    v_readlane_b32 s90, v248, 0
    v_readlane_b32 s91, v248, {idx}
    s_nop 4
    s_sub_u32 s91, s91, s90
    s_cmp_gt_u32 s91, 20000
    s_cselect_b32 s91, 0, s91
    s_add_u32 s91, s91, 6000
    {lp}:
    s_memrealtime s[92:93]
    s_waitcnt lgkmcnt(0)
    s_sub_u32 s92, s92, s90
    s_cmp_lt_u32 s92, s91
    s_cbranch_scc1 {lp}
    """)
def ts_flush(A):
    if not TS: return
    sk = A.label("tsk")
    A(f"s_waitcnt vmcnt(0) lgkmcnt(0)\ns_cmp_lg_u32 s3, 0\ns_cbranch_scc1 {sk}")
    A(f"s_lshl_b32 s64, s2, 8\ns_add_u32 s64, s64, {WS_TS}\nv_lshlrev_b32 v1, 2, v1")
    A(f"buffer_store_dword v248, v1, {srd(S_WS)}, s64 offen")
    A(f"s_waitcnt vmcnt(0)\n{sk}:")

def bf16r(A, dst, src):
    A(f"v_cvt_pk_bf16_f32 {dst}, {src}, {src}\nv_lshlrev_b32 {dst}, 16, {dst}")

_lbl = [None, 0]
def SLBL():
    _lbl[1] += 1; _lbl[0] = f".sl_{_lbl[1]}"; return _lbl[0]
def sl_expr(d=38, t=39):
    if opt("T", 4) == 2:
        return f"s_lshr_b32 s{d}, s2, 4"
    if opt("T", 4) == 4 and opt("bal", 0):
        return f"s_and_b32 s{d}, s2, 1\ns_mul_i32 s{d}, s{d}, 7\ns_lshr_b32 s{t}, s2, 5\ns_add_u32 s{d}, s{d}, s{t}\ns_cmp_eq_u32 s{t}, 7\ns_cbranch_scc0 {SLBL()}\ns_and_b32 s{d}, s2, 1\ns_add_u32 s{d}, s{d}, 14\n{_lbl[0]}:"
    if opt("T", 4) == 4:
        return f"s_and_b32 s{d}, s2, 1\ns_lshl_b32 s{d}, s{d}, 3\ns_lshr_b32 s{t}, s2, 5\ns_add_u32 s{d}, s{d}, s{t}"
    return f"s_and_b32 s{d}, s2, 3\ns_lshl_b32 s{d}, s{d}, 2\ns_lshr_b32 s{t}, s2, 6\ns_add_u32 s{d}, s{d}, s{t}"
def rb_expr():
    if opt("T", 4) == 2:
        return "s_and_b32 s36, s2, 7\ns_lshl_b32 s36, s36, 1\ns_bfe_u32 s39, s2, 0x10003\ns_add_u32 s36, s36, s39"
    if opt("T", 4) == 4:
        return "s_bfe_u32 s36, s2, 0x20001\ns_lshl_b32 s36, s36, 2\ns_bfe_u32 s39, s2, 0x20003\ns_add_u32 s36, s36, s39"
    return "s_bfe_u32 s36, s2, 0x10002\ns_lshl_b32 s36, s36, 3\ns_bfe_u32 s39, s2, 0x30003\ns_add_u32 s36, s36, s39"
KREST = """s_load_dwordx2 s[24:25], s[0:1], 80
    s_load_dwordx2 s[20:21], s[0:1], 72
    s_load_dwordx2 s[32:33], s[0:1], 104
    s_load_dwordx2 s[8:9], s[0:1], 48
    s_load_dwordx2 s[12:13], s[0:1], 56
    s_load_dwordx2 s[16:17], s[0:1], 64
    s_load_dwordx2 s[28:29], s[0:1], 88"""
def entry(A, done):
    A.c('---- entry: over-launched workgroups leave; kernel-argument loads; code prefetch into L2 ----')
    CP = opt("codepf", 1)
    A(f"""
    s_cmp_ge_u32 s2, 256
    s_cbranch_scc1 {done}
    s_load_dwordx2 s[4:5], s[0:1], 0
    {"" if opt("karg", 0) else KREST}
    v_lshrrev_b32 v2, 6, v0
    v_and_b32 v1, 63, v0
    v_readfirstlane_b32 s3, v2
    """)
    if CP and not opt("cppos", 0): code_prefetch(A)
    A("v_and_b32 v2, 15, v0\nv_bfe_u32 v3, v0, 4, 2")

def code_prefetch(A):
    if True:
        A(f"""
        s_getpc_b64 s[40:41]
        s_and_b32 s40, s40, 0xffffff00
        s_lshr_b32 s42, s2, 3
        s_lshl_b32 s42, s42, 2
        s_add_u32 s42, s42, s3
        s_and_b32 s42, s42, {opt("cpmask", 15)}
        s_lshl_b32 s42, s42, 11
        v_and_b32 v250, 15, v0
        v_lshlrev_b32 v250, 7, v250
        v_add_u32 v250, s42, v250
        v_min_u32 v250, .Lend-{NAME}_kernel, v250
        global_load_dword v249, v250, s[40:41]
        """.replace("s42", "s74" if opt("cppos", 0) else "s42").replace("s[40:41]", "s[72:73]" if opt("cppos", 0) else "s[40:41]").replace("s40", "s72" if opt("cppos", 0) else "s40"))

def common_setup(A, part=3, ln=False):
    if part & 1: common_early(A)
    if part & 2: common_late(A, ln)
def common_early(A):
    if opt("codepf", 1) and opt("cppos", 0): code_prefetch(A)
    for b, sz in ((S_WG, 1409024), (S_WU, 1409024), (S_WD, 1409024), (S_OUT, 2097152), (S_WS, WS_SIZE)):
        A(f"s_mov_b32 s{b+2}, {sz}\ns_mov_b32 s{b+3}, 0x20000")
    A(f"s_add_u32 s72, s32, {WS_EP}\ns_addc_u32 s73, s33, 0\ns_load_dword s{S_TOK}, s[72:73], 0")
def common_late(A, ln):
    A(f"""
    {sl_expr(72, 73)}
    s_mul_i32 s{S_SL}, s72, 192
    s_cmp_eq_u32 s72, 15
    s_cselect_b32 s{S_SL}, 0x200000, s{S_SL}
    s_mul_i32 s{S_WL}, s3, 3072
    s_mul_i32 s72, s3, 192
    s_mov_b32 s73, 0x15555556
    """)
    for i in range(3):
        A(f"""
        v_add_u32 v{V_W+i}, s72, v1
        v_add_u32 v{V_W+i}, {64*i}, v{V_W+i}
        v_mul_hi_u32 v244, v{V_W+i}, s73
        v_mul_u32_u24 v245, 12, v244
        v_sub_u32 v{V_W+i}, v{V_W+i}, v245
        v_lshlrev_b32 v{V_W+i}, 4, v{V_W+i}
        v_mul_u32_u24 v244, 2752, v244
        v_add_u32 v{V_W+i}, v{V_W+i}, v244
        """)
    if opt("tlb", 0):
        A(f"""
        v_lshlrev_b32 v239, {opt("tlb", 0)}, v1
        v_add_u32 v239, 0x2ff000, v239
        v_min_u32 v239, {WS_SIZE - 64}, v239
        buffer_load_dword v235, v239, {srd(S_WS)}, 0 offen
        v_mov_b32 v239, 0
        buffer_load_dword v234, v239, {srd(S_OUT)}, 0 offen
        """)
    if not ln and opt("touch", 11) in (1, 2, 3, 4, 5, 6, 8, 9, 10, 11): touch_setup(A, opt("touch", 11) in (3, 4, 6, 10, 11))
V_W3 = 224
def w3_setup(A):
    A(f"s_sub_u32 s72, s3, 1\ns_lshl_b32 s96, s72, 12\ns_lshl_b32 s72, s72, 8\ns_mov_b32 s73, 0x15555556")
    for i in range(4):
        A(f"""
        v_add_u32 v{V_W3+i}, s72, v1
        v_add_u32 v{V_W3+i}, {64*i}, v{V_W3+i}
        v_mul_hi_u32 v244, v{V_W3+i}, s73
        v_mul_u32_u24 v245, 12, v244
        v_sub_u32 v{V_W3+i}, v{V_W3+i}, v245
        v_lshlrev_b32 v{V_W3+i}, 4, v{V_W3+i}
        v_mul_u32_u24 v244, 2752, v244
        v_add_u32 v{V_W3+i}, v{V_W3+i}, v244
        """)
def w3_chunks(A, chunks):
    w3_setup(A)
    for ch in chunks:
        A(f"s_add_u32 s{S_T2}, s{S_SL}, {ch*64*2752}")
        for mtx, sr in ((0, S_WG), (1, S_WU)):
            for i in range(4):
                A(f"s_add_u32 m0, s96, {ch*SLOT+mtx*UOFF+i*1024}\nbuffer_load_dwordx4 v{V_W3+i}, {srd(sr)}, s{S_T2} offen lds")
def code_pf_text(label, dst, nlines=64):
    here = f".Lpc_{label.strip('.')}"
    return f"""s_getpc_b64 s[72:73]
    {here}:
    s_add_u32 s72, s72, {label}-{here}
    s_addc_u32 s73, s73, 0
    v_min_u32 v{dst}, {nlines-1}, v1
    v_lshlrev_b32 v{dst}, 7, v{dst}
    v_min_u32 v{dst}, .Lend-{label}, v{dst}
    global_load_dword v{dst}, v{dst}, s[72:73]"""
def small_srd(b, sz): return f"s_mov_b32 s{b+2}, {sz}\ns_mov_b32 s{b+3}, 0x20000"

def touch_setup(A, nonln=False):
    n = 22 if nonln else 11
    A(f"""
    s_lshl_b32 s{S_T}, s2, 2
    s_add_u32 s{S_T}, s{S_T}, s3
    s_and_b32 s{S_T}, s{S_T}, {511 if nonln else 1023}
    s_mul_i32 s{S_T}, s{S_T}, {n}
    v_min_u32 v246, {n-1}, v1
    v_add_u32 v246, s{S_T}, v246
    v_lshlrev_b32 v246, 7, v246
    """)
def touch(A, which="gud", nonln=False):
    pol = opt("tpol", "")
    A(f"s_mov_b64 exec, {hex((1 << (22 if nonln else 11)) - 1)}")
    if "g" in which: A(f"buffer_load_dword v236, v246, {srd(S_WG)}, 0 offen {pol}")
    if "u" in which: A(f"buffer_load_dword v237, v246, {srd(S_WU)}, 0 offen {pol}")
    if "d" in which: A(f"buffer_load_dword v238, v246, {srd(S_WD)}, 0 offen {pol}")
    A("s_mov_b64 exec, -1")

def touch_early(A):
    rows = 64 * opt("terows", 5)
    n = (rows * 2752 // 128 + 127) // 128
    A(f"""
    s_sub_u32 s38, s2, 224
    s_lshl_b32 s38, s38, 2
    s_add_u32 s38, s38, s3
    s_mul_i32 s38, s38, {n}
    v_min_u32 v246, {n-1}, v1
    v_add_u32 v246, s38, v246
    v_lshlrev_b32 v246, 7, v246
    buffer_load_dword v247, v246, {srd(S_WG)}, 0 offen
    buffer_load_dword v245, v246, {srd(S_WU)}, 0 offen
    """)
    for j in range(1, (n + 63) // 64):
        A(f"""
        v_add_u32 v244, {64*j}, v1
        v_min_u32 v244, {n-1}, v244
        v_add_u32 v244, s38, v244
        v_lshlrev_b32 v244, 7, v244
        buffer_load_dword v239, v244, {srd(S_WG)}, 0 offen
        buffer_load_dword v238, v244, {srd(S_WU)}, 0 offen
        """)
def touch_late_setup(A):
    rows0 = 64 * opt("terows", 5)
    n = ((512 - rows0) * 2752 // 128 + 1023) // 1024
    A(f"""
    s_lshl_b32 s{S_T}, s2, 2
    s_add_u32 s{S_T}, s{S_T}, s3
    s_mul_i32 s71, s{S_T}, 11
    s_mul_i32 s{S_T}, s{S_T}, {n}
    s_add_u32 s{S_T}, s{S_T}, {rows0*2752//128}
    v_min_u32 v246, {max(n-1,0)}, v1
    v_add_u32 v246, s{S_T}, v246
    v_lshlrev_b32 v246, 7, v246
    v_min_u32 v247, 10, v1
    v_add_u32 v247, s71, v247
    v_lshlrev_b32 v247, 7, v247
    """)
def touch_late(A):
    A(f"""
    s_mov_b64 exec, 0x7ff
    buffer_load_dword v245, v246, {srd(S_WG)}, 0 offen
    buffer_load_dword v244, v246, {srd(S_WU)}, 0 offen
    buffer_load_dword v246, v247, {srd(S_WD)}, 0 offen
    s_mov_b64 exec, -1
    """)

def wchunk_ops(chunk, slot, tag):
    ops = []
    for mtx, sr in ((0, S_WG), (1, S_WU)):
        for i in range(3):
            t = f"s_add_u32 m0, s{S_WL}, {slot*SLOT+mtx*UOFF+i*1024}\n"
            if mtx == 0 and i == 0: t += f"s_add_u32 s{S_T2}, s{S_SL}, {chunk*64*2752}\n"
            t += f"buffer_load_dwordx4 v{V_W+i}, {srd(sr)}, s{S_T2} offen {opt('wpol','')} lds"
            ops.append((t, tag))
    return ops
def wchunks(A, chunks):
    for ch in chunks:
        for t, tag in wchunk_ops(ch, ch, f"w{ch}"): A(t, tag=tag)

def k1_ln(A):
    A.c('==== phase 1a (workgroups 0..127): LayerNorm-1 statistics of 64 rows n = 32*n1 + n2 and the 64-point DFT over n1 ====\nrows -> LDS (DMA), sum / sum of squares by MFMA, U[slot][n2][d] = sum_n1 W64^(n1*slot) * r[n1] * (x - mean) -> workspace')
    A(f"""
    s_and_b32 s38, s2, 7
    s_lshr_b32 s39, s2, 3
    s_lshr_b32 s40, s39, 2
    s_lshl_b32 s40, s40, 3
    s_add_u32 s36, s38, s40
    s_and_b32 s37, s39, 3
    v_lshrrev_b32 v4, 2, v1
    v_sub_u32 v5, 0, v3
    v_xor_b32 v5, v5, v1
    v_and_b32 v5, 3, v5
    v_lshlrev_b32 v4, 15, v4
    v_lshl_add_u32 v4, v5, 4, v4
    s_lshl_b32 s38, s3, 9
    s_add_u32 s38, s38, s36
    s_lshl_b32 s38, s38, 10
    s_mul_i32 s39, s3, {XWS}
    s_add_u32 s39, s39, {XIMG}
    {small_srd(S_X, 2097152)}
    s_waitcnt lgkmcnt(0)
    """)
    ts(A, "prolog")
    for i in range(16):
        A(f"s_add_u32 m0, s39, {i*(XCS-64)}")
        A(f"buffer_load_dwordx4 v4, {srd(S_X)}, s38 offen offset:{i*64} {opt('xpol','')} lds", tag=f"x{i}")
    if opt("karg", 0): A(KREST + "\ns_waitcnt lgkmcnt(0)")
    common_setup(A, 1 if opt("lateset", 0) else 3, True)
    BC, NV = 16, 48
    A("""
    v_lshlrev_b32 v5, 3, v3
    v_cvt_f32_u32 v5, v5
    s_and_b32 s40, s3, 1
    s_lshl_b32 s40, s40, 4
    v_add_u32 v6, s40, v2
    v_cmp_eq_u32 vcc, 0, v6
    v_cvt_f32_u32 v6, v6
    v_mul_f32 v6, 0x3c800000, v6
    v_mov_b32 v8, 0x3e800000
    v_cndmask_b32 v9, v6, 0.5, vcc
    v_cndmask_b32 v10, v8, 0, vcc
    """)
    for ks in range(2):
        for j in range(8):
            A(f"v_add_f32 v{NV}, {fbits(32*ks+j)}, v5\nv_mul_f32 v{BC+ks*8+j}, v{NV}, v6\nv_fma_f32 v{BC+16+ks*8+j}, v{NV}, v9, v10")
    for i in range(32): A(f"v_cos_f32 v{BC+i}, v{BC+i}")
    ONES, G, SA = 112, 116, 120
    for i in range(4): A(f"v_mov_b32 v{ONES+i}, 0x3f803f80")
    A(f"""
    v_lshrrev_b32 v5, 2, v2
    v_sub_u32 v5, 0, v5
    v_xor_b32 v5, v5, v3
    v_and_b32 v5, 3, v5
    v_lshlrev_b32 v5, 4, v5
    v_lshl_add_u32 v5, v2, 6, v5
    v_add_u32 v5, s39, v5
    v_lshrrev_b32 v6, 1, v3
    v_mul_u32_u24 v6, {XWS}, v6
    v_and_b32 v7, 3, v1
    v_mul_u32_u24 v7, {XCS}, v7
    v_add_u32 v6, v6, v7
    v_and_b32 v7, 1, v3
    v_lshl_add_u32 v6, v7, 9, v6
    v_bfe_u32 v8, v1, 2, 2
    v_lshl_add_u32 v6, v8, 6, v6
    s_lshr_b32 s41, s3, 1
    s_mul_i32 s42, s41, {8*XCS}
    s_add_u32 s42, s42, {XIMG}
    v_add_u32 v6, s42, v6
    v_lshlrev_b32 v7, 1, v7
    v_xor_b32 v8, s37, v7
    v_lshl_add_u32 v11, v8, 4, v6
    v_xor_b32 v8, 3, v8
    v_lshl_add_u32 v12, v8, 4, v6
    v_add_u32 v12, 256, v12
    s_lshl_b32 s42, s3, 6
    s_add_u32 s42, s42, {XTAB}
    v_lshl_add_u32 v7, v2, 2, s42
    s_lshl_b32 s42, s3, 5
    s_add_u32 s42, s42, {XTAB+256}
    v_lshl_add_u32 v13, v2, 1, s42
    v_lshlrev_b32 v8, 5, v3
    v_add_u32 v8, {XTAB}, v8
    v_lshlrev_b32 v14, 4, v3
    v_add_u32 v14, {XTAB+256}, v14
    s_mov_b32 s42, 0x22222222
    s_mov_b32 s43, 0x22222222
    s_mov_b32 s44, 0x44444444
    s_mov_b32 s45, 0x44444444
    s_mov_b32 s46, 0x88888888
    s_mov_b32 s47, 0x88888888
    v_add_u32 v9, s40, v2
    v_mul_u32_u24 v9, {USLOT()}, v9
    v_lshl_add_u32 v9, v3, 4, v9
    s_mul_i32 s48, s36, {UN2()}
    s_mul_i32 s49, s37, {UOCT()}
    s_add_u32 s48, s48, s49
    s_lshl_b32 s49, s41, 7
    s_add_u32 s48, s48, s49
    s_add_u32 s48, s48, {WS_U}
    """)
    ts(A, "const")
    R = 48
    pfl = [op for ch in range(opt("pfA", 0)) for op in wchunk_ops(ch, ch, f"w{ch}")] if opt("pfApos", 0) == 2 else []
    for i in range(16):
        A.wait_tag(f"x{i}")
        A(f"ds_read_b128 {v(R+4*i,4)}, v5 offset:{i*XCS}")
        for _ in range(2 if i >= 14 - len(pfl)//2 + 7 else 1):
            if pfl and i >= opt("pfAi", 2): A(*pfl.pop(0))
        if i >= 1:
            k = i - 1
            A(f"v_mfma_f32_16x16x32_bf16 {v(G,4)}, {v(R+4*k,4)}, {v(R+4*k,4)}, {v(G,4) if k else 0}")
            A(f"v_mfma_f32_16x16x32_bf16 {v(SA,4)}, {v(ONES,4)}, {v(R+4*k,4)}, {v(SA,4) if k else 0}")
    A("s_barrier")
    late_pf = pfl
    A(f"v_mfma_f32_16x16x32_bf16 {v(G,4)}, {v(R+60,4)}, {v(R+60,4)}, {v(G,4)}")
    A(f"v_mfma_f32_16x16x32_bf16 {v(SA,4)}, {v(ONES,4)}, {v(R+60,4)}, {v(SA,4)}")
    ts(A, "xarr")
    if opt("touch", 11) == 2: touch(A)
    if opt("pfA", 0) and opt("pfApos", 0) == 1: wchunks(A, range(opt("pfA", 0)))
    X = 128
    for tl in range(4):
        for ks in range(2):
            b = X + (tl*2+ks)*4
            off = ks*2*XWS + (tl >> 1)*4*XCS + 8*(tl & 1)
            A(f"ds_read_b64_tr_b16 {v(b,2)}, v11 offset:{off}\nds_read_b64_tr_b16 {v(b+2,2)}, v12 offset:{off}")
    A(f"""
    v_cndmask_b32 v10, v{G}, v{G+1}, s[42:43]
    v_cndmask_b32 v10, v10, v{G+2}, s[44:45]
    v_cndmask_b32 v10, v10, v{G+3}, s[46:47]
    v_mul_f32 v15, 0xbb000000, v{SA}
    v_mul_f32 v10, 0x3b000000, v10
    v_fma_f32 v10, -v15, v15, v10
    v_max_f32 v10, 0, v10
    v_cvt_pk_bf16_f32 v15, v15, v10
    v_and_b32 v10, 0xffff0000, v15
    v_add_f32 v10, {fbits(1e-5)}, v10
    """)
    bf16r(A, "v10", "v10")
    A("v_sqrt_f32 v10, v10")
    bf16r(A, "v10", "v10")
    A("""
    v_rcp_f32 v10, v10
    s_mov_b32 exec_lo, 0x00f0000f
    s_mov_b32 exec_hi, 0xf0000f00
    ds_write_b16 v13, v15
    ds_write_b32 v7, v10
    s_mov_b64 exec, -1
    s_waitcnt lgkmcnt(0)
    s_barrier
    """)
    ts(A, "stats")
    for op in late_pf: A(*op)
    TR, AM, BP, CM, ACC, PK = 48, 64, 72, 88, 160, 96
    for ks in range(2):
        for hf in range(2): A(f"ds_read_b128 {v(TR+ks*8+hf*4,4)}, v8 offset:{ks*128+hf*16}")
        A(f"ds_read_b128 {v(AM+ks*4,4)}, v14 offset:{ks*64}")
    for ks in range(2):
        for c in range(2):
            for jj in range(4):
                b = BC + c*16 + ks*8 + 2*jj
                A(f"v_pk_mul_f32 {v(b,2)}, {v(b,2)}, {v(TR+ks*8+2*jj,2)}")
            for jj in range(4):
                b = BC + c*16 + ks*8 + 2*jj
                A(f"v_cvt_pk_bf16_f32 v{BP+(c*2+ks)*4+jj}, v{b}, v{b+1}")
    for ks in range(2):
        for c in range(2):
            A(f"v_mfma_f32_16x16x32_bf16 {v(CM+4*c,4)}, {v(AM+ks*4,4)}, {v(BP+(c*2+ks)*4,4)}, {v(CM+4*c,4) if ks else 0}")
    for tl in range(4):
        for c in range(2):
            acc = ACC + (tl*2+c)*4
            A(f"v_mfma_f32_16x16x32_bf16 {v(acc,4)}, {v(X+(tl*2)*4,4)}, {v(BP+(c*2)*4,4)}, {v(CM+4*c,4)}")
        for c in range(2):
            acc = ACC + (tl*2+c)*4
            A(f"v_mfma_f32_16x16x32_bf16 {v(acc,4)}, {v(X+(tl*2+1)*4,4)}, {v(BP+(c*2+1)*4,4)}, {v(acc,4)}")
        if tl >= 1: k1_store(A, tl-1, ACC, PK)
    k1_store(A, 3, ACC, PK)

def k1_store(A, tl, ACC, PK):
    acc = ACC + tl*8; pk = PK + tl*4
    for r in range(4): A(f"v_cvt_pk_bf16_f32 v{pk+r}, v{acc+r}, v{acc+4+r}")
    A(f"buffer_store_dwordx4 {v(pk,4)}, v9, {srd(S_WS)}, s48 offen offset:{(tl&1)*256+(tl>>1)*64} sc1", tag="st")

def k1_mod(A):
    if opt("karg", 0): A(KREST)
    A.c('==== phase 1b (workgroups 128..223): mod = silu(c) @ w_mod, 32 columns per workgroup ====')
    A(f"""
    s_and_b32 s38, s2, 7
    s_lshr_b32 s39, s2, 3
    s_mul_i32 s38, s38, 12
    s_add_u32 s36, s38, s39
    s_sub_u32 s36, s36, 16
    v_lshlrev_b32 v4, 2, v0
    {small_srd(S_C, 1024)}
    {small_srd(S_WM, 3145728)}
    {small_srd(S_X, 2097152)}
    v_lshrrev_b32 v5, 2, v1
    v_mul_u32_u24 v5, 6144, v5
    v_and_b32 v6, 3, v1
    v_lshl_add_u32 v5, v6, 4, v5
    s_mul_i32 s38, s3, {128*6144}
    s_lshl_b32 s39, s36, 6
    s_add_u32 s38, s38, s39
    s_lshl_b32 s39, s3, 13
    s_add_u32 s39, s39, {MW}
    s_waitcnt lgkmcnt(0)
    buffer_load_dword v8, v4, {srd(S_C)}, 0 offen
    """)
    if opt("touch", 11) == 3: touch(A, nonln=True)
    if opt("moddelay", 0): A("v_mov_b32 v8, v8")
    for i in range(8):
        A(f"s_add_u32 m0, s39, {i*1024}")
        if i: A(f"s_add_u32 s38, s38, {16*6144}")
        A(f"buffer_load_dwordx4 v5, {srd(S_WM)}, s38 offen {opt('mpol','nt')} lds", tag="wm")
    common_setup(A)
    A(f"""
    v_bfe_u32 v6, v1, 2, 2
    v_lshl_add_u32 v6, v3, 3, v6
    v_lshlrev_b32 v6, 6, v6
    v_and_b32 v7, 3, v1
    v_lshl_add_u32 v6, v7, 3, v6
    v_add_u32 v6, s39, v6
    v_add_u32 v4, {MSC}, v4
    s_lshl_b32 s40, s3, 8
    s_add_u32 s40, s40, {MSC}
    v_lshl_add_u32 v7, v3, 4, s40
    v_lshlrev_b32 v9, 16, v8
    v_and_b32 v10, 0xffff0000, v8
    v_mul_f32 v11, {LOG2E}, v9
    v_mul_f32 v12, {LOG2E}, v10
    v_exp_f32 v11, v11
    v_exp_f32 v12, v12
    v_add_f32 v11, 1.0, v11
    v_add_f32 v12, 1.0, v12
    v_rcp_f32 v11, v11
    v_rcp_f32 v12, v12
    v_mul_f32 v9, v9, v11
    v_mul_f32 v10, v10, v12
    v_cvt_pk_bf16_f32 v9, v9, v10
    ds_write_b32 v4, v9
    """)
    SF, WF, ACC = 16, 32, 64
    A("s_waitcnt lgkmcnt(0)")
    tsx(A, 60)
    for ks in range(4): A(f"ds_read_b128 {v(SF+4*ks,4)}, v7 offset:{ks*64}")
    A(f"""
    v_and_b32 v10, 31, v1
    s_lshr_b32 s40, s36, 4
    s_and_b32 s41, s36, 15
    s_lshl_b32 s41, s41, 5
    v_add_u32 v10, s41, v10
    v_lshrrev_b32 v15, 8, v10
    v_lshlrev_b32 v15, 8, v15
    v_bfe_u32 v72, v10, 2, 2
    v_lshl_add_u32 v15, v72, 6, v15
    v_bfe_u32 v72, v10, 4, 4
    v_lshl_add_u32 v15, v72, 2, v15
    v_and_b32 v72, 3, v10
    v_add_u32 v15, v15, v72
    v_bfe_u32 v72, v10, 3, 2
    v_lshlrev_b32 v73, 7, v72
    v_bfe_u32 v72, v10, 7, 2
    v_lshl_add_u32 v73, v72, 5, v73
    v_and_b32 v72, 7, v10
    v_lshl_add_u32 v73, v72, 2, v73
    v_bfe_u32 v72, v10, 5, 2
    v_add_u32 v73, v73, v72
    s_cmp_lt_u32 s40, 2
    s_cselect_b64 vcc, -1, 0
    v_cndmask_b32 v15, v15, v73, vcc
    s_cmp_eq_u32 s40, 5
    s_cselect_b64 vcc, -1, 0
    v_cndmask_b32 v10, v15, v10, vcc
    v_lshlrev_b32 v10, 2, v10
    s_lshl_b32 s41, s40, 11
    s_add_u32 s41, s41, {WS_MOD}
    s_cmp_eq_u32 s40, 1
    s_cselect_b32 s42, 1.0, 0
    s_cmp_eq_u32 s40, 4
    s_cselect_b32 s42, 1.0, s42
    s_lshl_b32 s43, s3, 7
    s_add_u32 s43, s43, {MRED}
    v_lshl_add_u32 v9, v2, 2, s43
    s_sub_u32 s44, s40, 3
    s_cmp_lt_u32 s44, 2
    s_cselect_b32 s43, {fbits(math.log2(math.e))}, 1.0
    s_cmp_eq_u32 s40, 5
    s_cselect_b32 s43, {fbits(1/math.log2(math.e)**2)}, s43
    v_and_b32 v74, 31, v1
    v_lshlrev_b32 v74, 2, v74
    v_add_u32 v74, {MRED}, v74
    """)
    A.wait_tag("wm")
    tsx(A, 61)
    if opt("touch", 11) == 2: touch(A)
    if opt("touch", 11) == 4 and not opt("tafter", 0): touch(A, nonln=True)
    if opt("touch", 11) == 9: touch(A, "gu")
    if opt("touch", 11) in (10, 11): touch(A, "gu", nonln=True)
    if opt("pfA", 0) and opt("pfMpos", 0) == 1: wchunks(A, range(opt("pfA", 0)))
    for ks in range(4):
        for nt in range(2):
            b = WF + (ks*2+nt)*4
            off = ks*2048 + nt*32
            A(f"ds_read_b64_tr_b16 {v(b,2)}, v6 offset:{off}\nds_read_b64_tr_b16 {v(b+2,2)}, v6 offset:{off+256}")
    for ks in range(4):
        for nt in range(2):
            A(f"v_mfma_f32_16x16x32_bf16 {v(ACC+4*nt,4)}, {v(SF+4*ks,4)}, {v(WF+(ks*2+nt)*4,4)}, {v(ACC+4*nt,4) if ks else 0}")
    skip = A.label("modskip")
    A(f"""
    s_mov_b64 exec, 0xffff
    ds_write_b32 v9, v{ACC}
    ds_write_b32 v9, v{ACC+4} offset:64
    s_mov_b64 exec, -1
    s_waitcnt lgkmcnt(0)
    s_barrier
    s_cmp_lg_u32 s3, 0
    s_cbranch_scc1 {skip}
    ds_read_b32 v11, v74
    ds_read_b32 v12, v74 offset:128
    ds_read_b32 v13, v74 offset:256
    ds_read_b32 v14, v74 offset:384
    v_add_f32 v11, v11, v12
    v_add_f32 v13, v13, v14
    v_add_f32 v11, v11, v13
    """)
    bf16r(A, "v11", "v11")
    A("v_add_f32 v11, s42, v11")
    bf16r(A, "v11", "v11")
    if opt("fold", 1): A("v_mul_f32 v11, s43, v11")
    A(f"""
    s_mov_b32 exec_hi, 0
    buffer_store_dword v11, v10, {srd(S_WS)}, s41 offen sc1
    s_mov_b64 exec, -1
    {skip}:
    """)

K2 = dict(BS=16, CC=24, CS=26, TW=28, BH=44, U=64, XR=128, CA=136, GA=168, CB=176, SB=184, Z=192, XF=224)
def k2_pre(A, hook=None):
    A.c('==== phase 2 set-up: twiddle / DFT constants (v_cos / v_sin), residual rows, addresses ====')
    r = K2
    if opt("T", 4) == 2: A("s_and_b32 s36, s2, 7\ns_lshl_b32 s36, s36, 2\ns_bfe_u32 s37, s2, 0x20003")
    else: A("s_and_b32 s36, s2, 7\ns_bfe_u32 s37, s2, 0x20003\ns_lshl_b32 s37, s37, 3")
    A("""
    s_add_u32 s36, s36, s37
    s_lshr_b32 s37, s2, 5
    s_sub_u32 s39, 64, s36
    s_cmp_eq_u32 s36, 0
    s_cselect_b32 s39, 32, s39
    s_cselect_b64 s[40:41], -1, 0
    s_lshl_b32 s42, s37, 2
    s_add_u32 s43, s42, s3
    s_lshl_b32 s43, s43, 6
    s_add_u32 s44, s43, s36
    s_add_u32 s45, s43, s39
    s_lshl_b32 s44, s44, 10
    s_lshl_b32 s45, s45, 10
    v_lshlrev_b32 v4, 5, v2
    v_lshl_add_u32 v4, v3, 3, v4
    """)
    for uu in range(2):
        for nt in range(2):
            A(f"buffer_load_dwordx2 {v(r['XR']+(uu*2+nt)*2,2)}, v4, {srd(S_X)}, s{44+uu} offen offset:{nt*512}")
    if hook: hook()
    A("""
    v_lshrrev_b32 v5, 2, v2
    v_add_u32 v5, s42, v5
    v_lshlrev_b32 v5, 6, v5
    v_and_b32 v6, 2, v2
    v_cmp_ne_u32 vcc, 0, v6
    v_mov_b32 v7, s36
    v_mov_b32 v8, s39
    v_cndmask_b32 v7, v7, v8, vcc
    v_add_u32 v5, v5, v7
    v_cvt_f32_u32 v5, v5
    v_mul_f32 v5, 0x3a000000, v5
    v_and_b32 v6, 1, v2
    v_cvt_f32_u32 v6, v6
    v_mul_f32 v6, 0x3e800000, v6
    v_mov_b32 v7, 0xbe800000
    v_mov_b32 v8, 0x3e800000
    v_cndmask_b32 v7, v7, v8, vcc
    v_cndmask_b32 v7, v7, 0, s[40:41]
    v_add_f32 v7, v7, v6
    v_cndmask_b32 v8, 1.0, 0, vcc
    v_cndmask_b32 v9, 0, 1.0, vcc
    v_cndmask_b32 v8, 1.0, v8, s[40:41]
    v_cndmask_b32 v9, 1.0, v9, s[40:41]
    v_lshlrev_b32 v10, 2, v3
    v_cvt_f32_u32 v10, v10
    """)
    T = 64
    NQ = 72
    for ks in range(2):
        for i in range(4): A(f"v_add_f32 v{NQ+ks*4+i}, {fbits(16*ks+i)}, v10")
    for ks in range(2):
        for i in range(4):
            A(f"v_fma_f32 v{T+2*i}, v{NQ+ks*4+i}, v5, v6\nv_fma_f32 v{T+2*i+1}, v{NQ+ks*4+i}, v5, v7")
        for i in range(8): A(f"v_cos_f32 v{T+i}, v{T+i}")
        for i in range(4):
            A(f"v_pk_mul_f32 {v(T+2*i,2)}, {v(T+2*i,2)}, v[8:9]")
            A(f"v_cvt_pk_bf16_f32 v{r['BS']+ks*4+i}, v{T+2*i}, v{T+2*i+1}")
    A("v_cvt_f32_u32 v12, v2\nv_mul_f32 v13, 0x3d800000, v12")
    for j in range(4): A(f"v_mul_f32 v{T+j}, v{NQ+j}, v13")
    for j in range(4): A(f"v_sin_f32 v{T+4+j}, v{T+j}")
    for j in range(4): A(f"v_cos_f32 v{T+j}, v{T+j}")
    for jj in range(2):
        A(f"v_cvt_pk_bf16_f32 v{r['CC']+jj}, v{T+2*jj}, v{T+2*jj+1}\nv_cvt_pk_bf16_f32 v{r['CS']+jj}, v{T+4+2*jj}, v{T+5+2*jj}")
    A("v_mul_f32 v13, 0x3b000000, v12\ns_lshl_b32 s46, s3, 3\nv_cvt_f32_u32 v14, s46")
    for t in range(8):
        A(f"v_add_f32 v11, {fbits(t)}, v14\nv_mul_f32 v{T+t}, v11, v13")
    for t in range(8):
        A(f"v_cos_f32 v{r['TW']+2*t}, v{T+t}\nv_sin_f32 v{r['TW']+2*t+1}, v{T+t}")
    for nt in range(2):
        A(f"v_add_f32 v13, {fbits(16*nt)}, v12\nv_mul_f32 v13, 0x3d000000, v13")
        for ks in range(2):
            for i in range(4): A(f"v_mul_f32 v{T+i}, v{NQ+ks*4+i}, v13")
            for i in range(4): A(f"v_sin_f32 v{T+4+i}, v{T+i}")
            for i in range(4): A(f"v_cos_f32 v{T+i}, v{T+i}")
            for i in range(4): A(f"v_cvt_pk_bf16_f32 v{r['BH']+(nt*2+ks)*4+i}, v{T+i}, v{T+4+i}")
    A(f"""
    v_mul_u32_u24 v5, {4*UN2()}, v3
    v_lshl_add_u32 v5, v2, 4, v5
    s_mul_i32 s46, s36, {USLOT()}
    s_mul_i32 s47, s3, {UOCT()}
    s_add_u32 s46, s46, s47
    s_add_u32 s46, s46, {WS_U}
    s_add_u32 s47, s46, {2*UN2()}
    s_add_u32 s48, s46, {16*UN2()}
    s_add_u32 s49, s46, {18*UN2()}
    s_add_u32 s76, s46, {UN2()}
    s_add_u32 s77, s47, {UN2()}
    s_add_u32 s78, s48, {UN2()}
    s_add_u32 s79, s49, {UN2()}
    v_lshlrev_b32 v6, 7, v3
    s_lshl_b32 s50, s3, 9
    s_add_u32 s50, s50, {WS_MOD}
    s_cmp_eq_u32 s2, 0
    s_cselect_b32 s59, s50, {WS_SIZE}
    v_lshlrev_b32 v7, 4, v1
    v_lshl_add_u32 v8, v3, 5, v2
    v_mul_u32_u24 v8, 144, v8
    s_lshl_b32 s51, s3, 5
    s_add_u32 s51, s51, {K2EX}
    v_add_u32 v8, s51, v8
    v_mul_u32_u24 v9, 144, v2
    v_lshl_add_u32 v9, v3, 4, v9
    s_mul_i32 s51, s3, {32*144}
    s_add_u32 s51, s51, {K2EX}
    v_add_u32 v9, s51, v9
    s_mul_i32 s51, s3, 2080
    s_add_u32 s51, s51, {K2HB}
    v_add_u32 v10, s51, v4
    v_and_b32 v11, 7, v0
    v_lshrrev_b32 v12, 3, v0
    v_mul_u32_u24 v13, 1040, v11
    v_lshl_add_u32 v13, v12, 4, v13
    v_add_u32 v13, {K2HB}, v13
    v_lshlrev_b32 v11, 4, v11
    v_lshl_add_u32 v11, v12, 9, v11
    s_lshl_b32 s51, s36, 3
    s_add_u32 s51, s51, s37
    s_lshl_b32 s52, s51, 13
    s_lshl_b32 s53, s3, 11
    s_add_u32 s52, s52, s53
    s_add_u32 s52, s52, {WS_X1}
    s_add_u32 s53, s52, 1024
    s_lshr_b32 s54, s51, 2
    s_lshl_b32 s54, s54, 15
    s_and_b32 s55, s51, 3
    s_lshl_b32 s55, s55, 7
    s_add_u32 s54, s54, s55
    s_add_u32 s54, s54, {WS_H2}
    s_add_u32 s55, s54, 16384
    s_mov_b32 s56, {WS_MOD+2*2048}
    s_mov_b32 s57, {WS_MOD+3*2048}
    s_mov_b32 s58, {WS_MOD+4*2048}
    s_lshl_b32 s62, s51, 7
    s_add_u32 s62, s62, {WS_F2}
    v_lshlrev_b32 v250, 6, v1
    """)

def k2_main(A):
    A.c('==== phase 2: 8 output rows per workgroup ====\n32-point DFT over n2 (with twiddles), * (1 + scale) (+ 2048 * shift for row 0), 512-point hidden DFT as 16 x 32,\nx1 = x + gate * y, LayerNorm-2, modulation -> h2')
    r = K2
    U, Z = r['U'], r['Z']
    sk0 = A.label("k2sl")
    A(f"s_cmp_lg_u32 s2, 0\ns_cbranch_scc1 {sk0}")
    for t in range(0 if opt("sepmod", 1) else 8):
        A(f"buffer_load_dwordx4 {a(4*t,4)}, v6, {srd(S_WS)}, s50 offen offset:{t*16} sc1")
    A(f"{sk0}:")
    sep = opt("sepmod", 1)
    if sep:
        m0 = A.label("k2m0")
        A(f"s_cmp_lg_u32 s3, 0\ns_cbranch_scc1 {m0}")
        A(f"buffer_load_dword v254, v250, {srd(S_WS)}, s73 offen sc1\nbuffer_load_dword v255, v250, {srd(S_WS)}, s74 offen sc1\n{m0}:", tag="spin")
    for hh in range(2):
        for ks in range(2):
            for i in range(4):
                A(f"buffer_load_dwordx4 {v(U+((ks*2+hh)*4+i)*4,4)}, v5, {srd(S_WS)}, s{(46, 76)[i&1]+ks*2+(i>>1)} offen offset:{hh*256} sc1")
    if sep:
        m1, lp1 = A.label("k2m1"), A.label("k2ml")
        A(f"""
        s_cmp_lg_u32 s3, 0
        s_cbranch_scc1 {m1}
        s_mov_b32 s{S_CNT}, 0
        s_waitcnt vmcnt(16)
        {lp1}:
        v_xor_b32 v254, s{S_TOK}, v254
        v_xor_b32 v255, s{S_TOK}, v255
        v_or_b32 v254, v254, v255
        v_cmp_ne_u32 vcc, 0, v254
        s_add_u32 s{S_CNT}, s{S_CNT}, 1
        s_cmp_ge_u32 s{S_CNT}, {MAXPOLL}
        s_cbranch_scc1 {m1}
        s_cbranch_vccz {m1}
        buffer_load_dword v254, v250, {srd(S_WS)}, s73 offen sc1
        buffer_load_dword v255, v250, {srd(S_WS)}, s74 offen sc1
        s_waitcnt vmcnt(0)
        s_branch {lp1}
        {m1}:
        s_barrier
        """, tag="spin")
        sk1 = A.label("k2s1")
        A(f"s_cmp_lg_u32 s2, 0\ns_cbranch_scc1 {sk1}")
        for t in range(8):
            A(f"buffer_load_dwordx4 {a(4*t,4)}, v6, {srd(S_WS)}, s50 offen offset:{t*16} sc1", tag="spin")
        A(f"{sk1}:", tag="spin")
    for t in range(8):
        A(f"buffer_load_dwordx4 {v(r['CA']+4*t,4)}, v6, {srd(S_WS)}, s50 offen offset:{2048+t*16} sc1")
    for nm, sr in (("GA", 56), ("CB", 58), ("SB", 57)):
        for nt in range(2):
            A(f"buffer_load_dwordx4 {v(r[nm]+nt*4,4)}, v7, {srd(S_WS)}, s{sr} offen offset:{nt*1024} sc1")
    A.touch_regs([("v", U)])
    for uu in range(2):
        for nt in range(2):
            xr = r['XR'] + (uu*2+nt)*2; xf = r['XF'] + (uu*2+nt)*4
            A(f"v_lshlrev_b32 v{xf}, 16, v{xr}\nv_and_b32 v{xf+1}, 0xffff0000, v{xr}\nv_lshlrev_b32 v{xf+2}, 16, v{xr+1}\nv_and_b32 v{xf+3}, 0xffff0000, v{xr+1}")
    pfl = [op for ch in range(opt("pfA", 0) + opt("pf1", 3), opt("pfB", 4)) for op in wchunk_ops(ch, ch, f"w{ch}")]
    if opt("pfBpos", 2) == 0:
        for op in pfl: A(*op)
    if opt("pfBpos", 2) in (0, 3): pfl = []
    if opt("touch", 11) == 7 and opt("tlate", 0) == 1: touch_late(A)
    if opt("touch", 11) == 8: touch(A)
    if opt("touch", 11) == 9: touch(A, "d")
    if TS and opt("tsu", 1): A(f"v_mov_b32 v{U+60}, v{U+60}"); ts(A, "uarr")
    for hh in range(2):
        for ks in range(2):
            b = U + (ks*2+hh)*16
            for i in range(4):
                for t in range(i+1, 4): A(f"v_swap_b32 v{b+4*i+t}, v{b+4*t+i}")
        for t in range(4):
            for ks in range(2):
                z = Z + (hh*4+t)*4
                A(f"v_mfma_f32_16x16x32_bf16 {v(z,4)}, {v(U+(ks*2+hh)*16+4*t,4)}, {v(r['BS']+ks*4,4)}, {v(z,4) if ks else 0}")
                if pfl and opt("pfBpos", 2) != 4 and (hh == 1 or opt("pfBpos", 2) == 2): A(*pfl.pop(0))
    if opt("pfBpos", 2) != 4:
        for op in pfl: A(*op)
        pfl = []
    ZP, P, Q = 64, 80, 112
    ts(A, "s2")
    for t in range(8):
        for h in range(2): A(f"v_pk_mul_f32 {v(Z+4*t+2*h,2)}, {v(Z+4*t+2*h,2)}, {v(r['CA']+4*t+2*h,2)}")
    sk = A.label("k2sa")
    A(f"s_cmp_lg_u32 s2, 0\ns_cbranch_scc1 {sk}")
    A("s_mov_b32 s59, 0x45000000\ns_mov_b32 exec_lo, 0x00010001\ns_mov_b32 exec_hi, 0x00010001")
    for i in range(32):
        A(f"v_accvgpr_read_b32 v{P}, a{i}\nv_fma_f32 v{Z+i}, v{P}, s59, v{Z+i}")
    A(f"s_mov_b64 exec, -1\n{sk}:")
    for t in range(8):
        A(f"v_cvt_pk_bf16_f32 v{ZP+2*t}, v{Z+4*t}, v{Z+4*t+1}\nv_cvt_pk_bf16_f32 v{ZP+2*t+1}, v{Z+4*t+2}, v{Z+4*t+3}")
        if t >= 1:
            A(f"v_mfma_f32_16x16x16_bf16 {v(P+4*(t-1),4)}, {v(ZP+2*(t-1),2)}, {v(r['CC'],2)}, 0")
            A(f"v_mfma_f32_16x16x16_bf16 {v(Z+4*(t-1),4)}, {v(ZP+2*(t-1),2)}, {v(r['CS'],2)}, 0")
    A(f"v_mfma_f32_16x16x16_bf16 {v(P+28,4)}, {v(ZP+14,2)}, {v(r['CC'],2)}, 0")
    A(f"v_mfma_f32_16x16x16_bf16 {v(Z+28,4)}, {v(ZP+14,2)}, {v(r['CS'],2)}, 0")
    Q = Z; W = 112
    ts(A, "h1m")
    for hh in range(2):
        for uu in range(2):
            idx = [(P+4*(hh*4+t4)+2*uu, Q+4*(hh*4+t4)+2*uu, r['TW']+2*(hh*4+t4), W+uu*8+hh*4+t4) for t4 in range(4)]
            for p, q, tw, w in idx: A(f"v_pk_add_f32 {v(p,2)}, {v(p,2)}, {v(q,2)} op_sel:[0,1] op_sel_hi:[1,0] neg_hi:[0,1]")
            for p, q, tw, w in idx: A(f"v_pk_mul_f32 {v(q,2)}, {v(p,2)}, {v(tw,2)} op_sel:[0,0] op_sel_hi:[1,0]")
            for p, q, tw, w in idx: A(f"v_pk_fma_f32 {v(q,2)}, {v(p,2)}, {v(tw,2)}, {v(q,2)} op_sel:[1,1,0] op_sel_hi:[0,1,1] neg_hi:[1,0,0]")
            for p, q, tw, w in idx: A(f"v_cvt_pk_bf16_f32 v{w}, v{q}, v{q+1}")
            A(f"ds_write_b128 v8, {v(W+uu*8+hh*4,4)} offset:{uu*16*144+hh*16}")
    A("s_waitcnt lgkmcnt(0)\ns_barrier")
    ts(A, "h1")
    AF, Y = 80, 96
    for uu in range(2):
        for ks in range(2):
            A(f"ds_read_b128 {v(AF+(uu*2+ks)*4,4)}, v9 offset:{uu*16*144+ks*64}")
    for op in pfl[:4]: A(*op)
    pfl = pfl[4:]
    for uu in range(2):
        for ks in range(2):
            for nt in range(2):
                y = Y + (uu*2+nt)*4
                A(f"v_mfma_f32_16x16x32_bf16 {v(y,4)}, {v(AF+(uu*2+ks)*4,4)}, {v(r['BH']+(nt*2+ks)*4,4)}, {v(y,4) if ks else 0}")
                if pfl: A(*pfl.pop(0))
    for op in pfl: A(*op)
    XP = 168 if opt("latex1", 2) == 2 else 112
    ts(A, "h2m")
    for uu in range(2):
        for nt in range(2):
            y = Y + (uu*2+nt)*4; xf = r['XF'] + (uu*2+nt)*4; g = r['GA'] + nt*4
            for h in range(2):
                A(f"v_pk_fma_f32 {v(y+2*h,2)}, {v(y+2*h,2)}, {v(g+2*h,2)}, {v(xf+2*h,2)}")
        y = Y + uu*8; t = 64 + 4*uu
        A(f"v_pk_add_f32 {v(t,2)}, {v(y,2)}, {v(y+2,2)}\nv_pk_mul_f32 {v(t+2,2)}, {v(y,2)}, {v(y,2)}")
        A(f"v_pk_add_f32 {v(t,2)}, {v(t,2)}, {v(y+4,2)}\nv_pk_fma_f32 {v(t+2,2)}, {v(y+2,2)}, {v(y+2,2)}, {v(t+2,2)}")
        A(f"v_pk_add_f32 {v(t,2)}, {v(t,2)}, {v(y+6,2)}\nv_pk_fma_f32 {v(t+2,2)}, {v(y+4,2)}, {v(y+4,2)}, {v(t+2,2)}")
        A(f"v_add_f32 v{72+2*uu}, v{t}, v{t+1}\nv_pk_fma_f32 {v(t+2,2)}, {v(y+6,2)}, {v(y+6,2)}, {v(t+2,2)}")
        A(f"v_add_f32 v{73+2*uu}, v{t+2}, v{t+3}")
    def x1_store(uu, nt):
        y = Y + (uu*2+nt)*4; xp = XP + (uu*2+nt)*2
        A(f"v_cvt_pk_bf16_f32 v{xp}, v{y}, v{y+1}\nv_cvt_pk_bf16_f32 v{xp+1}, v{y+2}, v{y+3}")
        A(f"buffer_store_dwordx2 {v(xp,2)}, v4, {srd(S_WS)}, s{52+uu} offen offset:{nt*512} sc1", tag="st")
    late_x1 = opt("latex1", 2)
    def x1_cvt(uu, nt):
        y = Y + (uu*2+nt)*4; xp = XP + (uu*2+nt)*2
        A(f"v_cvt_pk_bf16_f32 v{xp}, v{y}, v{y+1}\nv_cvt_pk_bf16_f32 v{xp+1}, v{y+2}, v{y+3}")
    def x1_st(uu, nt):
        A(f"buffer_store_dwordx2 {v(XP+(uu*2+nt)*2,2)}, v4, {srd(S_WS)}, s{52+uu} offen offset:{nt*512} sc1", tag="x1")
    if late_x1: x1_store = x1_cvt
    A("v_permlane16_swap_b32 v72, v73\nv_permlane16_swap_b32 v74, v75\nv_add_f32 v72, v72, v73\nv_add_f32 v74, v74, v75")
    x1_store(0, 0)
    A("v_permlane32_swap_b32 v72, v74\nv_add_f32 v72, v72, v74")
    x1_store(0, 1)
    A("v_add_f32 v72, v72, v72 row_ror:8")
    A(f"v_mov_b32 v76, 0x3b000000\nv_mov_b32 v77, {fbits(1e-5)}")
    A("v_add_f32 v72, v72, v72 row_ror:4")
    x1_store(1, 0)
    A("v_add_f32 v72, v72, v72 row_ror:2")
    x1_store(1, 1)
    A("""
    v_add_f32 v72, v72, v72 row_ror:1
    v_mul_f32 v72, v72, v76
    v_readlane_b32 s40, v72, 0
    v_readlane_b32 s41, v72, 16
    v_readlane_b32 s42, v72, 32
    v_readlane_b32 s43, v72, 48
    v_mov_b32 v64, s40
    v_mov_b32 v66, s42
    v_fma_f32 v65, -v64, v64, s41
    v_fma_f32 v67, -v66, v66, s43
    v_max_f32 v65, 0, v65
    v_max_f32 v67, 0, v67
    v_add_f32 v65, v65, v77
    v_add_f32 v67, v67, v77
    v_rsq_f32 v65, v65
    v_rsq_f32 v67, v67
    v_mul_f32 v64, -v64, v65
    v_mul_f32 v66, -v66, v67
    """)
    HP = 120
    ts(A, "ln2")
    for uu in range(2):
        for nt in range(2):
            y = Y + (uu*2+nt)*4
            for h in range(2):
                A(f"v_pk_fma_f32 {v(y+2*h,2)}, {v(y+2*h,2)}, {v(64+2*uu,2)}, {v(64+2*uu,2)} op_sel:[0,1,0] op_sel_hi:[1,1,0]")
            for h in range(2):
                A(f"v_pk_fma_f32 {v(y+2*h,2)}, {v(y+2*h,2)}, {v(r['CB']+nt*4+2*h,2)}, {v(r['SB']+nt*4+2*h,2)}")
            hp = HP + (uu*2+nt)*2
            A(f"v_cvt_pk_bf16_f32 v{hp}, v{y}, v{y+1}\nv_cvt_pk_bf16_f32 v{hp+1}, v{y+2}, v{y+3}")
            A(f"ds_write_b64 v10, {v(hp,2)} offset:{uu*1040+nt*512}")
    A("s_waitcnt lgkmcnt(0)\ns_barrier")
    ts(A, "hb")
    A("ds_read_b128 v[64:67], v13\nds_read_b128 v[68:71], v13 offset:512")
    A(f"buffer_store_dwordx4 v[64:67], v11, {srd(S_WS)}, s54 offen {LOC('h')}", tag="st")
    A(f"buffer_store_dwordx4 v[68:71], v11, {srd(S_WS)}, s55 offen {LOC('h')}", tag="st")
    if late_x1 == 1:
        for uu in range(2):
            for nt in range(2): x1_st(uu, nt)
    if late_x1 == 2:
        A("v_mov_b32 v176, v4\ns_mov_b32 s80, s52\ns_mov_b32 s81, s53")

WD_ORDER = [37, 38, 39] + list(range(13, 37)) + list(range(0, 13)) + [37, 38, 39]
def k4_ids(A):
    if opt("R", 4) == 4:
        A("s_and_b32 s36, s2, 7\ns_lshl_b32 s36, s36, 2\ns_bfe_u32 s38, s2, 0x20003\ns_add_u32 s36, s36, s38\ns_lshr_b32 s37, s2, 5")
    else:
        A("s_bfe_u32 s36, s2, 0x20001\ns_lshl_b32 s36, s36, 3\ns_bfe_u32 s38, s2, 0x30003\ns_add_u32 s36, s36, s38\ns_and_b32 s37, s2, 1\ns_lshl_b32 s37, s37, 2\ns_lshr_b32 s38, s2, 6\ns_add_u32 s37, s37, s38")
    A("s_lshr_b32 s38, s3, 1\ns_and_b32 s39, s3, 1")
def wd_setup(A):
    k4_ids(A)
    A(f"""
    v_lshrrev_b32 v244, 3, v1
    v_lshlrev_b32 v{V_D}, 10, v244
    v_and_b32 v245, 7, v1
    v_lshlrev_b32 v244, 1, v244
    v_and_b32 v244, 4, v244
    v_xor_b32 v245, v245, v244
    v_lshl_add_u32 v{V_D}, v245, 4, v{V_D}
    s_mul_i32 s{S_DG}, s38, {688*1024}
    s_lshl_b32 s41, s37, 7
    s_add_u32 s{S_DG}, s{S_DG}, s41
    s_lshl_b32 s41, s39, 13
    s_add_u32 s{S_DG}, s{S_DG}, s41
    s_lshl_b32 s{S_DL}, s3, 10
    """)
    if opt("two", 0):
        A(f"""
        s_lshl_b32 s41, s37, 7
        s_lshl_b32 s42, s39, 13
        s_add_u32 s41, s41, s42
        s_mul_i32 s{S_DG}, s38, {6*16384}
        s_add_u32 s{S_DG}, s{S_DG}, s41
        s_add_u32 s42, s38, 84
        s_lshl_b32 s42, s42, 14
        s_add_u32 s{S_DG2}, s42, s41
        """)
        return
    A(f"""
    s_mul_i32 s41, s37, 10
    s_lshr_b32 s41, s41, 3
    s_lshl_b32 s41, s41, 16
    s_add_u32 s{S_DR}, s{S_DG}, s41
    s_add_u32 s{S_DE}, s{S_DG}, {40*16384}
    """)
S_DR, S_DE, S_AB, S_AE = 82, 83, 97, 100
S_DG2, S_ACT, S_ACT2, S_AT = 82, 83, 97, 100
WS_F3B = WS_FLG + 0x30000
NA = 3
def steps4():
    return [None] + [(i, j) for i in range(7) for j in range(NA)] + [(i, j) for i in range(7) for j in range(NA, 6)]
NSA = 1 + 7*NA
def wd_op(step, tag):
    if opt("two", 0):
        st = steps4()[step]
        t = f"s_add_u32 m0, s{S_DL}, {WD_ORDER[step]*4096}\n"
        if st is None: so = S_DG2; t += "s_nop 0\n"
        else: so = S_T; t += f"s_add_u32 s{S_T}, s{S_DG}, {(12*st[0]+st[1])*16384}\n"
        return (t + f"buffer_load_dwordx4 v{V_D}, {srd(S_WD)}, s{so} offen lds", tag)
    return wd_op1(step, tag)
def wd_op1(step, tag):
    t = f"s_add_u32 m0, s{S_DL}, {WD_ORDER[step]*4096}\n"
    if not opt("rot", 0) or step >= 40:
        t += f"s_add_u32 s{S_T}, s{S_DG}, {step*16384}\n"
    else:
        if step and step % 4 == 0:
            t += f"s_add_u32 s{S_DR}, s{S_DR}, 65536\ns_cmp_eq_u32 s{S_DR}, s{S_DE}\ns_cselect_b32 s{S_DR}, s{S_DG}, s{S_DR}\n"
        t += f"s_add_u32 s{S_T}, s{S_DR}, {(step % 4)*16384}\n"
    t += f"buffer_load_dwordx4 v{V_D}, {srd(S_WD)}, s{S_T} offen {opt('dpol','')} lds"
    return (t, tag)

def k3_ids(A):
    A(sl_expr() + "\ns_mov_b32 s37, s38\n" + rb_expr())
def k3_pre(A):
    A.c('==== phase 3 / 4 set-up ====')
    wd_setup(A)
    k3_ids(A)
    A(f"""
    s_lshl_b32 s45, s36, 2
    s_add_u32 s45, s45, s3
    s_lshl_b32 s46, s45, 15
    s_add_u32 s46, s46, {WS_H2}
    v_lshlrev_b32 v4, 4, v1
    v_bfe_u32 v5, v1, 1, 1
    v_mul_u32_u24 v5, {UOFF}, v5
    v_bfe_u32 v6, v1, 2, 2
    v_bfe_u32 v7, v1, 5, 1
    v_lshl_add_u32 v6, v7, 3, v6
    v_mul_u32_u24 v6, 192, v6
    v_add_u32 v5, v5, v6
    v_bfe_u32 v6, v1, 4, 1
    v_lshl_add_u32 v5, v6, 4, v5
    v_and_b32 v6, 1, v1
    v_lshl_add_u32 v5, v6, 3, v5
    v_add_u32 v6, {2*SLOT}, v5
    v_add_u32 v7, {4*SLOT}, v5
    s_mul_i32 s47, s45, {86*1024}
    s_mul_i32 s48, s37, {6*1024}
    s_add_u32 s47, s47, s48
    s_add_u32 s47, s47, {WS_ACT}
    s_add_u32 s48, s47, 2048
    s_add_u32 s51, s47, 4096
    s_cmp_eq_u32 s37, 14
    s_cselect_b32 s48, {WS_SIZE}, s48
    s_cselect_b32 s51, {WS_SIZE}, s51
    s_lshl_b32 s49, s2, 2
    s_add_u32 s49, s49, s3
    s_mul_i32 s49, s49, 11
    v_min_u32 v246, 10, v1
    v_add_u32 v246, s49, v246
    v_lshlrev_b32 v246, 7, v246
    v_mov_b32 v14, {LOG2E}
    v_mov_b32 v15, {LOG2E}
    s_lshl_b32 s61, s36, 4
    s_add_u32 s61, s61, s37
    s_lshl_b32 s61, s61, 7
    s_add_u32 s61, s61, {WS_F3}
    s_lshl_b32 s62, s36, 11
    s_add_u32 s62, s62, {WS_F2}
    """)

def x1_ops():
    return [(f"buffer_store_dwordx2 {v(168+(uu*2+nt)*2,2)}, v176, {srd(S_WS)}, s{80+uu} offen offset:{nt*512} {LOC('x')}", "x1") for uu in range(2) for nt in range(2)]
def k3_main(A, idle):
    done = A.label("k3done")
    if opt("short14", 1):
        short = A.label("k3short")
        A(f"s_cmp_eq_u32 s37, 14\ns_cbranch_scc1 {short}")
        k3_body(A, 6)
        A(f"s_branch {done}\n{short}:")
        A.reset()
        k3_body(A, 2)
    else:
        k3_body(A, 6)
    k3_tail(A, idle, done)

def k3_body(A, NT):
    A.c('==== phase 3: h2[128 rows] @ (w_gate | w_up)[96 columns each], act = silu(g) * u ; w_down streams into the freed LDS ====')
    ACC, AF, NAF = 16, 112, 8
    T, PK = 144, 160
    full = NT == 6
    def h2_op(k):
        t = "s_add_u32 s46, s46, 4096\n" if (k and k % 4 == 0) else ""
        return (t + f"buffer_load_dwordx4 {a(4*k,4)}, v4, {srd(S_WS)}, s46 offen offset:{(k%4)*1024} {LDP('h')}", None)
    H0 = opt("h0", 9)
    for k in range(H0): A(h2_op(k)[0])
    order = [(k, j) for k in range(32) for j in range(NT)]
    N = len(order)
    def slot_of(k):
        ch = k // 4
        return ch if ch < 6 else ch - 6
    def frag_read(n):
        k, j = order[n]
        sl = slot_of(k)
        base = ("v5", "v6", "v7")[sl // 2]
        off = (sl % 2)*SLOT + (k % 4)*16*192 + j*32
        b = AF + (n % NAF)*4
        return f"ds_read_b64_tr_b16 {v(b,2)}, {base} offset:{off}\nds_read_b64_tr_b16 {v(b+2,2)}, {base} offset:{off+4*192}"
    PF = NAF - 2
    CH = 4*NT
    b01, b23, b6, b7 = 2*CH - 1, 4*CH - 1, 6*CH - PF - 1, 7*CH - PF - 1
    assert b6 >= 5*CH - 1 and b7 >= 6*CH - 1
    bars = {b01: [], b23: [], b6: ["w6"], b7: ["w7"]}
    pfB = opt("pfB", 4) + opt("pf3", 2)
    for ch in range(pfB, 6):
        nb = ch*CH - PF - 1
        if ch == 5 and b23 <= nb: bars[b23].append("w5")
        else: bars.setdefault(nb, []).append(f"w{ch}")
    sc = lambda x: x*NT // 6
    side = []
    n0 = 0
    def add(op, step):
        nonlocal n0
        side.append((sc(n0), *op)); n0 += step
    for k in range(H0, 32): add(h2_op(k), 2)
    for ch in range(pfB, 6):
        for op in wchunk_ops(ch, ch, f"w{ch}"): add(op, 2)
    if opt("x1pos", 1) == 0:
        for op in x1_ops(): add(op, 2)
    def at_least(n):
        nonlocal n0
        while sc(n0) <= n: n0 += 1
    if opt("tact", 0) == 1 and full:
        side.append((sc(n0), f"v_lshlrev_b32 v13, 7, v1\nv_min_u32 v13, {47*128}, v13\nbuffer_load_dword v12, v13, {srd(S_WS)}, s47 offen", None)); n0 += 2
    at_least(b01)
    for ch in (6, 7):
        for op in wchunk_ops(ch, ch-6, f"w{ch}"): add(op, 2)
    if opt("x1pos", 1) == 1:
        for op in x1_ops(): add(op, 2)
    for st_ in range(0, 3): add(wd_op(st_, "wd"), 3)
    if opt("cpf", 0) & 4 and full: side.append((max(n0, opt("cpn", 90)), code_pf_text(".Lk3epi", 249, 60), None))
    at_least(b23)
    for st_ in range(3, 14): add(wd_op(st_, "wd"), opt("wdsp", 3))
    at_least(b6)
    for st_ in range(14, 20): add(wd_op(st_, "wd"), 3)
    at_least(b7)
    for st_ in range(20, 27): add(wd_op(st_, "wd"), 3)
    if opt("tact", 0) == 2 and full:
        side.insert([i for i, x in enumerate(side) if x[0] > opt("tactn", 100)][0], (opt("tactn", 100), f"v_lshlrev_b32 v13, 7, v1\nv_min_u32 v13, {47*128}, v13\nbuffer_load_dword v12, v13, {srd(S_WS)}, s47 offen", None))
    assert opt("pfB", 4) >= 2
    if not opt("nostartbar", 1): A("v_accvgpr_read_b32 v13, a0\ns_barrier")
    if full: ts(A, "issued")
    for n in range(PF): A(frag_read(n))
    if full: tc(A, "first")
    for n, (k, j) in enumerate(order):
        acc = ACC + 16*j
        if n % 2 == 0: A.touch_regs([("v", AF+((n+1)%NAF)*4+3)])
        A(f"v_mfma_f32_32x32x16_bf16 {v(acc,16)}, {v(AF+(n%NAF)*4,4)}, {a(4*k,4)}, {v(acc,16) if k else 0}")
        if n == 0 and full: ts(A, "first")
        while side and side[0][0] <= n:
            _, t, tag = side.pop(0); A(t, tag=tag)
            if full: break
        if n in bars:
            for tg in bars[n]: A.wait_tag(tg)
            A("s_barrier")
            if full: ts(A, f"n{n}")
        if n + PF < N: A(frag_read(n+PF))
    for _, t, tag in side: A(t, tag=tag)
    if full:
        A(".Lk3epi:")
        ts(A, "mfma")
        tc(A, "mfma")
    def epi(j):
        acc = ACC + 16*j; pk = PK + 4*(j & 1); t0 = T + 8*(j & 1)
        if opt("fold", 1):
            for i in range(8): A(f"v_exp_f32 v{t0+i}, -v{acc + 8*(i//4) + i%4}")
        else:
            for hf in range(2):
                g = acc + 8*hf; t = t0 + 4*hf
                for h in range(2): A(f"v_pk_mul_f32 {v(t+2*h,2)}, {v(g+2*h,2)}, v[14:15]")
            for i in range(8): A(f"v_exp_f32 v{t0+i}, v{t0+i}")
        for hf in range(2):
            g, u = acc + 8*hf, acc + 8*hf + 4
            for h in range(2): A(f"v_pk_mul_f32 {v(g+2*h,2)}, {v(g+2*h,2)}, {v(u+2*h,2)}")
        for h in range(4): A(f"v_pk_add_f32 {v(t0+2*h,2)}, {v(t0+2*h,2)}, 1.0 op_sel_hi:[1,0]")
        for i in range(8): A(f"v_rcp_f32 v{t0+i}, v{t0+i}")
        for hf in range(2):
            g = acc + 8*hf; t = t0 + 4*hf
            for h in range(2): A(f"v_pk_mul_f32 {v(g+2*h,2)}, {v(g+2*h,2)}, {v(t+2*h,2)}")
        for hf in range(2):
            g = acc + 8*hf
            A(f"v_cvt_pk_bf16_f32 v{pk+2*hf}, v{g}, v{g+1}\nv_cvt_pk_bf16_f32 v{pk+2*hf+1}, v{g+2}, v{g+3}")
        A(f"buffer_store_dwordx4 {v(pk,4)}, v4, {srd(S_WS)}, s{(47,48,51)[j//2]} offen offset:{(j%2)*1024} {LOC('a')}", tag=("sA" if j < NA else "sB"))
    for j in range(NT): epi(j)
    if opt("two", 0):
        A.wait_tag("sA")
        skA = A.label("fa")
        A(f"""
        s_barrier
        s_cmp_lg_u32 s3, 0
        s_cbranch_scc1 {skA}
        v_mov_b32 v250, 0
        v_mov_b32 v251, s{S_TOK}
        s_mov_b64 exec, 1
        buffer_store_dword v251, v250, {srd(S_WS)}, s61 offen sc1
        s_mov_b64 exec, -1
        {skA}:
        """, tag="spin")
    if full: ts(A, "stiss3")

def k3_tail(A, idle, done):
    A.c('---- phase 3, workgroups without columns: warm w_down, fetch their own w_down image ----')
    A(f"s_branch {done}\n{idle}:")
    A.reset()
    A("s_waitcnt vmcnt(0)\ns_barrier")
    if opt("touch", 11) == 11:
        A(f"""
        s_lshl_b32 s49, s36, 2
        s_add_u32 s49, s49, s3
        s_mul_i32 s49, s49, {172*128}
        v_lshlrev_b32 v246, 7, v1
        buffer_load_dword v236, v246, {srd(S_WD)}, s49 offen
        s_add_u32 s50, s49, 8192
        buffer_load_dword v237, v246, {srd(S_WD)}, s50 offen
        s_add_u32 s50, s49, {108*128}
        buffer_load_dword v238, v246, {srd(S_WD)}, s50 offen
        """)
    if opt("latex1", 2) == 2:
        for op in x1_ops(): A(*op)
    for st_ in range(27): A(*wd_op(st_, "wd"))
    A(f"s_waitcnt vmcnt(0)\n{done}:")
    A.reset()

def k4_list(A):
    k4_ids(A)
    A(f"""
    s_mov_b32 s62, {WS_F3}
    s_lshr_b32 s51, s36, 1
    s_lshl_b32 s51, s51, 4
    v_cmp_eq_u32 vcc, 15, v2
    v_cndmask_b32 v250, v2, 0, vcc
    v_add_u32 v250, s51, v250
    """)
    if opt("latex1", 2):
        A(f"""
        v_and_b32 v251, 7, v1
        v_lshlrev_b32 v251, 5, v251
        """)
        if opt("T", 4) == 2: A("s_lshr_b32 s51, s36, 2\ns_and_b32 s52, s36, 3")
        else: A("s_and_b32 s51, s36, 7\ns_lshr_b32 s52, s36, 3")
        A("s_lshl_b32 s52, s52, 3\ns_add_u32 s51, s51, s52\nv_add_u32 v251, s51, v251")
        if opt("T", 4) == 2:
            A("v_and_b32 v252, 7, v251\nv_lshlrev_b32 v252, 1, v252\nv_bfe_u32 v253, v251, 3, 1\nv_add_u32 v252, v252, v253\nv_mov_b32 v253, 0\nv_lshrrev_b32 v251, 4, v251")
        elif opt("T", 4) == 4 and opt("bal", 0):
            A("v_bfe_u32 v252, v251, 1, 2\nv_lshlrev_b32 v252, 2, v252\nv_bfe_u32 v253, v251, 3, 2\nv_add_u32 v252, v252, v253\nv_and_b32 v253, 1, v251\nv_lshrrev_b32 v251, 5, v251\nv_cmp_eq_u32 vcc, 7, v251\nv_add_u32 v254, 7, v253\nv_mul_u32_u24 v253, 7, v253\nv_cndmask_b32 v253, v253, v254, vcc")
        elif opt("T", 4) == 4:
            A("v_bfe_u32 v252, v251, 1, 2\nv_lshlrev_b32 v252, 2, v252\nv_bfe_u32 v253, v251, 3, 2\nv_add_u32 v252, v252, v253\nv_and_b32 v253, 1, v251\nv_lshlrev_b32 v253, 3, v253\nv_lshrrev_b32 v251, 5, v251")
        else:
            A("v_bfe_u32 v252, v251, 2, 1\nv_lshlrev_b32 v252, 3, v252\nv_bfe_u32 v253, v251, 3, 3\nv_add_u32 v252, v252, v253\nv_and_b32 v253, 3, v251\nv_lshlrev_b32 v253, 2, v253\nv_lshrrev_b32 v251, 6, v251")
        A("v_add_u32 v251, v251, v253\nv_lshl_add_u32 v251, v252, 4, v251\nv_cmp_gt_u32 vcc, 16, v1\nv_cndmask_b32 v250, v251, v250, vcc")
    A("v_lshlrev_b32 v250, 7, v250")
def k4_pre(A):
    k4_list(A)
    if opt("stag", 0) & 2: poll_head(A, 62, 250)
    A(f"""
    s_lshl_b32 s44, s36, 1
    s_add_u32 s44, s44, s39
    s_mul_i32 s44, s44, {86*1024}
    s_mul_i32 s45, s38, {43*1024}
    s_add_u32 s44, s44, s45
    s_add_u32 s44, s44, {WS_ACT}
    """)
    if opt("two", 0):
        A(f"""
        s_mul_i32 s45, s38, {37*1024}
        s_sub_u32 s44, s44, s45
        s_add_u32 s45, s38, 84
        s_mul_i32 s51, s38, {6*1024}
        s_sub_u32 s{S_ACT2}, s44, s51
        s_lshl_b32 s45, s45, 10
        s_add_u32 s{S_ACT2}, s{S_ACT2}, s45
        s_mov_b32 s{S_ACT}, s44
        """)
    A(f"""
    v_lshlrev_b32 v4, 4, v1
    v_lshrrev_b32 v8, 3, v0
    v_and_b32 v9, 7, v0
    s_lshl_b32 s46, s36, 16
    s_lshl_b32 s47, s37, 7
    s_add_u32 s46, s46, s47
    s_add_u32 s46, s46, {WS_X1}
    s_add_u32 s48, s46, 32768
    v_lshlrev_b32 v10, 10, v8
    v_lshl_add_u32 v10, v9, 4, v10
    v_lshlrev_b32 v11, 5, v9
    s_lshl_b32 s47, s37, 8
    s_add_u32 s47, s47, {WS_MOD+5*2048}
    s_sub_u32 s49, 64, s36
    s_cmp_eq_u32 s36, 0
    s_cselect_b32 s49, 32, s49
    v_and_b32 v12, 1, v8
    v_cmp_ne_u32 vcc, 0, v12
    v_mov_b32 v12, s36
    v_mov_b32 v13, s49
    v_cndmask_b32 v12, v12, v13, vcc
    v_lshrrev_b32 v13, 1, v8
    v_lshl_add_u32 v12, v13, 6, v12
    v_lshlrev_b32 v12, 10, v12
    v_lshl_add_u32 v12, v9, 4, v12
    s_lshl_b32 s49, s37, 7
    s_add_u32 s50, s49, 0x100000
    v_bfe_u32 v6, v1, 2, 2
    v_bfe_u32 v7, v1, 5, 1
    v_lshl_add_u32 v7, v7, 2, v6
    v_lshlrev_b32 v7, 7, v7
    v_bfe_u32 v13, v1, 4, 1
    v_lshl_add_u32 v7, v13, 5, v7
    v_and_b32 v13, 3, v1
    v_lshl_add_u32 v7, v13, 3, v7
    s_lshl_b32 s41, s38, 11
    v_add_u32 v7, s41, v7
    v_bfe_u32 v13, v1, 3, 1
    v_lshlrev_b32 v13, 6, v13
    v_xor_b32 v6, v7, v13
    v_xor_b32 v7, 64, v6
    v_add_u32 v14, 0x10000, v6
    v_add_u32 v15, 0x10000, v7
    v_add_u32 v16, 0x20000, v6
    v_add_u32 v17, 0x20000, v7
    """)
    if opt("two", 0):
        A(f"v_mov_b32 v249, v250\nv_cmp_eq_u32 vcc, 15, v2\nv_cndmask_b32 v250, v2, 0, vcc\ns_lshr_b32 s51, s36, 1\ns_lshl_b32 s51, s51, 4\nv_add_u32 v250, s51, v250\nv_lshlrev_b32 v250, 7, v250\ns_mov_b32 s63, {WS_F3B}")

def wd_rest(A):
    for st_ in range(27, 40): A(*wd_op(st_, "dr"))
def wd_rest3(A):
    wd_rest(A)
    assert WD_ORDER[27:40] == list(range(13))
    A(f"s_lshl_b32 s74, s37, 7")
    for w in range(1, 4):
        sk = A.label("wr")
        A(f"s_cmp_lg_u32 s3, {w}\ns_cbranch_scc1 {sk}")
        for st_ in range(27 + w - 1, 40, 3):
            st = steps4()[st_] if opt("two", 0) else None
            row = (12*st[0] + st[1]) if st else st_
            A(f"s_mov_b32 m0, {WD_ORDER[st_]*4096}\ns_add_u32 s{S_T}, s74, {row*16384}\nbuffer_load_dwordx4 v{V_D}, {srd(S_WD)}, s{S_T} offen lds")
        A(f"{sk}:")

def k4_main(A):
    A.c('==== phase 4: out[64 x 64] = x1 + gate * (act @ w_down), K split over wave pairs, reduced through LDS ====')
    ACC, AF, NAF = 32, 64, 8
    XG = 96
    def act_op(k):
        if opt("two", 0):
            st = steps4()[k]
            if st is None: return (f"buffer_load_dwordx4 {a(4*k,4)}, v4, {srd(S_WS)}, s{S_ACT2} offen sc1", None)
            off = (12*st[0] + st[1])*1024
            prev = steps4()[k-1]
            t = ""
            if prev is None or ((12*prev[0] + prev[1])*1024) >> 12 != off >> 12:
                t = f"s_add_u32 s{S_AT}, s{S_ACT}, {off & ~0xfff}\n"
            return (t + f"buffer_load_dwordx4 {a(4*k,4)}, v4, {srd(S_WS)}, s{S_AT} offen offset:{off & 0xfff} sc1", None)
        t = "s_add_u32 s44, s44, 4096\n" if (k and k % 4 == 0) else ""
        if opt("rot", 0) and k and k % 4 == 0:
            t = f"s_mov_b32 s44, s{S_AE}\n" if k == 40 else t + f"s_cmp_eq_u32 s44, s{S_AE}\ns_cselect_b32 s44, s{S_AB}, s44\n"
        return (t + f"buffer_load_dwordx4 {a(4*k,4)}, v4, {srd(S_WS)}, s44 offen offset:{(k%4)*1024} {LDP('a')}", None)
    H0 = opt("a0", 12)
    for k in range(H0): A(act_op(k)[0])
    TL = opt("k4tail", 4)
    order4 = [(k, t) for k in range(43 - TL) for t in range(2)] + [(k, t) for t in range(2) for k in range(43 - TL, 43)]
    def frag_read(n):
        k, t = order4[n]
        ad = WD_ORDER[k]*4096
        base = (("v6", "v7"), ("v14", "v15"), ("v16", "v17"))[ad >> 16][t]
        off = ad & 0xffff
        b = AF + (n % NAF)*4
        return f"ds_read_b64_tr_b16 {v(b,2)}, {base} offset:{off}\nds_read_b64_tr_b16 {v(b+2,2)}, {base} offset:{off+1024}"
    two = opt("two", 0)
    nchk = opt("nchk", 12)
    if two:
        pb = A.label("pb")
        A(f"s_cmp_lg_u32 s3, 0\ns_cbranch_scc1 {pb}\nbuffer_load_dword v252, v249, {srd(S_WS)}, s63 offen sc1\n{pb}:", tag="spin")
    side = []
    n0 = 0
    for k in range(H0, 43):
        if two and k == NSA: n0 = max(n0, nchk + 1)
        side.append((n0, *act_op(k))); n0 += opt("astep", 1)
    PF = NAF - 2
    N = 86
    ts(A, "issued4")
    for n in range(PF): A(frag_read(n))
    RS = 272
    early = []
    for n in range(N):
        k, t = order4[n]
        if n % 2 == 0: A.touch_regs([("v", AF+((n+1)%NAF)*4+3)])
        A(f"v_mfma_f32_32x32x16_bf16 {v(ACC+16*t,16)}, {v(AF+(n%NAF)*4,4)}, {a(4*k,4)}, {v(ACC+16*t,16) if k else 0}")
        if n == 0: ts(A, "first4"); tc(A, "first4")
        if side and side[0][0] <= n:
            _, tx, tag = side.pop(0); A(tx, tag=tag)
        if two and n == nchk:
            assert side[0][0] > nchk
            pc, lp = A.label("pc"), A.label("pcl")
            A(f"""
            s_cmp_lg_u32 s3, 0
            s_cbranch_scc1 {pc}
            s_mov_b32 s{S_CNT}, 0
            s_waitcnt vmcnt({NSA - H0})
            {lp}:
            v_cmp_ne_u32 vcc, s{S_TOK}, v252
            s_add_u32 s{S_CNT}, s{S_CNT}, 1
            s_cmp_ge_u32 s{S_CNT}, {MAXPOLL}
            s_cbranch_scc1 {pc}
            s_cbranch_vccz {pc}
            buffer_load_dword v252, v249, {srd(S_WS)}, s63 offen sc1
            s_waitcnt vmcnt(0)
            s_branch {lp}
            {pc}:
            s_barrier
            """, tag="spin")
            ts(A, "sync3b")
        if n == 47:
            A.wait_tag("dr"); A("s_barrier")
            for st_ in range(40, 43): A(*wd_op(st_, "do"))
            A(f"buffer_load_dwordx4 {v(XG,4)}, v10, {srd(S_WS)}, s46 offen {LDP('x')}")
            A(f"buffer_load_dwordx4 {v(XG+4,4)}, v10, {srd(S_WS)}, s48 offen {LDP('x')}")
            A(f"buffer_load_dwordx4 {v(XG+8,4)}, v11, {srd(S_WS)}, s47 offen sc1")
            A(f"buffer_load_dwordx4 {v(XG+12,4)}, v11, {srd(S_WS)}, s47 offen offset:16 sc1")
        if n == 73:
            A.wait_tag("do"); A("s_barrier")
            A(f"""
            s_mul_i32 s51, s3, {32*RS}
            v_and_b32 v18, 31, v1
            v_mul_u32_u24 v18, {RS}, v18
            v_bfe_u32 v19, v1, 5, 1
            v_lshl_add_u32 v18, v19, 4, v18
            v_add_u32 v18, s51, v18
            v_mul_u32_u24 v19, {RS}, v8
            v_lshl_add_u32 v19, v9, 5, v19
            """)
        if n + PF < N: A(frag_read(n+PF))
        if TL >= 3 and n == N - TL + 1: early = list(range(4))
        if early and n >= N - TL + 1:
            for _ in range(-(-len(early) // (N - n))):
                j = early.pop(0); A(f"ds_write_b128 v18, {v(ACC+4*j,4)} offset:{j*32}")
    assert not side
    ts(A, "mfma4"); tc(A, "mfma4")
    XF = 112
    for it in range(2):
        for h in range(4): A(f"v_lshlrev_b32 v{XF+it*8+2*h}, 16, v{XG+it*4+h}\nv_and_b32 v{XF+it*8+2*h+1}, 0xffff0000, v{XG+it*4+h}")
    for t in range(1 if TL >= 3 else 0, 2):
        for j in range(4):
            A(f"ds_write_b128 v18, {v(ACC+16*t+4*j,4)} offset:{t*128+j*32}")
    A("s_waitcnt lgkmcnt(0)\ns_barrier")
    RD = 128
    for it in range(2):
        for kh in range(2):
            for hf in range(2):
                A(f"ds_read_b128 {v(RD+it*16+kh*8+hf*4,4)}, v19 offset:{(kh*64+it*32)*RS+hf*16}")
    for it in range(2):
        z = RD + it*16
        for h in range(4): A(f"v_pk_add_f32 {v(z+2*h,2)}, {v(z+2*h,2)}, {v(z+8+2*h,2)}")
        for h in range(4): A(f"v_pk_fma_f32 {v(z+2*h,2)}, {v(z+2*h,2)}, {v(XG+8+2*h,2)}, {v(XF+it*8+2*h,2)}")
        if opt("scale", 0):
            for h in range(8): A(f"v_mul_f32 v{z+h}, {fbits(1 + opt('scale', 0)/1000)}, v{z+h}")
        for h in range(4): A(f"v_cvt_pk_bf16_f32 v{z+8+h}, v{z+2*h}, v{z+2*h+1}")
        A(f"buffer_store_dwordx4 {v(z+8,4)}, v12, {srd(S_OUT)}, s{49+it} offen {opt('outsc', 'sc1')}")

def LOC(c): return "" if c in opt("loc", "") else "sc1"
def LDP(c): return opt("ldp", "nt") if c in opt("loc", "") else "sc1"
def PLP(c): return opt("plp", "nt") if c in opt("loc", "") else opt("pp", "sc1").replace("+", " ")
def flag_set(A, soff, keep=0, reset=True, c="-", w0extra=False):
    sk = A.label("fs")
    A.c("hand-off: all stores of the workgroup are complete -> wave 0 publishes this launch's token")
    if w0extra:
        l0, l1 = A.label("fw"), A.label("fx")
        A(f"s_cmp_eq_u32 s3, 0\ns_cbranch_scc1 {l0}\ns_waitcnt vmcnt(0)\ns_branch {l1}\n{l0}:\ns_waitcnt vmcnt(1)\n{l1}:")
        keep = 1
    A(f"""
    s_waitcnt vmcnt({keep}) lgkmcnt(0)
    s_barrier
    s_cmp_lg_u32 s3, 0
    s_cbranch_scc1 {sk}
    v_mov_b32 v250, 0
    v_mov_b32 v251, s{S_TOK}
    s_mov_b64 exec, 1
    buffer_store_dword v251, v250, {srd(S_WS)}, s{soff} offen {opt("fp", "sc1").replace("+", " ") if LOC(c) else ""}
    s_mov_b64 exec, -1
    {sk}:
    """)
    A.reset()

def late_prefetch(A, chunks, do_touch, nonln):
    n = 0
    if do_touch: touch(A, nonln=nonln); n += 3
    wchunks(A, chunks); n += 6*len(list(chunks))
    return n

def poll(A, kind, soff, others=None, after0=None):
    sk, lp, w0, jn = A.label("pk"), A.label("pl"), A.label("p0"), A.label("pj")
    A.c("hand-off: wave 0 waits (bounded) for the producers' tokens, the other waves prefetch weights")
    A(f"s_cmp_eq_u32 s3, 0\ns_cbranch_scc1 {w0}")
    if others: others(A)
    A(f"s_branch {jn}\n{w0}:\ns_mov_b32 s{S_CNT}, 0")
    shrink = opt("shrink", 1)
    slp = f"s_sleep {opt('slp', 0)}\n" if opt("slp", 0) else ""
    if kind == "l16": A("v_lshlrev_b32 v250, 7, v2")
    elif kind.startswith("s64"): A("v_lshlrev_b32 v250, 6, v1")
    NG = int(kind[-1]) if kind.startswith("s64") else 0
    if not NG:
        if shrink: A(f"s_mov_b64 exec, {'0xffffff' if kind == 'lst' else '0xffff'}")
        A(f"""
        {lp}:
        buffer_load_dword v252, v250, {srd(S_WS)}, s{soff} offen {PLP('h' if kind == 'l16' else 'a')}
        s_add_u32 s{S_CNT}, s{S_CNT}, 1
        s_waitcnt vmcnt(0)
        v_cmp_ne_u32 vcc, s{S_TOK}, v252
        s_cmp_ge_u32 s{S_CNT}, {MAXPOLL}
        s_cbranch_scc1 {sk}
        """)
        if shrink: A(f"s_and_b64 exec, exec, vcc\ns_cbranch_execz {sk}\n{slp}s_branch {lp}")
        else: A(f"{slp}s_cbranch_vccnz {lp}")
        A(f"{sk}:\ns_mov_b64 exec, -1")
    else:
        for j in range(1, 4): A(f"s_add_u32 s{71+j}, s{soff}, {j*4096}")
        if opt("pre1", 0):
            l1, d1 = A.label("p1"), A.label("p2")
            if opt("pre1", 0) == 2: A(f"s_cmp_lt_u32 s2, 128\ns_cbranch_scc1 {d1}")
            A(f"""
            s_and_b32 s92, s2, 127
            s_lshl_b32 s92, s92, 6
            s_add_u32 s92, s92, s{soff}
            v_mov_b32 v251, 0
            s_mov_b64 exec, 1
            {l1}:
            buffer_load_dword v252, v251, {srd(S_WS)}, s92 offen sc1
            s_add_u32 s{S_CNT}, s{S_CNT}, 1
            s_waitcnt vmcnt(0)
            v_cmp_ne_u32 vcc, s{S_TOK}, v252
            s_cmp_ge_u32 s{S_CNT}, {MAXPOLL}
            s_cbranch_scc1 {d1}
            s_cbranch_vccnz {l1}
            {d1}:
            s_mov_b64 exec, -1
            """)
        M = [84, 86, 88, 90]
        for j in range(4): A(f"s_mov_b64 s[{M[j]}:{M[j]+1}], {-1 if j < NG else 0}")
        A(f"{lp}:")
        for j in range(NG):
            sj = A.label("ps")
            A(f"s_mov_b64 exec, s[{M[j]}:{M[j]+1}]\ns_cbranch_execz {sj}")
            A(f"buffer_load_dword v{252+j}, v250, {srd(S_WS)}, s{soff if j == 0 else 71+j} offen {PLP('-')}\n{sj}:")
        A(f"s_add_u32 s{S_CNT}, s{S_CNT}, 1\ns_waitcnt vmcnt(0)")
        for j in range(NG):
            A(f"s_mov_b64 exec, s[{M[j]}:{M[j]+1}]\nv_cmp_ne_u32 s[{M[j]}:{M[j]+1}], s{S_TOK}, v{252+j}" if shrink else f"s_mov_b64 exec, -1\nv_cmp_ne_u32 s[92:93], s{S_TOK}, v{252+j}\ns_cmp_lg_u64 s[92:93], 0\ns_cselect_b64 s[{M[j]}:{M[j]+1}], -1, 0")
        A(f"""
        s_or_b64 s[92:93], s[84:85], s[86:87]
        s_or_b64 s[94:95], s[88:89], s[90:91]
        s_cmp_ge_u32 s{S_CNT}, {MAXPOLL}
        s_cbranch_scc1 {sk}
        s_or_b64 s[92:93], s[92:93], s[94:95]
        s_cbranch_scc0 {sk}
        {slp}s_branch {lp}
        {sk}:
        s_mov_b64 exec, -1
        """)
    A.reset()
    if after0: after0(A)
    A(f"{jn}:\ns_barrier")

def poll_head(A, soff, vaddr):
    sk = A.label("ph")
    A(f"s_cmp_lg_u32 s3, 0\ns_cbranch_scc1 {sk}\nbuffer_load_dword v253, v{vaddr}, {srd(S_WS)}, s{soff} offen sc1\n{sk}:", tag="spin")
def poll_stag(A, soff, vaddr, others=None):
    sk, lp, w0, jn = A.label("pk"), A.label("pl"), A.label("p0"), A.label("pj")
    A.c("hand-off: wave 0 waits (bounded) for the producers' tokens with two staggered reads in flight")
    A(f"s_cmp_eq_u32 s3, 0\ns_cbranch_scc1 {w0}")
    if others: others(A)
    A(f"""
    s_branch {jn}
    {w0}:
    s_mov_b32 s{S_CNT}, 0
    {lp}:
    buffer_load_dword v252, v{vaddr}, {srd(S_WS)}, s{soff} offen sc1
    s_waitcnt vmcnt(1)
    v_cmp_ne_u32 vcc, s{S_TOK}, v253
    s_add_u32 s{S_CNT}, s{S_CNT}, 1
    s_cbranch_vccz {sk}
    buffer_load_dword v253, v{vaddr}, {srd(S_WS)}, s{soff} offen sc1
    s_waitcnt vmcnt(1)
    v_cmp_ne_u32 vcc, s{S_TOK}, v252
    s_cmp_ge_u32 s{S_CNT}, {MAXPOLL}
    s_cbranch_scc1 {sk}
    s_cbranch_vccnz {lp}
    {sk}:
    """, tag="spin")
    A.reset()
    A(f"{jn}:\ns_barrier")

def build():
    A = Asm()
    name = NAME + "_kernel"
    kernel_begin(A, name)
    done = A.label("done")
    if TS: A("s_memrealtime s[62:63]\ns_waitcnt lgkmcnt(0)")
    entry(A, done)
    if TS:
        A("v_mov_b32 v248, 0\nv_writelane_b32 v248, s62, 0"); _ts["n"] = 1; _ts["names"] = ["entry"]
    m, i_, e = A.label("k1mod"), A.label("k1idle"), A.label("k1end")
    tok = f"s_waitcnt lgkmcnt(0)\ns_mul_i32 s{S_TOK}, s{S_TOK}, 0x9e3779b1\ns_add_u32 s{S_TOK}, s{S_TOK}, 0x7f4a7c15\ns_lshl_b32 s62, s2, 6\ns_add_u32 s62, s62, {WS_F1}"
    pfA = range(opt("pfA", 0)); tm = opt("touch", 11)
    A(f"s_cmp_ge_u32 s2, 128\ns_cbranch_scc1 {m}")
    k1_ln(A)
    ts(A, "stiss")
    if opt("lateset", 0): common_setup(A, 2, True)
    if tm == 9: touch(A, "gu")
    keep = (2 if tm == 9 else 0) + late_prefetch(A, pfA if opt("pfApos", 0) == 3 else [], tm == 5, False)
    A(tok); flag_set(A, 62, keep)
    A(f"s_branch {e}\n{m}:\ns_cmp_ge_u32 s2, 224\ns_cbranch_scc1 {i_}")
    A.reset()
    k1_mod(A)
    tsx(A, 62)
    A.reset()
    keep = late_prefetch(A, pfA if opt("pfMpos", 0) == 3 else [], tm in (5, 6), tm == 6)
    A(tok); flag_set(A, 62, keep)
    if tm == 4 and opt("tafter", 0): touch(A, nonln=True)
    A(f"s_branch {e}\n{i_}:")
    A.reset()
    if opt("karg", 0): A(KREST)
    A(small_srd(S_X, 2097152) + "\n" + small_srd(S_C, 1024) + "\ns_waitcnt lgkmcnt(0)")
    common_setup(A)
    A(tok); flag_set(A, 62, 63)
    if opt("idledelay", 0):
        A(f"v_lshlrev_b32 v4, 2, v0\nbuffer_load_dword v8, v4, {srd(S_C)}, 0 offen\ns_waitcnt vmcnt(0)")
    if tm == 7: touch_early(A)
    def pre_own(base, dst):
        A(f"""
        s_sub_u32 s38, s2, 224
        s_lshl_b32 s38, s38, 2
        s_add_u32 s38, s38, s3
        s_lshl_b32 s38, s38, 14
        s_add_u32 s38, s38, {base}
        s_add_u32 s39, s38, 8192
        v_lshlrev_b32 v235, 7, v1
        buffer_load_dword v{dst}, v235, {srd(S_WS)}, s38 offen
        buffer_load_dword v{dst+1}, v235, {srd(S_WS)}, s39 offen
        """)
    if opt("tu", 0): pre_own(WS_U, 230)
    if tm == 9: touch(A, "gu")
    if tm in (10, 11): touch(A, "gu", nonln=True)
    if opt("th2", 0): pre_own(WS_H2, 232)
    if tm in (2, 5): touch(A)
    if tm in (3, 4, 6): touch(A, nonln=True)
    wchunks(A, pfA)
    A(f"{e}:")
    A.reset()
    ts(A, "f1set")
    if opt("cpf", 0) & 1: A(code_pf_text(".Lk2code", 249, 48))
    k2_pre(A, (lambda: wchunks(A, range(opt("pfA", 0), opt("pfA", 0) + opt("pf1", 3)))) if not opt("prefirst", 1) and not opt("w3", 1) else None)
    if opt("touch", 11) == 7: touch_late_setup(A)
    if opt("touch", 11) == 7 and opt("tlate", 0) == 0: touch_late(A)
    ts(A, "pre")
    w3 = opt("w3", 1)
    if opt("prefirst", 1) and not w3: wchunks(A, range(opt("pfA", 0), opt("pfA", 0) + opt("pf1", 3)))
    A(f"s_mov_b32 s63, {WS_F1}")
    poll(A, "s64x2" if opt("sepmod", 1) else "s64x4", 63, others=(lambda A_: w3_chunks(A_, range(opt("pf1", 3)))) if w3 else None)
    A.reset()
    ts(A, "sync1")
    A(".Lk2code:")
    k2_main(A)
    ts(A, "stiss2")
    keep = late_prefetch(A, range(opt("pfA", 0) + opt("pf1", 3), opt("pfB", 4)) if opt("pfBpos", 2) == 3 else [], False, False)
    flag_set(A, 62, keep + (4 if opt("latex1", 2) == 1 else 0), c="h")
    ts(A, "f2set")
    if not opt("w3b", 0): wchunks(A, range(opt("pfB", 4), opt("pfB", 4) + opt("pf3", 2)))
    stag = opt("stag", 0)
    if stag & 1:
        A(rb_expr() + f"\ns_lshl_b32 s63, s36, 11\ns_add_u32 s63, s63, {WS_F2}\nv_lshlrev_b32 v247, 7, v2")
        poll_head(A, 63, 247)
    k3_pre(A)
    idle3 = A.label("k3idle")
    A(f"s_cmp_eq_u32 s37, 15\ns_cbranch_scc1 {idle3}")
    if stag & 1: poll_stag(A, 63, 247)
    else: poll(A, "l16", 62, others=(lambda A_: w3_chunks(A_, range(opt("pfB", 4), opt("pfB", 4) + opt("pf3", 2)))) if opt("w3b", 0) else None)
    A.reset()
    ts(A, "sync2")
    A(".Lk3code:")
    k3_main(A, idle3)
    if opt("two", 0): A(f"s_add_u32 s61, s61, {WS_F3B - WS_F3}")
    flag_set(A, 61, c="a", w0extra=bool(opt("two", 0)))
    ts(A, "f3set")
    k4_pre(A)
    if stag & 2: poll_stag(A, 62, 250, others=wd_rest3)
    else: poll(A, "lst", 62, others=wd_rest3 if opt("wr3", 1) else wd_rest, after0=None if opt("wr3", 1) else wd_rest)
    ts(A, "sync3")
    k4_main(A)
    sk = A.label("ep")
    A(f"""
    s_or_b32 s63, s2, s3
    s_cmp_lg_u32 s63, 0
    s_cbranch_scc1 {sk}
    v_mov_b32 v250, 0
    v_mov_b32 v251, s{S_TOK}
    s_mov_b32 s63, {WS_EP}
    s_mov_b64 exec, 1
    buffer_store_dword v251, v250, {srd(S_WS)}, s63 offen sc1
    s_mov_b64 exec, -1
    {sk}:
    """)
    ts(A, "end")
    probe_end(A)
    ts_flush(A)
    A(f"{done}:\n.Lend:\ns_endpgm")
    if opt("jit", 0):
        import random
        rnd = random.Random(opt("jit", 0)); out = []
        def delay():
            lb = A.label("jit")
            c = f"s_cmp_eq_u32 s3, {rnd.randrange(4)}\ns_cbranch_scc0 {lb}" if rnd.random() < 0.6 else f"s_bitcmp1_b32 s2, {rnd.randrange(8)}\ns_cbranch_scc0 {lb}"
            return [Ins(x) for x in (c + f"\ns_sleep {rnd.randrange(2, 40)}\n{lb}:").split("\n")]
        for I in A.ins:
            if I.op == "s_barrier":
                if rnd.random() < 0.7: out += delay()
                out.append(I)
                if rnd.random() < 0.7: out += delay()
            else: out.append(I)
        A.ins = out
    code = A.finalize()
    return [(None, (256,1,1), (256,1,1), LDS_TOTAL)], code, [kernel_desc(name, 256, 172)]

if __name__ == "__main__":
    hdr = [l.rstrip("\n") for l in open("cdna_kernels/%s.s.ref" % NAME) if l.startswith(";") and "@launch" not in l][:15]
    hdr += ["; " + l for l in """
One persistent launch, 256 workgroups (one per CU) of 4 waves, four phases separated by flag hand-offs in d_ws.
The two DFTs (constant cos / sin matrices) are evaluated as Cooley-Tukey factorisations on the matrix cores:
  rows 2048 = 64 x 32 (phase 1 / phase 2), columns 512 = 16 x 32 (phase 2); the row DFT is applied before the
  column modulation, which commutes with it (the shift only reaches output row 0).
Hand-offs: write-through (sc1) stores, drain, barrier, token store; consumers poll with sc1 loads.  The token is
derived from an epoch word in d_ws that workgroup 0 advances at the end, so stale flags of earlier launches never match.
Workgroup -> role maps assume id % 8 = die for L2 locality only; any placement is correct.
""".strip().split("\n")]
    out = sys.argv[1]
    for kv in sys.argv[2:]:
        k_, v_ = kv.split("=")
        OPT[k_] = int(v_) if v_.lstrip("-").isdigit() else v_
    TS = bool(opt("ts", 0)); PROBE = opt("probe", None)
    launches, code, descs = build()
    open(out, "w").write(file_text(hdr, launches, code, descs))
    if TS: json.dump([_ts["names"]], open(out[:-2] + ".json", "w"))
```

```python
import sys, struct, math, json
from asmlib import *

NAME = "adaLN_cond__spectral_fnet__swiglu_ffn__prompt"
def fbits(x): return "0x%08x" % struct.unpack("<I", struct.pack("<f", x))[0]
OPT = {}
def opt(k, d): return OPT.get(k, d)

WS_U   = 0
WS_MOD = 0x240000
WS_H2  = 0x300000
WS_X1  = 0x500000
WS_ACT = 0x800000
WS_FLG = 0xE00000
WS_TS  = 0xF00000
WS_SIZE = 0x1000000
WS_EP  = WS_FLG
WS_F1  = WS_FLG + 0x1000
WS_F2  = WS_FLG + 0x10000
WS_F3  = WS_FLG + 0x20000
def SLOTSTR(): return 65536 + opt("upad", 0)
def HBS(): return 1088 if opt("hbsw", 1) else 1040
def USLOT(): return 512 if opt("upm", 0) else SLOTSTR()
def UOCT(): return 16384 if opt("upm", 0) else 512
def UN2(): return 65536 + opt("upad", 0) if opt("upm", 0) else 2048
MAXPOLL = int(__import__('os').environ.get('MAXPOLL', '60000'))
LDS_TOTAL = 163840
SLOT = 24640; UOFF = 12320
XCS = 1040
XWS = 16 * XCS
XIMG = LDS_TOTAL - 4 * XWS
XTAB = XIMG - 384
MW = XIMG
MSC = MW + 32768
MRED = MSC + 1024
K2EX = 123200
K2HB = K2EX + 18432
S_X, S_WG, S_WU, S_WD, S_C, S_WM, S_OUT, S_WS = 4, 8, 12, 16, 20, 24, 28, 32
S_TOK, S_CNT, S_SL, S_WL, S_DG, S_DL, S_T, S_T2 = 64, 65, 66, 67, 68, 69, 70, 75
V_W = 240
V_D = 243
def srd(b): return s(b, 4)
LOG2E = fbits(-math.log2(math.e))

TS = False
PROBE = None
_ts = {"n": 0, "names": []}
def ts(A, name=None, cyc=False):
    if not TS: return
    if opt("tsonly", None) and name not in opt("tsonly", "").split("+") and name not in ("f1set", "end"): return
    n = _ts["n"]; _ts["n"] += 1
    _ts["names"].append(("c:" if cyc else "") + name)
    A(f"{'s_memtime' if cyc else 's_memrealtime'} s[98:99]\ns_waitcnt lgkmcnt(0)\nv_writelane_b32 v248, s98, {n}")
def tsx(A, lane):
    if TS: A(f"s_memrealtime s[98:99]\ns_waitcnt lgkmcnt(0)\nv_writelane_b32 v248, s98, {lane}")
def tc(A, name=None): ts(A, name, True)
def probe_end(A):
    if PROBE is None: return
    lp = A.label("pr")
    idx = _ts["names"].index(PROBE)
    A(f"""
    s_waitcnt vmcnt(0) lgkmcnt(0)
    v_readlane_b32 s90, v248, 0
    v_readlane_b32 s91, v248, {idx}
    s_nop 4
    s_sub_u32 s91, s91, s90
    s_cmp_gt_u32 s91, 20000
    s_cselect_b32 s91, 0, s91
    s_add_u32 s91, s91, 6000
    {lp}:
    s_memrealtime s[92:93]
    s_waitcnt lgkmcnt(0)
    s_sub_u32 s92, s92, s90
    s_cmp_lt_u32 s92, s91
    s_cbranch_scc1 {lp}
    """)
def ts_flush(A):
    if not TS: return
    sk = A.label("tsk")
    A(f"s_waitcnt vmcnt(0) lgkmcnt(0)\ns_cmp_lg_u32 s3, 0\ns_cbranch_scc1 {sk}")
    A(f"s_lshl_b32 s64, s2, 8\ns_add_u32 s64, s64, {WS_TS}\nv_lshlrev_b32 v1, 2, v1")
    A(f"buffer_store_dword v248, v1, {srd(S_WS)}, s64 offen")
    A(f"s_waitcnt vmcnt(0)\n{sk}:")

def bf16r(A, dst, src):
    A(f"v_cvt_pk_bf16_f32 {dst}, {src}, {src}\nv_lshlrev_b32 {dst}, 16, {dst}")

_lbl = [None, 0]
def SLBL():
    _lbl[1] += 1; _lbl[0] = f".sl_{_lbl[1]}"; return _lbl[0]
def sl_expr(d=38, t=39):
    if opt("T", 4) == 2:
        return f"s_lshr_b32 s{d}, s2, 4"
    if opt("T", 4) == 4 and opt("bal", 0):
        return f"s_and_b32 s{d}, s2, 1\ns_mul_i32 s{d}, s{d}, 7\ns_lshr_b32 s{t}, s2, 5\ns_add_u32 s{d}, s{d}, s{t}\ns_cmp_eq_u32 s{t}, 7\ns_cbranch_scc0 {SLBL()}\ns_and_b32 s{d}, s2, 1\ns_add_u32 s{d}, s{d}, 14\n{_lbl[0]}:"
    if opt("T", 4) == 4:
        return f"s_and_b32 s{d}, s2, 1\ns_lshl_b32 s{d}, s{d}, 3\ns_lshr_b32 s{t}, s2, 5\ns_add_u32 s{d}, s{d}, s{t}"
    return f"s_and_b32 s{d}, s2, 3\ns_lshl_b32 s{d}, s{d}, 2\ns_lshr_b32 s{t}, s2, 6\ns_add_u32 s{d}, s{d}, s{t}"
def rb_expr():
    if opt("T", 4) == 2:
        return "s_and_b32 s36, s2, 7\ns_lshl_b32 s36, s36, 1\ns_bfe_u32 s39, s2, 0x10003\ns_add_u32 s36, s36, s39"
    if opt("T", 4) == 4:
        return "s_bfe_u32 s36, s2, 0x20001\ns_lshl_b32 s36, s36, 2\ns_bfe_u32 s39, s2, 0x20003\ns_add_u32 s36, s36, s39"
    return "s_bfe_u32 s36, s2, 0x10002\ns_lshl_b32 s36, s36, 3\ns_bfe_u32 s39, s2, 0x30003\ns_add_u32 s36, s36, s39"
KREST = """s_load_dwordx2 s[24:25], s[0:1], 80
    s_load_dwordx2 s[20:21], s[0:1], 72
    s_load_dwordx2 s[32:33], s[0:1], 104
    s_load_dwordx2 s[8:9], s[0:1], 48
    s_load_dwordx2 s[12:13], s[0:1], 56
    s_load_dwordx2 s[16:17], s[0:1], 64
    s_load_dwordx2 s[28:29], s[0:1], 88"""
def entry(A, done):
    A.c('---- entry: over-launched workgroups leave; kernel-argument loads; code prefetch into L2 ----')
    CP = opt("codepf", 1)
    A(f"""
    s_cmp_ge_u32 s2, 256
    s_cbranch_scc1 {done}
    s_load_dwordx2 s[4:5], s[0:1], 0
    {"" if opt("karg", 0) else KREST}
    v_lshrrev_b32 v2, 6, v0
    v_and_b32 v1, 63, v0
    v_readfirstlane_b32 s3, v2
    """)
    if CP and not opt("cppos", 1): code_prefetch(A)
    A("v_and_b32 v2, 15, v0\nv_bfe_u32 v3, v0, 4, 2")

def code_prefetch(A):
    if True:
        A(f"""
        s_getpc_b64 s[40:41]
        s_and_b32 s40, s40, 0xffffff00
        s_lshr_b32 s42, s2, 3
        s_lshl_b32 s42, s42, 2
        s_add_u32 s42, s42, s3
        s_and_b32 s42, s42, {opt("cpmask", 15)}
        s_lshl_b32 s42, s42, 11
        v_and_b32 v250, 15, v0
        v_lshlrev_b32 v250, 7, v250
        v_add_u32 v250, s42, v250
        v_min_u32 v250, .Lend-{NAME}_kernel, v250
        global_load_dword v249, v250, s[40:41]
        """.replace("s42", "s74" if opt("cppos", 1) else "s42").replace("s[40:41]", "s[72:73]" if opt("cppos", 1) else "s[40:41]").replace("s40", "s72" if opt("cppos", 1) else "s40"))

def common_setup(A, part=3, ln=False):
    if part & 1: common_early(A, ln)
    if part & 2: common_late(A, ln)
def common_early(A, ln=False):
    if opt("codepf", 1) and opt("cppos", 1) and not (ln and opt("cppos", 1) == 2): code_prefetch(A)
    for b, sz in ((S_WG, 1409024), (S_WU, 1409024), (S_WD, 1409024), (S_OUT, 2097152), (S_WS, WS_SIZE)):
        A(f"s_mov_b32 s{b+2}, {sz}\ns_mov_b32 s{b+3}, 0x20000")
    A(f"s_add_u32 s72, s32, {WS_EP}\ns_addc_u32 s73, s33, 0\ns_load_dword s{S_TOK}, s[72:73], 0")
def common_late(A, ln):
    A(f"""
    {sl_expr(72, 73)}
    s_mul_i32 s{S_SL}, s72, 192
    s_cmp_eq_u32 s72, 15
    s_cselect_b32 s{S_SL}, 0x200000, s{S_SL}
    s_mul_i32 s{S_WL}, s3, 3072
    s_mul_i32 s72, s3, 192
    s_mov_b32 s73, 0x15555556
    """)
    for i in range(3):
        A(f"""
        v_add_u32 v{V_W+i}, s72, v1
        v_add_u32 v{V_W+i}, {64*i}, v{V_W+i}
        v_mul_hi_u32 v244, v{V_W+i}, s73
        v_mul_u32_u24 v245, 12, v244
        v_sub_u32 v{V_W+i}, v{V_W+i}, v245
        v_lshlrev_b32 v{V_W+i}, 4, v{V_W+i}
        v_mul_u32_u24 v244, 2752, v244
        v_add_u32 v{V_W+i}, v{V_W+i}, v244
        """)
    if opt("tlb", 0):
        A(f"""
        v_lshlrev_b32 v239, {opt("tlb", 0)}, v1
        v_add_u32 v239, 0x2ff000, v239
        v_min_u32 v239, {WS_SIZE - 64}, v239
        buffer_load_dword v235, v239, {srd(S_WS)}, 0 offen
        v_mov_b32 v239, 0
        buffer_load_dword v234, v239, {srd(S_OUT)}, 0 offen
        """)
    if not ln and opt("touch", 11) in (1, 2, 3, 4, 5, 6, 8, 9, 10, 11): touch_setup(A, opt("touch", 11) in (3, 4, 6, 10, 11))
V_W3 = 224
def w3_setup(A):
    A(f"s_sub_u32 s72, s3, 1\ns_lshl_b32 s96, s72, 12\ns_lshl_b32 s72, s72, 8\ns_mov_b32 s73, 0x15555556")
    for i in range(4):
        A(f"""
        v_add_u32 v{V_W3+i}, s72, v1
        v_add_u32 v{V_W3+i}, {64*i}, v{V_W3+i}
        v_mul_hi_u32 v244, v{V_W3+i}, s73
        v_mul_u32_u24 v245, 12, v244
        v_sub_u32 v{V_W3+i}, v{V_W3+i}, v245
        v_lshlrev_b32 v{V_W3+i}, 4, v{V_W3+i}
        v_mul_u32_u24 v244, 2752, v244
        v_add_u32 v{V_W3+i}, v{V_W3+i}, v244
        """)
def w3_chunks(A, chunks):
    w3_setup(A)
    for ch in chunks:
        A(f"s_add_u32 s{S_T2}, s{S_SL}, {ch*64*2752}")
        for mtx, sr in ((0, S_WG), (1, S_WU)):
            for i in range(4):
                A(f"s_add_u32 m0, s96, {ch*SLOT+mtx*UOFF+i*1024}\nbuffer_load_dwordx4 v{V_W3+i}, {srd(sr)}, s{S_T2} offen lds")
def code_pf_text(label, dst, nlines=64):
    here = f".Lpc_{label.strip('.')}"
    return f"""s_getpc_b64 s[72:73]
    {here}:
    s_add_u32 s72, s72, {label}-{here}
    s_addc_u32 s73, s73, 0
    v_min_u32 v{dst}, {nlines-1}, v1
    v_lshlrev_b32 v{dst}, 7, v{dst}
    v_min_u32 v{dst}, .Lend-{label}, v{dst}
    global_load_dword v{dst}, v{dst}, s[72:73]"""
def small_srd(b, sz): return f"s_mov_b32 s{b+2}, {sz}\ns_mov_b32 s{b+3}, 0x20000"

def touch_setup(A, nonln=False):
    n = 22 if nonln else 11
    A(f"""
    s_lshl_b32 s{S_T}, s2, 2
    s_add_u32 s{S_T}, s{S_T}, s3
    s_and_b32 s{S_T}, s{S_T}, {511 if nonln else 1023}
    s_mul_i32 s{S_T}, s{S_T}, {n}
    v_min_u32 v246, {n-1}, v1
    v_add_u32 v246, s{S_T}, v246
    v_lshlrev_b32 v246, 7, v246
    """)
def touch(A, which="gud", nonln=False):
    pol = opt("tpol", "")
    A(f"s_mov_b64 exec, {hex((1 << (22 if nonln else 11)) - 1)}")
    if "g" in which: A(f"buffer_load_dword v236, v246, {srd(S_WG)}, 0 offen {pol}")
    if "u" in which: A(f"buffer_load_dword v237, v246, {srd(S_WU)}, 0 offen {pol}")
    if "d" in which: A(f"buffer_load_dword v238, v246, {srd(S_WD)}, 0 offen {pol}")
    A("s_mov_b64 exec, -1")

def touch_early(A):
    rows = 64 * opt("terows", 5)
    n = (rows * 2752 // 128 + 127) // 128
    A(f"""
    s_sub_u32 s38, s2, 224
    s_lshl_b32 s38, s38, 2
    s_add_u32 s38, s38, s3
    s_mul_i32 s38, s38, {n}
    v_min_u32 v246, {n-1}, v1
    v_add_u32 v246, s38, v246
    v_lshlrev_b32 v246, 7, v246
    buffer_load_dword v247, v246, {srd(S_WG)}, 0 offen
    buffer_load_dword v245, v246, {srd(S_WU)}, 0 offen
    """)
    for j in range(1, (n + 63) // 64):
        A(f"""
        v_add_u32 v244, {64*j}, v1
        v_min_u32 v244, {n-1}, v244
        v_add_u32 v244, s38, v244
        v_lshlrev_b32 v244, 7, v244
        buffer_load_dword v239, v244, {srd(S_WG)}, 0 offen
        buffer_load_dword v238, v244, {srd(S_WU)}, 0 offen
        """)
def touch_late_setup(A):
    rows0 = 64 * opt("terows", 5)
    n = ((512 - rows0) * 2752 // 128 + 1023) // 1024
    A(f"""
    s_lshl_b32 s{S_T}, s2, 2
    s_add_u32 s{S_T}, s{S_T}, s3
    s_mul_i32 s71, s{S_T}, 11
    s_mul_i32 s{S_T}, s{S_T}, {n}
    s_add_u32 s{S_T}, s{S_T}, {rows0*2752//128}
    v_min_u32 v246, {max(n-1,0)}, v1
    v_add_u32 v246, s{S_T}, v246
    v_lshlrev_b32 v246, 7, v246
    v_min_u32 v247, 10, v1
    v_add_u32 v247, s71, v247
    v_lshlrev_b32 v247, 7, v247
    """)
def touch_late(A):
    A(f"""
    s_mov_b64 exec, 0x7ff
    buffer_load_dword v245, v246, {srd(S_WG)}, 0 offen
    buffer_load_dword v244, v246, {srd(S_WU)}, 0 offen
    buffer_load_dword v246, v247, {srd(S_WD)}, 0 offen
    s_mov_b64 exec, -1
    """)

def wchunk_ops(chunk, slot, tag):
    ops = []
    for mtx, sr in ((0, S_WG), (1, S_WU)):
        for i in range(3):
            t = f"s_add_u32 m0, s{S_WL}, {slot*SLOT+mtx*UOFF+i*1024}\n"
            if mtx == 0 and i == 0: t += f"s_add_u32 s{S_T2}, s{S_SL}, {chunk*64*2752}\n"
            t += f"buffer_load_dwordx4 v{V_W+i}, {srd(sr)}, s{S_T2} offen {opt('wpol','')} lds"
            ops.append((t, tag))
    return ops
def wchunks(A, chunks):
    for ch in chunks:
        for t, tag in wchunk_ops(ch, ch, f"w{ch}"): A(t, tag=tag)

def k1_ln(A):
    A.c('==== phase 1a (workgroups 0..127): LayerNorm-1 statistics of 64 rows n = 32*n1 + n2 and the 64-point DFT over n1 ====\nrows -> LDS (DMA), sum / sum of squares by MFMA, U[slot][n2][d] = sum_n1 W64^(n1*slot) * r[n1] * (x - mean) -> workspace')
    A(f"""
    s_and_b32 s38, s2, 7
    s_lshr_b32 s39, s2, 3
    s_lshr_b32 s40, s39, 2
    s_lshl_b32 s40, s40, 3
    s_add_u32 s36, s38, s40
    s_and_b32 s37, s39, 3
    v_lshrrev_b32 v4, 2, v1
    v_sub_u32 v5, 0, v3
    v_xor_b32 v5, v5, v1
    v_and_b32 v5, 3, v5
    v_lshlrev_b32 v4, 15, v4
    v_lshl_add_u32 v4, v5, 4, v4
    s_lshl_b32 s38, s3, 9
    s_add_u32 s38, s38, s36
    s_lshl_b32 s38, s38, 10
    s_mul_i32 s39, s3, {XWS}
    s_add_u32 s39, s39, {XIMG}
    {small_srd(S_X, 2097152)}
    s_waitcnt lgkmcnt(0)
    """)
    ts(A, "prolog")
    for i in range(16):
        A(f"s_add_u32 m0, s39, {i*(XCS-64)}")
        A(f"buffer_load_dwordx4 v4, {srd(S_X)}, s38 offen offset:{i*64} {opt('xpol','')} lds", tag=f"x{i}")
    if opt("karg", 0): A(KREST + "\ns_waitcnt lgkmcnt(0)")
    common_setup(A, 1 if opt("lateset", 0) else 3, True)
    BC, NV = 16, 48
    A("""
    v_lshlrev_b32 v5, 3, v3
    v_cvt_f32_u32 v5, v5
    s_and_b32 s40, s3, 1
    s_lshl_b32 s40, s40, 4
    v_add_u32 v6, s40, v2
    v_cmp_eq_u32 vcc, 0, v6
    v_cvt_f32_u32 v6, v6
    v_mul_f32 v6, 0x3c800000, v6
    v_mov_b32 v8, 0x3e800000
    v_cndmask_b32 v9, v6, 0.5, vcc
    v_cndmask_b32 v10, v8, 0, vcc
    """)
    for ks in range(2):
        for j in range(8):
            A(f"v_add_f32 v{NV}, {fbits(32*ks+j)}, v5\nv_mul_f32 v{BC+ks*8+j}, v{NV}, v6\nv_fma_f32 v{BC+16+ks*8+j}, v{NV}, v9, v10")
    for i in range(32): A(f"v_cos_f32 v{BC+i}, v{BC+i}")
    ONES, G, SA = 112, 116, 120
    for i in range(4): A(f"v_mov_b32 v{ONES+i}, 0x3f803f80")
    A(f"""
    v_lshrrev_b32 v5, 2, v2
    v_sub_u32 v5, 0, v5
    v_xor_b32 v5, v5, v3
    v_and_b32 v5, 3, v5
    v_lshlrev_b32 v5, 4, v5
    v_lshl_add_u32 v5, v2, 6, v5
    v_add_u32 v5, s39, v5
    v_lshrrev_b32 v6, 1, v3
    v_mul_u32_u24 v6, {XWS}, v6
    v_and_b32 v7, 3, v1
    v_mul_u32_u24 v7, {XCS}, v7
    v_add_u32 v6, v6, v7
    v_and_b32 v7, 1, v3
    v_lshl_add_u32 v6, v7, 9, v6
    v_bfe_u32 v8, v1, 2, 2
    v_lshl_add_u32 v6, v8, 6, v6
    s_lshr_b32 s41, s3, 1
    s_mul_i32 s42, s41, {8*XCS}
    s_add_u32 s42, s42, {XIMG}
    v_add_u32 v6, s42, v6
    v_lshlrev_b32 v7, 1, v7
    v_xor_b32 v8, s37, v7
    v_lshl_add_u32 v11, v8, 4, v6
    v_xor_b32 v8, 3, v8
    v_lshl_add_u32 v12, v8, 4, v6
    v_add_u32 v12, 256, v12
    s_lshl_b32 s42, s3, 6
    s_add_u32 s42, s42, {XTAB}
    v_lshl_add_u32 v7, v2, 2, s42
    s_lshl_b32 s42, s3, 5
    s_add_u32 s42, s42, {XTAB+256}
    v_lshl_add_u32 v13, v2, 1, s42
    v_lshlrev_b32 v8, 5, v3
    v_add_u32 v8, {XTAB}, v8
    v_lshlrev_b32 v14, 4, v3
    v_add_u32 v14, {XTAB+256}, v14
    s_mov_b32 s42, 0x22222222
    s_mov_b32 s43, 0x22222222
    s_mov_b32 s44, 0x44444444
    s_mov_b32 s45, 0x44444444
    s_mov_b32 s46, 0x88888888
    s_mov_b32 s47, 0x88888888
    v_add_u32 v9, s40, v2
    v_mul_u32_u24 v9, {USLOT()}, v9
    v_lshl_add_u32 v9, v3, 4, v9
    s_mul_i32 s48, s36, {UN2()}
    s_mul_i32 s49, s37, {UOCT()}
    s_add_u32 s48, s48, s49
    s_lshl_b32 s49, s41, 7
    s_add_u32 s48, s48, s49
    s_add_u32 s48, s48, {WS_U}
    """)
    ts(A, "const")
    R = 48
    pfl = [op for ch in range(opt("pfA", 0)) for op in wchunk_ops(ch, ch, f"w{ch}")] if opt("pfApos", 0) == 2 else []
    for i in range(16):
        A.wait_tag(f"x{i}")
        A(f"ds_read_b128 {v(R+4*i,4)}, v5 offset:{i*XCS}")
        for _ in range(2 if i >= 14 - len(pfl)//2 + 7 else 1):
            if pfl and i >= opt("pfAi", 2): A(*pfl.pop(0))
        if i >= 1:
            k = i - 1
            A(f"v_mfma_f32_16x16x32_bf16 {v(G,4)}, {v(R+4*k,4)}, {v(R+4*k,4)}, {v(G,4) if k else 0}")
            A(f"v_mfma_f32_16x16x32_bf16 {v(SA,4)}, {v(ONES,4)}, {v(R+4*k,4)}, {v(SA,4) if k else 0}")
    A("s_barrier")
    late_pf = pfl
    A(f"v_mfma_f32_16x16x32_bf16 {v(G,4)}, {v(R+60,4)}, {v(R+60,4)}, {v(G,4)}")
    A(f"v_mfma_f32_16x16x32_bf16 {v(SA,4)}, {v(ONES,4)}, {v(R+60,4)}, {v(SA,4)}")
    ts(A, "xarr")
    if opt("touch", 11) == 2: touch(A)
    if opt("pfA", 0) and opt("pfApos", 0) == 1: wchunks(A, range(opt("pfA", 0)))
    X = 128
    for tl in range(4):
        for ks in range(2):
            b = X + (tl*2+ks)*4
            off = ks*2*XWS + (tl >> 1)*4*XCS + 8*(tl & 1)
            A(f"ds_read_b64_tr_b16 {v(b,2)}, v11 offset:{off}\nds_read_b64_tr_b16 {v(b+2,2)}, v12 offset:{off}")
    A(f"""
    v_cndmask_b32 v10, v{G}, v{G+1}, s[42:43]
    v_cndmask_b32 v10, v10, v{G+2}, s[44:45]
    v_cndmask_b32 v10, v10, v{G+3}, s[46:47]
    v_mul_f32 v15, 0xbb000000, v{SA}
    v_mul_f32 v10, 0x3b000000, v10
    v_fma_f32 v10, -v15, v15, v10
    v_max_f32 v10, 0, v10
    v_cvt_pk_bf16_f32 v15, v15, v10
    v_and_b32 v10, 0xffff0000, v15
    v_add_f32 v10, {fbits(1e-5)}, v10
    """)
    bf16r(A, "v10", "v10")
    A("v_sqrt_f32 v10, v10")
    bf16r(A, "v10", "v10")
    A("""
    v_rcp_f32 v10, v10
    s_mov_b32 exec_lo, 0x00f0000f
    s_mov_b32 exec_hi, 0xf0000f00
    ds_write_b16 v13, v15
    ds_write_b32 v7, v10
    s_mov_b64 exec, -1
    s_waitcnt lgkmcnt(0)
    s_barrier
    """)
    ts(A, "stats")
    for op in late_pf: A(*op)
    TR, AM, BP, CM, ACC, PK = 48, 64, 72, 88, 160, 96
    for ks in range(2):
        for hf in range(2): A(f"ds_read_b128 {v(TR+ks*8+hf*4,4)}, v8 offset:{ks*128+hf*16}")
        A(f"ds_read_b128 {v(AM+ks*4,4)}, v14 offset:{ks*64}")
    for ks in range(2):
        for c in range(2):
            for jj in range(4):
                b = BC + c*16 + ks*8 + 2*jj
                A(f"v_pk_mul_f32 {v(b,2)}, {v(b,2)}, {v(TR+ks*8+2*jj,2)}")
            for jj in range(4):
                b = BC + c*16 + ks*8 + 2*jj
                A(f"v_cvt_pk_bf16_f32 v{BP+(c*2+ks)*4+jj}, v{b}, v{b+1}")
    for ks in range(2):
        for c in range(2):
            A(f"v_mfma_f32_16x16x32_bf16 {v(CM+4*c,4)}, {v(AM+ks*4,4)}, {v(BP+(c*2+ks)*4,4)}, {v(CM+4*c,4) if ks else 0}")
    for tl in range(4):
        for c in range(2):
            acc = ACC + (tl*2+c)*4
            A(f"v_mfma_f32_16x16x32_bf16 {v(acc,4)}, {v(X+(tl*2)*4,4)}, {v(BP+(c*2)*4,4)}, {v(CM+4*c,4)}")
        for c in range(2):
            acc = ACC + (tl*2+c)*4
            A(f"v_mfma_f32_16x16x32_bf16 {v(acc,4)}, {v(X+(tl*2+1)*4,4)}, {v(BP+(c*2+1)*4,4)}, {v(acc,4)}")
        if tl >= 1: k1_store(A, tl-1, ACC, PK)
    k1_store(A, 3, ACC, PK)

def k1_store(A, tl, ACC, PK):
    acc = ACC + tl*8; pk = PK + tl*4
    for r in range(4): A(f"v_cvt_pk_bf16_f32 v{pk+r}, v{acc+r}, v{acc+4+r}")
    A(f"buffer_store_dwordx4 {v(pk,4)}, v9, {srd(S_WS)}, s48 offen offset:{(tl&1)*256+(tl>>1)*64} sc1", tag="st")

def k1_mod(A):
    if opt("karg", 0): A(KREST)
    A.c('==== phase 1b (workgroups 128..223): mod = silu(c) @ w_mod, 32 columns per workgroup ====')
    A(f"""
    s_and_b32 s38, s2, 7
    s_lshr_b32 s39, s2, 3
    s_mul_i32 s38, s38, 12
    s_add_u32 s36, s38, s39
    s_sub_u32 s36, s36, 16
    v_lshlrev_b32 v4, 2, v0
    {small_srd(S_C, 1024)}
    {small_srd(S_WM, 3145728)}
    {small_srd(S_X, 2097152)}
    v_lshrrev_b32 v5, 2, v1
    v_mul_u32_u24 v5, 6144, v5
    v_and_b32 v6, 3, v1
    v_lshl_add_u32 v5, v6, 4, v5
    s_mul_i32 s38, s3, {128*6144}
    s_lshl_b32 s39, s36, 6
    s_add_u32 s38, s38, s39
    s_lshl_b32 s39, s3, 13
    s_add_u32 s39, s39, {MW}
    s_waitcnt lgkmcnt(0)
    buffer_load_dword v8, v4, {srd(S_C)}, 0 offen
    """)
    if opt("touch", 11) == 3: touch(A, nonln=True)
    if opt("moddelay", 0): A("v_mov_b32 v8, v8")
    for i in range(8):
        A(f"s_add_u32 m0, s39, {i*1024}")
        if i: A(f"s_add_u32 s38, s38, {16*6144}")
        A(f"buffer_load_dwordx4 v5, {srd(S_WM)}, s38 offen {opt('mpol','nt')} lds", tag="wm")
    common_setup(A)
    A(f"""
    v_bfe_u32 v6, v1, 2, 2
    v_lshl_add_u32 v6, v3, 3, v6
    v_lshlrev_b32 v6, 6, v6
    v_and_b32 v7, 3, v1
    v_lshl_add_u32 v6, v7, 3, v6
    v_add_u32 v6, s39, v6
    v_add_u32 v4, {MSC}, v4
    s_lshl_b32 s40, s3, 8
    s_add_u32 s40, s40, {MSC}
    v_lshl_add_u32 v7, v3, 4, s40
    v_lshlrev_b32 v9, 16, v8
    v_and_b32 v10, 0xffff0000, v8
    v_mul_f32 v11, {LOG2E}, v9
    v_mul_f32 v12, {LOG2E}, v10
    v_exp_f32 v11, v11
    v_exp_f32 v12, v12
    v_add_f32 v11, 1.0, v11
    v_add_f32 v12, 1.0, v12
    v_rcp_f32 v11, v11
    v_rcp_f32 v12, v12
    v_mul_f32 v9, v9, v11
    v_mul_f32 v10, v10, v12
    v_cvt_pk_bf16_f32 v9, v9, v10
    ds_write_b32 v4, v9
    """)
    SF, WF, ACC = 16, 32, 64
    A("s_waitcnt lgkmcnt(0)")
    tsx(A, 60)
    for ks in range(4): A(f"ds_read_b128 {v(SF+4*ks,4)}, v7 offset:{ks*64}")
    A(f"""
    v_and_b32 v10, 31, v1
    s_lshr_b32 s40, s36, 4
    s_and_b32 s41, s36, 15
    s_lshl_b32 s41, s41, 5
    v_add_u32 v10, s41, v10
    v_lshrrev_b32 v15, 8, v10
    v_lshlrev_b32 v15, 8, v15
    v_bfe_u32 v72, v10, 2, 2
    v_lshl_add_u32 v15, v72, 6, v15
    v_bfe_u32 v72, v10, 4, 4
    v_lshl_add_u32 v15, v72, 2, v15
    v_and_b32 v72, 3, v10
    v_add_u32 v15, v15, v72
    v_bfe_u32 v72, v10, 3, 2
    v_lshlrev_b32 v73, 7, v72
    v_bfe_u32 v72, v10, 7, 2
    v_lshl_add_u32 v73, v72, 5, v73
    v_and_b32 v72, 7, v10
    v_lshl_add_u32 v73, v72, 2, v73
    v_bfe_u32 v72, v10, 5, 2
    v_add_u32 v73, v73, v72
    s_cmp_lt_u32 s40, 2
    s_cselect_b64 vcc, -1, 0
    v_cndmask_b32 v15, v15, v73, vcc
    s_cmp_eq_u32 s40, 5
    s_cselect_b64 vcc, -1, 0
    v_cndmask_b32 v10, v15, v10, vcc
    v_lshlrev_b32 v10, 2, v10
    s_lshl_b32 s41, s40, 11
    s_add_u32 s41, s41, {WS_MOD}
    s_cmp_eq_u32 s40, 1
    s_cselect_b32 s42, 1.0, 0
    s_cmp_eq_u32 s40, 4
    s_cselect_b32 s42, 1.0, s42
    s_lshl_b32 s43, s3, 7
    s_add_u32 s43, s43, {MRED}
    v_lshl_add_u32 v9, v2, 2, s43
    s_sub_u32 s44, s40, 3
    s_cmp_lt_u32 s44, 2
    s_cselect_b32 s43, {fbits(math.log2(math.e))}, 1.0
    s_cmp_eq_u32 s40, 5
    s_cselect_b32 s43, {fbits(1/math.log2(math.e)**2)}, s43
    v_and_b32 v74, 31, v1
    v_lshlrev_b32 v74, 2, v74
    v_add_u32 v74, {MRED}, v74
    """)
    A.wait_tag("wm")
    tsx(A, 61)
    if opt("touch", 11) == 2: touch(A)
    if opt("touch", 11) == 4 and not opt("tafter", 0): touch(A, nonln=True)
    if opt("touch", 11) == 9: touch(A, "gu")
    if opt("touch", 11) in (10, 11): touch(A, "gu", nonln=True)
    if opt("pfA", 0) and opt("pfMpos", 0) == 1: wchunks(A, range(opt("pfA", 0)))
    for ks in range(4):
        for nt in range(2):
            b = WF + (ks*2+nt)*4
            off = ks*2048 + nt*32
            A(f"ds_read_b64_tr_b16 {v(b,2)}, v6 offset:{off}\nds_read_b64_tr_b16 {v(b+2,2)}, v6 offset:{off+256}")
    for ks in range(4):
        for nt in range(2):
            A(f"v_mfma_f32_16x16x32_bf16 {v(ACC+4*nt,4)}, {v(SF+4*ks,4)}, {v(WF+(ks*2+nt)*4,4)}, {v(ACC+4*nt,4) if ks else 0}")
    skip = A.label("modskip")
    A(f"""
    s_mov_b64 exec, 0xffff
    ds_write_b32 v9, v{ACC}
    ds_write_b32 v9, v{ACC+4} offset:64
    s_mov_b64 exec, -1
    s_waitcnt lgkmcnt(0)
    s_barrier
    s_cmp_lg_u32 s3, 0
    s_cbranch_scc1 {skip}
    ds_read_b32 v11, v74
    ds_read_b32 v12, v74 offset:128
    ds_read_b32 v13, v74 offset:256
    ds_read_b32 v14, v74 offset:384
    v_add_f32 v11, v11, v12
    v_add_f32 v13, v13, v14
    v_add_f32 v11, v11, v13
    """)
    bf16r(A, "v11", "v11")
    A("v_add_f32 v11, s42, v11")
    bf16r(A, "v11", "v11")
    if opt("fold", 1): A("v_mul_f32 v11, s43, v11")
    A(f"""
    s_mov_b32 exec_hi, 0
    buffer_store_dword v11, v10, {srd(S_WS)}, s41 offen sc1
    s_mov_b64 exec, -1
    {skip}:
    """)

K2 = dict(BS=16, CC=24, CS=26, TW=28, BH=44, U=64, XR=128, CA=136, GA=168, CB=176, SB=184, Z=192, XF=224)
def k2_pre(A, hook=None):
    A.c('==== phase 2 set-up: twiddle / DFT constants (v_cos / v_sin), residual rows, addresses ====')
    r = K2
    if opt("T", 4) == 2: A("s_and_b32 s36, s2, 7\ns_lshl_b32 s36, s36, 2\ns_bfe_u32 s37, s2, 0x20003")
    else: A("s_and_b32 s36, s2, 7\ns_bfe_u32 s37, s2, 0x20003\ns_lshl_b32 s37, s37, 3")
    A("""
    s_add_u32 s36, s36, s37
    s_lshr_b32 s37, s2, 5
    s_sub_u32 s39, 64, s36
    s_cmp_eq_u32 s36, 0
    s_cselect_b32 s39, 32, s39
    s_cselect_b64 s[40:41], -1, 0
    s_lshl_b32 s42, s37, 2
    s_add_u32 s43, s42, s3
    s_lshl_b32 s43, s43, 6
    s_add_u32 s44, s43, s36
    s_add_u32 s45, s43, s39
    s_lshl_b32 s44, s44, 10
    s_lshl_b32 s45, s45, 10
    v_lshlrev_b32 v4, 5, v2
    v_lshl_add_u32 v4, v3, 3, v4
    """)
    for uu in range(2):
        for nt in range(2):
            A(f"buffer_load_dwordx2 {v(r['XR']+(uu*2+nt)*2,2)}, v4, {srd(S_X)}, s{44+uu} offen offset:{nt*512}")
    if hook: hook()
    A("""
    v_lshrrev_b32 v5, 2, v2
    v_add_u32 v5, s42, v5
    v_lshlrev_b32 v5, 6, v5
    v_and_b32 v6, 2, v2
    v_cmp_ne_u32 vcc, 0, v6
    v_mov_b32 v7, s36
    v_mov_b32 v8, s39
    v_cndmask_b32 v7, v7, v8, vcc
    v_add_u32 v5, v5, v7
    v_cvt_f32_u32 v5, v5
    v_mul_f32 v5, 0x3a000000, v5
    v_and_b32 v6, 1, v2
    v_cvt_f32_u32 v6, v6
    v_mul_f32 v6, 0x3e800000, v6
    v_mov_b32 v7, 0xbe800000
    v_mov_b32 v8, 0x3e800000
    v_cndmask_b32 v7, v7, v8, vcc
    v_cndmask_b32 v7, v7, 0, s[40:41]
    v_add_f32 v7, v7, v6
    v_cndmask_b32 v8, 1.0, 0, vcc
    v_cndmask_b32 v9, 0, 1.0, vcc
    v_cndmask_b32 v8, 1.0, v8, s[40:41]
    v_cndmask_b32 v9, 1.0, v9, s[40:41]
    v_lshlrev_b32 v10, 2, v3
    v_cvt_f32_u32 v10, v10
    """)
    T = 64
    NQ = 72
    for ks in range(2):
        for i in range(4): A(f"v_add_f32 v{NQ+ks*4+i}, {fbits(16*ks+i)}, v10")
    for ks in range(2):
        for i in range(4):
            A(f"v_fma_f32 v{T+2*i}, v{NQ+ks*4+i}, v5, v6\nv_fma_f32 v{T+2*i+1}, v{NQ+ks*4+i}, v5, v7")
        for i in range(8): A(f"v_cos_f32 v{T+i}, v{T+i}")
        for i in range(4):
            A(f"v_pk_mul_f32 {v(T+2*i,2)}, {v(T+2*i,2)}, v[8:9]")
            A(f"v_cvt_pk_bf16_f32 v{r['BS']+ks*4+i}, v{T+2*i}, v{T+2*i+1}")
    A("v_cvt_f32_u32 v12, v2\nv_mul_f32 v13, 0x3d800000, v12")
    for j in range(4): A(f"v_mul_f32 v{T+j}, v{NQ+j}, v13")
    for j in range(4): A(f"v_sin_f32 v{T+4+j}, v{T+j}")
    for j in range(4): A(f"v_cos_f32 v{T+j}, v{T+j}")
    for jj in range(2):
        A(f"v_cvt_pk_bf16_f32 v{r['CC']+jj}, v{T+2*jj}, v{T+2*jj+1}\nv_cvt_pk_bf16_f32 v{r['CS']+jj}, v{T+4+2*jj}, v{T+5+2*jj}")
    A("v_mul_f32 v13, 0x3b000000, v12\ns_lshl_b32 s46, s3, 3\nv_cvt_f32_u32 v14, s46")
    for t in range(8):
        A(f"v_add_f32 v11, {fbits(t)}, v14\nv_mul_f32 v{T+t}, v11, v13")
    for t in range(8):
        A(f"v_cos_f32 v{r['TW']+2*t}, v{T+t}\nv_sin_f32 v{r['TW']+2*t+1}, v{T+t}")
    for nt in range(2):
        A(f"v_add_f32 v13, {fbits(16*nt)}, v12\nv_mul_f32 v13, 0x3d000000, v13")
        for ks in range(2):
            for i in range(4): A(f"v_mul_f32 v{T+i}, v{NQ+ks*4+i}, v13")
            for i in range(4): A(f"v_sin_f32 v{T+4+i}, v{T+i}")
            for i in range(4): A(f"v_cos_f32 v{T+i}, v{T+i}")
            for i in range(4): A(f"v_cvt_pk_bf16_f32 v{r['BH']+(nt*2+ks)*4+i}, v{T+i}, v{T+4+i}")
    A(f"""
    v_mul_u32_u24 v5, {4*UN2()}, v3
    v_lshl_add_u32 v5, v2, 4, v5
    s_mul_i32 s46, s36, {USLOT()}
    s_mul_i32 s47, s3, {UOCT()}
    s_add_u32 s46, s46, s47
    s_add_u32 s46, s46, {WS_U}
    s_add_u32 s47, s46, {2*UN2()}
    s_add_u32 s48, s46, {16*UN2()}
    s_add_u32 s49, s46, {18*UN2()}
    s_add_u32 s76, s46, {UN2()}
    s_add_u32 s77, s47, {UN2()}
    s_add_u32 s78, s48, {UN2()}
    s_add_u32 s79, s49, {UN2()}
    v_lshlrev_b32 v6, 7, v3
    s_lshl_b32 s50, s3, 9
    s_add_u32 s50, s50, {WS_MOD}
    s_cmp_eq_u32 s2, 0
    s_cselect_b32 s59, s50, {WS_SIZE}
    v_lshlrev_b32 v7, 4, v1
    v_lshl_add_u32 v8, v3, 5, v2
    v_mul_u32_u24 v8, 144, v8
    s_lshl_b32 s51, s3, 5
    s_add_u32 s51, s51, {K2EX}
    v_add_u32 v8, s51, v8
    v_mul_u32_u24 v9, 144, v2
    v_lshl_add_u32 v9, v3, 4, v9
    s_mul_i32 s51, s3, {32*144}
    s_add_u32 s51, s51, {K2EX}
    v_add_u32 v9, s51, v9
    s_mul_i32 s51, s3, {2*HBS()}
    s_add_u32 s51, s51, {K2HB}
    v_bfe_u32 v10, v2, 2, 1
    v_mul_u32_u24 v10, {16 if opt("hbsw", 1) else 0}, v10
    v_xor_b32 v10, v10, v4
    v_add_u32 v10, s51, v10
    v_and_b32 v11, 7, v0
    v_lshrrev_b32 v12, 3, v0
    v_bfe_u32 v14, v12, 3, 1
    v_mul_u32_u24 v14, {1 if opt("hbsw", 1) else 0}, v14
    v_xor_b32 v14, v14, v12
    v_mul_u32_u24 v13, {HBS()}, v11
    v_lshl_add_u32 v13, v14, 4, v13
    v_add_u32 v13, {K2HB}, v13
    v_lshlrev_b32 v11, 4, v11
    v_lshl_add_u32 v11, v12, 9, v11
    s_lshl_b32 s51, s36, 3
    s_add_u32 s51, s51, s37
    s_lshl_b32 s52, s51, 13
    s_lshl_b32 s53, s3, 11
    s_add_u32 s52, s52, s53
    s_add_u32 s52, s52, {WS_X1}
    s_add_u32 s53, s52, 1024
    s_lshr_b32 s54, s51, 2
    s_lshl_b32 s54, s54, 15
    s_and_b32 s55, s51, 3
    s_lshl_b32 s55, s55, 7
    s_add_u32 s54, s54, s55
    s_add_u32 s54, s54, {WS_H2}
    s_add_u32 s55, s54, 16384
    s_mov_b32 s56, {WS_MOD+2*2048}
    s_mov_b32 s57, {WS_MOD+3*2048}
    s_mov_b32 s58, {WS_MOD+4*2048}
    s_lshl_b32 s62, s51, 7
    s_add_u32 s62, s62, {WS_F2}
    v_lshlrev_b32 v250, 6, v1
    """)

def k2_main(A):
    A.c('==== phase 2: 8 output rows per workgroup ====\n32-point DFT over n2 (with twiddles), * (1 + scale) (+ 2048 * shift for row 0), 512-point hidden DFT as 16 x 32,\nx1 = x + gate * y, LayerNorm-2, modulation -> h2')
    r = K2
    U, Z = r['U'], r['Z']
    sk0 = A.label("k2sl")
    A(f"s_cmp_lg_u32 s2, 0\ns_cbranch_scc1 {sk0}")
    for t in range(0 if opt("sepmod", 1) else 8):
        A(f"buffer_load_dwordx4 {a(4*t,4)}, v6, {srd(S_WS)}, s50 offen offset:{t*16} sc1")
    A(f"{sk0}:")
    sep = opt("sepmod", 1)
    if sep:
        m0 = A.label("k2m0")
        A(f"s_cmp_lg_u32 s3, 0\ns_cbranch_scc1 {m0}")
        A(f"buffer_load_dword v254, v250, {srd(S_WS)}, s73 offen sc1\nbuffer_load_dword v255, v250, {srd(S_WS)}, s74 offen sc1\n{m0}:", tag="spin")
    for hh in range(2):
        for ks in range(2):
            for i in range(4):
                A(f"buffer_load_dwordx4 {v(U+((ks*2+hh)*4+i)*4,4)}, v5, {srd(S_WS)}, s{(46, 76)[i&1]+ks*2+(i>>1)} offen offset:{hh*256} sc1")
    if sep:
        m1, lp1 = A.label("k2m1"), A.label("k2ml")
        A(f"""
        s_cmp_lg_u32 s3, 0
        s_cbranch_scc1 {m1}
        s_mov_b32 s{S_CNT}, 0
        s_waitcnt vmcnt(16)
        {lp1}:
        v_xor_b32 v254, s{S_TOK}, v254
        v_xor_b32 v255, s{S_TOK}, v255
        v_or_b32 v254, v254, v255
        v_cmp_ne_u32 vcc, 0, v254
        s_add_u32 s{S_CNT}, s{S_CNT}, 1
        s_cmp_ge_u32 s{S_CNT}, {MAXPOLL}
        s_cbranch_scc1 {m1}
        s_cbranch_vccz {m1}
        buffer_load_dword v254, v250, {srd(S_WS)}, s73 offen sc1
        buffer_load_dword v255, v250, {srd(S_WS)}, s74 offen sc1
        s_waitcnt vmcnt(0)
        s_branch {lp1}
        {m1}:
        s_barrier
        """, tag="spin")
        sk1 = A.label("k2s1")
        A(f"s_cmp_lg_u32 s2, 0\ns_cbranch_scc1 {sk1}")
        for t in range(8):
            A(f"buffer_load_dwordx4 {a(4*t,4)}, v6, {srd(S_WS)}, s50 offen offset:{t*16} sc1", tag="spin")
        A(f"{sk1}:", tag="spin")
    for t in range(8):
        A(f"buffer_load_dwordx4 {v(r['CA']+4*t,4)}, v6, {srd(S_WS)}, s50 offen offset:{2048+t*16} sc1")
    for nm, sr in (("GA", 56), ("CB", 58), ("SB", 57)):
        for nt in range(2):
            A(f"buffer_load_dwordx4 {v(r[nm]+nt*4,4)}, v7, {srd(S_WS)}, s{sr} offen offset:{nt*1024} sc1")
    A.touch_regs([("v", U)])
    for uu in range(2):
        for nt in range(2):
            xr = r['XR'] + (uu*2+nt)*2; xf = r['XF'] + (uu*2+nt)*4
            A(f"v_lshlrev_b32 v{xf}, 16, v{xr}\nv_and_b32 v{xf+1}, 0xffff0000, v{xr}\nv_lshlrev_b32 v{xf+2}, 16, v{xr+1}\nv_and_b32 v{xf+3}, 0xffff0000, v{xr+1}")
    pfl = [op for ch in range(opt("pfA", 0) + opt("pf1", 3), opt("pfB", 4)) for op in wchunk_ops(ch, ch, f"w{ch}")]
    if opt("pfBpos", 2) == 0:
        for op in pfl: A(*op)
    if opt("pfBpos", 2) in (0, 3): pfl = []
    if opt("touch", 11) == 7 and opt("tlate", 0) == 1: touch_late(A)
    if opt("touch", 11) == 8: touch(A)
    if opt("touch", 11) == 9: touch(A, "d")
    if TS and opt("tsu", 1): A(f"v_mov_b32 v{U+60}, v{U+60}"); ts(A, "uarr")
    for hh in range(2):
        for ks in range(2):
            b = U + (ks*2+hh)*16
            for i in range(4):
                for t in range(i+1, 4): A(f"v_swap_b32 v{b+4*i+t}, v{b+4*t+i}")
        for t in range(4):
            for ks in range(2):
                z = Z + (hh*4+t)*4
                A(f"v_mfma_f32_16x16x32_bf16 {v(z,4)}, {v(U+(ks*2+hh)*16+4*t,4)}, {v(r['BS']+ks*4,4)}, {v(z,4) if ks else 0}")
                if pfl and opt("pfBpos", 2) != 4 and (hh == 1 or opt("pfBpos", 2) == 2): A(*pfl.pop(0))
    if opt("pfBpos", 2) != 4:
        for op in pfl: A(*op)
        pfl = []
    ZP, P, Q = 64, 80, 112
    ts(A, "s2")
    for t in range(8):
        for h in range(2): A(f"v_pk_mul_f32 {v(Z+4*t+2*h,2)}, {v(Z+4*t+2*h,2)}, {v(r['CA']+4*t+2*h,2)}")
    sk = A.label("k2sa")
    A(f"s_cmp_lg_u32 s2, 0\ns_cbranch_scc1 {sk}")
    A("s_mov_b32 s59, 0x45000000\ns_mov_b32 exec_lo, 0x00010001\ns_mov_b32 exec_hi, 0x00010001")
    for i in range(32):
        A(f"v_accvgpr_read_b32 v{P}, a{i}\nv_fma_f32 v{Z+i}, v{P}, s59, v{Z+i}")
    A(f"s_mov_b64 exec, -1\n{sk}:")
    for t in range(8):
        A(f"v_cvt_pk_bf16_f32 v{ZP+2*t}, v{Z+4*t}, v{Z+4*t+1}\nv_cvt_pk_bf16_f32 v{ZP+2*t+1}, v{Z+4*t+2}, v{Z+4*t+3}")
        if t >= 1:
            A(f"v_mfma_f32_16x16x16_bf16 {v(P+4*(t-1),4)}, {v(ZP+2*(t-1),2)}, {v(r['CC'],2)}, 0")
            A(f"v_mfma_f32_16x16x16_bf16 {v(Z+4*(t-1),4)}, {v(ZP+2*(t-1),2)}, {v(r['CS'],2)}, 0")
    A(f"v_mfma_f32_16x16x16_bf16 {v(P+28,4)}, {v(ZP+14,2)}, {v(r['CC'],2)}, 0")
    A(f"v_mfma_f32_16x16x16_bf16 {v(Z+28,4)}, {v(ZP+14,2)}, {v(r['CS'],2)}, 0")
    Q = Z; W = 112
    ts(A, "h1m")
    for hh in range(2):
        for uu in range(2):
            idx = [(P+4*(hh*4+t4)+2*uu, Q+4*(hh*4+t4)+2*uu, r['TW']+2*(hh*4+t4), W+uu*8+hh*4+t4) for t4 in range(4)]
            for p, q, tw, w in idx: A(f"v_pk_add_f32 {v(p,2)}, {v(p,2)}, {v(q,2)} op_sel:[0,1] op_sel_hi:[1,0] neg_hi:[0,1]")
            for p, q, tw, w in idx: A(f"v_pk_mul_f32 {v(q,2)}, {v(p,2)}, {v(tw,2)} op_sel:[0,0] op_sel_hi:[1,0]")
            for p, q, tw, w in idx: A(f"v_pk_fma_f32 {v(q,2)}, {v(p,2)}, {v(tw,2)}, {v(q,2)} op_sel:[1,1,0] op_sel_hi:[0,1,1] neg_hi:[1,0,0]")
            for p, q, tw, w in idx: A(f"v_cvt_pk_bf16_f32 v{w}, v{q}, v{q+1}")
            A(f"ds_write_b128 v8, {v(W+uu*8+hh*4,4)} offset:{uu*16*144+hh*16}")
    A("s_waitcnt lgkmcnt(0)\ns_barrier")
    ts(A, "h1")
    AF, Y = 80, 96
    for uu in range(2):
        for ks in range(2):
            A(f"ds_read_b128 {v(AF+(uu*2+ks)*4,4)}, v9 offset:{uu*16*144+ks*64}")
    for op in pfl[:4]: A(*op)
    pfl = pfl[4:]
    for uu in range(2):
        for ks in range(2):
            for nt in range(2):
                y = Y + (uu*2+nt)*4
                A(f"v_mfma_f32_16x16x32_bf16 {v(y,4)}, {v(AF+(uu*2+ks)*4,4)}, {v(r['BH']+(nt*2+ks)*4,4)}, {v(y,4) if ks else 0}")
                if pfl: A(*pfl.pop(0))
    for op in pfl: A(*op)
    XP = 168 if opt("latex1", 2) == 2 else 112
    ts(A, "h2m")
    for uu in range(2):
        for nt in range(2):
            y = Y + (uu*2+nt)*4; xf = r['XF'] + (uu*2+nt)*4; g = r['GA'] + nt*4
            for h in range(2):
                A(f"v_pk_fma_f32 {v(y+2*h,2)}, {v(y+2*h,2)}, {v(g+2*h,2)}, {v(xf+2*h,2)}")
        y = Y + uu*8; t = 64 + 4*uu
        A(f"v_pk_add_f32 {v(t,2)}, {v(y,2)}, {v(y+2,2)}\nv_pk_mul_f32 {v(t+2,2)}, {v(y,2)}, {v(y,2)}")
        A(f"v_pk_add_f32 {v(t,2)}, {v(t,2)}, {v(y+4,2)}\nv_pk_fma_f32 {v(t+2,2)}, {v(y+2,2)}, {v(y+2,2)}, {v(t+2,2)}")
        A(f"v_pk_add_f32 {v(t,2)}, {v(t,2)}, {v(y+6,2)}\nv_pk_fma_f32 {v(t+2,2)}, {v(y+4,2)}, {v(y+4,2)}, {v(t+2,2)}")
        A(f"v_add_f32 v{72+2*uu}, v{t}, v{t+1}\nv_pk_fma_f32 {v(t+2,2)}, {v(y+6,2)}, {v(y+6,2)}, {v(t+2,2)}")
        A(f"v_add_f32 v{73+2*uu}, v{t+2}, v{t+3}")
    def x1_store(uu, nt):
        y = Y + (uu*2+nt)*4; xp = XP + (uu*2+nt)*2
        A(f"v_cvt_pk_bf16_f32 v{xp}, v{y}, v{y+1}\nv_cvt_pk_bf16_f32 v{xp+1}, v{y+2}, v{y+3}")
        A(f"buffer_store_dwordx2 {v(xp,2)}, v4, {srd(S_WS)}, s{52+uu} offen offset:{nt*512} sc1", tag="st")
    late_x1 = opt("latex1", 2)
    def x1_cvt(uu, nt):
        y = Y + (uu*2+nt)*4; xp = XP + (uu*2+nt)*2
        A(f"v_cvt_pk_bf16_f32 v{xp}, v{y}, v{y+1}\nv_cvt_pk_bf16_f32 v{xp+1}, v{y+2}, v{y+3}")
    def x1_st(uu, nt):
        A(f"buffer_store_dwordx2 {v(XP+(uu*2+nt)*2,2)}, v4, {srd(S_WS)}, s{52+uu} offen offset:{nt*512} sc1", tag="x1")
    if late_x1: x1_store = x1_cvt
    A("v_permlane16_swap_b32 v72, v73\nv_permlane16_swap_b32 v74, v75\nv_add_f32 v72, v72, v73\nv_add_f32 v74, v74, v75")
    x1_store(0, 0)
    A("v_permlane32_swap_b32 v72, v74\nv_add_f32 v72, v72, v74")
    x1_store(0, 1)
    A("v_add_f32 v72, v72, v72 row_ror:8")
    A(f"v_mov_b32 v76, 0x3b000000\nv_mov_b32 v77, {fbits(1e-5)}")
    A("v_add_f32 v72, v72, v72 row_ror:4")
    x1_store(1, 0)
    A("v_add_f32 v72, v72, v72 row_ror:2")
    x1_store(1, 1)
    A("""
    v_add_f32 v72, v72, v72 row_ror:1
    v_mul_f32 v72, v72, v76
    v_readlane_b32 s40, v72, 0
    v_readlane_b32 s41, v72, 16
    v_readlane_b32 s42, v72, 32
    v_readlane_b32 s43, v72, 48
    v_mov_b32 v64, s40
    v_mov_b32 v66, s42
    v_fma_f32 v65, -v64, v64, s41
    v_fma_f32 v67, -v66, v66, s43
    v_max_f32 v65, 0, v65
    v_max_f32 v67, 0, v67
    v_add_f32 v65, v65, v77
    v_add_f32 v67, v67, v77
    v_rsq_f32 v65, v65
    v_rsq_f32 v67, v67
    v_mul_f32 v64, -v64, v65
    v_mul_f32 v66, -v66, v67
    """)
    HP = 120
    ts(A, "ln2")
    for uu in range(2):
        for nt in range(2):
            y = Y + (uu*2+nt)*4
            for h in range(2):
                A(f"v_pk_fma_f32 {v(y+2*h,2)}, {v(y+2*h,2)}, {v(64+2*uu,2)}, {v(64+2*uu,2)} op_sel:[0,1,0] op_sel_hi:[1,1,0]")
            for h in range(2):
                A(f"v_pk_fma_f32 {v(y+2*h,2)}, {v(y+2*h,2)}, {v(r['CB']+nt*4+2*h,2)}, {v(r['SB']+nt*4+2*h,2)}")
            hp = HP + (uu*2+nt)*2
            A(f"v_cvt_pk_bf16_f32 v{hp}, v{y}, v{y+1}\nv_cvt_pk_bf16_f32 v{hp+1}, v{y+2}, v{y+3}")
            A(f"ds_write_b64 v10, {v(hp,2)} offset:{uu*HBS()+nt*512}")
    A("s_waitcnt lgkmcnt(0)\ns_barrier")
    ts(A, "hb")
    A("ds_read_b128 v[64:67], v13\nds_read_b128 v[68:71], v13 offset:512")
    A(f"buffer_store_dwordx4 v[64:67], v11, {srd(S_WS)}, s54 offen {LOC('h')}", tag="st")
    A(f"buffer_store_dwordx4 v[68:71], v11, {srd(S_WS)}, s55 offen {LOC('h')}", tag="st")
    if late_x1 == 1:
        for uu in range(2):
            for nt in range(2): x1_st(uu, nt)
    if late_x1 == 2:
        A("v_mov_b32 v176, v4\ns_mov_b32 s80, s52\ns_mov_b32 s81, s53")

WD_ORDER = [37, 38, 39] + list(range(13, 37)) + list(range(0, 13)) + [37, 38, 39]
def k4_ids(A):
    if opt("R", 4) == 4:
        A("s_and_b32 s36, s2, 7\ns_lshl_b32 s36, s36, 2\ns_bfe_u32 s38, s2, 0x20003\ns_add_u32 s36, s36, s38\ns_lshr_b32 s37, s2, 5")
    else:
        A("s_bfe_u32 s36, s2, 0x20001\ns_lshl_b32 s36, s36, 3\ns_bfe_u32 s38, s2, 0x30003\ns_add_u32 s36, s36, s38\ns_and_b32 s37, s2, 1\ns_lshl_b32 s37, s37, 2\ns_lshr_b32 s38, s2, 6\ns_add_u32 s37, s37, s38")
    A("s_lshr_b32 s38, s3, 1\ns_and_b32 s39, s3, 1")
def wd_setup(A):
    k4_ids(A)
    A(f"""
    v_lshrrev_b32 v244, 3, v1
    v_lshlrev_b32 v{V_D}, 10, v244
    v_and_b32 v245, 7, v1
    v_lshlrev_b32 v244, 1, v244
    v_and_b32 v244, 4, v244
    v_xor_b32 v245, v245, v244
    v_lshl_add_u32 v{V_D}, v245, 4, v{V_D}
    s_mul_i32 s{S_DG}, s38, {688*1024}
    s_lshl_b32 s41, s37, 7
    s_add_u32 s{S_DG}, s{S_DG}, s41
    s_lshl_b32 s41, s39, 13
    s_add_u32 s{S_DG}, s{S_DG}, s41
    s_lshl_b32 s{S_DL}, s3, 10
    """)
    if opt("two", 0):
        A(f"""
        s_lshl_b32 s41, s37, 7
        s_lshl_b32 s42, s39, 13
        s_add_u32 s41, s41, s42
        s_mul_i32 s{S_DG}, s38, {6*16384}
        s_add_u32 s{S_DG}, s{S_DG}, s41
        s_add_u32 s42, s38, 84
        s_lshl_b32 s42, s42, 14
        s_add_u32 s{S_DG2}, s42, s41
        """)
        return
    A(f"""
    s_mul_i32 s41, s37, 10
    s_lshr_b32 s41, s41, 3
    s_lshl_b32 s41, s41, 16
    s_add_u32 s{S_DR}, s{S_DG}, s41
    s_add_u32 s{S_DE}, s{S_DG}, {40*16384}
    """)
S_DR, S_DE, S_AB, S_AE = 82, 83, 97, 100
S_DG2, S_ACT, S_ACT2, S_AT = 82, 83, 97, 100
WS_F3B = WS_FLG + 0x30000
NA = 3
def steps4():
    return [None] + [(i, j) for i in range(7) for j in range(NA)] + [(i, j) for i in range(7) for j in range(NA, 6)]
NSA = 1 + 7*NA
def wd_op(step, tag):
    if opt("two", 0):
        st = steps4()[step]
        t = f"s_add_u32 m0, s{S_DL}, {WD_ORDER[step]*4096}\n"
        if st is None: so = S_DG2; t += "s_nop 0\n"
        else: so = S_T; t += f"s_add_u32 s{S_T}, s{S_DG}, {(12*st[0]+st[1])*16384}\n"
        return (t + f"buffer_load_dwordx4 v{V_D}, {srd(S_WD)}, s{so} offen lds", tag)
    return wd_op1(step, tag)
def wd_op1(step, tag):
    t = f"s_add_u32 m0, s{S_DL}, {WD_ORDER[step]*4096}\n"
    if not opt("rot", 0) or step >= 40:
        t += f"s_add_u32 s{S_T}, s{S_DG}, {step*16384}\n"
    else:
        if step and step % 4 == 0:
            t += f"s_add_u32 s{S_DR}, s{S_DR}, 65536\ns_cmp_eq_u32 s{S_DR}, s{S_DE}\ns_cselect_b32 s{S_DR}, s{S_DG}, s{S_DR}\n"
        t += f"s_add_u32 s{S_T}, s{S_DR}, {(step % 4)*16384}\n"
    t += f"buffer_load_dwordx4 v{V_D}, {srd(S_WD)}, s{S_T} offen {opt('dpol','')} lds"
    return (t, tag)

def k3_ids(A):
    A(sl_expr() + "\ns_mov_b32 s37, s38\n" + rb_expr())
def k3_pre(A):
    A.c('==== phase 3 / 4 set-up ====')
    wd_setup(A)
    k3_ids(A)
    A(f"""
    s_lshl_b32 s45, s36, 2
    s_add_u32 s45, s45, s3
    s_lshl_b32 s46, s45, 15
    s_add_u32 s46, s46, {WS_H2}
    v_lshlrev_b32 v4, 4, v1
    v_bfe_u32 v5, v1, 1, 1
    v_mul_u32_u24 v5, {UOFF}, v5
    v_bfe_u32 v6, v1, 2, 2
    v_bfe_u32 v7, v1, 5, 1
    v_lshl_add_u32 v6, v7, 3, v6
    v_mul_u32_u24 v6, 192, v6
    v_add_u32 v5, v5, v6
    v_bfe_u32 v6, v1, 4, 1
    v_lshl_add_u32 v5, v6, 4, v5
    v_and_b32 v6, 1, v1
    v_lshl_add_u32 v5, v6, 3, v5
    v_add_u32 v6, {2*SLOT}, v5
    v_add_u32 v7, {4*SLOT}, v5
    s_mul_i32 s47, s45, {86*1024}
    s_mul_i32 s48, s37, {6*1024}
    s_add_u32 s47, s47, s48
    s_add_u32 s47, s47, {WS_ACT}
    s_add_u32 s48, s47, 2048
    s_add_u32 s51, s47, 4096
    s_cmp_eq_u32 s37, 14
    s_cselect_b32 s48, {WS_SIZE}, s48
    s_cselect_b32 s51, {WS_SIZE}, s51
    s_lshl_b32 s49, s2, 2
    s_add_u32 s49, s49, s3
    s_mul_i32 s49, s49, 11
    v_min_u32 v246, 10, v1
    v_add_u32 v246, s49, v246
    v_lshlrev_b32 v246, 7, v246
    v_mov_b32 v14, {LOG2E}
    v_mov_b32 v15, {LOG2E}
    s_lshl_b32 s61, s36, 4
    s_add_u32 s61, s61, s37
    s_lshl_b32 s61, s61, 7
    s_add_u32 s61, s61, {WS_F3}
    s_lshl_b32 s62, s36, 11
    s_add_u32 s62, s62, {WS_F2}
    """)

def x1_ops():
    return [(f"buffer_store_dwordx2 {v(168+(uu*2+nt)*2,2)}, v176, {srd(S_WS)}, s{80+uu} offen offset:{nt*512} {LOC('x')}", "x1") for uu in range(2) for nt in range(2)]
def k3_main(A, idle):
    done = A.label("k3done")
    if opt("short14", 1):
        short = A.label("k3short")
        A(f"s_cmp_eq_u32 s37, 14\ns_cbranch_scc1 {short}")
        k3_body(A, 6)
        A(f"s_branch {done}\n{short}:")
        A.reset()
        k3_body(A, 2)
    else:
        k3_body(A, 6)
    k3_tail(A, idle, done)

def k3_body(A, NT):
    A.c('==== phase 3: h2[128 rows] @ (w_gate | w_up)[96 columns each], act = silu(g) * u ; w_down streams into the freed LDS ====')
    ACC, AF, NAF = 16, 112, 8
    T, PK = 144, 160
    full = NT == 6
    def h2_op(k):
        t = "s_add_u32 s46, s46, 4096\n" if (k and k % 4 == 0) else ""
        return (t + f"buffer_load_dwordx4 {a(4*k,4)}, v4, {srd(S_WS)}, s46 offen offset:{(k%4)*1024} {LDP('h')}", None)
    H0 = opt("h0", 9)
    for k in range(H0): A(h2_op(k)[0])
    order = [(k, j) for k in range(32) for j in range(NT)]
    N = len(order)
    def slot_of(k):
        ch = k // 4
        return ch if ch < 6 else ch - 6
    def frag_read(n):
        k, j = order[n]
        sl = slot_of(k)
        base = ("v5", "v6", "v7")[sl // 2]
        off = (sl % 2)*SLOT + (k % 4)*16*192 + j*32
        b = AF + (n % NAF)*4
        return f"ds_read_b64_tr_b16 {v(b,2)}, {base} offset:{off}\nds_read_b64_tr_b16 {v(b+2,2)}, {base} offset:{off+4*192}"
    PF = NAF - 2
    CH = 4*NT
    b01, b23, b6, b7 = 2*CH - 1, 4*CH - 1, 6*CH - PF - 1, 7*CH - PF - 1
    assert b6 >= 5*CH - 1 and b7 >= 6*CH - 1
    bars = {b01: [], b23: [], b6: ["w6"], b7: ["w7"]}
    pfB = opt("pfB", 4) + opt("pf3", 2)
    for ch in range(pfB, 6):
        nb = ch*CH - PF - 1
        if ch == 5 and b23 <= nb: bars[b23].append("w5")
        else: bars.setdefault(nb, []).append(f"w{ch}")
    sc = lambda x: x*NT // 6
    side = []
    n0 = 0
    def add(op, step):
        nonlocal n0
        side.append((sc(n0), *op)); n0 += step
    for k in range(H0, 32): add(h2_op(k), 2)
    for ch in range(pfB, 6):
        for op in wchunk_ops(ch, ch, f"w{ch}"): add(op, 2)
    if opt("x1pos", 1) == 0:
        for op in x1_ops(): add(op, 2)
    def at_least(n):
        nonlocal n0
        while sc(n0) <= n: n0 += 1
    if opt("tact", 0) == 1 and full:
        side.append((sc(n0), f"v_lshlrev_b32 v13, 7, v1\nv_min_u32 v13, {47*128}, v13\nbuffer_load_dword v12, v13, {srd(S_WS)}, s47 offen", None)); n0 += 2
    at_least(b01)
    for ch in (6, 7):
        for op in wchunk_ops(ch, ch-6, f"w{ch}"): add(op, 2)
    if opt("x1pos", 1) == 1:
        for op in x1_ops(): add(op, 2)
    for st_ in range(0, 3): add(wd_op(st_, "wd"), 3)
    if opt("cpf", 0) & 4 and full: side.append((max(n0, opt("cpn", 90)), code_pf_text(".Lk3epi", 249, 60), None))
    at_least(b23)
    for st_ in range(3, 14): add(wd_op(st_, "wd"), opt("wdsp", 3))
    at_least(b6)
    for st_ in range(14, 20): add(wd_op(st_, "wd"), 3)
    at_least(b7)
    for st_ in range(20, 27): add(wd_op(st_, "wd"), 3)
    if opt("tact", 0) == 2 and full:
        side.insert([i for i, x in enumerate(side) if x[0] > opt("tactn", 100)][0], (opt("tactn", 100), f"v_lshlrev_b32 v13, 7, v1\nv_min_u32 v13, {47*128}, v13\nbuffer_load_dword v12, v13, {srd(S_WS)}, s47 offen", None))
    assert opt("pfB", 4) >= 2
    if not opt("nostartbar", 1): A("v_accvgpr_read_b32 v13, a0\ns_barrier")
    if full: ts(A, "issued")
    for n in range(PF): A(frag_read(n))
    if full: tc(A, "first")
    for n, (k, j) in enumerate(order):
        acc = ACC + 16*j
        if n % 2 == 0: A.touch_regs([("v", AF+((n+1)%NAF)*4+3)])
        A(f"v_mfma_f32_32x32x16_bf16 {v(acc,16)}, {v(AF+(n%NAF)*4,4)}, {a(4*k,4)}, {v(acc,16) if k else 0}")
        if n == 0 and full: ts(A, "first")
        while side and side[0][0] <= n:
            _, t, tag = side.pop(0); A(t, tag=tag)
            if full: break
        if n in bars:
            for tg in bars[n]: A.wait_tag(tg)
            A("s_barrier")
            if full: ts(A, f"n{n}")
        if n + PF < N: A(frag_read(n+PF))
    for _, t, tag in side: A(t, tag=tag)
    if full:
        A(".Lk3epi:")
        ts(A, "mfma")
        tc(A, "mfma")
    def epi(j):
        acc = ACC + 16*j; pk = PK + 4*(j & 1); t0 = T + 8*(j & 1)
        if opt("fold", 1):
            for i in range(8): A(f"v_exp_f32 v{t0+i}, -v{acc + 8*(i//4) + i%4}")
        else:
            for hf in range(2):
                g = acc + 8*hf; t = t0 + 4*hf
                for h in range(2): A(f"v_pk_mul_f32 {v(t+2*h,2)}, {v(g+2*h,2)}, v[14:15]")
            for i in range(8): A(f"v_exp_f32 v{t0+i}, v{t0+i}")
        for hf in range(2):
            g, u = acc + 8*hf, acc + 8*hf + 4
            for h in range(2): A(f"v_pk_mul_f32 {v(g+2*h,2)}, {v(g+2*h,2)}, {v(u+2*h,2)}")
        for h in range(4): A(f"v_pk_add_f32 {v(t0+2*h,2)}, {v(t0+2*h,2)}, 1.0 op_sel_hi:[1,0]")
        for i in range(8): A(f"v_rcp_f32 v{t0+i}, v{t0+i}")
        for hf in range(2):
            g = acc + 8*hf; t = t0 + 4*hf
            for h in range(2): A(f"v_pk_mul_f32 {v(g+2*h,2)}, {v(g+2*h,2)}, {v(t+2*h,2)}")
        for hf in range(2):
            g = acc + 8*hf
            A(f"v_cvt_pk_bf16_f32 v{pk+2*hf}, v{g}, v{g+1}\nv_cvt_pk_bf16_f32 v{pk+2*hf+1}, v{g+2}, v{g+3}")
        A(f"buffer_store_dwordx4 {v(pk,4)}, v4, {srd(S_WS)}, s{(47,48,51)[j//2]} offen offset:{(j%2)*1024} {LOC('a')}", tag=("sA" if j < NA else "sB"))
    for j in range(NT): epi(j)
    if opt("two", 0):
        A.wait_tag("sA")
        skA = A.label("fa")
        A(f"""
        s_barrier
        s_cmp_lg_u32 s3, 0
        s_cbranch_scc1 {skA}
        v_mov_b32 v250, 0
        v_mov_b32 v251, s{S_TOK}
        s_mov_b64 exec, 1
        buffer_store_dword v251, v250, {srd(S_WS)}, s61 offen sc1
        s_mov_b64 exec, -1
        {skA}:
        """, tag="spin")
    if full: ts(A, "stiss3")

def k3_tail(A, idle, done):
    A.c('---- phase 3, workgroups without columns: warm w_down, fetch their own w_down image ----')
    A(f"s_branch {done}\n{idle}:")
    A.reset()
    A("s_waitcnt vmcnt(0)\ns_barrier")
    if opt("touch", 11) == 11:
        A(f"""
        s_lshl_b32 s49, s36, 2
        s_add_u32 s49, s49, s3
        s_mul_i32 s49, s49, {172*128}
        v_lshlrev_b32 v246, 7, v1
        buffer_load_dword v236, v246, {srd(S_WD)}, s49 offen
        s_add_u32 s50, s49, 8192
        buffer_load_dword v237, v246, {srd(S_WD)}, s50 offen
        s_add_u32 s50, s49, {108*128}
        buffer_load_dword v238, v246, {srd(S_WD)}, s50 offen
        """)
    if opt("latex1", 2) == 2:
        for op in x1_ops(): A(*op)
    for st_ in range(27): A(*wd_op(st_, "wd"))
    A(f"s_waitcnt vmcnt(0)\n{done}:")
    A.reset()

def k4_list(A):
    k4_ids(A)
    A(f"""
    s_mov_b32 s62, {WS_F3}
    s_lshr_b32 s51, s36, 1
    s_lshl_b32 s51, s51, 4
    v_cmp_eq_u32 vcc, 15, v2
    v_cndmask_b32 v250, v2, 0, vcc
    v_add_u32 v250, s51, v250
    """)
    if opt("latex1", 2):
        A(f"""
        v_and_b32 v251, 7, v1
        v_lshlrev_b32 v251, 5, v251
        """)
        if opt("T", 4) == 2: A("s_lshr_b32 s51, s36, 2\ns_and_b32 s52, s36, 3")
        else: A("s_and_b32 s51, s36, 7\ns_lshr_b32 s52, s36, 3")
        A("s_lshl_b32 s52, s52, 3\ns_add_u32 s51, s51, s52\nv_add_u32 v251, s51, v251")
        if opt("T", 4) == 2:
            A("v_and_b32 v252, 7, v251\nv_lshlrev_b32 v252, 1, v252\nv_bfe_u32 v253, v251, 3, 1\nv_add_u32 v252, v252, v253\nv_mov_b32 v253, 0\nv_lshrrev_b32 v251, 4, v251")
        elif opt("T", 4) == 4 and opt("bal", 0):
            A("v_bfe_u32 v252, v251, 1, 2\nv_lshlrev_b32 v252, 2, v252\nv_bfe_u32 v253, v251, 3, 2\nv_add_u32 v252, v252, v253\nv_and_b32 v253, 1, v251\nv_lshrrev_b32 v251, 5, v251\nv_cmp_eq_u32 vcc, 7, v251\nv_add_u32 v254, 7, v253\nv_mul_u32_u24 v253, 7, v253\nv_cndmask_b32 v253, v253, v254, vcc")
        elif opt("T", 4) == 4:
            A("v_bfe_u32 v252, v251, 1, 2\nv_lshlrev_b32 v252, 2, v252\nv_bfe_u32 v253, v251, 3, 2\nv_add_u32 v252, v252, v253\nv_and_b32 v253, 1, v251\nv_lshlrev_b32 v253, 3, v253\nv_lshrrev_b32 v251, 5, v251")
        else:
            A("v_bfe_u32 v252, v251, 2, 1\nv_lshlrev_b32 v252, 3, v252\nv_bfe_u32 v253, v251, 3, 3\nv_add_u32 v252, v252, v253\nv_and_b32 v253, 3, v251\nv_lshlrev_b32 v253, 2, v253\nv_lshrrev_b32 v251, 6, v251")
        A("v_add_u32 v251, v251, v253\nv_lshl_add_u32 v251, v252, 4, v251\nv_cmp_gt_u32 vcc, 16, v1\nv_cndmask_b32 v250, v251, v250, vcc")
    A("v_lshlrev_b32 v250, 7, v250")
def k4_pre(A):
    k4_list(A)
    if opt("stag", 0) & 2: poll_head(A, 62, 250)
    A(f"""
    s_lshl_b32 s44, s36, 1
    s_add_u32 s44, s44, s39
    s_mul_i32 s44, s44, {86*1024}
    s_mul_i32 s45, s38, {43*1024}
    s_add_u32 s44, s44, s45
    s_add_u32 s44, s44, {WS_ACT}
    """)
    if opt("two", 0):
        A(f"""
        s_mul_i32 s45, s38, {37*1024}
        s_sub_u32 s44, s44, s45
        s_add_u32 s45, s38, 84
        s_mul_i32 s51, s38, {6*1024}
        s_sub_u32 s{S_ACT2}, s44, s51
        s_lshl_b32 s45, s45, 10
        s_add_u32 s{S_ACT2}, s{S_ACT2}, s45
        s_mov_b32 s{S_ACT}, s44
        """)
    A(f"""
    v_lshlrev_b32 v4, 4, v1
    v_lshrrev_b32 v8, 3, v0
    v_and_b32 v9, 7, v0
    s_lshl_b32 s46, s36, 16
    s_lshl_b32 s47, s37, 7
    s_add_u32 s46, s46, s47
    s_add_u32 s46, s46, {WS_X1}
    s_add_u32 s48, s46, 32768
    v_lshlrev_b32 v10, 10, v8
    v_lshl_add_u32 v10, v9, 4, v10
    v_lshlrev_b32 v11, 5, v9
    s_lshl_b32 s47, s37, 8
    s_add_u32 s47, s47, {WS_MOD+5*2048}
    s_sub_u32 s49, 64, s36
    s_cmp_eq_u32 s36, 0
    s_cselect_b32 s49, 32, s49
    v_and_b32 v12, 1, v8
    v_cmp_ne_u32 vcc, 0, v12
    v_mov_b32 v12, s36
    v_mov_b32 v13, s49
    v_cndmask_b32 v12, v12, v13, vcc
    v_lshrrev_b32 v13, 1, v8
    v_lshl_add_u32 v12, v13, 6, v12
    v_lshlrev_b32 v12, 10, v12
    v_lshl_add_u32 v12, v9, 4, v12
    s_lshl_b32 s49, s37, 7
    s_add_u32 s50, s49, 0x100000
    v_bfe_u32 v6, v1, 2, 2
    v_bfe_u32 v7, v1, 5, 1
    v_lshl_add_u32 v7, v7, 2, v6
    v_lshlrev_b32 v7, 7, v7
    v_bfe_u32 v13, v1, 4, 1
    v_lshl_add_u32 v7, v13, 5, v7
    v_and_b32 v13, 3, v1
    v_lshl_add_u32 v7, v13, 3, v7
    s_lshl_b32 s41, s38, 11
    v_add_u32 v7, s41, v7
    v_bfe_u32 v13, v1, 3, 1
    v_lshlrev_b32 v13, 6, v13
    v_xor_b32 v6, v7, v13
    v_xor_b32 v7, 64, v6
    v_add_u32 v14, 0x10000, v6
    v_add_u32 v15, 0x10000, v7
    v_add_u32 v16, 0x20000, v6
    v_add_u32 v17, 0x20000, v7
    """)
    if opt("two", 0):
        A(f"v_mov_b32 v249, v250\nv_cmp_eq_u32 vcc, 15, v2\nv_cndmask_b32 v250, v2, 0, vcc\ns_lshr_b32 s51, s36, 1\ns_lshl_b32 s51, s51, 4\nv_add_u32 v250, s51, v250\nv_lshlrev_b32 v250, 7, v250\ns_mov_b32 s63, {WS_F3B}")

def wd_rest(A):
    for st_ in range(27, 40): A(*wd_op(st_, "dr"))
def wd_rest3(A):
    wd_rest(A)
    assert WD_ORDER[27:40] == list(range(13))
    A(f"s_lshl_b32 s74, s37, 7")
    for w in range(1, 4):
        sk = A.label("wr")
        A(f"s_cmp_lg_u32 s3, {w}\ns_cbranch_scc1 {sk}")
        for st_ in range(27 + w - 1, 40, 3):
            st = steps4()[st_] if opt("two", 0) else None
            row = (12*st[0] + st[1]) if st else st_
            A(f"s_mov_b32 m0, {WD_ORDER[st_]*4096}\ns_add_u32 s{S_T}, s74, {row*16384}\nbuffer_load_dwordx4 v{V_D}, {srd(S_WD)}, s{S_T} offen lds")
        A(f"{sk}:")

def k4_main(A):
    A.c('==== phase 4: out[64 x 64] = x1 + gate * (act @ w_down), K split over wave pairs, reduced through LDS ====')
    ACC, AF, NAF = 32, 64, 8
    XG = 96
    def act_op(k):
        if opt("two", 0):
            st = steps4()[k]
            if st is None: return (f"buffer_load_dwordx4 {a(4*k,4)}, v4, {srd(S_WS)}, s{S_ACT2} offen sc1", None)
            off = (12*st[0] + st[1])*1024
            prev = steps4()[k-1]
            t = ""
            if prev is None or ((12*prev[0] + prev[1])*1024) >> 12 != off >> 12:
                t = f"s_add_u32 s{S_AT}, s{S_ACT}, {off & ~0xfff}\n"
            return (t + f"buffer_load_dwordx4 {a(4*k,4)}, v4, {srd(S_WS)}, s{S_AT} offen offset:{off & 0xfff} sc1", None)
        t = "s_add_u32 s44, s44, 4096\n" if (k and k % 4 == 0) else ""
        if opt("rot", 0) and k and k % 4 == 0:
            t = f"s_mov_b32 s44, s{S_AE}\n" if k == 40 else t + f"s_cmp_eq_u32 s44, s{S_AE}\ns_cselect_b32 s44, s{S_AB}, s44\n"
        return (t + f"buffer_load_dwordx4 {a(4*k,4)}, v4, {srd(S_WS)}, s44 offen offset:{(k%4)*1024} {LDP('a')}", None)
    H0 = opt("a0", 12)
    for k in range(H0): A(act_op(k)[0])
    TL = opt("k4tail", 4)
    order4 = [(k, t) for k in range(43 - TL) for t in range(2)] + [(k, t) for t in range(2) for k in range(43 - TL, 43)]
    def frag_read(n):
        k, t = order4[n]
        ad = WD_ORDER[k]*4096
        base = (("v6", "v7"), ("v14", "v15"), ("v16", "v17"))[ad >> 16][t]
        off = ad & 0xffff
        b = AF + (n % NAF)*4
        return f"ds_read_b64_tr_b16 {v(b,2)}, {base} offset:{off}\nds_read_b64_tr_b16 {v(b+2,2)}, {base} offset:{off+1024}"
    two = opt("two", 0)
    nchk = opt("nchk", 12)
    if two:
        pb = A.label("pb")
        A(f"s_cmp_lg_u32 s3, 0\ns_cbranch_scc1 {pb}\nbuffer_load_dword v252, v249, {srd(S_WS)}, s63 offen sc1\n{pb}:", tag="spin")
    side = []
    n0 = 0
    for k in range(H0, 43):
        if two and k == NSA: n0 = max(n0, nchk + 1)
        side.append((n0, *act_op(k))); n0 += opt("astep", 1)
    PF = NAF - 2
    N = 86
    ts(A, "issued4")
    for n in range(PF): A(frag_read(n))
    RS = 272
    early = []
    for n in range(N):
        k, t = order4[n]
        if n % 2 == 0: A.touch_regs([("v", AF+((n+1)%NAF)*4+3)])
        A(f"v_mfma_f32_32x32x16_bf16 {v(ACC+16*t,16)}, {v(AF+(n%NAF)*4,4)}, {a(4*k,4)}, {v(ACC+16*t,16) if k else 0}")
        if n == 0: ts(A, "first4"); tc(A, "first4")
        if side and side[0][0] <= n:
            _, tx, tag = side.pop(0); A(tx, tag=tag)
        if two and n == nchk:
            assert side[0][0] > nchk
            pc, lp = A.label("pc"), A.label("pcl")
            A(f"""
            s_cmp_lg_u32 s3, 0
            s_cbranch_scc1 {pc}
            s_mov_b32 s{S_CNT}, 0
            s_waitcnt vmcnt({NSA - H0})
            {lp}:
            v_cmp_ne_u32 vcc, s{S_TOK}, v252
            s_add_u32 s{S_CNT}, s{S_CNT}, 1
            s_cmp_ge_u32 s{S_CNT}, {MAXPOLL}
            s_cbranch_scc1 {pc}
            s_cbranch_vccz {pc}
            buffer_load_dword v252, v249, {srd(S_WS)}, s63 offen sc1
            s_waitcnt vmcnt(0)
            s_branch {lp}
            {pc}:
            s_barrier
            """, tag="spin")
            ts(A, "sync3b")
        if n == 47:
            A.wait_tag("dr"); A("s_barrier")
            for st_ in range(40, 43): A(*wd_op(st_, "do"))
            A(f"buffer_load_dwordx4 {v(XG,4)}, v10, {srd(S_WS)}, s46 offen {LDP('x')}")
            A(f"buffer_load_dwordx4 {v(XG+4,4)}, v10, {srd(S_WS)}, s48 offen {LDP('x')}")
            A(f"buffer_load_dwordx4 {v(XG+8,4)}, v11, {srd(S_WS)}, s47 offen sc1")
            A(f"buffer_load_dwordx4 {v(XG+12,4)}, v11, {srd(S_WS)}, s47 offen offset:16 sc1")
        if n == 73:
            A.wait_tag("do"); A("s_barrier")
            A(f"""
            s_mul_i32 s51, s3, {32*RS}
            v_and_b32 v18, 31, v1
            v_mul_u32_u24 v18, {RS}, v18
            v_bfe_u32 v19, v1, 5, 1
            v_lshl_add_u32 v18, v19, 4, v18
            v_add_u32 v18, s51, v18
            v_mul_u32_u24 v19, {RS}, v8
            v_lshl_add_u32 v19, v9, 5, v19
            """)
        if n + PF < N: A(frag_read(n+PF))
        if TL >= 3 and n == N - TL + 1: early = list(range(4))
        if early and n >= N - TL + 1:
            for _ in range(-(-len(early) // (N - n))):
                j = early.pop(0); A(f"ds_write_b128 v18, {v(ACC+4*j,4)} offset:{j*32}")
    assert not side
    ts(A, "mfma4"); tc(A, "mfma4")
    XF = 112
    for it in range(2):
        for h in range(4): A(f"v_lshlrev_b32 v{XF+it*8+2*h}, 16, v{XG+it*4+h}\nv_and_b32 v{XF+it*8+2*h+1}, 0xffff0000, v{XG+it*4+h}")
    for t in range(1 if TL >= 3 else 0, 2):
        for j in range(4):
            A(f"ds_write_b128 v18, {v(ACC+16*t+4*j,4)} offset:{t*128+j*32}")
    A("s_waitcnt lgkmcnt(0)\ns_barrier")
    RD = 128
    for it in range(2):
        for kh in range(2):
            for hf in range(2):
                A(f"ds_read_b128 {v(RD+it*16+kh*8+hf*4,4)}, v19 offset:{(kh*64+it*32)*RS+hf*16}")
    for it in range(2):
        z = RD + it*16
        for h in range(4): A(f"v_pk_add_f32 {v(z+2*h,2)}, {v(z+2*h,2)}, {v(z+8+2*h,2)}")
        for h in range(4): A(f"v_pk_fma_f32 {v(z+2*h,2)}, {v(z+2*h,2)}, {v(XG+8+2*h,2)}, {v(XF+it*8+2*h,2)}")
        if opt("scale", 0):
            for h in range(8): A(f"v_mul_f32 v{z+h}, {fbits(1 + opt('scale', 0)/1000)}, v{z+h}")
        for h in range(4): A(f"v_cvt_pk_bf16_f32 v{z+8+h}, v{z+2*h}, v{z+2*h+1}")
        A(f"buffer_store_dwordx4 {v(z+8,4)}, v12, {srd(S_OUT)}, s{49+it} offen {opt('outsc', 'sc1')}")

def LOC(c): return "" if c in opt("loc", "") else "sc1"
def LDP(c): return opt("ldp", "nt") if c in opt("loc", "") else "sc1"
def PLP(c): return opt("plp", "nt") if c in opt("loc", "") else opt("pp", "sc1").replace("+", " ")
def flag_set(A, soff, keep=0, reset=True, c="-", w0extra=False):
    sk = A.label("fs")
    A.c("hand-off: all stores of the workgroup are complete -> wave 0 publishes this launch's token")
    if w0extra:
        l0, l1 = A.label("fw"), A.label("fx")
        A(f"s_cmp_eq_u32 s3, 0\ns_cbranch_scc1 {l0}\ns_waitcnt vmcnt(0)\ns_branch {l1}\n{l0}:\ns_waitcnt vmcnt(1)\n{l1}:")
        keep = 1
    A(f"""
    s_waitcnt vmcnt({keep}) lgkmcnt(0)
    s_barrier
    s_cmp_lg_u32 s3, 0
    s_cbranch_scc1 {sk}
    v_mov_b32 v250, 0
    v_mov_b32 v251, s{S_TOK}
    s_mov_b64 exec, 1
    buffer_store_dword v251, v250, {srd(S_WS)}, s{soff} offen {opt("fp", "sc1").replace("+", " ") if LOC(c) else ""}
    s_mov_b64 exec, -1
    {sk}:
    """)
    A.reset()

def late_prefetch(A, chunks, do_touch, nonln):
    n = 0
    if do_touch: touch(A, nonln=nonln); n += 3
    wchunks(A, chunks); n += 6*len(list(chunks))
    return n

def poll(A, kind, soff, others=None, after0=None):
    sk, lp, w0, jn = A.label("pk"), A.label("pl"), A.label("p0"), A.label("pj")
    A.c("hand-off: wave 0 waits (bounded) for the producers' tokens, the other waves prefetch weights")
    A(f"s_cmp_eq_u32 s3, 0\ns_cbranch_scc1 {w0}")
    if others: others(A)
    A(f"s_branch {jn}\n{w0}:\ns_mov_b32 s{S_CNT}, 0")
    shrink = opt("shrink", 1)
    slp = f"s_sleep {opt('slp', 0)}\n" if opt("slp", 0) else ""
    if kind == "l16": A("v_lshlrev_b32 v250, 7, v2")
    elif kind.startswith("s64"): A("v_lshlrev_b32 v250, 6, v1")
    NG = int(kind[-1]) if kind.startswith("s64") else 0
    if not NG:
        if shrink: A(f"s_mov_b64 exec, {'0xffffff' if kind == 'lst' else '0xffff'}")
        A(f"""
        {lp}:
        buffer_load_dword v252, v250, {srd(S_WS)}, s{soff} offen {PLP('h' if kind == 'l16' else 'a')}
        s_add_u32 s{S_CNT}, s{S_CNT}, 1
        s_waitcnt vmcnt(0)
        v_cmp_ne_u32 vcc, s{S_TOK}, v252
        s_cmp_ge_u32 s{S_CNT}, {MAXPOLL}
        s_cbranch_scc1 {sk}
        """)
        if shrink: A(f"s_and_b64 exec, exec, vcc\ns_cbranch_execz {sk}\n{slp}s_branch {lp}")
        else: A(f"{slp}s_cbranch_vccnz {lp}")
        A(f"{sk}:\ns_mov_b64 exec, -1")
    else:
        for j in range(1, 4): A(f"s_add_u32 s{71+j}, s{soff}, {j*4096}")
        if opt("pre1", 0):
            l1, d1 = A.label("p1"), A.label("p2")
            if opt("pre1", 0) == 2: A(f"s_cmp_lt_u32 s2, 128\ns_cbranch_scc1 {d1}")
            A(f"""
            s_and_b32 s92, s2, 127
            s_lshl_b32 s92, s92, 6
            s_add_u32 s92, s92, s{soff}
            v_mov_b32 v251, 0
            s_mov_b64 exec, 1
            {l1}:
            buffer_load_dword v252, v251, {srd(S_WS)}, s92 offen sc1
            s_add_u32 s{S_CNT}, s{S_CNT}, 1
            s_waitcnt vmcnt(0)
            v_cmp_ne_u32 vcc, s{S_TOK}, v252
            s_cmp_ge_u32 s{S_CNT}, {MAXPOLL}
            s_cbranch_scc1 {d1}
            s_cbranch_vccnz {l1}
            {d1}:
            s_mov_b64 exec, -1
            """)
        M = [84, 86, 88, 90]
        for j in range(4): A(f"s_mov_b64 s[{M[j]}:{M[j]+1}], {-1 if j < NG else 0}")
        A(f"{lp}:")
        for j in range(NG):
            sj = A.label("ps")
            A(f"s_mov_b64 exec, s[{M[j]}:{M[j]+1}]\ns_cbranch_execz {sj}")
            A(f"buffer_load_dword v{252+j}, v250, {srd(S_WS)}, s{soff if j == 0 else 71+j} offen {PLP('-')}\n{sj}:")
        A(f"s_add_u32 s{S_CNT}, s{S_CNT}, 1\ns_waitcnt vmcnt(0)")
        for j in range(NG):
            A(f"s_mov_b64 exec, s[{M[j]}:{M[j]+1}]\nv_cmp_ne_u32 s[{M[j]}:{M[j]+1}], s{S_TOK}, v{252+j}" if shrink else f"s_mov_b64 exec, -1\nv_cmp_ne_u32 s[92:93], s{S_TOK}, v{252+j}\ns_cmp_lg_u64 s[92:93], 0\ns_cselect_b64 s[{M[j]}:{M[j]+1}], -1, 0")
        A(f"""
        s_or_b64 s[92:93], s[84:85], s[86:87]
        s_or_b64 s[94:95], s[88:89], s[90:91]
        s_cmp_ge_u32 s{S_CNT}, {MAXPOLL}
        s_cbranch_scc1 {sk}
        s_or_b64 s[92:93], s[92:93], s[94:95]
        s_cbranch_scc0 {sk}
        {slp}s_branch {lp}
        {sk}:
        s_mov_b64 exec, -1
        """)
    A.reset()
    if after0: after0(A)
    A(f"{jn}:\ns_barrier")

def poll_head(A, soff, vaddr):
    sk = A.label("ph")
    A(f"s_cmp_lg_u32 s3, 0\ns_cbranch_scc1 {sk}\nbuffer_load_dword v253, v{vaddr}, {srd(S_WS)}, s{soff} offen sc1\n{sk}:", tag="spin")
def poll_stag(A, soff, vaddr, others=None):
    sk, lp, w0, jn = A.label("pk"), A.label("pl"), A.label("p0"), A.label("pj")
    A.c("hand-off: wave 0 waits (bounded) for the producers' tokens with two staggered reads in flight")
    A(f"s_cmp_eq_u32 s3, 0\ns_cbranch_scc1 {w0}")
    if others: others(A)
    A(f"""
    s_branch {jn}
    {w0}:
    s_mov_b32 s{S_CNT}, 0
    {lp}:
    buffer_load_dword v252, v{vaddr}, {srd(S_WS)}, s{soff} offen sc1
    s_waitcnt vmcnt(1)
    v_cmp_ne_u32 vcc, s{S_TOK}, v253
    s_add_u32 s{S_CNT}, s{S_CNT}, 1
    s_cbranch_vccz {sk}
    buffer_load_dword v253, v{vaddr}, {srd(S_WS)}, s{soff} offen sc1
    s_waitcnt vmcnt(1)
    v_cmp_ne_u32 vcc, s{S_TOK}, v252
    s_cmp_ge_u32 s{S_CNT}, {MAXPOLL}
    s_cbranch_scc1 {sk}
    s_cbranch_vccnz {lp}
    {sk}:
    """, tag="spin")
    A.reset()
    A(f"{jn}:\ns_barrier")

def build():
    A = Asm()
    name = NAME + "_kernel"
    kernel_begin(A, name)
    done = A.label("done")
    if TS: A("s_memrealtime s[62:63]\ns_waitcnt lgkmcnt(0)")
    entry(A, done)
    if TS:
        A("v_mov_b32 v248, 0\nv_writelane_b32 v248, s62, 0"); _ts["n"] = 1; _ts["names"] = ["entry"]
    m, i_, e = A.label("k1mod"), A.label("k1idle"), A.label("k1end")
    tok = f"s_waitcnt lgkmcnt(0)\ns_mul_i32 s{S_TOK}, s{S_TOK}, 0x9e3779b1\ns_add_u32 s{S_TOK}, s{S_TOK}, 0x7f4a7c15\ns_lshl_b32 s62, s2, 6\ns_add_u32 s62, s62, {WS_F1}"
    pfA = range(opt("pfA", 0)); tm = opt("touch", 11)
    A(f"s_cmp_ge_u32 s2, 128\ns_cbranch_scc1 {m}")
    k1_ln(A)
    ts(A, "stiss")
    if opt("lateset", 0): common_setup(A, 2, True)
    if tm == 9: touch(A, "gu")
    keep = (2 if tm == 9 else 0) + late_prefetch(A, pfA if opt("pfApos", 0) == 3 else [], tm == 5, False)
    A(tok); flag_set(A, 62, keep)
    A(f"s_branch {e}\n{m}:\ns_cmp_ge_u32 s2, 224\ns_cbranch_scc1 {i_}")
    A.reset()
    k1_mod(A)
    tsx(A, 62)
    A.reset()
    keep = late_prefetch(A, pfA if opt("pfMpos", 0) == 3 else [], tm in (5, 6), tm == 6)
    A(tok); flag_set(A, 62, keep)
    if tm == 4 and opt("tafter", 0): touch(A, nonln=True)
    A(f"s_branch {e}\n{i_}:")
    A.reset()
    if opt("karg", 0): A(KREST)
    A(small_srd(S_X, 2097152) + "\n" + small_srd(S_C, 1024) + "\ns_waitcnt lgkmcnt(0)")
    common_setup(A)
    A(tok); flag_set(A, 62, 63)
    if opt("idledelay", 0):
        A(f"v_lshlrev_b32 v4, 2, v0\nbuffer_load_dword v8, v4, {srd(S_C)}, 0 offen\ns_waitcnt vmcnt(0)")
    if tm == 7: touch_early(A)
    def pre_own(base, dst):
        A(f"""
        s_sub_u32 s38, s2, 224
        s_lshl_b32 s38, s38, 2
        s_add_u32 s38, s38, s3
        s_lshl_b32 s38, s38, 14
        s_add_u32 s38, s38, {base}
        s_add_u32 s39, s38, 8192
        v_lshlrev_b32 v235, 7, v1
        buffer_load_dword v{dst}, v235, {srd(S_WS)}, s38 offen
        buffer_load_dword v{dst+1}, v235, {srd(S_WS)}, s39 offen
        """)
    if opt("tu", 0): pre_own(WS_U, 230)
    if tm == 9: touch(A, "gu")
    if tm in (10, 11): touch(A, "gu", nonln=True)
    if opt("th2", 0): pre_own(WS_H2, 232)
    if tm in (2, 5): touch(A)
    if tm in (3, 4, 6): touch(A, nonln=True)
    wchunks(A, pfA)
    A(f"{e}:")
    A.reset()
    ts(A, "f1set")
    if opt("cpf", 0) & 1: A(code_pf_text(".Lk2code", 249, 48))
    k2_pre(A, (lambda: wchunks(A, range(opt("pfA", 0), opt("pfA", 0) + opt("pf1", 3)))) if not opt("prefirst", 1) and not opt("w3", 1) else None)
    if opt("touch", 11) == 7: touch_late_setup(A)
    if opt("touch", 11) == 7 and opt("tlate", 0) == 0: touch_late(A)
    ts(A, "pre")
    w3 = opt("w3", 1)
    if opt("prefirst", 1) and not w3: wchunks(A, range(opt("pfA", 0), opt("pfA", 0) + opt("pf1", 3)))
    A(f"s_mov_b32 s63, {WS_F1}")
    poll(A, "s64x2" if opt("sepmod", 1) else "s64x4", 63, others=(lambda A_: w3_chunks(A_, range(opt("pf1", 3)))) if w3 else None)
    A.reset()
    ts(A, "sync1")
    A(".Lk2code:")
    k2_main(A)
    ts(A, "stiss2")
    keep = late_prefetch(A, range(opt("pfA", 0) + opt("pf1", 3), opt("pfB", 4)) if opt("pfBpos", 2) == 3 else [], False, False)
    flag_set(A, 62, keep + (4 if opt("latex1", 2) == 1 else 0), c="h")
    ts(A, "f2set")
    if not opt("w3b", 0): wchunks(A, range(opt("pfB", 4), opt("pfB", 4) + opt("pf3", 2)))
    stag = opt("stag", 0)
    if stag & 1:
        A(rb_expr() + f"\ns_lshl_b32 s63, s36, 11\ns_add_u32 s63, s63, {WS_F2}\nv_lshlrev_b32 v247, 7, v2")
        poll_head(A, 63, 247)
    k3_pre(A)
    idle3 = A.label("k3idle")
    A(f"s_cmp_eq_u32 s37, 15\ns_cbranch_scc1 {idle3}")
    if stag & 1: poll_stag(A, 63, 247)
    else: poll(A, "l16", 62, others=(lambda A_: w3_chunks(A_, range(opt("pfB", 4), opt("pfB", 4) + opt("pf3", 2)))) if opt("w3b", 0) else None)
    A.reset()
    ts(A, "sync2")
    A(".Lk3code:")
    k3_main(A, idle3)
    if opt("two", 0): A(f"s_add_u32 s61, s61, {WS_F3B - WS_F3}")
    flag_set(A, 61, c="a", w0extra=bool(opt("two", 0)))
    ts(A, "f3set")
    k4_pre(A)
    if stag & 2: poll_stag(A, 62, 250, others=wd_rest3)
    else: poll(A, "lst", 62, others=wd_rest3 if opt("wr3", 1) else wd_rest, after0=None if opt("wr3", 1) else wd_rest)
    ts(A, "sync3")
    k4_main(A)
    sk = A.label("ep")
    A(f"""
    s_or_b32 s63, s2, s3
    s_cmp_lg_u32 s63, 0
    s_cbranch_scc1 {sk}
    v_mov_b32 v250, 0
    v_mov_b32 v251, s{S_TOK}
    s_mov_b32 s63, {WS_EP}
    s_mov_b64 exec, 1
    buffer_store_dword v251, v250, {srd(S_WS)}, s63 offen sc1
    s_mov_b64 exec, -1
    {sk}:
    """)
    ts(A, "end")
    probe_end(A)
    ts_flush(A)
    A(f"{done}:\n.Lend:\ns_endpgm")
    if opt("jit", 0):
        import random
        rnd = random.Random(opt("jit", 0)); out = []
        def delay():
            lb = A.label("jit")
            c = f"s_cmp_eq_u32 s3, {rnd.randrange(4)}\ns_cbranch_scc0 {lb}" if rnd.random() < 0.6 else f"s_bitcmp1_b32 s2, {rnd.randrange(8)}\ns_cbranch_scc0 {lb}"
            return [Ins(x) for x in (c + f"\ns_sleep {rnd.randrange(2, 40)}\n{lb}:").split("\n")]
        for I in A.ins:
            if I.op == "s_barrier":
                if rnd.random() < 0.7: out += delay()
                out.append(I)
                if rnd.random() < 0.7: out += delay()
            else: out.append(I)
        A.ins = out
    code = A.finalize()
    return [(None, (256,1,1), (256,1,1), LDS_TOTAL)], code, [kernel_desc(name, 256, 172)]

if __name__ == "__main__":
    hdr = [l.rstrip("\n") for l in open("cdna_kernels/%s.s.ref" % NAME) if l.startswith(";") and "@launch" not in l][:15]
    hdr += ["; " + l for l in """
One persistent launch, 256 workgroups (one per CU) of 4 waves, four phases separated by flag hand-offs in d_ws.
The two DFTs (constant cos / sin matrices) are evaluated as Cooley-Tukey factorisations on the matrix cores:
  rows 2048 = 64 x 32 (phase 1 / phase 2), columns 512 = 16 x 32 (phase 2); the row DFT is applied before the
  column modulation, which commutes with it (the shift only reaches output row 0).
Hand-offs: write-through (sc1) stores, drain, barrier, token store; consumers poll with sc1 loads.  The token is
derived from an epoch word in d_ws that workgroup 0 advances at the end, so stale flags of earlier launches never match.
Workgroup -> role maps assume id % 8 = die for L2 locality only; any placement is correct.
""".strip().split("\n")]
    out = sys.argv[1]
    for kv in sys.argv[2:]:
        k_, v_ = kv.split("=")
        OPT[k_] = int(v_) if v_.lstrip("-").isdigit() else v_
    TS = bool(opt("ts", 0)); PROBE = opt("probe", None)
    launches, code, descs = build()
    open(out, "w").write(file_text(hdr, launches, code, descs))
    if TS: json.dump([_ts["names"]], open(out[:-2] + ".json", "w"))
```

```python
import sys, struct, math, json
from asmlib import *

NAME = "adaLN_cond__spectral_fnet__swiglu_ffn__prompt"
def fbits(x): return "0x%08x" % struct.unpack("<I", struct.pack("<f", x))[0]
OPT = {}
def opt(k, d): return OPT.get(k, d)

WS_U   = 0
WS_MOD = 0x240000
WS_H2  = 0x300000
WS_X1  = 0x500000
WS_ACT = 0x800000
WS_FLG = 0xE00000
WS_TS  = 0xF00000
WS_SIZE = 0x1000000
WS_EP  = WS_FLG
WS_F1  = WS_FLG + 0x1000
WS_F2  = WS_FLG + 0x10000
WS_F3  = WS_FLG + 0x20000
def SLOTSTR(): return 65536 + opt("upad", 0)
def HBS(): return 1088 if opt("hbsw", 1) else 1040
def USLOT(): return 512 if opt("upm", 0) else SLOTSTR()
def UOCT(): return 16384 if opt("upm", 0) else 512
def UN2(): return 65536 + opt("upad", 0) if opt("upm", 0) else 2048
MAXPOLL = int(__import__('os').environ.get('MAXPOLL', '400000'))
LDS_TOTAL = 163840
SLOT = 24640; UOFF = 12320
XCS = 1040
XWS = 16 * XCS
XIMG = LDS_TOTAL - 4 * XWS
XTAB = XIMG - 384
MW = XIMG
MSC = MW + 32768
MRED = MSC + 1024
K2EX = 123200
K2HB = K2EX + 18432
S_X, S_WG, S_WU, S_WD, S_C, S_WM, S_OUT, S_WS = 4, 8, 12, 16, 20, 24, 28, 32
S_TOK, S_CNT, S_SL, S_WL, S_DG, S_DL, S_T, S_T2 = 64, 65, 66, 67, 68, 69, 70, 75
V_W = 240
V_D = 243
def srd(b): return s(b, 4)
LOG2E = fbits(-math.log2(math.e))

TS = False
PROBE = None
_ts = {"n": 0, "names": []}
def ts(A, name=None, cyc=False):
    if not TS: return
    if opt("tsonly", None) and name not in opt("tsonly", "").split("+") and name not in ("f1set", "end"): return
    n = _ts["n"]; _ts["n"] += 1
    _ts["names"].append(("c:" if cyc else "") + name)
    A(f"{'s_memtime' if cyc else 's_memrealtime'} s[98:99]\ns_waitcnt lgkmcnt(0)\nv_writelane_b32 v248, s98, {n}")
def tsx(A, lane):
    if TS: A(f"s_memrealtime s[98:99]\ns_waitcnt lgkmcnt(0)\nv_writelane_b32 v248, s98, {lane}")
def tc(A, name=None): ts(A, name, True)
def probe_end(A):
    if PROBE is None: return
    lp = A.label("pr")
    idx = _ts["names"].index(PROBE)
    A(f"""
    s_waitcnt vmcnt(0) lgkmcnt(0)
    v_readlane_b32 s90, v248, 0
    v_readlane_b32 s91, v248, {idx}
    s_nop 4
    s_sub_u32 s91, s91, s90
    s_cmp_gt_u32 s91, 20000
    s_cselect_b32 s91, 0, s91
    s_add_u32 s91, s91, 6000
    {lp}:
    s_memrealtime s[92:93]
    s_waitcnt lgkmcnt(0)
    s_sub_u32 s92, s92, s90
    s_cmp_lt_u32 s92, s91
    s_cbranch_scc1 {lp}
    """)
def ts_flush(A):
    if not TS: return
    sk = A.label("tsk")
    A(f"s_waitcnt vmcnt(0) lgkmcnt(0)\ns_cmp_lg_u32 s3, 0\ns_cbranch_scc1 {sk}")
    A(f"s_lshl_b32 s64, s2, 8\ns_add_u32 s64, s64, {WS_TS}\nv_lshlrev_b32 v1, 2, v1")
    A(f"buffer_store_dword v248, v1, {srd(S_WS)}, s64 offen")
    A(f"s_waitcnt vmcnt(0)\n{sk}:")

def bf16r(A, dst, src):
    A(f"v_cvt_pk_bf16_f32 {dst}, {src}, {src}\nv_lshlrev_b32 {dst}, 16, {dst}")

_lbl = [None, 0]
def SLBL():
    _lbl[1] += 1; _lbl[0] = f".sl_{_lbl[1]}"; return _lbl[0]
def sl_expr(d=38, t=39):
    if opt("T", 4) == 2:
        return f"s_lshr_b32 s{d}, s2, 4"
    if opt("T", 4) == 4 and opt("bal", 0):
        return f"s_and_b32 s{d}, s2, 1\ns_mul_i32 s{d}, s{d}, 7\ns_lshr_b32 s{t}, s2, 5\ns_add_u32 s{d}, s{d}, s{t}\ns_cmp_eq_u32 s{t}, 7\ns_cbranch_scc0 {SLBL()}\ns_and_b32 s{d}, s2, 1\ns_add_u32 s{d}, s{d}, 14\n{_lbl[0]}:"
    if opt("T", 4) == 4:
        return f"s_and_b32 s{d}, s2, 1\ns_lshl_b32 s{d}, s{d}, 3\ns_lshr_b32 s{t}, s2, 5\ns_add_u32 s{d}, s{d}, s{t}"
    return f"s_and_b32 s{d}, s2, 3\ns_lshl_b32 s{d}, s{d}, 2\ns_lshr_b32 s{t}, s2, 6\ns_add_u32 s{d}, s{d}, s{t}"
def rb_expr():
    if opt("T", 4) == 2:
        return "s_and_b32 s36, s2, 7\ns_lshl_b32 s36, s36, 1\ns_bfe_u32 s39, s2, 0x10003\ns_add_u32 s36, s36, s39"
    if opt("T", 4) == 4:
        return "s_bfe_u32 s36, s2, 0x20001\ns_lshl_b32 s36, s36, 2\ns_bfe_u32 s39, s2, 0x20003\ns_add_u32 s36, s36, s39"
    return "s_bfe_u32 s36, s2, 0x10002\ns_lshl_b32 s36, s36, 3\ns_bfe_u32 s39, s2, 0x30003\ns_add_u32 s36, s36, s39"
KREST = """s_load_dwordx2 s[24:25], s[0:1], 80
    s_load_dwordx2 s[20:21], s[0:1], 72
    s_load_dwordx2 s[32:33], s[0:1], 104
    s_load_dwordx2 s[8:9], s[0:1], 48
    s_load_dwordx2 s[12:13], s[0:1], 56
    s_load_dwordx2 s[16:17], s[0:1], 64
    s_load_dwordx2 s[28:29], s[0:1], 88"""
def entry(A, done):
    A.c('---- entry: over-launched workgroups leave; kernel-argument loads; code prefetch into L2 ----')
    CP = opt("codepf", 1)
    A(f"""
    s_cmp_ge_u32 s2, 256
    s_cbranch_scc1 {done}
    s_load_dwordx2 s[4:5], s[0:1], 0
    {"" if opt("karg", 0) else KREST}
    v_lshrrev_b32 v2, 6, v0
    v_and_b32 v1, 63, v0
    v_readfirstlane_b32 s3, v2
    """)
    if CP and not opt("cppos", 1): code_prefetch(A)
    A("v_and_b32 v2, 15, v0\nv_bfe_u32 v3, v0, 4, 2")

def code_prefetch(A):
    if True:
        A(f"""
        s_getpc_b64 s[40:41]
        s_and_b32 s40, s40, 0xffffff00
        s_lshr_b32 s42, s2, 3
        s_lshl_b32 s42, s42, 2
        s_add_u32 s42, s42, s3
        s_and_b32 s42, s42, {opt("cpmask", 15)}
        s_lshl_b32 s42, s42, 11
        v_and_b32 v250, 15, v0
        v_lshlrev_b32 v250, 7, v250
        v_add_u32 v250, s42, v250
        v_min_u32 v250, .Lend-{NAME}_kernel, v250
        global_load_dword v249, v250, s[40:41]
        """.replace("s42", "s74" if opt("cppos", 1) else "s42").replace("s[40:41]", "s[72:73]" if opt("cppos", 1) else "s[40:41]").replace("s40", "s72" if opt("cppos", 1) else "s40"))

def common_setup(A, part=3, ln=False):
    if part & 1: common_early(A, ln)
    if part & 2: common_late(A, ln)
def common_early(A, ln=False):
    if opt("codepf", 1) and opt("cppos", 1) and not (ln and opt("cppos", 1) == 2): code_prefetch(A)
    for b, sz in ((S_WG, 1409024), (S_WU, 1409024), (S_WD, 1409024), (S_OUT, 2097152), (S_WS, WS_SIZE)):
        A(f"s_mov_b32 s{b+2}, {sz}\ns_mov_b32 s{b+3}, 0x20000")
    A(f"s_add_u32 s72, s32, {WS_EP}\ns_addc_u32 s73, s33, 0\ns_load_dword s{S_TOK}, s[72:73], 0")
def common_late(A, ln):
    A(f"""
    {sl_expr(72, 73)}
    s_mul_i32 s{S_SL}, s72, 192
    s_cmp_eq_u32 s72, 15
    s_cselect_b32 s{S_SL}, 0x200000, s{S_SL}
    s_mul_i32 s{S_WL}, s3, 3072
    s_mul_i32 s72, s3, 192
    s_mov_b32 s73, 0x15555556
    """)
    for i in range(3):
        A(f"""
        v_add_u32 v{V_W+i}, s72, v1
        v_add_u32 v{V_W+i}, {64*i}, v{V_W+i}
        v_mul_hi_u32 v244, v{V_W+i}, s73
        v_mul_u32_u24 v245, 12, v244
        v_sub_u32 v{V_W+i}, v{V_W+i}, v245
        v_lshlrev_b32 v{V_W+i}, 4, v{V_W+i}
        v_mul_u32_u24 v244, 2752, v244
        v_add_u32 v{V_W+i}, v{V_W+i}, v244
        """)
    if opt("tlb", 0):
        A(f"""
        v_lshlrev_b32 v239, {opt("tlb", 0)}, v1
        v_add_u32 v239, 0x2ff000, v239
        v_min_u32 v239, {WS_SIZE - 64}, v239
        buffer_load_dword v235, v239, {srd(S_WS)}, 0 offen
        v_mov_b32 v239, 0
        buffer_load_dword v234, v239, {srd(S_OUT)}, 0 offen
        """)
    if not ln and opt("touch", 11) in (1, 2, 3, 4, 5, 6, 8, 9, 10, 11): touch_setup(A, opt("touch", 11) in (3, 4, 6, 10, 11))
V_W3 = 224
def w3_setup(A):
    A(f"s_sub_u32 s72, s3, 1\ns_lshl_b32 s96, s72, 12\ns_lshl_b32 s72, s72, 8\ns_mov_b32 s73, 0x15555556")
    for i in range(4):
        A(f"""
        v_add_u32 v{V_W3+i}, s72, v1
        v_add_u32 v{V_W3+i}, {64*i}, v{V_W3+i}
        v_mul_hi_u32 v244, v{V_W3+i}, s73
        v_mul_u32_u24 v245, 12, v244
        v_sub_u32 v{V_W3+i}, v{V_W3+i}, v245
        v_lshlrev_b32 v{V_W3+i}, 4, v{V_W3+i}
        v_mul_u32_u24 v244, 2752, v244
        v_add_u32 v{V_W3+i}, v{V_W3+i}, v244
        """)
def w3_chunks(A, chunks):
    w3_setup(A)
    for ch in chunks:
        A(f"s_add_u32 s{S_T2}, s{S_SL}, {ch*64*2752}")
        for mtx, sr in ((0, S_WG), (1, S_WU)):
            for i in range(4):
                A(f"s_add_u32 m0, s96, {ch*SLOT+mtx*UOFF+i*1024}\nbuffer_load_dwordx4 v{V_W3+i}, {srd(sr)}, s{S_T2} offen lds")
def code_pf_text(label, dst, nlines=64):
    here = f".Lpc_{label.strip('.')}"
    return f"""s_getpc_b64 s[72:73]
    {here}:
    s_add_u32 s72, s72, {label}-{here}
    s_addc_u32 s73, s73, 0
    v_min_u32 v{dst}, {nlines-1}, v1
    v_lshlrev_b32 v{dst}, 7, v{dst}
    v_min_u32 v{dst}, .Lend-{label}, v{dst}
    global_load_dword v{dst}, v{dst}, s[72:73]"""
def small_srd(b, sz): return f"s_mov_b32 s{b+2}, {sz}\ns_mov_b32 s{b+3}, 0x20000"

def touch_setup(A, nonln=False):
    n = 22 if nonln else 11
    A(f"""
    s_lshl_b32 s{S_T}, s2, 2
    s_add_u32 s{S_T}, s{S_T}, s3
    s_and_b32 s{S_T}, s{S_T}, {511 if nonln else 1023}
    s_mul_i32 s{S_T}, s{S_T}, {n}
    v_min_u32 v246, {n-1}, v1
    v_add_u32 v246, s{S_T}, v246
    v_lshlrev_b32 v246, 7, v246
    """)
def touch(A, which="gud", nonln=False):
    pol = opt("tpol", "")
    A(f"s_mov_b64 exec, {hex((1 << (22 if nonln else 11)) - 1)}")
    if "g" in which: A(f"buffer_load_dword v236, v246, {srd(S_WG)}, 0 offen {pol}")
    if "u" in which: A(f"buffer_load_dword v237, v246, {srd(S_WU)}, 0 offen {pol}")
    if "d" in which: A(f"buffer_load_dword v238, v246, {srd(S_WD)}, 0 offen {pol}")
    A("s_mov_b64 exec, -1")

def touch_early(A):
    rows = 64 * opt("terows", 5)
    n = (rows * 2752 // 128 + 127) // 128
    A(f"""
    s_sub_u32 s38, s2, 224
    s_lshl_b32 s38, s38, 2
    s_add_u32 s38, s38, s3
    s_mul_i32 s38, s38, {n}
    v_min_u32 v246, {n-1}, v1
    v_add_u32 v246, s38, v246
    v_lshlrev_b32 v246, 7, v246
    buffer_load_dword v247, v246, {srd(S_WG)}, 0 offen
    buffer_load_dword v245, v246, {srd(S_WU)}, 0 offen
    """)
    for j in range(1, (n + 63) // 64):
        A(f"""
        v_add_u32 v244, {64*j}, v1
        v_min_u32 v244, {n-1}, v244
        v_add_u32 v244, s38, v244
        v_lshlrev_b32 v244, 7, v244
        buffer_load_dword v239, v244, {srd(S_WG)}, 0 offen
        buffer_load_dword v238, v244, {srd(S_WU)}, 0 offen
        """)
def touch_late_setup(A):
    rows0 = 64 * opt("terows", 5)
    n = ((512 - rows0) * 2752 // 128 + 1023) // 1024
    A(f"""
    s_lshl_b32 s{S_T}, s2, 2
    s_add_u32 s{S_T}, s{S_T}, s3
    s_mul_i32 s71, s{S_T}, 11
    s_mul_i32 s{S_T}, s{S_T}, {n}
    s_add_u32 s{S_T}, s{S_T}, {rows0*2752//128}
    v_min_u32 v246, {max(n-1,0)}, v1
    v_add_u32 v246, s{S_T}, v246
    v_lshlrev_b32 v246, 7, v246
    v_min_u32 v247, 10, v1
    v_add_u32 v247, s71, v247
    v_lshlrev_b32 v247, 7, v247
    """)
def touch_late(A):
    A(f"""
    s_mov_b64 exec, 0x7ff
    buffer_load_dword v245, v246, {srd(S_WG)}, 0 offen
    buffer_load_dword v244, v246, {srd(S_WU)}, 0 offen
    buffer_load_dword v246, v247, {srd(S_WD)}, 0 offen
    s_mov_b64 exec, -1
    """)

def wchunk_ops(chunk, slot, tag):
    ops = []
    for mtx, sr in ((0, S_WG), (1, S_WU)):
        for i in range(3):
            t = f"s_add_u32 m0, s{S_WL}, {slot*SLOT+mtx*UOFF+i*1024}\n"
            if mtx == 0 and i == 0: t += f"s_add_u32 s{S_T2}, s{S_SL}, {chunk*64*2752}\n"
            t += f"buffer_load_dwordx4 v{V_W+i}, {srd(sr)}, s{S_T2} offen {opt('wpol','')} lds"
            ops.append((t, tag))
    return ops
def wchunks(A, chunks):
    for ch in chunks:
        for t, tag in wchunk_ops(ch, ch, f"w{ch}"): A(t, tag=tag)

def k1_ln(A):
    A.c('==== phase 1a (workgroups 0..127): LayerNorm-1 statistics of 64 rows n = 32*n1 + n2 and the 64-point DFT over n1 ====\nrows -> LDS (DMA), sum / sum of squares by MFMA, U[slot][n2][d] = sum_n1 W64^(n1*slot) * r[n1] * (x - mean) -> workspace')
    A(f"""
    s_and_b32 s38, s2, 7
    s_lshr_b32 s39, s2, 3
    s_lshr_b32 s40, s39, 2
    s_lshl_b32 s40, s40, 3
    s_add_u32 s36, s38, s40
    s_and_b32 s37, s39, 3
    v_lshrrev_b32 v4, 2, v1
    v_sub_u32 v5, 0, v3
    v_xor_b32 v5, v5, v1
    v_and_b32 v5, 3, v5
    v_lshlrev_b32 v4, 15, v4
    v_lshl_add_u32 v4, v5, 4, v4
    s_lshl_b32 s38, s3, 9
    s_add_u32 s38, s38, s36
    s_lshl_b32 s38, s38, 10
    s_mul_i32 s39, s3, {XWS}
    s_add_u32 s39, s39, {XIMG}
    {small_srd(S_X, 2097152)}
    s_waitcnt lgkmcnt(0)
    """)
    ts(A, "prolog")
    for i in range(16):
        A(f"s_add_u32 m0, s39, {i*(XCS-64)}")
        A(f"buffer_load_dwordx4 v4, {srd(S_X)}, s38 offen offset:{i*64} {opt('xpol','')} lds", tag=f"x{i}")
    if opt("karg", 0): A(KREST + "\ns_waitcnt lgkmcnt(0)")
    common_setup(A, 1 if opt("lateset", 0) else 3, True)
    BC, NV = 16, 48
    A("""
    v_lshlrev_b32 v5, 3, v3
    v_cvt_f32_u32 v5, v5
    s_and_b32 s40, s3, 1
    s_lshl_b32 s40, s40, 4
    v_add_u32 v6, s40, v2
    v_cmp_eq_u32 vcc, 0, v6
    v_cvt_f32_u32 v6, v6
    v_mul_f32 v6, 0x3c800000, v6
    v_mov_b32 v8, 0x3e800000
    v_cndmask_b32 v9, v6, 0.5, vcc
    v_cndmask_b32 v10, v8, 0, vcc
    """)
    for ks in range(2):
        for j in range(8):
            A(f"v_add_f32 v{NV}, {fbits(32*ks+j)}, v5\nv_mul_f32 v{BC+ks*8+j}, v{NV}, v6\nv_fma_f32 v{BC+16+ks*8+j}, v{NV}, v9, v10")
    for i in range(32): A(f"v_cos_f32 v{BC+i}, v{BC+i}")
    ONES, G, SA = 112, 116, 120
    for i in range(4): A(f"v_mov_b32 v{ONES+i}, 0x3f803f80")
    A(f"""
    v_lshrrev_b32 v5, 2, v2
    v_sub_u32 v5, 0, v5
    v_xor_b32 v5, v5, v3
    v_and_b32 v5, 3, v5
    v_lshlrev_b32 v5, 4, v5
    v_lshl_add_u32 v5, v2, 6, v5
    v_add_u32 v5, s39, v5
    v_lshrrev_b32 v6, 1, v3
    v_mul_u32_u24 v6, {XWS}, v6
    v_and_b32 v7, 3, v1
    v_mul_u32_u24 v7, {XCS}, v7
    v_add_u32 v6, v6, v7
    v_and_b32 v7, 1, v3
    v_lshl_add_u32 v6, v7, 9, v6
    v_bfe_u32 v8, v1, 2, 2
    v_lshl_add_u32 v6, v8, 6, v6
    s_lshr_b32 s41, s3, 1
    s_mul_i32 s42, s41, {8*XCS}
    s_add_u32 s42, s42, {XIMG}
    v_add_u32 v6, s42, v6
    v_lshlrev_b32 v7, 1, v7
    v_xor_b32 v8, s37, v7
    v_lshl_add_u32 v11, v8, 4, v6
    v_xor_b32 v8, 3, v8
    v_lshl_add_u32 v12, v8, 4, v6
    v_add_u32 v12, 256, v12
    s_lshl_b32 s42, s3, 6
    s_add_u32 s42, s42, {XTAB}
    v_lshl_add_u32 v7, v2, 2, s42
    s_lshl_b32 s42, s3, 5
    s_add_u32 s42, s42, {XTAB+256}
    v_lshl_add_u32 v13, v2, 1, s42
    v_lshlrev_b32 v8, 5, v3
    v_add_u32 v8, {XTAB}, v8
    v_lshlrev_b32 v14, 4, v3
    v_add_u32 v14, {XTAB+256}, v14
    s_mov_b32 s42, 0x22222222
    s_mov_b32 s43, 0x22222222
    s_mov_b32 s44, 0x44444444
    s_mov_b32 s45, 0x44444444
    s_mov_b32 s46, 0x88888888
    s_mov_b32 s47, 0x88888888
    v_add_u32 v9, s40, v2
    v_mul_u32_u24 v9, {USLOT()}, v9
    v_lshl_add_u32 v9, v3, 4, v9
    s_mul_i32 s48, s36, {UN2()}
    s_mul_i32 s49, s37, {UOCT()}
    s_add_u32 s48, s48, s49
    s_lshl_b32 s49, s41, 7
    s_add_u32 s48, s48, s49
    s_add_u32 s48, s48, {WS_U}
    """)
    ts(A, "const")
    R = 48
    pfl = [op for ch in range(opt("pfA", 0)) for op in wchunk_ops(ch, ch, f"w{ch}")] if opt("pfApos", 0) == 2 else []
    for i in range(16):
        A.wait_tag(f"x{i}")
        A(f"ds_read_b128 {v(R+4*i,4)}, v5 offset:{i*XCS}")
        for _ in range(2 if i >= 14 - len(pfl)//2 + 7 else 1):
            if pfl and i >= opt("pfAi", 2): A(*pfl.pop(0))
        if i >= 1:
            k = i - 1
            A(f"v_mfma_f32_16x16x32_bf16 {v(G,4)}, {v(R+4*k,4)}, {v(R+4*k,4)}, {v(G,4) if k else 0}")
            A(f"v_mfma_f32_16x16x32_bf16 {v(SA,4)}, {v(ONES,4)}, {v(R+4*k,4)}, {v(SA,4) if k else 0}")
    A("s_barrier")
    late_pf = pfl
    A(f"v_mfma_f32_16x16x32_bf16 {v(G,4)}, {v(R+60,4)}, {v(R+60,4)}, {v(G,4)}")
    A(f"v_mfma_f32_16x16x32_bf16 {v(SA,4)}, {v(ONES,4)}, {v(R+60,4)}, {v(SA,4)}")
    ts(A, "xarr")
    if opt("touch", 11) == 2: touch(A)
    if opt("pfA", 0) and opt("pfApos", 0) == 1: wchunks(A, range(opt("pfA", 0)))
    X = 128
    for tl in range(4):
        for ks in range(2):
            b = X + (tl*2+ks)*4
            off = ks*2*XWS + (tl >> 1)*4*XCS + 8*(tl & 1)
            A(f"ds_read_b64_tr_b16 {v(b,2)}, v11 offset:{off}\nds_read_b64_tr_b16 {v(b+2,2)}, v12 offset:{off}")
    A(f"""
    v_cndmask_b32 v10, v{G}, v{G+1}, s[42:43]
    v_cndmask_b32 v10, v10, v{G+2}, s[44:45]
    v_cndmask_b32 v10, v10, v{G+3}, s[46:47]
    v_mul_f32 v15, 0xbb000000, v{SA}
    v_mul_f32 v10, 0x3b000000, v10
    v_fma_f32 v10, -v15, v15, v10
    v_max_f32 v10, 0, v10
    v_cvt_pk_bf16_f32 v15, v15, v10
    v_and_b32 v10, 0xffff0000, v15
    v_add_f32 v10, {fbits(1e-5)}, v10
    """)
    bf16r(A, "v10", "v10")
    A("v_sqrt_f32 v10, v10")
    bf16r(A, "v10", "v10")
    A("""
    v_rcp_f32 v10, v10
    s_mov_b32 exec_lo, 0x00f0000f
    s_mov_b32 exec_hi, 0xf0000f00
    ds_write_b16 v13, v15
    ds_write_b32 v7, v10
    s_mov_b64 exec, -1
    s_waitcnt lgkmcnt(0)
    s_barrier
    """)
    ts(A, "stats")
    for op in late_pf: A(*op)
    TR, AM, BP, CM, ACC, PK = 48, 64, 72, 88, 160, 96
    for ks in range(2):
        for hf in range(2): A(f"ds_read_b128 {v(TR+ks*8+hf*4,4)}, v8 offset:{ks*128+hf*16}")
        A(f"ds_read_b128 {v(AM+ks*4,4)}, v14 offset:{ks*64}")
    for ks in range(2):
        for c in range(2):
            for jj in range(4):
                b = BC + c*16 + ks*8 + 2*jj
                A(f"v_pk_mul_f32 {v(b,2)}, {v(b,2)}, {v(TR+ks*8+2*jj,2)}")
            for jj in range(4):
                b = BC + c*16 + ks*8 + 2*jj
                A(f"v_cvt_pk_bf16_f32 v{BP+(c*2+ks)*4+jj}, v{b}, v{b+1}")
    for ks in range(2):
        for c in range(2):
            A(f"v_mfma_f32_16x16x32_bf16 {v(CM+4*c,4)}, {v(AM+ks*4,4)}, {v(BP+(c*2+ks)*4,4)}, {v(CM+4*c,4) if ks else 0}")
    for tl in range(4):
        for c in range(2):
            acc = ACC + (tl*2+c)*4
            A(f"v_mfma_f32_16x16x32_bf16 {v(acc,4)}, {v(X+(tl*2)*4,4)}, {v(BP+(c*2)*4,4)}, {v(CM+4*c,4)}")
        for c in range(2):
            acc = ACC + (tl*2+c)*4
            A(f"v_mfma_f32_16x16x32_bf16 {v(acc,4)}, {v(X+(tl*2+1)*4,4)}, {v(BP+(c*2+1)*4,4)}, {v(acc,4)}")
        if tl >= 1: k1_store(A, tl-1, ACC, PK)
    k1_store(A, 3, ACC, PK)

def k1_store(A, tl, ACC, PK):
    acc = ACC + tl*8; pk = PK + tl*4
    for r in range(4): A(f"v_cvt_pk_bf16_f32 v{pk+r}, v{acc+r}, v{acc+4+r}")
    A(f"buffer_store_dwordx4 {v(pk,4)}, v9, {srd(S_WS)}, s48 offen offset:{(tl&1)*256+(tl>>1)*64} sc1", tag="st")

def k1_mod(A):
    if opt("karg", 0): A(KREST)
    A.c('==== phase 1b (workgroups 128..223): mod = silu(c) @ w_mod, 32 columns per workgroup ====')
    A(f"""
    s_and_b32 s38, s2, 7
    s_lshr_b32 s39, s2, 3
    s_mul_i32 s38, s38, 12
    s_add_u32 s36, s38, s39
    s_sub_u32 s36, s36, 16
    v_lshlrev_b32 v4, 2, v0
    {small_srd(S_C, 1024)}
    {small_srd(S_WM, 3145728)}
    {small_srd(S_X, 2097152)}
    v_lshrrev_b32 v5, 2, v1
    v_mul_u32_u24 v5, 6144, v5
    v_and_b32 v6, 3, v1
    v_lshl_add_u32 v5, v6, 4, v5
    s_mul_i32 s38, s3, {128*6144}
    s_lshl_b32 s39, s36, 6
    s_add_u32 s38, s38, s39
    s_lshl_b32 s39, s3, 13
    s_add_u32 s39, s39, {MW}
    s_waitcnt lgkmcnt(0)
    buffer_load_dword v8, v4, {srd(S_C)}, 0 offen
    """)
    if opt("touch", 11) == 3: touch(A, nonln=True)
    if opt("moddelay", 0): A("v_mov_b32 v8, v8")
    for i in range(8):
        A(f"s_add_u32 m0, s39, {i*1024}")
        if i: A(f"s_add_u32 s38, s38, {16*6144}")
        A(f"buffer_load_dwordx4 v5, {srd(S_WM)}, s38 offen {opt('mpol','nt')} lds", tag="wm")
    common_setup(A)
    A(f"""
    v_bfe_u32 v6, v1, 2, 2
    v_lshl_add_u32 v6, v3, 3, v6
    v_lshlrev_b32 v6, 6, v6
    v_and_b32 v7, 3, v1
    v_lshl_add_u32 v6, v7, 3, v6
    v_add_u32 v6, s39, v6
    v_add_u32 v4, {MSC}, v4
    s_lshl_b32 s40, s3, 8
    s_add_u32 s40, s40, {MSC}
    v_lshl_add_u32 v7, v3, 4, s40
    v_lshlrev_b32 v9, 16, v8
    v_and_b32 v10, 0xffff0000, v8
    v_mul_f32 v11, {LOG2E}, v9
    v_mul_f32 v12, {LOG2E}, v10
    v_exp_f32 v11, v11
    v_exp_f32 v12, v12
    v_add_f32 v11, 1.0, v11
    v_add_f32 v12, 1.0, v12
    v_rcp_f32 v11, v11
    v_rcp_f32 v12, v12
    v_mul_f32 v9, v9, v11
    v_mul_f32 v10, v10, v12
    v_cvt_pk_bf16_f32 v9, v9, v10
    ds_write_b32 v4, v9
    """)
    SF, WF, ACC = 16, 32, 64
    A("s_waitcnt lgkmcnt(0)")
    tsx(A, 60)
    for ks in range(4): A(f"ds_read_b128 {v(SF+4*ks,4)}, v7 offset:{ks*64}")
    A(f"""
    v_and_b32 v10, 31, v1
    s_lshr_b32 s40, s36, 4
    s_and_b32 s41, s36, 15
    s_lshl_b32 s41, s41, 5
    v_add_u32 v10, s41, v10
    v_lshrrev_b32 v15, 8, v10
    v_lshlrev_b32 v15, 8, v15
    v_bfe_u32 v72, v10, 2, 2
    v_lshl_add_u32 v15, v72, 6, v15
    v_bfe_u32 v72, v10, 4, 4
    v_lshl_add_u32 v15, v72, 2, v15
    v_and_b32 v72, 3, v10
    v_add_u32 v15, v15, v72
    v_bfe_u32 v72, v10, 3, 2
    v_lshlrev_b32 v73, 7, v72
    v_bfe_u32 v72, v10, 7, 2
    v_lshl_add_u32 v73, v72, 5, v73
    v_and_b32 v72, 7, v10
    v_lshl_add_u32 v73, v72, 2, v73
    v_bfe_u32 v72, v10, 5, 2
    v_add_u32 v73, v73, v72
    s_cmp_lt_u32 s40, 2
    s_cselect_b64 vcc, -1, 0
    v_cndmask_b32 v15, v15, v73, vcc
    s_cmp_eq_u32 s40, 5
    s_cselect_b64 vcc, -1, 0
    v_cndmask_b32 v10, v15, v10, vcc
    v_lshlrev_b32 v10, 2, v10
    s_lshl_b32 s41, s40, 11
    s_add_u32 s41, s41, {WS_MOD}
    s_cmp_eq_u32 s40, 1
    s_cselect_b32 s42, 1.0, 0
    s_cmp_eq_u32 s40, 4
    s_cselect_b32 s42, 1.0, s42
    s_lshl_b32 s43, s3, 7
    s_add_u32 s43, s43, {MRED}
    v_lshl_add_u32 v9, v2, 2, s43
    s_sub_u32 s44, s40, 3
    s_cmp_lt_u32 s44, 2
    s_cselect_b32 s43, {fbits(math.log2(math.e))}, 1.0
    s_cmp_eq_u32 s40, 5
    s_cselect_b32 s43, {fbits(1/math.log2(math.e)**2)}, s43
    v_and_b32 v74, 31, v1
    v_lshlrev_b32 v74, 2, v74
    v_add_u32 v74, {MRED}, v74
    """)
    A.wait_tag("wm")
    tsx(A, 61)
    if opt("touch", 11) == 2: touch(A)
    if opt("touch", 11) == 4 and not opt("tafter", 0): touch(A, nonln=True)
    if opt("touch", 11) == 9: touch(A, "gu")
    if opt("touch", 11) in (10, 11): touch(A, "gu", nonln=True)
    if opt("pfA", 0) and opt("pfMpos", 0) == 1: wchunks(A, range(opt("pfA", 0)))
    for ks in range(4):
        for nt in range(2):
            b = WF + (ks*2+nt)*4
            off = ks*2048 + nt*32
            A(f"ds_read_b64_tr_b16 {v(b,2)}, v6 offset:{off}\nds_read_b64_tr_b16 {v(b+2,2)}, v6 offset:{off+256}")
    for ks in range(4):
        for nt in range(2):
            A(f"v_mfma_f32_16x16x32_bf16 {v(ACC+4*nt,4)}, {v(SF+4*ks,4)}, {v(WF+(ks*2+nt)*4,4)}, {v(ACC+4*nt,4) if ks else 0}")
    skip = A.label("modskip")
    A(f"""
    s_mov_b64 exec, 0xffff
    ds_write_b32 v9, v{ACC}
    ds_write_b32 v9, v{ACC+4} offset:64
    s_mov_b64 exec, -1
    s_waitcnt lgkmcnt(0)
    s_barrier
    s_cmp_lg_u32 s3, 0
    s_cbranch_scc1 {skip}
    ds_read_b32 v11, v74
    ds_read_b32 v12, v74 offset:128
    ds_read_b32 v13, v74 offset:256
    ds_read_b32 v14, v74 offset:384
    v_add_f32 v11, v11, v12
    v_add_f32 v13, v13, v14
    v_add_f32 v11, v11, v13
    """)
    bf16r(A, "v11", "v11")
    A("v_add_f32 v11, s42, v11")
    bf16r(A, "v11", "v11")
    if opt("fold", 1): A("v_mul_f32 v11, s43, v11")
    A(f"""
    s_mov_b32 exec_hi, 0
    buffer_store_dword v11, v10, {srd(S_WS)}, s41 offen sc1
    s_mov_b64 exec, -1
    {skip}:
    """)

K2 = dict(BS=16, CC=24, CS=26, TW=28, BH=44, U=64, XR=128, CA=136, GA=168, CB=176, SB=184, Z=192, XF=224)
def k2_pre(A, hook=None):
    A.c('==== phase 2 set-up: twiddle / DFT constants (v_cos / v_sin), residual rows, addresses ====')
    r = K2
    if opt("T", 4) == 2: A("s_and_b32 s36, s2, 7\ns_lshl_b32 s36, s36, 2\ns_bfe_u32 s37, s2, 0x20003")
    else: A("s_and_b32 s36, s2, 7\ns_bfe_u32 s37, s2, 0x20003\ns_lshl_b32 s37, s37, 3")
    A("""
    s_add_u32 s36, s36, s37
    s_lshr_b32 s37, s2, 5
    s_sub_u32 s39, 64, s36
    s_cmp_eq_u32 s36, 0
    s_cselect_b32 s39, 32, s39
    s_cselect_b64 s[40:41], -1, 0
    s_lshl_b32 s42, s37, 2
    s_add_u32 s43, s42, s3
    s_lshl_b32 s43, s43, 6
    s_add_u32 s44, s43, s36
    s_add_u32 s45, s43, s39
    s_lshl_b32 s44, s44, 10
    s_lshl_b32 s45, s45, 10
    v_lshlrev_b32 v4, 5, v2
    v_lshl_add_u32 v4, v3, 3, v4
    """)
    for uu in range(2):
        for nt in range(2):
            A(f"buffer_load_dwordx2 {v(r['XR']+(uu*2+nt)*2,2)}, v4, {srd(S_X)}, s{44+uu} offen offset:{nt*512}")
    if hook: hook()
    A("""
    v_lshrrev_b32 v5, 2, v2
    v_add_u32 v5, s42, v5
    v_lshlrev_b32 v5, 6, v5
    v_and_b32 v6, 2, v2
    v_cmp_ne_u32 vcc, 0, v6
    v_mov_b32 v7, s36
    v_mov_b32 v8, s39
    v_cndmask_b32 v7, v7, v8, vcc
    v_add_u32 v5, v5, v7
    v_cvt_f32_u32 v5, v5
    v_mul_f32 v5, 0x3a000000, v5
    v_and_b32 v6, 1, v2
    v_cvt_f32_u32 v6, v6
    v_mul_f32 v6, 0x3e800000, v6
    v_mov_b32 v7, 0xbe800000
    v_mov_b32 v8, 0x3e800000
    v_cndmask_b32 v7, v7, v8, vcc
    v_cndmask_b32 v7, v7, 0, s[40:41]
    v_add_f32 v7, v7, v6
    v_cndmask_b32 v8, 1.0, 0, vcc
    v_cndmask_b32 v9, 0, 1.0, vcc
    v_cndmask_b32 v8, 1.0, v8, s[40:41]
    v_cndmask_b32 v9, 1.0, v9, s[40:41]
    v_lshlrev_b32 v10, 2, v3
    v_cvt_f32_u32 v10, v10
    """)
    T = 64
    NQ = 72
    for ks in range(2):
        for i in range(4): A(f"v_add_f32 v{NQ+ks*4+i}, {fbits(16*ks+i)}, v10")
    for ks in range(2):
        for i in range(4):
            A(f"v_fma_f32 v{T+2*i}, v{NQ+ks*4+i}, v5, v6\nv_fma_f32 v{T+2*i+1}, v{NQ+ks*4+i}, v5, v7")
        for i in range(8): A(f"v_cos_f32 v{T+i}, v{T+i}")
        for i in range(4):
            A(f"v_pk_mul_f32 {v(T+2*i,2)}, {v(T+2*i,2)}, v[8:9]")
            A(f"v_cvt_pk_bf16_f32 v{r['BS']+ks*4+i}, v{T+2*i}, v{T+2*i+1}")
    A("v_cvt_f32_u32 v12, v2\nv_mul_f32 v13, 0x3d800000, v12")
    for j in range(4): A(f"v_mul_f32 v{T+j}, v{NQ+j}, v13")
    for j in range(4): A(f"v_sin_f32 v{T+4+j}, v{T+j}")
    for j in range(4): A(f"v_cos_f32 v{T+j}, v{T+j}")
    for jj in range(2):
        A(f"v_cvt_pk_bf16_f32 v{r['CC']+jj}, v{T+2*jj}, v{T+2*jj+1}\nv_cvt_pk_bf16_f32 v{r['CS']+jj}, v{T+4+2*jj}, v{T+5+2*jj}")
    A("v_mul_f32 v13, 0x3b000000, v12\ns_lshl_b32 s46, s3, 3\nv_cvt_f32_u32 v14, s46")
    for t in range(8):
        A(f"v_add_f32 v11, {fbits(t)}, v14\nv_mul_f32 v{T+t}, v11, v13")
    for t in range(8):
        A(f"v_cos_f32 v{r['TW']+2*t}, v{T+t}\nv_sin_f32 v{r['TW']+2*t+1}, v{T+t}")
    for nt in range(2):
        A(f"v_add_f32 v13, {fbits(16*nt)}, v12\nv_mul_f32 v13, 0x3d000000, v13")
        for ks in range(2):
            for i in range(4): A(f"v_mul_f32 v{T+i}, v{NQ+ks*4+i}, v13")
            for i in range(4): A(f"v_sin_f32 v{T+4+i}, v{T+i}")
            for i in range(4): A(f"v_cos_f32 v{T+i}, v{T+i}")
            for i in range(4): A(f"v_cvt_pk_bf16_f32 v{r['BH']+(nt*2+ks)*4+i}, v{T+i}, v{T+4+i}")
    A(f"""
    v_mul_u32_u24 v5, {4*UN2()}, v3
    v_lshl_add_u32 v5, v2, 4, v5
    s_mul_i32 s46, s36, {USLOT()}
    s_mul_i32 s47, s3, {UOCT()}
    s_add_u32 s46, s46, s47
    s_add_u32 s46, s46, {WS_U}
    s_add_u32 s47, s46, {2*UN2()}
    s_add_u32 s48, s46, {16*UN2()}
    s_add_u32 s49, s46, {18*UN2()}
    s_add_u32 s76, s46, {UN2()}
    s_add_u32 s77, s47, {UN2()}
    s_add_u32 s78, s48, {UN2()}
    s_add_u32 s79, s49, {UN2()}
    v_lshlrev_b32 v6, 7, v3
    s_lshl_b32 s50, s3, 9
    s_add_u32 s50, s50, {WS_MOD}
    s_cmp_eq_u32 s2, 0
    s_cselect_b32 s59, s50, {WS_SIZE}
    v_lshlrev_b32 v7, 4, v1
    v_lshl_add_u32 v8, v3, 5, v2
    v_mul_u32_u24 v8, 144, v8
    s_lshl_b32 s51, s3, 5
    s_add_u32 s51, s51, {K2EX}
    v_add_u32 v8, s51, v8
    v_mul_u32_u24 v9, 144, v2
    v_lshl_add_u32 v9, v3, 4, v9
    s_mul_i32 s51, s3, {32*144}
    s_add_u32 s51, s51, {K2EX}
    v_add_u32 v9, s51, v9
    s_mul_i32 s51, s3, {2*HBS()}
    s_add_u32 s51, s51, {K2HB}
    v_bfe_u32 v10, v2, 2, 1
    v_mul_u32_u24 v10, {16 if opt("hbsw", 1) else 0}, v10
    v_xor_b32 v10, v10, v4
    v_add_u32 v10, s51, v10
    v_and_b32 v11, 7, v0
    v_lshrrev_b32 v12, 3, v0
    v_bfe_u32 v14, v12, 3, 1
    v_mul_u32_u24 v14, {1 if opt("hbsw", 1) else 0}, v14
    v_xor_b32 v14, v14, v12
    v_mul_u32_u24 v13, {HBS()}, v11
    v_lshl_add_u32 v13, v14, 4, v13
    v_add_u32 v13, {K2HB}, v13
    v_lshlrev_b32 v11, 4, v11
    v_lshl_add_u32 v11, v12, 9, v11
    s_lshl_b32 s51, s36, 3
    s_add_u32 s51, s51, s37
    s_lshl_b32 s52, s51, 13
    s_lshl_b32 s53, s3, 11
    s_add_u32 s52, s52, s53
    s_add_u32 s52, s52, {WS_X1}
    s_add_u32 s53, s52, 1024
    s_lshr_b32 s54, s51, 2
    s_lshl_b32 s54, s54, 15
    s_and_b32 s55, s51, 3
    s_lshl_b32 s55, s55, 7
    s_add_u32 s54, s54, s55
    s_add_u32 s54, s54, {WS_H2}
    s_add_u32 s55, s54, 16384
    s_mov_b32 s56, {WS_MOD+2*2048}
    s_mov_b32 s57, {WS_MOD+3*2048}
    s_mov_b32 s58, {WS_MOD+4*2048}
    s_lshl_b32 s62, s51, 7
    s_add_u32 s62, s62, {WS_F2}
    v_lshlrev_b32 v250, 6, v1
    """)

def k2_main(A):
    A.c('==== phase 2: 8 output rows per workgroup ====\n32-point DFT over n2 (with twiddles), * (1 + scale) (+ 2048 * shift for row 0), 512-point hidden DFT as 16 x 32,\nx1 = x + gate * y, LayerNorm-2, modulation -> h2')
    r = K2
    U, Z = r['U'], r['Z']
    sk0 = A.label("k2sl")
    A(f"s_cmp_lg_u32 s2, 0\ns_cbranch_scc1 {sk0}")
    for t in range(0 if opt("sepmod", 1) else 8):
        A(f"buffer_load_dwordx4 {a(4*t,4)}, v6, {srd(S_WS)}, s50 offen offset:{t*16} sc1")
    A(f"{sk0}:")
    sep = opt("sepmod", 1)
    if sep:
        m0 = A.label("k2m0")
        A(f"s_cmp_lg_u32 s3, 0\ns_cbranch_scc1 {m0}")
        A(f"buffer_load_dword v254, v250, {srd(S_WS)}, s73 offen sc1\nbuffer_load_dword v255, v250, {srd(S_WS)}, s74 offen sc1\n{m0}:", tag="spin")
    for hh in range(2):
        for ks in range(2):
            for i in range(4):
                A(f"buffer_load_dwordx4 {v(U+((ks*2+hh)*4+i)*4,4)}, v5, {srd(S_WS)}, s{(46, 76)[i&1]+ks*2+(i>>1)} offen offset:{hh*256} sc1")
    if sep:
        m1, lp1 = A.label("k2m1"), A.label("k2ml")
        A(f"""
        s_cmp_lg_u32 s3, 0
        s_cbranch_scc1 {m1}
        s_mov_b32 s{S_CNT}, 0
        s_waitcnt vmcnt(16)
        {lp1}:
        v_xor_b32 v254, s{S_TOK}, v254
        v_xor_b32 v255, s{S_TOK}, v255
        v_or_b32 v254, v254, v255
        v_cmp_ne_u32 vcc, 0, v254
        s_add_u32 s{S_CNT}, s{S_CNT}, 1
        s_cmp_ge_u32 s{S_CNT}, {MAXPOLL}
        s_cbranch_scc1 {m1}
        s_cbranch_vccz {m1}
        buffer_load_dword v254, v250, {srd(S_WS)}, s73 offen sc1
        buffer_load_dword v255, v250, {srd(S_WS)}, s74 offen sc1
        s_waitcnt vmcnt(0)
        s_branch {lp1}
        {m1}:
        s_barrier
        """, tag="spin")
        sk1 = A.label("k2s1")
        A(f"s_cmp_lg_u32 s2, 0\ns_cbranch_scc1 {sk1}")
        for t in range(8):
            A(f"buffer_load_dwordx4 {a(4*t,4)}, v6, {srd(S_WS)}, s50 offen offset:{t*16} sc1", tag="spin")
        A(f"{sk1}:", tag="spin")
    for t in range(8):
        A(f"buffer_load_dwordx4 {v(r['CA']+4*t,4)}, v6, {srd(S_WS)}, s50 offen offset:{2048+t*16} sc1")
    for nm, sr in (("GA", 56), ("CB", 58), ("SB", 57)):
        for nt in range(2):
            A(f"buffer_load_dwordx4 {v(r[nm]+nt*4,4)}, v7, {srd(S_WS)}, s{sr} offen offset:{nt*1024} sc1")
    A.touch_regs([("v", U)])
    for uu in range(2):
        for nt in range(2):
            xr = r['XR'] + (uu*2+nt)*2; xf = r['XF'] + (uu*2+nt)*4
            A(f"v_lshlrev_b32 v{xf}, 16, v{xr}\nv_and_b32 v{xf+1}, 0xffff0000, v{xr}\nv_lshlrev_b32 v{xf+2}, 16, v{xr+1}\nv_and_b32 v{xf+3}, 0xffff0000, v{xr+1}")
    pfl = [op for ch in range(opt("pfA", 0) + opt("pf1", 3), opt("pfB", 4)) for op in wchunk_ops(ch, ch, f"w{ch}")]
    if opt("pfBpos", 2) == 0:
        for op in pfl: A(*op)
    if opt("pfBpos", 2) in (0, 3): pfl = []
    if opt("touch", 11) == 7 and opt("tlate", 0) == 1: touch_late(A)
    if opt("touch", 11) == 8: touch(A)
    if opt("touch", 11) == 9: touch(A, "d")
    if TS and opt("tsu", 1): A(f"v_mov_b32 v{U+60}, v{U+60}"); ts(A, "uarr")
    for hh in range(2):
        for ks in range(2):
            b = U + (ks*2+hh)*16
            for i in range(4):
                for t in range(i+1, 4): A(f"v_swap_b32 v{b+4*i+t}, v{b+4*t+i}")
        for t in range(4):
            for ks in range(2):
                z = Z + (hh*4+t)*4
                A(f"v_mfma_f32_16x16x32_bf16 {v(z,4)}, {v(U+(ks*2+hh)*16+4*t,4)}, {v(r['BS']+ks*4,4)}, {v(z,4) if ks else 0}")
                if pfl and opt("pfBpos", 2) != 4 and (hh == 1 or opt("pfBpos", 2) == 2): A(*pfl.pop(0))
    if opt("pfBpos", 2) != 4:
        for op in pfl: A(*op)
        pfl = []
    ZP, P, Q = 64, 80, 112
    ts(A, "s2")
    for t in range(8):
        for h in range(2): A(f"v_pk_mul_f32 {v(Z+4*t+2*h,2)}, {v(Z+4*t+2*h,2)}, {v(r['CA']+4*t+2*h,2)}")
    sk = A.label("k2sa")
    A(f"s_cmp_lg_u32 s2, 0\ns_cbranch_scc1 {sk}")
    A("s_mov_b32 s59, 0x45000000\ns_mov_b32 exec_lo, 0x00010001\ns_mov_b32 exec_hi, 0x00010001")
    for i in range(32):
        A(f"v_accvgpr_read_b32 v{P}, a{i}\nv_fma_f32 v{Z+i}, v{P}, s59, v{Z+i}")
    A(f"s_mov_b64 exec, -1\n{sk}:")
    for t in range(8):
        A(f"v_cvt_pk_bf16_f32 v{ZP+2*t}, v{Z+4*t}, v{Z+4*t+1}\nv_cvt_pk_bf16_f32 v{ZP+2*t+1}, v{Z+4*t+2}, v{Z+4*t+3}")
        if t >= 1:
            A(f"v_mfma_f32_16x16x16_bf16 {v(P+4*(t-1),4)}, {v(ZP+2*(t-1),2)}, {v(r['CC'],2)}, 0")
            A(f"v_mfma_f32_16x16x16_bf16 {v(Z+4*(t-1),4)}, {v(ZP+2*(t-1),2)}, {v(r['CS'],2)}, 0")
    A(f"v_mfma_f32_16x16x16_bf16 {v(P+28,4)}, {v(ZP+14,2)}, {v(r['CC'],2)}, 0")
    A(f"v_mfma_f32_16x16x16_bf16 {v(Z+28,4)}, {v(ZP+14,2)}, {v(r['CS'],2)}, 0")
    Q = Z; W = 112
    ts(A, "h1m")
    for hh in range(2):
        for uu in range(2):
            idx = [(P+4*(hh*4+t4)+2*uu, Q+4*(hh*4+t4)+2*uu, r['TW']+2*(hh*4+t4), W+uu*8+hh*4+t4) for t4 in range(4)]
            for p, q, tw, w in idx: A(f"v_pk_add_f32 {v(p,2)}, {v(p,2)}, {v(q,2)} op_sel:[0,1] op_sel_hi:[1,0] neg_hi:[0,1]")
            for p, q, tw, w in idx: A(f"v_pk_mul_f32 {v(q,2)}, {v(p,2)}, {v(tw,2)} op_sel:[0,0] op_sel_hi:[1,0]")
            for p, q, tw, w in idx: A(f"v_pk_fma_f32 {v(q,2)}, {v(p,2)}, {v(tw,2)}, {v(q,2)} op_sel:[1,1,0] op_sel_hi:[0,1,1] neg_hi:[1,0,0]")
            for p, q, tw, w in idx: A(f"v_cvt_pk_bf16_f32 v{w}, v{q}, v{q+1}")
            A(f"ds_write_b128 v8, {v(W+uu*8+hh*4,4)} offset:{uu*16*144+hh*16}")
    A("s_waitcnt lgkmcnt(0)\ns_barrier")
    ts(A, "h1")
    AF, Y = 80, 96
    for uu in range(2):
        for ks in range(2):
            A(f"ds_read_b128 {v(AF+(uu*2+ks)*4,4)}, v9 offset:{uu*16*144+ks*64}")
    for op in pfl[:4]: A(*op)
    pfl = pfl[4:]
    for uu in range(2):
        for ks in range(2):
            for nt in range(2):
                y = Y + (uu*2+nt)*4
                A(f"v_mfma_f32_16x16x32_bf16 {v(y,4)}, {v(AF+(uu*2+ks)*4,4)}, {v(r['BH']+(nt*2+ks)*4,4)}, {v(y,4) if ks else 0}")
                if pfl: A(*pfl.pop(0))
    for op in pfl: A(*op)
    XP = 168 if opt("latex1", 2) == 2 else 112
    ts(A, "h2m")
    for uu in range(2):
        for nt in range(2):
            y = Y + (uu*2+nt)*4; xf = r['XF'] + (uu*2+nt)*4; g = r['GA'] + nt*4
            for h in range(2):
                A(f"v_pk_fma_f32 {v(y+2*h,2)}, {v(y+2*h,2)}, {v(g+2*h,2)}, {v(xf+2*h,2)}")
        y = Y + uu*8; t = 64 + 4*uu
        A(f"v_pk_add_f32 {v(t,2)}, {v(y,2)}, {v(y+2,2)}\nv_pk_mul_f32 {v(t+2,2)}, {v(y,2)}, {v(y,2)}")
        A(f"v_pk_add_f32 {v(t,2)}, {v(t,2)}, {v(y+4,2)}\nv_pk_fma_f32 {v(t+2,2)}, {v(y+2,2)}, {v(y+2,2)}, {v(t+2,2)}")
        A(f"v_pk_add_f32 {v(t,2)}, {v(t,2)}, {v(y+6,2)}\nv_pk_fma_f32 {v(t+2,2)}, {v(y+4,2)}, {v(y+4,2)}, {v(t+2,2)}")
        A(f"v_add_f32 v{72+2*uu}, v{t}, v{t+1}\nv_pk_fma_f32 {v(t+2,2)}, {v(y+6,2)}, {v(y+6,2)}, {v(t+2,2)}")
        A(f"v_add_f32 v{73+2*uu}, v{t+2}, v{t+3}")
    def x1_store(uu, nt):
        y = Y + (uu*2+nt)*4; xp = XP + (uu*2+nt)*2
        A(f"v_cvt_pk_bf16_f32 v{xp}, v{y}, v{y+1}\nv_cvt_pk_bf16_f32 v{xp+1}, v{y+2}, v{y+3}")
        A(f"buffer_store_dwordx2 {v(xp,2)}, v4, {srd(S_WS)}, s{52+uu} offen offset:{nt*512} sc1", tag="st")
    late_x1 = opt("latex1", 2)
    def x1_cvt(uu, nt):
        y = Y + (uu*2+nt)*4; xp = XP + (uu*2+nt)*2
        A(f"v_cvt_pk_bf16_f32 v{xp}, v{y}, v{y+1}\nv_cvt_pk_bf16_f32 v{xp+1}, v{y+2}, v{y+3}")
    def x1_st(uu, nt):
        A(f"buffer_store_dwordx2 {v(XP+(uu*2+nt)*2,2)}, v4, {srd(S_WS)}, s{52+uu} offen offset:{nt*512} sc1", tag="x1")
    if late_x1: x1_store = x1_cvt
    A("v_permlane16_swap_b32 v72, v73\nv_permlane16_swap_b32 v74, v75\nv_add_f32 v72, v72, v73\nv_add_f32 v74, v74, v75")
    x1_store(0, 0)
    A("v_permlane32_swap_b32 v72, v74\nv_add_f32 v72, v72, v74")
    x1_store(0, 1)
    A("v_add_f32 v72, v72, v72 row_ror:8")
    A(f"v_mov_b32 v76, 0x3b000000\nv_mov_b32 v77, {fbits(1e-5)}")
    A("v_add_f32 v72, v72, v72 row_ror:4")
    x1_store(1, 0)
    A("v_add_f32 v72, v72, v72 row_ror:2")
    x1_store(1, 1)
    A("""
    v_add_f32 v72, v72, v72 row_ror:1
    v_mul_f32 v72, v72, v76
    v_readlane_b32 s40, v72, 0
    v_readlane_b32 s41, v72, 16
    v_readlane_b32 s42, v72, 32
    v_readlane_b32 s43, v72, 48
    v_mov_b32 v64, s40
    v_mov_b32 v66, s42
    v_fma_f32 v65, -v64, v64, s41
    v_fma_f32 v67, -v66, v66, s43
    v_max_f32 v65, 0, v65
    v_max_f32 v67, 0, v67
    v_add_f32 v65, v65, v77
    v_add_f32 v67, v67, v77
    v_rsq_f32 v65, v65
    v_rsq_f32 v67, v67
    v_mul_f32 v64, -v64, v65
    v_mul_f32 v66, -v66, v67
    """)
    HP = 120
    ts(A, "ln2")
    for uu in range(2):
        for nt in range(2):
            y = Y + (uu*2+nt)*4
            for h in range(2):
                A(f"v_pk_fma_f32 {v(y+2*h,2)}, {v(y+2*h,2)}, {v(64+2*uu,2)}, {v(64+2*uu,2)} op_sel:[0,1,0] op_sel_hi:[1,1,0]")
            for h in range(2):
                A(f"v_pk_fma_f32 {v(y+2*h,2)}, {v(y+2*h,2)}, {v(r['CB']+nt*4+2*h,2)}, {v(r['SB']+nt*4+2*h,2)}")
            hp = HP + (uu*2+nt)*2
            A(f"v_cvt_pk_bf16_f32 v{hp}, v{y}, v{y+1}\nv_cvt_pk_bf16_f32 v{hp+1}, v{y+2}, v{y+3}")
            A(f"ds_write_b64 v10, {v(hp,2)} offset:{uu*HBS()+nt*512}")
    A("s_waitcnt lgkmcnt(0)\ns_barrier")
    ts(A, "hb")
    A("ds_read_b128 v[64:67], v13\nds_read_b128 v[68:71], v13 offset:512")
    A(f"buffer_store_dwordx4 v[64:67], v11, {srd(S_WS)}, s54 offen {LOC('h')}", tag="st")
    A(f"buffer_store_dwordx4 v[68:71], v11, {srd(S_WS)}, s55 offen {LOC('h')}", tag="st")
    if late_x1 == 1:
        for uu in range(2):
            for nt in range(2): x1_st(uu, nt)
    if late_x1 == 2:
        A("v_mov_b32 v176, v4\ns_mov_b32 s80, s52\ns_mov_b32 s81, s53")

WD_ORDER = [37, 38, 39] + list(range(13, 37)) + list(range(0, 13)) + [37, 38, 39]
def k4_ids(A):
    if opt("R", 4) == 4:
        A("s_and_b32 s36, s2, 7\ns_lshl_b32 s36, s36, 2\ns_bfe_u32 s38, s2, 0x20003\ns_add_u32 s36, s36, s38\ns_lshr_b32 s37, s2, 5")
    else:
        A("s_bfe_u32 s36, s2, 0x20001\ns_lshl_b32 s36, s36, 3\ns_bfe_u32 s38, s2, 0x30003\ns_add_u32 s36, s36, s38\ns_and_b32 s37, s2, 1\ns_lshl_b32 s37, s37, 2\ns_lshr_b32 s38, s2, 6\ns_add_u32 s37, s37, s38")
    A("s_lshr_b32 s38, s3, 1\ns_and_b32 s39, s3, 1")
def wd_setup(A):
    k4_ids(A)
    A(f"""
    v_lshrrev_b32 v244, 3, v1
    v_lshlrev_b32 v{V_D}, 10, v244
    v_and_b32 v245, 7, v1
    v_lshlrev_b32 v244, 1, v244
    v_and_b32 v244, 4, v244
    v_xor_b32 v245, v245, v244
    v_lshl_add_u32 v{V_D}, v245, 4, v{V_D}
    s_mul_i32 s{S_DG}, s38, {688*1024}
    s_lshl_b32 s41, s37, 7
    s_add_u32 s{S_DG}, s{S_DG}, s41
    s_lshl_b32 s41, s39, 13
    s_add_u32 s{S_DG}, s{S_DG}, s41
    s_lshl_b32 s{S_DL}, s3, 10
    """)
    if opt("two", 0):
        A(f"""
        s_lshl_b32 s41, s37, 7
        s_lshl_b32 s42, s39, 13
        s_add_u32 s41, s41, s42
        s_mul_i32 s{S_DG}, s38, {6*16384}
        s_add_u32 s{S_DG}, s{S_DG}, s41
        s_add_u32 s42, s38, 84
        s_lshl_b32 s42, s42, 14
        s_add_u32 s{S_DG2}, s42, s41
        """)
        return
    A(f"""
    s_mul_i32 s41, s37, 10
    s_lshr_b32 s41, s41, 3
    s_lshl_b32 s41, s41, 16
    s_add_u32 s{S_DR}, s{S_DG}, s41
    s_add_u32 s{S_DE}, s{S_DG}, {40*16384}
    """)
S_DR, S_DE, S_AB, S_AE = 82, 83, 97, 100
S_DG2, S_ACT, S_ACT2, S_AT = 82, 83, 97, 100
WS_F3B = WS_FLG + 0x30000
NA = 3
def steps4():
    return [None] + [(i, j) for i in range(7) for j in range(NA)] + [(i, j) for i in range(7) for j in range(NA, 6)]
NSA = 1 + 7*NA
def wd_op(step, tag):
    if opt("two", 0):
        st = steps4()[step]
        t = f"s_add_u32 m0, s{S_DL}, {WD_ORDER[step]*4096}\n"
        if st is None: so = S_DG2; t += "s_nop 0\n"
        else: so = S_T; t += f"s_add_u32 s{S_T}, s{S_DG}, {(12*st[0]+st[1])*16384}\n"
        return (t + f"buffer_load_dwordx4 v{V_D}, {srd(S_WD)}, s{so} offen lds", tag)
    return wd_op1(step, tag)
def wd_op1(step, tag):
    t = f"s_add_u32 m0, s{S_DL}, {WD_ORDER[step]*4096}\n"
    if not opt("rot", 0) or step >= 40:
        t += f"s_add_u32 s{S_T}, s{S_DG}, {step*16384}\n"
    else:
        if step and step % 4 == 0:
            t += f"s_add_u32 s{S_DR}, s{S_DR}, 65536\ns_cmp_eq_u32 s{S_DR}, s{S_DE}\ns_cselect_b32 s{S_DR}, s{S_DG}, s{S_DR}\n"
        t += f"s_add_u32 s{S_T}, s{S_DR}, {(step % 4)*16384}\n"
    t += f"buffer_load_dwordx4 v{V_D}, {srd(S_WD)}, s{S_T} offen {opt('dpol','')} lds"
    return (t, tag)

def k3_ids(A):
    A(sl_expr() + "\ns_mov_b32 s37, s38\n" + rb_expr())
def k3_pre(A):
    A.c('==== phase 3 / 4 set-up ====')
    wd_setup(A)
    k3_ids(A)
    A(f"""
    s_lshl_b32 s45, s36, 2
    s_add_u32 s45, s45, s3
    s_lshl_b32 s46, s45, 15
    s_add_u32 s46, s46, {WS_H2}
    v_lshlrev_b32 v4, 4, v1
    v_bfe_u32 v5, v1, 1, 1
    v_mul_u32_u24 v5, {UOFF}, v5
    v_bfe_u32 v6, v1, 2, 2
    v_bfe_u32 v7, v1, 5, 1
    v_lshl_add_u32 v6, v7, 3, v6
    v_mul_u32_u24 v6, 192, v6
    v_add_u32 v5, v5, v6
    v_bfe_u32 v6, v1, 4, 1
    v_lshl_add_u32 v5, v6, 4, v5
    v_and_b32 v6, 1, v1
    v_lshl_add_u32 v5, v6, 3, v5
    v_add_u32 v6, {2*SLOT}, v5
    v_add_u32 v7, {4*SLOT}, v5
    s_mul_i32 s47, s45, {86*1024}
    s_mul_i32 s48, s37, {6*1024}
    s_add_u32 s47, s47, s48
    s_add_u32 s47, s47, {WS_ACT}
    s_add_u32 s48, s47, 2048
    s_add_u32 s51, s47, 4096
    s_cmp_eq_u32 s37, 14
    s_cselect_b32 s48, {WS_SIZE}, s48
    s_cselect_b32 s51, {WS_SIZE}, s51
    s_lshl_b32 s49, s2, 2
    s_add_u32 s49, s49, s3
    s_mul_i32 s49, s49, 11
    v_min_u32 v246, 10, v1
    v_add_u32 v246, s49, v246
    v_lshlrev_b32 v246, 7, v246
    v_mov_b32 v14, {LOG2E}
    v_mov_b32 v15, {LOG2E}
    s_lshl_b32 s61, s36, 4
    s_add_u32 s61, s61, s37
    s_lshl_b32 s61, s61, 7
    s_add_u32 s61, s61, {WS_F3}
    s_lshl_b32 s62, s36, 11
    s_add_u32 s62, s62, {WS_F2}
    """)

def x1_ops():
    return [(f"buffer_store_dwordx2 {v(168+(uu*2+nt)*2,2)}, v176, {srd(S_WS)}, s{80+uu} offen offset:{nt*512} {LOC('x')}", "x1") for uu in range(2) for nt in range(2)]
def k3_main(A, idle):
    done = A.label("k3done")
    if opt("short14", 1):
        short = A.label("k3short")
        A(f"s_cmp_eq_u32 s37, 14\ns_cbranch_scc1 {short}")
        k3_body(A, 6)
        A(f"s_branch {done}\n{short}:")
        A.reset()
        k3_body(A, 2)
    else:
        k3_body(A, 6)
    k3_tail(A, idle, done)

def k3_body(A, NT):
    A.c('==== phase 3: h2[128 rows] @ (w_gate | w_up)[96 columns each], act = silu(g) * u ; w_down streams into the freed LDS ====')
    ACC, AF, NAF = 16, 112, 8
    T, PK = 144, 160
    full = NT == 6
    def h2_op(k):
        t = "s_add_u32 s46, s46, 4096\n" if (k and k % 4 == 0) else ""
        return (t + f"buffer_load_dwordx4 {a(4*k,4)}, v4, {srd(S_WS)}, s46 offen offset:{(k%4)*1024} {LDP('h')}", None)
    H0 = opt("h0", 9)
    for k in range(H0): A(h2_op(k)[0])
    order = [(k, j) for k in range(32) for j in range(NT)]
    N = len(order)
    def slot_of(k):
        ch = k // 4
        return ch if ch < 6 else ch - 6
    def frag_read(n):
        k, j = order[n]
        sl = slot_of(k)
        base = ("v5", "v6", "v7")[sl // 2]
        off = (sl % 2)*SLOT + (k % 4)*16*192 + j*32
        b = AF + (n % NAF)*4
        return f"ds_read_b64_tr_b16 {v(b,2)}, {base} offset:{off}\nds_read_b64_tr_b16 {v(b+2,2)}, {base} offset:{off+4*192}"
    PF = NAF - 2
    CH = 4*NT
    b01, b23, b6, b7 = 2*CH - 1, 4*CH - 1, 6*CH - PF - 1, 7*CH - PF - 1
    assert b6 >= 5*CH - 1 and b7 >= 6*CH - 1
    bars = {b01: [], b23: [], b6: ["w6"], b7: ["w7"]}
    pfB = opt("pfB", 4) + opt("pf3", 2)
    for ch in range(pfB, 6):
        nb = ch*CH - PF - 1
        if ch == 5 and b23 <= nb: bars[b23].append("w5")
        else: bars.setdefault(nb, []).append(f"w{ch}")
    sc = lambda x: x*NT // 6
    side = []
    n0 = 0
    def add(op, step):
        nonlocal n0
        side.append((sc(n0), *op)); n0 += step
    for k in range(H0, 32): add(h2_op(k), 2)
    for ch in range(pfB, 6):
        for op in wchunk_ops(ch, ch, f"w{ch}"): add(op, 2)
    if opt("x1pos", 1) == 0:
        for op in x1_ops(): add(op, 2)
    def at_least(n):
        nonlocal n0
        while sc(n0) <= n: n0 += 1
    if opt("tact", 0) == 1 and full:
        side.append((sc(n0), f"v_lshlrev_b32 v13, 7, v1\nv_min_u32 v13, {47*128}, v13\nbuffer_load_dword v12, v13, {srd(S_WS)}, s47 offen", None)); n0 += 2
    at_least(b01)
    for ch in (6, 7):
        for op in wchunk_ops(ch, ch-6, f"w{ch}"): add(op, 2)
    if opt("x1pos", 1) == 1:
        for op in x1_ops(): add(op, 2)
    for st_ in range(0, 3): add(wd_op(st_, "wd"), 3)
    if opt("cpf", 0) & 4 and full: side.append((max(n0, opt("cpn", 90)), code_pf_text(".Lk3epi", 249, 60), None))
    at_least(b23)
    for st_ in range(3, 14): add(wd_op(st_, "wd"), opt("wdsp", 3))
    at_least(b6)
    for st_ in range(14, 20): add(wd_op(st_, "wd"), 3)
    at_least(b7)
    for st_ in range(20, 27): add(wd_op(st_, "wd"), 3)
    if opt("tact", 0) == 2 and full:
        side.insert([i for i, x in enumerate(side) if x[0] > opt("tactn", 100)][0], (opt("tactn", 100), f"v_lshlrev_b32 v13, 7, v1\nv_min_u32 v13, {47*128}, v13\nbuffer_load_dword v12, v13, {srd(S_WS)}, s47 offen", None))
    assert opt("pfB", 4) >= 2
    if not opt("nostartbar", 1): A("v_accvgpr_read_b32 v13, a0\ns_barrier")
    if full: ts(A, "issued")
    for n in range(PF): A(frag_read(n))
    if full: tc(A, "first")
    for n, (k, j) in enumerate(order):
        acc = ACC + 16*j
        if n % 2 == 0: A.touch_regs([("v", AF+((n+1)%NAF)*4+3)])
        A(f"v_mfma_f32_32x32x16_bf16 {v(acc,16)}, {v(AF+(n%NAF)*4,4)}, {a(4*k,4)}, {v(acc,16) if k else 0}")
        if n == 0 and full: ts(A, "first")
        while side and side[0][0] <= n:
            _, t, tag = side.pop(0); A(t, tag=tag)
            if full: break
        if n in bars:
            for tg in bars[n]: A.wait_tag(tg)
            A("s_barrier")
            if full: ts(A, f"n{n}")
        if n + PF < N: A(frag_read(n+PF))
    for _, t, tag in side: A(t, tag=tag)
    if full:
        A(".Lk3epi:")
        ts(A, "mfma")
        tc(A, "mfma")
    def epi(j):
        acc = ACC + 16*j; pk = PK + 4*(j & 1); t0 = T + 8*(j & 1)
        if opt("fold", 1):
            for i in range(8): A(f"v_exp_f32 v{t0+i}, -v{acc + 8*(i//4) + i%4}")
        else:
            for hf in range(2):
                g = acc + 8*hf; t = t0 + 4*hf
                for h in range(2): A(f"v_pk_mul_f32 {v(t+2*h,2)}, {v(g+2*h,2)}, v[14:15]")
            for i in range(8): A(f"v_exp_f32 v{t0+i}, v{t0+i}")
        for hf in range(2):
            g, u = acc + 8*hf, acc + 8*hf + 4
            for h in range(2): A(f"v_pk_mul_f32 {v(g+2*h,2)}, {v(g+2*h,2)}, {v(u+2*h,2)}")
        for h in range(4): A(f"v_pk_add_f32 {v(t0+2*h,2)}, {v(t0+2*h,2)}, 1.0 op_sel_hi:[1,0]")
        for i in range(8): A(f"v_rcp_f32 v{t0+i}, v{t0+i}")
        for hf in range(2):
            g = acc + 8*hf; t = t0 + 4*hf
            for h in range(2): A(f"v_pk_mul_f32 {v(g+2*h,2)}, {v(g+2*h,2)}, {v(t+2*h,2)}")
        for hf in range(2):
            g = acc + 8*hf
            A(f"v_cvt_pk_bf16_f32 v{pk+2*hf}, v{g}, v{g+1}\nv_cvt_pk_bf16_f32 v{pk+2*hf+1}, v{g+2}, v{g+3}")
        A(f"buffer_store_dwordx4 {v(pk,4)}, v4, {srd(S_WS)}, s{(47,48,51)[j//2]} offen offset:{(j%2)*1024} {LOC('a')}", tag=("sA" if j < NA else "sB"))
    for j in range(NT): epi(j)
    if opt("two", 0):
        A.wait_tag("sA")
        skA = A.label("fa")
        A(f"""
        s_barrier
        s_cmp_lg_u32 s3, 0
        s_cbranch_scc1 {skA}
        v_mov_b32 v250, 0
        v_mov_b32 v251, s{S_TOK}
        s_mov_b64 exec, 1
        buffer_store_dword v251, v250, {srd(S_WS)}, s61 offen sc1
        s_mov_b64 exec, -1
        {skA}:
        """, tag="spin")
    if full: ts(A, "stiss3")

def k3_tail(A, idle, done):
    A.c('---- phase 3, workgroups without columns: warm w_down, fetch their own w_down image ----')
    A(f"s_branch {done}\n{idle}:")
    A.reset()
    A("s_waitcnt vmcnt(0)\ns_barrier")
    if opt("touch", 11) == 11:
        A(f"""
        s_lshl_b32 s49, s36, 2
        s_add_u32 s49, s49, s3
        s_mul_i32 s49, s49, {172*128}
        v_lshlrev_b32 v246, 7, v1
        buffer_load_dword v236, v246, {srd(S_WD)}, s49 offen
        s_add_u32 s50, s49, 8192
        buffer_load_dword v237, v246, {srd(S_WD)}, s50 offen
        s_add_u32 s50, s49, {108*128}
        buffer_load_dword v238, v246, {srd(S_WD)}, s50 offen
        """)
    if opt("latex1", 2) == 2:
        for op in x1_ops(): A(*op)
    for st_ in range(27): A(*wd_op(st_, "wd"))
    A(f"s_waitcnt vmcnt(0)\n{done}:")
    A.reset()

def k4_list(A):
    k4_ids(A)
    A(f"""
    s_mov_b32 s62, {WS_F3}
    s_lshr_b32 s51, s36, 1
    s_lshl_b32 s51, s51, 4
    v_cmp_eq_u32 vcc, 15, v2
    v_cndmask_b32 v250, v2, 0, vcc
    v_add_u32 v250, s51, v250
    """)
    if opt("latex1", 2):
        A(f"""
        v_and_b32 v251, 7, v1
        v_lshlrev_b32 v251, 5, v251
        """)
        if opt("T", 4) == 2: A("s_lshr_b32 s51, s36, 2\ns_and_b32 s52, s36, 3")
        else: A("s_and_b32 s51, s36, 7\ns_lshr_b32 s52, s36, 3")
        A("s_lshl_b32 s52, s52, 3\ns_add_u32 s51, s51, s52\nv_add_u32 v251, s51, v251")
        if opt("T", 4) == 2:
            A("v_and_b32 v252, 7, v251\nv_lshlrev_b32 v252, 1, v252\nv_bfe_u32 v253, v251, 3, 1\nv_add_u32 v252, v252, v253\nv_mov_b32 v253, 0\nv_lshrrev_b32 v251, 4, v251")
        elif opt("T", 4) == 4 and opt("bal", 0):
            A("v_bfe_u32 v252, v251, 1, 2\nv_lshlrev_b32 v252, 2, v252\nv_bfe_u32 v253, v251, 3, 2\nv_add_u32 v252, v252, v253\nv_and_b32 v253, 1, v251\nv_lshrrev_b32 v251, 5, v251\nv_cmp_eq_u32 vcc, 7, v251\nv_add_u32 v254, 7, v253\nv_mul_u32_u24 v253, 7, v253\nv_cndmask_b32 v253, v253, v254, vcc")
        elif opt("T", 4) == 4:
            A("v_bfe_u32 v252, v251, 1, 2\nv_lshlrev_b32 v252, 2, v252\nv_bfe_u32 v253, v251, 3, 2\nv_add_u32 v252, v252, v253\nv_and_b32 v253, 1, v251\nv_lshlrev_b32 v253, 3, v253\nv_lshrrev_b32 v251, 5, v251")
        else:
            A("v_bfe_u32 v252, v251, 2, 1\nv_lshlrev_b32 v252, 3, v252\nv_bfe_u32 v253, v251, 3, 3\nv_add_u32 v252, v252, v253\nv_and_b32 v253, 3, v251\nv_lshlrev_b32 v253, 2, v253\nv_lshrrev_b32 v251, 6, v251")
        A("v_add_u32 v251, v251, v253\nv_lshl_add_u32 v251, v252, 4, v251\nv_cmp_gt_u32 vcc, 16, v1\nv_cndmask_b32 v250, v251, v250, vcc")
    A("v_lshlrev_b32 v250, 7, v250")
def k4_pre(A):
    k4_list(A)
    if opt("stag", 0) & 2: poll_head(A, 62, 250)
    A(f"""
    s_lshl_b32 s44, s36, 1
    s_add_u32 s44, s44, s39
    s_mul_i32 s44, s44, {86*1024}
    s_mul_i32 s45, s38, {43*1024}
    s_add_u32 s44, s44, s45
    s_add_u32 s44, s44, {WS_ACT}
    """)
    if opt("two", 0):
        A(f"""
        s_mul_i32 s45, s38, {37*1024}
        s_sub_u32 s44, s44, s45
        s_add_u32 s45, s38, 84
        s_mul_i32 s51, s38, {6*1024}
        s_sub_u32 s{S_ACT2}, s44, s51
        s_lshl_b32 s45, s45, 10
        s_add_u32 s{S_ACT2}, s{S_ACT2}, s45
        s_mov_b32 s{S_ACT}, s44
        """)
    A(f"""
    v_lshlrev_b32 v4, 4, v1
    v_lshrrev_b32 v8, 3, v0
    v_and_b32 v9, 7, v0
    s_lshl_b32 s46, s36, 16
    s_lshl_b32 s47, s37, 7
    s_add_u32 s46, s46, s47
    s_add_u32 s46, s46, {WS_X1}
    s_add_u32 s48, s46, 32768
    v_lshlrev_b32 v10, 10, v8
    v_lshl_add_u32 v10, v9, 4, v10
    v_lshlrev_b32 v11, 5, v9
    s_lshl_b32 s47, s37, 8
    s_add_u32 s47, s47, {WS_MOD+5*2048}
    s_sub_u32 s49, 64, s36
    s_cmp_eq_u32 s36, 0
    s_cselect_b32 s49, 32, s49
    v_and_b32 v12, 1, v8
    v_cmp_ne_u32 vcc, 0, v12
    v_mov_b32 v12, s36
    v_mov_b32 v13, s49
    v_cndmask_b32 v12, v12, v13, vcc
    v_lshrrev_b32 v13, 1, v8
    v_lshl_add_u32 v12, v13, 6, v12
    v_lshlrev_b32 v12, 10, v12
    v_lshl_add_u32 v12, v9, 4, v12
    s_lshl_b32 s49, s37, 7
    s_add_u32 s50, s49, 0x100000
    v_bfe_u32 v6, v1, 2, 2
    v_bfe_u32 v7, v1, 5, 1
    v_lshl_add_u32 v7, v7, 2, v6
    v_lshlrev_b32 v7, 7, v7
    v_bfe_u32 v13, v1, 4, 1
    v_lshl_add_u32 v7, v13, 5, v7
    v_and_b32 v13, 3, v1
    v_lshl_add_u32 v7, v13, 3, v7
    s_lshl_b32 s41, s38, 11
    v_add_u32 v7, s41, v7
    v_bfe_u32 v13, v1, 3, 1
    v_lshlrev_b32 v13, 6, v13
    v_xor_b32 v6, v7, v13
    v_xor_b32 v7, 64, v6
    v_add_u32 v14, 0x10000, v6
    v_add_u32 v15, 0x10000, v7
    v_add_u32 v16, 0x20000, v6
    v_add_u32 v17, 0x20000, v7
    """)
    if opt("two", 0):
        A(f"v_mov_b32 v249, v250\nv_cmp_eq_u32 vcc, 15, v2\nv_cndmask_b32 v250, v2, 0, vcc\ns_lshr_b32 s51, s36, 1\ns_lshl_b32 s51, s51, 4\nv_add_u32 v250, s51, v250\nv_lshlrev_b32 v250, 7, v250\ns_mov_b32 s63, {WS_F3B}")

def wd_rest(A):
    for st_ in range(27, 40): A(*wd_op(st_, "dr"))
def wd_rest3(A):
    wd_rest(A)
    assert WD_ORDER[27:40] == list(range(13))
    A(f"s_lshl_b32 s74, s37, 7")
    for w in range(1, 4):
        sk = A.label("wr")
        A(f"s_cmp_lg_u32 s3, {w}\ns_cbranch_scc1 {sk}")
        for st_ in range(27 + w - 1, 40, 3):
            st = steps4()[st_] if opt("two", 0) else None
            row = (12*st[0] + st[1]) if st else st_
            A(f"s_mov_b32 m0, {WD_ORDER[st_]*4096}\ns_add_u32 s{S_T}, s74, {row*16384}\nbuffer_load_dwordx4 v{V_D}, {srd(S_WD)}, s{S_T} offen lds")
        A(f"{sk}:")

def k4_main(A):
    A.c('==== phase 4: out[64 x 64] = x1 + gate * (act @ w_down), K split over wave pairs, reduced through LDS ====')
    ACC, AF, NAF = 32, 64, 8
    XG = 96
    def act_op(k):
        if opt("two", 0):
            st = steps4()[k]
            if st is None: return (f"buffer_load_dwordx4 {a(4*k,4)}, v4, {srd(S_WS)}, s{S_ACT2} offen sc1", None)
            off = (12*st[0] + st[1])*1024
            prev = steps4()[k-1]
            t = ""
            if prev is None or ((12*prev[0] + prev[1])*1024) >> 12 != off >> 12:
                t = f"s_add_u32 s{S_AT}, s{S_ACT}, {off & ~0xfff}\n"
            return (t + f"buffer_load_dwordx4 {a(4*k,4)}, v4, {srd(S_WS)}, s{S_AT} offen offset:{off & 0xfff} sc1", None)
        t = "s_add_u32 s44, s44, 4096\n" if (k and k % 4 == 0) else ""
        if opt("rot", 0) and k and k % 4 == 0:
            t = f"s_mov_b32 s44, s{S_AE}\n" if k == 40 else t + f"s_cmp_eq_u32 s44, s{S_AE}\ns_cselect_b32 s44, s{S_AB}, s44\n"
        return (t + f"buffer_load_dwordx4 {a(4*k,4)}, v4, {srd(S_WS)}, s44 offen offset:{(k%4)*1024} {LDP('a')}", None)
    H0 = opt("a0", 12)
    for k in range(H0): A(act_op(k)[0])
    TL = opt("k4tail", 4)
    order4 = [(k, t) for k in range(43 - TL) for t in range(2)] + [(k, t) for t in range(2) for k in range(43 - TL, 43)]
    def frag_read(n):
        k, t = order4[n]
        ad = WD_ORDER[k]*4096
        base = (("v6", "v7"), ("v14", "v15"), ("v16", "v17"))[ad >> 16][t]
        off = ad & 0xffff
        b = AF + (n % NAF)*4
        return f"ds_read_b64_tr_b16 {v(b,2)}, {base} offset:{off}\nds_read_b64_tr_b16 {v(b+2,2)}, {base} offset:{off+1024}"
    two = opt("two", 0)
    nchk = opt("nchk", 12)
    if two:
        pb = A.label("pb")
        A(f"s_cmp_lg_u32 s3, 0\ns_cbranch_scc1 {pb}\nbuffer_load_dword v252, v249, {srd(S_WS)}, s63 offen sc1\n{pb}:", tag="spin")
    side = []
    n0 = 0
    for k in range(H0, 43):
        if two and k == NSA: n0 = max(n0, nchk + 1)
        side.append((n0, *act_op(k))); n0 += opt("astep", 1)
    PF = NAF - 2
    N = 86
    ts(A, "issued4")
    for n in range(PF): A(frag_read(n))
    RS = 272
    early = []
    for n in range(N):
        k, t = order4[n]
        if n % 2 == 0: A.touch_regs([("v", AF+((n+1)%NAF)*4+3)])
        A(f"v_mfma_f32_32x32x16_bf16 {v(ACC+16*t,16)}, {v(AF+(n%NAF)*4,4)}, {a(4*k,4)}, {v(ACC+16*t,16) if k else 0}")
        if n == 0: ts(A, "first4"); tc(A, "first4")
        if side and side[0][0] <= n:
            _, tx, tag = side.pop(0); A(tx, tag=tag)
        if two and n == nchk:
            assert side[0][0] > nchk
            pc, lp = A.label("pc"), A.label("pcl")
            A(f"""
            s_cmp_lg_u32 s3, 0
            s_cbranch_scc1 {pc}
            s_mov_b32 s{S_CNT}, 0
            s_waitcnt vmcnt({NSA - H0})
            {lp}:
            v_cmp_ne_u32 vcc, s{S_TOK}, v252
            s_add_u32 s{S_CNT}, s{S_CNT}, 1
            s_cmp_ge_u32 s{S_CNT}, {MAXPOLL}
            s_cbranch_scc1 {pc}
            s_cbranch_vccz {pc}
            buffer_load_dword v252, v249, {srd(S_WS)}, s63 offen sc1
            s_waitcnt vmcnt(0)
            s_branch {lp}
            {pc}:
            s_barrier
            """, tag="spin")
            ts(A, "sync3b")
        if n == 47:
            A.wait_tag("dr"); A("s_barrier")
            for st_ in range(40, 43): A(*wd_op(st_, "do"))
            A(f"buffer_load_dwordx4 {v(XG,4)}, v10, {srd(S_WS)}, s46 offen {LDP('x')}")
            A(f"buffer_load_dwordx4 {v(XG+4,4)}, v10, {srd(S_WS)}, s48 offen {LDP('x')}")
            A(f"buffer_load_dwordx4 {v(XG+8,4)}, v11, {srd(S_WS)}, s47 offen sc1")
            A(f"buffer_load_dwordx4 {v(XG+12,4)}, v11, {srd(S_WS)}, s47 offen offset:16 sc1")
        if n == 73:
            A.wait_tag("do"); A("s_barrier")
            A(f"""
            s_mul_i32 s51, s3, {32*RS}
            v_and_b32 v18, 31, v1
            v_mul_u32_u24 v18, {RS}, v18
            v_bfe_u32 v19, v1, 5, 1
            v_lshl_add_u32 v18, v19, 4, v18
            v_add_u32 v18, s51, v18
            v_mul_u32_u24 v19, {RS}, v8
            v_lshl_add_u32 v19, v9, 5, v19
            """)
        if n + PF < N: A(frag_read(n+PF))
        if TL >= 3 and n == N - TL + 1: early = list(range(4))
        if early and n >= N - TL + 1:
            for _ in range(-(-len(early) // (N - n))):
                j = early.pop(0); A(f"ds_write_b128 v18, {v(ACC+4*j,4)} offset:{j*32}")
    assert not side
    ts(A, "mfma4"); tc(A, "mfma4")
    XF = 112
    for it in range(2):
        for h in range(4): A(f"v_lshlrev_b32 v{XF+it*8+2*h}, 16, v{XG+it*4+h}\nv_and_b32 v{XF+it*8+2*h+1}, 0xffff0000, v{XG+it*4+h}")
    for t in range(1 if TL >= 3 else 0, 2):
        for j in range(4):
            A(f"ds_write_b128 v18, {v(ACC+16*t+4*j,4)} offset:{t*128+j*32}")
    A("s_waitcnt lgkmcnt(0)\ns_barrier")
    RD = 128
    for it in range(2):
        for kh in range(2):
            for hf in range(2):
                A(f"ds_read_b128 {v(RD+it*16+kh*8+hf*4,4)}, v19 offset:{(kh*64+it*32)*RS+hf*16}")
    for it in range(2):
        z = RD + it*16
        for h in range(4): A(f"v_pk_add_f32 {v(z+2*h,2)}, {v(z+2*h,2)}, {v(z+8+2*h,2)}")
        for h in range(4): A(f"v_pk_fma_f32 {v(z+2*h,2)}, {v(z+2*h,2)}, {v(XG+8+2*h,2)}, {v(XF+it*8+2*h,2)}")
        if opt("scale", 0):
            for h in range(8): A(f"v_mul_f32 v{z+h}, {fbits(1 + opt('scale', 0)/1000)}, v{z+h}")
        for h in range(4): A(f"v_cvt_pk_bf16_f32 v{z+8+h}, v{z+2*h}, v{z+2*h+1}")
        A(f"buffer_store_dwordx4 {v(z+8,4)}, v12, {srd(S_OUT)}, s{49+it} offen {opt('outsc', 'sc1')}")

def LOC(c): return "" if c in opt("loc", "") else "sc1"
def LDP(c): return opt("ldp", "nt") if c in opt("loc", "") else "sc1"
def PLP(c): return opt("plp", "nt") if c in opt("loc", "") else opt("pp", "sc1").replace("+", " ")
def flag_set(A, soff, keep=0, reset=True, c="-", w0extra=False):
    sk = A.label("fs")
    A.c("hand-off: all stores of the workgroup are complete -> wave 0 publishes this launch's token")
    if w0extra:
        l0, l1 = A.label("fw"), A.label("fx")
        A(f"s_cmp_eq_u32 s3, 0\ns_cbranch_scc1 {l0}\ns_waitcnt vmcnt(0)\ns_branch {l1}\n{l0}:\ns_waitcnt vmcnt(1)\n{l1}:")
        keep = 1
    A(f"""
    s_waitcnt vmcnt({keep}) lgkmcnt(0)
    s_barrier
    s_cmp_lg_u32 s3, 0
    s_cbranch_scc1 {sk}
    v_mov_b32 v250, 0
    v_mov_b32 v251, s{S_TOK}
    s_mov_b64 exec, 1
    buffer_store_dword v251, v250, {srd(S_WS)}, s{soff} offen {opt("fp", "sc1").replace("+", " ") if LOC(c) else ""}
    s_mov_b64 exec, -1
    {sk}:
    """)
    A.reset()

def late_prefetch(A, chunks, do_touch, nonln):
    n = 0
    if do_touch: touch(A, nonln=nonln); n += 3
    wchunks(A, chunks); n += 6*len(list(chunks))
    return n

def poll(A, kind, soff, others=None, after0=None):
    sk, lp, w0, jn = A.label("pk"), A.label("pl"), A.label("p0"), A.label("pj")
    A.c("hand-off: wave 0 waits (bounded) for the producers' tokens, the other waves prefetch weights")
    A(f"s_cmp_eq_u32 s3, 0\ns_cbranch_scc1 {w0}")
    if others: others(A)
    A(f"s_branch {jn}\n{w0}:\ns_mov_b32 s{S_CNT}, 0")
    shrink = opt("shrink", 1)
    slp = f"s_sleep {opt('slp', 0)}\n" if opt("slp", 0) else ""
    if kind == "l16": A("v_lshlrev_b32 v250, 7, v2")
    elif kind.startswith("s64"): A("v_lshlrev_b32 v250, 6, v1")
    NG = int(kind[-1]) if kind.startswith("s64") else 0
    if not NG:
        if shrink: A(f"s_mov_b64 exec, {'0xffffff' if kind == 'lst' else '0xffff'}")
        A(f"""
        {lp}:
        buffer_load_dword v252, v250, {srd(S_WS)}, s{soff} offen {PLP('h' if kind == 'l16' else 'a')}
        s_add_u32 s{S_CNT}, s{S_CNT}, 1
        s_waitcnt vmcnt(0)
        v_cmp_ne_u32 vcc, s{S_TOK}, v252
        s_cmp_ge_u32 s{S_CNT}, {MAXPOLL}
        s_cbranch_scc1 {sk}
        """)
        if shrink: A(f"s_and_b64 exec, exec, vcc\ns_cbranch_execz {sk}\n{slp}s_branch {lp}")
        else: A(f"{slp}s_cbranch_vccnz {lp}")
        A(f"{sk}:\ns_mov_b64 exec, -1")
    else:
        for j in range(1, 4): A(f"s_add_u32 s{71+j}, s{soff}, {j*4096}")
        if opt("pre1", 0):
            l1, d1 = A.label("p1"), A.label("p2")
            if opt("pre1", 0) == 2: A(f"s_cmp_lt_u32 s2, 128\ns_cbranch_scc1 {d1}")
            A(f"""
            s_and_b32 s92, s2, 127
            s_lshl_b32 s92, s92, 6
            s_add_u32 s92, s92, s{soff}
            v_mov_b32 v251, 0
            s_mov_b64 exec, 1
            {l1}:
            buffer_load_dword v252, v251, {srd(S_WS)}, s92 offen sc1
            s_add_u32 s{S_CNT}, s{S_CNT}, 1
            s_waitcnt vmcnt(0)
            v_cmp_ne_u32 vcc, s{S_TOK}, v252
            s_cmp_ge_u32 s{S_CNT}, {MAXPOLL}
            s_cbranch_scc1 {d1}
            s_cbranch_vccnz {l1}
            {d1}:
            s_mov_b64 exec, -1
            """)
        M = [84, 86, 88, 90]
        for j in range(4): A(f"s_mov_b64 s[{M[j]}:{M[j]+1}], {-1 if j < NG else 0}")
        A(f"{lp}:")
        for j in range(NG):
            sj = A.label("ps")
            A(f"s_mov_b64 exec, s[{M[j]}:{M[j]+1}]\ns_cbranch_execz {sj}")
            A(f"buffer_load_dword v{252+j}, v250, {srd(S_WS)}, s{soff if j == 0 else 71+j} offen {PLP('-')}\n{sj}:")
        A(f"s_add_u32 s{S_CNT}, s{S_CNT}, 1\ns_waitcnt vmcnt(0)")
        for j in range(NG):
            A(f"s_mov_b64 exec, s[{M[j]}:{M[j]+1}]\nv_cmp_ne_u32 s[{M[j]}:{M[j]+1}], s{S_TOK}, v{252+j}" if shrink else f"s_mov_b64 exec, -1\nv_cmp_ne_u32 s[92:93], s{S_TOK}, v{252+j}\ns_cmp_lg_u64 s[92:93], 0\ns_cselect_b64 s[{M[j]}:{M[j]+1}], -1, 0")
        A(f"""
        s_or_b64 s[92:93], s[84:85], s[86:87]
        s_or_b64 s[94:95], s[88:89], s[90:91]
        s_cmp_ge_u32 s{S_CNT}, {MAXPOLL}
        s_cbranch_scc1 {sk}
        s_or_b64 s[92:93], s[92:93], s[94:95]
        s_cbranch_scc0 {sk}
        {slp}s_branch {lp}
        {sk}:
        s_mov_b64 exec, -1
        """)
    A.reset()
    if after0: after0(A)
    A(f"{jn}:\ns_barrier")

def poll_head(A, soff, vaddr):
    sk = A.label("ph")
    A(f"s_cmp_lg_u32 s3, 0\ns_cbranch_scc1 {sk}\nbuffer_load_dword v253, v{vaddr}, {srd(S_WS)}, s{soff} offen sc1\n{sk}:", tag="spin")
def poll_stag(A, soff, vaddr, others=None):
    sk, lp, w0, jn = A.label("pk"), A.label("pl"), A.label("p0"), A.label("pj")
    A.c("hand-off: wave 0 waits (bounded) for the producers' tokens with two staggered reads in flight")
    A(f"s_cmp_eq_u32 s3, 0\ns_cbranch_scc1 {w0}")
    if others: others(A)
    A(f"""
    s_branch {jn}
    {w0}:
    s_mov_b32 s{S_CNT}, 0
    {lp}:
    buffer_load_dword v252, v{vaddr}, {srd(S_WS)}, s{soff} offen sc1
    s_waitcnt vmcnt(1)
    v_cmp_ne_u32 vcc, s{S_TOK}, v253
    s_add_u32 s{S_CNT}, s{S_CNT}, 1
    s_cbranch_vccz {sk}
    buffer_load_dword v253, v{vaddr}, {srd(S_WS)}, s{soff} offen sc1
    s_waitcnt vmcnt(1)
    v_cmp_ne_u32 vcc, s{S_TOK}, v252
    s_cmp_ge_u32 s{S_CNT}, {MAXPOLL}
    s_cbranch_scc1 {sk}
    s_cbranch_vccnz {lp}
    {sk}:
    """, tag="spin")
    A.reset()
    A(f"{jn}:\ns_barrier")

def build():
    A = Asm()
    name = NAME + "_kernel"
    kernel_begin(A, name)
    done = A.label("done")
    if TS: A("s_memrealtime s[62:63]\ns_waitcnt lgkmcnt(0)")
    entry(A, done)
    if TS:
        A("v_mov_b32 v248, 0\nv_writelane_b32 v248, s62, 0"); _ts["n"] = 1; _ts["names"] = ["entry"]
    m, i_, e = A.label("k1mod"), A.label("k1idle"), A.label("k1end")
    tok = f"s_waitcnt lgkmcnt(0)\ns_mul_i32 s{S_TOK}, s{S_TOK}, 0x9e3779b1\ns_add_u32 s{S_TOK}, s{S_TOK}, 0x7f4a7c15\ns_lshl_b32 s62, s2, 6\ns_add_u32 s62, s62, {WS_F1}"
    pfA = range(opt("pfA", 0)); tm = opt("touch", 11)
    A(f"s_cmp_ge_u32 s2, 128\ns_cbranch_scc1 {m}")
    k1_ln(A)
    ts(A, "stiss")
    if opt("lateset", 0): common_setup(A, 2, True)
    if tm == 9: touch(A, "gu")
    keep = (2 if tm == 9 else 0) + late_prefetch(A, pfA if opt("pfApos", 0) == 3 else [], tm == 5, False)
    A(tok); flag_set(A, 62, keep)
    A(f"s_branch {e}\n{m}:\ns_cmp_ge_u32 s2, 224\ns_cbranch_scc1 {i_}")
    A.reset()
    k1_mod(A)
    tsx(A, 62)
    A.reset()
    keep = late_prefetch(A, pfA if opt("pfMpos", 0) == 3 else [], tm in (5, 6), tm == 6)
    A(tok); flag_set(A, 62, keep)
    if tm == 4 and opt("tafter", 0): touch(A, nonln=True)
    A(f"s_branch {e}\n{i_}:")
    A.reset()
    if opt("karg", 0): A(KREST)
    A(small_srd(S_X, 2097152) + "\n" + small_srd(S_C, 1024) + "\ns_waitcnt lgkmcnt(0)")
    common_setup(A)
    A(tok); flag_set(A, 62, 63)
    if opt("idledelay", 0):
        A(f"v_lshlrev_b32 v4, 2, v0\nbuffer_load_dword v8, v4, {srd(S_C)}, 0 offen\ns_waitcnt vmcnt(0)")
    if tm == 7: touch_early(A)
    def pre_own(base, dst):
        A(f"""
        s_sub_u32 s38, s2, 224
        s_lshl_b32 s38, s38, 2
        s_add_u32 s38, s38, s3
        s_lshl_b32 s38, s38, 14
        s_add_u32 s38, s38, {base}
        s_add_u32 s39, s38, 8192
        v_lshlrev_b32 v235, 7, v1
        buffer_load_dword v{dst}, v235, {srd(S_WS)}, s38 offen
        buffer_load_dword v{dst+1}, v235, {srd(S_WS)}, s39 offen
        """)
    if opt("tu", 0): pre_own(WS_U, 230)
    if tm == 9: touch(A, "gu")
    if tm in (10, 11): touch(A, "gu", nonln=True)
    if opt("th2", 0): pre_own(WS_H2, 232)
    if tm in (2, 5): touch(A)
    if tm in (3, 4, 6): touch(A, nonln=True)
    wchunks(A, pfA)
    A(f"{e}:")
    A.reset()
    ts(A, "f1set")
    if opt("cpf", 0) & 1: A(code_pf_text(".Lk2code", 249, 48))
    if opt("w3pos", 0):
        skw = A.label("w3e")
        A(f"s_cmp_eq_u32 s3, 0\ns_cbranch_scc1 {skw}")
        w3_chunks(A, range(opt("w3pos", 0)))
        A(f"{skw}:")
        A.reset()
    k2_pre(A, (lambda: wchunks(A, range(opt("pfA", 0), opt("pfA", 0) + opt("pf1", 3)))) if not opt("prefirst", 1) and not opt("w3", 1) else None)
    if opt("touch", 11) == 7: touch_late_setup(A)
    if opt("touch", 11) == 7 and opt("tlate", 0) == 0: touch_late(A)
    ts(A, "pre")
    w3 = opt("w3", 1)
    if opt("prefirst", 1) and not w3: wchunks(A, range(opt("pfA", 0), opt("pfA", 0) + opt("pf1", 3)))
    A(f"s_mov_b32 s63, {WS_F1}")
    poll(A, "s64x2" if opt("sepmod", 1) else "s64x4", 63, others=(lambda A_: w3_chunks(A_, range(opt("w3pos", 0), opt("pf1", 3)))) if w3 and opt("w3pos", 0) < opt("pf1", 3) else None)
    A.reset()
    ts(A, "sync1")
    A(".Lk2code:")
    k2_main(A)
    ts(A, "stiss2")
    keep = late_prefetch(A, range(opt("pfA", 0) + opt("pf1", 3), opt("pfB", 4)) if opt("pfBpos", 2) == 3 else [], False, False)
    flag_set(A, 62, keep + (4 if opt("latex1", 2) == 1 else 0), c="h")
    ts(A, "f2set")
    if not opt("w3b", 0): wchunks(A, range(opt("pfB", 4), opt("pfB", 4) + opt("pf3", 2)))
    stag = opt("stag", 0)
    if stag & 1:
        A(rb_expr() + f"\ns_lshl_b32 s63, s36, 11\ns_add_u32 s63, s63, {WS_F2}\nv_lshlrev_b32 v247, 7, v2")
        poll_head(A, 63, 247)
    k3_pre(A)
    idle3 = A.label("k3idle")
    A(f"s_cmp_eq_u32 s37, 15\ns_cbranch_scc1 {idle3}")
    if stag & 1: poll_stag(A, 63, 247)
    else: poll(A, "l16", 62, others=(lambda A_: w3_chunks(A_, range(opt("pfB", 4), opt("pfB", 4) + opt("pf3", 2)))) if opt("w3b", 0) else None)
    A.reset()
    ts(A, "sync2")
    A(".Lk3code:")
    k3_main(A, idle3)
    if opt("two", 0): A(f"s_add_u32 s61, s61, {WS_F3B - WS_F3}")
    flag_set(A, 61, c="a", w0extra=bool(opt("two", 0)))
    ts(A, "f3set")
    k4_pre(A)
    if stag & 2: poll_stag(A, 62, 250, others=wd_rest3)
    else: poll(A, "lst", 62, others=wd_rest3 if opt("wr3", 1) else wd_rest, after0=None if opt("wr3", 1) else wd_rest)
    ts(A, "sync3")
    k4_main(A)
    sk = A.label("ep")
    A(f"""
    s_or_b32 s63, s2, s3
    s_cmp_lg_u32 s63, 0
    s_cbranch_scc1 {sk}
    v_mov_b32 v250, 0
    v_mov_b32 v251, s{S_TOK}
    s_mov_b32 s63, {WS_EP}
    s_mov_b64 exec, 1
    buffer_store_dword v251, v250, {srd(S_WS)}, s63 offen sc1
    s_mov_b64 exec, -1
    {sk}:
    """)
    ts(A, "end")
    probe_end(A)
    ts_flush(A)
    A(f"{done}:\n.Lend:\ns_endpgm")
    if opt("jit", 0):
        import random
        rnd = random.Random(opt("jit", 0)); out = []
        def delay():
            lb = A.label("jit")
            c = f"s_cmp_eq_u32 s3, {rnd.randrange(4)}\ns_cbranch_scc0 {lb}" if rnd.random() < 0.6 else f"s_bitcmp1_b32 s2, {rnd.randrange(8)}\ns_cbranch_scc0 {lb}"
            return [Ins(x) for x in (c + f"\ns_sleep {rnd.randrange(2, 40)}\n{lb}:").split("\n")]
        for I in A.ins:
            if I.op == "s_barrier":
                if rnd.random() < 0.7: out += delay()
                out.append(I)
                if rnd.random() < 0.7: out += delay()
            else: out.append(I)
        A.ins = out
    code = A.finalize()
    return [(None, (256,1,1), (256,1,1), LDS_TOTAL)], code, [kernel_desc(name, 256, 172)]

if __name__ == "__main__":
    hdr = [l.rstrip("\n") for l in open("cdna_kernels/%s.s.ref" % NAME) if l.startswith(";") and "@launch" not in l][:15]
    hdr += ["; " + l for l in """
One persistent launch, 256 workgroups (one per CU) of 4 waves, four phases separated by flag hand-offs in d_ws.
The two DFTs (constant cos / sin matrices) are evaluated as Cooley-Tukey factorisations on the matrix cores:
  rows 2048 = 64 x 32 (phase 1 / phase 2), columns 512 = 16 x 32 (phase 2); the row DFT is applied before the
  column modulation, which commutes with it (the shift only reaches output row 0).
Hand-offs: write-through (sc1) stores, drain, barrier, token store; consumers poll with sc1 loads.  The token is
derived from an epoch word in d_ws that workgroup 0 advances at the end, so stale flags of earlier launches never match.
Workgroup -> role maps assume id % 8 = die for L2 locality only; any placement is correct.
""".strip().split("\n")]
    out = sys.argv[1]
    for kv in sys.argv[2:]:
        k_, v_ = kv.split("=")
        OPT[k_] = int(v_) if v_.lstrip("-").isdigit() else v_
    TS = bool(opt("ts", 0)); PROBE = opt("probe", None)
    launches, code, descs = build()
    open(out, "w").write(file_text(hdr, launches, code, descs))
    if TS: json.dump([_ts["names"]], open(out[:-2] + ".json", "w"))
```
